```python
import torch

def _softmax(x, axis=-1):
    return torch.softmax(x, dim=axis)
def _gelu(x):
    return torch.nn.functional.gelu(x, approximate="tanh")
def _silu(x):
    return torch.nn.functional.silu(x)
def _sigmoid(x):
    return torch.sigmoid(x)
def _layernorm(x, axis=-1, eps=1e-5):
    m = x.mean(dim=axis, keepdim=True)
    v = x.var(dim=axis, keepdim=True, unbiased=False)
    return (x - m) / torch.sqrt(v + eps)
def _scatter_add(tgt, idx, src, axis=0):
    return tgt.clone().index_add_(axis, idx, src)
def _segment_sum(src, seg, n):
    out = torch.zeros((n,) + src.shape[1:], dtype=src.dtype)
    return out.index_add_(0, seg, src)
def _pad(x, pw):
    flat = tuple(v for pair in reversed(pw) for v in pair)
    return torch.nn.functional.pad(x, flat)

kernel_name = 'gather_scatter__kernel_systems_refs_featgraph__graph'

def setup_inputs():

    _w = (lambda a: (lambda t: t.to(torch.bfloat16) if t.is_floating_point() else t)(torch.as_tensor(a)))
    N, deg, D = 12500, 32, 128
    E = N * deg
    scale = D ** -0.5
    src = (lambda lo, hi, *s: torch.randint(lo, hi, s))(0, N, E).to(torch.int64)
    dst = (lambda lo, hi, *s: torch.randint(lo, hi, s))(0, N, E).to(torch.int64)
    return {
        "x": _w((lambda *s: torch.randn(*s, dtype=torch.bfloat16) * 0.8)(N, D)),
        "src": _w(src),
        "dst": _w(dst),
        "w_q": _w((lambda *s: torch.randn(*s, dtype=torch.bfloat16) * 0.8)(D, D) * scale),
        "w_v": _w((lambda *s: torch.randn(*s, dtype=torch.bfloat16) * 0.05)(D, D) * scale),
    }

def reference(x, src, dst, w_q, w_v):
    N, D = x.shape
    xs = x[src]
    xd = x[dst]
    q = xd @ w_q
    logits = torch.einsum('ed,ed->e', xs, q) * (float(D) ** -0.5)
    alpha = _sigmoid(logits)
    msg = alpha[:, None] * (xs @ w_v)
    return _segment_sum(msg, dst, N)
```

```python
import sys, argparse

NAME = "gather_scatter__kernel_systems_refs_featgraph__graph"
N, E, D = 12500, 400000, 128
T = 49
NB = 256
CH = 1600
C = 250
S = 16
XBYTES = N * 256
EBYTES = E * 4
WS_CELLS = 0
CELLROW = C * S * 4
WS_OVF = 0x400000
OVF_STRIDE = 8192
WS_Q = 0x600000
WS_USED = WS_Q + NB * T * 256 + 4096
WS_STAMP = 0x1000000
OOB = 0x40000000
DUMMY = 63

class A:
    def __init__(self):
        self.l = []
    def __call__(self, s):
        for line in s.strip("\n").split("\n"):
            line = line.strip()
            if not line:
                continue
            if line.endswith(":") and " " not in line:
                self.l.append(line)
            else:
                self.l.append("  " + line)
    def text(self):
        return "\n".join(self.l) + "\n"

def srd(a, d, base, size):
    a(f"""
    s_mov_b32 s{d}, s{base}
    s_mov_b32 s{d+1}, s{base+1}
    s_mov_b32 s{d+2}, {size}
    s_mov_b32 s{d+3}, 0x00020000
    """)

def vr(b, n):
    return f"v[{b}:{b+n-1}]"

class Stamps:
    def __init__(self, on, sbase, area):
        self.on, self.sbase, self.area, self.n = on, sbase, area, 0
    def stamp(self, a):
        if not self.on: return
        r = self.sbase + 2 * self.n
        a(f"s_memrealtime s[{r}:{r+1}]")
        self.n += 1
    def flush(self, a, srd_lo, vtmp, wave_sgpr):
        if not self.on: return
        a(f"""
        s_waitcnt lgkmcnt(0)
        s_lshl_b32 s3, s2, 4
        s_add_u32 s3, s3, s{wave_sgpr}
        s_lshl_b32 s3, s3, 6
        s_add_u32 s3, s3, {self.area}
        s_mov_b64 exec, 1
        """)
        for i in range(self.n):
            a(f"v_mov_b32 v{vtmp}, s{self.sbase + 2*i}")
            a(f"v_mov_b32 v{vtmp+1}, s3")
            a(f"buffer_store_dword v{vtmp}, v{vtmp+1}, s[{srd_lo}:{srd_lo+3}], 0 offen offset:{4*i}")
        a("s_waitcnt vmcnt(0)")

WSTRIDE = 320

def tile_a_addr(a, vdst, vlane, vtmp, vtmp2, sP, wbase):
    a(f"""
    v_lshrrev_b32 v{vtmp}, 5, v{vlane}
    v_lshlrev_b32 v{vtmp}, 3, v{vtmp}
    v_bfe_u32 v{vtmp2}, v{vlane}, 2, 2
    v_add_u32 v{vtmp}, v{vtmp}, v{vtmp2}
    v_mul_u32_u24 v{vdst}, {WSTRIDE}, v{vtmp}
    v_bfe_u32 v{vtmp}, v{vlane}, 4, 1
    v_lshlrev_b32 v{vtmp}, 2, v{vtmp}
    v_and_b32 v{vtmp2}, 3, v{vlane}
    v_add_u32 v{vtmp}, v{vtmp}, v{vtmp2}
    v_and_b32 v{vtmp2}, 1, v{vtmp}
    v_lshlrev_b32 v{vtmp2}, 2, v{vtmp2}
    v_lshrrev_b32 v{vtmp}, 1, v{vtmp}
    v_add_u32 v{vtmp}, v{vtmp}, v{vtmp2}
    v_lshlrev_b32 v{vtmp}, 3, v{vtmp}
    v_add_u32 v{vdst}, v{vdst}, v{vtmp}
    s_lshl_b32 s3, s{sP}, 6
    s_add_u32 s3, s3, {wbase}
    v_add_u32 v{vdst}, s3, v{vdst}
    """)

def gen_k1(opt):
    a = A()
    HIST, OVC, JUNK, STAGE = 0, 1024, 1040, 2048
    XT = STAGE + 16384
    XSTR = 272
    WQ = XT + 64 * XSTR
    LDS = WQ + 128 * WSTRIDE
    st = Stamps(opt.stamps, 60, WS_STAMP)
    sX, sSRC, sDST, sWQ, sWS = 16, 20, 24, 28, 32
    sWave, sP, sNH = 36, 37, 38
    vLane, vW = 1, 2
    vDst, vSrc = 4, 8
    vXT = 12
    vWl = 20
    vEnt, vAdr, vRank = 36, 40, 44
    vT0, vT1, vT2, vT3 = 48, 49, 50, 51
    vOne, vNeg, vZero = 52, 56, 60
    vXa, vWa = 61, 62
    vAcc = 64
    vAf, vBf = 80, 96
    a(f"""
    {NAME}_k1_kernel:
    s_cmp_ge_u32 s2, {NB}
    s_cbranch_scc1 K1_END
    s_load_dwordx4 s[4:7], s[0:1], 0
    s_load_dwordx4 s[8:11], s[0:1], 16
    s_load_dwordx2 s[12:13], s[0:1], 56
    """)
    st.stamp(a)
    a(f"""
    v_and_b32 v{vLane}, 63, v0
    v_lshrrev_b32 v{vW}, 6, v0
    v_mov_b32 v{vOne}, 1
    v_readfirstlane_b32 s{sWave}, v{vW}
    v_mov_b32 v{vNeg}, -1
    v_mov_b32 v{vNeg+1}, -1
    v_mov_b32 v{vNeg+2}, -1
    v_mov_b32 v{vNeg+3}, -1
    v_mov_b32 v{vZero}, 0
    s_and_b32 s{sP}, s{sWave}, 3
    s_lshr_b32 s{sNH}, s{sWave}, 2
    s_waitcnt lgkmcnt(0)
    """)
    srd(a, sX, 4, XBYTES); srd(a, sSRC, 6, EBYTES); srd(a, sDST, 8, EBYTES)
    srd(a, sWQ, 10, 32768); srd(a, sWS, 12, WS_USED if not opt.stamps else 0x2000000)
    a(f"""
    s_cmp_ge_u32 s2, {C}
    s_cbranch_scc1 K1_NOEDGE0
    v_cmp_gt_u32 vcc, {CH//4}, v0
    s_and_saveexec_b64 s[40:41], vcc
    s_cbranch_execz K1_EDGE0_DONE
    s_mul_i32 s14, s2, {CH*4}
    v_lshl_add_u32 v{vT0}, v0, 4, s14
    buffer_load_dwordx4 {vr(vDst,4)}, v{vT0}, s[{sDST}:{sDST+3}], 0 offen
    buffer_load_dwordx4 {vr(vSrc,4)}, v{vT0}, s[{sSRC}:{sSRC+3}], 0 offen
    K1_EDGE0_DONE:
    s_mov_b64 exec, s[40:41]
    K1_NOEDGE0:
    s_mul_i32 s14, s2, {T*256}
    v_lshl_add_u32 v{vT0}, v0, 4, s14
    v_add_u32 v{vT1}, 8192, v{vT0}
    v_lshlrev_b32 v{vT2}, 4, v0
    buffer_load_dwordx4 {vr(vXT,4)}, v{vT0}, s[{sX}:{sX+3}], 0 offen
    buffer_load_dwordx4 {vr(vXT+4,4)}, v{vT1}, s[{sX}:{sX+3}], 0 offen
    """)
    for i in range(4):
        a(f"s_mov_b32 s14, {8192*i}")
        a(f"buffer_load_dwordx4 {vr(vWl+4*i,4)}, v{vT2}, s[{sWQ}:{sWQ+3}], s14 offen")
    if opt.prefetch:
        npf = opt.prefetch
        per = 100352
        a(f"""
        s_lshr_b32 s14, s2, 3
        s_mul_i32 s14, s14, {per}
        v_lshlrev_b32 v{vT3}, 7, v0
        v_add_u32 v{vT3}, s14, v{vT3}
        """)
        a(f"""
        buffer_load_dword v112, v{vT3}, s[{sX}:{sX+3}], 0 offen
        v_add_u32 v{vT3}, 65536, v{vT3}
        v_mov_b32 v{vT2}, {OOB}
        v_cmp_gt_u32 vcc, {(per - 65536)//128}, v0
        s_nop 1
        v_cndmask_b32_e64 v{vT3}, v{vT2}, v{vT3}, vcc
        buffer_load_dword v113, v{vT3}, s[{sX}:{sX+3}], 0 offen
        """)
    a(f"""
    v_lshlrev_b32 v{vT0}, 4, v0
    ds_write_b128 v{vT0}, {vr(vNeg,4)} offset:{STAGE}
    ds_write_b128 v{vT0}, {vr(vNeg,4)} offset:{STAGE+8192}
    v_cmp_ge_u32 vcc, 256, v0
    s_and_saveexec_b64 s[40:41], vcc
    v_lshlrev_b32 v{vT1}, 2, v0
    ds_write_b32 v{vT1}, v{vZero} offset:{HIST}
    s_mov_b64 exec, s[40:41]
    s_waitcnt lgkmcnt(0)
    s_barrier
    """)
    st.stamp(a)
    npfl = 2 if opt.prefetch else 0
    a(f"""
    s_cmp_ge_u32 s2, {C}
    s_cbranch_scc1 K1_NOEDGE1
    v_cmp_gt_u32 vcc, {CH//4}, v0
    s_and_saveexec_b64 s[40:41], vcc
    s_cbranch_execz K1_EDGE1_DONE
    s_mov_b32 s15, -{T}
    s_waitcnt vmcnt({6+npfl})
    """)
    st.stamp(a)
    for i in range(4):
        a(f"""
        v_mul_u32_u24 v{vT0}, 21400, v{vDst+i}
        v_lshrrev_b32 v{vT0}, 20, v{vT0}
        v_mad_i32_i24 v{vT1}, v{vT0}, s15, v{vDst+i}
        v_lshl_or_b32 v{vEnt+i}, v{vSrc+i}, 8, v{vT1}
        v_lshl_or_b32 v{vEnt+i}, v{vT0}, 24, v{vEnt+i}
        v_lshlrev_b32 v{vAdr+i}, 2, v{vT0}
        ds_add_rtn_u32 v{vRank+i}, v{vAdr+i}, v{vOne} offset:{HIST}
        """)
    a(f"v_mov_b32 v{vT3}, {JUNK}")
    a("s_waitcnt lgkmcnt(0)")
    for i in range(4):
        a(f"""
        v_cmp_gt_u32 s[{42+2*i}:{43+2*i}], 16, v{vRank+i}
        v_lshlrev_b32 v{vT0}, 4, v{vAdr+i}
        v_lshl_add_u32 v{vT0}, v{vRank+i}, 2, v{vT0}
        v_add_u32 v{vT0}, {STAGE}, v{vT0}
        v_cndmask_b32_e64 v{vT0}, v{vT3}, v{vT0}, s[{42+2*i}:{43+2*i}]
        ds_write_b32 v{vT0}, v{vEnt+i}
        """)
    a(f"""
    s_and_b64 s[50:51], s[42:43], s[44:45]
    s_and_b64 s[52:53], s[46:47], s[48:49]
    s_and_b64 s[50:51], s[50:51], s[52:53]
    s_andn2_b64 s[50:51], exec, s[50:51]
    s_cbranch_scc0 K1_EDGE1_DONE
    s_mov_b64 s[54:55], exec
    s_mul_i32 s14, s2, {OVF_STRIDE}
    s_add_u32 s14, s14, {WS_OVF + 4}
    v_mov_b32 v{vT3}, {OVC}
    """)
    for i in range(4):
        a(f"""
        s_andn2_b64 exec, s[54:55], s[{42+2*i}:{43+2*i}]
        s_cbranch_execz K1_OV_{i}
        ds_add_rtn_u32 v{vT0}, v{vT3}, v{vOne}
        s_waitcnt lgkmcnt(0)
        v_lshl_add_u32 v{vT0}, v{vT0}, 2, s14
        buffer_store_dword v{vEnt+i}, v{vT0}, s[{sWS}:{sWS+3}], 0 offen
        K1_OV_{i}:
        """)
    a(f"""
    K1_EDGE1_DONE:
    s_mov_b64 exec, s[40:41]
    K1_NOEDGE1:
    """)
    a(f"""
    v_lshrrev_b32 v{vT0}, 4, v0
    v_and_b32 v{vT1}, 15, v0
    v_lshlrev_b32 v{vT1}, 4, v{vT1}
    v_mul_u32_u24 v{vT2}, {XSTR}, v{vT0}
    v_add_u32 v{vT2}, v{vT2}, v{vT1}
    v_mul_u32_u24 v{vT3}, {WSTRIDE}, v{vT0}
    v_add_u32 v{vT3}, v{vT3}, v{vT1}
    v_add_u32 v{vT3}, {WQ}, v{vT3}
    s_waitcnt vmcnt({4+npfl})
    ds_write_b128 v{vT2}, {vr(vXT,4)} offset:{XT}
    ds_write_b128 v{vT2}, {vr(vXT+4,4)} offset:{XT + 32*XSTR}
    s_waitcnt vmcnt({npfl})
    """)
    for i in range(4):
        a(f"ds_write_b128 v{vT3}, {vr(vWl+4*i,4)} offset:{32*i*WSTRIDE}")
    a("""
    s_waitcnt lgkmcnt(0)
    s_barrier
    """)
    st.stamp(a)
    a(f"""
    s_cmp_ge_u32 s2, {C}
    s_cbranch_scc1 K1_NOEDGE2
    v_lshlrev_b32 v{vT0}, 4, v0
    ds_read_b128 {vr(vEnt,4)}, v{vT0} offset:{STAGE}
    ds_read_b128 {vr(vAdr,4)}, v{vT0} offset:{STAGE+8192}
    v_mov_b32 v{vT3}, {OVC}
    ds_read_b32 v{vRank}, v{vT3}
    v_lshrrev_b32 v{vT1}, 2, v0
    v_mul_u32_u24 v{vT1}, {CELLROW}, v{vT1}
    v_and_b32 v{vT2}, 3, v0
    v_lshl_add_u32 v{vT1}, v{vT2}, 4, v{vT1}
    s_lshl_b32 s14, s2, 6
    s_add_u32 s15, s14, {128*CELLROW}
    s_waitcnt lgkmcnt(0)
    buffer_store_dwordx4 {vr(vEnt,4)}, v{vT1}, s[{sWS}:{sWS+3}], s14 offen {opt.cellst}
    buffer_store_dwordx4 {vr(vAdr,4)}, v{vT1}, s[{sWS}:{sWS+3}], s15 offen {opt.cellst}
    v_cmp_eq_u32 vcc, 0, v0
    s_and_saveexec_b64 s[40:41], vcc
    s_cbranch_execz K1_HDR_DONE
    s_mul_i32 s14, s2, {OVF_STRIDE}
    s_add_u32 s14, s14, {WS_OVF}
    v_mov_b32 v{vT2}, s14
    buffer_store_dword v{vRank}, v{vT2}, s[{sWS}:{sWS+3}], 0 offen {opt.cellst}
    K1_HDR_DONE:
    s_mov_b64 exec, s[40:41]
    K1_NOEDGE2:
    """)
    st.stamp(a)
    tile_a_addr(a, vWa, vLane, vT0, vT1, sP, WQ)
    a(f"""
    v_and_b32 v{vT0}, 31, v{vLane}
    s_lshl_b32 s14, s{sNH}, 5
    v_add_u32 v{vT0}, s14, v{vT0}
    v_mul_u32_u24 v{vXa}, {XSTR}, v{vT0}
    v_lshrrev_b32 v{vT1}, 5, v{vLane}
    v_lshl_add_u32 v{vXa}, v{vT1}, 4, v{vXa}
    """)
    vA8, vB8 = 80, 4
    for ks in range(8):
        a(f"ds_read_b64_tr_b16 {vr(vA8+4*ks,2)}, v{vWa} offset:{ks*16*WSTRIDE}")
        a(f"ds_read_b64_tr_b16 {vr(vA8+4*ks+2,2)}, v{vWa} offset:{ks*16*WSTRIDE + 4*WSTRIDE}")
        a(f"ds_read_b128 {vr(vB8+4*ks,4)}, v{vXa} offset:{XT + 32*ks}")
        if ks % 4 == 3:
            a("s_waitcnt lgkmcnt(0)")
            for k2 in range(ks-3, ks+1):
                c = "0" if k2 == 0 else vr(vAcc,16)
                a(f"v_mfma_f32_32x32x16_bf16 {vr(vAcc,16)}, {vr(vA8+4*k2,4)}, {vr(vB8+4*k2,4)}, {c}")
    a(f"""
    s_mul_i32 s14, s2, {T*256}
    s_add_u32 s14, s14, {WS_Q}
    s_lshl_b32 s15, s{sP}, 6
    s_add_u32 s14, s14, s15
    v_lshlrev_b32 v{vT2}, 8, v{vT0}
    v_lshl_add_u32 v{vT2}, v{vT1}, 5, v{vT2}
    v_add_u32 v{vT2}, s14, v{vT2}
    v_cmp_gt_u32 vcc, {T}, v{vT0}
    s_nop 7
    s_nop 3
    """)
    for i in range(8):
        a(f"v_cvt_pk_bf16_f32 v{vA8+i}, v{vAcc+2*i}, v{vAcc+2*i+1}")
    a(f"""
    s_and_saveexec_b64 s[40:41], vcc
    s_cbranch_execz K1_Q_DONE
    buffer_store_dwordx4 {vr(vA8,4)}, v{vT2}, s[{sWS}:{sWS+3}], 0 offen {opt.qst}
    buffer_store_dwordx4 {vr(vA8+4,4)}, v{vT2}, s[{sWS}:{sWS+3}], 0 offen offset:16 {opt.qst}
    K1_Q_DONE:
    s_mov_b64 exec, s[40:41]
    """)
    st.stamp(a)
    if opt.stamps:
        a("s_waitcnt vmcnt(0)")
        st.stamp(a)
    st.flush(a, sWS, vT0, sWave)
    a("""
    K1_END:
    s_endpgm
    """)
    return a.text(), LDS, 116

def gen_k2(opt):
    a = A()
    HIST, MAXC = 0, 256
    LIST = 512
    LISTW = 5120
    UNODE = LIST + LISTW * 4
    QS = UNODE + 1280 * 4
    AGG = QS + 64 * 256
    ASTR = 528
    WV = AGG + 64 * ASTR
    LDS = WV + 128 * WSTRIDE
    st = Stamps(opt.stamps, 64, WS_STAMP + 0x40000)
    sX, sWV, sOUT, sWS = 12, 16, 20, 24
    sBeta, sWave, sR, sNR = 28, 29, 30, 31
    sOdd = 32
    s528, sBeta24, sHB, sP, sNH = 34, 35, 36, 37, 38
    sM = 40
    sSave = 54
    sCnt = 56
    vLane, vC16, vC4, vLA, vUA, vPrev = 1, 2, 3, 4, 5, 6
    vL4 = 7
    vQC, vQN = 8, 10
    vALo, vAHi, vHiM = 12, 13, 14
    vT0, vT1, vT2, vT3 = 16, 17, 18, 19
    vAcc = 20
    vP = 28
    vE = 36
    vQ = 44
    vX = 52
    vQB = 15
    vCand = 52
    vHdr = 56
    vSo = 60
    vN4 = 68
    vRk = 76
    vWvl = 84
    vZ4 = 92
    a(f"""
    {NAME}_k2_kernel:
    s_cmp_ge_u32 s2, {NB}
    s_cbranch_scc1 K2_END
    s_load_dwordx2 s[4:5], s[0:1], 0
    s_load_dwordx4 s[8:11], s[0:1], 32
    s_load_dwordx2 s[6:7], s[0:1], 56
    """)
    st.stamp(a)
    a(f"""
    v_and_b32 v{vLane}, 63, v0
    v_lshrrev_b32 v{vT0}, 6, v0
    s_and_b32 s{sBeta}, s2, 7
    v_readfirstlane_b32 s{sWave}, v{vT0}
    s_lshl_b32 s{sBeta}, s{sBeta}, 5
    s_lshr_b32 s3, s2, 3
    s_add_u32 s{sBeta}, s{sBeta}, s3
    s_lshl_b32 s{sBeta24}, s{sBeta}, 24
    s_mov_b32 s{s528}, {ASTR}
    s_mov_b32 s{sOdd}, 0xaaaaaaaa
    s_mov_b32 s{sOdd+1}, 0xaaaaaaaa
    s_mov_b32 s{sR}, 0
    v_and_b32 v{vT0}, 15, v{vLane}
    v_lshlrev_b32 v{vC16}, 4, v{vT0}
    v_lshlrev_b32 v{vC4}, 2, v{vT0}
    v_add_u32 v{vC4}, {AGG}, v{vC4}
    v_add_u32 v{vQB}, {QS}, v{vC16}
    v_lshlrev_b32 v{vL4}, 2, v{vLane}
    v_mov_b32 v{vHiM}, 0xffff0000
    v_mov_b32 v{vCand}, -1
    v_mov_b32 v{vCand+1}, -1
    v_mov_b32 v{vCand+2}, -1
    v_mov_b32 v{vCand+3}, -1
    v_mov_b32 v{vHdr}, 0
    s_waitcnt lgkmcnt(0)
    """)
    srd(a, sX, 4, XBYTES); srd(a, sWV, 8, 32768); srd(a, sOUT, 10, XBYTES)
    srd(a, sWS, 6, WS_USED if not opt.stamps else 0x2000000)
    a(f"""
    s_mul_i32 s3, s{sBeta}, {CELLROW}
    v_cmp_gt_u32 vcc, {C*4}, v0
    s_and_saveexec_b64 s[{sSave}:{sSave+1}], vcc
    s_cbranch_execz K2_L0
    v_lshlrev_b32 v{vT0}, 4, v0
    buffer_load_dwordx4 {vr(vCand,4)}, v{vT0}, s[{sWS}:{sWS+3}], s3 offen
    K2_L0:
    s_mov_b64 exec, s[{sSave}:{sSave+1}]
    v_cmp_gt_u32 vcc, {C}, v0
    s_and_saveexec_b64 s[{sSave}:{sSave+1}], vcc
    s_cbranch_execz K2_L1
    v_lshlrev_b32 v{vT0}, 13, v0
    s_mov_b32 s3, {WS_OVF}
    buffer_load_dwordx4 {vr(vHdr,4)}, v{vT0}, s[{sWS}:{sWS+3}], s3 offen
    K2_L1:
    s_mov_b64 exec, s[{sSave}:{sSave+1}]
    s_cmp_ge_u32 s{sWave}, 13
    s_cbranch_scc1 K2_L2
    s_mul_i32 s3, s{sBeta}, {T*256}
    s_add_u32 s3, s3, {WS_Q}
    s_lshl_b32 s{sCnt}, s{sWave}, 10
    s_add_u32 s3, s3, s{sCnt}
    s_add_u32 s{sCnt}, s{sCnt}, {QS}
    s_mov_b32 m0, s{sCnt}
    v_lshlrev_b32 v{vT0}, 4, v{vLane}
    buffer_load_dwordx4 v{vT0}, s[{sWS}:{sWS+3}], s3 offen lds
    K2_L2:
    v_lshlrev_b32 v{vT0}, 4, v0
    s_mov_b32 s3, 16384
    buffer_load_dwordx4 {vr(vWvl,4)}, v{vT0}, s[{sWV}:{sWV+3}], 0 offen
    buffer_load_dwordx4 {vr(vWvl+4,4)}, v{vT0}, s[{sWV}:{sWV+3}], s3 offen
    """)
    a(f"""
    v_mov_b32 v{vZ4}, 0
    v_mov_b32 v{vZ4+1}, 0
    v_mov_b32 v{vZ4+2}, 0
    v_mov_b32 v{vZ4+3}, 0
    v_lshlrev_b32 v{vT0}, 4, v0
    v_add_u32 v{vT0}, {AGG}, v{vT0}
    ds_write_b128 v{vT0}, {vr(vZ4,4)}
    ds_write_b128 v{vT0}, {vr(vZ4,4)} offset:16384
    v_cmp_gt_u32 vcc, {(64*ASTR - 32768)//16}, v0
    s_and_saveexec_b64 s[{sSave}:{sSave+1}], vcc
    ds_write_b128 v{vT0}, {vr(vZ4,4)} offset:32768
    s_mov_b64 exec, s[{sSave}:{sSave+1}]
    """)
    a(f"""
    K2_ROUND:
    v_mov_b32 v{vZ4}, {OOB}
    v_mov_b32 v{vZ4+1}, {OOB}
    v_mov_b32 v{vZ4+2}, {OOB}
    v_mov_b32 v{vZ4+3}, {OOB}
    v_mov_b32 v{vT1}, {DUMMY*256}
    v_mov_b32 v{vT2}, 0
    v_lshlrev_b32 v{vT0}, 4, v0
    v_lshlrev_b32 v{vT3}, 2, v0
    ds_write_b128 v{vT0}, {vr(vZ4,4)} offset:{LIST}
    ds_write_b32 v{vT3}, v{vT1} offset:{UNODE}
    s_cmp_ge_u32 s{sWave}, 4
    s_cbranch_scc1 K2_I1
    ds_write_b128 v{vT0}, {vr(vZ4,4)} offset:{LIST+16384}
    ds_write_b32 v{vT3}, v{vT1} offset:{UNODE+4096}
    s_cmp_ge_u32 s{sWave}, 2
    s_cbranch_scc1 K2_I1
    ds_write_b32 v{vT3}, v{vT2} offset:{HIST}
    K2_I1:
    s_waitcnt lgkmcnt(0)
    s_barrier
    """)
    st.stamp(a)
    def decode(word, i, extra_mask=None):
        m = sM + 2*i
        a(f"""
        v_xor_b32 v{vT0}, s{sBeta24}, v{word}
        v_and_b32 v{vT1}, 0xff0000c0, v{vT0}
        v_cmp_eq_u32 s[{m}:{m+1}], 0, v{vT1}
        v_and_b32 v{vSo+i}, 0x00ffff00, v{vT0}
        v_and_b32 v{vN4+i}, 0x3f, v{vT0}
        v_lshlrev_b32 v{vN4+i}, 2, v{vN4+i}
        """)
        if extra_mask:
            a(f"s_and_b64 s[{m}:{m+1}], s[{m}:{m+1}], {extra_mask}")
        a(f"""
        s_mov_b64 exec, s[{m}:{m+1}]
        ds_add_rtn_u32 v{vRk+i}, v{vN4+i}, v{vT3} offset:{HIST}
        s_mov_b64 exec, -1
        """)
    a(f"""
    v_mov_b32 v{vT3}, 1
    s_cmp_eq_u32 s{sR}, 0
    s_cbranch_scc0 K2_WAITR
    s_waitcnt vmcnt(2)
    s_branch K2_WAITD
    K2_WAITR:
    s_waitcnt vmcnt(0)
    K2_WAITD:
    """)
    st.stamp(a)
    for i in range(4):
        decode(vCand+i, i)
    for i in range(4, 7):
        a(f"s_mov_b64 s[{sM+2*i}:{sM+2*i+1}], 0")
    a(f"""
    v_cmp_lt_u32 vcc, 0, v{vHdr}
    s_cbranch_vccz K2_NOHDR
    v_mov_b32 v{vT0}, {MAXC}
    ds_max_u32 v{vT0}, v{vHdr}
    """)
    for i in range(4, 7):
        a(f"v_cmp_lt_u32 s[{sSave}:{sSave+1}], {i-4}, v{vHdr}")
        decode(vHdr + (i-3), i, f"s[{sSave}:{sSave+1}]")
    a(f"""
    K2_NOHDR:
    s_waitcnt lgkmcnt(0)
    s_barrier
    """)
    st.stamp(a)
    a(f"""
    ds_read_b32 v{vT0}, v{vL4} offset:{HIST}
    v_mov_b32 v{vT3}, {MAXC}
    ds_read_b32 v{vT3}, v{vT3}
    s_waitcnt lgkmcnt(0)
    v_add_u32 v{vT0}, 3, v{vT0}
    v_and_b32 v{vT0}, -4, v{vT0}
    v_mov_b32 v{vT1}, v{vT0}
    v_readfirstlane_b32 s3, v{vT3}
    s_nop 0
    v_add_u32_dpp v{vT1}, v{vT1}, v{vT1} row_shr:1 row_mask:0xf bank_mask:0xf bound_ctrl:1
    s_nop 1
    v_add_u32_dpp v{vT1}, v{vT1}, v{vT1} row_shr:2 row_mask:0xf bank_mask:0xf bound_ctrl:1
    s_nop 1
    v_add_u32_dpp v{vT1}, v{vT1}, v{vT1} row_shr:4 row_mask:0xf bank_mask:0xf bound_ctrl:1
    s_nop 1
    v_add_u32_dpp v{vT1}, v{vT1}, v{vT1} row_shr:8 row_mask:0xf bank_mask:0xf bound_ctrl:1
    s_nop 1
    v_add_u32_dpp v{vT1}, v{vT1}, v{vT1} row_bcast:15 row_mask:0xa bank_mask:0xf
    s_nop 1
    v_add_u32_dpp v{vT1}, v{vT1}, v{vT1} row_bcast:31 row_mask:0xc bank_mask:0xf
    s_nop 0
    v_readlane_b32 s{sCnt}, v{vT1}, 63
    v_sub_u32 v{vT1}, v{vT1}, v{vT0}
    """)
    a(f"""
    s_cmp_eq_u32 s{sR}, 0
    s_cbranch_scc0 K2_NRDONE
    s_min_u32 s3, s3, {CH}
    s_max_u32 s3, s3, 3
    s_add_u32 s3, s3, 12
    s_lshr_b32 s3, s3, 4
    s_add_u32 s{sNR}, s3, 1
    K2_NRDONE:
    """)
    for i in range(7):
        a(f"ds_bpermute_b32 v{vE+i}, v{vN4+i}, v{vT1}")
    a("s_waitcnt lgkmcnt(0)")
    for i in range(7):
        m = sM + 2*i
        if i == 4:
            a(f"""
            s_or_b64 s[{sSave}:{sSave+1}], s[{sM+8}:{sM+9}], s[{sM+10}:{sM+11}]
            s_or_b64 s[{sSave}:{sSave+1}], s[{sSave}:{sSave+1}], s[{sM+12}:{sM+13}]
            s_cbranch_scc0 K2_SC_DONE
            """)
        a(f"""
        v_add_u32 v{vE+i}, v{vE+i}, v{vRk+i}
        v_and_b32 v{vT0}, 3, v{vRk+i}
        v_cmp_eq_u32 vcc, 0, v{vT0}
        v_lshlrev_b32 v{vT2}, 2, v{vE+i}
        v_lshlrev_b32 v{vT3}, 6, v{vN4+i}
        s_mov_b64 exec, s[{m}:{m+1}]
        ds_write_b32 v{vT2}, v{vSo+i} offset:{LIST}
        s_and_b64 exec, exec, vcc
        ds_write_b32 v{vE+i}, v{vT3} offset:{UNODE}
        s_mov_b64 exec, -1
        """)
    a("K2_SC_DONE:")
    a(f"""
    s_cmp_eq_u32 s{sR}, 0
    s_cbranch_scc0 K2_NOWV
    v_lshrrev_b32 v{vT0}, 4, v0
    v_and_b32 v{vT1}, 7, v{vT0}
    v_lshlrev_b32 v{vT1}, 4, v{vT1}
    v_lshrrev_b32 v{vT0}, 3, v{vT0}
    v_add_u32 v{vT0}, v{vT0}, v{vT1}
    v_mul_u32_u24 v{vT0}, {WSTRIDE}, v{vT0}
    v_add_u32 v{vT0}, v{vT0}, v{vC16}
    v_add_u32 v{vT0}, {WV}, v{vT0}
    s_waitcnt vmcnt(0)
    ds_write_b128 v{vT0}, {vr(vWvl,4)}
    ds_write_b128 v{vT0}, {vr(vWvl+4,4)} offset:{8*WSTRIDE}
    K2_NOWV:
    s_waitcnt vmcnt(0) lgkmcnt(0)
    s_barrier
    """)
    st.stamp(a)
    a(f"""
    s_add_u32 s3, s{sCnt}, 31
    s_lshr_b32 s3, s3, 5
    s_lshr_b32 s{sP}, s3, 4
    s_and_b32 s3, s3, 15
    s_cmp_lt_u32 s{sWave}, s3
    s_cselect_b32 s{sNH}, 1, 0
    s_add_u32 s{sHB}, s{sP}, s{sNH}
    s_min_u32 s3, s3, s{sWave}
    s_mul_i32 s{sP}, s{sP}, s{sWave}
    s_add_u32 s{sP}, s{sP}, s3
    s_cmp_eq_u32 s{sHB}, 0
    s_cbranch_scc1 K2_MAIN_DONE
    v_lshrrev_b32 v{vT0}, 4, v{vLane}
    s_lshl_b32 s3, s{sHB}, 1
    v_mul_u32_u24 v{vT0}, s3, v{vT0}
    s_lshl_b32 s3, s{sP}, 3
    v_add_u32 v{vT0}, s3, v{vT0}
    v_lshlrev_b32 v{vLA}, 4, v{vT0}
    v_add_u32 v{vLA}, {LIST}, v{vLA}
    v_lshlrev_b32 v{vUA}, 2, v{vT0}
    v_add_u32 v{vUA}, {UNODE}, v{vUA}
    ds_read_b128 {vr(vE,4)}, v{vLA}
    ds_read_b128 {vr(vE+4,4)}, v{vLA} offset:16
    ds_read_b64 {vr(vQC,2)}, v{vUA}
    """)
    for i in range(8):
        a(f"v_mov_b32 v{vAcc+i}, 0")
    a("s_waitcnt lgkmcnt(0)")
    for u in range(8):
        a(f"v_add_u32 v{vE+u}, v{vE+u}, v{vC16}")
        a(f"buffer_load_dwordx4 {vr(vX+4*u,4)}, v{vE+u}, s[{sX}:{sX+3}], 0 offen")
    a(f"""
    v_add_u32 v{vT0}, v{vQC}, v{vQB}
    v_add_u32 v{vT1}, v{vQC+1}, v{vQB}
    ds_read_b128 {vr(vQ,4)}, v{vT0}
    ds_read_b128 {vr(vQ+4,4)}, v{vT1}
    v_mov_b32 v{vPrev}, v{vQC}
    """)
    flush_id = [0]
    def flush(prev, masked):
        fid = flush_id[0]; flush_id[0] += 1
        if masked is not None:
            a(f"""
            v_cmp_ne_u32 vcc, v{masked}, v{prev}
            s_cbranch_vccz K2_FL{fid}
            s_mov_b64 exec, vcc
            """)
        a(f"""
        v_lshrrev_b32 v{vT0}, 8, v{prev}
        v_mad_u32_u24 v{vT0}, v{vT0}, s{s528}, v{vC4}
        s_nop 0
        """)
        for i in range(8):
            a(f"ds_add_f32 v{vT0}, v{vAcc+i} offset:{64*i}")
        if masked is not None:
            for i in range(8):
                a(f"v_mov_b32 v{vAcc+i}, 0")
            a(f"""
            s_mov_b64 exec, -1
            K2_FL{fid}:
            """)
    def body(pref):
        a("s_waitcnt lgkmcnt(0)")
        if pref:
            a(f"""
            ds_read_b128 {vr(vE,4)}, v{vLA} offset:32
            ds_read_b128 {vr(vE+4,4)}, v{vLA} offset:48
            ds_read_b64 {vr(vQN,2)}, v{vUA} offset:8
            """)
        for half in range(2):
            a(f"s_waitcnt vmcnt({4 if half == 0 else 0})")
            for r in range(4):
                for u in range(4*half, 4*half+4):
                    if r == 0:
                        a(f"v_dot2_f32_bf16 v{vP+u}, v{vX+4*u}, v{vQ+4*half}, 0")
                    else:
                        a(f"v_dot2c_f32_bf16 v{vP+u}, v{vX+4*u+r}, v{vQ+4*half+r}")
        if pref:
            a("s_waitcnt lgkmcnt(0)")
            a(f"v_add_u32 v{vT0}, v{vQN}, v{vQB}")
            a(f"v_add_u32 v{vT1}, v{vQN+1}, v{vQB}")
            for u in range(8):
                a(f"v_add_u32 v{vE+u}, v{vE+u}, v{vC16}")
            a(f"ds_read_b128 {vr(vQ,4)}, v{vT0}")
            a(f"ds_read_b128 {vr(vQ+4,4)}, v{vT1}")
        else:
            a("s_nop 2")
        for j in range(4):
            a(f"v_add_f32_dpp v{vP+j}, v{vP+j}, v{vP+j} row_mirror row_mask:0xf bank_mask:0x3")
        for j in range(4):
            a(f"v_add_f32_dpp v{vP+j}, v{vP+j+4}, v{vP+j+4} row_mirror row_mask:0xf bank_mask:0xc")
        for j in range(2):
            a(f"v_add_f32_dpp v{vP+j}, v{vP+j}, v{vP+j} row_half_mirror row_mask:0xf bank_mask:0x5")
        a("s_nop 0")
        for j in range(2):
            a(f"v_add_f32_dpp v{vP+j}, v{vP+j+2}, v{vP+j+2} row_half_mirror row_mask:0xf bank_mask:0xa")
        a(f"""
        s_nop 0
        v_add_f32_dpp v{vP+2}, v{vP}, v{vP} quad_perm:[1,0,3,2] row_mask:0xf bank_mask:0xf
        v_add_f32_dpp v{vP+3}, v{vP+1}, v{vP+1} quad_perm:[1,0,3,2] row_mask:0xf bank_mask:0xf
        s_nop 0
        v_cndmask_b32_e64 v{vP}, v{vP+2}, v{vP+3}, s[{sOdd}:{sOdd+1}]
        s_nop 1
        v_add_f32_dpp v{vP}, v{vP}, v{vP} quad_perm:[2,3,0,1] row_mask:0xf bank_mask:0xf
        v_cvt_pk_bf16_f32 v{vP}, v{vP}, v{vP}
        v_and_b32 v{vP}, v{vHiM}, v{vP}
        v_mul_f32 v{vP}, 0x3db504f3, v{vP}
        v_cvt_pk_bf16_f32 v{vP}, v{vP}, v{vP}
        v_and_b32 v{vP}, v{vHiM}, v{vP}
        v_mul_f32 v{vP}, 0xbfb8aa3b, v{vP}
        v_exp_f32 v{vP}, v{vP}
        s_nop 0
        v_add_f32 v{vP}, 1.0, v{vP}
        v_rcp_f32 v{vP}, v{vP}
        s_nop 0
        v_cvt_pk_bf16_f32 v{vALo}, v{vP}, 0
        v_cvt_pk_bf16_f32 v{vAHi}, 0, v{vP}
        """)
        for half in range(2):
            if half == 0:
                flush(vPrev, vQC)
                a("s_nop 1")
            else:
                a("s_nop 2")
                flush(vQC, vQC+1)
            for u in range(4*half, 4*half+4):
                k = 4*(u >> 1) + (u & 1)
                for r in range(4):
                    a(f"v_dot2c_f32_bf16_dpp v{vAcc+2*r}, v{vALo}, v{vX+4*u+r} row_newbcast:{k} row_mask:0xf bank_mask:0xf")
                    a(f"v_dot2c_f32_bf16_dpp v{vAcc+2*r+1}, v{vAHi}, v{vX+4*u+r} row_newbcast:{k} row_mask:0xf bank_mask:0xf")
                if pref:
                    a(f"buffer_load_dwordx4 {vr(vX+4*u,4)}, v{vE+u}, s[{sX}:{sX+3}], 0 offen")
        a(f"v_mov_b32 v{vPrev}, v{vQC+1}")
        if pref:
            a(f"""
            v_mov_b32 v{vQC}, v{vQN}
            v_mov_b32 v{vQC+1}, v{vQN+1}
            v_add_u32 v{vLA}, 32, v{vLA}
            v_add_u32 v{vUA}, 8, v{vUA}
            """)
    a(f"""
    s_cmp_eq_u32 s{sHB}, 1
    s_cbranch_scc1 K2_LAST
    K2_LOOP:
    """)
    body(True)
    a(f"""
    s_sub_u32 s{sHB}, s{sHB}, 1
    s_cmp_gt_u32 s{sHB}, 1
    s_cbranch_scc1 K2_LOOP
    K2_LAST:
    """)
    body(False)
    a("s_nop 2")
    flush(vPrev, None)
    a(f"""
    K2_MAIN_DONE:
    """)
    st.stamp(a)
    a(f"""
    s_waitcnt lgkmcnt(0)
    s_barrier
    s_add_u32 s{sR}, s{sR}, 1
    s_cmp_ge_u32 s{sR}, s{sNR}
    s_cbranch_scc1 K2_EPI
    """)
    a(f"""
    v_mov_b32 v{vCand}, -1
    v_mov_b32 v{vCand+1}, -1
    v_mov_b32 v{vCand+2}, -1
    v_mov_b32 v{vCand+3}, -1
    v_mov_b32 v{vHdr}, 0
    v_cmp_gt_u32 vcc, {C*4}, v0
    s_and_saveexec_b64 s[{sSave}:{sSave+1}], vcc
    s_cbranch_execz K2_R1
    v_lshrrev_b32 v{vT0}, 2, v0
    v_lshlrev_b32 v{vT0}, 13, v{vT0}
    v_add_u32 v{vT0}, {WS_OVF}, v{vT0}
    buffer_load_dword v{vT3}, v{vT0}, s[{sWS}:{sWS+3}], 0 offen
    s_lshl_b32 s3, s{sR}, 4
    s_sub_u32 s3, s3, 13
    v_and_b32 v{vT1}, 3, v0
    v_lshl_add_u32 v{vT1}, v{vT1}, 2, s3
    v_lshl_add_u32 v{vT0}, v{vT1}, 2, v{vT0}
    buffer_load_dwordx4 {vr(vSo,4)}, v{vT0}, s[{sWS}:{sWS+3}], 0 offen offset:4
    s_waitcnt vmcnt(0)
    """)
    for i in range(4):
        a(f"""
        v_add_u32 v{vT2}, {i}, v{vT1}
        v_cmp_lt_u32 vcc, v{vT2}, v{vT3}
        s_nop 1
        v_cndmask_b32_e64 v{vCand+i}, v{vCand+i}, v{vSo+i}, vcc
        """)
    a(f"""
    K2_R1:
    s_mov_b64 exec, s[{sSave}:{sSave+1}]
    s_branch K2_ROUND
    K2_EPI:
    """)
    st.stamp(a)
    vAcc16 = 16
    vA8 = 32
    vB8 = 64
    vRaw = 96
    vWa, vBa, vRow = 8, 9, 10
    a(f"""
    s_cmp_ge_u32 s{sWave}, 8
    s_cbranch_scc1 K2_FIN
    s_and_b32 s{sP}, s{sWave}, 3
    s_lshr_b32 s{sNH}, s{sWave}, 2
    """)
    tile_a_addr(a, vWa, vLane, 11, 12, sP, WV)
    a(f"""
    v_and_b32 v{vRow}, 31, v{vLane}
    s_lshl_b32 s3, s{sNH}, 5
    v_add_u32 v{vRow}, s3, v{vRow}
    v_mul_u32_u24 v{vBa}, {ASTR}, v{vRow}
    v_lshrrev_b32 v11, 5, v{vLane}
    v_lshl_add_u32 v{vBa}, v11, 5, v{vBa}
    """)
    for ks in range(8):
        a(f"ds_read_b64_tr_b16 {vr(vA8+4*ks,2)}, v{vWa} offset:{ks*16*WSTRIDE}")
        a(f"ds_read_b64_tr_b16 {vr(vA8+4*ks+2,2)}, v{vWa} offset:{ks*16*WSTRIDE + 4*WSTRIDE}")
        if ks % 4 == 3: a("s_waitcnt lgkmcnt(0)")
    for kp in range(4):
        for kk in range(2):
            ks = 2*kp + kk
            a(f"ds_read_b128 {vr(vRaw+8*kk,4)}, v{vBa} offset:{AGG + 64*ks}")
            a(f"ds_read_b128 {vr(vRaw+8*kk+4,4)}, v{vBa} offset:{AGG + 64*ks + 16}")
        a("s_waitcnt lgkmcnt(0)")
        for kk in range(2):
            ks = 2*kp + kk
            for i in range(4):
                a(f"v_cvt_pk_bf16_f32 v{vB8+4*ks+i}, v{vRaw+8*kk+2*i}, v{vRaw+8*kk+2*i+1}")
        a("s_nop 1")
        for kk in range(2):
            ks = 2*kp + kk
            c = "0" if ks == 0 else vr(vAcc16,16)
            a(f"v_mfma_f32_32x32x16_bf16 {vr(vAcc16,16)}, {vr(vA8+4*ks,4)}, {vr(vB8+4*ks,4)}, {c}")
    a(f"""
    s_mul_i32 s3, s{sBeta}, {T*256}
    s_lshl_b32 s{sCnt}, s{sP}, 6
    s_add_u32 s3, s3, s{sCnt}
    v_lshlrev_b32 v12, 8, v{vRow}
    v_lshl_add_u32 v12, v11, 5, v12
    v_add_u32 v12, s3, v12
    v_cmp_gt_u32 vcc, {T}, v{vRow}
    s_nop 7
    s_nop 3
    """)
    for i in range(8):
        a(f"v_cvt_pk_bf16_f32 v{vA8+i}, v{vAcc16+2*i}, v{vAcc16+2*i+1}")
    a(f"""
    s_and_saveexec_b64 s[{sSave}:{sSave+1}], vcc
    s_cbranch_execz K2_ST_DONE
    buffer_store_dwordx4 {vr(vA8,4)}, v12, s[{sOUT}:{sOUT+3}], 0 offen
    buffer_store_dwordx4 {vr(vA8+4,4)}, v12, s[{sOUT}:{sOUT+3}], 0 offen offset:16
    K2_ST_DONE:
    s_mov_b64 exec, s[{sSave}:{sSave+1}]
    K2_FIN:
    """)
    st.stamp(a)
    if opt.stamps:
        a("s_waitcnt vmcnt(0)")
        st.stamp(a)
    st.flush(a, sWS, 11, sWave)
    a("""
    K2_END:
    s_endpgm
    """)
    return a.text(), LDS, 112

def kd(name, vgpr, sgpr=102):
    return f""".amdhsa_kernel {name}
  .amdhsa_next_free_vgpr {vgpr}
  .amdhsa_next_free_sgpr {sgpr}
  .amdhsa_accum_offset {(vgpr + 3)//4*4}
  .amdhsa_group_segment_fixed_size 0
  .amdhsa_kernarg_size 64
  .amdhsa_user_sgpr_count 2
  .amdhsa_user_sgpr_kernarg_segment_ptr 1
  .amdhsa_system_sgpr_workgroup_id_x 1
.end_amdhsa_kernel
"""

HEADER = """; Kernarg layout for this problem (64 bytes, ptrs only, base s[0:1]):
"""

def build(opt):
    k1, lds1, v1 = gen_k1(opt)
    k2, lds2, v2 = gen_k2(opt)
    lds1 = max(lds1, 83968)
    n1, n2 = NAME + "_k1_kernel", NAME + "_k2_kernel"
    out = HEADER
    out += f"; @launch kernel={n1} grid=({NB},1,1) block=(512,1,1) lds={lds1}\n"
    out += f"; @launch kernel={n2} grid=({NB},1,1) block=(1024,1,1) lds={lds2}\n"
    for i in range(opt.empty):
        out += f"; @launch kernel={NAME}_empty_kernel grid=({NB},1,1) block=(64,1,1) lds=0\n"
    out += '.amdgcn_target "amdgcn-amd-amdhsa--gfx950"\n.text\n'
    for n, k in ((n1, k1), (n2, k2)):
        out += f".globl {n}\n.p2align 8\n.type {n},@function\n" + k
    if opt.empty:
        n3 = NAME + "_empty_kernel"
        out += f".globl {n3}\n.p2align 8\n.type {n3},@function\n{n3}:\n  s_endpgm\n"
    out += '.section .rodata,"a"\n.p2align 6\n'
    out += kd(n1, v1) + ".p2align 6\n" + kd(n2, v2)
    if opt.empty:
        out += ".p2align 6\n" + kd(NAME + "_empty_kernel", 8, 16)
    return out

def parse(argv=None):
    p = argparse.ArgumentParser()
    p.add_argument("-o", default="cdna_kernels/" + NAME + ".s")
    p.add_argument("--stamps", action="store_true")
    p.add_argument("--prefetch", type=int, default=0)
    p.add_argument("--empty", type=int, default=0)
    p.add_argument("--cellst", default="")
    p.add_argument("--qst", default="")
    return p.parse_args(argv)

if __name__ == "__main__":
    o = parse()
    open(o.o, "w").write(build(o))
    print("wrote", o.o)
```

```python
import sys, argparse

NAME = "gather_scatter__kernel_systems_refs_featgraph__graph"
N, E, D = 12500, 400000, 128
T = 49
NB = 256
CH = 1600
C = 250
S = 16
XBYTES = N * 256
EBYTES = E * 4
WS_CELLS = 0
CELLROW = C * S * 4
WS_OVF = 0x400000
OVF_STRIDE = 8192
WS_Q = 0x600000
WS_USED = WS_Q + NB * T * 256 + 4096
WS_STAMP = 0x1000000
OOB = 0x40000000
DUMMY = 49

class A:
    def __init__(self):
        self.l = []
    def __call__(self, s):
        for line in s.strip("\n").split("\n"):
            line = line.strip()
            if not line:
                continue
            if line.endswith(":") and " " not in line:
                self.l.append(line)
            else:
                self.l.append("  " + line)
    def text(self):
        return "\n".join(self.l) + "\n"

def srd(a, d, base, size):
    a(f"""
    s_mov_b32 s{d}, s{base}
    s_mov_b32 s{d+1}, s{base+1}
    s_mov_b32 s{d+2}, {size}
    s_mov_b32 s{d+3}, 0x00020000
    """)

def vr(b, n):
    return f"v[{b}:{b+n-1}]"

class Stamps:
    def __init__(self, on, sbase, area):
        self.on, self.sbase, self.area, self.n = on, sbase, area, 0
    def stamp(self, a):
        if not self.on: return
        r = self.sbase + 2 * self.n
        a(f"s_memrealtime s[{r}:{r+1}]")
        self.n += 1
    def flush(self, a, srd_lo, vtmp, wave_sgpr):
        if not self.on: return
        a(f"""
        s_waitcnt lgkmcnt(0)
        s_lshl_b32 s3, s2, 4
        s_add_u32 s3, s3, s{wave_sgpr}
        s_lshl_b32 s3, s3, 6
        s_add_u32 s3, s3, {self.area}
        s_mov_b64 exec, 1
        """)
        for i in range(self.n):
            a(f"v_mov_b32 v{vtmp}, s{self.sbase + 2*i}")
            a(f"v_mov_b32 v{vtmp+1}, s3")
            a(f"buffer_store_dword v{vtmp}, v{vtmp+1}, s[{srd_lo}:{srd_lo+3}], 0 offen offset:{4*i}")
        a("s_waitcnt vmcnt(0)")

WSTRIDE = 320

def tile_a_addr(a, vdst, vlane, vtmp, vtmp2, sP, wbase):
    a(f"""
    v_lshrrev_b32 v{vtmp}, 5, v{vlane}
    v_lshlrev_b32 v{vtmp}, 3, v{vtmp}
    v_bfe_u32 v{vtmp2}, v{vlane}, 2, 2
    v_add_u32 v{vtmp}, v{vtmp}, v{vtmp2}
    v_mul_u32_u24 v{vdst}, {WSTRIDE}, v{vtmp}
    v_bfe_u32 v{vtmp}, v{vlane}, 4, 1
    v_lshlrev_b32 v{vtmp}, 2, v{vtmp}
    v_and_b32 v{vtmp2}, 3, v{vlane}
    v_add_u32 v{vtmp}, v{vtmp}, v{vtmp2}
    v_and_b32 v{vtmp2}, 1, v{vtmp}
    v_lshlrev_b32 v{vtmp2}, 2, v{vtmp2}
    v_lshrrev_b32 v{vtmp}, 1, v{vtmp}
    v_add_u32 v{vtmp}, v{vtmp}, v{vtmp2}
    v_lshlrev_b32 v{vtmp}, 3, v{vtmp}
    v_add_u32 v{vdst}, v{vdst}, v{vtmp}
    s_lshl_b32 s3, s{sP}, 6
    s_add_u32 s3, s3, {wbase}
    v_add_u32 v{vdst}, s3, v{vdst}
    """)

def gen_k1(opt):
    a = A()
    HIST, OVC, JUNK, STAGE = 0, 1024, 1040, 2048
    XT = STAGE + 16384
    XSTR = 272
    WQ = XT + 64 * XSTR
    LDS = WQ + 128 * WSTRIDE
    st = Stamps(opt.stamps, 60, WS_STAMP)
    sX, sSRC, sDST, sWQ, sWS = 16, 20, 24, 28, 32
    sWave, sP, sNH = 36, 37, 38
    vLane, vW = 1, 2
    vDst, vSrc = 4, 8
    vXT = 12
    vWl = 20
    vEnt, vAdr, vRank = 36, 40, 44
    vT0, vT1, vT2, vT3 = 48, 49, 50, 51
    vOne, vNeg, vZero = 52, 56, 60
    vXa, vWa = 61, 62
    vAcc = 64
    vAf, vBf = 80, 96
    a(f"""
    {NAME}_k1_kernel:
    s_cmp_ge_u32 s2, {NB}
    s_cbranch_scc1 K1_END
    s_load_dwordx4 s[4:7], s[0:1], 0
    s_load_dwordx4 s[8:11], s[0:1], 16
    s_load_dwordx2 s[12:13], s[0:1], 56
    """)
    st.stamp(a)
    a(f"""
    v_and_b32 v{vLane}, 63, v0
    v_lshrrev_b32 v{vW}, 6, v0
    v_mov_b32 v{vOne}, 1
    v_readfirstlane_b32 s{sWave}, v{vW}
    v_mov_b32 v{vNeg}, -1
    v_mov_b32 v{vNeg+1}, -1
    v_mov_b32 v{vNeg+2}, -1
    v_mov_b32 v{vNeg+3}, -1
    v_mov_b32 v{vZero}, 0
    s_and_b32 s{sP}, s{sWave}, 3
    s_lshr_b32 s{sNH}, s{sWave}, 2
    s_waitcnt lgkmcnt(0)
    """)
    srd(a, sX, 4, XBYTES); srd(a, sSRC, 6, EBYTES); srd(a, sDST, 8, EBYTES)
    srd(a, sWQ, 10, 32768); srd(a, sWS, 12, WS_USED if not opt.stamps else 0x2000000)
    a(f"""
    s_cmp_ge_u32 s2, {C}
    s_cbranch_scc1 K1_NOEDGE0
    v_cmp_gt_u32 vcc, {CH//4}, v0
    s_and_saveexec_b64 s[40:41], vcc
    s_cbranch_execz K1_EDGE0_DONE
    s_mul_i32 s14, s2, {CH*4}
    v_lshl_add_u32 v{vT0}, v0, 4, s14
    buffer_load_dwordx4 {vr(vDst,4)}, v{vT0}, s[{sDST}:{sDST+3}], 0 offen
    buffer_load_dwordx4 {vr(vSrc,4)}, v{vT0}, s[{sSRC}:{sSRC+3}], 0 offen
    K1_EDGE0_DONE:
    s_mov_b64 exec, s[40:41]
    K1_NOEDGE0:
    s_mul_i32 s14, s2, {T*256}
    v_lshl_add_u32 v{vT0}, v0, 4, s14
    v_add_u32 v{vT1}, 8192, v{vT0}
    v_lshlrev_b32 v{vT2}, 4, v0
    buffer_load_dwordx4 {vr(vXT,4)}, v{vT0}, s[{sX}:{sX+3}], 0 offen
    buffer_load_dwordx4 {vr(vXT+4,4)}, v{vT1}, s[{sX}:{sX+3}], 0 offen
    """)
    for i in range(4):
        a(f"s_mov_b32 s14, {8192*i}")
        a(f"buffer_load_dwordx4 {vr(vWl+4*i,4)}, v{vT2}, s[{sWQ}:{sWQ+3}], s14 offen")
    if opt.prefetch:
        npf = opt.prefetch
        per = 100352
        a(f"""
        s_lshr_b32 s14, s2, 3
        s_mul_i32 s14, s14, {per}
        v_lshlrev_b32 v{vT3}, 7, v0
        v_add_u32 v{vT3}, s14, v{vT3}
        """)
        a(f"""
        buffer_load_dword v112, v{vT3}, s[{sX}:{sX+3}], 0 offen
        v_add_u32 v{vT3}, 65536, v{vT3}
        v_mov_b32 v{vT2}, {OOB}
        v_cmp_gt_u32 vcc, {(per - 65536)//128}, v0
        s_nop 1
        v_cndmask_b32_e64 v{vT3}, v{vT2}, v{vT3}, vcc
        buffer_load_dword v113, v{vT3}, s[{sX}:{sX+3}], 0 offen
        """)
    a(f"""
    v_lshlrev_b32 v{vT0}, 4, v0
    ds_write_b128 v{vT0}, {vr(vNeg,4)} offset:{STAGE}
    ds_write_b128 v{vT0}, {vr(vNeg,4)} offset:{STAGE+8192}
    v_cmp_ge_u32 vcc, 256, v0
    s_and_saveexec_b64 s[40:41], vcc
    v_lshlrev_b32 v{vT1}, 2, v0
    ds_write_b32 v{vT1}, v{vZero} offset:{HIST}
    s_mov_b64 exec, s[40:41]
    s_waitcnt lgkmcnt(0)
    s_barrier
    """)
    st.stamp(a)
    npfl = 2 if opt.prefetch else 0
    a(f"""
    s_cmp_ge_u32 s2, {C}
    s_cbranch_scc1 K1_NOEDGE1
    v_cmp_gt_u32 vcc, {CH//4}, v0
    s_and_saveexec_b64 s[40:41], vcc
    s_cbranch_execz K1_EDGE1_DONE
    s_mov_b32 s15, -{T}
    s_waitcnt vmcnt({6+npfl})
    """)
    st.stamp(a)
    for i in range(4):
        a(f"""
        v_mul_u32_u24 v{vT0}, 21400, v{vDst+i}
        v_lshrrev_b32 v{vT0}, 20, v{vT0}
        v_mad_i32_i24 v{vT1}, v{vT0}, s15, v{vDst+i}
        v_lshl_or_b32 v{vEnt+i}, v{vSrc+i}, 8, v{vT1}
        v_lshl_or_b32 v{vEnt+i}, v{vT0}, 24, v{vEnt+i}
        v_lshlrev_b32 v{vAdr+i}, 2, v{vT0}
        ds_add_rtn_u32 v{vRank+i}, v{vAdr+i}, v{vOne} offset:{HIST}
        """)
    a(f"v_mov_b32 v{vT3}, {JUNK}")
    a("s_waitcnt lgkmcnt(0)")
    for i in range(4):
        a(f"""
        v_cmp_gt_u32 s[{42+2*i}:{43+2*i}], 16, v{vRank+i}
        v_lshlrev_b32 v{vT0}, 4, v{vAdr+i}
        v_lshl_add_u32 v{vT0}, v{vRank+i}, 2, v{vT0}
        v_add_u32 v{vT0}, {STAGE}, v{vT0}
        v_cndmask_b32_e64 v{vT0}, v{vT3}, v{vT0}, s[{42+2*i}:{43+2*i}]
        ds_write_b32 v{vT0}, v{vEnt+i}
        """)
    a(f"""
    s_and_b64 s[50:51], s[42:43], s[44:45]
    s_and_b64 s[52:53], s[46:47], s[48:49]
    s_and_b64 s[50:51], s[50:51], s[52:53]
    s_andn2_b64 s[50:51], exec, s[50:51]
    s_cbranch_scc0 K1_EDGE1_DONE
    s_mov_b64 s[54:55], exec
    s_mul_i32 s14, s2, {OVF_STRIDE}
    s_add_u32 s14, s14, {WS_OVF + 4}
    v_mov_b32 v{vT3}, {OVC}
    """)
    for i in range(4):
        a(f"""
        s_andn2_b64 exec, s[54:55], s[{42+2*i}:{43+2*i}]
        s_cbranch_execz K1_OV_{i}
        ds_add_rtn_u32 v{vT0}, v{vT3}, v{vOne}
        s_waitcnt lgkmcnt(0)
        v_lshl_add_u32 v{vT0}, v{vT0}, 2, s14
        buffer_store_dword v{vEnt+i}, v{vT0}, s[{sWS}:{sWS+3}], 0 offen
        K1_OV_{i}:
        """)
    a(f"""
    K1_EDGE1_DONE:
    s_mov_b64 exec, s[40:41]
    K1_NOEDGE1:
    """)
    a(f"""
    v_lshrrev_b32 v{vT0}, 4, v0
    v_and_b32 v{vT1}, 15, v0
    v_lshlrev_b32 v{vT1}, 4, v{vT1}
    v_mul_u32_u24 v{vT2}, {XSTR}, v{vT0}
    v_add_u32 v{vT2}, v{vT2}, v{vT1}
    v_mul_u32_u24 v{vT3}, {WSTRIDE}, v{vT0}
    v_add_u32 v{vT3}, v{vT3}, v{vT1}
    v_add_u32 v{vT3}, {WQ}, v{vT3}
    s_waitcnt vmcnt({4+npfl})
    ds_write_b128 v{vT2}, {vr(vXT,4)} offset:{XT}
    ds_write_b128 v{vT2}, {vr(vXT+4,4)} offset:{XT + 32*XSTR}
    s_waitcnt vmcnt({npfl})
    """)
    for i in range(4):
        a(f"ds_write_b128 v{vT3}, {vr(vWl+4*i,4)} offset:{32*i*WSTRIDE}")
    a("""
    s_waitcnt lgkmcnt(0)
    s_barrier
    """)
    st.stamp(a)
    a(f"""
    s_cmp_ge_u32 s2, {C}
    s_cbranch_scc1 K1_NOEDGE2
    v_lshlrev_b32 v{vT0}, 4, v0
    ds_read_b128 {vr(vEnt,4)}, v{vT0} offset:{STAGE}
    ds_read_b128 {vr(vAdr,4)}, v{vT0} offset:{STAGE+8192}
    v_mov_b32 v{vT3}, {OVC}
    ds_read_b32 v{vRank}, v{vT3}
    v_lshrrev_b32 v{vT1}, 2, v0
    v_mul_u32_u24 v{vT1}, {CELLROW}, v{vT1}
    v_and_b32 v{vT2}, 3, v0
    v_lshl_add_u32 v{vT1}, v{vT2}, 4, v{vT1}
    s_lshl_b32 s14, s2, 6
    s_add_u32 s15, s14, {128*CELLROW}
    s_waitcnt lgkmcnt(0)
    buffer_store_dwordx4 {vr(vEnt,4)}, v{vT1}, s[{sWS}:{sWS+3}], s14 offen {opt.cellst}
    buffer_store_dwordx4 {vr(vAdr,4)}, v{vT1}, s[{sWS}:{sWS+3}], s15 offen {opt.cellst}
    v_cmp_eq_u32 vcc, 0, v0
    s_and_saveexec_b64 s[40:41], vcc
    s_cbranch_execz K1_HDR_DONE
    s_mul_i32 s14, s2, {OVF_STRIDE}
    s_add_u32 s14, s14, {WS_OVF}
    v_mov_b32 v{vT2}, s14
    buffer_store_dword v{vRank}, v{vT2}, s[{sWS}:{sWS+3}], 0 offen {opt.cellst}
    K1_HDR_DONE:
    s_mov_b64 exec, s[40:41]
    K1_NOEDGE2:
    """)
    st.stamp(a)
    tile_a_addr(a, vWa, vLane, vT0, vT1, sP, WQ)
    a(f"""
    v_and_b32 v{vT0}, 31, v{vLane}
    s_lshl_b32 s14, s{sNH}, 5
    v_add_u32 v{vT0}, s14, v{vT0}
    v_mul_u32_u24 v{vXa}, {XSTR}, v{vT0}
    v_lshrrev_b32 v{vT1}, 5, v{vLane}
    v_lshl_add_u32 v{vXa}, v{vT1}, 4, v{vXa}
    """)
    vA8, vB8 = 80, 4
    for ks in range(8):
        a(f"ds_read_b64_tr_b16 {vr(vA8+4*ks,2)}, v{vWa} offset:{ks*16*WSTRIDE}")
        a(f"ds_read_b64_tr_b16 {vr(vA8+4*ks+2,2)}, v{vWa} offset:{ks*16*WSTRIDE + 4*WSTRIDE}")
        a(f"ds_read_b128 {vr(vB8+4*ks,4)}, v{vXa} offset:{XT + 32*ks}")
        if ks % 4 == 3:
            a("s_waitcnt lgkmcnt(0)")
            for k2 in range(ks-3, ks+1):
                c = "0" if k2 == 0 else vr(vAcc,16)
                a(f"v_mfma_f32_32x32x16_bf16 {vr(vAcc,16)}, {vr(vA8+4*k2,4)}, {vr(vB8+4*k2,4)}, {c}")
    a(f"""
    s_mul_i32 s14, s2, {T*256}
    s_add_u32 s14, s14, {WS_Q}
    s_lshl_b32 s15, s{sP}, 6
    s_add_u32 s14, s14, s15
    v_lshlrev_b32 v{vT2}, 8, v{vT0}
    v_lshl_add_u32 v{vT2}, v{vT1}, 5, v{vT2}
    v_add_u32 v{vT2}, s14, v{vT2}
    v_cmp_gt_u32 vcc, {T}, v{vT0}
    s_nop 7
    s_nop 3
    """)
    for i in range(8):
        a(f"v_cvt_pk_bf16_f32 v{vA8+i}, v{vAcc+2*i}, v{vAcc+2*i+1}")
    a(f"""
    s_and_saveexec_b64 s[40:41], vcc
    s_cbranch_execz K1_Q_DONE
    buffer_store_dwordx4 {vr(vA8,4)}, v{vT2}, s[{sWS}:{sWS+3}], 0 offen {opt.qst}
    buffer_store_dwordx4 {vr(vA8+4,4)}, v{vT2}, s[{sWS}:{sWS+3}], 0 offen offset:16 {opt.qst}
    K1_Q_DONE:
    s_mov_b64 exec, s[40:41]
    """)
    st.stamp(a)
    if opt.stamps:
        a("s_waitcnt vmcnt(0)")
        st.stamp(a)
    st.flush(a, sWS, vT0, sWave)
    a("""
    K1_END:
    s_endpgm
    """)
    return a.text(), LDS, 116

def scan64(a, v, vsave):
    for sh in ("row_shr:1", "row_shr:2", "row_shr:4", "row_shr:8"):
        a(f"v_add_u32_dpp v{v}, v{v}, v{v} {sh} row_mask:0xf bank_mask:0xf bound_ctrl:1")
        a("s_nop 1")
    a(f"v_add_u32_dpp v{v}, v{v}, v{v} row_bcast:15 row_mask:0xa bank_mask:0xf")
    a("s_nop 1")
    a(f"v_add_u32_dpp v{v}, v{v}, v{v} row_bcast:31 row_mask:0xc bank_mask:0xf")

def gen_k2(opt):
    a = A()
    HIST, MAXC, ZROW = 0, 256, 512
    LIST = 1024
    LISTW = 5120
    UNODE = LIST + LISTW * 4
    QS = UNODE + 1280 * 4
    PIECE = QS + 52 * 256
    WV = PIECE + (DUMMY + 64) * 512
    LDS = WV + 128 * WSTRIDE
    AGGB, ABSTR = LIST, 272
    st = Stamps(opt.stamps, 64, WS_STAMP + 0x40000)
    sX, sWV, sOUT, sWS = 12, 16, 20, 24
    sBeta, sWave, sR, sNR = 28, 29, 30, 31
    sOdd = 32
    sBeta24, sHB, sP, sNH = 35, 36, 37, 38
    sM = 40
    sSave = 54
    sCnt, sQ, sRem = 56, 57, 58
    vLane, vC16, vPB, vLA, vUA, vPrev = 1, 2, 3, 4, 5, 6
    vL4 = 7
    vQC, vQN = 8, 10
    vALo, vAHi, vHiM = 12, 13, 14
    vQB = 15
    vT0, vT1, vT2, vT3 = 16, 17, 18, 19
    vAcc = 20
    vP = 28
    vE = 36
    vQ = 44
    vX = 52
    vTot = 84
    vSf, vSl, vPc, vStart = 92, 93, 94, 95
    vWvl = 96
    vZ4 = 104
    vCand = 52
    vHdr = 56
    vSo = 60
    vN4 = 68
    vRk = 76
    a(f"""
    {NAME}_k2_kernel:
    s_cmp_ge_u32 s2, {NB}
    s_cbranch_scc1 K2_END
    s_load_dwordx2 s[6:7], s[0:1], 56
    s_load_dwordx2 s[4:5], s[0:1], 0
    s_load_dwordx4 s[8:11], s[0:1], 32
    """)
    st.stamp(a)
    a(f"""
    v_and_b32 v{vLane}, 63, v0
    v_lshrrev_b32 v{vT0}, 6, v0
    s_and_b32 s{sBeta}, s2, 7
    v_readfirstlane_b32 s{sWave}, v{vT0}
    s_lshl_b32 s{sBeta}, s{sBeta}, 5
    s_lshr_b32 s3, s2, 3
    s_add_u32 s{sBeta}, s{sBeta}, s3
    s_lshl_b32 s{sBeta24}, s{sBeta}, 24
    v_mov_b32 v{vCand}, -1
    v_mov_b32 v{vCand+1}, -1
    v_mov_b32 v{vCand+2}, -1
    v_mov_b32 v{vCand+3}, -1
    v_mov_b32 v{vHdr}, 0
    v_lshlrev_b32 v{vT0}, 4, v0
    v_lshlrev_b32 v{vT1}, 13, v0
    s_mul_i32 s3, s{sBeta}, {CELLROW}
    s_mov_b32 s{sCnt}, {WS_OVF}
    s_waitcnt lgkmcnt(0)
    """)
    srd(a, sWS, 6, WS_USED if not opt.stamps else 0x2000000)
    a(f"""
    v_cmp_gt_u32 vcc, {C*4}, v0
    s_and_saveexec_b64 s[{sSave}:{sSave+1}], vcc
    s_cbranch_execz K2_L0
    buffer_load_dwordx4 {vr(vCand,4)}, v{vT0}, s[{sWS}:{sWS+3}], s3 offen
    K2_L0:
    s_mov_b64 exec, s[{sSave}:{sSave+1}]
    s_cmp_ge_u32 s{sWave}, 4
    s_cbranch_scc1 K2_L1
    v_cmp_gt_u32 vcc, {C}, v0
    s_and_saveexec_b64 s[{sSave}:{sSave+1}], vcc
    buffer_load_dwordx4 {vr(vHdr,4)}, v{vT1}, s[{sWS}:{sWS+3}], s{sCnt} offen
    s_mov_b64 exec, s[{sSave}:{sSave+1}]
    K2_L1:
    """)
    srd(a, sX, 4, XBYTES); srd(a, sWV, 8, 32768); srd(a, sOUT, 10, XBYTES)
    a(f"""
    s_cmp_ge_u32 s{sWave}, 13
    s_cbranch_scc1 K2_L2
    s_mul_i32 s3, s{sBeta}, {T*256}
    s_add_u32 s3, s3, {WS_Q}
    s_lshl_b32 s{sCnt}, s{sWave}, 10
    s_add_u32 s3, s3, s{sCnt}
    s_add_u32 s{sCnt}, s{sCnt}, {QS}
    s_mov_b32 m0, s{sCnt}
    v_lshlrev_b32 v{vT1}, 4, v{vLane}
    buffer_load_dwordx4 v{vT1}, s[{sWS}:{sWS+3}], s3 offen lds
    K2_L2:
    s_mov_b32 s3, 16384
    buffer_load_dwordx4 {vr(vWvl,4)}, v{vT0}, s[{sWV}:{sWV+3}], 0 offen
    buffer_load_dwordx4 {vr(vWvl+4,4)}, v{vT0}, s[{sWV}:{sWV+3}], s3 offen
    s_mov_b32 s{sOdd}, 0xaaaaaaaa
    s_mov_b32 s{sOdd+1}, 0xaaaaaaaa
    s_mov_b32 s{sR}, 0
    v_and_b32 v{vT0}, 15, v{vLane}
    v_lshlrev_b32 v{vC16}, 4, v{vT0}
    v_add_u32 v{vQB}, {QS}, v{vC16}
    v_lshlrev_b32 v{vL4}, 2, v{vLane}
    v_mov_b32 v{vHiM}, 0xffff0000
    v_lshrrev_b32 v{vT0}, 4, v{vLane}
    s_lshl_b32 s3, s{sWave}, 11
    s_add_u32 s3, s3, {PIECE}
    v_lshl_add_u32 v{vPB}, v{vT0}, 9, s3
    v_add_u32 v{vPB}, v{vPB}, v{vC16}
    """)
    for i in range(8):
        a(f"v_mov_b32 v{vTot+i}, 0")
    a(f"""
    K2_ROUND:
    v_mov_b32 v{vZ4}, {OOB}
    v_mov_b32 v{vZ4+1}, {OOB}
    v_mov_b32 v{vZ4+2}, {OOB}
    v_mov_b32 v{vZ4+3}, {OOB}
    v_mov_b32 v{vT1}, {DUMMY*256}
    v_mov_b32 v{vT2}, 0
    v_lshlrev_b32 v{vT0}, 4, v0
    v_lshlrev_b32 v{vT3}, 2, v0
    ds_write_b128 v{vT0}, {vr(vZ4,4)} offset:{LIST}
    ds_write_b32 v{vT3}, v{vT1} offset:{UNODE}
    s_cmp_ge_u32 s{sWave}, 4
    s_cbranch_scc1 K2_I1
    ds_write_b128 v{vT0}, {vr(vZ4,4)} offset:{LIST+16384}
    ds_write_b32 v{vT3}, v{vT1} offset:{UNODE+4096}
    ds_write_b32 v{vT3}, v{vT2} offset:{HIST}
    K2_I1:
    s_waitcnt lgkmcnt(0)
    s_barrier
    """)
    st.stamp(a)
    def decode(word, i, extra_mask=None):
        m = sM + 2*i
        a(f"""
        v_xor_b32 v{vT0}, s{sBeta24}, v{word}
        v_and_b32 v{vT1}, 0xff0000c0, v{vT0}
        v_cmp_eq_u32 s[{m}:{m+1}], 0, v{vT1}
        v_and_b32 v{vSo+i}, 0x00ffff00, v{vT0}
        v_and_b32 v{vN4+i}, 0x3f, v{vT0}
        v_lshlrev_b32 v{vN4+i}, 2, v{vN4+i}
        """)
        if extra_mask:
            a(f"s_and_b64 s[{m}:{m+1}], s[{m}:{m+1}], {extra_mask}")
        a(f"""
        s_mov_b64 exec, s[{m}:{m+1}]
        ds_add_rtn_u32 v{vRk+i}, v{vN4+i}, v{vT3} offset:{HIST}
        s_mov_b64 exec, -1
        """)
    a(f"""
    v_mov_b32 v{vT3}, 1
    s_cmp_eq_u32 s{sR}, 0
    s_cbranch_scc0 K2_WAITR
    s_waitcnt vmcnt(2)
    s_branch K2_WAITD
    K2_WAITR:
    s_waitcnt vmcnt(0)
    K2_WAITD:
    """)
    st.stamp(a)
    for i in range(4):
        decode(vCand+i, i)
    a(f"""
    s_mov_b64 s[{sM+8}:{sM+9}], 0
    s_mov_b64 s[{sM+10}:{sM+11}], 0
    s_mov_b64 s[{sM+12}:{sM+13}], 0
    v_cmp_lt_u32 vcc, 0, v{vHdr}
    s_cbranch_vccz K2_NOHDR
    v_mov_b32 v{vT0}, {MAXC}
    ds_max_u32 v{vT0}, v{vHdr}
    """)
    for i in range(4, 7):
        a(f"v_cmp_lt_u32 s[{sSave}:{sSave+1}], {i-4}, v{vHdr}")
        decode(vHdr + (i-3), i, f"s[{sSave}:{sSave+1}]")
    a(f"""
    K2_NOHDR:
    s_waitcnt lgkmcnt(0)
    s_barrier
    """)
    st.stamp(a)
    a(f"""
    ds_read_b32 v{vPc}, v{vL4} offset:{HIST}
    v_mov_b32 v{vT3}, {MAXC}
    ds_read_b32 v{vT3}, v{vT3}
    s_waitcnt lgkmcnt(0)
    v_add_u32 v{vPc}, 3, v{vPc}
    v_and_b32 v{vPc}, -4, v{vPc}
    v_mov_b32 v{vStart}, v{vPc}
    v_readfirstlane_b32 s3, v{vT3}
    s_nop 0
    """)
    scan64(a, vStart, None)
    a(f"""
    s_nop 0
    v_readlane_b32 s{sCnt}, v{vStart}, 63
    v_sub_u32 v{vStart}, v{vStart}, v{vPc}
    """)
    for i in range(4):
        a(f"ds_bpermute_b32 v{vE+i}, v{vN4+i}, v{vStart}")
    a(f"""
    s_cmp_eq_u32 s{sR}, 0
    s_cbranch_scc0 K2_NRDONE
    s_min_u32 s3, s3, {CH}
    s_max_u32 s3, s3, 3
    s_add_u32 s3, s3, 12
    s_lshr_b32 s3, s3, 4
    s_add_u32 s{sNR}, s3, 1
    K2_NRDONE:
    """)
    def scatter(i):
        m = sM + 2*i
        a(f"""
        v_add_u32 v{vE+i}, v{vE+i}, v{vRk+i}
        v_and_b32 v{vT0}, 3, v{vRk+i}
        v_cmp_eq_u32 vcc, 0, v{vT0}
        v_lshlrev_b32 v{vT2}, 2, v{vE+i}
        v_lshlrev_b32 v{vT3}, 6, v{vN4+i}
        s_mov_b64 exec, s[{m}:{m+1}]
        ds_write_b32 v{vT2}, v{vSo+i} offset:{LIST}
        s_and_b64 exec, exec, vcc
        ds_write_b32 v{vE+i}, v{vT3} offset:{UNODE}
        s_mov_b64 exec, -1
        """)
    a("s_waitcnt lgkmcnt(0)")
    for i in range(4):
        scatter(i)
    a(f"""
    s_or_b64 s[{sSave}:{sSave+1}], s[{sM+8}:{sM+9}], s[{sM+10}:{sM+11}]
    s_or_b64 s[{sSave}:{sSave+1}], s[{sSave}:{sSave+1}], s[{sM+12}:{sM+13}]
    s_cbranch_scc0 K2_SC_DONE
    """)
    for i in range(4, 7):
        a(f"ds_bpermute_b32 v{vE+i}, v{vN4+i}, v{vStart}")
    a("s_waitcnt lgkmcnt(0)")
    for i in range(4, 7):
        scatter(i)
    a("K2_SC_DONE:")
    st.stamp(a)
    a(f"""
    s_cmp_eq_u32 s{sR}, 0
    s_cbranch_scc0 K2_NOWV
    v_lshrrev_b32 v{vT0}, 4, v0
    v_bfe_u32 v{vT1}, v{vT0}, 2, 1
    v_lshlrev_b32 v{vT1}, 6, v{vT1}
    v_lshrrev_b32 v{vT2}, 3, v{vT0}
    v_lshl_add_u32 v{vT1}, v{vT2}, 2, v{vT1}
    v_and_b32 v{vT0}, 3, v{vT0}
    v_add_u32 v{vT0}, v{vT0}, v{vT1}
    v_mul_u32_u24 v{vT0}, {WSTRIDE}, v{vT0}
    v_add_u32 v{vT0}, v{vT0}, v{vC16}
    v_add_u32 v{vT0}, {WV}, v{vT0}
    s_waitcnt vmcnt(0)
    ds_write_b128 v{vT0}, {vr(vWvl,4)}
    ds_write_b128 v{vT0}, {vr(vWvl+4,4)} offset:{32*WSTRIDE}
    K2_NOWV:
    s_waitcnt vmcnt(0) lgkmcnt(0)
    s_barrier
    """)
    st.stamp(a)
    a(f"""
    s_add_u32 s3, s{sCnt}, 31
    s_lshr_b32 s3, s3, 5
    s_lshr_b32 s{sQ}, s3, 4
    s_and_b32 s{sRem}, s3, 15
    s_cmp_lt_u32 s{sWave}, s{sRem}
    s_cselect_b32 s{sNH}, 1, 0
    s_add_u32 s{sHB}, s{sQ}, s{sNH}
    s_min_u32 s3, s{sRem}, s{sWave}
    s_mul_i32 s{sP}, s{sQ}, s{sWave}
    s_add_u32 s{sP}, s{sP}, s3
    s_cmp_eq_u32 s{sHB}, 0
    s_cbranch_scc1 K2_SIGMA
    v_lshrrev_b32 v{vT0}, 4, v{vLane}
    s_lshl_b32 s3, s{sHB}, 1
    v_mul_u32_u24 v{vT0}, s3, v{vT0}
    s_lshl_b32 s3, s{sP}, 3
    v_add_u32 v{vT0}, s3, v{vT0}
    v_lshlrev_b32 v{vLA}, 4, v{vT0}
    v_add_u32 v{vLA}, {LIST}, v{vLA}
    v_lshlrev_b32 v{vUA}, 2, v{vT0}
    v_add_u32 v{vUA}, {UNODE}, v{vUA}
    ds_read_b128 {vr(vE,4)}, v{vLA}
    ds_read_b128 {vr(vE+4,4)}, v{vLA} offset:16
    ds_read_b64 {vr(vQC,2)}, v{vUA}
    """)
    for i in range(8):
        a(f"v_mov_b32 v{vAcc+i}, 0")
    a("s_waitcnt lgkmcnt(0)")
    for u in range(8):
        a(f"v_add_u32 v{vE+u}, v{vE+u}, v{vC16}")
        a(f"buffer_load_dwordx4 {vr(vX+4*u,4)}, v{vE+u}, s[{sX}:{sX+3}], 0 offen")
    a(f"""
    v_add_u32 v{vT0}, v{vQC}, v{vQB}
    v_add_u32 v{vT1}, v{vQC+1}, v{vQB}
    ds_read_b128 {vr(vQ,4)}, v{vT0}
    ds_read_b128 {vr(vQ+4,4)}, v{vT1}
    v_mov_b32 v{vPrev}, v{vQC}
    K2_SIGMA:
    """)
    a(f"""
    s_add_u32 s3, s{sQ}, 1
    s_lshl_b32 s3, s3, 1
    v_cvt_f32_u32 v{vT0}, s3
    s_mul_i32 s3, s3, s{sRem}
    s_lshl_b32 s{sP}, s3, 2
    s_lshl_b32 s3, s{sQ}, 1
    v_cvt_f32_u32 v{vT1}, s3
    v_rcp_f32 v{vT0}, v{vT0}
    v_rcp_f32 v{vT1}, v{vT1}
    s_lshl_b32 s3, s{sRem}, 2
    """)
    for (dst, last) in ((vSf, False), (vSl, True)):
        if not last:
            a(f"v_lshrrev_b32 v{vT2}, 2, v{vStart}")
        else:
            a(f"""
            v_add_u32 v{vT2}, v{vStart}, v{vPc}
            v_lshrrev_b32 v{vT2}, 2, v{vT2}
            v_add_u32 v{vT2}, -1, v{vT2}
            """)
        a(f"""
        v_cmp_gt_u32 vcc, s{sP}, v{vT2}
        v_cvt_f32_u32 v{vT3}, v{vT2}
        v_add_f32 v{vT3}, 0.5, v{vT3}
        v_mul_f32 v{vT3}, v{vT3}, v{vT0}
        v_cvt_u32_f32 v{vT3}, v{vT3}
        v_subrev_u32 v{vT2}, s{sP}, v{vT2}
        v_cvt_f32_u32 v{vT2}, v{vT2}
        v_add_f32 v{vT2}, 0.5, v{vT2}
        v_mul_f32 v{vT2}, v{vT2}, v{vT1}
        v_cvt_u32_f32 v{vT2}, v{vT2}
        v_add_u32 v{vT2}, s3, v{vT2}
        v_cndmask_b32_e64 v{dst}, v{vT2}, v{vT3}, vcc
        """)
    a(f"""
    s_cmp_eq_u32 s{sHB}, 0
    s_cbranch_scc1 K2_MAIN_DONE
    """)
    flush_id = [0]
    def flush(prev, masked):
        fid = flush_id[0]; flush_id[0] += 1
        if masked is not None:
            a(f"""
            v_cmp_ne_u32 vcc, v{masked}, v{prev}
            s_cbranch_vccz K2_FL{fid}
            s_mov_b64 exec, vcc
            """)
        a(f"""
        v_lshl_add_u32 v{vT0}, v{prev}, 1, v{vPB}
        ds_write_b128 v{vT0}, {vr(vAcc,4)}
        ds_write_b128 v{vT0}, {vr(vAcc+4,4)} offset:256
        """)
        if masked is not None:
            for i in range(8):
                a(f"v_mov_b32 v{vAcc+i}, 0")
            a(f"""
            s_mov_b64 exec, -1
            K2_FL{fid}:
            """)
    def body(pref):
        a("s_waitcnt lgkmcnt(0)")
        if pref:
            a(f"""
            ds_read_b128 {vr(vE,4)}, v{vLA} offset:32
            ds_read_b128 {vr(vE+4,4)}, v{vLA} offset:48
            ds_read_b64 {vr(vQN,2)}, v{vUA} offset:8
            """)
        for half in range(2):
            a(f"s_waitcnt vmcnt({4 if half == 0 else 0})")
            for r in range(4):
                for u in range(4*half, 4*half+4):
                    if r == 0:
                        a(f"v_dot2_f32_bf16 v{vP+u}, v{vX+4*u}, v{vQ+4*half}, 0")
                    else:
                        a(f"v_dot2c_f32_bf16 v{vP+u}, v{vX+4*u+r}, v{vQ+4*half+r}")
        if pref:
            a("s_waitcnt lgkmcnt(0)")
            a(f"v_add_u32 v{vT0}, v{vQN}, v{vQB}")
            a(f"v_add_u32 v{vT1}, v{vQN+1}, v{vQB}")
            for u in range(8):
                a(f"v_add_u32 v{vE+u}, v{vE+u}, v{vC16}")
            a(f"ds_read_b128 {vr(vQ,4)}, v{vT0}")
            a(f"ds_read_b128 {vr(vQ+4,4)}, v{vT1}")
        else:
            a("s_nop 2")
        for j in range(4):
            a(f"v_add_f32_dpp v{vP+j}, v{vP+j}, v{vP+j} row_mirror row_mask:0xf bank_mask:0x3")
        for j in range(4):
            a(f"v_add_f32_dpp v{vP+j}, v{vP+j+4}, v{vP+j+4} row_mirror row_mask:0xf bank_mask:0xc")
        for j in range(2):
            a(f"v_add_f32_dpp v{vP+j}, v{vP+j}, v{vP+j} row_half_mirror row_mask:0xf bank_mask:0x5")
        a("s_nop 0")
        for j in range(2):
            a(f"v_add_f32_dpp v{vP+j}, v{vP+j+2}, v{vP+j+2} row_half_mirror row_mask:0xf bank_mask:0xa")
        a(f"""
        s_nop 0
        v_add_f32_dpp v{vP+2}, v{vP}, v{vP} quad_perm:[1,0,3,2] row_mask:0xf bank_mask:0xf
        v_add_f32_dpp v{vP+3}, v{vP+1}, v{vP+1} quad_perm:[1,0,3,2] row_mask:0xf bank_mask:0xf
        s_nop 0
        v_cndmask_b32_e64 v{vP}, v{vP+2}, v{vP+3}, s[{sOdd}:{sOdd+1}]
        s_nop 1
        v_add_f32_dpp v{vP}, v{vP}, v{vP} quad_perm:[2,3,0,1] row_mask:0xf bank_mask:0xf
        v_cvt_pk_bf16_f32 v{vP}, v{vP}, v{vP}
        v_and_b32 v{vP}, v{vHiM}, v{vP}
        v_mul_f32 v{vP}, 0x3db504f3, v{vP}
        v_cvt_pk_bf16_f32 v{vP}, v{vP}, v{vP}
        v_and_b32 v{vP}, v{vHiM}, v{vP}
        v_mul_f32 v{vP}, 0xbfb8aa3b, v{vP}
        v_exp_f32 v{vP}, v{vP}
        s_nop 0
        v_add_f32 v{vP}, 1.0, v{vP}
        v_rcp_f32 v{vP}, v{vP}
        s_nop 0
        v_cvt_pk_bf16_f32 v{vALo}, v{vP}, 0
        v_cvt_pk_bf16_f32 v{vAHi}, 0, v{vP}
        """)
        for half in range(2):
            if half == 0:
                flush(vPrev, vQC)
                a("s_nop 1")
            else:
                a("s_nop 2")
                flush(vQC, vQC+1)
            for u in range(4*half, 4*half+4):
                k = 4*(u >> 1) + (u & 1)
                for r in range(4):
                    a(f"v_dot2c_f32_bf16_dpp v{vAcc+2*r}, v{vALo}, v{vX+4*u+r} row_newbcast:{k} row_mask:0xf bank_mask:0xf")
                    a(f"v_dot2c_f32_bf16_dpp v{vAcc+2*r+1}, v{vAHi}, v{vX+4*u+r} row_newbcast:{k} row_mask:0xf bank_mask:0xf")
                if pref:
                    a(f"buffer_load_dwordx4 {vr(vX+4*u,4)}, v{vE+u}, s[{sX}:{sX+3}], 0 offen")
        a(f"v_mov_b32 v{vPrev}, v{vQC+1}")
        if pref:
            a(f"""
            v_mov_b32 v{vQC}, v{vQN}
            v_mov_b32 v{vQC+1}, v{vQN+1}
            v_add_u32 v{vLA}, 32, v{vLA}
            v_add_u32 v{vUA}, 8, v{vUA}
            """)
    a(f"""
    s_cmp_eq_u32 s{sHB}, 1
    s_cbranch_scc1 K2_LAST
    K2_LOOP:
    """)
    body(True)
    a(f"""
    s_sub_u32 s{sHB}, s{sHB}, 1
    s_cmp_gt_u32 s{sHB}, 1
    s_cbranch_scc1 K2_LOOP
    K2_LAST:
    """)
    body(False)
    a("s_nop 2")
    flush(vPrev, None)
    a(f"""
    K2_MAIN_DONE:
    """)
    st.stamp(a)
    a(f"""
    s_waitcnt lgkmcnt(0)
    s_barrier
    """)
    st.stamp(a)
    sN, sS0, sS1, sPcn = 59, 60, 61, 62
    vRd = vX
    vL8 = vT3
    a(f"v_lshlrev_b32 v{vL8}, 3, v{vLane}")
    def node_scalars(k):
        a(f"""
        s_add_u32 s{sN}, s{sWave}, {16*k}
        v_readlane_b32 s{sS0}, v{vSf}, s{sN}
        v_readlane_b32 s{sS1}, v{vSl}, s{sN}
        v_readlane_b32 s{sPcn}, v{vPc}, s{sN}
        """)
    def piece_reads(k, dstbase):
        for j in range(4):
            a(f"""
            s_add_u32 s3, s{sS0}, {j}
            s_cmp_le_u32 s3, s{sS1}
            s_cselect_b32 s{sP}, 1, 0
            s_cmp_lg_u32 s{sPcn}, 0
            s_cselect_b32 s{sP}, s{sP}, 0
            s_add_u32 s3, s3, s{sN}
            s_lshl_b32 s3, s3, 9
            s_add_u32 s3, s3, {PIECE}
            s_cmp_lg_u32 s{sP}, 0
            s_cselect_b32 s3, s3, {ZROW}
            v_add_u32 v{vT0}, s3, v{vL8}
            ds_read_b64 {vr(dstbase+2*j,2)}, v{vT0}
            """)
    for k in range(4):
        if k == 3:
            a(f"""
            s_cmp_lg_u32 s{sWave}, 0
            s_cbranch_scc1 K2_RD_DONE
            """)
        node_scalars(k)
        piece_reads(k, vRd + 8*k)
    a("K2_RD_DONE:")
    a("s_waitcnt lgkmcnt(0)")
    for k in range(4):
        if k == 3:
            a(f"""
            s_cmp_lg_u32 s{sWave}, 0
            s_cbranch_scc1 K2_AD_DONE
            """)
        for j in range(4):
            a(f"v_add_f32 v{vTot+2*k}, v{vTot+2*k}, v{vRd+8*k+2*j}")
            a(f"v_add_f32 v{vTot+2*k+1}, v{vTot+2*k+1}, v{vRd+8*k+2*j+1}")
    a("K2_AD_DONE:")
    for k in range(4):
        if k == 3:
            a(f"""
            s_cmp_lg_u32 s{sWave}, 0
            s_cbranch_scc1 K2_X_DONE
            """)
        node_scalars(k)
        a(f"""
        K2_XL{k}:
        s_add_u32 s{sS0}, s{sS0}, 4
        s_cmp_gt_u32 s{sS0}, s{sS1}
        s_cbranch_scc1 K2_XE{k}
        s_cmp_eq_u32 s{sPcn}, 0
        s_cbranch_scc1 K2_XE{k}
        """)
        piece_reads(k, vRd)
        a("s_waitcnt lgkmcnt(0)")
        for j in range(4):
            a(f"v_add_f32 v{vTot+2*k}, v{vTot+2*k}, v{vRd+2*j}")
            a(f"v_add_f32 v{vTot+2*k+1}, v{vTot+2*k+1}, v{vRd+2*j+1}")
        a(f"""
        s_branch K2_XL{k}
        K2_XE{k}:
        """)
    a(f"""
    K2_X_DONE:
    s_add_u32 s{sR}, s{sR}, 1
    s_cmp_ge_u32 s{sR}, s{sNR}
    s_cbranch_scc1 K2_EPI
    s_barrier
    """)
    a(f"""
    v_mov_b32 v{vCand}, -1
    v_mov_b32 v{vCand+1}, -1
    v_mov_b32 v{vCand+2}, -1
    v_mov_b32 v{vCand+3}, -1
    v_mov_b32 v{vHdr}, 0
    v_cmp_gt_u32 vcc, {C*4}, v0
    s_and_saveexec_b64 s[{sSave}:{sSave+1}], vcc
    s_cbranch_execz K2_R1
    v_lshrrev_b32 v{vT0}, 2, v0
    v_lshlrev_b32 v{vT0}, 13, v{vT0}
    v_add_u32 v{vT0}, {WS_OVF}, v{vT0}
    buffer_load_dword v{vT3}, v{vT0}, s[{sWS}:{sWS+3}], 0 offen
    s_lshl_b32 s3, s{sR}, 4
    s_sub_u32 s3, s3, 13
    v_and_b32 v{vT1}, 3, v0
    v_lshl_add_u32 v{vT1}, v{vT1}, 2, s3
    v_lshl_add_u32 v{vT0}, v{vT1}, 2, v{vT0}
    buffer_load_dwordx4 {vr(vSo,4)}, v{vT0}, s[{sWS}:{sWS+3}], 0 offen offset:4
    s_waitcnt vmcnt(0)
    """)
    for i in range(4):
        a(f"""
        v_add_u32 v{vT2}, {i}, v{vT1}
        v_cmp_lt_u32 vcc, v{vT2}, v{vT3}
        s_nop 1
        v_cndmask_b32_e64 v{vCand+i}, v{vCand+i}, v{vSo+i}, vcc
        """)
    a(f"""
    K2_R1:
    s_mov_b64 exec, s[{sSave}:{sSave+1}]
    s_branch K2_ROUND
    K2_EPI:
    """)
    st.stamp(a)
    vAcc16 = 16
    vA8 = 32
    vB8 = 64
    vWa, vBa, vRow = 8, 9, 10
    a(f"""
    s_mul_i32 s3, s{sWave}, {ABSTR}
    s_add_u32 s3, s3, {AGGB}
    v_add_u32 v11, s3, v{vL4}
    """)
    for k in range(4):
        if k == 3:
            a(f"""
            s_cmp_lg_u32 s{sWave}, 0
            s_cbranch_scc1 K2_WB_DONE
            """)
        a(f"v_cvt_pk_bf16_f32 v12, v{vTot+2*k}, v{vTot+2*k+1}")
        a(f"ds_write_b32 v11, v12 offset:{16*k*ABSTR}")
    a(f"""
    K2_WB_DONE:
    s_and_b32 s{sP}, s{sWave}, 3
    s_lshr_b32 s{sNH}, s{sWave}, 2
    s_cmp_ge_u32 s{sWave}, 8
    s_cbranch_scc1 K2_EB
    """)
    tile_a_addr(a, vWa, vLane, 11, 12, sP, WV)
    for ks in range(8):
        if ks == 4: a("s_waitcnt lgkmcnt(4)")
        a(f"ds_read_b64_tr_b16 {vr(vA8+4*ks,2)}, v{vWa} offset:{ks*16*WSTRIDE}")
        a(f"ds_read_b64_tr_b16 {vr(vA8+4*ks+2,2)}, v{vWa} offset:{ks*16*WSTRIDE + 4*WSTRIDE}")
    a(f"""
    v_and_b32 v{vRow}, 31, v{vLane}
    s_lshl_b32 s3, s{sNH}, 5
    v_add_u32 v{vRow}, s3, v{vRow}
    v_mul_u32_u24 v{vBa}, {ABSTR}, v{vRow}
    v_lshrrev_b32 v11, 5, v{vLane}
    v_lshl_add_u32 v{vBa}, v11, 4, v{vBa}
    K2_EB:
    s_waitcnt lgkmcnt(0)
    s_barrier
    s_cmp_ge_u32 s{sWave}, 8
    s_cbranch_scc1 K2_FIN
    """)
    vB8 = 64
    for ks in range(8):
        a(f"ds_read_b128 {vr(vB8+4*ks,4)}, v{vBa} offset:{AGGB + 32*ks}")
    for ks in range(8):
        a(f"s_waitcnt lgkmcnt({7-ks})")
        c = "0" if ks == 0 else vr(vAcc16,16)
        a(f"v_mfma_f32_32x32x16_bf16 {vr(vAcc16,16)}, {vr(vA8+4*ks,4)}, {vr(vB8+4*ks,4)}, {c}")
    a(f"""
    s_mul_i32 s3, s{sBeta}, {T*256}
    s_lshl_b32 s{sCnt}, s{sP}, 6
    s_add_u32 s3, s3, s{sCnt}
    v_lshlrev_b32 v12, 8, v{vRow}
    v_lshl_add_u32 v12, v11, 5, v12
    v_add_u32 v12, s3, v12
    v_cmp_gt_u32 vcc, {T}, v{vRow}
    s_nop 7
    s_nop 3
    """)
    for i in range(8):
        a(f"v_cvt_pk_bf16_f32 v{vA8+i}, v{vAcc16+2*i}, v{vAcc16+2*i+1}")
    a(f"""
    s_and_saveexec_b64 s[{sSave}:{sSave+1}], vcc
    s_cbranch_execz K2_ST_DONE
    buffer_store_dwordx4 {vr(vA8,4)}, v12, s[{sOUT}:{sOUT+3}], 0 offen
    buffer_store_dwordx4 {vr(vA8+4,4)}, v12, s[{sOUT}:{sOUT+3}], 0 offen offset:16
    K2_ST_DONE:
    s_mov_b64 exec, s[{sSave}:{sSave+1}]
    K2_FIN:
    """)
    st.stamp(a)
    if opt.stamps:
        a("s_waitcnt vmcnt(0)")
        st.stamp(a)
    st.flush(a, sWS, 11, sWave)
    a("""
    K2_END:
    s_endpgm
    """)
    return a.text(), LDS, 108

def kd(name, vgpr, sgpr=102):
    return f""".amdhsa_kernel {name}
  .amdhsa_next_free_vgpr {vgpr}
  .amdhsa_next_free_sgpr {sgpr}
  .amdhsa_accum_offset {(vgpr + 3)//4*4}
  .amdhsa_group_segment_fixed_size 0
  .amdhsa_kernarg_size 64
  .amdhsa_user_sgpr_count 2
  .amdhsa_user_sgpr_kernarg_segment_ptr 1
  .amdhsa_system_sgpr_workgroup_id_x 1
.end_amdhsa_kernel
"""

HEADER = """; Kernarg layout for this problem (64 bytes, ptrs only, base s[0:1]):
"""

def build(opt):
    k1, lds1, v1 = gen_k1(opt)
    k2, lds2, v2 = gen_k2(opt)
    lds1 = max(lds1, 83968)
    n1, n2 = NAME + "_k1_kernel", NAME + "_k2_kernel"
    out = HEADER
    out += f"; @launch kernel={n1} grid=({NB},1,1) block=(512,1,1) lds={lds1}\n"
    out += f"; @launch kernel={n2} grid=({NB},1,1) block=(1024,1,1) lds={lds2}\n"
    for i in range(opt.empty):
        out += f"; @launch kernel={NAME}_empty_kernel grid=({NB},1,1) block=(64,1,1) lds=0\n"
    out += '.amdgcn_target "amdgcn-amd-amdhsa--gfx950"\n.text\n'
    for n, k in ((n1, k1), (n2, k2)):
        out += f".globl {n}\n.p2align 8\n.type {n},@function\n" + k
    if opt.empty:
        n3 = NAME + "_empty_kernel"
        out += f".globl {n3}\n.p2align 8\n.type {n3},@function\n{n3}:\n  s_endpgm\n"
    out += '.section .rodata,"a"\n.p2align 6\n'
    out += kd(n1, v1) + ".p2align 6\n" + kd(n2, v2)
    if opt.empty:
        out += ".p2align 6\n" + kd(NAME + "_empty_kernel", 8, 16)
    return out

def parse(argv=None):
    p = argparse.ArgumentParser()
    p.add_argument("-o", default="cdna_kernels/" + NAME + ".s")
    p.add_argument("--stamps", action="store_true")
    p.add_argument("--prefetch", type=int, default=0)
    p.add_argument("--empty", type=int, default=0)
    p.add_argument("--cellst", default="")
    p.add_argument("--qst", default="")
    return p.parse_args(argv)

if __name__ == "__main__":
    o = parse()
    open(o.o, "w").write(build(o))
    print("wrote", o.o)
```

```python
import sys, argparse

NAME = "gather_scatter__kernel_systems_refs_featgraph__graph"
N, E, D = 12500, 400000, 128
T = 49
NB = 256
CH = 1600
C = 250
S = 16
XBYTES = N * 256
EBYTES = E * 4
WS_CELLS = 0
CELLROW = C * S * 4
WS_OVF = 0x400000
OVF_STRIDE = 8192
WS_Q = 0x600000
WS_USED = WS_Q + NB * T * 256 + 4096
WS_STAMP = 0x1000000
OOB = 0x40000000
DUMMY = 49

class A:
    def __init__(self):
        self.l = []
    def __call__(self, s):
        for line in s.strip("\n").split("\n"):
            line = line.strip()
            if not line:
                continue
            if line.endswith(":") and " " not in line:
                self.l.append(line)
            else:
                self.l.append("  " + line)
    def text(self):
        return "\n".join(self.l) + "\n"

def srd(a, d, base, size):
    a(f"""
    s_mov_b32 s{d}, s{base}
    s_mov_b32 s{d+1}, s{base+1}
    s_mov_b32 s{d+2}, {size}
    s_mov_b32 s{d+3}, 0x00020000
    """)

def vr(b, n):
    return f"v[{b}:{b+n-1}]"

class Stamps:
    def __init__(self, on, sbase, area):
        self.on, self.sbase, self.area, self.n = on, sbase, area, 0
    def stamp(self, a):
        if not self.on: return
        r = self.sbase + 2 * self.n
        a(f"s_memrealtime s[{r}:{r+1}]")
        self.n += 1
    def flush(self, a, srd_lo, vtmp, wave_sgpr):
        if not self.on: return
        a(f"""
        s_waitcnt lgkmcnt(0)
        s_lshl_b32 s3, s2, 4
        s_add_u32 s3, s3, s{wave_sgpr}
        s_lshl_b32 s3, s3, 6
        s_add_u32 s3, s3, {self.area}
        s_mov_b64 exec, 1
        """)
        for i in range(self.n):
            a(f"v_mov_b32 v{vtmp}, s{self.sbase + 2*i}")
            a(f"v_mov_b32 v{vtmp+1}, s3")
            a(f"buffer_store_dword v{vtmp}, v{vtmp+1}, s[{srd_lo}:{srd_lo+3}], 0 offen offset:{4*i}")
        a("s_waitcnt vmcnt(0)")

WSTRIDE = 320

def tile_a_addr(a, vdst, vlane, vtmp, vtmp2, sP, wbase):
    a(f"""
    v_lshrrev_b32 v{vtmp}, 5, v{vlane}
    v_lshlrev_b32 v{vtmp}, 3, v{vtmp}
    v_bfe_u32 v{vtmp2}, v{vlane}, 2, 2
    v_add_u32 v{vtmp}, v{vtmp}, v{vtmp2}
    v_mul_u32_u24 v{vdst}, {WSTRIDE}, v{vtmp}
    v_bfe_u32 v{vtmp}, v{vlane}, 4, 1
    v_lshlrev_b32 v{vtmp}, 2, v{vtmp}
    v_and_b32 v{vtmp2}, 3, v{vlane}
    v_add_u32 v{vtmp}, v{vtmp}, v{vtmp2}
    v_and_b32 v{vtmp2}, 1, v{vtmp}
    v_lshlrev_b32 v{vtmp2}, 2, v{vtmp2}
    v_lshrrev_b32 v{vtmp}, 1, v{vtmp}
    v_add_u32 v{vtmp}, v{vtmp}, v{vtmp2}
    v_lshlrev_b32 v{vtmp}, 3, v{vtmp}
    v_add_u32 v{vdst}, v{vdst}, v{vtmp}
    s_lshl_b32 s3, s{sP}, 6
    s_add_u32 s3, s3, {wbase}
    v_add_u32 v{vdst}, s3, v{vdst}
    """)

def gen_k1(opt):
    a = A()
    HIST, OVC, JUNK, STAGE = 0, 1024, 1040, 2048
    XT = STAGE + 16384
    XSTR = 272
    WQ = XT + 64 * XSTR
    LDS = WQ + 128 * WSTRIDE
    st = Stamps(opt.stamps, 60, WS_STAMP)
    sX, sSRC, sDST, sWQ, sWS = 16, 20, 24, 28, 32
    sWave, sP, sNH = 36, 37, 38
    vLane, vW = 1, 2
    vDst, vSrc = 4, 8
    vXT = 12
    vWl = 20
    vEnt, vAdr, vRank = 36, 40, 44
    vT0, vT1, vT2, vT3 = 48, 49, 50, 51
    vOne, vNeg, vZero = 52, 56, 60
    vXa, vWa = 61, 62
    vAcc = 64
    vAf, vBf = 80, 96
    a(f"""
    {NAME}_k1_kernel:
    s_cmp_ge_u32 s2, {NB}
    s_cbranch_scc1 K1_END
    s_load_dwordx4 s[4:7], s[0:1], 0
    s_load_dwordx4 s[8:11], s[0:1], 16
    s_load_dwordx2 s[12:13], s[0:1], 56
    """)
    st.stamp(a)
    a(f"""
    v_and_b32 v{vLane}, 63, v0
    v_lshrrev_b32 v{vW}, 6, v0
    v_mov_b32 v{vOne}, 1
    v_readfirstlane_b32 s{sWave}, v{vW}
    v_mov_b32 v{vNeg}, -1
    v_mov_b32 v{vNeg+1}, -1
    v_mov_b32 v{vNeg+2}, -1
    v_mov_b32 v{vNeg+3}, -1
    v_mov_b32 v{vZero}, 0
    s_and_b32 s{sP}, s{sWave}, 3
    s_lshr_b32 s{sNH}, s{sWave}, 2
    s_waitcnt lgkmcnt(0)
    """)
    srd(a, sX, 4, XBYTES); srd(a, sSRC, 6, EBYTES); srd(a, sDST, 8, EBYTES)
    srd(a, sWQ, 10, 32768); srd(a, sWS, 12, WS_USED if not opt.stamps else 0x2000000)
    a(f"""
    s_cmp_ge_u32 s2, {C}
    s_cbranch_scc1 K1_NOEDGE0
    v_cmp_gt_u32 vcc, {CH//4}, v0
    s_and_saveexec_b64 s[40:41], vcc
    s_cbranch_execz K1_EDGE0_DONE
    s_mul_i32 s14, s2, {CH*4}
    v_lshl_add_u32 v{vT0}, v0, 4, s14
    buffer_load_dwordx4 {vr(vDst,4)}, v{vT0}, s[{sDST}:{sDST+3}], 0 offen
    buffer_load_dwordx4 {vr(vSrc,4)}, v{vT0}, s[{sSRC}:{sSRC+3}], 0 offen
    K1_EDGE0_DONE:
    s_mov_b64 exec, s[40:41]
    K1_NOEDGE0:
    s_mul_i32 s14, s2, {T*256}
    v_lshl_add_u32 v{vT0}, v0, 4, s14
    v_add_u32 v{vT1}, 8192, v{vT0}
    v_lshlrev_b32 v{vT2}, 4, v0
    buffer_load_dwordx4 {vr(vXT,4)}, v{vT0}, s[{sX}:{sX+3}], 0 offen
    buffer_load_dwordx4 {vr(vXT+4,4)}, v{vT1}, s[{sX}:{sX+3}], 0 offen
    """)
    for i in range(4):
        a(f"s_mov_b32 s14, {8192*i}")
        a(f"buffer_load_dwordx4 {vr(vWl+4*i,4)}, v{vT2}, s[{sWQ}:{sWQ+3}], s14 offen")
    if opt.prefetch:
        npf = opt.prefetch
        per = 100352
        a(f"""
        s_lshr_b32 s14, s2, 3
        s_mul_i32 s14, s14, {per}
        v_lshlrev_b32 v{vT3}, 7, v0
        v_add_u32 v{vT3}, s14, v{vT3}
        """)
        a(f"""
        buffer_load_dword v112, v{vT3}, s[{sX}:{sX+3}], 0 offen
        v_add_u32 v{vT3}, 65536, v{vT3}
        v_mov_b32 v{vT2}, {OOB}
        v_cmp_gt_u32 vcc, {(per - 65536)//128}, v0
        s_nop 1
        v_cndmask_b32_e64 v{vT3}, v{vT2}, v{vT3}, vcc
        buffer_load_dword v113, v{vT3}, s[{sX}:{sX+3}], 0 offen
        """)
    a(f"""
    v_lshlrev_b32 v{vT0}, 4, v0
    ds_write_b128 v{vT0}, {vr(vNeg,4)} offset:{STAGE}
    ds_write_b128 v{vT0}, {vr(vNeg,4)} offset:{STAGE+8192}
    v_cmp_ge_u32 vcc, 256, v0
    s_and_saveexec_b64 s[40:41], vcc
    v_lshlrev_b32 v{vT1}, 2, v0
    ds_write_b32 v{vT1}, v{vZero} offset:{HIST}
    s_mov_b64 exec, s[40:41]
    s_waitcnt lgkmcnt(0)
    s_barrier
    """)
    st.stamp(a)
    npfl = 2 if opt.prefetch else 0
    a(f"""
    s_cmp_ge_u32 s2, {C}
    s_cbranch_scc1 K1_NOEDGE1
    v_cmp_gt_u32 vcc, {CH//4}, v0
    s_and_saveexec_b64 s[40:41], vcc
    s_cbranch_execz K1_EDGE1_DONE
    s_mov_b32 s15, -{T}
    s_waitcnt vmcnt({6+npfl})
    """)
    st.stamp(a)
    for i in range(4):
        a(f"""
        v_mul_u32_u24 v{vT0}, 21400, v{vDst+i}
        v_lshrrev_b32 v{vT0}, 20, v{vT0}
        v_mad_i32_i24 v{vT1}, v{vT0}, s15, v{vDst+i}
        v_lshl_or_b32 v{vEnt+i}, v{vSrc+i}, 8, v{vT1}
        v_lshl_or_b32 v{vEnt+i}, v{vT0}, 24, v{vEnt+i}
        v_lshlrev_b32 v{vAdr+i}, 2, v{vT0}
        ds_add_rtn_u32 v{vRank+i}, v{vAdr+i}, v{vOne} offset:{HIST}
        """)
    a(f"v_mov_b32 v{vT3}, {JUNK}")
    a("s_waitcnt lgkmcnt(0)")
    for i in range(4):
        a(f"""
        v_cmp_gt_u32 s[{42+2*i}:{43+2*i}], 16, v{vRank+i}
        v_lshlrev_b32 v{vT0}, 4, v{vAdr+i}
        v_lshl_add_u32 v{vT0}, v{vRank+i}, 2, v{vT0}
        v_add_u32 v{vT0}, {STAGE}, v{vT0}
        v_cndmask_b32_e64 v{vT0}, v{vT3}, v{vT0}, s[{42+2*i}:{43+2*i}]
        ds_write_b32 v{vT0}, v{vEnt+i}
        """)
    a(f"""
    s_and_b64 s[50:51], s[42:43], s[44:45]
    s_and_b64 s[52:53], s[46:47], s[48:49]
    s_and_b64 s[50:51], s[50:51], s[52:53]
    s_andn2_b64 s[50:51], exec, s[50:51]
    s_cbranch_scc0 K1_EDGE1_DONE
    s_mov_b64 s[54:55], exec
    s_mul_i32 s14, s2, {OVF_STRIDE}
    s_add_u32 s14, s14, {WS_OVF + 4}
    v_mov_b32 v{vT3}, {OVC}
    """)
    for i in range(4):
        a(f"""
        s_andn2_b64 exec, s[54:55], s[{42+2*i}:{43+2*i}]
        s_cbranch_execz K1_OV_{i}
        ds_add_rtn_u32 v{vT0}, v{vT3}, v{vOne}
        s_waitcnt lgkmcnt(0)
        v_lshl_add_u32 v{vT0}, v{vT0}, 2, s14
        buffer_store_dword v{vEnt+i}, v{vT0}, s[{sWS}:{sWS+3}], 0 offen
        K1_OV_{i}:
        """)
    a(f"""
    K1_EDGE1_DONE:
    s_mov_b64 exec, s[40:41]
    K1_NOEDGE1:
    """)
    a(f"""
    v_lshrrev_b32 v{vT0}, 4, v0
    v_and_b32 v{vT1}, 15, v0
    v_lshlrev_b32 v{vT1}, 4, v{vT1}
    v_mul_u32_u24 v{vT2}, {XSTR}, v{vT0}
    v_add_u32 v{vT2}, v{vT2}, v{vT1}
    v_mul_u32_u24 v{vT3}, {WSTRIDE}, v{vT0}
    v_add_u32 v{vT3}, v{vT3}, v{vT1}
    v_add_u32 v{vT3}, {WQ}, v{vT3}
    s_waitcnt vmcnt({4+npfl})
    ds_write_b128 v{vT2}, {vr(vXT,4)} offset:{XT}
    ds_write_b128 v{vT2}, {vr(vXT+4,4)} offset:{XT + 32*XSTR}
    s_waitcnt vmcnt({npfl})
    """)
    for i in range(4):
        a(f"ds_write_b128 v{vT3}, {vr(vWl+4*i,4)} offset:{32*i*WSTRIDE}")
    a("""
    s_waitcnt lgkmcnt(0)
    s_barrier
    """)
    st.stamp(a)
    a(f"""
    s_cmp_ge_u32 s2, {C}
    s_cbranch_scc1 K1_NOEDGE2
    v_lshlrev_b32 v{vT0}, 4, v0
    ds_read_b128 {vr(vEnt,4)}, v{vT0} offset:{STAGE}
    ds_read_b128 {vr(vAdr,4)}, v{vT0} offset:{STAGE+8192}
    v_mov_b32 v{vT3}, {OVC}
    ds_read_b32 v{vRank}, v{vT3}
    v_lshrrev_b32 v{vT1}, 2, v0
    v_mul_u32_u24 v{vT1}, {CELLROW}, v{vT1}
    v_and_b32 v{vT2}, 3, v0
    v_lshl_add_u32 v{vT1}, v{vT2}, 4, v{vT1}
    s_lshl_b32 s14, s2, 6
    s_add_u32 s15, s14, {128*CELLROW}
    s_waitcnt lgkmcnt(0)
    buffer_store_dwordx4 {vr(vEnt,4)}, v{vT1}, s[{sWS}:{sWS+3}], s14 offen {opt.cellst}
    buffer_store_dwordx4 {vr(vAdr,4)}, v{vT1}, s[{sWS}:{sWS+3}], s15 offen {opt.cellst}
    v_cmp_eq_u32 vcc, 0, v0
    s_and_saveexec_b64 s[40:41], vcc
    s_cbranch_execz K1_HDR_DONE
    s_mul_i32 s14, s2, {OVF_STRIDE}
    s_add_u32 s14, s14, {WS_OVF}
    v_mov_b32 v{vT2}, s14
    buffer_store_dword v{vRank}, v{vT2}, s[{sWS}:{sWS+3}], 0 offen {opt.cellst}
    K1_HDR_DONE:
    s_mov_b64 exec, s[40:41]
    K1_NOEDGE2:
    """)
    st.stamp(a)
    tile_a_addr(a, vWa, vLane, vT0, vT1, sP, WQ)
    a(f"""
    v_and_b32 v{vT0}, 31, v{vLane}
    s_lshl_b32 s14, s{sNH}, 5
    v_add_u32 v{vT0}, s14, v{vT0}
    v_mul_u32_u24 v{vXa}, {XSTR}, v{vT0}
    v_lshrrev_b32 v{vT1}, 5, v{vLane}
    v_lshl_add_u32 v{vXa}, v{vT1}, 4, v{vXa}
    """)
    vA8, vB8 = 80, 4
    for ks in range(8):
        a(f"ds_read_b64_tr_b16 {vr(vA8+4*ks,2)}, v{vWa} offset:{ks*16*WSTRIDE}")
        a(f"ds_read_b64_tr_b16 {vr(vA8+4*ks+2,2)}, v{vWa} offset:{ks*16*WSTRIDE + 4*WSTRIDE}")
        a(f"ds_read_b128 {vr(vB8+4*ks,4)}, v{vXa} offset:{XT + 32*ks}")
        if ks % 4 == 3:
            a("s_waitcnt lgkmcnt(0)")
            for k2 in range(ks-3, ks+1):
                c = "0" if k2 == 0 else vr(vAcc,16)
                a(f"v_mfma_f32_32x32x16_bf16 {vr(vAcc,16)}, {vr(vA8+4*k2,4)}, {vr(vB8+4*k2,4)}, {c}")
    a(f"""
    s_mul_i32 s14, s2, {T*256}
    s_add_u32 s14, s14, {WS_Q}
    s_lshl_b32 s15, s{sP}, 6
    s_add_u32 s14, s14, s15
    v_lshlrev_b32 v{vT2}, 8, v{vT0}
    v_lshl_add_u32 v{vT2}, v{vT1}, 5, v{vT2}
    v_add_u32 v{vT2}, s14, v{vT2}
    v_cmp_gt_u32 vcc, {T}, v{vT0}
    s_nop 7
    s_nop 3
    """)
    for i in range(8):
        a(f"v_cvt_pk_bf16_f32 v{vA8+i}, v{vAcc+2*i}, v{vAcc+2*i+1}")
    a(f"""
    s_and_saveexec_b64 s[40:41], vcc
    s_cbranch_execz K1_Q_DONE
    buffer_store_dwordx4 {vr(vA8,4)}, v{vT2}, s[{sWS}:{sWS+3}], 0 offen {opt.qst}
    buffer_store_dwordx4 {vr(vA8+4,4)}, v{vT2}, s[{sWS}:{sWS+3}], 0 offen offset:16 {opt.qst}
    K1_Q_DONE:
    s_mov_b64 exec, s[40:41]
    """)
    st.stamp(a)
    if opt.stamps:
        a("s_waitcnt vmcnt(0)")
        st.stamp(a)
    st.flush(a, sWS, vT0, sWave)
    a("""
    K1_END:
    s_endpgm
    """)
    return a.text(), LDS, 116

def scan64(a, v, vsave):
    for sh in ("row_shr:1", "row_shr:2", "row_shr:4", "row_shr:8"):
        a(f"v_add_u32_dpp v{v}, v{v}, v{v} {sh} row_mask:0xf bank_mask:0xf bound_ctrl:1")
        a("s_nop 1")
    a(f"v_add_u32_dpp v{v}, v{v}, v{v} row_bcast:15 row_mask:0xa bank_mask:0xf")
    a("s_nop 1")
    a(f"v_add_u32_dpp v{v}, v{v}, v{v} row_bcast:31 row_mask:0xc bank_mask:0xf")

def gen_k2(opt):
    a = A()
    HIST, MAXC, ZROW = 0, 256, 512
    LIST = 1024
    LISTW = 5120
    UNODE = LIST + LISTW * 4
    QS = UNODE + 1280 * 4
    PIECE = QS + 52 * 256
    WV = PIECE + (DUMMY + 64) * 512
    LDS = WV + 128 * WSTRIDE
    AGGB, ABSTR = LIST, 272
    st = Stamps(opt.stamps, 64, WS_STAMP + 0x40000)
    sX, sWV, sOUT, sWS = 12, 16, 20, 24
    sBeta, sWave, sR, sNR = 28, 29, 30, 31
    sOdd = 32
    sBeta24, sHB, sP, sNH = 35, 36, 37, 38
    sM = 40
    sSave = 54
    sCnt, sQ, sRem = 56, 57, 58
    vLane, vC16, vPB, vLA, vUA, vPrev = 1, 2, 3, 4, 5, 6
    vL4 = 7
    vQC, vQN = 8, 10
    vALo, vAHi, vHiM = 12, 13, 14
    vQB = 15
    vT0, vT1, vT2, vT3 = 16, 17, 18, 19
    vAcc = 20
    vP = 28
    vE = 36
    vQ = 44
    vX = 52
    vTot = 84
    vSf, vSl, vPc, vStart = 92, 93, 94, 95
    vWvl = 96
    vZ4 = 104
    vCand = 52
    vHdr = 56
    vSo = 60
    vN4 = 68
    vRk = 76
    a(f"""
    {NAME}_k2_kernel:
    s_cmp_ge_u32 s2, {NB}
    s_cbranch_scc1 K2_END
    s_load_dwordx2 s[6:7], s[0:1], 56
    s_load_dwordx2 s[4:5], s[0:1], 0
    s_load_dwordx4 s[8:11], s[0:1], 32
    """)
    st.stamp(a)
    a(f"""
    v_and_b32 v{vLane}, 63, v0
    v_lshrrev_b32 v{vT0}, 6, v0
    s_and_b32 s{sBeta}, s2, 7
    v_readfirstlane_b32 s{sWave}, v{vT0}
    s_lshl_b32 s{sBeta}, s{sBeta}, 5
    s_lshr_b32 s3, s2, 3
    s_add_u32 s{sBeta}, s{sBeta}, s3
    s_lshl_b32 s{sBeta24}, s{sBeta}, 24
    v_mov_b32 v{vCand}, -1
    v_mov_b32 v{vCand+1}, -1
    v_mov_b32 v{vCand+2}, -1
    v_mov_b32 v{vCand+3}, -1
    v_mov_b32 v{vHdr}, 0
    v_lshlrev_b32 v{vT0}, 4, v0
    v_lshlrev_b32 v{vT1}, 13, v0
    s_mul_i32 s3, s{sBeta}, {CELLROW}
    s_mov_b32 s{sCnt}, {WS_OVF}
    s_waitcnt lgkmcnt(0)
    """)
    srd(a, sWS, 6, WS_USED if not opt.stamps else 0x2000000)
    a(f"""
    v_cmp_gt_u32 vcc, {C*4}, v0
    s_and_saveexec_b64 s[{sSave}:{sSave+1}], vcc
    s_cbranch_execz K2_L0
    buffer_load_dwordx4 {vr(vCand,4)}, v{vT0}, s[{sWS}:{sWS+3}], s3 offen
    K2_L0:
    s_mov_b64 exec, s[{sSave}:{sSave+1}]
    s_cmp_ge_u32 s{sWave}, 4
    s_cbranch_scc1 K2_L1
    v_cmp_gt_u32 vcc, {C}, v0
    s_and_saveexec_b64 s[{sSave}:{sSave+1}], vcc
    buffer_load_dwordx4 {vr(vHdr,4)}, v{vT1}, s[{sWS}:{sWS+3}], s{sCnt} offen
    s_mov_b64 exec, s[{sSave}:{sSave+1}]
    K2_L1:
    """)
    srd(a, sX, 4, XBYTES); srd(a, sWV, 8, 32768); srd(a, sOUT, 10, XBYTES)
    a(f"""
    s_cmp_ge_u32 s{sWave}, 13
    s_cbranch_scc1 K2_L2
    s_mul_i32 s3, s{sBeta}, {T*256}
    s_add_u32 s3, s3, {WS_Q}
    s_lshl_b32 s{sCnt}, s{sWave}, 10
    s_add_u32 s3, s3, s{sCnt}
    s_add_u32 s{sCnt}, s{sCnt}, {QS}
    s_mov_b32 m0, s{sCnt}
    v_lshlrev_b32 v{vT1}, 4, v{vLane}
    buffer_load_dwordx4 v{vT1}, s[{sWS}:{sWS+3}], s3 offen lds
    K2_L2:
    s_mov_b32 s3, 16384
    buffer_load_dwordx4 {vr(vWvl,4)}, v{vT0}, s[{sWV}:{sWV+3}], 0 offen
    buffer_load_dwordx4 {vr(vWvl+4,4)}, v{vT0}, s[{sWV}:{sWV+3}], s3 offen
    s_mov_b32 s{sOdd}, 0xaaaaaaaa
    s_mov_b32 s{sOdd+1}, 0xaaaaaaaa
    s_mov_b32 s{sR}, 0
    v_and_b32 v{vT0}, 15, v{vLane}
    v_lshlrev_b32 v{vC16}, 4, v{vT0}
    v_add_u32 v{vQB}, {QS}, v{vC16}
    v_lshlrev_b32 v{vL4}, 2, v{vLane}
    v_mov_b32 v{vHiM}, 0xffff0000
    v_lshrrev_b32 v{vT0}, 4, v{vLane}
    s_lshl_b32 s3, s{sWave}, 11
    s_add_u32 s3, s3, {PIECE}
    v_lshl_add_u32 v{vPB}, v{vT0}, 9, s3
    v_add_u32 v{vPB}, v{vPB}, v{vC16}
    """)
    for i in range(8):
        a(f"v_mov_b32 v{vTot+i}, 0")
    a(f"""
    K2_ROUND:
    v_mov_b32 v{vZ4}, {OOB}
    v_mov_b32 v{vZ4+1}, {OOB}
    v_mov_b32 v{vZ4+2}, {OOB}
    v_mov_b32 v{vZ4+3}, {OOB}
    v_mov_b32 v{vT1}, {DUMMY*256}
    v_mov_b32 v{vT2}, 0
    v_lshlrev_b32 v{vT0}, 4, v0
    v_lshlrev_b32 v{vT3}, 2, v0
    ds_write_b128 v{vT0}, {vr(vZ4,4)} offset:{LIST}
    ds_write_b32 v{vT3}, v{vT1} offset:{UNODE}
    s_cmp_ge_u32 s{sWave}, 4
    s_cbranch_scc1 K2_I1
    ds_write_b128 v{vT0}, {vr(vZ4,4)} offset:{LIST+16384}
    ds_write_b32 v{vT3}, v{vT1} offset:{UNODE+4096}
    ds_write_b32 v{vT3}, v{vT2} offset:{HIST}
    K2_I1:
    s_waitcnt lgkmcnt(0)
    s_barrier
    """)
    st.stamp(a)
    def decode(word, i, extra_mask=None):
        m = sM + 2*i
        a(f"""
        v_xor_b32 v{vT0}, s{sBeta24}, v{word}
        v_and_b32 v{vT1}, 0xff0000c0, v{vT0}
        v_cmp_eq_u32 s[{m}:{m+1}], 0, v{vT1}
        v_and_b32 v{vSo+i}, 0x00ffff00, v{vT0}
        v_and_b32 v{vN4+i}, 0x3f, v{vT0}
        v_lshlrev_b32 v{vN4+i}, 2, v{vN4+i}
        """)
        if extra_mask:
            a(f"s_and_b64 s[{m}:{m+1}], s[{m}:{m+1}], {extra_mask}")
        a(f"""
        s_mov_b64 exec, s[{m}:{m+1}]
        ds_add_rtn_u32 v{vRk+i}, v{vN4+i}, v{vT3} offset:{HIST}
        s_mov_b64 exec, -1
        """)
    a(f"""
    v_mov_b32 v{vT3}, 1
    s_cmp_eq_u32 s{sR}, 0
    s_cbranch_scc0 K2_WAITR
    s_waitcnt vmcnt(2)
    s_branch K2_WAITD
    K2_WAITR:
    s_waitcnt vmcnt(0)
    K2_WAITD:
    """)
    st.stamp(a)
    for i in range(4):
        decode(vCand+i, i)
    a(f"""
    s_mov_b64 s[{sM+8}:{sM+9}], 0
    s_mov_b64 s[{sM+10}:{sM+11}], 0
    s_mov_b64 s[{sM+12}:{sM+13}], 0
    v_cmp_lt_u32 vcc, 0, v{vHdr}
    s_cbranch_vccz K2_NOHDR
    v_mov_b32 v{vT0}, {MAXC}
    ds_max_u32 v{vT0}, v{vHdr}
    """)
    for i in range(4, 7):
        a(f"v_cmp_lt_u32 s[{sSave}:{sSave+1}], {i-4}, v{vHdr}")
        decode(vHdr + (i-3), i, f"s[{sSave}:{sSave+1}]")
    a(f"""
    K2_NOHDR:
    s_waitcnt lgkmcnt(0)
    s_barrier
    """)
    st.stamp(a)
    a(f"""
    ds_read_b32 v{vPc}, v{vL4} offset:{HIST}
    v_mov_b32 v{vT3}, {MAXC}
    ds_read_b32 v{vT3}, v{vT3}
    s_waitcnt lgkmcnt(0)
    v_add_u32 v{vPc}, 3, v{vPc}
    v_and_b32 v{vPc}, -4, v{vPc}
    v_mov_b32 v{vStart}, v{vPc}
    v_readfirstlane_b32 s3, v{vT3}
    s_nop 0
    """)
    scan64(a, vStart, None)
    a(f"""
    s_nop 0
    v_readlane_b32 s{sCnt}, v{vStart}, 63
    v_sub_u32 v{vStart}, v{vStart}, v{vPc}
    """)
    for i in range(4):
        a(f"ds_bpermute_b32 v{vE+i}, v{vN4+i}, v{vStart}")
    a(f"""
    s_cmp_eq_u32 s{sR}, 0
    s_cbranch_scc0 K2_NRDONE
    s_min_u32 s3, s3, {CH}
    s_max_u32 s3, s3, 3
    s_add_u32 s3, s3, 12
    s_lshr_b32 s3, s3, 4
    s_add_u32 s{sNR}, s3, 1
    K2_NRDONE:
    """)
    def scatter(i):
        m = sM + 2*i
        a(f"""
        v_add_u32 v{vE+i}, v{vE+i}, v{vRk+i}
        v_and_b32 v{vT0}, 3, v{vRk+i}
        v_cmp_eq_u32 vcc, 0, v{vT0}
        v_lshlrev_b32 v{vT2}, 2, v{vE+i}
        v_lshlrev_b32 v{vT3}, 6, v{vN4+i}
        s_mov_b64 exec, s[{m}:{m+1}]
        ds_write_b32 v{vT2}, v{vSo+i} offset:{LIST}
        s_and_b64 exec, exec, vcc
        ds_write_b32 v{vE+i}, v{vT3} offset:{UNODE}
        s_mov_b64 exec, -1
        """)
    a("s_waitcnt lgkmcnt(0)")
    for i in range(4):
        scatter(i)
    a(f"""
    s_or_b64 s[{sSave}:{sSave+1}], s[{sM+8}:{sM+9}], s[{sM+10}:{sM+11}]
    s_or_b64 s[{sSave}:{sSave+1}], s[{sSave}:{sSave+1}], s[{sM+12}:{sM+13}]
    s_cbranch_scc0 K2_SC_DONE
    """)
    for i in range(4, 7):
        a(f"ds_bpermute_b32 v{vE+i}, v{vN4+i}, v{vStart}")
    a("s_waitcnt lgkmcnt(0)")
    for i in range(4, 7):
        scatter(i)
    a("K2_SC_DONE:")
    st.stamp(a)
    a(f"""
    s_cmp_eq_u32 s{sR}, 0
    s_cbranch_scc0 K2_NOWV
    v_lshrrev_b32 v{vT0}, 4, v0
    v_bfe_u32 v{vT1}, v{vT0}, 2, 1
    v_lshlrev_b32 v{vT1}, 6, v{vT1}
    v_lshrrev_b32 v{vT2}, 3, v{vT0}
    v_lshl_add_u32 v{vT1}, v{vT2}, 2, v{vT1}
    v_and_b32 v{vT0}, 3, v{vT0}
    v_add_u32 v{vT0}, v{vT0}, v{vT1}
    v_mul_u32_u24 v{vT0}, {WSTRIDE}, v{vT0}
    v_add_u32 v{vT0}, v{vT0}, v{vC16}
    v_add_u32 v{vT0}, {WV}, v{vT0}
    s_waitcnt vmcnt(0)
    ds_write_b128 v{vT0}, {vr(vWvl,4)}
    ds_write_b128 v{vT0}, {vr(vWvl+4,4)} offset:{32*WSTRIDE}
    K2_NOWV:
    s_waitcnt vmcnt(0) lgkmcnt(0)
    s_barrier
    """)
    st.stamp(a)
    a(f"""
    s_add_u32 s3, s{sCnt}, 31
    s_lshr_b32 s3, s3, 5
    s_lshr_b32 s{sQ}, s3, 4
    s_and_b32 s{sRem}, s3, 15
    s_cmp_lt_u32 s{sWave}, s{sRem}
    s_cselect_b32 s{sNH}, 1, 0
    s_add_u32 s{sHB}, s{sQ}, s{sNH}
    s_min_u32 s3, s{sRem}, s{sWave}
    s_mul_i32 s{sP}, s{sQ}, s{sWave}
    s_add_u32 s{sP}, s{sP}, s3
    s_cmp_eq_u32 s{sHB}, 0
    s_cbranch_scc1 K2_SIGMA
    v_lshrrev_b32 v{vT0}, 4, v{vLane}
    s_lshl_b32 s3, s{sHB}, 1
    v_mul_u32_u24 v{vT0}, s3, v{vT0}
    s_lshl_b32 s3, s{sP}, 3
    v_add_u32 v{vT0}, s3, v{vT0}
    v_lshlrev_b32 v{vLA}, 4, v{vT0}
    v_add_u32 v{vLA}, {LIST}, v{vLA}
    v_lshlrev_b32 v{vUA}, 2, v{vT0}
    v_add_u32 v{vUA}, {UNODE}, v{vUA}
    ds_read_b128 {vr(vE,4)}, v{vLA}
    ds_read_b128 {vr(vE+4,4)}, v{vLA} offset:16
    ds_read_b64 {vr(vQC,2)}, v{vUA}
    """)
    for i in range(8):
        a(f"v_mov_b32 v{vAcc+i}, 0")
    a("s_waitcnt lgkmcnt(0)")
    for u in range(8):
        a(f"v_add_u32 v{vE+u}, v{vE+u}, v{vC16}")
        a(f"buffer_load_dwordx4 {vr(vX+4*u,4)}, v{vE+u}, s[{sX}:{sX+3}], 0 offen")
    a(f"""
    v_add_u32 v{vT0}, v{vQC}, v{vQB}
    v_add_u32 v{vT1}, v{vQC+1}, v{vQB}
    ds_read_b128 {vr(vQ,4)}, v{vT0}
    ds_read_b128 {vr(vQ+4,4)}, v{vT1}
    v_mov_b32 v{vPrev}, v{vQC}
    K2_SIGMA:
    """)
    a(f"""
    s_add_u32 s3, s{sQ}, 1
    s_lshl_b32 s3, s3, 1
    v_cvt_f32_u32 v{vT0}, s3
    s_mul_i32 s3, s3, s{sRem}
    s_lshl_b32 s{sP}, s3, 2
    s_lshl_b32 s3, s{sQ}, 1
    v_cvt_f32_u32 v{vT1}, s3
    v_rcp_f32 v{vT0}, v{vT0}
    v_rcp_f32 v{vT1}, v{vT1}
    s_lshl_b32 s3, s{sRem}, 2
    """)
    for (dst, last) in ((vSf, False), (vSl, True)):
        if not last:
            a(f"v_lshrrev_b32 v{vT2}, 2, v{vStart}")
        else:
            a(f"""
            v_add_u32 v{vT2}, v{vStart}, v{vPc}
            v_lshrrev_b32 v{vT2}, 2, v{vT2}
            v_add_u32 v{vT2}, -1, v{vT2}
            """)
        a(f"""
        v_cmp_gt_u32 vcc, s{sP}, v{vT2}
        v_cvt_f32_u32 v{vT3}, v{vT2}
        v_add_f32 v{vT3}, 0.5, v{vT3}
        v_mul_f32 v{vT3}, v{vT3}, v{vT0}
        v_cvt_u32_f32 v{vT3}, v{vT3}
        v_subrev_u32 v{vT2}, s{sP}, v{vT2}
        v_cvt_f32_u32 v{vT2}, v{vT2}
        v_add_f32 v{vT2}, 0.5, v{vT2}
        v_mul_f32 v{vT2}, v{vT2}, v{vT1}
        v_cvt_u32_f32 v{vT2}, v{vT2}
        v_add_u32 v{vT2}, s3, v{vT2}
        v_cndmask_b32_e64 v{dst}, v{vT2}, v{vT3}, vcc
        """)
    a(f"""
    s_cmp_eq_u32 s{sHB}, 0
    s_cbranch_scc1 K2_MAIN_DONE
    """)
    flush_id = [0]
    def flush(prev, masked):
        fid = flush_id[0]; flush_id[0] += 1
        if masked is not None:
            a(f"""
            v_cmp_ne_u32 vcc, v{masked}, v{prev}
            s_cbranch_vccz K2_FL{fid}
            s_mov_b64 exec, vcc
            """)
        a(f"""
        v_lshl_add_u32 v{vT0}, v{prev}, 1, v{vPB}
        ds_write_b128 v{vT0}, {vr(vAcc,4)}
        ds_write_b128 v{vT0}, {vr(vAcc+4,4)} offset:256
        """)
        if masked is not None:
            for i in range(8):
                a(f"v_mov_b32 v{vAcc+i}, 0")
            a(f"""
            s_mov_b64 exec, -1
            K2_FL{fid}:
            """)
    def body(pref):
        a("s_waitcnt lgkmcnt(0)")
        if pref:
            a(f"""
            ds_read_b128 {vr(vE,4)}, v{vLA} offset:32
            ds_read_b128 {vr(vE+4,4)}, v{vLA} offset:48
            ds_read_b64 {vr(vQN,2)}, v{vUA} offset:8
            """)
        for half in range(2):
            a(f"s_waitcnt vmcnt({4 if half == 0 else 0})")
            for r in range(4):
                for u in range(4*half, 4*half+4):
                    if r == 0:
                        a(f"v_dot2_f32_bf16 v{vP+u}, v{vX+4*u}, v{vQ+4*half}, 0")
                    else:
                        a(f"v_dot2c_f32_bf16 v{vP+u}, v{vX+4*u+r}, v{vQ+4*half+r}")
        if pref:
            a("s_waitcnt lgkmcnt(0)")
            a(f"v_add_u32 v{vT0}, v{vQN}, v{vQB}")
            a(f"v_add_u32 v{vT1}, v{vQN+1}, v{vQB}")
            for u in range(8):
                a(f"v_add_u32 v{vE+u}, v{vE+u}, v{vC16}")
            a(f"ds_read_b128 {vr(vQ,4)}, v{vT0}")
            a(f"ds_read_b128 {vr(vQ+4,4)}, v{vT1}")
        else:
            a("s_nop 2")
        for j in range(4):
            a(f"v_add_f32_dpp v{vP+j}, v{vP+j}, v{vP+j} row_mirror row_mask:0xf bank_mask:0x3")
        for j in range(4):
            a(f"v_add_f32_dpp v{vP+j}, v{vP+j+4}, v{vP+j+4} row_mirror row_mask:0xf bank_mask:0xc")
        for j in range(2):
            a(f"v_add_f32_dpp v{vP+j}, v{vP+j}, v{vP+j} row_half_mirror row_mask:0xf bank_mask:0x5")
        a("s_nop 0")
        for j in range(2):
            a(f"v_add_f32_dpp v{vP+j}, v{vP+j+2}, v{vP+j+2} row_half_mirror row_mask:0xf bank_mask:0xa")
        a(f"""
        s_nop 0
        v_add_f32_dpp v{vP+2}, v{vP}, v{vP} quad_perm:[1,0,3,2] row_mask:0xf bank_mask:0xf
        v_add_f32_dpp v{vP+3}, v{vP+1}, v{vP+1} quad_perm:[1,0,3,2] row_mask:0xf bank_mask:0xf
        s_nop 0
        v_cndmask_b32_e64 v{vP}, v{vP+2}, v{vP+3}, s[{sOdd}:{sOdd+1}]
        s_nop 1
        v_add_f32_dpp v{vP}, v{vP}, v{vP} quad_perm:[2,3,0,1] row_mask:0xf bank_mask:0xf
        v_cvt_pk_bf16_f32 v{vP}, v{vP}, v{vP}
        v_and_b32 v{vP}, v{vHiM}, v{vP}
        v_mul_f32 v{vP}, 0x3db504f3, v{vP}
        v_cvt_pk_bf16_f32 v{vP}, v{vP}, v{vP}
        v_and_b32 v{vP}, v{vHiM}, v{vP}
        v_mul_f32 v{vP}, 0xbfb8aa3b, v{vP}
        v_exp_f32 v{vP}, v{vP}
        s_nop 0
        v_add_f32 v{vP}, 1.0, v{vP}
        v_rcp_f32 v{vP}, v{vP}
        s_nop 0
        v_cvt_pk_bf16_f32 v{vALo}, v{vP}, 0
        v_cvt_pk_bf16_f32 v{vAHi}, 0, v{vP}
        """)
        for half in range(2):
            if half == 0:
                flush(vPrev, vQC)
                a("s_nop 1")
            else:
                a("s_nop 2")
                flush(vQC, vQC+1)
            for u in range(4*half, 4*half+4):
                k = 4*(u >> 1) + (u & 1)
                for r in range(4):
                    a(f"v_dot2c_f32_bf16_dpp v{vAcc+2*r}, v{vALo}, v{vX+4*u+r} row_newbcast:{k} row_mask:0xf bank_mask:0xf")
                    a(f"v_dot2c_f32_bf16_dpp v{vAcc+2*r+1}, v{vAHi}, v{vX+4*u+r} row_newbcast:{k} row_mask:0xf bank_mask:0xf")
                if pref:
                    a(f"buffer_load_dwordx4 {vr(vX+4*u,4)}, v{vE+u}, s[{sX}:{sX+3}], 0 offen")
        a(f"v_mov_b32 v{vPrev}, v{vQC+1}")
        if pref:
            a(f"""
            v_mov_b32 v{vQC}, v{vQN}
            v_mov_b32 v{vQC+1}, v{vQN+1}
            v_add_u32 v{vLA}, 32, v{vLA}
            v_add_u32 v{vUA}, 8, v{vUA}
            """)
    a(f"""
    s_cmp_eq_u32 s{sHB}, 1
    s_cbranch_scc1 K2_LAST
    K2_LOOP:
    """)
    body(True)
    a(f"""
    s_sub_u32 s{sHB}, s{sHB}, 1
    s_cmp_gt_u32 s{sHB}, 1
    s_cbranch_scc1 K2_LOOP
    K2_LAST:
    """)
    body(False)
    a("s_nop 2")
    flush(vPrev, None)
    a(f"""
    K2_MAIN_DONE:
    """)
    st.stamp(a)
    a(f"""
    s_waitcnt lgkmcnt(0)
    s_barrier
    """)
    st.stamp(a)
    sN, sS0, sS1, sPcn = 59, 60, 61, 62
    vRd = vX
    vL8 = vT3
    a(f"v_lshlrev_b32 v{vL8}, 3, v{vLane}")
    def node_scalars(k):
        a(f"""
        s_add_u32 s{sN}, s{sWave}, {16*k}
        v_readlane_b32 s{sS0}, v{vSf}, s{sN}
        v_readlane_b32 s{sS1}, v{vSl}, s{sN}
        v_readlane_b32 s{sPcn}, v{vPc}, s{sN}
        """)
    def piece_reads(k, dstbase):
        for j in range(4):
            a(f"""
            s_add_u32 s3, s{sS0}, {j}
            s_cmp_le_u32 s3, s{sS1}
            s_cselect_b32 s{sP}, 1, 0
            s_cmp_lg_u32 s{sPcn}, 0
            s_cselect_b32 s{sP}, s{sP}, 0
            s_add_u32 s3, s3, s{sN}
            s_lshl_b32 s3, s3, 9
            s_add_u32 s3, s3, {PIECE}
            s_cmp_lg_u32 s{sP}, 0
            s_cselect_b32 s3, s3, {ZROW}
            v_add_u32 v{vT0}, s3, v{vL8}
            ds_read_b64 {vr(dstbase+2*j,2)}, v{vT0}
            """)
    for k in range(4):
        if k == 3:
            a(f"""
            s_cmp_lg_u32 s{sWave}, 0
            s_cbranch_scc1 K2_RD_DONE
            """)
        node_scalars(k)
        piece_reads(k, vRd + 8*k)
    a("K2_RD_DONE:")
    a("s_waitcnt lgkmcnt(0)")
    for k in range(4):
        if k == 3:
            a(f"""
            s_cmp_lg_u32 s{sWave}, 0
            s_cbranch_scc1 K2_AD_DONE
            """)
        for j in range(4):
            a(f"v_add_f32 v{vTot+2*k}, v{vTot+2*k}, v{vRd+8*k+2*j}")
            a(f"v_add_f32 v{vTot+2*k+1}, v{vTot+2*k+1}, v{vRd+8*k+2*j+1}")
    a("K2_AD_DONE:")
    for k in range(4):
        if k == 3:
            a(f"""
            s_cmp_lg_u32 s{sWave}, 0
            s_cbranch_scc1 K2_X_DONE
            """)
        node_scalars(k)
        a(f"""
        K2_XL{k}:
        s_add_u32 s{sS0}, s{sS0}, 4
        s_cmp_gt_u32 s{sS0}, s{sS1}
        s_cbranch_scc1 K2_XE{k}
        s_cmp_eq_u32 s{sPcn}, 0
        s_cbranch_scc1 K2_XE{k}
        """)
        piece_reads(k, vRd)
        a("s_waitcnt lgkmcnt(0)")
        for j in range(4):
            a(f"v_add_f32 v{vTot+2*k}, v{vTot+2*k}, v{vRd+2*j}")
            a(f"v_add_f32 v{vTot+2*k+1}, v{vTot+2*k+1}, v{vRd+2*j+1}")
        a(f"""
        s_branch K2_XL{k}
        K2_XE{k}:
        """)
    a(f"""
    K2_X_DONE:
    s_add_u32 s{sR}, s{sR}, 1
    s_cmp_ge_u32 s{sR}, s{sNR}
    s_cbranch_scc1 K2_EPI
    s_barrier
    """)
    a(f"""
    v_mov_b32 v{vCand}, -1
    v_mov_b32 v{vCand+1}, -1
    v_mov_b32 v{vCand+2}, -1
    v_mov_b32 v{vCand+3}, -1
    v_mov_b32 v{vHdr}, 0
    v_cmp_gt_u32 vcc, {C*4}, v0
    s_and_saveexec_b64 s[{sSave}:{sSave+1}], vcc
    s_cbranch_execz K2_R1
    v_lshrrev_b32 v{vT0}, 2, v0
    v_lshlrev_b32 v{vT0}, 13, v{vT0}
    v_add_u32 v{vT0}, {WS_OVF}, v{vT0}
    buffer_load_dword v{vT3}, v{vT0}, s[{sWS}:{sWS+3}], 0 offen
    s_lshl_b32 s3, s{sR}, 4
    s_sub_u32 s3, s3, 13
    v_and_b32 v{vT1}, 3, v0
    v_lshl_add_u32 v{vT1}, v{vT1}, 2, s3
    v_lshl_add_u32 v{vT0}, v{vT1}, 2, v{vT0}
    buffer_load_dwordx4 {vr(vSo,4)}, v{vT0}, s[{sWS}:{sWS+3}], 0 offen offset:4
    s_waitcnt vmcnt(0)
    """)
    for i in range(4):
        a(f"""
        v_add_u32 v{vT2}, {i}, v{vT1}
        v_cmp_lt_u32 vcc, v{vT2}, v{vT3}
        s_nop 1
        v_cndmask_b32_e64 v{vCand+i}, v{vCand+i}, v{vSo+i}, vcc
        """)
    a(f"""
    K2_R1:
    s_mov_b64 exec, s[{sSave}:{sSave+1}]
    s_branch K2_ROUND
    K2_EPI:
    """)
    st.stamp(a)
    vAcc16 = 16
    vA8 = 32
    vB8 = 64
    vWa, vBa, vRow = 8, 9, 10
    a(f"""
    s_mul_i32 s3, s{sWave}, {ABSTR}
    s_add_u32 s3, s3, {AGGB}
    v_add_u32 v11, s3, v{vL4}
    """)
    for k in range(4):
        if k == 3:
            a(f"""
            s_cmp_lg_u32 s{sWave}, 0
            s_cbranch_scc1 K2_WB_DONE
            """)
        a(f"v_cvt_pk_bf16_f32 v12, v{vTot+2*k}, v{vTot+2*k+1}")
        a(f"ds_write_b32 v11, v12 offset:{16*k*ABSTR}")
    a(f"""
    K2_WB_DONE:
    s_and_b32 s{sP}, s{sWave}, 3
    s_lshr_b32 s{sNH}, s{sWave}, 2
    s_cmp_ge_u32 s{sWave}, 8
    s_cbranch_scc1 K2_EB
    """)
    tile_a_addr(a, vWa, vLane, 11, 12, sP, WV)
    for ks in range(8):
        if ks == 4: a("s_waitcnt lgkmcnt(4)")
        a(f"ds_read_b64_tr_b16 {vr(vA8+4*ks,2)}, v{vWa} offset:{ks*16*WSTRIDE}")
        a(f"ds_read_b64_tr_b16 {vr(vA8+4*ks+2,2)}, v{vWa} offset:{ks*16*WSTRIDE + 4*WSTRIDE}")
    a(f"""
    v_and_b32 v{vRow}, 31, v{vLane}
    s_lshl_b32 s3, s{sNH}, 5
    v_add_u32 v{vRow}, s3, v{vRow}
    v_mul_u32_u24 v{vBa}, {ABSTR}, v{vRow}
    v_lshrrev_b32 v11, 5, v{vLane}
    v_lshl_add_u32 v{vBa}, v11, 4, v{vBa}
    K2_EB:
    s_waitcnt lgkmcnt(0)
    s_barrier
    s_cmp_ge_u32 s{sWave}, 8
    s_cbranch_scc1 K2_FIN
    """)
    vB8 = 64
    for ks in range(8):
        a(f"ds_read_b128 {vr(vB8+4*ks,4)}, v{vBa} offset:{AGGB + 32*ks}")
    for ks in range(8):
        a(f"s_waitcnt lgkmcnt({7-ks})")
        c = "0" if ks == 0 else vr(vAcc16,16)
        a(f"v_mfma_f32_32x32x16_bf16 {vr(vAcc16,16)}, {vr(vA8+4*ks,4)}, {vr(vB8+4*ks,4)}, {c}")
    a(f"""
    s_mul_i32 s3, s{sBeta}, {T*256}
    s_lshl_b32 s{sCnt}, s{sP}, 6
    s_add_u32 s3, s3, s{sCnt}
    v_lshlrev_b32 v12, 8, v{vRow}
    v_lshl_add_u32 v12, v11, 5, v12
    v_add_u32 v12, s3, v12
    v_cmp_gt_u32 vcc, {T}, v{vRow}
    s_nop 7
    s_nop 3
    """)
    for i in range(8):
        a(f"v_cvt_pk_bf16_f32 v{vA8+i}, v{vAcc16+2*i}, v{vAcc16+2*i+1}")
    a(f"""
    s_and_saveexec_b64 s[{sSave}:{sSave+1}], vcc
    s_cbranch_execz K2_ST_DONE
    buffer_store_dwordx4 {vr(vA8,4)}, v12, s[{sOUT}:{sOUT+3}], 0 offen
    buffer_store_dwordx4 {vr(vA8+4,4)}, v12, s[{sOUT}:{sOUT+3}], 0 offen offset:16
    K2_ST_DONE:
    s_mov_b64 exec, s[{sSave}:{sSave+1}]
    K2_FIN:
    """)
    st.stamp(a)
    if opt.stamps:
        a("s_waitcnt vmcnt(0)")
        st.stamp(a)
    st.flush(a, sWS, 11, sWave)
    a("""
    K2_END:
    s_endpgm
    """)
    return a.text(), LDS, 108

def kd(name, vgpr, sgpr=102):
    return f""".amdhsa_kernel {name}
  .amdhsa_next_free_vgpr {vgpr}
  .amdhsa_next_free_sgpr {sgpr}
  .amdhsa_accum_offset {(vgpr + 3)//4*4}
  .amdhsa_group_segment_fixed_size 0
  .amdhsa_kernarg_size 64
  .amdhsa_user_sgpr_count 2
  .amdhsa_user_sgpr_kernarg_segment_ptr 1
  .amdhsa_system_sgpr_workgroup_id_x 1
.end_amdhsa_kernel
"""

HEADER = """; Kernarg layout for this problem (64 bytes, ptrs only, base s[0:1]):
"""

def build(opt):
    k1, lds1, v1 = gen_k1(opt)
    k2, lds2, v2 = gen_k2(opt)
    lds1 = max(lds1, 83968)
    n1, n2 = NAME + "_k1_kernel", NAME + "_k2_kernel"
    out = HEADER
    for ch in opt.seq:
        if ch == "1": out += f"; @launch kernel={n1} grid=({NB},1,1) block=(512,1,1) lds={lds1}\n"
        if ch == "2": out += f"; @launch kernel={n2} grid=({NB},1,1) block=(1024,1,1) lds={lds2}\n"
    for i in range(opt.empty):
        out += f"; @launch kernel={NAME}_empty_kernel grid=({NB},1,1) block=(64,1,1) lds=0\n"
    out += '.amdgcn_target "amdgcn-amd-amdhsa--gfx950"\n.text\n'
    for n, k in ((n1, k1), (n2, k2)):
        out += f".globl {n}\n.p2align 8\n.type {n},@function\n" + k
    if opt.empty:
        n3 = NAME + "_empty_kernel"
        out += f".globl {n3}\n.p2align 8\n.type {n3},@function\n{n3}:\n  s_endpgm\n"
    out += '.section .rodata,"a"\n.p2align 6\n'
    out += kd(n1, v1) + ".p2align 6\n" + kd(n2, v2)
    if opt.empty:
        out += ".p2align 6\n" + kd(NAME + "_empty_kernel", 8, 16)
    return out

def parse(argv=None):
    p = argparse.ArgumentParser()
    p.add_argument("-o", default="cdna_kernels/" + NAME + ".s")
    p.add_argument("--stamps", action="store_true")
    p.add_argument("--prefetch", type=int, default=0)
    p.add_argument("--empty", type=int, default=0)
    p.add_argument("--seq", default="12")
    p.add_argument("--cellst", default="")
    p.add_argument("--qst", default="")
    return p.parse_args(argv)

if __name__ == "__main__":
    o = parse()
    open(o.o, "w").write(build(o))
    print("wrote", o.o)
```

```python
import sys, argparse

NAME = "gather_scatter__kernel_systems_refs_featgraph__graph"
N, E, D = 12500, 400000, 128
T = 49
NB = 256
CH = 1600
C = 250
S = 16
XBYTES = N * 256
EBYTES = E * 4
WS_CELLS = 0
CELLROW = C * S * 4
WS_OVF = 0x400000
OVF_STRIDE = 8192
WS_Q = 0x600000
WS_USED = WS_Q + NB * T * 256 + 4096
WS_STAMP = 0x1000000
OOB = 0x40000000
DUMMY = 49

class A:
    def __init__(self):
        self.l = []
    def __call__(self, s):
        for line in s.strip("\n").split("\n"):
            line = line.strip()
            if not line:
                continue
            if line.endswith(":") and " " not in line:
                self.l.append(line)
            else:
                self.l.append("  " + line)
    def text(self):
        return "\n".join(self.l) + "\n"

def srd(a, d, base, size):
    a(f"""
    s_mov_b32 s{d}, s{base}
    s_mov_b32 s{d+1}, s{base+1}
    s_mov_b32 s{d+2}, {size}
    s_mov_b32 s{d+3}, 0x00020000
    """)

def vr(b, n):
    return f"v[{b}:{b+n-1}]"

class Stamps:
    def __init__(self, on, sbase, area):
        self.on, self.sbase, self.area, self.n = on, sbase, area, 0
    def stamp(self, a, cyc=False):
        if not self.on: return
        r = self.sbase + 2 * self.n
        a(f"{'s_memtime' if cyc else 's_memrealtime'} s[{r}:{r+1}]")
        self.n += 1
    def flush(self, a, srd_lo, vtmp, wave_sgpr):
        if not self.on: return
        a(f"""
        s_waitcnt lgkmcnt(0)
        s_lshl_b32 s3, s2, 4
        s_add_u32 s3, s3, s{wave_sgpr}
        s_lshl_b32 s3, s3, 6
        s_add_u32 s3, s3, {self.area}
        s_mov_b64 exec, 1
        """)
        for i in range(self.n):
            a(f"v_mov_b32 v{vtmp}, s{self.sbase + 2*i}")
            a(f"v_mov_b32 v{vtmp+1}, s3")
            a(f"buffer_store_dword v{vtmp}, v{vtmp+1}, s[{srd_lo}:{srd_lo+3}], 0 offen offset:{4*i}")
        a("s_waitcnt vmcnt(0)")

WSTRIDE = 320

def tile_a_addr(a, vdst, vlane, vtmp, vtmp2, sP, wbase):
    a(f"""
    v_lshrrev_b32 v{vtmp}, 5, v{vlane}
    v_lshlrev_b32 v{vtmp}, 3, v{vtmp}
    v_bfe_u32 v{vtmp2}, v{vlane}, 2, 2
    v_add_u32 v{vtmp}, v{vtmp}, v{vtmp2}
    v_mul_u32_u24 v{vdst}, {WSTRIDE}, v{vtmp}
    v_bfe_u32 v{vtmp}, v{vlane}, 4, 1
    v_lshlrev_b32 v{vtmp}, 2, v{vtmp}
    v_and_b32 v{vtmp2}, 3, v{vlane}
    v_add_u32 v{vtmp}, v{vtmp}, v{vtmp2}
    v_and_b32 v{vtmp2}, 1, v{vtmp}
    v_lshlrev_b32 v{vtmp2}, 2, v{vtmp2}
    v_lshrrev_b32 v{vtmp}, 1, v{vtmp}
    v_add_u32 v{vtmp}, v{vtmp}, v{vtmp2}
    v_lshlrev_b32 v{vtmp}, 3, v{vtmp}
    v_add_u32 v{vdst}, v{vdst}, v{vtmp}
    s_lshl_b32 s3, s{sP}, 6
    s_add_u32 s3, s3, {wbase}
    v_add_u32 v{vdst}, s3, v{vdst}
    """)

def gen_k1(opt):
    a = A()
    HIST, OVC, JUNK, STAGE = 0, 1024, 1040, 2048
    XT = STAGE + 16384
    XSTR = 272
    WQ = XT + 64 * XSTR
    LDS = WQ + 128 * WSTRIDE
    st = Stamps(opt.stamps, 60, WS_STAMP)
    sX, sSRC, sDST, sWQ, sWS = 16, 20, 24, 28, 32
    sWave, sP, sNH = 36, 37, 38
    vLane, vW = 1, 2
    vDst, vSrc = 4, 8
    vXT = 12
    vWl = 20
    vEnt, vAdr, vRank = 36, 40, 44
    vT0, vT1, vT2, vT3 = 48, 49, 50, 51
    vOne, vNeg, vZero = 52, 56, 60
    vXa, vWa = 61, 62
    vAcc = 64
    vAf, vBf = 80, 96
    a(f"""
    {NAME}_k1_kernel:
    s_cmp_ge_u32 s2, {NB}
    s_cbranch_scc1 K1_END
    s_load_dwordx4 s[4:7], s[0:1], 0
    s_load_dwordx4 s[8:11], s[0:1], 16
    s_load_dwordx2 s[12:13], s[0:1], 56
    """)
    st.stamp(a)
    a(f"""
    v_and_b32 v{vLane}, 63, v0
    v_lshrrev_b32 v{vW}, 6, v0
    v_mov_b32 v{vOne}, 1
    v_readfirstlane_b32 s{sWave}, v{vW}
    v_mov_b32 v{vNeg}, -1
    v_mov_b32 v{vNeg+1}, -1
    v_mov_b32 v{vNeg+2}, -1
    v_mov_b32 v{vNeg+3}, -1
    v_mov_b32 v{vZero}, 0
    s_and_b32 s{sP}, s{sWave}, 3
    s_lshr_b32 s{sNH}, s{sWave}, 2
    s_waitcnt lgkmcnt(0)
    """)
    srd(a, sX, 4, XBYTES); srd(a, sSRC, 6, EBYTES); srd(a, sDST, 8, EBYTES)
    srd(a, sWQ, 10, 32768); srd(a, sWS, 12, WS_USED if not opt.stamps else 0x2000000)
    a(f"""
    s_cmp_ge_u32 s2, {C}
    s_cbranch_scc1 K1_NOEDGE0
    v_cmp_gt_u32 vcc, {CH//4}, v0
    s_and_saveexec_b64 s[40:41], vcc
    s_cbranch_execz K1_EDGE0_DONE
    s_mul_i32 s14, s2, {CH*4}
    v_lshl_add_u32 v{vT0}, v0, 4, s14
    buffer_load_dwordx4 {vr(vDst,4)}, v{vT0}, s[{sDST}:{sDST+3}], 0 offen
    buffer_load_dwordx4 {vr(vSrc,4)}, v{vT0}, s[{sSRC}:{sSRC+3}], 0 offen
    K1_EDGE0_DONE:
    s_mov_b64 exec, s[40:41]
    K1_NOEDGE0:
    s_mul_i32 s14, s2, {T*256}
    v_lshl_add_u32 v{vT0}, v0, 4, s14
    v_add_u32 v{vT1}, 8192, v{vT0}
    v_lshlrev_b32 v{vT2}, 4, v0
    buffer_load_dwordx4 {vr(vXT,4)}, v{vT0}, s[{sX}:{sX+3}], 0 offen
    buffer_load_dwordx4 {vr(vXT+4,4)}, v{vT1}, s[{sX}:{sX+3}], 0 offen
    """)
    for i in range(4):
        a(f"s_mov_b32 s14, {8192*i}")
        a(f"buffer_load_dwordx4 {vr(vWl+4*i,4)}, v{vT2}, s[{sWQ}:{sWQ+3}], s14 offen")
    if opt.prefetch:
        npf = opt.prefetch
        per = 100352
        a(f"""
        s_lshr_b32 s14, s2, 3
        s_mul_i32 s14, s14, {per}
        v_lshlrev_b32 v{vT3}, 7, v0
        v_add_u32 v{vT3}, s14, v{vT3}
        """)
        a(f"""
        buffer_load_dword v112, v{vT3}, s[{sX}:{sX+3}], 0 offen
        v_add_u32 v{vT3}, 65536, v{vT3}
        v_mov_b32 v{vT2}, {OOB}
        v_cmp_gt_u32 vcc, {(per - 65536)//128}, v0
        s_nop 1
        v_cndmask_b32_e64 v{vT3}, v{vT2}, v{vT3}, vcc
        buffer_load_dword v113, v{vT3}, s[{sX}:{sX+3}], 0 offen
        """)
    a(f"""
    v_lshlrev_b32 v{vT0}, 4, v0
    ds_write_b128 v{vT0}, {vr(vNeg,4)} offset:{STAGE}
    ds_write_b128 v{vT0}, {vr(vNeg,4)} offset:{STAGE+8192}
    v_cmp_ge_u32 vcc, 256, v0
    s_and_saveexec_b64 s[40:41], vcc
    v_lshlrev_b32 v{vT1}, 2, v0
    ds_write_b32 v{vT1}, v{vZero} offset:{HIST}
    s_mov_b64 exec, s[40:41]
    s_waitcnt lgkmcnt(0)
    s_barrier
    """)
    st.stamp(a)
    npfl = 2 if opt.prefetch else 0
    a(f"""
    s_cmp_ge_u32 s2, {C}
    s_cbranch_scc1 K1_NOEDGE1
    v_cmp_gt_u32 vcc, {CH//4}, v0
    s_and_saveexec_b64 s[40:41], vcc
    s_cbranch_execz K1_EDGE1_DONE
    s_mov_b32 s15, -{T}
    s_waitcnt vmcnt({6+npfl})
    """)
    st.stamp(a)
    for i in range(4):
        a(f"""
        v_mul_u32_u24 v{vT0}, 21400, v{vDst+i}
        v_lshrrev_b32 v{vT0}, 20, v{vT0}
        v_mad_i32_i24 v{vT1}, v{vT0}, s15, v{vDst+i}
        v_lshl_or_b32 v{vEnt+i}, v{vSrc+i}, 8, v{vT1}
        v_lshl_or_b32 v{vEnt+i}, v{vT0}, 24, v{vEnt+i}
        v_lshlrev_b32 v{vAdr+i}, 2, v{vT0}
        ds_add_rtn_u32 v{vRank+i}, v{vAdr+i}, v{vOne} offset:{HIST}
        """)
    a(f"v_mov_b32 v{vT3}, {JUNK}")
    a("s_waitcnt lgkmcnt(0)")
    for i in range(4):
        a(f"""
        v_cmp_gt_u32 s[{42+2*i}:{43+2*i}], 16, v{vRank+i}
        v_lshlrev_b32 v{vT0}, 4, v{vAdr+i}
        v_lshl_add_u32 v{vT0}, v{vRank+i}, 2, v{vT0}
        v_add_u32 v{vT0}, {STAGE}, v{vT0}
        v_cndmask_b32_e64 v{vT0}, v{vT3}, v{vT0}, s[{42+2*i}:{43+2*i}]
        ds_write_b32 v{vT0}, v{vEnt+i}
        """)
    a(f"""
    s_and_b64 s[50:51], s[42:43], s[44:45]
    s_and_b64 s[52:53], s[46:47], s[48:49]
    s_and_b64 s[50:51], s[50:51], s[52:53]
    s_andn2_b64 s[50:51], exec, s[50:51]
    s_cbranch_scc0 K1_EDGE1_DONE
    s_mov_b64 s[54:55], exec
    s_mul_i32 s14, s2, {OVF_STRIDE}
    s_add_u32 s14, s14, {WS_OVF + 4}
    v_mov_b32 v{vT3}, {OVC}
    """)
    for i in range(4):
        a(f"""
        s_andn2_b64 exec, s[54:55], s[{42+2*i}:{43+2*i}]
        s_cbranch_execz K1_OV_{i}
        ds_add_rtn_u32 v{vT0}, v{vT3}, v{vOne}
        s_waitcnt lgkmcnt(0)
        v_lshl_add_u32 v{vT0}, v{vT0}, 2, s14
        buffer_store_dword v{vEnt+i}, v{vT0}, s[{sWS}:{sWS+3}], 0 offen
        K1_OV_{i}:
        """)
    a(f"""
    K1_EDGE1_DONE:
    s_mov_b64 exec, s[40:41]
    K1_NOEDGE1:
    """)
    a(f"""
    v_lshrrev_b32 v{vT0}, 4, v0
    v_and_b32 v{vT1}, 15, v0
    v_lshlrev_b32 v{vT1}, 4, v{vT1}
    v_mul_u32_u24 v{vT2}, {XSTR}, v{vT0}
    v_add_u32 v{vT2}, v{vT2}, v{vT1}
    v_mul_u32_u24 v{vT3}, {WSTRIDE}, v{vT0}
    v_add_u32 v{vT3}, v{vT3}, v{vT1}
    v_add_u32 v{vT3}, {WQ}, v{vT3}
    s_waitcnt vmcnt({4+npfl})
    ds_write_b128 v{vT2}, {vr(vXT,4)} offset:{XT}
    ds_write_b128 v{vT2}, {vr(vXT+4,4)} offset:{XT + 32*XSTR}
    s_waitcnt vmcnt({npfl})
    """)
    for i in range(4):
        a(f"ds_write_b128 v{vT3}, {vr(vWl+4*i,4)} offset:{32*i*WSTRIDE}")
    a("""
    s_waitcnt lgkmcnt(0)
    s_barrier
    """)
    st.stamp(a)
    a(f"""
    s_cmp_ge_u32 s2, {C}
    s_cbranch_scc1 K1_NOEDGE2
    v_lshlrev_b32 v{vT0}, 4, v0
    ds_read_b128 {vr(vEnt,4)}, v{vT0} offset:{STAGE}
    ds_read_b128 {vr(vAdr,4)}, v{vT0} offset:{STAGE+8192}
    v_mov_b32 v{vT3}, {OVC}
    ds_read_b32 v{vRank}, v{vT3}
    v_lshrrev_b32 v{vT1}, 2, v0
    v_mul_u32_u24 v{vT1}, {CELLROW}, v{vT1}
    v_and_b32 v{vT2}, 3, v0
    v_lshl_add_u32 v{vT1}, v{vT2}, 4, v{vT1}
    s_lshl_b32 s14, s2, 6
    s_add_u32 s15, s14, {128*CELLROW}
    s_waitcnt lgkmcnt(0)
    buffer_store_dwordx4 {vr(vEnt,4)}, v{vT1}, s[{sWS}:{sWS+3}], s14 offen {opt.cellst}
    buffer_store_dwordx4 {vr(vAdr,4)}, v{vT1}, s[{sWS}:{sWS+3}], s15 offen {opt.cellst}
    v_cmp_eq_u32 vcc, 0, v0
    s_and_saveexec_b64 s[40:41], vcc
    s_cbranch_execz K1_HDR_DONE
    s_mul_i32 s14, s2, {OVF_STRIDE}
    s_add_u32 s14, s14, {WS_OVF}
    v_mov_b32 v{vT2}, s14
    buffer_store_dword v{vRank}, v{vT2}, s[{sWS}:{sWS+3}], 0 offen {opt.cellst}
    K1_HDR_DONE:
    s_mov_b64 exec, s[40:41]
    K1_NOEDGE2:
    """)
    st.stamp(a)
    tile_a_addr(a, vWa, vLane, vT0, vT1, sP, WQ)
    a(f"""
    v_and_b32 v{vT0}, 31, v{vLane}
    s_lshl_b32 s14, s{sNH}, 5
    v_add_u32 v{vT0}, s14, v{vT0}
    v_mul_u32_u24 v{vXa}, {XSTR}, v{vT0}
    v_lshrrev_b32 v{vT1}, 5, v{vLane}
    v_lshl_add_u32 v{vXa}, v{vT1}, 4, v{vXa}
    """)
    vA8, vB8 = 80, 4
    for ks in range(8):
        a(f"ds_read_b64_tr_b16 {vr(vA8+4*ks,2)}, v{vWa} offset:{ks*16*WSTRIDE}")
        a(f"ds_read_b64_tr_b16 {vr(vA8+4*ks+2,2)}, v{vWa} offset:{ks*16*WSTRIDE + 4*WSTRIDE}")
        a(f"ds_read_b128 {vr(vB8+4*ks,4)}, v{vXa} offset:{XT + 32*ks}")
        if ks % 4 == 3:
            a("s_waitcnt lgkmcnt(0)")
            for k2 in range(ks-3, ks+1):
                c = "0" if k2 == 0 else vr(vAcc,16)
                a(f"v_mfma_f32_32x32x16_bf16 {vr(vAcc,16)}, {vr(vA8+4*k2,4)}, {vr(vB8+4*k2,4)}, {c}")
    a(f"""
    s_mul_i32 s14, s2, {T*256}
    s_add_u32 s14, s14, {WS_Q}
    s_lshl_b32 s15, s{sP}, 6
    s_add_u32 s14, s14, s15
    v_lshlrev_b32 v{vT2}, 8, v{vT0}
    v_lshl_add_u32 v{vT2}, v{vT1}, 5, v{vT2}
    v_add_u32 v{vT2}, s14, v{vT2}
    v_cmp_gt_u32 vcc, {T}, v{vT0}
    s_nop 7
    s_nop 3
    """)
    for i in range(8):
        a(f"v_cvt_pk_bf16_f32 v{vA8+i}, v{vAcc+2*i}, v{vAcc+2*i+1}")
    a(f"""
    s_and_saveexec_b64 s[40:41], vcc
    s_cbranch_execz K1_Q_DONE
    buffer_store_dwordx4 {vr(vA8,4)}, v{vT2}, s[{sWS}:{sWS+3}], 0 offen {opt.qst}
    buffer_store_dwordx4 {vr(vA8+4,4)}, v{vT2}, s[{sWS}:{sWS+3}], 0 offen offset:16 {opt.qst}
    K1_Q_DONE:
    s_mov_b64 exec, s[40:41]
    """)
    st.stamp(a)
    if opt.stamps:
        a("s_waitcnt vmcnt(0)")
        st.stamp(a)
    st.flush(a, sWS, vT0, sWave)
    a("""
    K1_END:
    s_endpgm
    """)
    return a.text(), LDS, 116

def scan64(a, v, vsave):
    for sh in ("row_shr:1", "row_shr:2", "row_shr:4", "row_shr:8"):
        a(f"v_add_u32_dpp v{v}, v{v}, v{v} {sh} row_mask:0xf bank_mask:0xf bound_ctrl:1")
        a("s_nop 1")
    a(f"v_add_u32_dpp v{v}, v{v}, v{v} row_bcast:15 row_mask:0xa bank_mask:0xf")
    a("s_nop 1")
    a(f"v_add_u32_dpp v{v}, v{v}, v{v} row_bcast:31 row_mask:0xc bank_mask:0xf")

def gen_k2(opt):
    a = A()
    HIST, MAXC, ZROW = 0, 256, 512
    LIST = 1024
    LISTW = 5120
    UNODE = LIST + LISTW * 4
    QS = UNODE + 1280 * 4
    PIECE = QS + 52 * 256
    WV = PIECE + (DUMMY + 64) * 512
    LDS = WV + 128 * WSTRIDE
    AGGB, ABSTR = LIST, 272
    st = Stamps(opt.stamps, 64, WS_STAMP + 0x40000)
    sX, sWV, sOUT, sWS = 12, 16, 20, 24
    sBeta, sWave, sR, sNR = 28, 29, 30, 31
    sOdd = 32
    sBeta24, sHB, sP, sNH = 35, 36, 37, 38
    sM = 40
    sSave = 54
    sCnt, sQ, sRem = 56, 57, 58
    vLane, vC16, vPB, vLA, vUA, vPrev = 1, 2, 3, 4, 5, 6
    vL4 = 7
    vQC, vQN = 8, 10
    vALo, vAHi, vHiM = 12, 13, 14
    vQB = 15
    vT0, vT1, vT2, vT3 = 16, 17, 18, 19
    vAcc = 20
    vP = 28
    vE = 36
    vQ = 44
    vX = 52
    vTot = 84
    vSf, vSl, vPc, vStart = 92, 93, 94, 95
    vWvl = 96
    vZ4 = 104
    vCand = 52
    vHdr = 56
    vSo = 60
    vN4 = 68
    vRk = 76
    a(f"""
    {NAME}_k2_kernel:
    s_cmp_ge_u32 s2, {NB}
    s_cbranch_scc1 K2_END
    s_load_dwordx2 s[6:7], s[0:1], 56
    s_load_dwordx2 s[4:5], s[0:1], 0
    s_load_dwordx4 s[8:11], s[0:1], 32
    """)
    st.stamp(a)
    a(f"""
    v_and_b32 v{vLane}, 63, v0
    v_lshrrev_b32 v{vT0}, 6, v0
    s_and_b32 s{sBeta}, s2, 7
    v_readfirstlane_b32 s{sWave}, v{vT0}
    s_lshl_b32 s{sBeta}, s{sBeta}, 5
    s_lshr_b32 s3, s2, 3
    s_add_u32 s{sBeta}, s{sBeta}, s3
    s_lshl_b32 s{sBeta24}, s{sBeta}, 24
    v_mov_b32 v{vCand}, -1
    v_mov_b32 v{vCand+1}, -1
    v_mov_b32 v{vCand+2}, -1
    v_mov_b32 v{vCand+3}, -1
    v_mov_b32 v{vHdr}, 0
    v_lshlrev_b32 v{vT0}, 4, v0
    v_lshlrev_b32 v{vT1}, 13, v0
    s_mul_i32 s3, s{sBeta}, {CELLROW}
    s_mov_b32 s{sCnt}, {WS_OVF}
    s_waitcnt lgkmcnt(0)
    """)
    srd(a, sWS, 6, WS_USED if not opt.stamps else 0x2000000)
    a(f"""
    v_cmp_gt_u32 vcc, {C*4}, v0
    s_and_saveexec_b64 s[{sSave}:{sSave+1}], vcc
    s_cbranch_execz K2_L0
    buffer_load_dwordx4 {vr(vCand,4)}, v{vT0}, s[{sWS}:{sWS+3}], s3 offen
    K2_L0:
    s_mov_b64 exec, s[{sSave}:{sSave+1}]
    s_cmp_ge_u32 s{sWave}, 4
    s_cbranch_scc1 K2_L1
    v_cmp_gt_u32 vcc, {C}, v0
    s_and_saveexec_b64 s[{sSave}:{sSave+1}], vcc
    buffer_load_dwordx4 {vr(vHdr,4)}, v{vT1}, s[{sWS}:{sWS+3}], s{sCnt} offen
    s_mov_b64 exec, s[{sSave}:{sSave+1}]
    K2_L1:
    """)
    srd(a, sX, 4, XBYTES); srd(a, sWV, 8, 32768); srd(a, sOUT, 10, XBYTES)
    a(f"""
    s_cmp_ge_u32 s{sWave}, 13
    s_cbranch_scc1 K2_L2
    s_mul_i32 s3, s{sBeta}, {T*256}
    s_add_u32 s3, s3, {WS_Q}
    s_lshl_b32 s{sCnt}, s{sWave}, 10
    s_add_u32 s3, s3, s{sCnt}
    s_add_u32 s{sCnt}, s{sCnt}, {QS}
    s_mov_b32 m0, s{sCnt}
    v_lshlrev_b32 v{vT1}, 4, v{vLane}
    buffer_load_dwordx4 v{vT1}, s[{sWS}:{sWS+3}], s3 offen lds
    K2_L2:
    s_mov_b32 s3, 16384
    buffer_load_dwordx4 {vr(vWvl,4)}, v{vT0}, s[{sWV}:{sWV+3}], 0 offen
    buffer_load_dwordx4 {vr(vWvl+4,4)}, v{vT0}, s[{sWV}:{sWV+3}], s3 offen
    s_mov_b32 s{sOdd}, 0xaaaaaaaa
    s_mov_b32 s{sOdd+1}, 0xaaaaaaaa
    s_mov_b32 s{sR}, 0
    v_and_b32 v{vT0}, 15, v{vLane}
    v_lshlrev_b32 v{vC16}, 4, v{vT0}
    v_add_u32 v{vQB}, {QS}, v{vC16}
    v_lshlrev_b32 v{vL4}, 2, v{vLane}
    v_mov_b32 v{vHiM}, 0xffff0000
    v_lshrrev_b32 v{vT0}, 4, v{vLane}
    s_lshl_b32 s3, s{sWave}, 11
    s_add_u32 s3, s3, {PIECE}
    v_lshl_add_u32 v{vPB}, v{vT0}, 9, s3
    v_add_u32 v{vPB}, v{vPB}, v{vC16}
    """)
    for i in range(8):
        a(f"v_mov_b32 v{vTot+i}, 0")
    a(f"""
    K2_ROUND:
    v_mov_b32 v{vZ4}, {OOB}
    v_mov_b32 v{vZ4+1}, {OOB}
    v_mov_b32 v{vZ4+2}, {OOB}
    v_mov_b32 v{vZ4+3}, {OOB}
    v_mov_b32 v{vT1}, {DUMMY*256}
    v_mov_b32 v{vT2}, 0
    v_lshlrev_b32 v{vT0}, 4, v0
    v_lshlrev_b32 v{vT3}, 2, v0
    ds_write_b128 v{vT0}, {vr(vZ4,4)} offset:{LIST}
    ds_write_b32 v{vT3}, v{vT1} offset:{UNODE}
    s_cmp_ge_u32 s{sWave}, 4
    s_cbranch_scc1 K2_I1
    ds_write_b128 v{vT0}, {vr(vZ4,4)} offset:{LIST+16384}
    ds_write_b32 v{vT3}, v{vT1} offset:{UNODE+4096}
    ds_write_b32 v{vT3}, v{vT2} offset:{HIST}
    K2_I1:
    s_waitcnt lgkmcnt(0)
    s_barrier
    """)
    st.stamp(a)
    def decode(word, i, extra_mask=None):
        m = sM + 2*i
        a(f"""
        v_xor_b32 v{vT0}, s{sBeta24}, v{word}
        v_and_b32 v{vT1}, 0xff0000c0, v{vT0}
        v_cmp_eq_u32 s[{m}:{m+1}], 0, v{vT1}
        v_and_b32 v{vSo+i}, 0x00ffff00, v{vT0}
        v_and_b32 v{vN4+i}, 0x3f, v{vT0}
        v_lshlrev_b32 v{vN4+i}, 2, v{vN4+i}
        """)
        if extra_mask:
            a(f"s_and_b64 s[{m}:{m+1}], s[{m}:{m+1}], {extra_mask}")
        a(f"""
        s_mov_b64 exec, s[{m}:{m+1}]
        ds_add_rtn_u32 v{vRk+i}, v{vN4+i}, v{vT3} offset:{HIST}
        s_mov_b64 exec, -1
        """)
    a(f"""
    v_mov_b32 v{vT3}, 1
    s_cmp_eq_u32 s{sR}, 0
    s_cbranch_scc0 K2_WAITR
    s_waitcnt vmcnt(2)
    s_branch K2_WAITD
    K2_WAITR:
    s_waitcnt vmcnt(0)
    K2_WAITD:
    """)
    st.stamp(a)
    for i in range(4):
        decode(vCand+i, i)
    a(f"""
    s_mov_b64 s[{sM+8}:{sM+9}], 0
    s_mov_b64 s[{sM+10}:{sM+11}], 0
    s_mov_b64 s[{sM+12}:{sM+13}], 0
    v_cmp_lt_u32 vcc, 0, v{vHdr}
    s_cbranch_vccz K2_NOHDR
    v_mov_b32 v{vT0}, {MAXC}
    ds_max_u32 v{vT0}, v{vHdr}
    """)
    for i in range(4, 7):
        a(f"v_cmp_lt_u32 s[{sSave}:{sSave+1}], {i-4}, v{vHdr}")
        decode(vHdr + (i-3), i, f"s[{sSave}:{sSave+1}]")
    a(f"""
    K2_NOHDR:
    s_waitcnt lgkmcnt(0)
    s_barrier
    """)
    st.stamp(a)
    a(f"""
    ds_read_b32 v{vPc}, v{vL4} offset:{HIST}
    v_mov_b32 v{vT3}, {MAXC}
    ds_read_b32 v{vT3}, v{vT3}
    s_waitcnt lgkmcnt(0)
    v_add_u32 v{vPc}, 3, v{vPc}
    v_and_b32 v{vPc}, -4, v{vPc}
    v_mov_b32 v{vStart}, v{vPc}
    v_readfirstlane_b32 s3, v{vT3}
    s_nop 0
    """)
    scan64(a, vStart, None)
    a(f"""
    s_nop 0
    v_readlane_b32 s{sCnt}, v{vStart}, 63
    v_sub_u32 v{vStart}, v{vStart}, v{vPc}
    """)
    for i in range(4):
        a(f"ds_bpermute_b32 v{vE+i}, v{vN4+i}, v{vStart}")
    a(f"""
    s_cmp_eq_u32 s{sR}, 0
    s_cbranch_scc0 K2_NRDONE
    s_min_u32 s3, s3, {CH}
    s_max_u32 s3, s3, 3
    s_add_u32 s3, s3, 12
    s_lshr_b32 s3, s3, 4
    s_add_u32 s{sNR}, s3, 1
    K2_NRDONE:
    """)
    def scatter(i):
        m = sM + 2*i
        a(f"""
        v_add_u32 v{vE+i}, v{vE+i}, v{vRk+i}
        v_and_b32 v{vT0}, 3, v{vRk+i}
        v_cmp_eq_u32 vcc, 0, v{vT0}
        v_lshlrev_b32 v{vT2}, 2, v{vE+i}
        v_lshlrev_b32 v{vT3}, 6, v{vN4+i}
        s_mov_b64 exec, s[{m}:{m+1}]
        ds_write_b32 v{vT2}, v{vSo+i} offset:{LIST}
        s_and_b64 exec, exec, vcc
        ds_write_b32 v{vE+i}, v{vT3} offset:{UNODE}
        s_mov_b64 exec, -1
        """)
    a("s_waitcnt lgkmcnt(0)")
    for i in range(4):
        scatter(i)
    a(f"""
    s_or_b64 s[{sSave}:{sSave+1}], s[{sM+8}:{sM+9}], s[{sM+10}:{sM+11}]
    s_or_b64 s[{sSave}:{sSave+1}], s[{sSave}:{sSave+1}], s[{sM+12}:{sM+13}]
    s_cbranch_scc0 K2_SC_DONE
    """)
    for i in range(4, 7):
        a(f"ds_bpermute_b32 v{vE+i}, v{vN4+i}, v{vStart}")
    a("s_waitcnt lgkmcnt(0)")
    for i in range(4, 7):
        scatter(i)
    a("K2_SC_DONE:")
    st.stamp(a)
    a(f"""
    s_cmp_eq_u32 s{sR}, 0
    s_cbranch_scc0 K2_NOWV
    v_lshrrev_b32 v{vT0}, 4, v0
    v_bfe_u32 v{vT1}, v{vT0}, 2, 1
    v_lshlrev_b32 v{vT1}, 6, v{vT1}
    v_lshrrev_b32 v{vT2}, 3, v{vT0}
    v_lshl_add_u32 v{vT1}, v{vT2}, 2, v{vT1}
    v_and_b32 v{vT0}, 3, v{vT0}
    v_add_u32 v{vT0}, v{vT0}, v{vT1}
    v_mul_u32_u24 v{vT0}, {WSTRIDE}, v{vT0}
    v_add_u32 v{vT0}, v{vT0}, v{vC16}
    v_add_u32 v{vT0}, {WV}, v{vT0}
    s_waitcnt vmcnt(0)
    ds_write_b128 v{vT0}, {vr(vWvl,4)}
    ds_write_b128 v{vT0}, {vr(vWvl+4,4)} offset:{32*WSTRIDE}
    K2_NOWV:
    s_waitcnt vmcnt(0) lgkmcnt(0)
    s_barrier
    """)
    st.stamp(a)
    a(f"""
    s_add_u32 s3, s{sCnt}, 31
    s_lshr_b32 s3, s3, 5
    s_lshr_b32 s{sQ}, s3, 4
    s_and_b32 s{sRem}, s3, 15
    s_cmp_lt_u32 s{sWave}, s{sRem}
    s_cselect_b32 s{sNH}, 1, 0
    s_add_u32 s{sHB}, s{sQ}, s{sNH}
    s_min_u32 s3, s{sRem}, s{sWave}
    s_mul_i32 s{sP}, s{sQ}, s{sWave}
    s_add_u32 s{sP}, s{sP}, s3
    s_cmp_eq_u32 s{sHB}, 0
    s_cbranch_scc1 K2_SIGMA
    v_lshrrev_b32 v{vT0}, 4, v{vLane}
    s_lshl_b32 s3, s{sHB}, 1
    v_mul_u32_u24 v{vT0}, s3, v{vT0}
    s_lshl_b32 s3, s{sP}, 3
    v_add_u32 v{vT0}, s3, v{vT0}
    v_lshlrev_b32 v{vLA}, 4, v{vT0}
    v_add_u32 v{vLA}, {LIST}, v{vLA}
    v_lshlrev_b32 v{vUA}, 2, v{vT0}
    v_add_u32 v{vUA}, {UNODE}, v{vUA}
    ds_read_b128 {vr(vE,4)}, v{vLA}
    ds_read_b128 {vr(vE+4,4)}, v{vLA} offset:16
    ds_read_b64 {vr(vQC,2)}, v{vUA}
    """)
    for i in range(8):
        a(f"v_mov_b32 v{vAcc+i}, 0")
    a("s_waitcnt lgkmcnt(0)")
    for u in range(8):
        a(f"v_add_u32 v{vE+u}, v{vE+u}, v{vC16}")
        a(f"buffer_load_dwordx4 {vr(vX+4*u,4)}, v{vE+u}, s[{sX}:{sX+3}], 0 offen")
    a(f"""
    v_add_u32 v{vT0}, v{vQC}, v{vQB}
    v_add_u32 v{vT1}, v{vQC+1}, v{vQB}
    ds_read_b128 {vr(vQ,4)}, v{vT0}
    ds_read_b128 {vr(vQ+4,4)}, v{vT1}
    v_mov_b32 v{vPrev}, v{vQC}
    K2_SIGMA:
    """)
    a(f"""
    s_add_u32 s3, s{sQ}, 1
    s_lshl_b32 s3, s3, 1
    v_cvt_f32_u32 v{vT0}, s3
    s_mul_i32 s3, s3, s{sRem}
    s_lshl_b32 s{sP}, s3, 2
    s_lshl_b32 s3, s{sQ}, 1
    v_cvt_f32_u32 v{vT1}, s3
    v_rcp_f32 v{vT0}, v{vT0}
    v_rcp_f32 v{vT1}, v{vT1}
    s_lshl_b32 s3, s{sRem}, 2
    """)
    for (dst, last) in ((vSf, False), (vSl, True)):
        if not last:
            a(f"v_lshrrev_b32 v{vT2}, 2, v{vStart}")
        else:
            a(f"""
            v_add_u32 v{vT2}, v{vStart}, v{vPc}
            v_lshrrev_b32 v{vT2}, 2, v{vT2}
            v_add_u32 v{vT2}, -1, v{vT2}
            """)
        a(f"""
        v_cmp_gt_u32 vcc, s{sP}, v{vT2}
        v_cvt_f32_u32 v{vT3}, v{vT2}
        v_add_f32 v{vT3}, 0.5, v{vT3}
        v_mul_f32 v{vT3}, v{vT3}, v{vT0}
        v_cvt_u32_f32 v{vT3}, v{vT3}
        v_subrev_u32 v{vT2}, s{sP}, v{vT2}
        v_cvt_f32_u32 v{vT2}, v{vT2}
        v_add_f32 v{vT2}, 0.5, v{vT2}
        v_mul_f32 v{vT2}, v{vT2}, v{vT1}
        v_cvt_u32_f32 v{vT2}, v{vT2}
        v_add_u32 v{vT2}, s3, v{vT2}
        v_cndmask_b32_e64 v{dst}, v{vT2}, v{vT3}, vcc
        """)
    a(f"""
    s_cmp_eq_u32 s{sHB}, 0
    s_cbranch_scc1 K2_MAIN_DONE
    """)
    flush_id = [0]
    def flush(prev, masked):
        fid = flush_id[0]; flush_id[0] += 1
        if masked is not None:
            a(f"""
            v_cmp_ne_u32 vcc, v{masked}, v{prev}
            s_cbranch_vccz K2_FL{fid}
            s_mov_b64 exec, vcc
            """)
        a(f"""
        v_lshl_add_u32 v{vT0}, v{prev}, 1, v{vPB}
        ds_write_b128 v{vT0}, {vr(vAcc,4)}
        ds_write_b128 v{vT0}, {vr(vAcc+4,4)} offset:256
        """)
        if masked is not None:
            for i in range(8):
                a(f"v_mov_b32 v{vAcc+i}, 0")
            a(f"""
            s_mov_b64 exec, -1
            K2_FL{fid}:
            """)
    def body(pref):
        a("s_waitcnt lgkmcnt(0)")
        if pref:
            a(f"""
            ds_read_b128 {vr(vE,4)}, v{vLA} offset:32
            ds_read_b128 {vr(vE+4,4)}, v{vLA} offset:48
            ds_read_b64 {vr(vQN,2)}, v{vUA} offset:8
            """)
        for half in range(2):
            a(f"s_waitcnt vmcnt({4 if half == 0 else 0})")
            for r in range(4):
                for u in range(4*half, 4*half+4):
                    if "nodots" in opt.exp: continue
                    if r == 0:
                        a(f"v_dot2_f32_bf16 v{vP+u}, v{vX+4*u}, v{vQ+4*half}, 0")
                    else:
                        a(f"v_dot2c_f32_bf16 v{vP+u}, v{vX+4*u+r}, v{vQ+4*half+r}")
        if pref:
            a("s_waitcnt lgkmcnt(0)")
            a(f"v_add_u32 v{vT0}, v{vQN}, v{vQB}")
            a(f"v_add_u32 v{vT1}, v{vQN+1}, v{vQB}")
            for u in range(8):
                a(f"v_add_u32 v{vE+u}, v{vE+u}, v{vC16}")
            a(f"ds_read_b128 {vr(vQ,4)}, v{vT0}")
            a(f"ds_read_b128 {vr(vQ+4,4)}, v{vT1}")
        else:
            a("s_nop 2")
        for j in range(4):
            a(f"v_add_f32_dpp v{vP+j}, v{vP+j}, v{vP+j} row_mirror row_mask:0xf bank_mask:0x3")
        for j in range(4):
            a(f"v_add_f32_dpp v{vP+j}, v{vP+j+4}, v{vP+j+4} row_mirror row_mask:0xf bank_mask:0xc")
        for j in range(2):
            a(f"v_add_f32_dpp v{vP+j}, v{vP+j}, v{vP+j} row_half_mirror row_mask:0xf bank_mask:0x5")
        a("s_nop 0")
        for j in range(2):
            a(f"v_add_f32_dpp v{vP+j}, v{vP+j+2}, v{vP+j+2} row_half_mirror row_mask:0xf bank_mask:0xa")
        a(f"""
        s_nop 0
        v_add_f32_dpp v{vP+2}, v{vP}, v{vP} quad_perm:[1,0,3,2] row_mask:0xf bank_mask:0xf
        v_add_f32_dpp v{vP+3}, v{vP+1}, v{vP+1} quad_perm:[1,0,3,2] row_mask:0xf bank_mask:0xf
        s_nop 0
        v_cndmask_b32_e64 v{vP}, v{vP+2}, v{vP+3}, s[{sOdd}:{sOdd+1}]
        s_nop 1
        v_add_f32_dpp v{vP}, v{vP}, v{vP} quad_perm:[2,3,0,1] row_mask:0xf bank_mask:0xf
        v_cvt_pk_bf16_f32 v{vP}, v{vP}, v{vP}
        v_and_b32 v{vP}, v{vHiM}, v{vP}
        v_mul_f32 v{vP}, 0x3db504f3, v{vP}
        v_cvt_pk_bf16_f32 v{vP}, v{vP}, v{vP}
        v_and_b32 v{vP}, v{vHiM}, v{vP}
        v_mul_f32 v{vP}, 0xbfb8aa3b, v{vP}
        v_exp_f32 v{vP}, v{vP}
        s_nop 0
        v_add_f32 v{vP}, 1.0, v{vP}
        v_rcp_f32 v{vP}, v{vP}
        s_nop 0
        v_cvt_pk_bf16_f32 v{vALo}, v{vP}, 0
        v_cvt_pk_bf16_f32 v{vAHi}, 0, v{vP}
        """)
        for half in range(2):
            if half == 0:
                flush(vPrev, vQC)
                a("s_nop 1")
            else:
                a("s_nop 2")
                flush(vQC, vQC+1)
            for u in range(4*half, 4*half+4):
                k = 4*(u >> 1) + (u & 1)
                for r in range(4):
                    if "noagg" in opt.exp: continue
                    if "aggnodpp" in opt.exp:
                        a(f"v_dot2c_f32_bf16 v{vAcc+2*r}, v{vALo}, v{vX+4*u+r}")
                        a(f"v_dot2c_f32_bf16 v{vAcc+2*r+1}, v{vAHi}, v{vX+4*u+r}")
                        continue
                    if "aggfma" in opt.exp:
                        a(f"v_fmac_f32 v{vAcc+2*r}, v{vALo}, v{vX+4*u+r}")
                        a(f"v_fmac_f32 v{vAcc+2*r+1}, v{vAHi}, v{vX+4*u+r}")
                        continue
                    a(f"v_dot2c_f32_bf16_dpp v{vAcc+2*r}, v{vALo}, v{vX+4*u+r} row_newbcast:{k} row_mask:0xf bank_mask:0xf")
                    a(f"v_dot2c_f32_bf16_dpp v{vAcc+2*r+1}, v{vAHi}, v{vX+4*u+r} row_newbcast:{k} row_mask:0xf bank_mask:0xf")
                if pref and "noload" not in opt.exp:
                    a(f"buffer_load_dwordx4 {vr(vX+4*u,4)}, v{vE+u}, s[{sX}:{sX+3}], 0 offen")
        a(f"v_mov_b32 v{vPrev}, v{vQC+1}")
        if pref:
            a(f"""
            v_mov_b32 v{vQC}, v{vQN}
            v_mov_b32 v{vQC+1}, v{vQN+1}
            v_add_u32 v{vLA}, 32, v{vLA}
            v_add_u32 v{vUA}, 8, v{vUA}
            """)
    a(f"""
    s_cmp_eq_u32 s{sHB}, 1
    s_cbranch_scc1 K2_LAST
    K2_LOOP:
    """)
    body(True)
    a(f"""
    s_sub_u32 s{sHB}, s{sHB}, 1
    s_cmp_gt_u32 s{sHB}, 1
    s_cbranch_scc1 K2_LOOP
    K2_LAST:
    """)
    body(False)
    a("s_nop 2")
    flush(vPrev, None)
    a(f"""
    K2_MAIN_DONE:
    """)
    st.stamp(a)
    a(f"""
    s_waitcnt lgkmcnt(0)
    s_barrier
    """)
    st.stamp(a)
    sN, sS0, sS1, sPcn = 59, 60, 61, 62
    vRd = vX
    vL8 = vT3
    a(f"v_lshlrev_b32 v{vL8}, 3, v{vLane}")
    def node_scalars(k):
        a(f"""
        s_add_u32 s{sN}, s{sWave}, {16*k}
        v_readlane_b32 s{sS0}, v{vSf}, s{sN}
        v_readlane_b32 s{sS1}, v{vSl}, s{sN}
        v_readlane_b32 s{sPcn}, v{vPc}, s{sN}
        """)
    def piece_reads(k, dstbase):
        for j in range(4):
            a(f"""
            s_add_u32 s3, s{sS0}, {j}
            s_cmp_le_u32 s3, s{sS1}
            s_cselect_b32 s{sP}, 1, 0
            s_cmp_lg_u32 s{sPcn}, 0
            s_cselect_b32 s{sP}, s{sP}, 0
            s_add_u32 s3, s3, s{sN}
            s_lshl_b32 s3, s3, 9
            s_add_u32 s3, s3, {PIECE}
            s_cmp_lg_u32 s{sP}, 0
            s_cselect_b32 s3, s3, {ZROW}
            v_add_u32 v{vT0}, s3, v{vL8}
            ds_read_b64 {vr(dstbase+2*j,2)}, v{vT0}
            """)
    for k in range(4):
        if k == 3:
            a(f"""
            s_cmp_lg_u32 s{sWave}, 0
            s_cbranch_scc1 K2_RD_DONE
            """)
        node_scalars(k)
        piece_reads(k, vRd + 8*k)
    a("K2_RD_DONE:")
    a("s_waitcnt lgkmcnt(0)")
    for k in range(4):
        if k == 3:
            a(f"""
            s_cmp_lg_u32 s{sWave}, 0
            s_cbranch_scc1 K2_AD_DONE
            """)
        for j in range(4):
            a(f"v_add_f32 v{vTot+2*k}, v{vTot+2*k}, v{vRd+8*k+2*j}")
            a(f"v_add_f32 v{vTot+2*k+1}, v{vTot+2*k+1}, v{vRd+8*k+2*j+1}")
    a("K2_AD_DONE:")
    for k in range(4):
        if k == 3:
            a(f"""
            s_cmp_lg_u32 s{sWave}, 0
            s_cbranch_scc1 K2_X_DONE
            """)
        node_scalars(k)
        a(f"""
        K2_XL{k}:
        s_add_u32 s{sS0}, s{sS0}, 4
        s_cmp_gt_u32 s{sS0}, s{sS1}
        s_cbranch_scc1 K2_XE{k}
        s_cmp_eq_u32 s{sPcn}, 0
        s_cbranch_scc1 K2_XE{k}
        """)
        piece_reads(k, vRd)
        a("s_waitcnt lgkmcnt(0)")
        for j in range(4):
            a(f"v_add_f32 v{vTot+2*k}, v{vTot+2*k}, v{vRd+2*j}")
            a(f"v_add_f32 v{vTot+2*k+1}, v{vTot+2*k+1}, v{vRd+2*j+1}")
        a(f"""
        s_branch K2_XL{k}
        K2_XE{k}:
        """)
    a(f"""
    K2_X_DONE:
    s_add_u32 s{sR}, s{sR}, 1
    s_cmp_ge_u32 s{sR}, s{sNR}
    s_cbranch_scc1 K2_EPI
    s_barrier
    """)
    a(f"""
    v_mov_b32 v{vCand}, -1
    v_mov_b32 v{vCand+1}, -1
    v_mov_b32 v{vCand+2}, -1
    v_mov_b32 v{vCand+3}, -1
    v_mov_b32 v{vHdr}, 0
    v_cmp_gt_u32 vcc, {C*4}, v0
    s_and_saveexec_b64 s[{sSave}:{sSave+1}], vcc
    s_cbranch_execz K2_R1
    v_lshrrev_b32 v{vT0}, 2, v0
    v_lshlrev_b32 v{vT0}, 13, v{vT0}
    v_add_u32 v{vT0}, {WS_OVF}, v{vT0}
    buffer_load_dword v{vT3}, v{vT0}, s[{sWS}:{sWS+3}], 0 offen
    s_lshl_b32 s3, s{sR}, 4
    s_sub_u32 s3, s3, 13
    v_and_b32 v{vT1}, 3, v0
    v_lshl_add_u32 v{vT1}, v{vT1}, 2, s3
    v_lshl_add_u32 v{vT0}, v{vT1}, 2, v{vT0}
    buffer_load_dwordx4 {vr(vSo,4)}, v{vT0}, s[{sWS}:{sWS+3}], 0 offen offset:4
    s_waitcnt vmcnt(0)
    """)
    for i in range(4):
        a(f"""
        v_add_u32 v{vT2}, {i}, v{vT1}
        v_cmp_lt_u32 vcc, v{vT2}, v{vT3}
        s_nop 1
        v_cndmask_b32_e64 v{vCand+i}, v{vCand+i}, v{vSo+i}, vcc
        """)
    a(f"""
    K2_R1:
    s_mov_b64 exec, s[{sSave}:{sSave+1}]
    s_branch K2_ROUND
    K2_EPI:
    """)
    st.stamp(a)
    vAcc16 = 16
    vA8 = 32
    vB8 = 64
    vWa, vBa, vRow = 8, 9, 10
    a(f"""
    s_mul_i32 s3, s{sWave}, {ABSTR}
    s_add_u32 s3, s3, {AGGB}
    v_add_u32 v11, s3, v{vL4}
    """)
    for k in range(4):
        if k == 3:
            a(f"""
            s_cmp_lg_u32 s{sWave}, 0
            s_cbranch_scc1 K2_WB_DONE
            """)
        a(f"v_cvt_pk_bf16_f32 v12, v{vTot+2*k}, v{vTot+2*k+1}")
        a(f"ds_write_b32 v11, v12 offset:{16*k*ABSTR}")
    a(f"""
    K2_WB_DONE:
    s_and_b32 s{sP}, s{sWave}, 3
    s_lshr_b32 s{sNH}, s{sWave}, 2
    s_cmp_ge_u32 s{sWave}, 8
    s_cbranch_scc1 K2_EB
    """)
    tile_a_addr(a, vWa, vLane, 11, 12, sP, WV)
    for ks in range(8):
        if ks == 4: a("s_waitcnt lgkmcnt(4)")
        a(f"ds_read_b64_tr_b16 {vr(vA8+4*ks,2)}, v{vWa} offset:{ks*16*WSTRIDE}")
        a(f"ds_read_b64_tr_b16 {vr(vA8+4*ks+2,2)}, v{vWa} offset:{ks*16*WSTRIDE + 4*WSTRIDE}")
    a(f"""
    v_and_b32 v{vRow}, 31, v{vLane}
    s_lshl_b32 s3, s{sNH}, 5
    v_add_u32 v{vRow}, s3, v{vRow}
    v_mul_u32_u24 v{vBa}, {ABSTR}, v{vRow}
    v_lshrrev_b32 v11, 5, v{vLane}
    v_lshl_add_u32 v{vBa}, v11, 4, v{vBa}
    K2_EB:
    s_waitcnt lgkmcnt(0)
    s_barrier
    s_cmp_ge_u32 s{sWave}, 8
    s_cbranch_scc1 K2_FIN
    """)
    vB8 = 64
    for ks in range(8):
        a(f"ds_read_b128 {vr(vB8+4*ks,4)}, v{vBa} offset:{AGGB + 32*ks}")
    for ks in range(8):
        a(f"s_waitcnt lgkmcnt({7-ks})")
        c = "0" if ks == 0 else vr(vAcc16,16)
        a(f"v_mfma_f32_32x32x16_bf16 {vr(vAcc16,16)}, {vr(vA8+4*ks,4)}, {vr(vB8+4*ks,4)}, {c}")
    a(f"""
    s_mul_i32 s3, s{sBeta}, {T*256}
    s_lshl_b32 s{sCnt}, s{sP}, 6
    s_add_u32 s3, s3, s{sCnt}
    v_lshlrev_b32 v12, 8, v{vRow}
    v_lshl_add_u32 v12, v11, 5, v12
    v_add_u32 v12, s3, v12
    v_cmp_gt_u32 vcc, {T}, v{vRow}
    s_nop 7
    s_nop 3
    """)
    for i in range(8):
        a(f"v_cvt_pk_bf16_f32 v{vA8+i}, v{vAcc16+2*i}, v{vAcc16+2*i+1}")
    a(f"""
    s_and_saveexec_b64 s[{sSave}:{sSave+1}], vcc
    s_cbranch_execz K2_ST_DONE
    buffer_store_dwordx4 {vr(vA8,4)}, v12, s[{sOUT}:{sOUT+3}], 0 offen
    buffer_store_dwordx4 {vr(vA8+4,4)}, v12, s[{sOUT}:{sOUT+3}], 0 offen offset:16
    K2_ST_DONE:
    s_mov_b64 exec, s[{sSave}:{sSave+1}]
    K2_FIN:
    """)
    st.stamp(a)
    if opt.stamps:
        a("s_waitcnt vmcnt(0)")
        st.stamp(a)
    st.flush(a, sWS, 11, sWave)
    a("""
    K2_END:
    s_endpgm
    """)
    return a.text(), LDS, 108

def kd(name, vgpr, sgpr=102):
    return f""".amdhsa_kernel {name}
  .amdhsa_next_free_vgpr {vgpr}
  .amdhsa_next_free_sgpr {sgpr}
  .amdhsa_accum_offset {(vgpr + 3)//4*4}
  .amdhsa_group_segment_fixed_size 0
  .amdhsa_kernarg_size 64
  .amdhsa_user_sgpr_count 2
  .amdhsa_user_sgpr_kernarg_segment_ptr 1
  .amdhsa_system_sgpr_workgroup_id_x 1
.end_amdhsa_kernel
"""

HEADER = """; Kernarg layout for this problem (64 bytes, ptrs only, base s[0:1]):
"""

def build(opt):
    k1, lds1, v1 = gen_k1(opt)
    k2, lds2, v2 = gen_k2(opt)
    lds1 = max(lds1, 83968)
    n1, n2 = NAME + "_k1_kernel", NAME + "_k2_kernel"
    out = HEADER
    for ch in opt.seq:
        if ch == "1": out += f"; @launch kernel={n1} grid=({NB},1,1) block=(512,1,1) lds={lds1}\n"
        if ch == "2": out += f"; @launch kernel={n2} grid=({NB},1,1) block=(1024,1,1) lds={lds2}\n"
    for i in range(opt.empty):
        out += f"; @launch kernel={NAME}_empty_kernel grid=({NB},1,1) block=(64,1,1) lds=0\n"
    out += '.amdgcn_target "amdgcn-amd-amdhsa--gfx950"\n.text\n'
    for n, k in ((n1, k1), (n2, k2)):
        out += f".globl {n}\n.p2align 8\n.type {n},@function\n" + k
    if opt.empty:
        n3 = NAME + "_empty_kernel"
        out += f".globl {n3}\n.p2align 8\n.type {n3},@function\n{n3}:\n  s_endpgm\n"
    out += '.section .rodata,"a"\n.p2align 6\n'
    out += kd(n1, v1) + ".p2align 6\n" + kd(n2, v2)
    if opt.empty:
        out += ".p2align 6\n" + kd(NAME + "_empty_kernel", 8, 16)
    return out

def parse(argv=None):
    p = argparse.ArgumentParser()
    p.add_argument("-o", default="cdna_kernels/" + NAME + ".s")
    p.add_argument("--stamps", action="store_true")
    p.add_argument("--prefetch", type=int, default=0)
    p.add_argument("--empty", type=int, default=0)
    p.add_argument("--seq", default="12")
    p.add_argument("--exp", default="")
    p.add_argument("--cellst", default="")
    p.add_argument("--qst", default="")
    return p.parse_args(argv)

if __name__ == "__main__":
    o = parse()
    open(o.o, "w").write(build(o))
    print("wrote", o.o)
```

```python
import sys, argparse
from gen import A, vr, Stamps, scan64, kd, HEADER, NAME

N, E, D = 12500, 400000, 128
T = 49
NB = 256
CH = 1600
C = 250
XBYTES = N * 256
EBYTES = E * 4
WS_CELLS = 0
CELLROW = 16384
WS_HDR = 0x400000
WS_OVF = 0x410000
OVF_STRIDE = 8192
WS_USED = WS_OVF + 256 * OVF_STRIDE
WS_STAMP = 0x1000000
OOB = 0x40000000
DUMMY = 49

def srd_tail(a, d, size):
    a(f"s_mov_b32 s{d+2}, {size}")
    a(f"s_mov_b32 s{d+3}, 0x00020000")

def gen_k1(opt):
    a = A()
    HIST, OVC, JUNK, STAGE = 0, 1024, 1040, 2048
    LDS = STAGE + 16384 + 64
    st = Stamps(opt.stamps, 60, WS_STAMP)
    sX, sSRC, sDST, sWS = 4, 8, 12, 16
    sWave = 20
    vDst, vSrc = 4, 8
    vEnt, vAdr, vRank = 12, 16, 20
    vT0, vT1, vT2, vT3 = 24, 25, 26, 27
    vNeg, vOne, vZero, vGo = 28, 32, 33, 34
    vJ = 36
    a(f"""
    {NAME}_k1_kernel:
    s_cmp_ge_u32 s2, {C}
    s_cbranch_scc1 K1_END
    s_load_dwordx2 s[{sDST}:{sDST+1}], s[0:1], 16
    s_load_dwordx2 s[{sSRC}:{sSRC+1}], s[0:1], 8
    s_load_dwordx2 s[{sWS}:{sWS+1}], s[0:1], 56
    s_load_dwordx2 s[{sX}:{sX+1}], s[0:1], 0
    """)
    st.stamp(a)
    srd_tail(a, sDST, EBYTES); srd_tail(a, sSRC, EBYTES); srd_tail(a, sX, XBYTES)
    srd_tail(a, sWS, WS_USED if not opt.stamps else 0x2000000)
    a(f"""
    v_lshrrev_b32 v{vT1}, 6, v0
    s_mul_i32 s21, s2, {CH*4}
    v_lshlrev_b32 v{vT0}, 4, v0
    v_readfirstlane_b32 s{sWave}, v{vT1}
    v_add_u32 v{vT2}, s21, v{vT0}
    v_mov_b32 v{vNeg}, -1
    v_mov_b32 v{vNeg+1}, -1
    v_mov_b32 v{vNeg+2}, -1
    v_mov_b32 v{vNeg+3}, -1
    v_mov_b32 v{vZero}, 0
    v_mov_b32 v{vOne}, 1
    v_cmp_gt_u32 vcc, {CH//4}, v0
    s_and_saveexec_b64 s[40:41], vcc
    s_waitcnt lgkmcnt(0)
    s_cbranch_execz K1_EDGE0_DONE
    buffer_load_dwordx4 {vr(vDst,4)}, v{vT2}, s[{sDST}:{sDST+3}], 0 offen
    buffer_load_dwordx4 {vr(vSrc,4)}, v{vT2}, s[{sSRC}:{sSRC+3}], 0 offen
    K1_EDGE0_DONE:
    s_mov_b64 exec, s[40:41]
    ds_write_b128 v{vT0}, {vr(vNeg,4)} offset:{STAGE}
    ds_write_b128 v{vT0}, {vr(vNeg,4)} offset:{STAGE+8192}
    v_lshlrev_b32 v{vT1}, 2, v0
    s_cmp_ge_u32 s{sWave}, 5
    s_cbranch_scc1 K1_NOZ
    ds_write_b32 v{vT1}, v{vZero} offset:{HIST}
    K1_NOZ:
    """)
    if opt.prefetch == 1:
        per = 100096
        a(f"""
        s_cmp_eq_u32 s{sWave}, 7
        s_cbranch_scc0 K1_NOPF
        s_lshr_b32 s22, s2, 3
        s_mul_i32 s22, s22, {per}
        v_and_b32 v{vT2}, 63, v0
        v_lshlrev_b32 v{vT2}, 7, v{vT2}
        """)
        for i in range(13):
            a(f"buffer_load_dword v{vJ}, v{vT2}, s[{sX}:{sX+3}], s22 offen")
            a(f"s_add_u32 s22, s22, 8192")
        a("K1_NOPF:")
    a(f"""
    v_lshrrev_b32 v{vT1}, 2, v0
    v_lshlrev_b32 v{vGo}, 14, v{vT1}
    v_and_b32 v{vT1}, 3, v0
    v_lshl_add_u32 v{vGo}, v{vT1}, 4, v{vGo}
    s_and_b32 s22, s2, 7
    s_lshl_b32 s22, s22, 5
    s_lshr_b32 s23, s2, 3
    s_add_u32 s22, s22, s23
    s_lshl_b32 s22, s22, 6
    s_add_u32 s23, s22, {128*CELLROW}
    s_waitcnt lgkmcnt(0)
    s_barrier
    """)
    st.stamp(a)
    a(f"""
    v_cmp_gt_u32 vcc, {CH//4}, v0
    s_and_saveexec_b64 s[40:41], vcc
    s_cbranch_execz K1_EDGE1_DONE
    s_mov_b32 s21, -{T}
    s_waitcnt vmcnt(0)
    """)
    st.stamp(a)
    for i in range(4):
        a(f"""
        v_mul_u32_u24 v{vT0}, 21400, v{vDst+i}
        v_lshrrev_b32 v{vT0}, 20, v{vT0}
        v_lshlrev_b32 v{vAdr+i}, 2, v{vT0}
        ds_add_rtn_u32 v{vRank+i}, v{vAdr+i}, v{vOne} offset:{HIST}
        v_mad_i32_i24 v{vT1}, v{vT0}, s21, v{vDst+i}
        v_lshl_or_b32 v{vEnt+i}, v{vSrc+i}, 8, v{vT1}
        v_lshl_or_b32 v{vEnt+i}, v{vT0}, 24, v{vEnt+i}
        v_lshlrev_b32 v{vAdr+i}, 4, v{vAdr+i}
        """)
    a(f"v_mov_b32 v{vT3}, 16384")
    for i in range(4):
        a(f"""
        s_waitcnt lgkmcnt({3-i})
        v_cmp_gt_u32 s[{42+2*i}:{43+2*i}], 16, v{vRank+i}
        v_lshl_add_u32 v{vT0}, v{vRank+i}, 2, v{vAdr+i}
        s_nop 0
        v_cndmask_b32_e64 v{vT0}, v{vT3}, v{vT0}, s[{42+2*i}:{43+2*i}]
        ds_write_b32 v{vT0}, v{vEnt+i} offset:{STAGE}
        """)
    a(f"""
    s_and_b64 s[50:51], s[42:43], s[44:45]
    s_and_b64 s[52:53], s[46:47], s[48:49]
    s_and_b64 s[50:51], s[50:51], s[52:53]
    s_andn2_b64 s[50:51], exec, s[50:51]
    s_cbranch_scc0 K1_EDGE1_DONE
    s_mov_b64 s[54:55], exec
    s_mul_i32 s21, s2, {OVF_STRIDE}
    s_add_u32 s21, s21, {WS_OVF + 4}
    s_lshl_b32 s24, s2, 4
    s_add_u32 s24, s24, {WS_HDR + 4}
    v_mov_b32 v{vT3}, {OVC}
    """)
    for i in range(4):
        a(f"""
        s_andn2_b64 exec, s[54:55], s[{42+2*i}:{43+2*i}]
        s_cbranch_execz K1_OV_{i}
        ds_add_rtn_u32 v{vT0}, v{vT3}, v{vOne}
        s_waitcnt lgkmcnt(0)
        v_cmp_gt_u32 vcc, 3, v{vT0}
        v_lshl_add_u32 v{vT1}, v{vT0}, 2, s21
        v_lshl_add_u32 v{vT2}, v{vT0}, 2, s24
        v_cndmask_b32_e64 v{vT0}, v{vT1}, v{vT2}, vcc
        buffer_store_dword v{vEnt+i}, v{vT0}, s[{sWS}:{sWS+3}], 0 offen
        K1_OV_{i}:
        """)
    a(f"""
    K1_EDGE1_DONE:
    s_mov_b64 exec, s[40:41]
    v_lshlrev_b32 v{vT0}, 4, v0
    s_waitcnt lgkmcnt(0)
    s_barrier
    """)
    st.stamp(a)
    a(f"""
    ds_read_b128 {vr(vEnt,4)}, v{vT0} offset:{STAGE}
    ds_read_b128 {vr(vAdr,4)}, v{vT0} offset:{STAGE+8192}
    s_cmp_eq_u32 s{sWave}, 0
    s_cbranch_scc0 K1_NOHDR
    v_mov_b32 v{vT3}, {OVC}
    ds_read_b32 v{vRank}, v{vT3}
    s_lshl_b32 s24, s2, 4
    s_add_u32 s24, s24, {WS_HDR}
    v_mov_b32 v{vT2}, s24
    s_waitcnt lgkmcnt(0)
    s_mov_b64 exec, 1
    buffer_store_dword v{vRank}, v{vT2}, s[{sWS}:{sWS+3}], 0 offen {opt.cellst}
    s_mov_b64 exec, -1
    K1_NOHDR:
    s_waitcnt lgkmcnt(1)
    buffer_store_dwordx4 {vr(vEnt,4)}, v{vGo}, s[{sWS}:{sWS+3}], s22 offen {opt.cellst}
    s_waitcnt lgkmcnt(0)
    buffer_store_dwordx4 {vr(vAdr,4)}, v{vGo}, s[{sWS}:{sWS+3}], s23 offen {opt.cellst}
    """)
    st.stamp(a)
    if opt.stamps:
        a("s_waitcnt vmcnt(0)")
        st.stamp(a)
    st.flush(a, sWS, vT0, sWave)
    a("""
    K1_END:
    s_endpgm
    """)
    return a.text(), LDS, 40

def tile_a_addr(a, vdst, vlane, t0, t1, sP, wbase):
    a(f"""
    v_bfe_u32 v{t0}, v{vlane}, 2, 2
    v_lshrrev_b32 v{t1}, 5, v{vlane}
    v_lshl_add_u32 v{vdst}, v{t1}, 3, v{t0}
    v_lshlrev_b32 v{vdst}, 8, v{vdst}
    v_xor_b32 v{t0}, s{sP}, v{t0}
    v_lshl_add_u32 v{vdst}, v{t0}, 6, v{vdst}
    v_bfe_u32 v{t0}, v{vlane}, 4, 1
    v_bfe_u32 v{t1}, v{vlane}, 1, 1
    v_lshl_add_u32 v{t0}, v{t0}, 1, v{t1}
    v_and_b32 v{t1}, 1, v{vlane}
    v_lshl_add_u32 v{t0}, v{t1}, 2, v{t0}
    v_lshl_add_u32 v{vdst}, v{t0}, 3, v{vdst}
    v_add_u32 v{vdst}, {wbase}, v{vdst}
    """)

def tile_b_addr(a, vdst, vrow, vlane, t0):
    a(f"""
    v_lshrrev_b32 v{t0}, 5, v{vlane}
    v_xor_b32 v{t0}, v{t0}, v{vrow}
    v_and_b32 v{t0}, 15, v{t0}
    v_lshlrev_b32 v{t0}, 4, v{t0}
    v_lshl_add_u32 v{vdst}, v{vrow}, 8, v{t0}
    """)

def gen_k2(opt):
    a = A()
    HIST, MAXC, ZROW, TBL = 0, 256, 512, 1024
    NPC = TBL + 1024
    LIST = NPC + 256
    LISTW = 5120
    UNODE = LIST + LISTW * 4
    QS = UNODE + 1280 * 4
    AGGB = QS + 52 * 256
    PIECE = AGGB + 64 * 256
    XT = PIECE
    WQ = XT + 16384
    WV = PIECE + (DUMMY + 64) * 512
    LDS = WV + 32768
    assert WQ + 32768 <= WV
    st = Stamps(opt.stamps, 64, WS_STAMP + 0x40000)
    sX, sWQ, sWV, sOUT, sWS = 4, 8, 12, 16, 20
    sBeta, sWave, sR, sNR = 24, 25, 26, 27
    sOdd = 28
    sBeta24, sHB, sP, sNH, s196 = 30, 31, 32, 33, 34
    sM = 36
    sSave = 50
    sCnt, sQ, sRem, sT = 52, 53, 54, 55
    vC16, vPB, vLA, vUA, vPrev = 1, 2, 3, 4, 5
    vQP, vQC, vQN = 6, 8, 10
    vAl = (12, 14)
    vQB = 16
    vT0, vT1, vT2, vT3 = 17, 18, 19, 20
    vLane, vStart, vPc = 21, 22, 23
    vAcc, vP, vE, vQ = 24, 32, 40, 48
    vXA, vXB, vTot = 56, 88, 120
    vCand, vHdr, vSo, vN4, vRk = 56, 60, 64, 72, 80
    vCnt = 47
    vWa, vBa, vRow, vQst = 12, 13, 14, 15
    npf = 1 if opt.prefetch == 2 else 0
    a(f"""
    {NAME}_k2_kernel:
    s_cmp_ge_u32 s2, {NB}
    s_cbranch_scc1 K2_END
    s_load_dwordx2 s[{sWS}:{sWS+1}], s[0:1], 56
    s_load_dwordx2 s[{sX}:{sX+1}], s[0:1], 0
    s_load_dwordx2 s[{sWQ}:{sWQ+1}], s[0:1], 24
    s_load_dwordx2 s[{sWV}:{sWV+1}], s[0:1], 32
    s_load_dwordx2 s[{sOUT}:{sOUT+1}], s[0:1], 40
    """)
    st.stamp(a)
    srd_tail(a, sWS, WS_USED if not opt.stamps else 0x2000000)
    a(f"""
    v_lshrrev_b32 v{vT0}, 6, v0
    s_and_b32 s{sBeta}, s2, 7
    s_lshl_b32 s{sBeta}, s{sBeta}, 5
    v_readfirstlane_b32 s{sWave}, v{vT0}
    s_lshr_b32 s3, s2, 3
    s_add_u32 s{sBeta}, s{sBeta}, s3
    v_mov_b32 v{vCand}, -1
    v_mov_b32 v{vCand+1}, -1
    v_mov_b32 v{vCand+2}, -1
    v_mov_b32 v{vCand+3}, -1
    v_mov_b32 v{vHdr}, 0
    v_lshlrev_b32 v{vT0}, 4, v0
    v_bfe_u32 v{vT1}, v0, 2, 5
    s_lshl_b32 s3, s{sBeta}, 14
    s_mov_b32 s{sT}, {WS_HDR}
    v_lshlrev_b32 v{vT1}, 3, v{vT1}
    v_lshrrev_b32 v{vT2}, 7, v0
    v_add_u32 v{vT1}, v{vT1}, v{vT2}
    v_cmp_gt_u32 vcc, {C}, v{vT1}
    s_and_saveexec_b64 s[{sSave}:{sSave+1}], vcc
    s_waitcnt lgkmcnt(0)
    buffer_load_dwordx4 {vr(vCand,4)}, v{vT0}, s[{sWS}:{sWS+3}], s3 offen
    s_mov_b64 exec, s[{sSave}:{sSave+1}]
    s_cmp_ge_u32 s{sWave}, 4
    s_cbranch_scc1 K2_L1
    v_cmp_gt_u32 vcc, {C}, v0
    s_and_saveexec_b64 s[{sSave}:{sSave+1}], vcc
    buffer_load_dwordx4 {vr(vHdr,4)}, v{vT0}, s[{sWS}:{sWS+3}], s{sT} offen
    s_mov_b64 exec, s[{sSave}:{sSave+1}]
    v_mov_b32 v{vT2}, 0
    v_lshlrev_b32 v{vT3}, 2, v0
    ds_write_b32 v{vT3}, v{vT2} offset:{HIST}
    K2_L1:
    s_waitcnt lgkmcnt(0)
    s_barrier
    """)
    st.stamp(a)
    srd_tail(a, sX, XBYTES); srd_tail(a, sWQ, 32768); srd_tail(a, sWV, 32768); srd_tail(a, sOUT, XBYTES)
    a(f"""
    v_and_b32 v{vLane}, 63, v0
    v_bfe_u32 v{vT0}, v0, 4, 2
    v_and_b32 v{vT1}, 15, v0
    v_lshlrev_b32 v{vC16}, 4, v{vT1}
    s_cmp_ge_u32 s{sWave}, 13
    s_cbranch_scc1 K2_L2
    s_lshl_b32 s3, s{sWave}, 2
    v_add_u32 v{vT2}, s3, v{vT0}
    v_xor_b32 v{vT3}, v{vT2}, v{vT1}
    v_and_b32 v{vT3}, 15, v{vT3}
    v_lshlrev_b32 v{vT3}, 4, v{vT3}
    v_lshl_add_u32 v{vT3}, v{vT2}, 8, v{vT3}
    s_mul_i32 s3, s{sBeta}, {T*256}
    s_lshl_b32 s{sT}, s{sWave}, 10
    s_add_u32 s{sT}, s{sT}, {XT}
    s_mov_b32 m0, s{sT}
    s_nop 0
    buffer_load_dwordx4 v{vT3}, s[{sX}:{sX+3}], s3 offen lds
    K2_L2:
    v_lshlrev_b32 v{vT2}, 2, v{vT0}
    v_xor_b32 v{vT2}, v{vT2}, v{vT1}
    v_lshlrev_b32 v{vT2}, 4, v{vT2}
    v_lshl_add_u32 v{vT2}, v{vT0}, 8, v{vT2}
    s_lshl_b32 s3, s{sWave}, 11
    s_add_u32 s{sT}, s3, {WQ}
    s_mov_b32 m0, s{sT}
    s_add_u32 s{sT}, s{sT}, 1024
    buffer_load_dwordx4 v{vT2}, s[{sWQ}:{sWQ+3}], s3 offen lds
    s_mov_b32 m0, s{sT}
    s_add_u32 s{sCnt}, s3, 1024
    buffer_load_dwordx4 v{vT2}, s[{sWQ}:{sWQ+3}], s{sCnt} offen lds
    s_add_u32 s{sT}, s3, {WV}
    s_mov_b32 m0, s{sT}
    s_add_u32 s{sT}, s{sT}, 1024
    buffer_load_dwordx4 v{vT2}, s[{sWV}:{sWV+3}], s3 offen lds
    s_mov_b32 m0, s{sT}
    s_mov_b32 s{sR}, 0
    buffer_load_dwordx4 v{vT2}, s[{sWV}:{sWV+3}], s{sCnt} offen lds
    """)
    if npf:
        a(f"""
        s_lshr_b32 s3, s2, 3
        s_mul_i32 s3, s3, 100096
        v_lshlrev_b32 v{vT3}, 7, v0
        v_mov_b32 v{vT1}, {OOB}
        v_cmp_gt_u32 vcc, 782, v0
        s_nop 1
        v_cndmask_b32_e64 v{vT3}, v{vT1}, v{vT3}, vcc
        buffer_load_dword v{vQP}, v{vT3}, s[{sX}:{sX+3}], s3 offen
        """)
    a(f"""
    s_mov_b32 s{sOdd}, 0xaaaaaaaa
    s_mov_b32 s{sOdd+1}, 0xaaaaaaaa
    s_movk_i32 s{s196}, {T*4}
    s_lshl_b32 s{sBeta24}, s{sBeta}, 24
    v_add_u32 v{vQB}, {QS}, v{vC16}
    s_lshl_b32 s3, s{sWave}, 11
    s_add_u32 s3, s3, {PIECE}
    v_lshl_add_u32 v{vPB}, v{vT0}, 9, s3
    v_add_u32 v{vPB}, v{vPB}, v{vC16}
    """)
    for i in range(8):
        a(f"v_mov_b32 v{vTot+i}, 0")
    a(f"""
    s_and_b32 s{sP}, s{sWave}, 3
    s_lshr_b32 s{sNH}, s{sWave}, 2
    s_cmp_ge_u32 s{sWave}, 8
    s_cbranch_scc1 K2_NOQA
    """)
    tile_a_addr(a, vWa, vLane, vT2, vT3, sP, WQ)
    a(f"""
    v_and_b32 v{vRow}, 31, v{vLane}
    s_lshl_b32 s3, s{sNH}, 5
    v_add_u32 v{vRow}, s3, v{vRow}
    """)
    tile_b_addr(a, vBa, vRow, vLane, vT3)
    a(f"""
    v_lshrrev_b32 v{vT3}, 5, v{vLane}
    v_lshlrev_b32 v{vQst}, 8, v{vRow}
    v_lshl_add_u32 v{vQst}, v{vT3}, 5, v{vQst}
    s_lshl_b32 s3, s{sP}, 6
    s_add_u32 s3, s3, {QS}
    v_add_u32 v{vQst}, s3, v{vQst}
    K2_NOQA:
    v_mov_b32 v{vT3}, 1
    s_cmp_lt_u32 s{sWave}, 13
    s_cbranch_scc0 K2_WAIT4
    s_waitcnt vmcnt({5+npf})
    s_branch K2_WAITD
    K2_WAIT4:
    s_waitcnt vmcnt({4+npf})
    K2_WAITD:
    """)
    st.stamp(a)
    def decode(word, i):
        m = sM + 2*i
        a(f"""
        v_lshlrev_b32 v{vN4+i}, 2, v{word}
        v_and_b32 v{vN4+i}, 0xfc, v{vN4+i}
        v_cmp_gt_u32 s[{m}:{m+1}], s{s196}, v{vN4+i}
        v_and_b32 v{vSo+i}, 0x00ffff00, v{word}
        s_mov_b64 exec, s[{m}:{m+1}]
        ds_add_rtn_u32 v{vRk+i}, v{vN4+i}, v{vT3} offset:{HIST}
        s_mov_b64 exec, -1
        """)
    a("K2_DECODE:")
    for i in range(4):
        decode(vCand+i, i)
    a(f"""
    s_mov_b64 s[{sM+8}:{sM+9}], 0
    s_mov_b64 s[{sM+10}:{sM+11}], 0
    s_mov_b64 s[{sM+12}:{sM+13}], 0
    s_cmp_ge_u32 s{sWave}, 4
    s_cbranch_scc1 K2_NOHDR
    v_cmp_lt_u32 vcc, 0, v{vHdr}
    s_cbranch_vccz K2_NOHDR
    v_mov_b32 v{vT0}, {MAXC}
    ds_max_u32 v{vT0}, v{vHdr}
    """)
    for i in range(4, 7):
        w = vHdr + (i-3)
        a(f"""
        v_lshrrev_b32 v{vT0}, 24, v{w}
        v_cmp_eq_u32 s[{sSave}:{sSave+1}], s{sBeta}, v{vT0}
        v_cmp_lt_u32 vcc, {i-4}, v{vHdr}
        v_mov_b32 v{vT1}, -1
        s_and_b64 vcc, vcc, s[{sSave}:{sSave+1}]
        s_nop 1
        v_cndmask_b32_e64 v{w}, v{vT1}, v{w}, vcc
        """)
        decode(w, i)
    a(f"""
    K2_NOHDR:
    s_cmp_eq_u32 s{sR}, 0
    s_cbranch_scc0 K2_W0
    s_waitcnt vmcnt({2+npf})
    K2_W0:
    s_waitcnt lgkmcnt(0)
    s_barrier
    """)
    st.stamp(a)
    a(f"""
    v_lshlrev_b32 v{vT2}, 2, v{vLane}
    v_mov_b32 v{vT3}, {MAXC}
    ds_read_b32 v{vCnt}, v{vT2} offset:{HIST}
    ds_read_b32 v{vT3}, v{vT3}
    """)
    vA8, vB8, vAc = vXB, 40, 24
    a(f"""
    s_cmp_eq_u32 s{sR}, 0
    s_cselect_b32 s{sT}, 8, 0
    s_cmp_ge_u32 s{sWave}, s{sT}
    s_cbranch_scc1 K2_NOQ0
    """)
    for ks in range(6):
        a(f"ds_read_b64_tr_b16 {vr(vA8+4*ks,2)}, v{vWa} offset:{ks*4096}")
        a(f"ds_read_b64_tr_b16 {vr(vA8+4*ks+2,2)}, v{vWa} offset:{ks*4096 + 1024}")
    a(f"""
    s_waitcnt lgkmcnt(12)
    s_branch K2_Q0D
    K2_NOQ0:
    s_waitcnt lgkmcnt(0)
    K2_Q0D:
    v_add_u32 v{vPc}, 3, v{vCnt}
    v_and_b32 v{vPc}, -4, v{vPc}
    v_mov_b32 v{vStart}, v{vPc}
    v_readfirstlane_b32 s3, v{vT3}
    s_nop 0
    """)
    scan64(a, vStart, None)
    a(f"""
    s_nop 0
    v_readlane_b32 s{sCnt}, v{vStart}, 63
    v_sub_u32 v{vStart}, v{vStart}, v{vPc}
    """)
    for i in range(4):
        a(f"ds_bpermute_b32 v{vE+i}, v{vN4+i}, v{vStart}")
    a(f"""
    s_cmp_eq_u32 s{sR}, 0
    s_cbranch_scc0 K2_NRDONE
    s_min_u32 s3, s3, {CH}
    s_max_u32 s3, s3, 3
    s_add_u32 s3, s3, 12
    s_lshr_b32 s3, s3, 4
    s_add_u32 s{sNR}, s3, 1
    K2_NRDONE:
    """)
    a(f"""
    v_lshlrev_b32 v{vT1}, 8, v{vLane}
    s_lshl_b32 s{sT}, s{sWave}, 2
    K2_UN:
    v_cmp_lt_u32 vcc, s{sT}, v{vPc}
    s_cbranch_vccz K2_UND
    v_add_u32 v{vT0}, s{sT}, v{vStart}
    s_mov_b64 exec, vcc
    ds_write_b32 v{vT0}, v{vT1} offset:{UNODE}
    s_mov_b64 exec, -1
    s_add_u32 s{sT}, s{sT}, 64
    s_branch K2_UN
    K2_UND:
    """)
    a(f"""
    s_sub_u32 s{sT}, s{sWave}, 8
    s_cmp_gt_u32 s{sT}, 4
    s_cbranch_scc1 K2_NOPAD
    v_mov_b32 v{vT2}, {OOB}
    s_cmp_gt_u32 s{sT}, 2
    s_cbranch_scc1 K2_TAILPAD
    v_sub_u32 v{vT1}, v{vPc}, v{vCnt}
    v_add_u32 v{vT0}, v{vStart}, v{vCnt}
    v_cmp_lt_u32 vcc, s{sT}, v{vT1}
    v_add_u32 v{vT0}, s{sT}, v{vT0}
    v_lshlrev_b32 v{vT0}, 2, v{vT0}
    s_mov_b64 exec, vcc
    ds_write_b32 v{vT0}, v{vT2} offset:{LIST}
    s_mov_b64 exec, -1
    s_branch K2_NOPAD
    K2_TAILPAD:
    v_lshlrev_b32 v{vT1}, 2, v{vLane}
    s_cmp_eq_u32 s{sT}, 3
    s_cbranch_scc0 K2_TAILU
    s_lshl_b32 s{sT}, s{sCnt}, 2
    v_add_u32 v{vT0}, s{sT}, v{vT1}
    s_mov_b64 exec, 0xfffffff
    ds_write_b32 v{vT0}, v{vT2} offset:{LIST}
    s_mov_b64 exec, -1
    s_branch K2_NOPAD
    K2_TAILU:
    v_add_u32 v{vT0}, s{sCnt}, v{vT1}
    v_mov_b32 v{vT2}, {DUMMY*256}
    s_mov_b64 exec, 0x7f
    ds_write_b32 v{vT0}, v{vT2} offset:{UNODE}
    s_mov_b64 exec, -1
    K2_NOPAD:
    """)
    def scatter(i, last):
        m = sM + 2*i
        a(f"""
        v_add_lshl_u32 v{vE+i}, v{vE+i}, v{vRk+i}, 2
        s_mov_b64 exec, s[{m}:{m+1}]
        ds_write_b32 v{vE+i}, v{vSo+i} offset:{LIST}
        s_mov_b64 exec, -1
        """)
    a("s_waitcnt lgkmcnt(0)")
    for i in range(4):
        scatter(i, i == 3)
    a(f"""
    s_or_b64 s[{sSave}:{sSave+1}], s[{sM+8}:{sM+9}], s[{sM+10}:{sM+11}]
    s_or_b64 s[{sSave}:{sSave+1}], s[{sSave}:{sSave+1}], s[{sM+12}:{sM+13}]
    s_cbranch_scc0 K2_SC_DONE
    """)
    for i in range(4, 7):
        a(f"ds_bpermute_b32 v{vE+i}, v{vN4+i}, v{vStart}")
    a("s_waitcnt lgkmcnt(0)")
    for i in range(4, 7):
        scatter(i, i == 6)
    a(f"""
    K2_SC_DONE:
    s_add_u32 s3, s{sCnt}, 31
    s_lshr_b32 s3, s3, 5
    s_lshr_b32 s{sQ}, s3, 4
    s_and_b32 s{sRem}, s3, 15
    """)
    st.stamp(a)
    a(f"""
    s_cmp_eq_u32 s{sR}, 0
    s_cselect_b32 s{sT}, 8, 0
    s_cmp_ge_u32 s{sWave}, s{sT}
    s_cbranch_scc1 K2_NOQ
    """)
    for ks in range(6, 8):
        a(f"ds_read_b64_tr_b16 {vr(vA8+4*ks,2)}, v{vWa} offset:{ks*4096}")
        a(f"ds_read_b64_tr_b16 {vr(vA8+4*ks+2,2)}, v{vWa} offset:{ks*4096 + 1024}")
    for hp in range(2):
        for k4 in range(4):
            ks = 4*hp + k4
            a(f"v_xor_b32 v{vT3}, {32*ks}, v{vBa}")
            a(f"ds_read_b128 {vr(vB8+4*k4,4)}, v{vT3} offset:{XT}")
        for k4 in range(4):
            ks = 4*hp + k4
            a(f"s_waitcnt lgkmcnt({3-k4})")
            c = "0" if ks == 0 else vr(vAc,16)
            a(f"v_mfma_f32_32x32x16_bf16 {vr(vAc,16)}, {vr(vA8+4*ks,4)}, {vr(vB8+4*k4,4)}, {c}")
    a(f"""
    v_cmp_gt_u32 vcc, 52, v{vRow}
    s_nop 7
    s_nop 3
    """)
    for i in range(8):
        a(f"v_cvt_pk_bf16_f32 v{vA8+i}, v{vAc+2*i}, v{vAc+2*i+1}")
    a(f"""
    s_mov_b64 exec, vcc
    ds_write_b128 v{vQst}, {vr(vA8,4)}
    ds_write_b128 v{vQst}, {vr(vA8+4,4)} offset:16
    s_mov_b64 exec, -1
    K2_NOQ:
    s_waitcnt vmcnt({npf}) lgkmcnt(0)
    s_barrier
    """)
    st.stamp(a)
    if "cyc" in opt.exp: st.stamp(a, True)
    if opt.prio: a("s_setprio 3")
    a(f"""
    s_cmp_lt_u32 s{sWave}, s{sRem}
    s_cselect_b32 s{sNH}, 1, 0
    s_add_u32 s{sHB}, s{sQ}, s{sNH}
    s_min_u32 s3, s{sRem}, s{sWave}
    s_mul_i32 s{sP}, s{sQ}, s{sWave}
    s_add_u32 s{sP}, s{sP}, s3
    s_cmp_eq_u32 s{sHB}, 0
    s_cbranch_scc1 K2_MAIN_DONE
    v_lshrrev_b32 v{vT0}, 4, v{vLane}
    s_lshl_b32 s3, s{sHB}, 1
    v_mul_u32_u24 v{vT0}, s3, v{vT0}
    s_lshl_b32 s3, s{sP}, 3
    v_add_u32 v{vT0}, s3, v{vT0}
    v_lshlrev_b32 v{vLA}, 4, v{vT0}
    v_lshlrev_b32 v{vUA}, 2, v{vT0}
    ds_read_b128 {vr(vE,4)}, v{vLA} offset:{LIST}
    ds_read_b128 {vr(vE+4,4)}, v{vLA} offset:{LIST+16}
    ds_read_b64 {vr(vQC,2)}, v{vUA} offset:{UNODE}
    ds_read_b128 {vr(vP,4)}, v{vLA} offset:{LIST+32}
    ds_read_b128 {vr(vP+4,4)}, v{vLA} offset:{LIST+48}
    ds_read_b64 {vr(vQN,2)}, v{vUA} offset:{UNODE+8}
    """)
    for i in range(8):
        a(f"v_mov_b32 v{vAcc+i}, 0")
    a("s_waitcnt lgkmcnt(4)")
    for u in range(8):
        a(f"v_add_u32 v{vE+u}, v{vE+u}, v{vC16}")
        a(f"buffer_load_dwordx4 {vr(vXA+4*u,4)}, v{vE+u}, s[{sX}:{sX+3}], 0 offen")
    a(f"""
    s_waitcnt lgkmcnt(0)
    v_add_u32 v{vT0}, v{vQC}, v{vQB}
    v_add_u32 v{vT1}, v{vQC+1}, v{vQB}
    ds_read_b128 {vr(vQ,4)}, v{vT0}
    ds_read_b128 {vr(vQ+4,4)}, v{vT1}
    v_mov_b32 v{vPrev}, v{vQC}
    s_cmp_eq_u32 s{sHB}, 1
    s_cbranch_scc1 K2_FIRST
    """)
    for u in range(8):
        a(f"v_add_u32 v{vP+u}, v{vP+u}, v{vC16}")
        a(f"buffer_load_dwordx4 {vr(vXB+4*u,4)}, v{vP+u}, s[{sX}:{sX+3}], 0 offen")
    if "bstamp" in opt.exp: st.stamp(a)
    flush_id = [0]
    def flush(prev, masked):
        fid = flush_id[0]; flush_id[0] += 1
        t = ""
        if masked is not None:
            t += f"""
            v_cmp_ne_u32 vcc, v{masked}, v{prev}
            s_cbranch_vccz K2_FL{fid}
            s_mov_b64 exec, vcc
            """
        t += f"""
        v_lshl_add_u32 v{vT0}, v{prev}, 1, v{vPB}
        ds_write_b128 v{vT0}, {vr(vAcc,4)}
        ds_write_b128 v{vT0}, {vr(vAcc+4,4)} offset:256
        """
        if masked is not None:
            for i in range(8):
                t += f"v_mov_b32 v{vAcc+i}, 0\n"
            t += f"""
            s_mov_b64 exec, -1
            K2_FL{fid}:
            """
        return t
    def dots(X, waits):
        for half in range(2):
            a(waits[half])
            if "nodots" in opt.exp: continue
            for r in range(4):
                for u in range(4*half, 4*half+4):
                    if r == 0:
                        a(f"v_dot2_f32_bf16 v{vP+u}, v{X+4*u}, v{vQ+4*half}, 0")
                    else:
                        a(f"v_dot2c_f32_bf16 v{vP+u}, v{X+4*u+r}, v{vQ+4*half+r}")
    def chain(al):
        c = []
        for j in range(4):
            c.append(f"v_add_f32_dpp v{vP+j}, v{vP+j}, v{vP+j} row_mirror row_mask:0xf bank_mask:0x3")
        for j in range(4):
            c.append(f"v_add_f32_dpp v{vP+j}, v{vP+j+4}, v{vP+j+4} row_mirror row_mask:0xf bank_mask:0xc")
        for j in range(2):
            c.append(f"v_add_f32_dpp v{vP+j}, v{vP+j}, v{vP+j} row_half_mirror row_mask:0xf bank_mask:0x5")
        for j in range(2):
            c.append(f"v_add_f32_dpp v{vP+j}, v{vP+j+2}, v{vP+j+2} row_half_mirror row_mask:0xf bank_mask:0xa")
        c.append(f"v_add_f32_dpp v{vP+2}, v{vP}, v{vP} quad_perm:[1,0,3,2] row_mask:0xf bank_mask:0xf")
        c.append(f"v_add_f32_dpp v{vP+3}, v{vP+1}, v{vP+1} quad_perm:[1,0,3,2] row_mask:0xf bank_mask:0xf")
        c.append(f"v_cndmask_b32_e64 v{vP}, v{vP+2}, v{vP+3}, s[{sOdd}:{sOdd+1}]")
        c.append(f"v_add_f32_dpp v{vP}, v{vP}, v{vP} quad_perm:[2,3,0,1] row_mask:0xf bank_mask:0xf")
        if opt.mimic:
            c += [f"v_cvt_pk_bf16_f32 v{vP}, v{vP}, v{vP}", f"v_and_b32 v{vP}, 0xffff0000, v{vP}",
                  f"v_mul_f32 v{vP}, 0x3db504f3, v{vP}", f"v_cvt_pk_bf16_f32 v{vP}, v{vP}, v{vP}",
                  f"v_and_b32 v{vP}, 0xffff0000, v{vP}", f"v_mul_f32 v{vP}, 0xbfb8aa3b, v{vP}"]
        else:
            c.append(f"v_mul_f32 v{vP}, 0xbe0293ee, v{vP}")
        c += [f"v_exp_f32 v{vP}, v{vP}", f"v_add_f32 v{vP}, 1.0, v{vP}", f"v_rcp_f32 v{vP}, v{vP}",
              f"v_cvt_pk_bf16_f32 v{al}, v{vP}, 0", f"v_cvt_pk_bf16_f32 v{al+1}, 0, v{vP}"]
        return c
    def chain_alone(al):
        c = chain(al)
        gaps = {9: 1, 11: 1, 14: 2, 17 + (5 if opt.mimic else 0): 1, 19 + (5 if opt.mimic else 0): 1}
        for i, ins in enumerate(c):
            a(ins)
            if i in gaps: a(f"s_nop {gaps[i]-1}")
    def agg_stream(X, al, loads, Xdst):
        out = []
        for half in range(2):
            if half == 0:
                out.append(('x', flush(vPrev, vQP)))
            else:
                out.append(('x', "s_nop 1\n" + flush(vQP, vQP+1)))
            for u in range(4*half, 4*half+4):
                k = 4*(u >> 1) + (u & 1)
                for r in range(4):
                    if "noagg" in opt.exp:
                        out.append(('v', "s_nop 0")); out.append(('v', "s_nop 0")); continue
                    out.append(('v', f"v_dot2c_f32_bf16_dpp v{vAcc+2*r}, v{al}, v{X+4*u+r} row_newbcast:{k} row_mask:0xf bank_mask:0xf"))
                    out.append(('v', f"v_dot2c_f32_bf16_dpp v{vAcc+2*r+1}, v{al+1}, v{X+4*u+r} row_newbcast:{k} row_mask:0xf bank_mask:0xf"))
                if loads and "noload" not in opt.exp:
                    out.append(('x', f"buffer_load_dwordx4 {vr(Xdst+4*u,4)}, v{vE+u}, s[{sX}:{sX+3}], 0 offen"))
        return out
    def next_prep():
        a("s_waitcnt lgkmcnt(0)")
        a(f"v_add_u32 v{vT0}, v{vQN}, v{vQB}")
        a(f"v_add_u32 v{vT1}, v{vQN+1}, v{vQB}")
    def rotate(nxt):
        a(f"v_mov_b32 v{vQP}, v{vQC}")
        a(f"v_mov_b32 v{vQP+1}, v{vQC+1}")
        if nxt:
            a(f"v_mov_b32 v{vQC}, v{vQN}")
            a(f"v_mov_b32 v{vQC+1}, v{vQN+1}")
            a(f"v_add_u32 v{vLA}, 32, v{vLA}")
            a(f"v_add_u32 v{vUA}, 8, v{vUA}")
    def mid(cur, prev, al_cur, al_prev, nxt):
        a("s_waitcnt lgkmcnt(0)")
        if nxt:
            a(f"""
            ds_read_b128 {vr(vE,4)}, v{vLA} offset:{LIST+32}
            ds_read_b128 {vr(vE+4,4)}, v{vLA} offset:{LIST+48}
            ds_read_b64 {vr(vQN,2)}, v{vUA} offset:{UNODE+8}
            """)
        dots(cur, ("s_waitcnt vmcnt(4)", "s_waitcnt vmcnt(0)"))
        if nxt:
            next_prep()
            for u in range(8):
                a(f"v_add_u32 v{vE+u}, v{vE+u}, v{vC16}")
            a(f"ds_read_b128 {vr(vQ,4)}, v{vT0}")
            a(f"ds_read_b128 {vr(vQ+4,4)}, v{vT1}")
        else:
            a("s_nop 2")
        c = chain(al_cur)
        s_ = agg_stream(prev, al_prev, nxt, prev)
        nv = sum(1 for k, _ in s_ if k == 'v')
        ci, vi = 0, 0
        for k, t in s_:
            a(t)
            if k == 'v':
                vi += 1
                if ci < len(c) and vi >= (ci + 1) * nv // (len(c) + 1) and vi % 1 == 0:
                    a(c[ci]); ci += 1
        assert ci == len(c)
        a(f"v_mov_b32 v{vPrev}, v{vQP+1}")
        rotate(nxt)
    def final(X, al):
        for k, t in agg_stream(X, al, False, None):
            a(t)
        a("s_nop 2")
        a(flush(vQP+1, None))
        a("s_branch K2_MAIN_DONE")
    a("K2_FIRST:")
    a(f"""
    s_waitcnt lgkmcnt(0)
    s_cmp_eq_u32 s{sHB}, 1
    s_cbranch_scc1 K2_F1
    """)
    dots(vXA, ("s_waitcnt vmcnt(12)", "s_waitcnt vmcnt(8)"))
    next_prep()
    a(f"ds_read_b128 {vr(vQ,4)}, v{vT0}")
    a(f"ds_read_b128 {vr(vQ+4,4)}, v{vT1}")
    chain_alone(vAl[0])
    rotate(True)
    a(f"""
    s_sub_u32 s{sHB}, s{sHB}, 1
    K2_LOOP:
    """)
    if opt.prio: a("s_setprio 2")
    a(f"""
    s_cmp_eq_u32 s{sHB}, 1
    s_cbranch_scc1 K2_TAILB
    """)
    mid(vXB, vXA, vAl[1], vAl[0], True)
    a(f"s_sub_u32 s{sHB}, s{sHB}, 1")
    if opt.prio: a("s_setprio 1")
    a(f"""
    s_cmp_eq_u32 s{sHB}, 1
    s_cbranch_scc1 K2_TAILA
    """)
    mid(vXA, vXB, vAl[0], vAl[1], True)
    a(f"""
    s_sub_u32 s{sHB}, s{sHB}, 1
    s_branch K2_LOOP
    K2_TAILB:
    """)
    mid(vXB, vXA, vAl[1], vAl[0], False)
    if opt.prio: a("s_setprio 0")
    final(vXB, vAl[1])
    a("K2_TAILA:")
    mid(vXA, vXB, vAl[0], vAl[1], False)
    if opt.prio: a("s_setprio 0")
    final(vXA, vAl[0])
    a("K2_F1:")
    dots(vXA, ("s_waitcnt vmcnt(4)", "s_waitcnt vmcnt(0)"))
    a("s_nop 2")
    chain_alone(vAl[0])
    rotate(False)
    a("s_nop 1")
    final(vXA, vAl[0])
    a("K2_MAIN_DONE:")
    if opt.prio: a("s_setprio 0")
    if "cyc" in opt.exp: st.stamp(a, True)
    st.stamp(a)
    vSf, vSl = vE, vE+1
    a(f"""
    s_cmp_eq_u32 s{sWave}, 15
    s_cbranch_scc0 K2_NOTBL
    s_add_u32 s3, s{sQ}, 1
    s_lshl_b32 s3, s3, 1
    v_cvt_f32_u32 v{vT0}, s3
    s_mul_i32 s3, s3, s{sRem}
    s_lshl_b32 s{sP}, s3, 2
    s_lshl_b32 s3, s{sQ}, 1
    v_cvt_f32_u32 v{vT1}, s3
    v_rcp_f32 v{vT0}, v{vT0}
    v_rcp_f32 v{vT1}, v{vT1}
    s_lshl_b32 s3, s{sRem}, 2
    """)
    for (dst, last) in ((vSf, False), (vSl, True)):
        if not last:
            a(f"v_lshrrev_b32 v{vT2}, 2, v{vStart}")
        else:
            a(f"""
            v_add_u32 v{vT2}, v{vStart}, v{vPc}
            v_lshrrev_b32 v{vT2}, 2, v{vT2}
            v_add_u32 v{vT2}, -1, v{vT2}
            """)
        a(f"""
        v_cmp_gt_u32 vcc, s{sP}, v{vT2}
        v_cvt_f32_u32 v{vT3}, v{vT2}
        v_add_f32 v{vT3}, 0.5, v{vT3}
        v_mul_f32 v{vT3}, v{vT3}, v{vT0}
        v_cvt_u32_f32 v{vT3}, v{vT3}
        v_subrev_u32 v{vT2}, s{sP}, v{vT2}
        v_cvt_f32_u32 v{vT2}, v{vT2}
        v_add_f32 v{vT2}, 0.5, v{vT2}
        v_mul_f32 v{vT2}, v{vT2}, v{vT1}
        v_cvt_u32_f32 v{vT2}, v{vT2}
        v_add_u32 v{vT2}, s3, v{vT2}
        v_cndmask_b32_e64 v{dst}, v{vT2}, v{vT3}, vcc
        """)
    a(f"""
    v_sub_u32 v{vT0}, v{vSl}, v{vSf}
    v_add_u32 v{vT0}, 1, v{vT0}
    v_cmp_lt_u32 vcc, 0, v{vPc}
    v_add_u32 v{vT1}, v{vSf}, v{vLane}
    v_lshlrev_b32 v{vT1}, 9, v{vT1}
    v_cndmask_b32_e64 v{vT0}, 0, v{vT0}, vcc
    v_add_u32 v{vT1}, {PIECE}, v{vT1}
    v_lshlrev_b32 v{vT3}, 2, v{vLane}
    v_mov_b32 v{vT2}, {ZROW}
    ds_write_b32 v{vT3}, v{vT0} offset:{NPC}
    """)
    for j in range(4):
        a(f"""
        v_cmp_lt_u32 vcc, {j}, v{vT0}
        v_add_u32 v{vT3}, {512*j}, v{vT1}
        s_nop 0
        v_cndmask_b32_e64 v{vE+4+j}, v{vT2}, v{vT3}, vcc
        """)
    a(f"""
    v_lshlrev_b32 v{vT0}, 4, v{vLane}
    ds_write_b128 v{vT0}, {vr(vE+4,4)} offset:{TBL}
    K2_NOTBL:
    """)
    vA8 = vXB
    a(f"""
    s_add_u32 s3, s{sR}, 1
    s_cmp_ge_u32 s3, s{sNR}
    s_cselect_b32 s{sT}, 8, 0
    s_cmp_ge_u32 s{sWave}, s{sT}
    s_cbranch_scc1 K2_NOA
    s_and_b32 s{sP}, s{sWave}, 3
    s_lshr_b32 s{sNH}, s{sWave}, 2
    """)
    tile_a_addr(a, vWa, vLane, vT2, vT3, sP, WV)
    for ks in range(8):
        if ks == 6: a("s_waitcnt lgkmcnt(4)")
        a(f"ds_read_b64_tr_b16 {vr(vA8+4*ks,2)}, v{vWa} offset:{ks*4096}")
        a(f"ds_read_b64_tr_b16 {vr(vA8+4*ks+2,2)}, v{vWa} offset:{ks*4096 + 1024}")
    a(f"""
    v_and_b32 v{vRow}, 31, v{vLane}
    s_lshl_b32 s3, s{sNH}, 5
    v_add_u32 v{vRow}, s3, v{vRow}
    """)
    tile_b_addr(a, vBa, vRow, vLane, vT3)
    a(f"""
    K2_NOA:
    s_waitcnt lgkmcnt(0)
    s_barrier
    """)
    st.stamp(a)
    vB = vE
    vRd = vXA
    vNp = vT3
    a(f"""
    s_cmp_ge_u32 s{sWave}, 13
    s_cbranch_scc1 K2_RED_DONE
    v_lshrrev_b32 v{vT0}, 4, v{vLane}
    s_lshl_b32 s3, s{sWave}, 2
    v_add_u32 v{vT0}, s3, v{vT0}
    v_lshlrev_b32 v{vT1}, 4, v{vT0}
    v_lshlrev_b32 v{vT2}, 2, v{vT0}
    ds_read_b128 {vr(vB,4)}, v{vT1} offset:{TBL}
    ds_read_b32 v{vNp}, v{vT2} offset:{NPC}
    s_waitcnt lgkmcnt(0)
    """)
    for j in range(3):
        a(f"""
        v_add_u32 v{vB+j}, v{vB+j}, v{vC16}
        ds_read_b128 {vr(vRd+8*j,4)}, v{vB+j}
        ds_read_b128 {vr(vRd+8*j+4,4)}, v{vB+j} offset:256
        """)
    for j in range(3):
        a(f"s_waitcnt lgkmcnt({4-2*j})")
        for i in range(8):
            a(f"v_add_f32 v{vTot+i}, v{vTot+i}, v{vRd+8*j+i}")
    a(f"""
    s_mov_b32 s{sT}, 3
    K2_XL:
    v_cmp_lt_u32 vcc, s{sT}, v{vNp}
    s_cbranch_vccz K2_RED_DONE
    s_lshl_b32 s3, s{sT}, 9
    v_add_u32 v{vT0}, s3, v{vB}
    s_mov_b64 exec, vcc
    ds_read_b128 {vr(vRd,4)}, v{vT0}
    ds_read_b128 {vr(vRd+4,4)}, v{vT0} offset:256
    s_waitcnt lgkmcnt(0)
    """)
    for i in range(8):
        a(f"v_add_f32 v{vTot+i}, v{vTot+i}, v{vRd+i}")
    a(f"""
    s_mov_b64 exec, -1
    s_add_u32 s{sT}, s{sT}, 1
    s_branch K2_XL
    K2_RED_DONE:
    s_add_u32 s{sR}, s{sR}, 1
    s_cmp_ge_u32 s{sR}, s{sNR}
    s_cbranch_scc1 K2_EPI
    s_barrier
    """)
    a(f"""
    s_cmp_ge_u32 s{sWave}, 4
    s_cbranch_scc1 K2_RZ
    v_mov_b32 v{vT2}, 0
    v_lshlrev_b32 v{vT3}, 2, v0
    ds_write_b32 v{vT3}, v{vT2} offset:{HIST}
    K2_RZ:
    v_mov_b32 v{vCand}, -1
    v_mov_b32 v{vCand+1}, -1
    v_mov_b32 v{vCand+2}, -1
    v_mov_b32 v{vCand+3}, -1
    v_mov_b32 v{vHdr}, 0
    v_cmp_gt_u32 vcc, {C*4}, v0
    s_and_saveexec_b64 s[{sSave}:{sSave+1}], vcc
    s_cbranch_execz K2_R1
    v_lshrrev_b32 v{vT0}, 2, v0
    v_lshlrev_b32 v{vT2}, 4, v{vT0}
    v_add_u32 v{vT2}, {WS_HDR}, v{vT2}
    buffer_load_dword v{vT3}, v{vT2}, s[{sWS}:{sWS+3}], 0 offen
    v_lshlrev_b32 v{vT0}, 13, v{vT0}
    v_add_u32 v{vT0}, {WS_OVF}, v{vT0}
    s_lshl_b32 s3, s{sR}, 4
    s_sub_u32 s3, s3, 13
    v_and_b32 v{vT1}, 3, v0
    v_lshl_add_u32 v{vT1}, v{vT1}, 2, s3
    v_lshl_add_u32 v{vT0}, v{vT1}, 2, v{vT0}
    buffer_load_dwordx4 {vr(vSo,4)}, v{vT0}, s[{sWS}:{sWS+3}], 0 offen offset:4
    s_waitcnt vmcnt(0)
    """)
    for i in range(4):
        a(f"""
        v_add_u32 v{vT2}, {i}, v{vT1}
        v_cmp_lt_u32 vcc, v{vT2}, v{vT3}
        v_lshrrev_b32 v{vT0}, 24, v{vSo+i}
        v_cmp_eq_u32 s[{sM}:{sM+1}], s{sBeta}, v{vT0}
        s_nop 0
        s_and_b64 vcc, vcc, s[{sM}:{sM+1}]
        s_nop 1
        v_cndmask_b32_e64 v{vCand+i}, v{vCand+i}, v{vSo+i}, vcc
        """)
    a(f"""
    K2_R1:
    s_mov_b64 exec, s[{sSave}:{sSave+1}]
    v_mov_b32 v{vT3}, 1
    s_waitcnt lgkmcnt(0)
    s_barrier
    s_branch K2_DECODE
    K2_EPI:
    """)
    st.stamp(a)
    vAcc16, vB8 = 24, vXA
    a(f"""
    s_cmp_ge_u32 s{sWave}, 13
    s_cbranch_scc1 K2_WB_DONE
    v_lshrrev_b32 v{vT0}, 4, v{vLane}
    s_lshl_b32 s3, s{sWave}, 2
    v_add_u32 v{vT0}, s3, v{vT0}
    v_lshlrev_b32 v{vT1}, 4, v{vT0}
    v_xor_b32 v{vT1}, v{vT1}, v{vC16}
    v_and_b32 v{vT1}, 0xf0, v{vT1}
    v_lshl_add_u32 v{vT0}, v{vT0}, 8, v{vT1}
    """)
    for i in range(4):
        a(f"v_cvt_pk_bf16_f32 v{vP+i}, v{vTot+2*i}, v{vTot+2*i+1}")
    a(f"""
    ds_write_b128 v{vT0}, {vr(vP,4)} offset:{AGGB}
    K2_WB_DONE:
    s_cmp_ge_u32 s{sWave}, 8
    s_cbranch_scc1 K2_EB
    """)
    for ks in range(8):
        a(f"v_xor_b32 v{vE+ks}, {32*ks}, v{vBa}")
    a(f"""
    s_mul_i32 s3, s{sBeta}, {T*256}
    s_lshl_b32 s{sCnt}, s{sP}, 6
    s_add_u32 s3, s3, s{sCnt}
    v_lshrrev_b32 v{vT0}, 5, v{vLane}
    v_lshlrev_b32 v{vT1}, 8, v{vRow}
    v_lshl_add_u32 v{vT1}, v{vT0}, 5, v{vT1}
    v_add_u32 v{vT1}, s3, v{vT1}
    K2_EB:
    s_waitcnt lgkmcnt(0)
    s_barrier
    s_cmp_ge_u32 s{sWave}, 8
    s_cbranch_scc1 K2_FIN
    """)
    for ks in range(8):
        a(f"ds_read_b128 {vr(vB8+4*ks,4)}, v{vE+ks} offset:{AGGB}")
    a(f"v_cmp_gt_u32 vcc, {T}, v{vRow}")
    for ks in range(8):
        a(f"s_waitcnt lgkmcnt({7-ks})")
        c = "0" if ks == 0 else vr(vAcc16,16)
        a(f"v_mfma_f32_32x32x16_bf16 {vr(vAcc16,16)}, {vr(vA8+4*ks,4)}, {vr(vB8+4*ks,4)}, {c}")
    a("s_nop 7")
    a("s_nop 3")
    for i in range(8):
        a(f"v_cvt_pk_bf16_f32 v{vQ+i}, v{vAcc16+2*i}, v{vAcc16+2*i+1}")
    a(f"""
    s_and_saveexec_b64 s[{sSave}:{sSave+1}], vcc
    s_cbranch_execz K2_ST_DONE
    buffer_store_dwordx4 {vr(vQ,4)}, v{vT1}, s[{sOUT}:{sOUT+3}], 0 offen {opt.outst}
    buffer_store_dwordx4 {vr(vQ+4,4)}, v{vT1}, s[{sOUT}:{sOUT+3}], 0 offen offset:16 {opt.outst}
    K2_ST_DONE:
    s_mov_b64 exec, s[{sSave}:{sSave+1}]
    K2_FIN:
    """)
    st.stamp(a)
    if opt.stamps:
        a("s_waitcnt vmcnt(0)")
        st.stamp(a)
    st.flush(a, sWS, vT0, sWave)
    a("""
    K2_END:
    s_endpgm
    """)
    return a.text(), LDS, 128

def build(opt):
    k1, lds1, v1 = gen_k1(opt)
    k2, lds2, v2 = gen_k2(opt)
    n1, n2 = NAME + "_k1_kernel", NAME + "_k2_kernel"
    out = HEADER
    for ch in opt.seq:
        if ch == "1": out += f"; @launch kernel={n1} grid=({C},1,1) block=(512,1,1) lds={max(lds1, opt.lds1)}\n"
        if ch == "2": out += f"; @launch kernel={n2} grid=({NB},1,1) block=(1024,1,1) lds={lds2}\n"
    out += '.amdgcn_target "amdgcn-amd-amdhsa--gfx950"\n.text\n'
    for n, k in ((n1, k1), (n2, k2)):
        out += f".globl {n}\n.p2align 8\n.type {n},@function\n" + k
    out += '.section .rodata,"a"\n.p2align 6\n'
    out += kd(n1, v1) + ".p2align 6\n" + kd(n2, v2)
    return out

def parse(argv=None):
    p = argparse.ArgumentParser()
    p.add_argument("-o", default="cdna_kernels/" + NAME + ".s")
    p.add_argument("--stamps", action="store_true")
    p.add_argument("--prefetch", type=int, default=0)
    p.add_argument("--mimic", type=int, default=0)
    p.add_argument("--prio", type=int, default=0)
    p.add_argument("--seq", default="12")
    p.add_argument("--exp", default="")
    p.add_argument("--cellst", default="")
    p.add_argument("--outst", default="")
    p.add_argument("--lds1", type=int, default=83968)
    return p.parse_args(argv)

if __name__ == "__main__":
    o = parse()
    open(o.o, "w").write(build(o))
    print("wrote", o.o)
```

```python
import sys, argparse
from gen import A, vr, Stamps, scan64, kd, HEADER, NAME

N, E, D = 12500, 400000, 128
T = 49
NB = 256
CH = 1600
C = 250
XBYTES = N * 256
EBYTES = E * 4
WS_CELLS = 0
CELLROW = 16384
WS_HDR = 0x400000
WS_OVF = 0x410000
OVF_STRIDE = 8192
WS_USED = WS_OVF + 256 * OVF_STRIDE
WS_STAMP = 0x1000000
OOB = 0x40000000
DUMMY = 49

def srd_tail(a, d, size):
    a(f"s_mov_b32 s{d+2}, {size}")
    a(f"s_mov_b32 s{d+3}, 0x00020000")

def gen_k1(opt):
    a = A()
    HIST, OVC, JUNK, STAGE = 0, 1024, 1040, 2048
    LDS = STAGE + 16384 + 64
    st = Stamps(opt.stamps, 60, WS_STAMP)
    sX, sSRC, sDST, sWS = 4, 8, 12, 16
    sWave = 20
    vDst, vSrc = 4, 8
    vEnt, vAdr, vRank = 12, 16, 20
    vT0, vT1, vT2, vT3 = 24, 25, 26, 27
    vNeg, vOne, vZero, vGo = 28, 32, 33, 34
    vJ = 36
    a(f"""
    {NAME}_k1_kernel:
    s_cmp_ge_u32 s2, {C}
    s_cbranch_scc1 K1_END
    s_load_dwordx2 s[{sDST}:{sDST+1}], s[0:1], 16
    s_load_dwordx2 s[{sSRC}:{sSRC+1}], s[0:1], 8
    s_load_dwordx2 s[{sWS}:{sWS+1}], s[0:1], 56
    s_load_dwordx2 s[{sX}:{sX+1}], s[0:1], 0
    """)
    st.stamp(a)
    srd_tail(a, sDST, EBYTES); srd_tail(a, sSRC, EBYTES); srd_tail(a, sX, XBYTES)
    srd_tail(a, sWS, WS_USED if not opt.stamps else 0x2000000)
    a(f"""
    v_lshrrev_b32 v{vT1}, 6, v0
    s_mul_i32 s21, s2, {CH*4}
    v_lshlrev_b32 v{vT0}, 4, v0
    v_readfirstlane_b32 s{sWave}, v{vT1}
    v_add_u32 v{vT2}, s21, v{vT0}
    v_mov_b32 v{vNeg}, -1
    v_mov_b32 v{vNeg+1}, -1
    v_mov_b32 v{vNeg+2}, -1
    v_mov_b32 v{vNeg+3}, -1
    v_mov_b32 v{vZero}, 0
    v_mov_b32 v{vOne}, 1
    v_cmp_gt_u32 vcc, {CH//4}, v0
    s_and_saveexec_b64 s[40:41], vcc
    s_waitcnt lgkmcnt(0)
    s_cbranch_execz K1_EDGE0_DONE
    buffer_load_dwordx4 {vr(vDst,4)}, v{vT2}, s[{sDST}:{sDST+3}], 0 offen
    buffer_load_dwordx4 {vr(vSrc,4)}, v{vT2}, s[{sSRC}:{sSRC+3}], 0 offen
    K1_EDGE0_DONE:
    s_mov_b64 exec, s[40:41]
    ds_write_b128 v{vT0}, {vr(vNeg,4)} offset:{STAGE}
    ds_write_b128 v{vT0}, {vr(vNeg,4)} offset:{STAGE+8192}
    v_lshlrev_b32 v{vT1}, 2, v0
    s_cmp_ge_u32 s{sWave}, 5
    s_cbranch_scc1 K1_NOZ
    ds_write_b32 v{vT1}, v{vZero} offset:{HIST}
    K1_NOZ:
    """)
    if opt.touch:
        a(f"""
        s_cmp_eq_u32 s{sWave}, 7
        s_cbranch_scc0 K1_NOTOUCH
        s_load_dwordx4 s[24:27], s[0:1], 24
        s_load_dwordx2 s[28:29], s[0:1], 40
        v_and_b32 v{vT2}, 63, v0
        v_lshlrev_b32 v{vT2}, 16, v{vT2}
        buffer_load_dword v{vJ}, v{vT2}, s[{sX}:{sX+3}], 0 offen
        s_waitcnt lgkmcnt(0)
        s_mov_b32 s32, s24
        s_mov_b32 s33, s25
        s_mov_b32 s34, 32768
        s_mov_b32 s35, 0x00020000
        s_mov_b32 s36, s26
        s_mov_b32 s37, s27
        s_mov_b32 s38, 32768
        s_mov_b32 s39, 0x00020000
        v_mov_b32 v{vT3}, 0
        buffer_load_dword v{vJ+1}, v{vT3}, s[32:35], 0 offen
        buffer_load_dword v{vJ+2}, v{vT3}, s[36:39], 0 offen
        """)
        if opt.touch == 2:
            a(f"""
            s_mov_b32 s30, {XBYTES}
            s_mov_b32 s31, 0x00020000
            buffer_load_dword v{vJ+3}, v{vT2}, s[28:31], 0 offen
            """)
        a("K1_NOTOUCH:")
    if opt.prefetch == 1:
        per = 100096
        a(f"""
        s_cmp_eq_u32 s{sWave}, 7
        s_cbranch_scc0 K1_NOPF
        s_lshr_b32 s22, s2, 3
        s_mul_i32 s22, s22, {per}
        v_and_b32 v{vT2}, 63, v0
        v_lshlrev_b32 v{vT2}, 7, v{vT2}
        """)
        for i in range(13):
            a(f"buffer_load_dword v{vJ}, v{vT2}, s[{sX}:{sX+3}], s22 offen")
            a(f"s_add_u32 s22, s22, 8192")
        a("K1_NOPF:")
    a(f"""
    v_lshrrev_b32 v{vT1}, 2, v0
    v_lshlrev_b32 v{vGo}, 14, v{vT1}
    v_and_b32 v{vT1}, 3, v0
    v_lshl_add_u32 v{vGo}, v{vT1}, 4, v{vGo}
    s_and_b32 s22, s2, 7
    s_lshl_b32 s22, s22, 5
    s_lshr_b32 s23, s2, 3
    s_add_u32 s22, s22, s23
    s_lshl_b32 s22, s22, 6
    s_add_u32 s23, s22, {128*CELLROW}
    s_waitcnt lgkmcnt(0)
    s_barrier
    """)
    st.stamp(a)
    a(f"""
    v_cmp_gt_u32 vcc, {CH//4}, v0
    s_and_saveexec_b64 s[40:41], vcc
    s_cbranch_execz K1_EDGE1_DONE
    s_mov_b32 s21, -{T}
    s_waitcnt vmcnt(0)
    """)
    st.stamp(a)
    for i in range(4):
        a(f"""
        v_mul_u32_u24 v{vT0}, 21400, v{vDst+i}
        v_lshrrev_b32 v{vT0}, 20, v{vT0}
        v_lshlrev_b32 v{vAdr+i}, 2, v{vT0}
        ds_add_rtn_u32 v{vRank+i}, v{vAdr+i}, v{vOne} offset:{HIST}
        v_mad_i32_i24 v{vT1}, v{vT0}, s21, v{vDst+i}
        v_lshl_or_b32 v{vEnt+i}, v{vSrc+i}, 8, v{vT1}
        v_lshl_or_b32 v{vEnt+i}, v{vT0}, 24, v{vEnt+i}
        v_lshlrev_b32 v{vAdr+i}, 4, v{vAdr+i}
        """)
    a(f"v_mov_b32 v{vT3}, 16384")
    for i in range(4):
        a(f"""
        s_waitcnt lgkmcnt({3-i})
        v_cmp_gt_u32 s[{42+2*i}:{43+2*i}], 16, v{vRank+i}
        v_lshl_add_u32 v{vT0}, v{vRank+i}, 2, v{vAdr+i}
        s_nop 0
        v_cndmask_b32_e64 v{vT0}, v{vT3}, v{vT0}, s[{42+2*i}:{43+2*i}]
        ds_write_b32 v{vT0}, v{vEnt+i} offset:{STAGE}
        """)
    a(f"""
    s_and_b64 s[50:51], s[42:43], s[44:45]
    s_and_b64 s[52:53], s[46:47], s[48:49]
    s_and_b64 s[50:51], s[50:51], s[52:53]
    s_andn2_b64 s[50:51], exec, s[50:51]
    s_cbranch_scc0 K1_EDGE1_DONE
    s_mov_b64 s[54:55], exec
    s_mul_i32 s21, s2, {OVF_STRIDE}
    s_add_u32 s21, s21, {WS_OVF + 4}
    s_lshl_b32 s24, s2, 4
    s_add_u32 s24, s24, {WS_HDR + 4}
    v_mov_b32 v{vT3}, {OVC}
    """)
    for i in range(4):
        a(f"""
        s_andn2_b64 exec, s[54:55], s[{42+2*i}:{43+2*i}]
        s_cbranch_execz K1_OV_{i}
        ds_add_rtn_u32 v{vT0}, v{vT3}, v{vOne}
        s_waitcnt lgkmcnt(0)
        v_cmp_gt_u32 vcc, 3, v{vT0}
        v_lshl_add_u32 v{vT1}, v{vT0}, 2, s21
        v_lshl_add_u32 v{vT2}, v{vT0}, 2, s24
        v_cndmask_b32_e64 v{vT0}, v{vT1}, v{vT2}, vcc
        buffer_store_dword v{vEnt+i}, v{vT0}, s[{sWS}:{sWS+3}], 0 offen
        K1_OV_{i}:
        """)
    a(f"""
    K1_EDGE1_DONE:
    s_mov_b64 exec, s[40:41]
    v_lshlrev_b32 v{vT0}, 4, v0
    s_waitcnt lgkmcnt(0)
    s_barrier
    """)
    st.stamp(a)
    a(f"""
    ds_read_b128 {vr(vEnt,4)}, v{vT0} offset:{STAGE}
    ds_read_b128 {vr(vAdr,4)}, v{vT0} offset:{STAGE+8192}
    s_cmp_eq_u32 s{sWave}, 0
    s_cbranch_scc0 K1_NOHDR
    v_mov_b32 v{vT3}, {OVC}
    ds_read_b32 v{vRank}, v{vT3}
    s_lshl_b32 s24, s2, 4
    s_add_u32 s24, s24, {WS_HDR}
    v_mov_b32 v{vT2}, s24
    s_waitcnt lgkmcnt(0)
    s_mov_b64 exec, 1
    buffer_store_dword v{vRank}, v{vT2}, s[{sWS}:{sWS+3}], 0 offen {opt.cellst}
    s_mov_b64 exec, -1
    K1_NOHDR:
    s_waitcnt lgkmcnt(1)
    buffer_store_dwordx4 {vr(vEnt,4)}, v{vGo}, s[{sWS}:{sWS+3}], s22 offen {opt.cellst}
    s_waitcnt lgkmcnt(0)
    buffer_store_dwordx4 {vr(vAdr,4)}, v{vGo}, s[{sWS}:{sWS+3}], s23 offen {opt.cellst}
    """)
    st.stamp(a)
    if opt.stamps:
        a("s_waitcnt vmcnt(0)")
        st.stamp(a)
    st.flush(a, sWS, vT0, sWave)
    a("""
    K1_END:
    s_endpgm
    """)
    return a.text(), LDS, 40

def tile_a_addr(a, vdst, vlane, t0, t1, sP, wbase):
    a(f"""
    v_bfe_u32 v{t0}, v{vlane}, 2, 2
    v_lshrrev_b32 v{t1}, 5, v{vlane}
    v_lshl_add_u32 v{vdst}, v{t1}, 3, v{t0}
    v_lshlrev_b32 v{vdst}, 8, v{vdst}
    v_xor_b32 v{t0}, s{sP}, v{t0}
    v_lshl_add_u32 v{vdst}, v{t0}, 6, v{vdst}
    v_bfe_u32 v{t0}, v{vlane}, 4, 1
    v_bfe_u32 v{t1}, v{vlane}, 1, 1
    v_lshl_add_u32 v{t0}, v{t0}, 1, v{t1}
    v_and_b32 v{t1}, 1, v{vlane}
    v_lshl_add_u32 v{t0}, v{t1}, 2, v{t0}
    v_lshl_add_u32 v{vdst}, v{t0}, 3, v{vdst}
    v_add_u32 v{vdst}, {wbase}, v{vdst}
    """)

def tile_b_addr(a, vdst, vrow, vlane, t0):
    a(f"""
    v_lshrrev_b32 v{t0}, 5, v{vlane}
    v_xor_b32 v{t0}, v{t0}, v{vrow}
    v_and_b32 v{t0}, 15, v{t0}
    v_lshlrev_b32 v{t0}, 4, v{t0}
    v_lshl_add_u32 v{vdst}, v{vrow}, 8, v{t0}
    """)

def gen_k2(opt):
    a = A()
    HIST, MAXC, ZROW, TBL = 0, 256, 512, 1024
    NPC = TBL + 1024
    LIST = NPC + 256
    LISTW = 5120
    UNODE = LIST + LISTW * 4
    QS = UNODE + 1280 * 4
    AGGB = QS + 52 * 256
    PIECE = AGGB + 64 * 256
    XT = PIECE
    WQ = XT + 16384
    WV = PIECE + (DUMMY + 64) * 512
    LDS = WV + 32768
    assert WQ + 32768 <= WV
    st = Stamps(opt.stamps, 64, WS_STAMP + 0x40000)
    sX, sWQ, sWV, sOUT, sWS = 4, 8, 12, 16, 20
    sBeta, sWave, sR, sNR = 24, 25, 26, 27
    sOdd = 28
    sBeta24, sHB, sP, sNH, s196 = 30, 31, 32, 33, 34
    sM = 36
    sSave = 50
    sCnt, sQ, sRem, sT = 52, 53, 54, 55
    vC16, vPB, vLA, vUA, vPrev = 1, 2, 3, 4, 5
    vQP, vQC, vQN = 6, 8, 10
    vAl = (12, 14)
    vQB = 16
    vT0, vT1, vT2, vT3 = 17, 18, 19, 20
    vLane, vStart, vPc = 21, 22, 23
    vAcc, vP, vE, vQ = 24, 32, 40, 48
    vXA, vXB, vTot = 56, 88, 120
    vCand, vHdr, vSo, vN4, vRk = 56, 60, 64, 72, 80
    vCnt = 47
    vWa, vBa, vRow, vQst = 12, 13, 14, 15
    npf = 1 if opt.prefetch == 2 else 0
    a(f"""
    {NAME}_k2_kernel:
    s_cmp_ge_u32 s2, {NB}
    s_cbranch_scc1 K2_END
    s_load_dwordx2 s[{sWS}:{sWS+1}], s[0:1], 56
    s_load_dwordx2 s[{sX}:{sX+1}], s[0:1], 0
    s_load_dwordx2 s[{sWQ}:{sWQ+1}], s[0:1], 24
    s_load_dwordx2 s[{sWV}:{sWV+1}], s[0:1], 32
    s_load_dwordx2 s[{sOUT}:{sOUT+1}], s[0:1], 40
    """)
    st.stamp(a)
    srd_tail(a, sWS, WS_USED if not opt.stamps else 0x2000000)
    a(f"""
    v_lshrrev_b32 v{vT0}, 6, v0
    s_and_b32 s{sBeta}, s2, 7
    s_lshl_b32 s{sBeta}, s{sBeta}, 5
    v_readfirstlane_b32 s{sWave}, v{vT0}
    s_lshr_b32 s3, s2, 3
    s_add_u32 s{sBeta}, s{sBeta}, s3
    v_mov_b32 v{vCand}, -1
    v_mov_b32 v{vCand+1}, -1
    v_mov_b32 v{vCand+2}, -1
    v_mov_b32 v{vCand+3}, -1
    v_mov_b32 v{vHdr}, 0
    v_lshlrev_b32 v{vT0}, 4, v0
    v_bfe_u32 v{vT1}, v0, 2, 5
    s_lshl_b32 s3, s{sBeta}, 14
    s_mov_b32 s{sT}, {WS_HDR}
    v_lshlrev_b32 v{vT1}, 3, v{vT1}
    v_lshrrev_b32 v{vT2}, 7, v0
    v_add_u32 v{vT1}, v{vT1}, v{vT2}
    v_cmp_gt_u32 vcc, {C}, v{vT1}
    s_and_saveexec_b64 s[{sSave}:{sSave+1}], vcc
    s_waitcnt lgkmcnt(0)
    buffer_load_dwordx4 {vr(vCand,4)}, v{vT0}, s[{sWS}:{sWS+3}], s3 offen
    s_mov_b64 exec, s[{sSave}:{sSave+1}]
    s_cmp_ge_u32 s{sWave}, 4
    s_cbranch_scc1 K2_L1
    v_cmp_gt_u32 vcc, {C}, v0
    s_and_saveexec_b64 s[{sSave}:{sSave+1}], vcc
    buffer_load_dwordx4 {vr(vHdr,4)}, v{vT0}, s[{sWS}:{sWS+3}], s{sT} offen
    s_mov_b64 exec, s[{sSave}:{sSave+1}]
    v_mov_b32 v{vT2}, 0
    v_lshlrev_b32 v{vT3}, 2, v0
    ds_write_b32 v{vT3}, v{vT2} offset:{HIST}
    K2_L1:
    s_waitcnt lgkmcnt(0)
    s_barrier
    """)
    st.stamp(a)
    srd_tail(a, sX, XBYTES); srd_tail(a, sWQ, 32768); srd_tail(a, sWV, 32768); srd_tail(a, sOUT, XBYTES)
    a(f"""
    v_and_b32 v{vLane}, 63, v0
    v_bfe_u32 v{vT0}, v0, 4, 2
    v_and_b32 v{vT1}, 15, v0
    v_lshlrev_b32 v{vC16}, 4, v{vT1}
    s_cmp_ge_u32 s{sWave}, 13
    s_cbranch_scc1 K2_L2
    s_lshl_b32 s3, s{sWave}, 2
    v_add_u32 v{vT2}, s3, v{vT0}
    v_xor_b32 v{vT3}, v{vT2}, v{vT1}
    v_and_b32 v{vT3}, 15, v{vT3}
    v_lshlrev_b32 v{vT3}, 4, v{vT3}
    v_lshl_add_u32 v{vT3}, v{vT2}, 8, v{vT3}
    s_mul_i32 s3, s{sBeta}, {T*256}
    s_lshl_b32 s{sT}, s{sWave}, 10
    s_add_u32 s{sT}, s{sT}, {XT}
    s_mov_b32 m0, s{sT}
    s_nop 0
    buffer_load_dwordx4 v{vT3}, s[{sX}:{sX+3}], s3 offen lds
    K2_L2:
    v_lshlrev_b32 v{vT2}, 2, v{vT0}
    v_xor_b32 v{vT2}, v{vT2}, v{vT1}
    v_lshlrev_b32 v{vT2}, 4, v{vT2}
    v_lshl_add_u32 v{vT2}, v{vT0}, 8, v{vT2}
    s_lshl_b32 s3, s{sWave}, 11
    s_add_u32 s{sT}, s3, {WQ}
    s_mov_b32 m0, s{sT}
    s_add_u32 s{sT}, s{sT}, 1024
    buffer_load_dwordx4 v{vT2}, s[{sWQ}:{sWQ+3}], s3 offen lds
    s_mov_b32 m0, s{sT}
    s_add_u32 s{sCnt}, s3, 1024
    buffer_load_dwordx4 v{vT2}, s[{sWQ}:{sWQ+3}], s{sCnt} offen lds
    s_add_u32 s{sT}, s3, {WV}
    s_mov_b32 m0, s{sT}
    s_add_u32 s{sT}, s{sT}, 1024
    buffer_load_dwordx4 v{vT2}, s[{sWV}:{sWV+3}], s3 offen lds
    s_mov_b32 m0, s{sT}
    s_mov_b32 s{sR}, 0
    buffer_load_dwordx4 v{vT2}, s[{sWV}:{sWV+3}], s{sCnt} offen lds
    """)
    if npf:
        a(f"""
        s_lshr_b32 s3, s2, 3
        s_mul_i32 s3, s3, 100096
        v_lshlrev_b32 v{vT3}, 7, v0
        v_mov_b32 v{vT1}, {OOB}
        v_cmp_gt_u32 vcc, 782, v0
        s_nop 1
        v_cndmask_b32_e64 v{vT3}, v{vT1}, v{vT3}, vcc
        buffer_load_dword v{vQP}, v{vT3}, s[{sX}:{sX+3}], s3 offen
        """)
    a(f"""
    s_mov_b32 s{sOdd}, 0xaaaaaaaa
    s_mov_b32 s{sOdd+1}, 0xaaaaaaaa
    s_movk_i32 s{s196}, {T*4}
    s_lshl_b32 s{sBeta24}, s{sBeta}, 24
    v_add_u32 v{vQB}, {QS}, v{vC16}
    s_lshl_b32 s3, s{sWave}, 11
    s_add_u32 s3, s3, {PIECE}
    v_lshl_add_u32 v{vPB}, v{vT0}, 9, s3
    v_add_u32 v{vPB}, v{vPB}, v{vC16}
    """)
    for i in range(8):
        a(f"v_mov_b32 v{vTot+i}, 0")
    a(f"""
    s_and_b32 s{sP}, s{sWave}, 3
    s_lshr_b32 s{sNH}, s{sWave}, 2
    s_cmp_ge_u32 s{sWave}, 8
    s_cbranch_scc1 K2_NOQA
    """)
    tile_a_addr(a, vWa, vLane, vT2, vT3, sP, WQ)
    a(f"""
    v_and_b32 v{vRow}, 31, v{vLane}
    s_lshl_b32 s3, s{sNH}, 5
    v_add_u32 v{vRow}, s3, v{vRow}
    """)
    tile_b_addr(a, vBa, vRow, vLane, vT3)
    a(f"""
    v_lshrrev_b32 v{vT3}, 5, v{vLane}
    v_lshlrev_b32 v{vQst}, 8, v{vRow}
    v_lshl_add_u32 v{vQst}, v{vT3}, 5, v{vQst}
    s_lshl_b32 s3, s{sP}, 6
    s_add_u32 s3, s3, {QS}
    v_add_u32 v{vQst}, s3, v{vQst}
    K2_NOQA:
    v_mov_b32 v{vT3}, 1
    s_cmp_lt_u32 s{sWave}, 13
    s_cbranch_scc0 K2_WAIT4
    s_waitcnt vmcnt({5+npf})
    s_branch K2_WAITD
    K2_WAIT4:
    s_waitcnt vmcnt({4+npf})
    K2_WAITD:
    """)
    st.stamp(a)
    def decode(word, i):
        m = sM + 2*i
        a(f"""
        v_lshlrev_b32 v{vN4+i}, 2, v{word}
        v_and_b32 v{vN4+i}, 0xfc, v{vN4+i}
        v_cmp_gt_u32 s[{m}:{m+1}], s{s196}, v{vN4+i}
        v_and_b32 v{vSo+i}, 0x00ffff00, v{word}
        s_mov_b64 exec, s[{m}:{m+1}]
        ds_add_rtn_u32 v{vRk+i}, v{vN4+i}, v{vT3} offset:{HIST}
        s_mov_b64 exec, -1
        """)
    a("K2_DECODE:")
    for i in range(4):
        decode(vCand+i, i)
    a(f"""
    s_mov_b64 s[{sM+8}:{sM+9}], 0
    s_mov_b64 s[{sM+10}:{sM+11}], 0
    s_mov_b64 s[{sM+12}:{sM+13}], 0
    s_cmp_ge_u32 s{sWave}, 4
    s_cbranch_scc1 K2_NOHDR
    v_cmp_lt_u32 vcc, 0, v{vHdr}
    s_cbranch_vccz K2_NOHDR
    v_mov_b32 v{vT0}, {MAXC}
    ds_max_u32 v{vT0}, v{vHdr}
    """)
    for i in range(4, 7):
        w = vHdr + (i-3)
        a(f"""
        v_lshrrev_b32 v{vT0}, 24, v{w}
        v_cmp_eq_u32 s[{sSave}:{sSave+1}], s{sBeta}, v{vT0}
        v_cmp_lt_u32 vcc, {i-4}, v{vHdr}
        v_mov_b32 v{vT1}, -1
        s_and_b64 vcc, vcc, s[{sSave}:{sSave+1}]
        s_nop 1
        v_cndmask_b32_e64 v{w}, v{vT1}, v{w}, vcc
        """)
        decode(w, i)
    a(f"""
    K2_NOHDR:
    s_cmp_eq_u32 s{sR}, 0
    s_cbranch_scc0 K2_W0
    s_waitcnt vmcnt({2+npf})
    K2_W0:
    s_waitcnt lgkmcnt(0)
    s_barrier
    """)
    st.stamp(a)
    a(f"""
    v_lshlrev_b32 v{vT2}, 2, v{vLane}
    v_mov_b32 v{vT3}, {MAXC}
    ds_read_b32 v{vCnt}, v{vT2} offset:{HIST}
    ds_read_b32 v{vT3}, v{vT3}
    """)
    vA8, vB8, vAc = vXB, 40, 24
    a(f"""
    s_cmp_eq_u32 s{sR}, 0
    s_cselect_b32 s{sT}, 8, 0
    s_cmp_ge_u32 s{sWave}, s{sT}
    s_cbranch_scc1 K2_NOQ0
    """)
    for ks in range(6):
        a(f"ds_read_b64_tr_b16 {vr(vA8+4*ks,2)}, v{vWa} offset:{ks*4096}")
        a(f"ds_read_b64_tr_b16 {vr(vA8+4*ks+2,2)}, v{vWa} offset:{ks*4096 + 1024}")
    a(f"""
    s_waitcnt lgkmcnt(12)
    s_branch K2_Q0D
    K2_NOQ0:
    s_waitcnt lgkmcnt(0)
    K2_Q0D:
    v_add_u32 v{vPc}, 3, v{vCnt}
    v_and_b32 v{vPc}, -4, v{vPc}
    v_mov_b32 v{vStart}, v{vPc}
    v_readfirstlane_b32 s3, v{vT3}
    s_nop 0
    """)
    scan64(a, vStart, None)
    a(f"""
    s_nop 0
    v_readlane_b32 s{sCnt}, v{vStart}, 63
    v_sub_u32 v{vStart}, v{vStart}, v{vPc}
    """)
    for i in range(4):
        a(f"ds_bpermute_b32 v{vE+i}, v{vN4+i}, v{vStart}")
    a(f"""
    s_cmp_eq_u32 s{sR}, 0
    s_cbranch_scc0 K2_NRDONE
    s_min_u32 s3, s3, {CH}
    s_max_u32 s3, s3, 3
    s_add_u32 s3, s3, 12
    s_lshr_b32 s3, s3, 4
    s_add_u32 s{sNR}, s3, 1
    K2_NRDONE:
    """)
    a(f"""
    v_lshlrev_b32 v{vT1}, 8, v{vLane}
    s_lshl_b32 s{sT}, s{sWave}, 2
    K2_UN:
    v_cmp_lt_u32 vcc, s{sT}, v{vPc}
    s_cbranch_vccz K2_UND
    v_add_u32 v{vT0}, s{sT}, v{vStart}
    s_mov_b64 exec, vcc
    ds_write_b32 v{vT0}, v{vT1} offset:{UNODE}
    s_mov_b64 exec, -1
    s_add_u32 s{sT}, s{sT}, 64
    s_branch K2_UN
    K2_UND:
    """)
    a(f"""
    s_sub_u32 s{sT}, s{sWave}, 8
    s_cmp_gt_u32 s{sT}, 4
    s_cbranch_scc1 K2_NOPAD
    v_mov_b32 v{vT2}, {OOB}
    s_cmp_gt_u32 s{sT}, 2
    s_cbranch_scc1 K2_TAILPAD
    v_sub_u32 v{vT1}, v{vPc}, v{vCnt}
    v_add_u32 v{vT0}, v{vStart}, v{vCnt}
    v_cmp_lt_u32 vcc, s{sT}, v{vT1}
    v_add_u32 v{vT0}, s{sT}, v{vT0}
    v_lshlrev_b32 v{vT0}, 2, v{vT0}
    s_mov_b64 exec, vcc
    ds_write_b32 v{vT0}, v{vT2} offset:{LIST}
    s_mov_b64 exec, -1
    s_branch K2_NOPAD
    K2_TAILPAD:
    v_lshlrev_b32 v{vT1}, 2, v{vLane}
    s_cmp_eq_u32 s{sT}, 3
    s_cbranch_scc0 K2_TAILU
    s_lshl_b32 s{sT}, s{sCnt}, 2
    v_add_u32 v{vT0}, s{sT}, v{vT1}
    s_mov_b64 exec, 0xfffffff
    ds_write_b32 v{vT0}, v{vT2} offset:{LIST}
    s_mov_b64 exec, -1
    s_branch K2_NOPAD
    K2_TAILU:
    v_add_u32 v{vT0}, s{sCnt}, v{vT1}
    v_mov_b32 v{vT2}, {DUMMY*256}
    s_mov_b64 exec, 0x7f
    ds_write_b32 v{vT0}, v{vT2} offset:{UNODE}
    s_mov_b64 exec, -1
    K2_NOPAD:
    """)
    def scatter(i, last):
        m = sM + 2*i
        a(f"""
        v_add_lshl_u32 v{vE+i}, v{vE+i}, v{vRk+i}, 2
        s_mov_b64 exec, s[{m}:{m+1}]
        ds_write_b32 v{vE+i}, v{vSo+i} offset:{LIST}
        s_mov_b64 exec, -1
        """)
    a("s_waitcnt lgkmcnt(0)")
    for i in range(4):
        scatter(i, i == 3)
    a(f"""
    s_or_b64 s[{sSave}:{sSave+1}], s[{sM+8}:{sM+9}], s[{sM+10}:{sM+11}]
    s_or_b64 s[{sSave}:{sSave+1}], s[{sSave}:{sSave+1}], s[{sM+12}:{sM+13}]
    s_cbranch_scc0 K2_SC_DONE
    """)
    for i in range(4, 7):
        a(f"ds_bpermute_b32 v{vE+i}, v{vN4+i}, v{vStart}")
    a("s_waitcnt lgkmcnt(0)")
    for i in range(4, 7):
        scatter(i, i == 6)
    a(f"""
    K2_SC_DONE:
    s_add_u32 s3, s{sCnt}, 31
    s_lshr_b32 s3, s3, 5
    s_lshr_b32 s{sQ}, s3, 4
    s_and_b32 s{sRem}, s3, 15
    """)
    st.stamp(a)
    a(f"""
    s_cmp_eq_u32 s{sR}, 0
    s_cselect_b32 s{sT}, 8, 0
    s_cmp_ge_u32 s{sWave}, s{sT}
    s_cbranch_scc1 K2_NOQ
    """)
    for ks in range(6, 8):
        a(f"ds_read_b64_tr_b16 {vr(vA8+4*ks,2)}, v{vWa} offset:{ks*4096}")
        a(f"ds_read_b64_tr_b16 {vr(vA8+4*ks+2,2)}, v{vWa} offset:{ks*4096 + 1024}")
    for hp in range(2):
        for k4 in range(4):
            ks = 4*hp + k4
            a(f"v_xor_b32 v{vT3}, {32*ks}, v{vBa}")
            a(f"ds_read_b128 {vr(vB8+4*k4,4)}, v{vT3} offset:{XT}")
        for k4 in range(4):
            ks = 4*hp + k4
            a(f"s_waitcnt lgkmcnt({3-k4})")
            c = "0" if ks == 0 else vr(vAc,16)
            a(f"v_mfma_f32_32x32x16_bf16 {vr(vAc,16)}, {vr(vA8+4*ks,4)}, {vr(vB8+4*k4,4)}, {c}")
    a(f"""
    v_cmp_gt_u32 vcc, 52, v{vRow}
    s_nop 7
    s_nop 3
    """)
    for i in range(8):
        a(f"v_cvt_pk_bf16_f32 v{vA8+i}, v{vAc+2*i}, v{vAc+2*i+1}")
    a(f"""
    s_mov_b64 exec, vcc
    ds_write_b128 v{vQst}, {vr(vA8,4)}
    ds_write_b128 v{vQst}, {vr(vA8+4,4)} offset:16
    s_mov_b64 exec, -1
    K2_NOQ:
    s_waitcnt vmcnt({npf}) lgkmcnt(0)
    s_barrier
    """)
    st.stamp(a)
    if "cyc" in opt.exp: st.stamp(a, True)
    if opt.prio: a("s_setprio 3")
    a(f"""
    s_cmp_lt_u32 s{sWave}, s{sRem}
    s_cselect_b32 s{sNH}, 1, 0
    s_add_u32 s{sHB}, s{sQ}, s{sNH}
    s_min_u32 s3, s{sRem}, s{sWave}
    s_mul_i32 s{sP}, s{sQ}, s{sWave}
    s_add_u32 s{sP}, s{sP}, s3
    s_cmp_eq_u32 s{sHB}, 0
    s_cbranch_scc1 K2_MAIN_DONE
    v_lshrrev_b32 v{vT0}, 4, v{vLane}
    s_lshl_b32 s3, s{sHB}, 1
    v_mul_u32_u24 v{vT0}, s3, v{vT0}
    s_lshl_b32 s3, s{sP}, 3
    v_add_u32 v{vT0}, s3, v{vT0}
    v_lshlrev_b32 v{vLA}, 4, v{vT0}
    v_lshlrev_b32 v{vUA}, 2, v{vT0}
    ds_read_b128 {vr(vE,4)}, v{vLA} offset:{LIST}
    ds_read_b128 {vr(vE+4,4)}, v{vLA} offset:{LIST+16}
    ds_read_b64 {vr(vQC,2)}, v{vUA} offset:{UNODE}
    ds_read_b128 {vr(vP,4)}, v{vLA} offset:{LIST+32}
    ds_read_b128 {vr(vP+4,4)}, v{vLA} offset:{LIST+48}
    ds_read_b64 {vr(vQN,2)}, v{vUA} offset:{UNODE+8}
    """)
    for i in range(8):
        a(f"v_mov_b32 v{vAcc+i}, 0")
    a("s_waitcnt lgkmcnt(4)")
    for u in range(8):
        a(f"v_add_u32 v{vE+u}, v{vE+u}, v{vC16}")
        a(f"buffer_load_dwordx4 {vr(vXA+4*u,4)}, v{vE+u}, s[{sX}:{sX+3}], 0 offen")
    a(f"""
    s_waitcnt lgkmcnt(0)
    v_add_u32 v{vT0}, v{vQC}, v{vQB}
    v_add_u32 v{vT1}, v{vQC+1}, v{vQB}
    ds_read_b128 {vr(vQ,4)}, v{vT0}
    ds_read_b128 {vr(vQ+4,4)}, v{vT1}
    v_mov_b32 v{vPrev}, v{vQC}
    s_cmp_eq_u32 s{sHB}, 1
    s_cbranch_scc1 K2_FIRST
    """)
    for u in range(8):
        a(f"v_add_u32 v{vP+u}, v{vP+u}, v{vC16}")
        a(f"buffer_load_dwordx4 {vr(vXB+4*u,4)}, v{vP+u}, s[{sX}:{sX+3}], 0 offen")
    if "bstamp" in opt.exp: st.stamp(a)
    flush_id = [0]
    def flush(prev, masked):
        fid = flush_id[0]; flush_id[0] += 1
        t = ""
        if masked is not None:
            t += f"""
            v_cmp_ne_u32 vcc, v{masked}, v{prev}
            s_cbranch_vccz K2_FL{fid}
            s_mov_b64 exec, vcc
            """
        t += f"""
        v_lshl_add_u32 v{vT0}, v{prev}, 1, v{vPB}
        ds_write_b128 v{vT0}, {vr(vAcc,4)}
        ds_write_b128 v{vT0}, {vr(vAcc+4,4)} offset:256
        """
        if masked is not None:
            for i in range(8):
                t += f"v_mov_b32 v{vAcc+i}, 0\n"
            t += f"""
            s_mov_b64 exec, -1
            K2_FL{fid}:
            """
        return t
    def dots(X, waits):
        for half in range(2):
            a(waits[half])
            if "nodots" in opt.exp: continue
            for r in range(4):
                for u in range(4*half, 4*half+4):
                    if r == 0:
                        a(f"v_dot2_f32_bf16 v{vP+u}, v{X+4*u}, v{vQ+4*half}, 0")
                    else:
                        a(f"v_dot2c_f32_bf16 v{vP+u}, v{X+4*u+r}, v{vQ+4*half+r}")
    def chain(al):
        c = []
        for j in range(4):
            c.append(f"v_add_f32_dpp v{vP+j}, v{vP+j}, v{vP+j} row_mirror row_mask:0xf bank_mask:0x3")
        for j in range(4):
            c.append(f"v_add_f32_dpp v{vP+j}, v{vP+j+4}, v{vP+j+4} row_mirror row_mask:0xf bank_mask:0xc")
        for j in range(2):
            c.append(f"v_add_f32_dpp v{vP+j}, v{vP+j}, v{vP+j} row_half_mirror row_mask:0xf bank_mask:0x5")
        for j in range(2):
            c.append(f"v_add_f32_dpp v{vP+j}, v{vP+j+2}, v{vP+j+2} row_half_mirror row_mask:0xf bank_mask:0xa")
        c.append(f"v_add_f32_dpp v{vP+2}, v{vP}, v{vP} quad_perm:[1,0,3,2] row_mask:0xf bank_mask:0xf")
        c.append(f"v_add_f32_dpp v{vP+3}, v{vP+1}, v{vP+1} quad_perm:[1,0,3,2] row_mask:0xf bank_mask:0xf")
        c.append(f"v_cndmask_b32_e64 v{vP}, v{vP+2}, v{vP+3}, s[{sOdd}:{sOdd+1}]")
        c.append(f"v_add_f32_dpp v{vP}, v{vP}, v{vP} quad_perm:[2,3,0,1] row_mask:0xf bank_mask:0xf")
        if opt.mimic:
            c += [f"v_cvt_pk_bf16_f32 v{vP}, v{vP}, v{vP}", f"v_and_b32 v{vP}, 0xffff0000, v{vP}",
                  f"v_mul_f32 v{vP}, 0x3db504f3, v{vP}", f"v_cvt_pk_bf16_f32 v{vP}, v{vP}, v{vP}",
                  f"v_and_b32 v{vP}, 0xffff0000, v{vP}", f"v_mul_f32 v{vP}, 0xbfb8aa3b, v{vP}"]
        else:
            c.append(f"v_mul_f32 v{vP}, 0xbe0293ee, v{vP}")
        c += [f"v_exp_f32 v{vP}, v{vP}", f"v_add_f32 v{vP}, 1.0, v{vP}", f"v_rcp_f32 v{vP}, v{vP}",
              f"v_cvt_pk_bf16_f32 v{al}, v{vP}, 0", f"v_cvt_pk_bf16_f32 v{al+1}, 0, v{vP}"]
        return c
    def chain_alone(al):
        c = chain(al)
        gaps = {9: 1, 11: 1, 14: 2, 17 + (5 if opt.mimic else 0): 1, 19 + (5 if opt.mimic else 0): 1}
        for i, ins in enumerate(c):
            a(ins)
            if i in gaps: a(f"s_nop {gaps[i]-1}")
    def agg_stream(X, al, loads, Xdst):
        out = []
        for half in range(2):
            if half == 0:
                out.append(('x', flush(vPrev, vQP)))
            else:
                out.append(('x', "s_nop 1\n" + flush(vQP, vQP+1)))
            for u in range(4*half, 4*half+4):
                k = 4*(u >> 1) + (u & 1)
                for r in range(4):
                    if "noagg" in opt.exp:
                        out.append(('v', "s_nop 0")); out.append(('v', "s_nop 0")); continue
                    out.append(('v', f"v_dot2c_f32_bf16_dpp v{vAcc+2*r}, v{al}, v{X+4*u+r} row_newbcast:{k} row_mask:0xf bank_mask:0xf"))
                    out.append(('v', f"v_dot2c_f32_bf16_dpp v{vAcc+2*r+1}, v{al+1}, v{X+4*u+r} row_newbcast:{k} row_mask:0xf bank_mask:0xf"))
                if loads and "noload" not in opt.exp:
                    out.append(('x', f"buffer_load_dwordx4 {vr(Xdst+4*u,4)}, v{vE+u}, s[{sX}:{sX+3}], 0 offen"))
        return out
    def next_prep():
        a("s_waitcnt lgkmcnt(0)")
        a(f"v_add_u32 v{vT0}, v{vQN}, v{vQB}")
        a(f"v_add_u32 v{vT1}, v{vQN+1}, v{vQB}")
    def rotate(nxt):
        a(f"v_mov_b32 v{vQP}, v{vQC}")
        a(f"v_mov_b32 v{vQP+1}, v{vQC+1}")
        if nxt:
            a(f"v_mov_b32 v{vQC}, v{vQN}")
            a(f"v_mov_b32 v{vQC+1}, v{vQN+1}")
            a(f"v_add_u32 v{vLA}, 32, v{vLA}")
            a(f"v_add_u32 v{vUA}, 8, v{vUA}")
    def mid(cur, prev, al_cur, al_prev, nxt):
        a("s_waitcnt lgkmcnt(0)")
        if nxt:
            a(f"""
            ds_read_b128 {vr(vE,4)}, v{vLA} offset:{LIST+32}
            ds_read_b128 {vr(vE+4,4)}, v{vLA} offset:{LIST+48}
            ds_read_b64 {vr(vQN,2)}, v{vUA} offset:{UNODE+8}
            """)
        dots(cur, ("s_waitcnt vmcnt(4)", "s_waitcnt vmcnt(0)"))
        if nxt:
            next_prep()
            for u in range(8):
                a(f"v_add_u32 v{vE+u}, v{vE+u}, v{vC16}")
            a(f"ds_read_b128 {vr(vQ,4)}, v{vT0}")
            a(f"ds_read_b128 {vr(vQ+4,4)}, v{vT1}")
        else:
            a("s_nop 2")
        c = chain(al_cur)
        s_ = agg_stream(prev, al_prev, nxt, prev)
        nv = sum(1 for k, _ in s_ if k == 'v')
        ci, vi = 0, 0
        for k, t in s_:
            a(t)
            if k == 'v':
                vi += 1
                if ci < len(c) and vi >= (ci + 1) * nv // (len(c) + 1) and vi % 1 == 0:
                    a(c[ci]); ci += 1
        assert ci == len(c)
        a(f"v_mov_b32 v{vPrev}, v{vQP+1}")
        rotate(nxt)
    def final(X, al):
        for k, t in agg_stream(X, al, False, None):
            a(t)
        a("s_nop 2")
        a(flush(vQP+1, None))
        a("s_branch K2_MAIN_DONE")
    a("K2_FIRST:")
    a(f"""
    s_waitcnt lgkmcnt(0)
    s_cmp_eq_u32 s{sHB}, 1
    s_cbranch_scc1 K2_F1
    """)
    dots(vXA, ("s_waitcnt vmcnt(12)", "s_waitcnt vmcnt(8)"))
    next_prep()
    a(f"ds_read_b128 {vr(vQ,4)}, v{vT0}")
    a(f"ds_read_b128 {vr(vQ+4,4)}, v{vT1}")
    chain_alone(vAl[0])
    rotate(True)
    a(f"""
    s_sub_u32 s{sHB}, s{sHB}, 1
    K2_LOOP:
    """)
    if opt.prio: a("s_setprio 2")
    a(f"""
    s_cmp_eq_u32 s{sHB}, 1
    s_cbranch_scc1 K2_TAILB
    """)
    mid(vXB, vXA, vAl[1], vAl[0], True)
    a(f"s_sub_u32 s{sHB}, s{sHB}, 1")
    if opt.prio: a("s_setprio 1")
    a(f"""
    s_cmp_eq_u32 s{sHB}, 1
    s_cbranch_scc1 K2_TAILA
    """)
    mid(vXA, vXB, vAl[0], vAl[1], True)
    a(f"""
    s_sub_u32 s{sHB}, s{sHB}, 1
    s_branch K2_LOOP
    K2_TAILB:
    """)
    mid(vXB, vXA, vAl[1], vAl[0], False)
    if opt.prio: a("s_setprio 0")
    final(vXB, vAl[1])
    a("K2_TAILA:")
    mid(vXA, vXB, vAl[0], vAl[1], False)
    if opt.prio: a("s_setprio 0")
    final(vXA, vAl[0])
    a("K2_F1:")
    dots(vXA, ("s_waitcnt vmcnt(4)", "s_waitcnt vmcnt(0)"))
    a("s_nop 2")
    chain_alone(vAl[0])
    rotate(False)
    a("s_nop 1")
    final(vXA, vAl[0])
    a("K2_MAIN_DONE:")
    if opt.prio: a("s_setprio 0")
    if "cyc" in opt.exp: st.stamp(a, True)
    st.stamp(a)
    vSf, vSl = vE, vE+1
    a(f"""
    s_cmp_eq_u32 s{sWave}, 15
    s_cbranch_scc0 K2_NOTBL
    s_add_u32 s3, s{sQ}, 1
    s_lshl_b32 s3, s3, 1
    v_cvt_f32_u32 v{vT0}, s3
    s_mul_i32 s3, s3, s{sRem}
    s_lshl_b32 s{sP}, s3, 2
    s_lshl_b32 s3, s{sQ}, 1
    v_cvt_f32_u32 v{vT1}, s3
    v_rcp_f32 v{vT0}, v{vT0}
    v_rcp_f32 v{vT1}, v{vT1}
    s_lshl_b32 s3, s{sRem}, 2
    """)
    for (dst, last) in ((vSf, False), (vSl, True)):
        if not last:
            a(f"v_lshrrev_b32 v{vT2}, 2, v{vStart}")
        else:
            a(f"""
            v_add_u32 v{vT2}, v{vStart}, v{vPc}
            v_lshrrev_b32 v{vT2}, 2, v{vT2}
            v_add_u32 v{vT2}, -1, v{vT2}
            """)
        a(f"""
        v_cmp_gt_u32 vcc, s{sP}, v{vT2}
        v_cvt_f32_u32 v{vT3}, v{vT2}
        v_add_f32 v{vT3}, 0.5, v{vT3}
        v_mul_f32 v{vT3}, v{vT3}, v{vT0}
        v_cvt_u32_f32 v{vT3}, v{vT3}
        v_subrev_u32 v{vT2}, s{sP}, v{vT2}
        v_cvt_f32_u32 v{vT2}, v{vT2}
        v_add_f32 v{vT2}, 0.5, v{vT2}
        v_mul_f32 v{vT2}, v{vT2}, v{vT1}
        v_cvt_u32_f32 v{vT2}, v{vT2}
        v_add_u32 v{vT2}, s3, v{vT2}
        v_cndmask_b32_e64 v{dst}, v{vT2}, v{vT3}, vcc
        """)
    a(f"""
    v_sub_u32 v{vT0}, v{vSl}, v{vSf}
    v_add_u32 v{vT0}, 1, v{vT0}
    v_cmp_lt_u32 vcc, 0, v{vPc}
    v_add_u32 v{vT1}, v{vSf}, v{vLane}
    v_lshlrev_b32 v{vT1}, 9, v{vT1}
    v_cndmask_b32_e64 v{vT0}, 0, v{vT0}, vcc
    v_add_u32 v{vT1}, {PIECE}, v{vT1}
    v_lshlrev_b32 v{vT3}, 2, v{vLane}
    v_mov_b32 v{vT2}, {ZROW}
    ds_write_b32 v{vT3}, v{vT0} offset:{NPC}
    """)
    for j in range(4):
        a(f"""
        v_cmp_lt_u32 vcc, {j}, v{vT0}
        v_add_u32 v{vT3}, {512*j}, v{vT1}
        s_nop 0
        v_cndmask_b32_e64 v{vE+4+j}, v{vT2}, v{vT3}, vcc
        """)
    a(f"""
    v_lshlrev_b32 v{vT0}, 4, v{vLane}
    ds_write_b128 v{vT0}, {vr(vE+4,4)} offset:{TBL}
    K2_NOTBL:
    """)
    vA8 = vXB
    a(f"""
    s_add_u32 s3, s{sR}, 1
    s_cmp_ge_u32 s3, s{sNR}
    s_cselect_b32 s{sT}, 8, 0
    s_cmp_ge_u32 s{sWave}, s{sT}
    s_cbranch_scc1 K2_NOA
    s_and_b32 s{sP}, s{sWave}, 3
    s_lshr_b32 s{sNH}, s{sWave}, 2
    """)
    tile_a_addr(a, vWa, vLane, vT2, vT3, sP, WV)
    for ks in range(8):
        if ks == 6: a("s_waitcnt lgkmcnt(4)")
        a(f"ds_read_b64_tr_b16 {vr(vA8+4*ks,2)}, v{vWa} offset:{ks*4096}")
        a(f"ds_read_b64_tr_b16 {vr(vA8+4*ks+2,2)}, v{vWa} offset:{ks*4096 + 1024}")
    a(f"""
    v_and_b32 v{vRow}, 31, v{vLane}
    s_lshl_b32 s3, s{sNH}, 5
    v_add_u32 v{vRow}, s3, v{vRow}
    """)
    tile_b_addr(a, vBa, vRow, vLane, vT3)
    a(f"""
    K2_NOA:
    s_waitcnt lgkmcnt(0)
    s_barrier
    """)
    st.stamp(a)
    vB = vE
    vRd = vXA
    vNp = vT3
    a(f"""
    s_cmp_ge_u32 s{sWave}, 13
    s_cbranch_scc1 K2_RED_DONE
    v_lshrrev_b32 v{vT0}, 4, v{vLane}
    s_lshl_b32 s3, s{sWave}, 2
    v_add_u32 v{vT0}, s3, v{vT0}
    v_lshlrev_b32 v{vT1}, 4, v{vT0}
    v_lshlrev_b32 v{vT2}, 2, v{vT0}
    ds_read_b128 {vr(vB,4)}, v{vT1} offset:{TBL}
    ds_read_b32 v{vNp}, v{vT2} offset:{NPC}
    s_waitcnt lgkmcnt(0)
    """)
    for j in range(3):
        a(f"""
        v_add_u32 v{vB+j}, v{vB+j}, v{vC16}
        ds_read_b128 {vr(vRd+8*j,4)}, v{vB+j}
        ds_read_b128 {vr(vRd+8*j+4,4)}, v{vB+j} offset:256
        """)
    for j in range(3):
        a(f"s_waitcnt lgkmcnt({4-2*j})")
        for i in range(8):
            a(f"v_add_f32 v{vTot+i}, v{vTot+i}, v{vRd+8*j+i}")
    a(f"""
    s_mov_b32 s{sT}, 3
    K2_XL:
    v_cmp_lt_u32 vcc, s{sT}, v{vNp}
    s_cbranch_vccz K2_RED_DONE
    s_lshl_b32 s3, s{sT}, 9
    v_add_u32 v{vT0}, s3, v{vB}
    s_mov_b64 exec, vcc
    ds_read_b128 {vr(vRd,4)}, v{vT0}
    ds_read_b128 {vr(vRd+4,4)}, v{vT0} offset:256
    s_waitcnt lgkmcnt(0)
    """)
    for i in range(8):
        a(f"v_add_f32 v{vTot+i}, v{vTot+i}, v{vRd+i}")
    a(f"""
    s_mov_b64 exec, -1
    s_add_u32 s{sT}, s{sT}, 1
    s_branch K2_XL
    K2_RED_DONE:
    s_add_u32 s{sR}, s{sR}, 1
    s_cmp_ge_u32 s{sR}, s{sNR}
    s_cbranch_scc1 K2_EPI
    s_barrier
    """)
    a(f"""
    s_cmp_ge_u32 s{sWave}, 4
    s_cbranch_scc1 K2_RZ
    v_mov_b32 v{vT2}, 0
    v_lshlrev_b32 v{vT3}, 2, v0
    ds_write_b32 v{vT3}, v{vT2} offset:{HIST}
    K2_RZ:
    v_mov_b32 v{vCand}, -1
    v_mov_b32 v{vCand+1}, -1
    v_mov_b32 v{vCand+2}, -1
    v_mov_b32 v{vCand+3}, -1
    v_mov_b32 v{vHdr}, 0
    v_cmp_gt_u32 vcc, {C*4}, v0
    s_and_saveexec_b64 s[{sSave}:{sSave+1}], vcc
    s_cbranch_execz K2_R1
    v_lshrrev_b32 v{vT0}, 2, v0
    v_lshlrev_b32 v{vT2}, 4, v{vT0}
    v_add_u32 v{vT2}, {WS_HDR}, v{vT2}
    buffer_load_dword v{vT3}, v{vT2}, s[{sWS}:{sWS+3}], 0 offen
    v_lshlrev_b32 v{vT0}, 13, v{vT0}
    v_add_u32 v{vT0}, {WS_OVF}, v{vT0}
    s_lshl_b32 s3, s{sR}, 4
    s_sub_u32 s3, s3, 13
    v_and_b32 v{vT1}, 3, v0
    v_lshl_add_u32 v{vT1}, v{vT1}, 2, s3
    v_lshl_add_u32 v{vT0}, v{vT1}, 2, v{vT0}
    buffer_load_dwordx4 {vr(vSo,4)}, v{vT0}, s[{sWS}:{sWS+3}], 0 offen offset:4
    s_waitcnt vmcnt(0)
    """)
    for i in range(4):
        a(f"""
        v_add_u32 v{vT2}, {i}, v{vT1}
        v_cmp_lt_u32 vcc, v{vT2}, v{vT3}
        v_lshrrev_b32 v{vT0}, 24, v{vSo+i}
        v_cmp_eq_u32 s[{sM}:{sM+1}], s{sBeta}, v{vT0}
        s_nop 0
        s_and_b64 vcc, vcc, s[{sM}:{sM+1}]
        s_nop 1
        v_cndmask_b32_e64 v{vCand+i}, v{vCand+i}, v{vSo+i}, vcc
        """)
    a(f"""
    K2_R1:
    s_mov_b64 exec, s[{sSave}:{sSave+1}]
    v_mov_b32 v{vT3}, 1
    s_waitcnt lgkmcnt(0)
    s_barrier
    s_branch K2_DECODE
    K2_EPI:
    """)
    st.stamp(a)
    vAcc16, vB8 = 24, vXA
    a(f"""
    s_cmp_ge_u32 s{sWave}, 13
    s_cbranch_scc1 K2_WB_DONE
    v_lshrrev_b32 v{vT0}, 4, v{vLane}
    s_lshl_b32 s3, s{sWave}, 2
    v_add_u32 v{vT0}, s3, v{vT0}
    v_lshlrev_b32 v{vT1}, 4, v{vT0}
    v_xor_b32 v{vT1}, v{vT1}, v{vC16}
    v_and_b32 v{vT1}, 0xf0, v{vT1}
    v_lshl_add_u32 v{vT0}, v{vT0}, 8, v{vT1}
    """)
    for i in range(4):
        a(f"v_cvt_pk_bf16_f32 v{vP+i}, v{vTot+2*i}, v{vTot+2*i+1}")
    a(f"""
    ds_write_b128 v{vT0}, {vr(vP,4)} offset:{AGGB}
    K2_WB_DONE:
    s_cmp_ge_u32 s{sWave}, 8
    s_cbranch_scc1 K2_EB
    """)
    for ks in range(8):
        a(f"v_xor_b32 v{vE+ks}, {32*ks}, v{vBa}")
    a(f"""
    s_mul_i32 s3, s{sBeta}, {T*256}
    s_lshl_b32 s{sCnt}, s{sP}, 6
    s_add_u32 s3, s3, s{sCnt}
    v_lshrrev_b32 v{vT0}, 5, v{vLane}
    v_lshlrev_b32 v{vT1}, 8, v{vRow}
    v_lshl_add_u32 v{vT1}, v{vT0}, 5, v{vT1}
    v_add_u32 v{vT1}, s3, v{vT1}
    K2_EB:
    s_waitcnt lgkmcnt(0)
    s_barrier
    s_cmp_ge_u32 s{sWave}, 8
    s_cbranch_scc1 K2_FIN
    """)
    for ks in range(8):
        a(f"ds_read_b128 {vr(vB8+4*ks,4)}, v{vE+ks} offset:{AGGB}")
    a(f"v_cmp_gt_u32 vcc, {T}, v{vRow}")
    for ks in range(8):
        a(f"s_waitcnt lgkmcnt({7-ks})")
        c = "0" if ks == 0 else vr(vAcc16,16)
        a(f"v_mfma_f32_32x32x16_bf16 {vr(vAcc16,16)}, {vr(vA8+4*ks,4)}, {vr(vB8+4*ks,4)}, {c}")
    a("s_nop 7")
    a("s_nop 3")
    for i in range(8):
        a(f"v_cvt_pk_bf16_f32 v{vQ+i}, v{vAcc16+2*i}, v{vAcc16+2*i+1}")
    a(f"""
    s_and_saveexec_b64 s[{sSave}:{sSave+1}], vcc
    s_cbranch_execz K2_ST_DONE
    buffer_store_dwordx4 {vr(vQ,4)}, v{vT1}, s[{sOUT}:{sOUT+3}], 0 offen {opt.outst}
    buffer_store_dwordx4 {vr(vQ+4,4)}, v{vT1}, s[{sOUT}:{sOUT+3}], 0 offen offset:16 {opt.outst}
    K2_ST_DONE:
    s_mov_b64 exec, s[{sSave}:{sSave+1}]
    K2_FIN:
    """)
    st.stamp(a)
    if opt.stamps:
        a("s_waitcnt vmcnt(0)")
        st.stamp(a)
    st.flush(a, sWS, vT0, sWave)
    a("""
    K2_END:
    s_endpgm
    """)
    return a.text(), LDS, 128

def build(opt):
    k1, lds1, v1 = gen_k1(opt)
    k2, lds2, v2 = gen_k2(opt)
    n1, n2 = NAME + "_k1_kernel", NAME + "_k2_kernel"
    out = HEADER
    for ch in opt.seq:
        if ch == "1": out += f"; @launch kernel={n1} grid=({C},1,1) block=(512,1,1) lds={max(lds1, opt.lds1)}\n"
        if ch == "2": out += f"; @launch kernel={n2} grid=({NB},1,1) block=(1024,1,1) lds={lds2}\n"
    out += '.amdgcn_target "amdgcn-amd-amdhsa--gfx950"\n.text\n'
    for n, k in ((n1, k1), (n2, k2)):
        out += f".globl {n}\n.p2align 8\n.type {n},@function\n" + k
    out += '.section .rodata,"a"\n.p2align 6\n'
    out += kd(n1, v1) + ".p2align 6\n" + kd(n2, v2)
    return out

def parse(argv=None):
    p = argparse.ArgumentParser()
    p.add_argument("-o", default="cdna_kernels/" + NAME + ".s")
    p.add_argument("--stamps", action="store_true")
    p.add_argument("--prefetch", type=int, default=0)
    p.add_argument("--mimic", type=int, default=0)
    p.add_argument("--prio", type=int, default=0)
    p.add_argument("--touch", type=int, default=0)
    p.add_argument("--seq", default="12")
    p.add_argument("--exp", default="")
    p.add_argument("--cellst", default="")
    p.add_argument("--outst", default="")
    p.add_argument("--lds1", type=int, default=83968)
    return p.parse_args(argv)

if __name__ == "__main__":
    o = parse()
    open(o.o, "w").write(build(o))
    print("wrote", o.o)
```

```python
import sys, argparse
from gen import A, vr, Stamps, scan64, kd, HEADER, NAME

N, E, D = 12500, 400000, 128
T = 49
NB = 256
CH = 1600
C = 250
XBYTES = N * 256
EBYTES = E * 4
WS_CELLS = 0
CELLROW = 16384
WS_HDR = 0x400000
WS_OVF = 0x410000
OVF_STRIDE = 8192
WS_USED = WS_OVF + 256 * OVF_STRIDE
WS_STAMP = 0x1000000
OOB = 0x40000000
DUMMY = 49

def srd_tail(a, d, size):
    a(f"s_mov_b32 s{d+2}, {size}")
    a(f"s_mov_b32 s{d+3}, 0x00020000")

def gen_k1(opt):
    a = A()
    HIST, OVC, JUNK, STAGE = 0, 1024, 1040, 2048
    LDS = STAGE + 16384 + 64
    st = Stamps(opt.stamps, 60, WS_STAMP)
    sX, sSRC, sDST, sWS = 4, 8, 12, 16
    sWave = 20
    vDst, vSrc = 4, 8
    vEnt, vAdr, vRank = 12, 16, 20
    vT0, vT1, vT2, vT3 = 24, 25, 26, 27
    vNeg, vOne, vZero, vGo = 28, 32, 33, 34
    vJ = 36
    a(f"""
    {NAME}_k1_kernel:
    s_cmp_ge_u32 s2, {C}
    s_cbranch_scc1 K1_END
    s_load_dwordx2 s[{sDST}:{sDST+1}], s[0:1], 16
    s_load_dwordx2 s[{sSRC}:{sSRC+1}], s[0:1], 8
    s_load_dwordx2 s[{sWS}:{sWS+1}], s[0:1], 56
    s_load_dwordx2 s[{sX}:{sX+1}], s[0:1], 0
    """)
    st.stamp(a)
    srd_tail(a, sDST, EBYTES); srd_tail(a, sSRC, EBYTES); srd_tail(a, sX, XBYTES)
    srd_tail(a, sWS, WS_USED if not opt.stamps else 0x2000000)
    a(f"""
    v_lshrrev_b32 v{vT1}, 6, v0
    s_mul_i32 s21, s2, {CH*4}
    v_lshlrev_b32 v{vT0}, 4, v0
    v_readfirstlane_b32 s{sWave}, v{vT1}
    v_add_u32 v{vT2}, s21, v{vT0}
    v_mov_b32 v{vNeg}, -1
    v_mov_b32 v{vNeg+1}, -1
    v_mov_b32 v{vNeg+2}, -1
    v_mov_b32 v{vNeg+3}, -1
    v_mov_b32 v{vZero}, 0
    v_mov_b32 v{vOne}, 1
    v_cmp_gt_u32 vcc, {CH//4}, v0
    s_and_saveexec_b64 s[40:41], vcc
    s_waitcnt lgkmcnt(0)
    s_cmp_eq_u32 s{sWave}, 8
    s_cbranch_scc1 K1_PFWAVE
    s_cbranch_execz K1_EDGE0_DONE
    buffer_load_dwordx4 {vr(vDst,4)}, v{vT2}, s[{sDST}:{sDST+3}], 0 offen
    buffer_load_dwordx4 {vr(vSrc,4)}, v{vT2}, s[{sSRC}:{sSRC+3}], 0 offen
    K1_EDGE0_DONE:
    s_mov_b64 exec, s[40:41]
    ds_write_b128 v{vT0}, {vr(vNeg,4)} offset:{STAGE}
    ds_write_b128 v{vT0}, {vr(vNeg,4)} offset:{STAGE+8192}
    v_lshlrev_b32 v{vT1}, 2, v0
    s_cmp_ge_u32 s{sWave}, 5
    s_cbranch_scc1 K1_NOZ
    ds_write_b32 v{vT1}, v{vZero} offset:{HIST}
    K1_NOZ:
    """)
    if opt.touch:
        a(f"""
        s_cmp_eq_u32 s{sWave}, 7
        s_cbranch_scc0 K1_NOTOUCH
        s_load_dwordx4 s[24:27], s[0:1], 24
        s_load_dwordx2 s[28:29], s[0:1], 40
        v_and_b32 v{vT2}, 63, v0
        v_lshlrev_b32 v{vT2}, 16, v{vT2}
        buffer_load_dword v{vJ}, v{vT2}, s[{sX}:{sX+3}], 0 offen
        s_waitcnt lgkmcnt(0)
        s_mov_b32 s32, s24
        s_mov_b32 s33, s25
        s_mov_b32 s34, 32768
        s_mov_b32 s35, 0x00020000
        s_mov_b32 s36, s26
        s_mov_b32 s37, s27
        s_mov_b32 s38, 32768
        s_mov_b32 s39, 0x00020000
        v_mov_b32 v{vT3}, 0
        buffer_load_dword v{vJ+1}, v{vT3}, s[32:35], 0 offen
        buffer_load_dword v{vJ+2}, v{vT3}, s[36:39], 0 offen
        """)
        if opt.touch == 2:
            a(f"""
            s_mov_b32 s30, {XBYTES}
            s_mov_b32 s31, 0x00020000
            buffer_load_dword v{vJ+3}, v{vT2}, s[28:31], 0 offen
            """)
        a("K1_NOTOUCH:")
    if opt.prefetch == 1:
        per = 100096
        a(f"""
        s_cmp_eq_u32 s{sWave}, 7
        s_cbranch_scc0 K1_NOPF
        s_lshr_b32 s22, s2, 3
        s_mul_i32 s22, s22, {per}
        v_and_b32 v{vT2}, 63, v0
        v_lshlrev_b32 v{vT2}, 7, v{vT2}
        """)
        for i in range(13):
            a(f"buffer_load_dword v{vJ}, v{vT2}, s[{sX}:{sX+3}], s22 offen")
            a(f"s_add_u32 s22, s22, 8192")
        a("K1_NOPF:")
    a(f"""
    v_lshrrev_b32 v{vT1}, 2, v0
    v_lshlrev_b32 v{vGo}, 14, v{vT1}
    v_and_b32 v{vT1}, 3, v0
    v_lshl_add_u32 v{vGo}, v{vT1}, 4, v{vGo}
    s_and_b32 s22, s2, 7
    s_lshl_b32 s22, s22, 5
    s_lshr_b32 s23, s2, 3
    s_add_u32 s22, s22, s23
    s_lshl_b32 s22, s22, 6
    s_add_u32 s23, s22, {128*CELLROW}
    s_waitcnt lgkmcnt(0)
    s_barrier
    """)
    st.stamp(a)
    a(f"""
    v_cmp_gt_u32 vcc, {CH//4}, v0
    s_and_saveexec_b64 s[40:41], vcc
    s_cbranch_execz K1_EDGE1_DONE
    s_mov_b32 s21, -{T}
    s_waitcnt vmcnt(0)
    """)
    st.stamp(a)
    for i in range(4):
        a(f"""
        v_mul_u32_u24 v{vT0}, 21400, v{vDst+i}
        v_lshrrev_b32 v{vT0}, 20, v{vT0}
        v_lshlrev_b32 v{vAdr+i}, 2, v{vT0}
        ds_add_rtn_u32 v{vRank+i}, v{vAdr+i}, v{vOne} offset:{HIST}
        v_mad_i32_i24 v{vT1}, v{vT0}, s21, v{vDst+i}
        v_lshl_or_b32 v{vEnt+i}, v{vSrc+i}, 8, v{vT1}
        v_lshl_or_b32 v{vEnt+i}, v{vT0}, 24, v{vEnt+i}
        v_lshlrev_b32 v{vAdr+i}, 4, v{vAdr+i}
        """)
    a(f"v_mov_b32 v{vT3}, 16384")
    for i in range(4):
        a(f"""
        s_waitcnt lgkmcnt({3-i})
        v_cmp_gt_u32 s[{42+2*i}:{43+2*i}], 16, v{vRank+i}
        v_lshl_add_u32 v{vT0}, v{vRank+i}, 2, v{vAdr+i}
        s_nop 0
        v_cndmask_b32_e64 v{vT0}, v{vT3}, v{vT0}, s[{42+2*i}:{43+2*i}]
        ds_write_b32 v{vT0}, v{vEnt+i} offset:{STAGE}
        """)
    a(f"""
    s_and_b64 s[50:51], s[42:43], s[44:45]
    s_and_b64 s[52:53], s[46:47], s[48:49]
    s_and_b64 s[50:51], s[50:51], s[52:53]
    s_andn2_b64 s[50:51], exec, s[50:51]
    s_cbranch_scc0 K1_EDGE1_DONE
    s_mov_b64 s[54:55], exec
    s_mul_i32 s21, s2, {OVF_STRIDE}
    s_add_u32 s21, s21, {WS_OVF + 4}
    s_lshl_b32 s24, s2, 4
    s_add_u32 s24, s24, {WS_HDR + 4}
    v_mov_b32 v{vT3}, {OVC}
    """)
    for i in range(4):
        a(f"""
        s_andn2_b64 exec, s[54:55], s[{42+2*i}:{43+2*i}]
        s_cbranch_execz K1_OV_{i}
        ds_add_rtn_u32 v{vT0}, v{vT3}, v{vOne}
        s_waitcnt lgkmcnt(0)
        v_cmp_gt_u32 vcc, 3, v{vT0}
        v_lshl_add_u32 v{vT1}, v{vT0}, 2, s21
        v_lshl_add_u32 v{vT2}, v{vT0}, 2, s24
        v_cndmask_b32_e64 v{vT0}, v{vT1}, v{vT2}, vcc
        buffer_store_dword v{vEnt+i}, v{vT0}, s[{sWS}:{sWS+3}], 0 offen
        K1_OV_{i}:
        """)
    a(f"""
    K1_EDGE1_DONE:
    s_mov_b64 exec, s[40:41]
    v_lshlrev_b32 v{vT0}, 4, v0
    s_waitcnt lgkmcnt(0)
    s_barrier
    """)
    st.stamp(a)
    a(f"""
    ds_read_b128 {vr(vEnt,4)}, v{vT0} offset:{STAGE}
    ds_read_b128 {vr(vAdr,4)}, v{vT0} offset:{STAGE+8192}
    s_cmp_eq_u32 s{sWave}, 0
    s_cbranch_scc0 K1_NOHDR
    v_mov_b32 v{vT3}, {OVC}
    ds_read_b32 v{vRank}, v{vT3}
    s_lshl_b32 s24, s2, 4
    s_add_u32 s24, s24, {WS_HDR}
    v_mov_b32 v{vT2}, s24
    s_waitcnt lgkmcnt(0)
    s_mov_b64 exec, 1
    buffer_store_dword v{vRank}, v{vT2}, s[{sWS}:{sWS+3}], 0 offen {opt.cellst}
    s_mov_b64 exec, -1
    K1_NOHDR:
    s_waitcnt lgkmcnt(1)
    buffer_store_dwordx4 {vr(vEnt,4)}, v{vGo}, s[{sWS}:{sWS+3}], s22 offen {opt.cellst}
    s_waitcnt lgkmcnt(0)
    buffer_store_dwordx4 {vr(vAdr,4)}, v{vGo}, s[{sWS}:{sWS+3}], s23 offen {opt.cellst}
    """)
    st.stamp(a)
    if opt.stamps:
        a("s_waitcnt vmcnt(0)")
        st.stamp(a)
    st.flush(a, sWS, vT0, sWave)
    a("""
    K1_END:
    s_endpgm
    """)
    a(f"""
    K1_PFWAVE:
    s_mov_b64 exec, -1
    s_load_dwordx4 s[24:27], s[0:1], 24
    s_barrier
    s_lshr_b32 s22, s2, 3
    s_mul_i32 s22, s22, 100096
    v_and_b32 v{vT2}, 63, v0
    v_lshlrev_b32 v{vT2}, 7, v{vT2}
    """)
    for i in range(13):
        a(f"buffer_load_dword v{vJ}, v{vT2}, s[{sX}:{sX+3}], s22 offen")
        a(f"s_add_u32 s22, s22, 8192")
    a(f"""
    s_waitcnt lgkmcnt(0)
    s_mov_b32 s32, s24
    s_mov_b32 s33, s25
    s_mov_b32 s34, 32768
    s_mov_b32 s35, 0x00020000
    s_mov_b32 s36, s26
    s_mov_b32 s37, s27
    s_mov_b32 s38, 32768
    s_mov_b32 s39, 0x00020000
    s_lshr_b32 s22, s2, 3
    s_and_b32 s22, s22, 3
    s_lshl_b32 s22, s22, 13
    buffer_load_dword v{vJ}, v{vT2}, s[32:35], s22 offen
    buffer_load_dword v{vJ}, v{vT2}, s[36:39], s22 offen
    s_barrier
    s_endpgm
    """)
    return a.text(), LDS, 40

def tile_a_addr(a, vdst, vlane, t0, t1, sP, wbase):
    a(f"""
    v_bfe_u32 v{t0}, v{vlane}, 2, 2
    v_lshrrev_b32 v{t1}, 5, v{vlane}
    v_lshl_add_u32 v{vdst}, v{t1}, 3, v{t0}
    v_lshlrev_b32 v{vdst}, 8, v{vdst}
    v_xor_b32 v{t0}, s{sP}, v{t0}
    v_lshl_add_u32 v{vdst}, v{t0}, 6, v{vdst}
    v_bfe_u32 v{t0}, v{vlane}, 4, 1
    v_bfe_u32 v{t1}, v{vlane}, 1, 1
    v_lshl_add_u32 v{t0}, v{t0}, 1, v{t1}
    v_and_b32 v{t1}, 1, v{vlane}
    v_lshl_add_u32 v{t0}, v{t1}, 2, v{t0}
    v_lshl_add_u32 v{vdst}, v{t0}, 3, v{vdst}
    v_add_u32 v{vdst}, {wbase}, v{vdst}
    """)

def tile_b_addr(a, vdst, vrow, vlane, t0):
    a(f"""
    v_lshrrev_b32 v{t0}, 5, v{vlane}
    v_xor_b32 v{t0}, v{t0}, v{vrow}
    v_and_b32 v{t0}, 15, v{t0}
    v_lshlrev_b32 v{t0}, 4, v{t0}
    v_lshl_add_u32 v{vdst}, v{vrow}, 8, v{t0}
    """)

def gen_k2(opt):
    a = A()
    HIST, MAXC, ZROW, TBL = 0, 256, 512, 1024
    NPC = TBL + 1024
    LIST = NPC + 256
    LISTW = 5120
    UNODE = LIST + LISTW * 4
    QS = UNODE + 1280 * 4
    AGGB = QS + 52 * 256
    PIECE = AGGB + 64 * 256
    XT = PIECE
    WQ = XT + 16384
    WV = PIECE + (DUMMY + 64) * 512
    LDS = WV + 32768
    assert WQ + 32768 <= WV
    st = Stamps(opt.stamps, 64, WS_STAMP + 0x40000)
    sX, sWQ, sWV, sOUT, sWS = 4, 8, 12, 16, 20
    sBeta, sWave, sR, sNR = 24, 25, 26, 27
    sOdd = 28
    sBeta24, sHB, sP, sNH, s196 = 30, 31, 32, 33, 34
    sM = 36
    sSave = 50
    sCnt, sQ, sRem, sT = 52, 53, 54, 55
    vC16, vPB, vLA, vUA, vPrev = 1, 2, 3, 4, 5
    vQP, vQC, vQN = 6, 8, 10
    vAl = (12, 14)
    vQB = 16
    vT0, vT1, vT2, vT3 = 17, 18, 19, 20
    vLane, vStart, vPc = 21, 22, 23
    vAcc, vP, vE, vQ = 24, 32, 40, 48
    vXA, vXB, vTot = 56, 88, 120
    vCand, vHdr, vSo, vN4, vRk = 56, 60, 64, 72, 80
    vCnt = 47
    vWl = 6
    vWa, vBa, vRow, vQst = 12, 13, 14, 15
    npf = 0
    a(f"""
    {NAME}_k2_kernel:
    s_cmp_ge_u32 s2, {NB}
    s_cbranch_scc1 K2_END
    s_load_dwordx2 s[{sWS}:{sWS+1}], s[0:1], 56
    s_load_dwordx2 s[{sX}:{sX+1}], s[0:1], 0
    s_load_dwordx2 s[{sWQ}:{sWQ+1}], s[0:1], 24
    s_load_dwordx2 s[{sWV}:{sWV+1}], s[0:1], 32
    s_load_dwordx2 s[{sOUT}:{sOUT+1}], s[0:1], 40
    """)
    st.stamp(a)
    srd_tail(a, sWS, WS_USED if not opt.stamps else 0x2000000)
    a(f"""
    v_lshrrev_b32 v{vT0}, 6, v0
    s_and_b32 s{sBeta}, s2, 7
    s_lshl_b32 s{sBeta}, s{sBeta}, 5
    v_readfirstlane_b32 s{sWave}, v{vT0}
    s_lshr_b32 s3, s2, 3
    s_add_u32 s{sBeta}, s{sBeta}, s3
    v_mov_b32 v{vCand}, -1
    v_mov_b32 v{vCand+1}, -1
    v_mov_b32 v{vCand+2}, -1
    v_mov_b32 v{vCand+3}, -1
    v_mov_b32 v{vHdr}, 0
    v_lshlrev_b32 v{vT0}, 4, v0
    v_bfe_u32 v{vT1}, v0, 2, 5
    s_lshl_b32 s3, s{sBeta}, 14
    s_mov_b32 s{sT}, {WS_HDR}
    v_lshlrev_b32 v{vT1}, 3, v{vT1}
    v_lshrrev_b32 v{vT2}, 7, v0
    v_add_u32 v{vT1}, v{vT1}, v{vT2}
    v_cmp_gt_u32 vcc, {C}, v{vT1}
    s_and_saveexec_b64 s[{sSave}:{sSave+1}], vcc
    s_waitcnt lgkmcnt(0)
    buffer_load_dwordx4 {vr(vCand,4)}, v{vT0}, s[{sWS}:{sWS+3}], s3 offen
    s_mov_b64 exec, s[{sSave}:{sSave+1}]
    s_cmp_ge_u32 s{sWave}, 4
    s_cbranch_scc1 K2_L1
    v_cmp_gt_u32 vcc, {C}, v0
    s_and_saveexec_b64 s[{sSave}:{sSave+1}], vcc
    buffer_load_dwordx4 {vr(vHdr,4)}, v{vT0}, s[{sWS}:{sWS+3}], s{sT} offen
    s_mov_b64 exec, s[{sSave}:{sSave+1}]
    v_mov_b32 v{vT2}, 0
    v_lshlrev_b32 v{vT3}, 2, v0
    ds_write_b32 v{vT3}, v{vT2} offset:{HIST}
    K2_L1:
    s_waitcnt lgkmcnt(0)
    s_barrier
    """)
    st.stamp(a)
    srd_tail(a, sX, XBYTES); srd_tail(a, sWQ, 32768); srd_tail(a, sWV, 32768); srd_tail(a, sOUT, XBYTES)
    a(f"""
    v_and_b32 v{vLane}, 63, v0
    v_bfe_u32 v{vT0}, v0, 4, 2
    v_and_b32 v{vT1}, 15, v0
    v_lshlrev_b32 v{vC16}, 4, v{vT1}
    s_cmp_ge_u32 s{sWave}, 13
    s_cbranch_scc1 K2_L2
    s_lshl_b32 s3, s{sWave}, 2
    v_add_u32 v{vT2}, s3, v{vT0}
    v_xor_b32 v{vT3}, v{vT2}, v{vT1}
    v_and_b32 v{vT3}, 15, v{vT3}
    v_lshlrev_b32 v{vT3}, 4, v{vT3}
    v_lshl_add_u32 v{vT3}, v{vT2}, 8, v{vT3}
    s_mul_i32 s3, s{sBeta}, {T*256}
    s_lshl_b32 s{sT}, s{sWave}, 10
    s_add_u32 s{sT}, s{sT}, {XT}
    s_mov_b32 m0, s{sT}
    s_nop 0
    buffer_load_dwordx4 v{vT3}, s[{sX}:{sX+3}], s3 offen lds
    K2_L2:
    v_lshlrev_b32 v{vT2}, 2, v{vT0}
    v_xor_b32 v{vT2}, v{vT2}, v{vT1}
    v_lshlrev_b32 v{vT2}, 4, v{vT2}
    v_lshl_add_u32 v{vT2}, v{vT0}, 8, v{vT2}
    s_lshl_b32 s3, s{sWave}, 11
    s_add_u32 s{sT}, s3, {WQ}
    s_mov_b32 m0, s{sT}
    s_add_u32 s{sT}, s{sT}, 1024
    buffer_load_dwordx4 v{vT2}, s[{sWQ}:{sWQ+3}], s3 offen lds
    s_mov_b32 m0, s{sT}
    s_add_u32 s{sCnt}, s3, 1024
    buffer_load_dwordx4 v{vT2}, s[{sWQ}:{sWQ+3}], s{sCnt} offen lds
    s_mov_b32 s{sR}, 0
    v_mov_b32 v{vWl}, v{vT2}
    """)
    if npf:
        a(f"""
        s_lshr_b32 s3, s2, 3
        s_mul_i32 s3, s3, 100096
        v_lshlrev_b32 v{vT3}, 7, v0
        v_mov_b32 v{vT1}, {OOB}
        v_cmp_gt_u32 vcc, 782, v0
        s_nop 1
        v_cndmask_b32_e64 v{vT3}, v{vT1}, v{vT3}, vcc
        buffer_load_dword v{vQP}, v{vT3}, s[{sX}:{sX+3}], s3 offen
        """)
    a(f"""
    s_mov_b32 s{sOdd}, 0xaaaaaaaa
    s_mov_b32 s{sOdd+1}, 0xaaaaaaaa
    s_movk_i32 s{s196}, {T*4}
    s_lshl_b32 s{sBeta24}, s{sBeta}, 24
    s_lshl_b32 s3, s{sWave}, 11
    s_add_u32 s3, s3, {PIECE}
    v_lshl_add_u32 v{vPB}, v{vT0}, 9, s3
    v_add_u32 v{vPB}, v{vPB}, v{vC16}
    """)
    for i in range(8):
        a(f"v_mov_b32 v{vTot+i}, 0")
    a(f"""
    s_and_b32 s{sP}, s{sWave}, 3
    s_bfe_u32 s{sNH}, s{sWave}, 0x10002
    s_cmp_ge_u32 s{sWave}, 8
    s_cbranch_scc1 K2_NOQA
    """)
    tile_a_addr(a, vWa, vLane, vT2, vT3, sP, WQ)
    a(f"""
    v_and_b32 v{vRow}, 31, v{vLane}
    s_lshl_b32 s3, s{sNH}, 5
    v_add_u32 v{vRow}, s3, v{vRow}
    """)
    tile_b_addr(a, vBa, vRow, vLane, vT3)
    a(f"""
    v_bfe_u32 v{vT2}, v{vRow}, 2, 1
    v_mul_u32_u24 v{vT2}, 12, v{vT2}
    v_and_b32 v{vT3}, 3, v{vRow}
    v_or_b32 v{vT2}, v{vT2}, v{vT3}
    v_lshrrev_b32 v{vT3}, 5, v{vLane}
    s_lshl_b32 s3, s{sP}, 2
    v_lshl_add_u32 v{vT3}, v{vT3}, 1, s3
    v_xor_b32 v{vT2}, v{vT2}, v{vT3}
    v_lshlrev_b32 v{vT2}, 4, v{vT2}
    v_lshl_add_u32 v{vQst}, v{vRow}, 8, v{vT2}
    K2_NOQA:
    v_mov_b32 v{vT3}, 1
    s_cmp_lt_u32 s{sWave}, 13
    s_cbranch_scc0 K2_WAIT4
    s_waitcnt vmcnt(3)
    s_branch K2_WAITD
    K2_WAIT4:
    s_waitcnt vmcnt(2)
    K2_WAITD:
    """)
    st.stamp(a)
    def decode(word, i):
        m = sM + 2*i
        a(f"""
        v_lshlrev_b32 v{vN4+i}, 2, v{word}
        v_and_b32 v{vN4+i}, 0xfc, v{vN4+i}
        v_cmp_gt_u32 s[{m}:{m+1}], s{s196}, v{vN4+i}
        v_and_b32 v{vSo+i}, 0x00ffff00, v{word}
        s_mov_b64 exec, s[{m}:{m+1}]
        ds_add_rtn_u32 v{vRk+i}, v{vN4+i}, v{vT3} offset:{HIST}
        s_mov_b64 exec, -1
        """)
    a("K2_DECODE:")
    for i in range(4):
        decode(vCand+i, i)
    a(f"""
    s_mov_b64 s[{sM+8}:{sM+9}], 0
    s_mov_b64 s[{sM+10}:{sM+11}], 0
    s_mov_b64 s[{sM+12}:{sM+13}], 0
    s_cmp_ge_u32 s{sWave}, 4
    s_cbranch_scc1 K2_NOHDR
    v_cmp_lt_u32 vcc, 0, v{vHdr}
    s_cbranch_vccz K2_NOHDR
    v_mov_b32 v{vT0}, {MAXC}
    ds_max_u32 v{vT0}, v{vHdr}
    """)
    for i in range(4, 7):
        w = vHdr + (i-3)
        a(f"""
        v_lshrrev_b32 v{vT0}, 24, v{w}
        v_cmp_eq_u32 s[{sSave}:{sSave+1}], s{sBeta}, v{vT0}
        v_cmp_lt_u32 vcc, {i-4}, v{vHdr}
        v_mov_b32 v{vT1}, -1
        s_and_b64 vcc, vcc, s[{sSave}:{sSave+1}]
        s_nop 1
        v_cndmask_b32_e64 v{w}, v{vT1}, v{w}, vcc
        """)
        decode(w, i)
    a(f"""
    K2_NOHDR:
    s_waitcnt vmcnt(0) lgkmcnt(0)
    s_barrier
    """)
    st.stamp(a)
    a(f"""
    v_lshlrev_b32 v{vT2}, 2, v{vLane}
    v_mov_b32 v{vT3}, {MAXC}
    ds_read_b32 v{vCnt}, v{vT2} offset:{HIST}
    ds_read_b32 v{vT3}, v{vT3}
    """)
    vA8, vB8, vAc = vXB, 40, 24
    a(f"""
    s_waitcnt lgkmcnt(0)
    v_add_u32 v{vPc}, 3, v{vCnt}
    v_and_b32 v{vPc}, -4, v{vPc}
    v_mov_b32 v{vStart}, v{vPc}
    v_readfirstlane_b32 s3, v{vT3}
    s_nop 0
    """)
    scan64(a, vStart, None)
    a(f"""
    s_nop 0
    v_readlane_b32 s{sCnt}, v{vStart}, 63
    v_sub_u32 v{vStart}, v{vStart}, v{vPc}
    """)
    for i in range(4):
        a(f"ds_bpermute_b32 v{vE+i}, v{vN4+i}, v{vStart}")
    a(f"""
    s_cmp_eq_u32 s{sR}, 0
    s_cbranch_scc0 K2_NRDONE
    s_min_u32 s3, s3, {CH}
    s_max_u32 s3, s3, 3
    s_add_u32 s3, s3, 12
    s_lshr_b32 s3, s3, 4
    s_add_u32 s{sNR}, s3, 1
    K2_NRDONE:
    """)
    a(f"""
    v_bfe_u32 v{vT0}, v{vLane}, 2, 1
    v_mul_u32_u24 v{vT0}, 12, v{vT0}
    v_and_b32 v{vT1}, 3, v{vLane}
    v_or_b32 v{vT0}, v{vT0}, v{vT1}
    v_lshlrev_b32 v{vT1}, 8, v{vLane}
    v_lshl_or_b32 v{vT1}, v{vT0}, 4, v{vT1}
    s_lshl_b32 s{sT}, s{sWave}, 2
    K2_UN:
    v_cmp_lt_u32 vcc, s{sT}, v{vPc}
    s_cbranch_vccz K2_UND
    v_add_u32 v{vT0}, s{sT}, v{vStart}
    s_mov_b64 exec, vcc
    ds_write_b32 v{vT0}, v{vT1} offset:{UNODE}
    s_mov_b64 exec, -1
    s_add_u32 s{sT}, s{sT}, 64
    s_branch K2_UN
    K2_UND:
    """)
    a(f"""
    s_sub_u32 s{sT}, s{sWave}, 8
    s_cmp_gt_u32 s{sT}, 4
    s_cbranch_scc1 K2_NOPAD
    v_mov_b32 v{vT2}, {OOB}
    s_cmp_gt_u32 s{sT}, 2
    s_cbranch_scc1 K2_TAILPAD
    v_sub_u32 v{vT1}, v{vPc}, v{vCnt}
    v_add_u32 v{vT0}, v{vStart}, v{vCnt}
    v_cmp_lt_u32 vcc, s{sT}, v{vT1}
    v_add_u32 v{vT0}, s{sT}, v{vT0}
    v_lshlrev_b32 v{vT0}, 2, v{vT0}
    s_mov_b64 exec, vcc
    ds_write_b32 v{vT0}, v{vT2} offset:{LIST}
    s_mov_b64 exec, -1
    s_branch K2_NOPAD
    K2_TAILPAD:
    v_lshlrev_b32 v{vT1}, 2, v{vLane}
    s_cmp_eq_u32 s{sT}, 3
    s_cbranch_scc0 K2_TAILU
    s_lshl_b32 s{sT}, s{sCnt}, 2
    v_add_u32 v{vT0}, s{sT}, v{vT1}
    s_mov_b64 exec, 0xfffffff
    ds_write_b32 v{vT0}, v{vT2} offset:{LIST}
    s_mov_b64 exec, -1
    s_branch K2_NOPAD
    K2_TAILU:
    v_add_u32 v{vT0}, s{sCnt}, v{vT1}
    v_mov_b32 v{vT2}, {DUMMY*256 + 16*((DUMMY & 3) | (12*((DUMMY >> 2) & 1)))}
    s_mov_b64 exec, 0x7f
    ds_write_b32 v{vT0}, v{vT2} offset:{UNODE}
    s_mov_b64 exec, -1
    K2_NOPAD:
    """)
    def scatter(i, last):
        m = sM + 2*i
        a(f"""
        v_add_lshl_u32 v{vE+i}, v{vE+i}, v{vRk+i}, 2
        s_mov_b64 exec, s[{m}:{m+1}]
        ds_write_b32 v{vE+i}, v{vSo+i} offset:{LIST}
        s_mov_b64 exec, -1
        """)
    a("s_waitcnt lgkmcnt(0)")
    for i in range(4):
        scatter(i, i == 3)
    a(f"""
    s_or_b64 s[{sSave}:{sSave+1}], s[{sM+8}:{sM+9}], s[{sM+10}:{sM+11}]
    s_or_b64 s[{sSave}:{sSave+1}], s[{sSave}:{sSave+1}], s[{sM+12}:{sM+13}]
    s_cbranch_scc0 K2_SC_DONE
    """)
    for i in range(4, 7):
        a(f"ds_bpermute_b32 v{vE+i}, v{vN4+i}, v{vStart}")
    a("s_waitcnt lgkmcnt(0)")
    for i in range(4, 7):
        scatter(i, i == 6)
    a(f"""
    K2_SC_DONE:
    s_add_u32 s3, s{sCnt}, 31
    s_lshr_b32 s3, s3, 5
    s_lshr_b32 s{sQ}, s3, 4
    s_and_b32 s{sRem}, s3, 15
    """)
    st.stamp(a)
    vA8, vQAcc = vXB, vAcc
    Bq = [vE, vE+4, vQ, vQ+4]
    a(f"""
    s_cmp_eq_u32 s{sR}, 0
    s_cselect_b32 s{sT}, 8, 0
    s_cmp_ge_u32 s{sWave}, s{sT}
    s_cbranch_scc1 K2_NOQ
    """)
    for ks in range(6):
        a(f"ds_read_b64_tr_b16 {vr(vA8+4*ks,2)}, v{vWa} offset:{ks*4096}")
        a(f"ds_read_b64_tr_b16 {vr(vA8+4*ks+2,2)}, v{vWa} offset:{ks*4096 + 1024}")
    for hp in range(2):
        if hp == 1:
            for ks in range(6, 8):
                a(f"ds_read_b64_tr_b16 {vr(vA8+4*ks,2)}, v{vWa} offset:{ks*4096}")
                a(f"ds_read_b64_tr_b16 {vr(vA8+4*ks+2,2)}, v{vWa} offset:{ks*4096 + 1024}")
        if hp == 0: a("s_waitcnt lgkmcnt(8)")
        for k4 in range(4):
            ks = 4*hp + k4
            a(f"v_xor_b32 v{vT3}, {32*ks}, v{vBa}")
            a(f"ds_read_b128 {vr(Bq[k4],4)}, v{vT3} offset:{XT}")
        for k4 in range(4):
            ks = 4*hp + k4
            a(f"s_waitcnt lgkmcnt({3-k4})")
            c = "0" if ks == 0 else vr(vQAcc,16)
            a(f"v_mfma_f32_32x32x16_bf16 {vr(vQAcc,16)}, {vr(vA8+4*ks,4)}, {vr(Bq[k4],4)}, {c}")
    a(f"""
    v_cmp_gt_u32 vcc, 52, v{vRow}
    v_xor_b32 v{vT3}, 16, v{vQst}
    s_nop 7
    s_nop 2
    """)
    for i in range(8):
        a(f"v_cvt_pk_bf16_f32 v{vA8+i}, v{vQAcc+2*i}, v{vQAcc+2*i+1}")
    a(f"""
    s_mov_b64 exec, vcc
    ds_write_b128 v{vQst}, {vr(vA8,4)} offset:{QS}
    ds_write_b128 v{vT3}, {vr(vA8+4,4)} offset:{QS}
    s_mov_b64 exec, -1
    K2_NOQ:
    s_cmp_lt_u32 s{sWave}, s{sRem}
    s_cselect_b32 s{sNH}, 1, 0
    s_add_u32 s{sHB}, s{sQ}, s{sNH}
    s_min_u32 s3, s{sRem}, s{sWave}
    s_mul_i32 s{sT}, s{sQ}, s{sWave}
    s_add_u32 s{sT}, s{sT}, s3
    v_lshrrev_b32 v{vT0}, 4, v{vLane}
    s_lshl_b32 s3, s{sHB}, 1
    v_mul_u32_u24 v{vT0}, s3, v{vT0}
    s_lshl_b32 s3, s{sT}, 3
    v_add_u32 v{vT0}, s3, v{vT0}
    v_lshlrev_b32 v{vLA}, 4, v{vT0}
    v_lshlrev_b32 v{vUA}, 2, v{vT0}
    """)
    for i in range(8):
        a(f"v_mov_b32 v{vAcc+i}, 0")
    a(f"""
    s_waitcnt lgkmcnt(0)
    s_barrier
    """)
    st.stamp(a)
    if "cyc" in opt.exp: st.stamp(a, True)
    if opt.prio: a("s_setprio 3")
    a(f"""
    s_cmp_eq_u32 s{sHB}, 0
    s_cbranch_scc1 K2_NOMAIN
    ds_read_b128 {vr(vE,4)}, v{vLA} offset:{LIST}
    ds_read_b128 {vr(vE+4,4)}, v{vLA} offset:{LIST+16}
    ds_read_b64 {vr(vQC,2)}, v{vUA} offset:{UNODE}
    s_waitcnt lgkmcnt(1)
    """)
    for u in range(8):
        a(f"v_add_u32 v{vE+u}, v{vE+u}, v{vC16}")
        a(f"buffer_load_dwordx4 {vr(vXA+4*u,4)}, v{vE+u}, s[{sX}:{sX+3}], 0 offen")
        if u == 0:
            a(f"""
            s_waitcnt lgkmcnt(0)
            v_xor_b32 v{vT0}, v{vQC}, v{vC16}
            v_xor_b32 v{vT1}, v{vQC+1}, v{vC16}
            ds_read_b128 {vr(vQ,4)}, v{vT0} offset:{QS}
            ds_read_b128 {vr(vQ+4,4)}, v{vT1} offset:{QS}
            v_mov_b32 v{vPrev}, v{vQC}
            """)
    if "bstamp" in opt.exp: st.stamp(a)
    wv_id = [0]
    def wv_dma():
        i = wv_id[0]; wv_id[0] += 1
        a(f"""
        s_cmp_eq_u32 s{sR}, 0
        s_cbranch_scc0 K2_NOWV{i}
        s_lshl_b32 s3, s{sWave}, 11
        s_add_u32 s{sT}, s3, {WV}
        s_mov_b32 m0, s{sT}
        s_add_u32 s{sT}, s{sT}, 1024
        buffer_load_dwordx4 v{vWl}, s[{sWV}:{sWV+3}], s3 offen lds
        s_mov_b32 m0, s{sT}
        s_add_u32 s3, s3, 1024
        buffer_load_dwordx4 v{vWl}, s[{sWV}:{sWV+3}], s3 offen lds
        K2_NOWV{i}:
        """)
    flush_id = [0]
    def flush(prev, masked):
        fid = flush_id[0]; flush_id[0] += 1
        t = ""
        if masked is not None:
            t += f"""
            v_cmp_ne_u32 vcc, v{masked}, v{prev}
            s_cbranch_vccz K2_FL{fid}
            s_mov_b64 exec, vcc
            """
        t += f"""
        v_and_b32 v{vT0}, 0xffffff00, v{prev}
        v_lshl_add_u32 v{vT0}, v{vT0}, 1, v{vPB}
        ds_write_b128 v{vT0}, {vr(vAcc,4)}
        ds_write_b128 v{vT0}, {vr(vAcc+4,4)} offset:256
        """
        if masked is not None:
            for i in range(8):
                t += f"v_mov_b32 v{vAcc+i}, 0\n"
            t += f"""
            s_mov_b64 exec, -1
            K2_FL{fid}:
            """
        return t
    def dots(X, waits):
        for half in range(2):
            a(waits[half])
            if "nodots" in opt.exp: continue
            for r in range(4):
                for u in range(4*half, 4*half+4):
                    if r == 0:
                        a(f"v_dot2_f32_bf16 v{vP+u}, v{X+4*u}, v{vQ+4*half}, 0")
                    else:
                        a(f"v_dot2c_f32_bf16 v{vP+u}, v{X+4*u+r}, v{vQ+4*half+r}")
    def chain(al):
        c = []
        for j in range(4):
            c.append(f"v_add_f32_dpp v{vP+j}, v{vP+j}, v{vP+j} row_mirror row_mask:0xf bank_mask:0x3")
        for j in range(4):
            c.append(f"v_add_f32_dpp v{vP+j}, v{vP+j+4}, v{vP+j+4} row_mirror row_mask:0xf bank_mask:0xc")
        for j in range(2):
            c.append(f"v_add_f32_dpp v{vP+j}, v{vP+j}, v{vP+j} row_half_mirror row_mask:0xf bank_mask:0x5")
        for j in range(2):
            c.append(f"v_add_f32_dpp v{vP+j}, v{vP+j+2}, v{vP+j+2} row_half_mirror row_mask:0xf bank_mask:0xa")
        c.append(f"v_add_f32_dpp v{vP+2}, v{vP}, v{vP} quad_perm:[1,0,3,2] row_mask:0xf bank_mask:0xf")
        c.append(f"v_add_f32_dpp v{vP+3}, v{vP+1}, v{vP+1} quad_perm:[1,0,3,2] row_mask:0xf bank_mask:0xf")
        c.append(f"v_cndmask_b32_e64 v{vP}, v{vP+2}, v{vP+3}, s[{sOdd}:{sOdd+1}]")
        c.append(f"v_add_f32_dpp v{vP}, v{vP}, v{vP} quad_perm:[2,3,0,1] row_mask:0xf bank_mask:0xf")
        if opt.mimic:
            c += [f"v_cvt_pk_bf16_f32 v{vP}, v{vP}, v{vP}", f"v_and_b32 v{vP}, 0xffff0000, v{vP}",
                  f"v_mul_f32 v{vP}, 0x3db504f3, v{vP}", f"v_cvt_pk_bf16_f32 v{vP}, v{vP}, v{vP}",
                  f"v_and_b32 v{vP}, 0xffff0000, v{vP}", f"v_mul_f32 v{vP}, 0xbfb8aa3b, v{vP}"]
        else:
            c.append(f"v_mul_f32 v{vP}, 0xbe0293ee, v{vP}")
        c += [f"v_exp_f32 v{vP}, v{vP}", f"v_add_f32 v{vP}, 1.0, v{vP}", f"v_rcp_f32 v{vP}, v{vP}",
              f"v_cvt_pk_bf16_f32 v{al}, v{vP}, 0", f"v_cvt_pk_bf16_f32 v{al+1}, 0, v{vP}"]
        return c
    def chain_alone(al):
        c = chain(al)
        gaps = {9: 1, 11: 1, 14: 2, 17 + (5 if opt.mimic else 0): 1, 19 + (5 if opt.mimic else 0): 1}
        for i, ins in enumerate(c):
            a(ins)
            if i in gaps: a(f"s_nop {gaps[i]-1}")
    def agg_stream(X, al, loads, Xdst, qp=None):
        out = []
        qp = vQP if qp is None else qp
        for half in range(2):
            if half == 0:
                out.append(('x', flush(vPrev, qp)))
            else:
                out.append(('x', "s_nop 1\n" + flush(qp, qp+1)))
            for u in range(4*half, 4*half+4):
                k = 4*(u >> 1) + (u & 1)
                for r in range(4):
                    if "noagg" in opt.exp:
                        out.append(('v', "s_nop 0")); out.append(('v', "s_nop 0")); continue
                    out.append(('v', f"v_dot2c_f32_bf16_dpp v{vAcc+2*r}, v{al}, v{X+4*u+r} row_newbcast:{k} row_mask:0xf bank_mask:0xf"))
                    out.append(('v', f"v_dot2c_f32_bf16_dpp v{vAcc+2*r+1}, v{al+1}, v{X+4*u+r} row_newbcast:{k} row_mask:0xf bank_mask:0xf"))
                if loads and "noload" not in opt.exp:
                    out.append(('x', f"buffer_load_dwordx4 {vr(Xdst+4*u,4)}, v{vE+u}, s[{sX}:{sX+3}], 0 offen"))
        return out
    def next_prep():
        a("s_waitcnt lgkmcnt(0)")
        a(f"v_xor_b32 v{vT0}, v{vQN}, v{vC16}")
        a(f"v_xor_b32 v{vT1}, v{vQN+1}, v{vC16}")
    def rotate(nxt):
        a(f"v_mov_b32 v{vQP}, v{vQC}")
        a(f"v_mov_b32 v{vQP+1}, v{vQC+1}")
        if nxt:
            a(f"v_mov_b32 v{vQC}, v{vQN}")
            a(f"v_mov_b32 v{vQC+1}, v{vQN+1}")
            a(f"v_add_u32 v{vLA}, 32, v{vLA}")
            a(f"v_add_u32 v{vUA}, 8, v{vUA}")
    def mid(cur, prev, al_cur, al_prev, nxt):
        a("s_waitcnt lgkmcnt(0)")
        if nxt:
            a(f"""
            ds_read_b128 {vr(vE,4)}, v{vLA} offset:{LIST+32}
            ds_read_b128 {vr(vE+4,4)}, v{vLA} offset:{LIST+48}
            ds_read_b64 {vr(vQN,2)}, v{vUA} offset:{UNODE+8}
            """)
        dots(cur, ("s_waitcnt vmcnt(4)", "s_waitcnt vmcnt(0)"))
        if nxt:
            next_prep()
            for u in range(8):
                a(f"v_add_u32 v{vE+u}, v{vE+u}, v{vC16}")
            a(f"ds_read_b128 {vr(vQ,4)}, v{vT0}")
            a(f"ds_read_b128 {vr(vQ+4,4)}, v{vT1}")
        else:
            a("s_nop 2")
        c = chain(al_cur)
        s_ = agg_stream(prev, al_prev, nxt, prev)
        nv = sum(1 for k, _ in s_ if k == 'v')
        ci, vi = 0, 0
        for k, t in s_:
            a(t)
            if k == 'v':
                vi += 1
                if ci < len(c) and vi >= (ci + 1) * nv // (len(c) + 1) and vi % 1 == 0:
                    a(c[ci]); ci += 1
        assert ci == len(c)
        a(f"v_mov_b32 v{vPrev}, v{vQP+1}")
        rotate(nxt)
    def final(X, al):
        for k, t in agg_stream(X, al, False, None):
            a(t)
        a("s_nop 2")
        a(flush(vQP+1, None))
        a("s_branch K2_MAIN_DONE")
    def roll_body(nxt):
        al = vAl[0]
        a("s_waitcnt lgkmcnt(0)")
        if nxt:
            a(f"""
            ds_read_b128 {vr(vE,4)}, v{vLA} offset:{LIST+32}
            ds_read_b128 {vr(vE+4,4)}, v{vLA} offset:{LIST+48}
            ds_read_b64 {vr(vQN,2)}, v{vUA} offset:{UNODE+8}
            """)
        dots(vXA, ("s_waitcnt vmcnt(4)", "s_waitcnt vmcnt(0)"))
        if not nxt: wv_dma()
        fill = []
        if nxt:
            next_prep()
            a(f"v_add_u32 v{vE}, v{vE}, v{vC16}")
            fill = [f"v_add_u32 v{vE+u}, v{vE+u}, v{vC16}" for u in range(1, 8)]
        else:
            a("s_nop 2")
        c = chain(al)
        gaps = {11: 1, 14: 2, 17 + (5 if opt.mimic else 0): 1, 19 + (5 if opt.mimic else 0): 1}
        for i, ins in enumerate(c):
            a(ins)
            if i == 3 and nxt:
                a(f"ds_read_b128 {vr(vQ,4)}, v{vT0} offset:{QS}")
                a(f"ds_read_b128 {vr(vQ+4,4)}, v{vT1} offset:{QS}")
            for _ in range(gaps.get(i, 0)):
                a(fill.pop(0) if fill else "s_nop 0")
        while fill: a(fill.pop(0))
        a("s_nop 0")
        for k, t in agg_stream(vXA, al, nxt, vXA, vQC):
            a(t)
        a(f"v_mov_b32 v{vPrev}, v{vQC+1}")
        if nxt:
            a(f"v_mov_b32 v{vQC}, v{vQN}")
            a(f"v_mov_b32 v{vQC+1}, v{vQN+1}")
            a(f"v_add_u32 v{vLA}, 32, v{vLA}")
            a(f"v_add_u32 v{vUA}, 8, v{vUA}")
    if True:
        a(f"""
        s_cmp_eq_u32 s{sHB}, 1
        s_cbranch_scc1 K2_LAST
        K2_LOOP:
        """)
        if opt.prio:
            a(f"""
            s_cmp_ge_u32 s{sHB}, 4
            s_cbranch_scc1 K2_PR0
            s_setprio 2
            s_cmp_eq_u32 s{sHB}, 3
            s_cbranch_scc1 K2_PR0
            s_setprio 1
            K2_PR0:
            """)
        roll_body(True)
        a(f"""
        s_sub_u32 s{sHB}, s{sHB}, 1
        s_cmp_gt_u32 s{sHB}, 1
        s_cbranch_scc1 K2_LOOP
        K2_LAST:
        """)
        if opt.prio: a("s_setprio 0")
        roll_body(False)
        a("s_nop 2")
        a(flush(vPrev, None))
    a("s_branch K2_MAIN_DONE")
    a("K2_NOMAIN:")
    wv_dma()
    a("K2_MAIN_DONE:")
    if opt.prio: a("s_setprio 0")
    if "cyc" in opt.exp: st.stamp(a, True)
    st.stamp(a)
    vSf, vSl = vE, vE+1
    a(f"""
    s_cmp_eq_u32 s{sWave}, 15
    s_cbranch_scc0 K2_NOTBL
    s_add_u32 s3, s{sQ}, 1
    s_lshl_b32 s3, s3, 1
    v_cvt_f32_u32 v{vT0}, s3
    s_mul_i32 s3, s3, s{sRem}
    s_lshl_b32 s{sP}, s3, 2
    s_lshl_b32 s3, s{sQ}, 1
    v_cvt_f32_u32 v{vT1}, s3
    v_rcp_f32 v{vT0}, v{vT0}
    v_rcp_f32 v{vT1}, v{vT1}
    s_lshl_b32 s3, s{sRem}, 2
    """)
    for (dst, last) in ((vSf, False), (vSl, True)):
        if not last:
            a(f"v_lshrrev_b32 v{vT2}, 2, v{vStart}")
        else:
            a(f"""
            v_add_u32 v{vT2}, v{vStart}, v{vPc}
            v_lshrrev_b32 v{vT2}, 2, v{vT2}
            v_add_u32 v{vT2}, -1, v{vT2}
            """)
        a(f"""
        v_cmp_gt_u32 vcc, s{sP}, v{vT2}
        v_cvt_f32_u32 v{vT3}, v{vT2}
        v_add_f32 v{vT3}, 0.5, v{vT3}
        v_mul_f32 v{vT3}, v{vT3}, v{vT0}
        v_cvt_u32_f32 v{vT3}, v{vT3}
        v_subrev_u32 v{vT2}, s{sP}, v{vT2}
        v_cvt_f32_u32 v{vT2}, v{vT2}
        v_add_f32 v{vT2}, 0.5, v{vT2}
        v_mul_f32 v{vT2}, v{vT2}, v{vT1}
        v_cvt_u32_f32 v{vT2}, v{vT2}
        v_add_u32 v{vT2}, s3, v{vT2}
        v_cndmask_b32_e64 v{dst}, v{vT2}, v{vT3}, vcc
        """)
    a(f"""
    v_sub_u32 v{vT0}, v{vSl}, v{vSf}
    v_add_u32 v{vT0}, 1, v{vT0}
    v_cmp_lt_u32 vcc, 0, v{vPc}
    v_add_u32 v{vT1}, v{vSf}, v{vLane}
    v_lshlrev_b32 v{vT1}, 9, v{vT1}
    v_cndmask_b32_e64 v{vT0}, 0, v{vT0}, vcc
    v_add_u32 v{vT1}, {PIECE}, v{vT1}
    v_lshlrev_b32 v{vT3}, 2, v{vLane}
    v_mov_b32 v{vT2}, {ZROW}
    ds_write_b32 v{vT3}, v{vT0} offset:{NPC}
    """)
    for j in range(4):
        a(f"""
        v_cmp_lt_u32 vcc, {j}, v{vT0}
        v_add_u32 v{vT3}, {512*j}, v{vT1}
        s_nop 0
        v_cndmask_b32_e64 v{vE+4+j}, v{vT2}, v{vT3}, vcc
        """)
    a(f"""
    v_lshlrev_b32 v{vT0}, 4, v{vLane}
    ds_write_b128 v{vT0}, {vr(vE+4,4)} offset:{TBL}
    K2_NOTBL:
    """)
    vA8 = vXB
    a(f"""
    s_cmp_ge_u32 s{sWave}, 8
    s_cbranch_scc1 K2_NOAA
    s_and_b32 s{sP}, s{sWave}, 3
    s_lshr_b32 s{sNH}, s{sWave}, 2
    """)
    tile_a_addr(a, vWa, vLane, vT2, vT3, sP, WV)
    a(f"""
    v_and_b32 v{vRow}, 31, v{vLane}
    s_lshl_b32 s3, s{sNH}, 5
    v_add_u32 v{vRow}, s3, v{vRow}
    """)
    tile_b_addr(a, vBa, vRow, vLane, vT3)
    a(f"""
    K2_NOAA:
    s_waitcnt vmcnt(0) lgkmcnt(0)
    s_barrier
    """)
    st.stamp(a)
    a(f"""
    s_add_u32 s3, s{sR}, 1
    s_cmp_ge_u32 s3, s{sNR}
    s_cselect_b32 s{sT}, 8, 0
    s_cmp_ge_u32 s{sWave}, s{sT}
    s_cbranch_scc1 K2_NOA
    """)
    for ks in range(6):
        a(f"ds_read_b64_tr_b16 {vr(vA8+4*ks,2)}, v{vWa} offset:{ks*4096}")
        a(f"ds_read_b64_tr_b16 {vr(vA8+4*ks+2,2)}, v{vWa} offset:{ks*4096 + 1024}")
    a("K2_NOA:")
    vB = vE
    vRd = vXA
    vNp = vT3
    a(f"""
    s_cmp_ge_u32 s{sWave}, 13
    s_cbranch_scc1 K2_RED_DONE
    v_lshrrev_b32 v{vT0}, 4, v{vLane}
    s_lshl_b32 s3, s{sWave}, 2
    v_add_u32 v{vT0}, s3, v{vT0}
    v_lshlrev_b32 v{vT1}, 4, v{vT0}
    v_lshlrev_b32 v{vT2}, 2, v{vT0}
    ds_read_b128 {vr(vB,4)}, v{vT1} offset:{TBL}
    ds_read_b32 v{vNp}, v{vT2} offset:{NPC}
    s_waitcnt lgkmcnt(0)
    """)
    for j in range(3):
        a(f"""
        v_add_u32 v{vB+j}, v{vB+j}, v{vC16}
        ds_read_b128 {vr(vRd+8*j,4)}, v{vB+j}
        ds_read_b128 {vr(vRd+8*j+4,4)}, v{vB+j} offset:256
        """)
    for j in range(3):
        a(f"s_waitcnt lgkmcnt({4-2*j})")
        for i in range(8):
            a(f"v_add_f32 v{vTot+i}, v{vTot+i}, v{vRd+8*j+i}")
    a(f"""
    s_mov_b32 s{sT}, 3
    K2_XL:
    v_cmp_lt_u32 vcc, s{sT}, v{vNp}
    s_cbranch_vccz K2_RED_DONE
    s_lshl_b32 s3, s{sT}, 9
    v_add_u32 v{vT0}, s3, v{vB}
    s_mov_b64 exec, vcc
    ds_read_b128 {vr(vRd,4)}, v{vT0}
    ds_read_b128 {vr(vRd+4,4)}, v{vT0} offset:256
    s_waitcnt lgkmcnt(0)
    """)
    for i in range(8):
        a(f"v_add_f32 v{vTot+i}, v{vTot+i}, v{vRd+i}")
    a(f"""
    s_mov_b64 exec, -1
    s_add_u32 s{sT}, s{sT}, 1
    s_branch K2_XL
    K2_RED_DONE:
    s_add_u32 s{sR}, s{sR}, 1
    s_cmp_ge_u32 s{sR}, s{sNR}
    s_cbranch_scc1 K2_EPI
    s_barrier
    """)
    a(f"""
    s_cmp_ge_u32 s{sWave}, 4
    s_cbranch_scc1 K2_RZ
    v_mov_b32 v{vT2}, 0
    v_lshlrev_b32 v{vT3}, 2, v0
    ds_write_b32 v{vT3}, v{vT2} offset:{HIST}
    K2_RZ:
    v_mov_b32 v{vCand}, -1
    v_mov_b32 v{vCand+1}, -1
    v_mov_b32 v{vCand+2}, -1
    v_mov_b32 v{vCand+3}, -1
    v_mov_b32 v{vHdr}, 0
    v_cmp_gt_u32 vcc, {C*4}, v0
    s_and_saveexec_b64 s[{sSave}:{sSave+1}], vcc
    s_cbranch_execz K2_R1
    v_lshrrev_b32 v{vT0}, 2, v0
    v_lshlrev_b32 v{vT2}, 4, v{vT0}
    v_add_u32 v{vT2}, {WS_HDR}, v{vT2}
    buffer_load_dword v{vT3}, v{vT2}, s[{sWS}:{sWS+3}], 0 offen
    v_lshlrev_b32 v{vT0}, 13, v{vT0}
    v_add_u32 v{vT0}, {WS_OVF}, v{vT0}
    s_lshl_b32 s3, s{sR}, 4
    s_sub_u32 s3, s3, 13
    v_and_b32 v{vT1}, 3, v0
    v_lshl_add_u32 v{vT1}, v{vT1}, 2, s3
    v_lshl_add_u32 v{vT0}, v{vT1}, 2, v{vT0}
    buffer_load_dwordx4 {vr(vSo,4)}, v{vT0}, s[{sWS}:{sWS+3}], 0 offen offset:4
    s_waitcnt vmcnt(0)
    """)
    for i in range(4):
        a(f"""
        v_add_u32 v{vT2}, {i}, v{vT1}
        v_cmp_lt_u32 vcc, v{vT2}, v{vT3}
        v_lshrrev_b32 v{vT0}, 24, v{vSo+i}
        v_cmp_eq_u32 s[{sM}:{sM+1}], s{sBeta}, v{vT0}
        s_nop 0
        s_and_b64 vcc, vcc, s[{sM}:{sM+1}]
        s_nop 1
        v_cndmask_b32_e64 v{vCand+i}, v{vCand+i}, v{vSo+i}, vcc
        """)
    a(f"""
    K2_R1:
    s_mov_b64 exec, s[{sSave}:{sSave+1}]
    v_mov_b32 v{vT3}, 1
    s_waitcnt lgkmcnt(0)
    s_barrier
    s_branch K2_DECODE
    K2_EPI:
    """)
    st.stamp(a)
    vAcc16, vB8 = 24, vXA
    a(f"""
    s_cmp_ge_u32 s{sWave}, 13
    s_cbranch_scc1 K2_WB_DONE
    v_lshrrev_b32 v{vT0}, 4, v{vLane}
    s_lshl_b32 s3, s{sWave}, 2
    v_add_u32 v{vT0}, s3, v{vT0}
    v_lshlrev_b32 v{vT1}, 4, v{vT0}
    v_xor_b32 v{vT1}, v{vT1}, v{vC16}
    v_and_b32 v{vT1}, 0xf0, v{vT1}
    v_lshl_add_u32 v{vT0}, v{vT0}, 8, v{vT1}
    """)
    for i in range(4):
        a(f"v_cvt_pk_bf16_f32 v{vP+i}, v{vTot+2*i}, v{vTot+2*i+1}")
    a(f"""
    ds_write_b128 v{vT0}, {vr(vP,4)} offset:{AGGB}
    K2_WB_DONE:
    s_cmp_ge_u32 s{sWave}, 8
    s_cbranch_scc1 K2_EB
    """)
    for ks in range(6, 8):
        a(f"ds_read_b64_tr_b16 {vr(vA8+4*ks,2)}, v{vWa} offset:{ks*4096}")
        a(f"ds_read_b64_tr_b16 {vr(vA8+4*ks+2,2)}, v{vWa} offset:{ks*4096 + 1024}")
    for ks in range(8):
        a(f"v_xor_b32 v{vE+ks}, {32*ks}, v{vBa}")
    a(f"""
    s_mul_i32 s3, s{sBeta}, {T*256}
    s_lshl_b32 s{sCnt}, s{sP}, 6
    s_add_u32 s3, s3, s{sCnt}
    v_lshrrev_b32 v{vT0}, 5, v{vLane}
    v_lshlrev_b32 v{vT1}, 8, v{vRow}
    v_lshl_add_u32 v{vT1}, v{vT0}, 5, v{vT1}
    v_add_u32 v{vT1}, s3, v{vT1}
    K2_EB:
    s_waitcnt lgkmcnt(0)
    s_barrier
    s_cmp_ge_u32 s{sWave}, 8
    s_cbranch_scc1 K2_FIN
    """)
    for ks in range(8):
        a(f"ds_read_b128 {vr(vB8+4*ks,4)}, v{vE+ks} offset:{AGGB}")
    a(f"v_cmp_gt_u32 vcc, {T}, v{vRow}")
    for ks in range(8):
        a(f"s_waitcnt lgkmcnt({7-ks})")
        c = "0" if ks == 0 else vr(vAcc16,16)
        a(f"v_mfma_f32_32x32x16_bf16 {vr(vAcc16,16)}, {vr(vA8+4*ks,4)}, {vr(vB8+4*ks,4)}, {c}")
    a("s_nop 7")
    a("s_nop 3")
    for i in range(8):
        a(f"v_cvt_pk_bf16_f32 v{vQ+i}, v{vAcc16+2*i}, v{vAcc16+2*i+1}")
    a(f"""
    s_and_saveexec_b64 s[{sSave}:{sSave+1}], vcc
    s_cbranch_execz K2_ST_DONE
    buffer_store_dwordx4 {vr(vQ,4)}, v{vT1}, s[{sOUT}:{sOUT+3}], 0 offen {opt.outst}
    buffer_store_dwordx4 {vr(vQ+4,4)}, v{vT1}, s[{sOUT}:{sOUT+3}], 0 offen offset:16 {opt.outst}
    K2_ST_DONE:
    s_mov_b64 exec, s[{sSave}:{sSave+1}]
    K2_FIN:
    """)
    st.stamp(a)
    if opt.stamps:
        a("s_waitcnt vmcnt(0)")
        st.stamp(a)
    st.flush(a, sWS, vT0, sWave)
    a("""
    K2_END:
    s_endpgm
    """)
    return a.text(), LDS, 128

def build(opt):
    k1, lds1, v1 = gen_k1(opt)
    k2, lds2, v2 = gen_k2(opt)
    n1, n2 = NAME + "_k1_kernel", NAME + "_k2_kernel"
    out = HEADER
    for ch in opt.seq:
        if ch == "1": out += f"; @launch kernel={n1} grid=({C},1,1) block=({576 if opt.prefetch == 3 else 512},1,1) lds={max(lds1, opt.lds1)}\n"
        if ch == "2": out += f"; @launch kernel={n2} grid=({NB},1,1) block=(1024,1,1) lds={lds2}\n"
    out += '.amdgcn_target "amdgcn-amd-amdhsa--gfx950"\n.text\n'
    for n, k in ((n1, k1), (n2, k2)):
        out += f".globl {n}\n.p2align 8\n.type {n},@function\n" + k
    out += '.section .rodata,"a"\n.p2align 6\n'
    out += kd(n1, v1) + ".p2align 6\n" + kd(n2, v2)
    return out

def parse(argv=None):
    p = argparse.ArgumentParser()
    p.add_argument("-o", default="cdna_kernels/" + NAME + ".s")
    p.add_argument("--stamps", action="store_true")
    p.add_argument("--prefetch", type=int, default=0)
    p.add_argument("--mimic", type=int, default=0)
    p.add_argument("--prio", type=int, default=0)
    p.add_argument("--touch", type=int, default=0)
    p.add_argument("--style", default="roll")
    p.add_argument("--seq", default="12")
    p.add_argument("--exp", default="")
    p.add_argument("--cellst", default="")
    p.add_argument("--outst", default="")
    p.add_argument("--lds1", type=int, default=83968)
    return p.parse_args(argv)

if __name__ == "__main__":
    o = parse()
    open(o.o, "w").write(build(o))
    print("wrote", o.o)
```

```python
import sys, argparse
from gen import A, vr, Stamps, scan64, kd, HEADER, NAME

N, E, D = 12500, 400000, 128
T = 49
NB = 256
CH = 1600
C = 250
XBYTES = N * 256
EBYTES = E * 4
WS_CELLS = 0
CELLROW = 16384
WS_HDR = 0x400000
WS_OVF = 0x410000
OVF_STRIDE = 8192
WS_USED = WS_OVF + 256 * OVF_STRIDE
WS_STAMP = 0x1000000
OOB = 0x40000000
DUMMY = 49

def srd_tail(a, d, size):
    a(f"s_mov_b32 s{d+2}, {size}")
    a(f"s_mov_b32 s{d+3}, 0x00020000")

def gen_k1(opt):
    a = A()
    HIST, OVC, JUNK, STAGE = 0, 1024, 1040, 2048
    LDS = STAGE + 16384 + 64
    st = Stamps(opt.stamps, 60, WS_STAMP)
    sX, sSRC, sDST, sWS = 4, 8, 12, 16
    sWave = 20
    vDst, vSrc = 4, 8
    vEnt, vAdr, vRank = 12, 16, 20
    vT0, vT1, vT2, vT3 = 24, 25, 26, 27
    vNeg, vOne, vZero, vGo = 28, 32, 33, 34
    vJ = 36
    a(f"""
    {NAME}_k1_kernel:
    s_cmp_ge_u32 s2, {C}
    s_cbranch_scc1 K1_END
    s_load_dwordx2 s[{sDST}:{sDST+1}], s[0:1], 16
    s_load_dwordx2 s[{sSRC}:{sSRC+1}], s[0:1], 8
    s_load_dwordx2 s[{sWS}:{sWS+1}], s[0:1], 56
    s_load_dwordx2 s[{sX}:{sX+1}], s[0:1], 0
    """)
    st.stamp(a)
    srd_tail(a, sDST, EBYTES); srd_tail(a, sSRC, EBYTES); srd_tail(a, sX, XBYTES)
    srd_tail(a, sWS, WS_USED if not opt.stamps else 0x2000000)
    a(f"""
    v_lshrrev_b32 v{vT1}, 6, v0
    s_mul_i32 s21, s2, {CH*4}
    v_lshlrev_b32 v{vT0}, 4, v0
    v_readfirstlane_b32 s{sWave}, v{vT1}
    v_add_u32 v{vT2}, s21, v{vT0}
    v_mov_b32 v{vNeg}, -1
    v_mov_b32 v{vNeg+1}, -1
    v_mov_b32 v{vNeg+2}, -1
    v_mov_b32 v{vNeg+3}, -1
    v_mov_b32 v{vZero}, 0
    v_mov_b32 v{vOne}, 1
    v_cmp_gt_u32 vcc, {CH//4}, v0
    s_and_saveexec_b64 s[40:41], vcc
    s_waitcnt lgkmcnt(0)
    s_cmp_eq_u32 s{sWave}, 8
    s_cbranch_scc1 K1_PFWAVE
    s_cbranch_execz K1_EDGE0_DONE
    buffer_load_dwordx4 {vr(vDst,4)}, v{vT2}, s[{sDST}:{sDST+3}], 0 offen
    buffer_load_dwordx4 {vr(vSrc,4)}, v{vT2}, s[{sSRC}:{sSRC+3}], 0 offen
    K1_EDGE0_DONE:
    s_mov_b64 exec, s[40:41]
    ds_write_b128 v{vT0}, {vr(vNeg,4)} offset:{STAGE}
    ds_write_b128 v{vT0}, {vr(vNeg,4)} offset:{STAGE+8192}
    v_lshlrev_b32 v{vT1}, 2, v0
    s_cmp_ge_u32 s{sWave}, 5
    s_cbranch_scc1 K1_NOZ
    ds_write_b32 v{vT1}, v{vZero} offset:{HIST}
    K1_NOZ:
    """)
    if opt.touch:
        a(f"""
        s_cmp_eq_u32 s{sWave}, 7
        s_cbranch_scc0 K1_NOTOUCH
        s_load_dwordx4 s[24:27], s[0:1], 24
        s_load_dwordx2 s[28:29], s[0:1], 40
        v_and_b32 v{vT2}, 63, v0
        v_lshlrev_b32 v{vT2}, 16, v{vT2}
        buffer_load_dword v{vJ}, v{vT2}, s[{sX}:{sX+3}], 0 offen
        s_waitcnt lgkmcnt(0)
        s_mov_b32 s32, s24
        s_mov_b32 s33, s25
        s_mov_b32 s34, 32768
        s_mov_b32 s35, 0x00020000
        s_mov_b32 s36, s26
        s_mov_b32 s37, s27
        s_mov_b32 s38, 32768
        s_mov_b32 s39, 0x00020000
        v_mov_b32 v{vT3}, 0
        buffer_load_dword v{vJ+1}, v{vT3}, s[32:35], 0 offen
        buffer_load_dword v{vJ+2}, v{vT3}, s[36:39], 0 offen
        """)
        if opt.touch == 2:
            a(f"""
            s_mov_b32 s30, {XBYTES}
            s_mov_b32 s31, 0x00020000
            buffer_load_dword v{vJ+3}, v{vT2}, s[28:31], 0 offen
            """)
        a("K1_NOTOUCH:")
    if opt.prefetch == 1:
        per = 100096
        a(f"""
        s_cmp_eq_u32 s{sWave}, 7
        s_cbranch_scc0 K1_NOPF
        s_lshr_b32 s22, s2, 3
        s_mul_i32 s22, s22, {per}
        v_and_b32 v{vT2}, 63, v0
        v_lshlrev_b32 v{vT2}, 7, v{vT2}
        """)
        for i in range(13):
            a(f"buffer_load_dword v{vJ}, v{vT2}, s[{sX}:{sX+3}], s22 offen")
            a(f"s_add_u32 s22, s22, 8192")
        a("K1_NOPF:")
    a(f"""
    v_lshrrev_b32 v{vT1}, 2, v0
    v_lshlrev_b32 v{vGo}, 14, v{vT1}
    v_and_b32 v{vT1}, 3, v0
    v_lshl_add_u32 v{vGo}, v{vT1}, 4, v{vGo}
    s_and_b32 s22, s2, 7
    s_lshl_b32 s22, s22, 5
    s_lshr_b32 s23, s2, 3
    s_add_u32 s22, s22, s23
    s_lshl_b32 s22, s22, 6
    s_add_u32 s23, s22, {128*CELLROW}
    s_waitcnt lgkmcnt(0)
    s_barrier
    """)
    st.stamp(a)
    a(f"""
    v_cmp_gt_u32 vcc, {CH//4}, v0
    s_and_saveexec_b64 s[40:41], vcc
    s_cbranch_execz K1_EDGE1_DONE
    s_mov_b32 s21, -{T}
    s_waitcnt vmcnt(0)
    """)
    st.stamp(a)
    for i in range(4):
        a(f"""
        v_mul_u32_u24 v{vT0}, 21400, v{vDst+i}
        v_lshrrev_b32 v{vT0}, 20, v{vT0}
        v_lshlrev_b32 v{vAdr+i}, 2, v{vT0}
        ds_add_rtn_u32 v{vRank+i}, v{vAdr+i}, v{vOne} offset:{HIST}
        v_mad_i32_i24 v{vT1}, v{vT0}, s21, v{vDst+i}
        v_lshl_or_b32 v{vEnt+i}, v{vSrc+i}, 8, v{vT1}
        v_lshl_or_b32 v{vEnt+i}, v{vT0}, 24, v{vEnt+i}
        v_lshlrev_b32 v{vAdr+i}, 4, v{vAdr+i}
        """)
    a(f"v_mov_b32 v{vT3}, 16384")
    for i in range(4):
        a(f"""
        s_waitcnt lgkmcnt({3-i})
        v_cmp_gt_u32 s[{42+2*i}:{43+2*i}], 16, v{vRank+i}
        v_lshl_add_u32 v{vT0}, v{vRank+i}, 2, v{vAdr+i}
        s_nop 0
        v_cndmask_b32_e64 v{vT0}, v{vT3}, v{vT0}, s[{42+2*i}:{43+2*i}]
        ds_write_b32 v{vT0}, v{vEnt+i} offset:{STAGE}
        """)
    a(f"""
    s_and_b64 s[50:51], s[42:43], s[44:45]
    s_and_b64 s[52:53], s[46:47], s[48:49]
    s_and_b64 s[50:51], s[50:51], s[52:53]
    s_andn2_b64 s[50:51], exec, s[50:51]
    s_cbranch_scc0 K1_EDGE1_DONE
    s_mov_b64 s[54:55], exec
    s_mul_i32 s21, s2, {OVF_STRIDE}
    s_add_u32 s21, s21, {WS_OVF + 4}
    s_lshl_b32 s24, s2, 4
    s_add_u32 s24, s24, {WS_HDR + 4}
    v_mov_b32 v{vT3}, {OVC}
    """)
    for i in range(4):
        a(f"""
        s_andn2_b64 exec, s[54:55], s[{42+2*i}:{43+2*i}]
        s_cbranch_execz K1_OV_{i}
        ds_add_rtn_u32 v{vT0}, v{vT3}, v{vOne}
        s_waitcnt lgkmcnt(0)
        v_cmp_gt_u32 vcc, 3, v{vT0}
        v_lshl_add_u32 v{vT1}, v{vT0}, 2, s21
        v_lshl_add_u32 v{vT2}, v{vT0}, 2, s24
        v_cndmask_b32_e64 v{vT0}, v{vT1}, v{vT2}, vcc
        buffer_store_dword v{vEnt+i}, v{vT0}, s[{sWS}:{sWS+3}], 0 offen
        K1_OV_{i}:
        """)
    a(f"""
    K1_EDGE1_DONE:
    s_mov_b64 exec, s[40:41]
    v_lshlrev_b32 v{vT0}, 4, v0
    s_waitcnt lgkmcnt(0)
    s_barrier
    """)
    st.stamp(a)
    a(f"""
    ds_read_b128 {vr(vEnt,4)}, v{vT0} offset:{STAGE}
    ds_read_b128 {vr(vAdr,4)}, v{vT0} offset:{STAGE+8192}
    s_cmp_eq_u32 s{sWave}, 0
    s_cbranch_scc0 K1_NOHDR
    v_mov_b32 v{vT3}, {OVC}
    ds_read_b32 v{vRank}, v{vT3}
    s_lshl_b32 s24, s2, 4
    s_add_u32 s24, s24, {WS_HDR}
    v_mov_b32 v{vT2}, s24
    s_waitcnt lgkmcnt(0)
    s_mov_b64 exec, 1
    buffer_store_dword v{vRank}, v{vT2}, s[{sWS}:{sWS+3}], 0 offen {opt.cellst}
    s_mov_b64 exec, -1
    K1_NOHDR:
    s_waitcnt lgkmcnt(1)
    buffer_store_dwordx4 {vr(vEnt,4)}, v{vGo}, s[{sWS}:{sWS+3}], s22 offen {opt.cellst}
    s_waitcnt lgkmcnt(0)
    buffer_store_dwordx4 {vr(vAdr,4)}, v{vGo}, s[{sWS}:{sWS+3}], s23 offen {opt.cellst}
    """)
    st.stamp(a)
    if opt.stamps:
        a("s_waitcnt vmcnt(0)")
        st.stamp(a)
    st.flush(a, sWS, vT0, sWave)
    a("""
    K1_END:
    s_endpgm
    """)
    a(f"""
    K1_PFWAVE:
    s_mov_b64 exec, -1
    s_load_dwordx4 s[24:27], s[0:1], 24
    s_barrier
    v_and_b32 v{vT2}, 63, v0
    v_lshlrev_b32 v{vT2}, 7, v{vT2}
    """)
    if opt.prefetch == 4:
        a(f"s_mul_i32 s22, s2, 12800")
        for i in range(2):
            a(f"buffer_load_dword v{vJ}, v{vT2}, s[{sX}:{sX+3}], s22 offen")
            a(f"s_add_u32 s22, s22, 8192")
    else:
        a(f"""
        s_lshr_b32 s22, s2, 3
        s_mul_i32 s22, s22, 100096
        """)
        for i in range(13):
            a(f"buffer_load_dword v{vJ}, v{vT2}, s[{sX}:{sX+3}], s22 offen")
            a(f"s_add_u32 s22, s22, 8192")
    a(f"""
    s_waitcnt lgkmcnt(0)
    s_mov_b32 s32, s24
    s_mov_b32 s33, s25
    s_mov_b32 s34, 32768
    s_mov_b32 s35, 0x00020000
    s_mov_b32 s36, s26
    s_mov_b32 s37, s27
    s_mov_b32 s38, 32768
    s_mov_b32 s39, 0x00020000
    s_lshr_b32 s22, s2, 3
    s_and_b32 s22, s22, 3
    s_lshl_b32 s22, s22, 13
    buffer_load_dword v{vJ}, v{vT2}, s[32:35], s22 offen
    buffer_load_dword v{vJ}, v{vT2}, s[36:39], s22 offen
    s_barrier
    s_endpgm
    """)
    return a.text(), LDS, 40

def tile_a_addr(a, vdst, vlane, t0, t1, sP, wbase):
    a(f"""
    v_bfe_u32 v{t0}, v{vlane}, 2, 2
    v_lshrrev_b32 v{t1}, 5, v{vlane}
    v_lshl_add_u32 v{vdst}, v{t1}, 3, v{t0}
    v_lshlrev_b32 v{vdst}, 8, v{vdst}
    v_xor_b32 v{t0}, s{sP}, v{t0}
    v_lshl_add_u32 v{vdst}, v{t0}, 6, v{vdst}
    v_bfe_u32 v{t0}, v{vlane}, 4, 1
    v_bfe_u32 v{t1}, v{vlane}, 1, 1
    v_lshl_add_u32 v{t0}, v{t0}, 1, v{t1}
    v_and_b32 v{t1}, 1, v{vlane}
    v_lshl_add_u32 v{t0}, v{t1}, 2, v{t0}
    v_lshl_add_u32 v{vdst}, v{t0}, 3, v{vdst}
    v_add_u32 v{vdst}, {wbase}, v{vdst}
    """)

def tile_b_addr(a, vdst, vrow, vlane, t0):
    a(f"""
    v_lshrrev_b32 v{t0}, 5, v{vlane}
    v_xor_b32 v{t0}, v{t0}, v{vrow}
    v_and_b32 v{t0}, 15, v{t0}
    v_lshlrev_b32 v{t0}, 4, v{t0}
    v_lshl_add_u32 v{vdst}, v{vrow}, 8, v{t0}
    """)

def gen_k2(opt):
    a = A()
    HIST, MAXC, ZROW, TBL = 0, 256, 512, 1024
    NPC = TBL + 1024
    LIST = NPC + 256
    LISTW = 5120
    UNODE = LIST + LISTW * 4
    QS = UNODE + 1280 * 4
    AGGB = QS + 52 * 256
    PIECE = AGGB + 64 * 256
    XT = PIECE
    WQ = XT + 16384
    WV = PIECE + (DUMMY + 64) * 512
    LDS = WV + 32768
    assert WQ + 32768 <= WV
    st = Stamps(opt.stamps, 64, WS_STAMP + 0x40000)
    sX, sWQ, sWV, sOUT, sWS = 4, 8, 12, 16, 20
    sBeta, sWave, sR, sNR = 24, 25, 26, 27
    sOdd = 28
    sBeta24, sHB, sP, sNH, s196 = 30, 31, 32, 33, 34
    sM = 36
    sSave = 50
    sCnt, sQ, sRem, sT = 52, 53, 54, 55
    vC16, vPB, vLA, vUA, vPrev = 1, 2, 3, 4, 5
    vQP, vQC, vQN = 6, 8, 10
    vAl = (12, 14)
    vQB = 16
    vT0, vT1, vT2, vT3 = 17, 18, 19, 20
    vLane, vStart, vPc = 21, 22, 23
    vAcc, vP, vE, vQ = 24, 32, 40, 48
    vXA, vXB, vTot = 56, 88, 120
    vCand, vHdr, vSo, vN4, vRk = 56, 60, 64, 72, 80
    vCnt = 47
    vWl = 6
    vWa, vBa, vRow, vQst = 12, 13, 14, 15
    npf = 0
    a(f"""
    {NAME}_k2_kernel:
    s_cmp_ge_u32 s2, {NB}
    s_cbranch_scc1 K2_END
    s_load_dwordx2 s[{sWS}:{sWS+1}], s[0:1], 56
    s_load_dwordx2 s[{sX}:{sX+1}], s[0:1], 0
    s_load_dwordx2 s[{sWQ}:{sWQ+1}], s[0:1], 24
    s_load_dwordx2 s[{sWV}:{sWV+1}], s[0:1], 32
    s_load_dwordx2 s[{sOUT}:{sOUT+1}], s[0:1], 40
    """)
    st.stamp(a)
    srd_tail(a, sWS, WS_USED if not opt.stamps else 0x2000000)
    a(f"""
    v_lshrrev_b32 v{vT0}, 6, v0
    s_and_b32 s{sBeta}, s2, 7
    s_lshl_b32 s{sBeta}, s{sBeta}, 5
    v_readfirstlane_b32 s{sWave}, v{vT0}
    s_lshr_b32 s3, s2, 3
    s_add_u32 s{sBeta}, s{sBeta}, s3
    v_mov_b32 v{vCand}, -1
    v_mov_b32 v{vCand+1}, -1
    v_mov_b32 v{vCand+2}, -1
    v_mov_b32 v{vCand+3}, -1
    v_mov_b32 v{vHdr}, 0
    v_lshlrev_b32 v{vT0}, 4, v0
    v_bfe_u32 v{vT1}, v0, 2, 5
    s_lshl_b32 s3, s{sBeta}, 14
    s_mov_b32 s{sT}, {WS_HDR}
    v_lshlrev_b32 v{vT1}, 3, v{vT1}
    v_lshrrev_b32 v{vT2}, 7, v0
    v_add_u32 v{vT1}, v{vT1}, v{vT2}
    v_cmp_gt_u32 vcc, {C}, v{vT1}
    s_and_saveexec_b64 s[{sSave}:{sSave+1}], vcc
    s_waitcnt lgkmcnt(0)
    buffer_load_dwordx4 {vr(vCand,4)}, v{vT0}, s[{sWS}:{sWS+3}], s3 offen
    s_mov_b64 exec, s[{sSave}:{sSave+1}]
    s_cmp_ge_u32 s{sWave}, 4
    s_cbranch_scc1 K2_L1
    v_cmp_gt_u32 vcc, {C}, v0
    s_and_saveexec_b64 s[{sSave}:{sSave+1}], vcc
    buffer_load_dwordx4 {vr(vHdr,4)}, v{vT0}, s[{sWS}:{sWS+3}], s{sT} offen
    s_mov_b64 exec, s[{sSave}:{sSave+1}]
    v_mov_b32 v{vT2}, 0
    v_lshlrev_b32 v{vT3}, 2, v0
    ds_write_b32 v{vT3}, v{vT2} offset:{HIST}
    K2_L1:
    s_waitcnt lgkmcnt(0)
    s_barrier
    """)
    st.stamp(a)
    srd_tail(a, sX, XBYTES); srd_tail(a, sWQ, 32768); srd_tail(a, sWV, 32768); srd_tail(a, sOUT, XBYTES)
    a(f"""
    v_and_b32 v{vLane}, 63, v0
    v_bfe_u32 v{vT0}, v0, 4, 2
    v_and_b32 v{vT1}, 15, v0
    v_lshlrev_b32 v{vC16}, 4, v{vT1}
    s_cmp_ge_u32 s{sWave}, 13
    s_cbranch_scc1 K2_L2
    s_lshl_b32 s3, s{sWave}, 2
    v_add_u32 v{vT2}, s3, v{vT0}
    v_xor_b32 v{vT3}, v{vT2}, v{vT1}
    v_and_b32 v{vT3}, 15, v{vT3}
    v_lshlrev_b32 v{vT3}, 4, v{vT3}
    v_lshl_add_u32 v{vT3}, v{vT2}, 8, v{vT3}
    s_mul_i32 s3, s{sBeta}, {T*256}
    s_lshl_b32 s{sT}, s{sWave}, 10
    s_add_u32 s{sT}, s{sT}, {XT}
    s_mov_b32 m0, s{sT}
    s_nop 0
    buffer_load_dwordx4 v{vT3}, s[{sX}:{sX+3}], s3 offen lds
    K2_L2:
    v_lshlrev_b32 v{vT2}, 2, v{vT0}
    v_xor_b32 v{vT2}, v{vT2}, v{vT1}
    v_lshlrev_b32 v{vT2}, 4, v{vT2}
    v_lshl_add_u32 v{vT2}, v{vT0}, 8, v{vT2}
    s_lshl_b32 s3, s{sWave}, 11
    s_add_u32 s{sT}, s3, {WQ}
    s_mov_b32 m0, s{sT}
    s_add_u32 s{sT}, s{sT}, 1024
    buffer_load_dwordx4 v{vT2}, s[{sWQ}:{sWQ+3}], s3 offen lds
    s_mov_b32 m0, s{sT}
    s_add_u32 s{sCnt}, s3, 1024
    buffer_load_dwordx4 v{vT2}, s[{sWQ}:{sWQ+3}], s{sCnt} offen lds
    s_mov_b32 s{sR}, 0
    v_mov_b32 v{vWl}, v{vT2}
    """)
    if npf:
        a(f"""
        s_lshr_b32 s3, s2, 3
        s_mul_i32 s3, s3, 100096
        v_lshlrev_b32 v{vT3}, 7, v0
        v_mov_b32 v{vT1}, {OOB}
        v_cmp_gt_u32 vcc, 782, v0
        s_nop 1
        v_cndmask_b32_e64 v{vT3}, v{vT1}, v{vT3}, vcc
        buffer_load_dword v{vQP}, v{vT3}, s[{sX}:{sX+3}], s3 offen
        """)
    a(f"""
    s_mov_b32 s{sOdd}, 0xaaaaaaaa
    s_mov_b32 s{sOdd+1}, 0xaaaaaaaa
    s_movk_i32 s{s196}, {T*4}
    s_lshl_b32 s{sBeta24}, s{sBeta}, 24
    s_lshl_b32 s3, s{sWave}, 11
    s_add_u32 s3, s3, {PIECE}
    v_lshl_add_u32 v{vPB}, v{vT0}, 9, s3
    v_add_u32 v{vPB}, v{vPB}, v{vC16}
    """)
    for i in range(8):
        a(f"v_mov_b32 v{vTot+i}, 0")
    a(f"""
    s_and_b32 s{sP}, s{sWave}, 3
    s_bfe_u32 s{sNH}, s{sWave}, 0x10002
    s_cmp_ge_u32 s{sWave}, 8
    s_cbranch_scc1 K2_NOQA
    """)
    tile_a_addr(a, vWa, vLane, vT2, vT3, sP, WQ)
    a(f"""
    v_and_b32 v{vRow}, 31, v{vLane}
    s_lshl_b32 s3, s{sNH}, 5
    v_add_u32 v{vRow}, s3, v{vRow}
    """)
    tile_b_addr(a, vBa, vRow, vLane, vT3)
    a(f"""
    v_bfe_u32 v{vT2}, v{vRow}, 2, 1
    v_mul_u32_u24 v{vT2}, 12, v{vT2}
    v_and_b32 v{vT3}, 3, v{vRow}
    v_or_b32 v{vT2}, v{vT2}, v{vT3}
    v_lshrrev_b32 v{vT3}, 5, v{vLane}
    s_lshl_b32 s3, s{sP}, 2
    v_lshl_add_u32 v{vT3}, v{vT3}, 1, s3
    v_xor_b32 v{vT2}, v{vT2}, v{vT3}
    v_lshlrev_b32 v{vT2}, 4, v{vT2}
    v_lshl_add_u32 v{vQst}, v{vRow}, 8, v{vT2}
    K2_NOQA:
    v_mov_b32 v{vT3}, 1
    s_cmp_lt_u32 s{sWave}, 13
    s_cbranch_scc0 K2_WAIT4
    s_waitcnt vmcnt(3)
    s_branch K2_WAITD
    K2_WAIT4:
    s_waitcnt vmcnt(2)
    K2_WAITD:
    """)
    st.stamp(a)
    def decode(word, i):
        m = sM + 2*i
        a(f"""
        v_lshlrev_b32 v{vN4+i}, 2, v{word}
        v_and_b32 v{vN4+i}, 0xfc, v{vN4+i}
        v_cmp_gt_u32 s[{m}:{m+1}], s{s196}, v{vN4+i}
        v_and_b32 v{vSo+i}, 0x00ffff00, v{word}
        s_mov_b64 exec, s[{m}:{m+1}]
        ds_add_rtn_u32 v{vRk+i}, v{vN4+i}, v{vT3} offset:{HIST}
        s_mov_b64 exec, -1
        """)
    a("K2_DECODE:")
    for i in range(4):
        decode(vCand+i, i)
    a(f"""
    s_mov_b64 s[{sM+8}:{sM+9}], 0
    s_mov_b64 s[{sM+10}:{sM+11}], 0
    s_mov_b64 s[{sM+12}:{sM+13}], 0
    s_cmp_ge_u32 s{sWave}, 4
    s_cbranch_scc1 K2_NOHDR
    v_cmp_lt_u32 vcc, 0, v{vHdr}
    s_cbranch_vccz K2_NOHDR
    v_mov_b32 v{vT0}, {MAXC}
    ds_max_u32 v{vT0}, v{vHdr}
    """)
    for i in range(4, 7):
        w = vHdr + (i-3)
        a(f"""
        v_lshrrev_b32 v{vT0}, 24, v{w}
        v_cmp_eq_u32 s[{sSave}:{sSave+1}], s{sBeta}, v{vT0}
        v_cmp_lt_u32 vcc, {i-4}, v{vHdr}
        v_mov_b32 v{vT1}, -1
        s_and_b64 vcc, vcc, s[{sSave}:{sSave+1}]
        s_nop 1
        v_cndmask_b32_e64 v{w}, v{vT1}, v{w}, vcc
        """)
        decode(w, i)
    a(f"""
    K2_NOHDR:
    s_waitcnt vmcnt(0) lgkmcnt(0)
    s_barrier
    """)
    st.stamp(a)
    a(f"""
    v_lshlrev_b32 v{vT2}, 2, v{vLane}
    v_mov_b32 v{vT3}, {MAXC}
    ds_read_b32 v{vCnt}, v{vT2} offset:{HIST}
    ds_read_b32 v{vT3}, v{vT3}
    """)
    vA8, vB8, vAc = vXB, 40, 24
    a(f"""
    s_waitcnt lgkmcnt(0)
    v_add_u32 v{vPc}, 3, v{vCnt}
    v_and_b32 v{vPc}, -4, v{vPc}
    v_mov_b32 v{vStart}, v{vPc}
    v_readfirstlane_b32 s3, v{vT3}
    s_nop 0
    """)
    scan64(a, vStart, None)
    a(f"""
    s_nop 0
    v_readlane_b32 s{sCnt}, v{vStart}, 63
    v_sub_u32 v{vStart}, v{vStart}, v{vPc}
    """)
    for i in range(4):
        a(f"ds_bpermute_b32 v{vE+i}, v{vN4+i}, v{vStart}")
    a(f"""
    s_cmp_eq_u32 s{sR}, 0
    s_cbranch_scc0 K2_NRDONE
    s_min_u32 s3, s3, {CH}
    s_max_u32 s3, s3, 3
    s_add_u32 s3, s3, 12
    s_lshr_b32 s3, s3, 4
    s_add_u32 s{sNR}, s3, 1
    K2_NRDONE:
    """)
    a(f"""
    v_bfe_u32 v{vT0}, v{vLane}, 2, 1
    v_mul_u32_u24 v{vT0}, 12, v{vT0}
    v_and_b32 v{vT1}, 3, v{vLane}
    v_or_b32 v{vT0}, v{vT0}, v{vT1}
    v_lshlrev_b32 v{vT1}, 8, v{vLane}
    v_lshl_or_b32 v{vT1}, v{vT0}, 4, v{vT1}
    s_lshl_b32 s{sT}, s{sWave}, 2
    K2_UN:
    v_cmp_lt_u32 vcc, s{sT}, v{vPc}
    s_cbranch_vccz K2_UND
    v_add_u32 v{vT0}, s{sT}, v{vStart}
    s_mov_b64 exec, vcc
    ds_write_b32 v{vT0}, v{vT1} offset:{UNODE}
    s_mov_b64 exec, -1
    s_add_u32 s{sT}, s{sT}, 64
    s_branch K2_UN
    K2_UND:
    """)
    a(f"""
    s_sub_u32 s{sT}, s{sWave}, 8
    s_cmp_gt_u32 s{sT}, 4
    s_cbranch_scc1 K2_NOPAD
    v_mov_b32 v{vT2}, {OOB}
    s_cmp_gt_u32 s{sT}, 2
    s_cbranch_scc1 K2_TAILPAD
    v_sub_u32 v{vT1}, v{vPc}, v{vCnt}
    v_add_u32 v{vT0}, v{vStart}, v{vCnt}
    v_cmp_lt_u32 vcc, s{sT}, v{vT1}
    v_add_u32 v{vT0}, s{sT}, v{vT0}
    v_lshlrev_b32 v{vT0}, 2, v{vT0}
    s_mov_b64 exec, vcc
    ds_write_b32 v{vT0}, v{vT2} offset:{LIST}
    s_mov_b64 exec, -1
    s_branch K2_NOPAD
    K2_TAILPAD:
    v_lshlrev_b32 v{vT1}, 2, v{vLane}
    s_cmp_eq_u32 s{sT}, 3
    s_cbranch_scc0 K2_TAILU
    s_lshl_b32 s{sT}, s{sCnt}, 2
    v_add_u32 v{vT0}, s{sT}, v{vT1}
    s_mov_b64 exec, 0xfffffff
    ds_write_b32 v{vT0}, v{vT2} offset:{LIST}
    s_mov_b64 exec, -1
    s_branch K2_NOPAD
    K2_TAILU:
    v_add_u32 v{vT0}, s{sCnt}, v{vT1}
    v_mov_b32 v{vT2}, {DUMMY*256 + 16*((DUMMY & 3) | (12*((DUMMY >> 2) & 1)))}
    s_mov_b64 exec, 0x7f
    ds_write_b32 v{vT0}, v{vT2} offset:{UNODE}
    s_mov_b64 exec, -1
    K2_NOPAD:
    """)
    def scatter(i, last):
        m = sM + 2*i
        a(f"""
        v_add_lshl_u32 v{vE+i}, v{vE+i}, v{vRk+i}, 2
        s_mov_b64 exec, s[{m}:{m+1}]
        ds_write_b32 v{vE+i}, v{vSo+i} offset:{LIST}
        s_mov_b64 exec, -1
        """)
    a("s_waitcnt lgkmcnt(0)")
    for i in range(4):
        scatter(i, i == 3)
    a(f"""
    s_or_b64 s[{sSave}:{sSave+1}], s[{sM+8}:{sM+9}], s[{sM+10}:{sM+11}]
    s_or_b64 s[{sSave}:{sSave+1}], s[{sSave}:{sSave+1}], s[{sM+12}:{sM+13}]
    s_cbranch_scc0 K2_SC_DONE
    """)
    for i in range(4, 7):
        a(f"ds_bpermute_b32 v{vE+i}, v{vN4+i}, v{vStart}")
    a("s_waitcnt lgkmcnt(0)")
    for i in range(4, 7):
        scatter(i, i == 6)
    a(f"""
    K2_SC_DONE:
    s_add_u32 s3, s{sCnt}, 31
    s_lshr_b32 s3, s3, 5
    s_lshr_b32 s{sQ}, s3, 4
    s_and_b32 s{sRem}, s3, 15
    """)
    st.stamp(a)
    vA8, vQAcc = vXB, vAcc
    Bq = [vE, vE+4, vQ, vQ+4]
    a(f"""
    s_cmp_eq_u32 s{sR}, 0
    s_cselect_b32 s{sT}, 8, 0
    s_cmp_ge_u32 s{sWave}, s{sT}
    s_cbranch_scc1 K2_NOQ
    """)
    for ks in range(6):
        a(f"ds_read_b64_tr_b16 {vr(vA8+4*ks,2)}, v{vWa} offset:{ks*4096}")
        a(f"ds_read_b64_tr_b16 {vr(vA8+4*ks+2,2)}, v{vWa} offset:{ks*4096 + 1024}")
    for hp in range(2):
        if hp == 1:
            for ks in range(6, 8):
                a(f"ds_read_b64_tr_b16 {vr(vA8+4*ks,2)}, v{vWa} offset:{ks*4096}")
                a(f"ds_read_b64_tr_b16 {vr(vA8+4*ks+2,2)}, v{vWa} offset:{ks*4096 + 1024}")
        if hp == 0: a("s_waitcnt lgkmcnt(8)")
        for k4 in range(4):
            ks = 4*hp + k4
            a(f"v_xor_b32 v{vT3}, {32*ks}, v{vBa}")
            a(f"ds_read_b128 {vr(Bq[k4],4)}, v{vT3} offset:{XT}")
        for k4 in range(4):
            ks = 4*hp + k4
            a(f"s_waitcnt lgkmcnt({3-k4})")
            c = "0" if ks == 0 else vr(vQAcc,16)
            a(f"v_mfma_f32_32x32x16_bf16 {vr(vQAcc,16)}, {vr(vA8+4*ks,4)}, {vr(Bq[k4],4)}, {c}")
    a(f"""
    v_cmp_gt_u32 vcc, 52, v{vRow}
    v_xor_b32 v{vT3}, 16, v{vQst}
    s_nop 7
    s_nop 2
    """)
    for i in range(8):
        a(f"v_cvt_pk_bf16_f32 v{vA8+i}, v{vQAcc+2*i}, v{vQAcc+2*i+1}")
    a(f"""
    s_mov_b64 exec, vcc
    ds_write_b128 v{vQst}, {vr(vA8,4)} offset:{QS}
    ds_write_b128 v{vT3}, {vr(vA8+4,4)} offset:{QS}
    s_mov_b64 exec, -1
    K2_NOQ:
    s_cmp_lt_u32 s{sWave}, s{sRem}
    s_cselect_b32 s{sNH}, 1, 0
    s_add_u32 s{sHB}, s{sQ}, s{sNH}
    s_min_u32 s3, s{sRem}, s{sWave}
    s_mul_i32 s{sT}, s{sQ}, s{sWave}
    s_add_u32 s{sT}, s{sT}, s3
    v_lshrrev_b32 v{vT0}, 4, v{vLane}
    s_lshl_b32 s3, s{sHB}, 1
    v_mul_u32_u24 v{vT0}, s3, v{vT0}
    s_lshl_b32 s3, s{sT}, 3
    v_add_u32 v{vT0}, s3, v{vT0}
    v_lshlrev_b32 v{vLA}, 4, v{vT0}
    v_lshlrev_b32 v{vUA}, 2, v{vT0}
    """)
    for i in range(8):
        a(f"v_mov_b32 v{vAcc+i}, 0")
    a(f"""
    s_waitcnt lgkmcnt(0)
    s_barrier
    """)
    st.stamp(a)
    if "cyc" in opt.exp: st.stamp(a, True)
    if opt.prio: a("s_setprio 3")
    a(f"""
    s_cmp_eq_u32 s{sHB}, 0
    s_cbranch_scc1 K2_NOMAIN
    ds_read_b128 {vr(vE,4)}, v{vLA} offset:{LIST}
    ds_read_b128 {vr(vE+4,4)}, v{vLA} offset:{LIST+16}
    ds_read_b64 {vr(vQC,2)}, v{vUA} offset:{UNODE}
    s_waitcnt lgkmcnt(1)
    """)
    for u in range(8):
        a(f"v_add_u32 v{vE+u}, v{vE+u}, v{vC16}")
        a(f"buffer_load_dwordx4 {vr(vXA+4*u,4)}, v{vE+u}, s[{sX}:{sX+3}], 0 offen")
        if u == 0:
            a(f"""
            s_waitcnt lgkmcnt(0)
            v_xor_b32 v{vT0}, v{vQC}, v{vC16}
            v_xor_b32 v{vT1}, v{vQC+1}, v{vC16}
            ds_read_b128 {vr(vQ,4)}, v{vT0} offset:{QS}
            ds_read_b128 {vr(vQ+4,4)}, v{vT1} offset:{QS}
            v_mov_b32 v{vPrev}, v{vQC}
            """)
    if "bstamp" in opt.exp: st.stamp(a)
    wv_id = [0]
    def wv_dma():
        i = wv_id[0]; wv_id[0] += 1
        a(f"""
        s_cmp_eq_u32 s{sR}, 0
        s_cbranch_scc0 K2_NOWV{i}
        s_lshl_b32 s3, s{sWave}, 11
        s_add_u32 s{sT}, s3, {WV}
        s_mov_b32 m0, s{sT}
        s_add_u32 s{sT}, s{sT}, 1024
        buffer_load_dwordx4 v{vWl}, s[{sWV}:{sWV+3}], s3 offen lds
        s_mov_b32 m0, s{sT}
        s_add_u32 s3, s3, 1024
        buffer_load_dwordx4 v{vWl}, s[{sWV}:{sWV+3}], s3 offen lds
        K2_NOWV{i}:
        """)
    flush_id = [0]
    def flush(prev, masked):
        fid = flush_id[0]; flush_id[0] += 1
        t = ""
        if masked is not None:
            t += f"""
            v_cmp_ne_u32 vcc, v{masked}, v{prev}
            s_cbranch_vccz K2_FL{fid}
            s_mov_b64 exec, vcc
            """
        t += f"""
        v_and_b32 v{vT0}, 0xffffff00, v{prev}
        v_lshl_add_u32 v{vT0}, v{vT0}, 1, v{vPB}
        ds_write_b128 v{vT0}, {vr(vAcc,4)}
        ds_write_b128 v{vT0}, {vr(vAcc+4,4)} offset:256
        """
        if masked is not None:
            for i in range(8):
                t += f"v_mov_b32 v{vAcc+i}, 0\n"
            t += f"""
            s_mov_b64 exec, -1
            K2_FL{fid}:
            """
        return t
    def dots(X, waits):
        for half in range(2):
            a(waits[half])
            if "nodots" in opt.exp: continue
            for r in range(4):
                for u in range(4*half, 4*half+4):
                    if r == 0:
                        a(f"v_dot2_f32_bf16 v{vP+u}, v{X+4*u}, v{vQ+4*half}, 0")
                    else:
                        a(f"v_dot2c_f32_bf16 v{vP+u}, v{X+4*u+r}, v{vQ+4*half+r}")
    def chain(al):
        c = []
        for j in range(4):
            c.append(f"v_add_f32_dpp v{vP+j}, v{vP+j}, v{vP+j} row_mirror row_mask:0xf bank_mask:0x3")
        for j in range(4):
            c.append(f"v_add_f32_dpp v{vP+j}, v{vP+j+4}, v{vP+j+4} row_mirror row_mask:0xf bank_mask:0xc")
        for j in range(2):
            c.append(f"v_add_f32_dpp v{vP+j}, v{vP+j}, v{vP+j} row_half_mirror row_mask:0xf bank_mask:0x5")
        for j in range(2):
            c.append(f"v_add_f32_dpp v{vP+j}, v{vP+j+2}, v{vP+j+2} row_half_mirror row_mask:0xf bank_mask:0xa")
        c.append(f"v_add_f32_dpp v{vP+2}, v{vP}, v{vP} quad_perm:[1,0,3,2] row_mask:0xf bank_mask:0xf")
        c.append(f"v_add_f32_dpp v{vP+3}, v{vP+1}, v{vP+1} quad_perm:[1,0,3,2] row_mask:0xf bank_mask:0xf")
        c.append(f"v_cndmask_b32_e64 v{vP}, v{vP+2}, v{vP+3}, s[{sOdd}:{sOdd+1}]")
        c.append(f"v_add_f32_dpp v{vP}, v{vP}, v{vP} quad_perm:[2,3,0,1] row_mask:0xf bank_mask:0xf")
        if opt.mimic:
            c += [f"v_cvt_pk_bf16_f32 v{vP}, v{vP}, v{vP}", f"v_and_b32 v{vP}, 0xffff0000, v{vP}",
                  f"v_mul_f32 v{vP}, 0x3db504f3, v{vP}", f"v_cvt_pk_bf16_f32 v{vP}, v{vP}, v{vP}",
                  f"v_and_b32 v{vP}, 0xffff0000, v{vP}", f"v_mul_f32 v{vP}, 0xbfb8aa3b, v{vP}"]
        else:
            c.append(f"v_mul_f32 v{vP}, 0xbe0293ee, v{vP}")
        c += [f"v_exp_f32 v{vP}, v{vP}", f"v_add_f32 v{vP}, 1.0, v{vP}", f"v_rcp_f32 v{vP}, v{vP}",
              f"v_cvt_pk_bf16_f32 v{al}, v{vP}, 0", f"v_cvt_pk_bf16_f32 v{al+1}, 0, v{vP}"]
        return c
    def chain_alone(al):
        c = chain(al)
        gaps = {9: 1, 11: 1, 14: 2, 17 + (5 if opt.mimic else 0): 1, 19 + (5 if opt.mimic else 0): 1}
        for i, ins in enumerate(c):
            a(ins)
            if i in gaps: a(f"s_nop {gaps[i]-1}")
    def agg_stream(X, al, loads, Xdst, qp=None):
        out = []
        qp = vQP if qp is None else qp
        for half in range(2):
            if half == 0:
                out.append(('x', flush(vPrev, qp)))
            else:
                out.append(('x', "s_nop 1\n" + flush(qp, qp+1)))
            for u in range(4*half, 4*half+4):
                k = 4*(u >> 1) + (u & 1)
                for r in range(4):
                    if "noagg" in opt.exp:
                        out.append(('v', "s_nop 0")); out.append(('v', "s_nop 0")); continue
                    out.append(('v', f"v_dot2c_f32_bf16_dpp v{vAcc+2*r}, v{al}, v{X+4*u+r} row_newbcast:{k} row_mask:0xf bank_mask:0xf"))
                    out.append(('v', f"v_dot2c_f32_bf16_dpp v{vAcc+2*r+1}, v{al+1}, v{X+4*u+r} row_newbcast:{k} row_mask:0xf bank_mask:0xf"))
                if loads and "noload" not in opt.exp:
                    out.append(('x', f"buffer_load_dwordx4 {vr(Xdst+4*u,4)}, v{vE+u}, s[{sX}:{sX+3}], 0 offen"))
        return out
    def next_prep():
        a("s_waitcnt lgkmcnt(0)")
        a(f"v_xor_b32 v{vT0}, v{vQN}, v{vC16}")
        a(f"v_xor_b32 v{vT1}, v{vQN+1}, v{vC16}")
    def rotate(nxt):
        a(f"v_mov_b32 v{vQP}, v{vQC}")
        a(f"v_mov_b32 v{vQP+1}, v{vQC+1}")
        if nxt:
            a(f"v_mov_b32 v{vQC}, v{vQN}")
            a(f"v_mov_b32 v{vQC+1}, v{vQN+1}")
            a(f"v_add_u32 v{vLA}, 32, v{vLA}")
            a(f"v_add_u32 v{vUA}, 8, v{vUA}")
    def mid(cur, prev, al_cur, al_prev, nxt):
        a("s_waitcnt lgkmcnt(0)")
        if nxt:
            a(f"""
            ds_read_b128 {vr(vE,4)}, v{vLA} offset:{LIST+32}
            ds_read_b128 {vr(vE+4,4)}, v{vLA} offset:{LIST+48}
            ds_read_b64 {vr(vQN,2)}, v{vUA} offset:{UNODE+8}
            """)
        dots(cur, ("s_waitcnt vmcnt(4)", "s_waitcnt vmcnt(0)"))
        if nxt:
            next_prep()
            for u in range(8):
                a(f"v_add_u32 v{vE+u}, v{vE+u}, v{vC16}")
            a(f"ds_read_b128 {vr(vQ,4)}, v{vT0}")
            a(f"ds_read_b128 {vr(vQ+4,4)}, v{vT1}")
        else:
            a("s_nop 2")
        c = chain(al_cur)
        s_ = agg_stream(prev, al_prev, nxt, prev)
        nv = sum(1 for k, _ in s_ if k == 'v')
        ci, vi = 0, 0
        for k, t in s_:
            a(t)
            if k == 'v':
                vi += 1
                if ci < len(c) and vi >= (ci + 1) * nv // (len(c) + 1) and vi % 1 == 0:
                    a(c[ci]); ci += 1
        assert ci == len(c)
        a(f"v_mov_b32 v{vPrev}, v{vQP+1}")
        rotate(nxt)
    def final(X, al):
        for k, t in agg_stream(X, al, False, None):
            a(t)
        a("s_nop 2")
        a(flush(vQP+1, None))
        a("s_branch K2_MAIN_DONE")
    def roll_body(nxt):
        al = vAl[0]
        a("s_waitcnt lgkmcnt(0)")
        if nxt:
            a(f"""
            ds_read_b128 {vr(vE,4)}, v{vLA} offset:{LIST+32}
            ds_read_b128 {vr(vE+4,4)}, v{vLA} offset:{LIST+48}
            ds_read_b64 {vr(vQN,2)}, v{vUA} offset:{UNODE+8}
            """)
        dots(vXA, ("s_waitcnt vmcnt(4)", "s_waitcnt vmcnt(0)"))
        if not nxt: wv_dma()
        fill = []
        if nxt:
            next_prep()
            a(f"v_add_u32 v{vE}, v{vE}, v{vC16}")
            fill = [f"v_add_u32 v{vE+u}, v{vE+u}, v{vC16}" for u in range(1, 8)]
        else:
            a("s_nop 2")
        c = chain(al)
        gaps = {11: 1, 14: 2, 17 + (5 if opt.mimic else 0): 1, 19 + (5 if opt.mimic else 0): 1}
        for i, ins in enumerate(c):
            a(ins)
            if i == 3 and nxt:
                a(f"ds_read_b128 {vr(vQ,4)}, v{vT0} offset:{QS}")
                a(f"ds_read_b128 {vr(vQ+4,4)}, v{vT1} offset:{QS}")
            for _ in range(gaps.get(i, 0)):
                a(fill.pop(0) if fill else "s_nop 0")
        while fill: a(fill.pop(0))
        a("s_nop 0")
        for k, t in agg_stream(vXA, al, nxt, vXA, vQC):
            a(t)
        a(f"v_mov_b32 v{vPrev}, v{vQC+1}")
        if nxt:
            a(f"v_mov_b32 v{vQC}, v{vQN}")
            a(f"v_mov_b32 v{vQC+1}, v{vQN+1}")
            a(f"v_add_u32 v{vLA}, 32, v{vLA}")
            a(f"v_add_u32 v{vUA}, 8, v{vUA}")
    if True:
        a(f"""
        s_cmp_eq_u32 s{sHB}, 1
        s_cbranch_scc1 K2_LAST
        K2_LOOP:
        """)
        if opt.prio:
            a(f"""
            s_cmp_ge_u32 s{sHB}, 4
            s_cbranch_scc1 K2_PR0
            s_setprio 2
            s_cmp_eq_u32 s{sHB}, 3
            s_cbranch_scc1 K2_PR0
            s_setprio 1
            K2_PR0:
            """)
        roll_body(True)
        a(f"""
        s_sub_u32 s{sHB}, s{sHB}, 1
        s_cmp_gt_u32 s{sHB}, 1
        s_cbranch_scc1 K2_LOOP
        K2_LAST:
        """)
        if opt.prio: a("s_setprio 0")
        roll_body(False)
        a("s_nop 2")
        a(flush(vPrev, None))
    a("s_branch K2_MAIN_DONE")
    a("K2_NOMAIN:")
    wv_dma()
    a("K2_MAIN_DONE:")
    if opt.prio: a("s_setprio 0")
    if "cyc" in opt.exp: st.stamp(a, True)
    st.stamp(a)
    vSf, vSl = vE, vE+1
    a(f"""
    s_cmp_eq_u32 s{sWave}, 15
    s_cbranch_scc0 K2_NOTBL
    s_add_u32 s3, s{sQ}, 1
    s_lshl_b32 s3, s3, 1
    v_cvt_f32_u32 v{vT0}, s3
    s_mul_i32 s3, s3, s{sRem}
    s_lshl_b32 s{sP}, s3, 2
    s_lshl_b32 s3, s{sQ}, 1
    v_cvt_f32_u32 v{vT1}, s3
    v_rcp_f32 v{vT0}, v{vT0}
    v_rcp_f32 v{vT1}, v{vT1}
    s_lshl_b32 s3, s{sRem}, 2
    """)
    for (dst, last) in ((vSf, False), (vSl, True)):
        if not last:
            a(f"v_lshrrev_b32 v{vT2}, 2, v{vStart}")
        else:
            a(f"""
            v_add_u32 v{vT2}, v{vStart}, v{vPc}
            v_lshrrev_b32 v{vT2}, 2, v{vT2}
            v_add_u32 v{vT2}, -1, v{vT2}
            """)
        a(f"""
        v_cmp_gt_u32 vcc, s{sP}, v{vT2}
        v_cvt_f32_u32 v{vT3}, v{vT2}
        v_add_f32 v{vT3}, 0.5, v{vT3}
        v_mul_f32 v{vT3}, v{vT3}, v{vT0}
        v_cvt_u32_f32 v{vT3}, v{vT3}
        v_subrev_u32 v{vT2}, s{sP}, v{vT2}
        v_cvt_f32_u32 v{vT2}, v{vT2}
        v_add_f32 v{vT2}, 0.5, v{vT2}
        v_mul_f32 v{vT2}, v{vT2}, v{vT1}
        v_cvt_u32_f32 v{vT2}, v{vT2}
        v_add_u32 v{vT2}, s3, v{vT2}
        v_cndmask_b32_e64 v{dst}, v{vT2}, v{vT3}, vcc
        """)
    a(f"""
    v_sub_u32 v{vT0}, v{vSl}, v{vSf}
    v_add_u32 v{vT0}, 1, v{vT0}
    v_cmp_lt_u32 vcc, 0, v{vPc}
    v_add_u32 v{vT1}, v{vSf}, v{vLane}
    v_lshlrev_b32 v{vT1}, 9, v{vT1}
    v_cndmask_b32_e64 v{vT0}, 0, v{vT0}, vcc
    v_add_u32 v{vT1}, {PIECE}, v{vT1}
    v_lshlrev_b32 v{vT3}, 2, v{vLane}
    v_mov_b32 v{vT2}, {ZROW}
    ds_write_b32 v{vT3}, v{vT0} offset:{NPC}
    """)
    for j in range(4):
        a(f"""
        v_cmp_lt_u32 vcc, {j}, v{vT0}
        v_add_u32 v{vT3}, {512*j}, v{vT1}
        s_nop 0
        v_cndmask_b32_e64 v{vE+4+j}, v{vT2}, v{vT3}, vcc
        """)
    a(f"""
    v_lshlrev_b32 v{vT0}, 4, v{vLane}
    ds_write_b128 v{vT0}, {vr(vE+4,4)} offset:{TBL}
    K2_NOTBL:
    """)
    vA8 = vXB
    a(f"""
    s_cmp_ge_u32 s{sWave}, 8
    s_cbranch_scc1 K2_NOAA
    s_and_b32 s{sP}, s{sWave}, 3
    s_lshr_b32 s{sNH}, s{sWave}, 2
    """)
    tile_a_addr(a, vWa, vLane, vT2, vT3, sP, WV)
    a(f"""
    v_and_b32 v{vRow}, 31, v{vLane}
    s_lshl_b32 s3, s{sNH}, 5
    v_add_u32 v{vRow}, s3, v{vRow}
    """)
    tile_b_addr(a, vBa, vRow, vLane, vT3)
    a(f"""
    K2_NOAA:
    s_waitcnt vmcnt(0) lgkmcnt(0)
    s_barrier
    """)
    st.stamp(a)
    a(f"""
    s_add_u32 s3, s{sR}, 1
    s_cmp_ge_u32 s3, s{sNR}
    s_cselect_b32 s{sT}, 8, 0
    s_cmp_ge_u32 s{sWave}, s{sT}
    s_cbranch_scc1 K2_NOA
    """)
    for ks in range(6):
        a(f"ds_read_b64_tr_b16 {vr(vA8+4*ks,2)}, v{vWa} offset:{ks*4096}")
        a(f"ds_read_b64_tr_b16 {vr(vA8+4*ks+2,2)}, v{vWa} offset:{ks*4096 + 1024}")
    a("K2_NOA:")
    vB = vE
    vRd = vXA
    vNp = vT3
    a(f"""
    s_cmp_ge_u32 s{sWave}, 13
    s_cbranch_scc1 K2_RED_DONE
    v_lshrrev_b32 v{vT0}, 4, v{vLane}
    s_lshl_b32 s3, s{sWave}, 2
    v_add_u32 v{vT0}, s3, v{vT0}
    v_lshlrev_b32 v{vT1}, 4, v{vT0}
    v_lshlrev_b32 v{vT2}, 2, v{vT0}
    ds_read_b128 {vr(vB,4)}, v{vT1} offset:{TBL}
    ds_read_b32 v{vNp}, v{vT2} offset:{NPC}
    s_waitcnt lgkmcnt(0)
    """)
    for j in range(3):
        a(f"""
        v_add_u32 v{vB+j}, v{vB+j}, v{vC16}
        ds_read_b128 {vr(vRd+8*j,4)}, v{vB+j}
        ds_read_b128 {vr(vRd+8*j+4,4)}, v{vB+j} offset:256
        """)
    for j in range(3):
        a(f"s_waitcnt lgkmcnt({4-2*j})")
        for i in range(8):
            a(f"v_add_f32 v{vTot+i}, v{vTot+i}, v{vRd+8*j+i}")
    a(f"""
    s_mov_b32 s{sT}, 3
    K2_XL:
    v_cmp_lt_u32 vcc, s{sT}, v{vNp}
    s_cbranch_vccz K2_RED_DONE
    s_lshl_b32 s3, s{sT}, 9
    v_add_u32 v{vT0}, s3, v{vB}
    s_mov_b64 exec, vcc
    ds_read_b128 {vr(vRd,4)}, v{vT0}
    ds_read_b128 {vr(vRd+4,4)}, v{vT0} offset:256
    s_waitcnt lgkmcnt(0)
    """)
    for i in range(8):
        a(f"v_add_f32 v{vTot+i}, v{vTot+i}, v{vRd+i}")
    a(f"""
    s_mov_b64 exec, -1
    s_add_u32 s{sT}, s{sT}, 1
    s_branch K2_XL
    K2_RED_DONE:
    s_add_u32 s{sR}, s{sR}, 1
    s_cmp_ge_u32 s{sR}, s{sNR}
    s_cbranch_scc1 K2_EPI
    s_barrier
    """)
    a(f"""
    s_cmp_ge_u32 s{sWave}, 4
    s_cbranch_scc1 K2_RZ
    v_mov_b32 v{vT2}, 0
    v_lshlrev_b32 v{vT3}, 2, v0
    ds_write_b32 v{vT3}, v{vT2} offset:{HIST}
    K2_RZ:
    v_mov_b32 v{vCand}, -1
    v_mov_b32 v{vCand+1}, -1
    v_mov_b32 v{vCand+2}, -1
    v_mov_b32 v{vCand+3}, -1
    v_mov_b32 v{vHdr}, 0
    v_cmp_gt_u32 vcc, {C*4}, v0
    s_and_saveexec_b64 s[{sSave}:{sSave+1}], vcc
    s_cbranch_execz K2_R1
    v_lshrrev_b32 v{vT0}, 2, v0
    v_lshlrev_b32 v{vT2}, 4, v{vT0}
    v_add_u32 v{vT2}, {WS_HDR}, v{vT2}
    buffer_load_dword v{vT3}, v{vT2}, s[{sWS}:{sWS+3}], 0 offen
    v_lshlrev_b32 v{vT0}, 13, v{vT0}
    v_add_u32 v{vT0}, {WS_OVF}, v{vT0}
    s_lshl_b32 s3, s{sR}, 4
    s_sub_u32 s3, s3, 13
    v_and_b32 v{vT1}, 3, v0
    v_lshl_add_u32 v{vT1}, v{vT1}, 2, s3
    v_lshl_add_u32 v{vT0}, v{vT1}, 2, v{vT0}
    buffer_load_dwordx4 {vr(vSo,4)}, v{vT0}, s[{sWS}:{sWS+3}], 0 offen offset:4
    s_waitcnt vmcnt(0)
    """)
    for i in range(4):
        a(f"""
        v_add_u32 v{vT2}, {i}, v{vT1}
        v_cmp_lt_u32 vcc, v{vT2}, v{vT3}
        v_lshrrev_b32 v{vT0}, 24, v{vSo+i}
        v_cmp_eq_u32 s[{sM}:{sM+1}], s{sBeta}, v{vT0}
        s_nop 0
        s_and_b64 vcc, vcc, s[{sM}:{sM+1}]
        s_nop 1
        v_cndmask_b32_e64 v{vCand+i}, v{vCand+i}, v{vSo+i}, vcc
        """)
    a(f"""
    K2_R1:
    s_mov_b64 exec, s[{sSave}:{sSave+1}]
    v_mov_b32 v{vT3}, 1
    s_waitcnt lgkmcnt(0)
    s_barrier
    s_branch K2_DECODE
    K2_EPI:
    """)
    st.stamp(a)
    vAcc16, vB8 = 24, vXA
    a(f"""
    s_cmp_ge_u32 s{sWave}, 13
    s_cbranch_scc1 K2_WB_DONE
    v_lshrrev_b32 v{vT0}, 4, v{vLane}
    s_lshl_b32 s3, s{sWave}, 2
    v_add_u32 v{vT0}, s3, v{vT0}
    v_lshlrev_b32 v{vT1}, 4, v{vT0}
    v_xor_b32 v{vT1}, v{vT1}, v{vC16}
    v_and_b32 v{vT1}, 0xf0, v{vT1}
    v_lshl_add_u32 v{vT0}, v{vT0}, 8, v{vT1}
    """)
    for i in range(4):
        a(f"v_cvt_pk_bf16_f32 v{vP+i}, v{vTot+2*i}, v{vTot+2*i+1}")
    a(f"""
    ds_write_b128 v{vT0}, {vr(vP,4)} offset:{AGGB}
    K2_WB_DONE:
    s_cmp_ge_u32 s{sWave}, 8
    s_cbranch_scc1 K2_EB
    """)
    for ks in range(6, 8):
        a(f"ds_read_b64_tr_b16 {vr(vA8+4*ks,2)}, v{vWa} offset:{ks*4096}")
        a(f"ds_read_b64_tr_b16 {vr(vA8+4*ks+2,2)}, v{vWa} offset:{ks*4096 + 1024}")
    for ks in range(8):
        a(f"v_xor_b32 v{vE+ks}, {32*ks}, v{vBa}")
    a(f"""
    s_mul_i32 s3, s{sBeta}, {T*256}
    s_lshl_b32 s{sCnt}, s{sP}, 6
    s_add_u32 s3, s3, s{sCnt}
    v_lshrrev_b32 v{vT0}, 5, v{vLane}
    v_lshlrev_b32 v{vT1}, 8, v{vRow}
    v_lshl_add_u32 v{vT1}, v{vT0}, 5, v{vT1}
    v_add_u32 v{vT1}, s3, v{vT1}
    K2_EB:
    s_waitcnt lgkmcnt(0)
    s_barrier
    s_cmp_ge_u32 s{sWave}, 8
    s_cbranch_scc1 K2_FIN
    """)
    for ks in range(8):
        a(f"ds_read_b128 {vr(vB8+4*ks,4)}, v{vE+ks} offset:{AGGB}")
    a(f"v_cmp_gt_u32 vcc, {T}, v{vRow}")
    for ks in range(8):
        a(f"s_waitcnt lgkmcnt({7-ks})")
        c = "0" if ks == 0 else vr(vAcc16,16)
        a(f"v_mfma_f32_32x32x16_bf16 {vr(vAcc16,16)}, {vr(vA8+4*ks,4)}, {vr(vB8+4*ks,4)}, {c}")
    a("s_nop 7")
    a("s_nop 3")
    for i in range(8):
        a(f"v_cvt_pk_bf16_f32 v{vQ+i}, v{vAcc16+2*i}, v{vAcc16+2*i+1}")
    a(f"""
    s_and_saveexec_b64 s[{sSave}:{sSave+1}], vcc
    s_cbranch_execz K2_ST_DONE
    buffer_store_dwordx4 {vr(vQ,4)}, v{vT1}, s[{sOUT}:{sOUT+3}], 0 offen {opt.outst}
    buffer_store_dwordx4 {vr(vQ+4,4)}, v{vT1}, s[{sOUT}:{sOUT+3}], 0 offen offset:16 {opt.outst}
    K2_ST_DONE:
    s_mov_b64 exec, s[{sSave}:{sSave+1}]
    K2_FIN:
    """)
    st.stamp(a)
    if opt.stamps:
        a("s_waitcnt vmcnt(0)")
        st.stamp(a)
    st.flush(a, sWS, vT0, sWave)
    a("""
    K2_END:
    s_endpgm
    """)
    return a.text(), LDS, 128

def build(opt):
    k1, lds1, v1 = gen_k1(opt)
    k2, lds2, v2 = gen_k2(opt)
    n1, n2 = NAME + "_k1_kernel", NAME + "_k2_kernel"
    out = HEADER
    for ch in opt.seq:
        if ch == "1": out += f"; @launch kernel={n1} grid=({C},1,1) block=({576 if opt.prefetch in (3, 4) else 512},1,1) lds={max(lds1, opt.lds1)}\n"
        if ch == "2": out += f"; @launch kernel={n2} grid=({NB},1,1) block=(1024,1,1) lds={lds2}\n"
    out += '.amdgcn_target "amdgcn-amd-amdhsa--gfx950"\n.text\n'
    for n, k in ((n1, k1), (n2, k2)):
        out += f".globl {n}\n.p2align 8\n.type {n},@function\n" + k
    out += '.section .rodata,"a"\n.p2align 6\n'
    out += kd(n1, v1) + ".p2align 6\n" + kd(n2, v2)
    return out

def parse(argv=None):
    p = argparse.ArgumentParser()
    p.add_argument("-o", default="cdna_kernels/" + NAME + ".s")
    p.add_argument("--stamps", action="store_true")
    p.add_argument("--prefetch", type=int, default=0)
    p.add_argument("--mimic", type=int, default=0)
    p.add_argument("--prio", type=int, default=0)
    p.add_argument("--touch", type=int, default=0)
    p.add_argument("--style", default="roll")
    p.add_argument("--seq", default="12")
    p.add_argument("--exp", default="")
    p.add_argument("--cellst", default="")
    p.add_argument("--outst", default="")
    p.add_argument("--lds1", type=int, default=83968)
    return p.parse_args(argv)

if __name__ == "__main__":
    o = parse()
    open(o.o, "w").write(build(o))
    print("wrote", o.o)
```

```python
import sys, argparse

NAME = "gather_scatter__kernel_systems_refs_featgraph__graph"
N, E, D = 12500, 400000, 128
T = 49
NB = 256
CH = 1600
C = 250
S = 16
XBYTES = N * 256
EBYTES = E * 4
WS_CELLS = 0
CELLROW = C * S * 4
WS_OVF = 0x400000
OVF_STRIDE = 8192
WS_Q = 0x600000
WS_USED = WS_Q + NB * T * 256 + 4096
WS_STAMP = 0x1000000
OOB = 0x40000000
DUMMY = 49

class A:
    def __init__(self):
        self.l = []
    def __call__(self, s):
        for line in s.strip("\n").split("\n"):
            line = line.strip()
            if not line:
                continue
            if (line.endswith(":") and " " not in line) or line.startswith(".p2align"):
                self.l.append(line)
            else:
                self.l.append("  " + line)
    def text(self):
        return "\n".join(self.l) + "\n"

def srd(a, d, base, size):
    a(f"""
    s_mov_b32 s{d}, s{base}
    s_mov_b32 s{d+1}, s{base+1}
    s_mov_b32 s{d+2}, {size}
    s_mov_b32 s{d+3}, 0x00020000
    """)

def vr(b, n):
    return f"v[{b}:{b+n-1}]"

class Stamps:
    def __init__(self, on, sbase, area, keep=None):
        self.on, self.sbase, self.area, self.n = on, sbase, area, 0
        self.keep, self.site = keep, -1
    def stamp(self, a, cyc=False):
        if not self.on: return
        self.site += 1
        if self.keep is not None and self.site not in self.keep: return
        r = self.sbase + 2 * self.n
        a(f"{'s_memtime' if cyc else 's_memrealtime'} s[{r}:{r+1}]")
        self.n += 1
    def flush(self, a, srd_lo, vtmp, wave_sgpr):
        if not self.on: return
        a(f"""
        s_waitcnt lgkmcnt(0)
        s_lshl_b32 s3, s2, 4
        s_add_u32 s3, s3, s{wave_sgpr}
        s_lshl_b32 s3, s3, 6
        s_add_u32 s3, s3, {self.area}
        s_mov_b64 exec, 1
        """)
        for i in range(self.n):
            a(f"v_mov_b32 v{vtmp}, s{self.sbase + 2*i}")
            a(f"v_mov_b32 v{vtmp+1}, s3")
            a(f"buffer_store_dword v{vtmp}, v{vtmp+1}, s[{srd_lo}:{srd_lo+3}], 0 offen offset:{4*i}")
        a("s_waitcnt vmcnt(0)")

WSTRIDE = 320

def tile_a_addr(a, vdst, vlane, vtmp, vtmp2, sP, wbase):
    a(f"""
    v_lshrrev_b32 v{vtmp}, 5, v{vlane}
    v_lshlrev_b32 v{vtmp}, 3, v{vtmp}
    v_bfe_u32 v{vtmp2}, v{vlane}, 2, 2
    v_add_u32 v{vtmp}, v{vtmp}, v{vtmp2}
    v_mul_u32_u24 v{vdst}, {WSTRIDE}, v{vtmp}
    v_bfe_u32 v{vtmp}, v{vlane}, 4, 1
    v_lshlrev_b32 v{vtmp}, 2, v{vtmp}
    v_and_b32 v{vtmp2}, 3, v{vlane}
    v_add_u32 v{vtmp}, v{vtmp}, v{vtmp2}
    v_and_b32 v{vtmp2}, 1, v{vtmp}
    v_lshlrev_b32 v{vtmp2}, 2, v{vtmp2}
    v_lshrrev_b32 v{vtmp}, 1, v{vtmp}
    v_add_u32 v{vtmp}, v{vtmp}, v{vtmp2}
    v_lshlrev_b32 v{vtmp}, 3, v{vtmp}
    v_add_u32 v{vdst}, v{vdst}, v{vtmp}
    s_lshl_b32 s3, s{sP}, 6
    s_add_u32 s3, s3, {wbase}
    v_add_u32 v{vdst}, s3, v{vdst}
    """)

def gen_k1(opt):
    a = A()
    HIST, OVC, JUNK, STAGE = 0, 1024, 1040, 2048
    XT = STAGE + 16384
    XSTR = 272
    WQ = XT + 64 * XSTR
    LDS = WQ + 128 * WSTRIDE
    st = Stamps(opt.stamps, 60, WS_STAMP)
    sX, sSRC, sDST, sWQ, sWS = 16, 20, 24, 28, 32
    sWave, sP, sNH = 36, 37, 38
    vLane, vW = 1, 2
    vDst, vSrc = 4, 8
    vXT = 12
    vWl = 20
    vEnt, vAdr, vRank = 36, 40, 44
    vT0, vT1, vT2, vT3 = 48, 49, 50, 51
    vOne, vNeg, vZero = 52, 56, 60
    vXa, vWa = 61, 62
    vAcc = 64
    vAf, vBf = 80, 96
    a(f"""
    {NAME}_k1_kernel:
    s_cmp_ge_u32 s2, {NB}
    s_cbranch_scc1 K1_END
    s_load_dwordx4 s[4:7], s[0:1], 0
    s_load_dwordx4 s[8:11], s[0:1], 16
    s_load_dwordx2 s[12:13], s[0:1], 56
    """)
    st.stamp(a)
    a(f"""
    v_and_b32 v{vLane}, 63, v0
    v_lshrrev_b32 v{vW}, 6, v0
    v_mov_b32 v{vOne}, 1
    v_readfirstlane_b32 s{sWave}, v{vW}
    v_mov_b32 v{vNeg}, -1
    v_mov_b32 v{vNeg+1}, -1
    v_mov_b32 v{vNeg+2}, -1
    v_mov_b32 v{vNeg+3}, -1
    v_mov_b32 v{vZero}, 0
    s_and_b32 s{sP}, s{sWave}, 3
    s_lshr_b32 s{sNH}, s{sWave}, 2
    s_waitcnt lgkmcnt(0)
    """)
    srd(a, sX, 4, XBYTES); srd(a, sSRC, 6, EBYTES); srd(a, sDST, 8, EBYTES)
    srd(a, sWQ, 10, 32768); srd(a, sWS, 12, WS_USED if not opt.stamps else 0x2000000)
    a(f"""
    s_cmp_ge_u32 s2, {C}
    s_cbranch_scc1 K1_NOEDGE0
    v_cmp_gt_u32 vcc, {CH//4}, v0
    s_and_saveexec_b64 s[40:41], vcc
    s_cbranch_execz K1_EDGE0_DONE
    s_mul_i32 s14, s2, {CH*4}
    v_lshl_add_u32 v{vT0}, v0, 4, s14
    buffer_load_dwordx4 {vr(vDst,4)}, v{vT0}, s[{sDST}:{sDST+3}], 0 offen
    buffer_load_dwordx4 {vr(vSrc,4)}, v{vT0}, s[{sSRC}:{sSRC+3}], 0 offen
    K1_EDGE0_DONE:
    s_mov_b64 exec, s[40:41]
    K1_NOEDGE0:
    s_mul_i32 s14, s2, {T*256}
    v_lshl_add_u32 v{vT0}, v0, 4, s14
    v_add_u32 v{vT1}, 8192, v{vT0}
    v_lshlrev_b32 v{vT2}, 4, v0
    buffer_load_dwordx4 {vr(vXT,4)}, v{vT0}, s[{sX}:{sX+3}], 0 offen
    buffer_load_dwordx4 {vr(vXT+4,4)}, v{vT1}, s[{sX}:{sX+3}], 0 offen
    """)
    for i in range(4):
        a(f"s_mov_b32 s14, {8192*i}")
        a(f"buffer_load_dwordx4 {vr(vWl+4*i,4)}, v{vT2}, s[{sWQ}:{sWQ+3}], s14 offen")
    if opt.prefetch:
        npf = opt.prefetch
        per = 100352
        a(f"""
        s_lshr_b32 s14, s2, 3
        s_mul_i32 s14, s14, {per}
        v_lshlrev_b32 v{vT3}, 7, v0
        v_add_u32 v{vT3}, s14, v{vT3}
        """)
        a(f"""
        buffer_load_dword v112, v{vT3}, s[{sX}:{sX+3}], 0 offen
        v_add_u32 v{vT3}, 65536, v{vT3}
        v_mov_b32 v{vT2}, {OOB}
        v_cmp_gt_u32 vcc, {(per - 65536)//128}, v0
        s_nop 1
        v_cndmask_b32_e64 v{vT3}, v{vT2}, v{vT3}, vcc
        buffer_load_dword v113, v{vT3}, s[{sX}:{sX+3}], 0 offen
        """)
    a(f"""
    v_lshlrev_b32 v{vT0}, 4, v0
    ds_write_b128 v{vT0}, {vr(vNeg,4)} offset:{STAGE}
    ds_write_b128 v{vT0}, {vr(vNeg,4)} offset:{STAGE+8192}
    v_cmp_ge_u32 vcc, 256, v0
    s_and_saveexec_b64 s[40:41], vcc
    v_lshlrev_b32 v{vT1}, 2, v0
    ds_write_b32 v{vT1}, v{vZero} offset:{HIST}
    s_mov_b64 exec, s[40:41]
    s_waitcnt lgkmcnt(0)
    s_barrier
    """)
    st.stamp(a)
    npfl = 2 if opt.prefetch else 0
    a(f"""
    s_cmp_ge_u32 s2, {C}
    s_cbranch_scc1 K1_NOEDGE1
    v_cmp_gt_u32 vcc, {CH//4}, v0
    s_and_saveexec_b64 s[40:41], vcc
    s_cbranch_execz K1_EDGE1_DONE
    s_mov_b32 s15, -{T}
    s_waitcnt vmcnt({6+npfl})
    """)
    st.stamp(a)
    for i in range(4):
        a(f"""
        v_mul_u32_u24 v{vT0}, 21400, v{vDst+i}
        v_lshrrev_b32 v{vT0}, 20, v{vT0}
        v_mad_i32_i24 v{vT1}, v{vT0}, s15, v{vDst+i}
        v_lshl_or_b32 v{vEnt+i}, v{vSrc+i}, 8, v{vT1}
        v_lshl_or_b32 v{vEnt+i}, v{vT0}, 24, v{vEnt+i}
        v_lshlrev_b32 v{vAdr+i}, 2, v{vT0}
        ds_add_rtn_u32 v{vRank+i}, v{vAdr+i}, v{vOne} offset:{HIST}
        """)
    a(f"v_mov_b32 v{vT3}, {JUNK}")
    a("s_waitcnt lgkmcnt(0)")
    for i in range(4):
        a(f"""
        v_cmp_gt_u32 s[{42+2*i}:{43+2*i}], 16, v{vRank+i}
        v_lshlrev_b32 v{vT0}, 4, v{vAdr+i}
        v_lshl_add_u32 v{vT0}, v{vRank+i}, 2, v{vT0}
        v_add_u32 v{vT0}, {STAGE}, v{vT0}
        v_cndmask_b32_e64 v{vT0}, v{vT3}, v{vT0}, s[{42+2*i}:{43+2*i}]
        ds_write_b32 v{vT0}, v{vEnt+i}
        """)
    a(f"""
    s_and_b64 s[50:51], s[42:43], s[44:45]
    s_and_b64 s[52:53], s[46:47], s[48:49]
    s_and_b64 s[50:51], s[50:51], s[52:53]
    s_andn2_b64 s[50:51], exec, s[50:51]
    s_cbranch_scc0 K1_EDGE1_DONE
    s_mov_b64 s[54:55], exec
    s_mul_i32 s14, s2, {OVF_STRIDE}
    s_add_u32 s14, s14, {WS_OVF + 4}
    v_mov_b32 v{vT3}, {OVC}
    """)
    for i in range(4):
        a(f"""
        s_andn2_b64 exec, s[54:55], s[{42+2*i}:{43+2*i}]
        s_cbranch_execz K1_OV_{i}
        ds_add_rtn_u32 v{vT0}, v{vT3}, v{vOne}
        s_waitcnt lgkmcnt(0)
        v_lshl_add_u32 v{vT0}, v{vT0}, 2, s14
        buffer_store_dword v{vEnt+i}, v{vT0}, s[{sWS}:{sWS+3}], 0 offen
        K1_OV_{i}:
        """)
    a(f"""
    K1_EDGE1_DONE:
    s_mov_b64 exec, s[40:41]
    K1_NOEDGE1:
    """)
    a(f"""
    v_lshrrev_b32 v{vT0}, 4, v0
    v_and_b32 v{vT1}, 15, v0
    v_lshlrev_b32 v{vT1}, 4, v{vT1}
    v_mul_u32_u24 v{vT2}, {XSTR}, v{vT0}
    v_add_u32 v{vT2}, v{vT2}, v{vT1}
    v_mul_u32_u24 v{vT3}, {WSTRIDE}, v{vT0}
    v_add_u32 v{vT3}, v{vT3}, v{vT1}
    v_add_u32 v{vT3}, {WQ}, v{vT3}
    s_waitcnt vmcnt({4+npfl})
    ds_write_b128 v{vT2}, {vr(vXT,4)} offset:{XT}
    ds_write_b128 v{vT2}, {vr(vXT+4,4)} offset:{XT + 32*XSTR}
    s_waitcnt vmcnt({npfl})
    """)
    for i in range(4):
        a(f"ds_write_b128 v{vT3}, {vr(vWl+4*i,4)} offset:{32*i*WSTRIDE}")
    a("""
    s_waitcnt lgkmcnt(0)
    s_barrier
    """)
    st.stamp(a)
    a(f"""
    s_cmp_ge_u32 s2, {C}
    s_cbranch_scc1 K1_NOEDGE2
    v_lshlrev_b32 v{vT0}, 4, v0
    ds_read_b128 {vr(vEnt,4)}, v{vT0} offset:{STAGE}
    ds_read_b128 {vr(vAdr,4)}, v{vT0} offset:{STAGE+8192}
    v_mov_b32 v{vT3}, {OVC}
    ds_read_b32 v{vRank}, v{vT3}
    v_lshrrev_b32 v{vT1}, 2, v0
    v_mul_u32_u24 v{vT1}, {CELLROW}, v{vT1}
    v_and_b32 v{vT2}, 3, v0
    v_lshl_add_u32 v{vT1}, v{vT2}, 4, v{vT1}
    s_lshl_b32 s14, s2, 6
    s_add_u32 s15, s14, {128*CELLROW}
    s_waitcnt lgkmcnt(0)
    buffer_store_dwordx4 {vr(vEnt,4)}, v{vT1}, s[{sWS}:{sWS+3}], s14 offen {opt.cellst}
    buffer_store_dwordx4 {vr(vAdr,4)}, v{vT1}, s[{sWS}:{sWS+3}], s15 offen {opt.cellst}
    v_cmp_eq_u32 vcc, 0, v0
    s_and_saveexec_b64 s[40:41], vcc
    s_cbranch_execz K1_HDR_DONE
    s_mul_i32 s14, s2, {OVF_STRIDE}
    s_add_u32 s14, s14, {WS_OVF}
    v_mov_b32 v{vT2}, s14
    buffer_store_dword v{vRank}, v{vT2}, s[{sWS}:{sWS+3}], 0 offen {opt.cellst}
    K1_HDR_DONE:
    s_mov_b64 exec, s[40:41]
    K1_NOEDGE2:
    """)
    st.stamp(a)
    tile_a_addr(a, vWa, vLane, vT0, vT1, sP, WQ)
    a(f"""
    v_and_b32 v{vT0}, 31, v{vLane}
    s_lshl_b32 s14, s{sNH}, 5
    v_add_u32 v{vT0}, s14, v{vT0}
    v_mul_u32_u24 v{vXa}, {XSTR}, v{vT0}
    v_lshrrev_b32 v{vT1}, 5, v{vLane}
    v_lshl_add_u32 v{vXa}, v{vT1}, 4, v{vXa}
    """)
    vA8, vB8 = 80, 4
    for ks in range(8):
        a(f"ds_read_b64_tr_b16 {vr(vA8+4*ks,2)}, v{vWa} offset:{ks*16*WSTRIDE}")
        a(f"ds_read_b64_tr_b16 {vr(vA8+4*ks+2,2)}, v{vWa} offset:{ks*16*WSTRIDE + 4*WSTRIDE}")
        a(f"ds_read_b128 {vr(vB8+4*ks,4)}, v{vXa} offset:{XT + 32*ks}")
        if ks % 4 == 3:
            a("s_waitcnt lgkmcnt(0)")
            for k2 in range(ks-3, ks+1):
                c = "0" if k2 == 0 else vr(vAcc,16)
                a(f"v_mfma_f32_32x32x16_bf16 {vr(vAcc,16)}, {vr(vA8+4*k2,4)}, {vr(vB8+4*k2,4)}, {c}")
    a(f"""
    s_mul_i32 s14, s2, {T*256}
    s_add_u32 s14, s14, {WS_Q}
    s_lshl_b32 s15, s{sP}, 6
    s_add_u32 s14, s14, s15
    v_lshlrev_b32 v{vT2}, 8, v{vT0}
    v_lshl_add_u32 v{vT2}, v{vT1}, 5, v{vT2}
    v_add_u32 v{vT2}, s14, v{vT2}
    v_cmp_gt_u32 vcc, {T}, v{vT0}
    s_nop 7
    s_nop 3
    """)
    for i in range(8):
        a(f"v_cvt_pk_bf16_f32 v{vA8+i}, v{vAcc+2*i}, v{vAcc+2*i+1}")
    a(f"""
    s_and_saveexec_b64 s[40:41], vcc
    s_cbranch_execz K1_Q_DONE
    buffer_store_dwordx4 {vr(vA8,4)}, v{vT2}, s[{sWS}:{sWS+3}], 0 offen {opt.qst}
    buffer_store_dwordx4 {vr(vA8+4,4)}, v{vT2}, s[{sWS}:{sWS+3}], 0 offen offset:16 {opt.qst}
    K1_Q_DONE:
    s_mov_b64 exec, s[40:41]
    """)
    st.stamp(a)
    if opt.stamps:
        a("s_waitcnt vmcnt(0)")
        st.stamp(a)
    st.flush(a, sWS, vT0, sWave)
    a("""
    K1_END:
    s_endpgm
    """)
    return a.text(), LDS, 116

def scan64(a, v, vsave):
    for sh in ("row_shr:1", "row_shr:2", "row_shr:4", "row_shr:8"):
        a(f"v_add_u32_dpp v{v}, v{v}, v{v} {sh} row_mask:0xf bank_mask:0xf bound_ctrl:1")
        a("s_nop 1")
    a(f"v_add_u32_dpp v{v}, v{v}, v{v} row_bcast:15 row_mask:0xa bank_mask:0xf")
    a("s_nop 1")
    a(f"v_add_u32_dpp v{v}, v{v}, v{v} row_bcast:31 row_mask:0xc bank_mask:0xf")

def gen_k2(opt):
    a = A()
    HIST, MAXC, ZROW = 0, 256, 512
    LIST = 1024
    LISTW = 5120
    UNODE = LIST + LISTW * 4
    QS = UNODE + 1280 * 4
    PIECE = QS + 52 * 256
    WV = PIECE + (DUMMY + 64) * 512
    LDS = WV + 128 * WSTRIDE
    AGGB, ABSTR = LIST, 272
    st = Stamps(opt.stamps, 64, WS_STAMP + 0x40000)
    sX, sWV, sOUT, sWS = 12, 16, 20, 24
    sBeta, sWave, sR, sNR = 28, 29, 30, 31
    sOdd = 32
    sBeta24, sHB, sP, sNH = 35, 36, 37, 38
    sM = 40
    sSave = 54
    sCnt, sQ, sRem = 56, 57, 58
    vLane, vC16, vPB, vLA, vUA, vPrev = 1, 2, 3, 4, 5, 6
    vL4 = 7
    vQC, vQN = 8, 10
    vALo, vAHi, vHiM = 12, 13, 14
    vQB = 15
    vT0, vT1, vT2, vT3 = 16, 17, 18, 19
    vAcc = 20
    vP = 28
    vE = 36
    vQ = 44
    vX = 52
    vTot = 84
    vSf, vSl, vPc, vStart = 92, 93, 94, 95
    vWvl = 96
    vZ4 = 104
    vCand = 52
    vHdr = 56
    vSo = 60
    vN4 = 68
    vRk = 76
    a(f"""
    {NAME}_k2_kernel:
    s_cmp_ge_u32 s2, {NB}
    s_cbranch_scc1 K2_END
    s_load_dwordx2 s[6:7], s[0:1], 56
    s_load_dwordx2 s[4:5], s[0:1], 0
    s_load_dwordx4 s[8:11], s[0:1], 32
    """)
    st.stamp(a)
    a(f"""
    v_and_b32 v{vLane}, 63, v0
    v_lshrrev_b32 v{vT0}, 6, v0
    s_and_b32 s{sBeta}, s2, 7
    v_readfirstlane_b32 s{sWave}, v{vT0}
    s_lshl_b32 s{sBeta}, s{sBeta}, 5
    s_lshr_b32 s3, s2, 3
    s_add_u32 s{sBeta}, s{sBeta}, s3
    s_lshl_b32 s{sBeta24}, s{sBeta}, 24
    v_mov_b32 v{vCand}, -1
    v_mov_b32 v{vCand+1}, -1
    v_mov_b32 v{vCand+2}, -1
    v_mov_b32 v{vCand+3}, -1
    v_mov_b32 v{vHdr}, 0
    v_lshlrev_b32 v{vT0}, 4, v0
    v_lshlrev_b32 v{vT1}, 13, v0
    s_mul_i32 s3, s{sBeta}, {CELLROW}
    s_mov_b32 s{sCnt}, {WS_OVF}
    s_waitcnt lgkmcnt(0)
    """)
    srd(a, sWS, 6, WS_USED if not opt.stamps else 0x2000000)
    a(f"""
    v_cmp_gt_u32 vcc, {C*4}, v0
    s_and_saveexec_b64 s[{sSave}:{sSave+1}], vcc
    s_cbranch_execz K2_L0
    buffer_load_dwordx4 {vr(vCand,4)}, v{vT0}, s[{sWS}:{sWS+3}], s3 offen
    K2_L0:
    s_mov_b64 exec, s[{sSave}:{sSave+1}]
    s_cmp_ge_u32 s{sWave}, 4
    s_cbranch_scc1 K2_L1
    v_cmp_gt_u32 vcc, {C}, v0
    s_and_saveexec_b64 s[{sSave}:{sSave+1}], vcc
    buffer_load_dwordx4 {vr(vHdr,4)}, v{vT1}, s[{sWS}:{sWS+3}], s{sCnt} offen
    s_mov_b64 exec, s[{sSave}:{sSave+1}]
    K2_L1:
    """)
    srd(a, sX, 4, XBYTES); srd(a, sWV, 8, 32768); srd(a, sOUT, 10, XBYTES)
    a(f"""
    s_cmp_ge_u32 s{sWave}, 13
    s_cbranch_scc1 K2_L2
    s_mul_i32 s3, s{sBeta}, {T*256}
    s_add_u32 s3, s3, {WS_Q}
    s_lshl_b32 s{sCnt}, s{sWave}, 10
    s_add_u32 s3, s3, s{sCnt}
    s_add_u32 s{sCnt}, s{sCnt}, {QS}
    s_mov_b32 m0, s{sCnt}
    v_lshlrev_b32 v{vT1}, 4, v{vLane}
    buffer_load_dwordx4 v{vT1}, s[{sWS}:{sWS+3}], s3 offen lds
    K2_L2:
    s_mov_b32 s3, 16384
    buffer_load_dwordx4 {vr(vWvl,4)}, v{vT0}, s[{sWV}:{sWV+3}], 0 offen
    buffer_load_dwordx4 {vr(vWvl+4,4)}, v{vT0}, s[{sWV}:{sWV+3}], s3 offen
    s_mov_b32 s{sOdd}, 0xaaaaaaaa
    s_mov_b32 s{sOdd+1}, 0xaaaaaaaa
    s_mov_b32 s{sR}, 0
    v_and_b32 v{vT0}, 15, v{vLane}
    v_lshlrev_b32 v{vC16}, 4, v{vT0}
    v_add_u32 v{vQB}, {QS}, v{vC16}
    v_lshlrev_b32 v{vL4}, 2, v{vLane}
    v_mov_b32 v{vHiM}, 0xffff0000
    v_lshrrev_b32 v{vT0}, 4, v{vLane}
    s_lshl_b32 s3, s{sWave}, 11
    s_add_u32 s3, s3, {PIECE}
    v_lshl_add_u32 v{vPB}, v{vT0}, 9, s3
    v_add_u32 v{vPB}, v{vPB}, v{vC16}
    """)
    for i in range(8):
        a(f"v_mov_b32 v{vTot+i}, 0")
    a(f"""
    K2_ROUND:
    v_mov_b32 v{vZ4}, {OOB}
    v_mov_b32 v{vZ4+1}, {OOB}
    v_mov_b32 v{vZ4+2}, {OOB}
    v_mov_b32 v{vZ4+3}, {OOB}
    v_mov_b32 v{vT1}, {DUMMY*256}
    v_mov_b32 v{vT2}, 0
    v_lshlrev_b32 v{vT0}, 4, v0
    v_lshlrev_b32 v{vT3}, 2, v0
    ds_write_b128 v{vT0}, {vr(vZ4,4)} offset:{LIST}
    ds_write_b32 v{vT3}, v{vT1} offset:{UNODE}
    s_cmp_ge_u32 s{sWave}, 4
    s_cbranch_scc1 K2_I1
    ds_write_b128 v{vT0}, {vr(vZ4,4)} offset:{LIST+16384}
    ds_write_b32 v{vT3}, v{vT1} offset:{UNODE+4096}
    ds_write_b32 v{vT3}, v{vT2} offset:{HIST}
    K2_I1:
    s_waitcnt lgkmcnt(0)
    s_barrier
    """)
    st.stamp(a)
    def decode(word, i, extra_mask=None):
        m = sM + 2*i
        a(f"""
        v_xor_b32 v{vT0}, s{sBeta24}, v{word}
        v_and_b32 v{vT1}, 0xff0000c0, v{vT0}
        v_cmp_eq_u32 s[{m}:{m+1}], 0, v{vT1}
        v_and_b32 v{vSo+i}, 0x00ffff00, v{vT0}
        v_and_b32 v{vN4+i}, 0x3f, v{vT0}
        v_lshlrev_b32 v{vN4+i}, 2, v{vN4+i}
        """)
        if extra_mask:
            a(f"s_and_b64 s[{m}:{m+1}], s[{m}:{m+1}], {extra_mask}")
        a(f"""
        s_mov_b64 exec, s[{m}:{m+1}]
        ds_add_rtn_u32 v{vRk+i}, v{vN4+i}, v{vT3} offset:{HIST}
        s_mov_b64 exec, -1
        """)
    a(f"""
    v_mov_b32 v{vT3}, 1
    s_cmp_eq_u32 s{sR}, 0
    s_cbranch_scc0 K2_WAITR
    s_waitcnt vmcnt(2)
    s_branch K2_WAITD
    K2_WAITR:
    s_waitcnt vmcnt(0)
    K2_WAITD:
    """)
    st.stamp(a)
    for i in range(4):
        decode(vCand+i, i)
    a(f"""
    s_mov_b64 s[{sM+8}:{sM+9}], 0
    s_mov_b64 s[{sM+10}:{sM+11}], 0
    s_mov_b64 s[{sM+12}:{sM+13}], 0
    v_cmp_lt_u32 vcc, 0, v{vHdr}
    s_cbranch_vccz K2_NOHDR
    v_mov_b32 v{vT0}, {MAXC}
    ds_max_u32 v{vT0}, v{vHdr}
    """)
    for i in range(4, 7):
        a(f"v_cmp_lt_u32 s[{sSave}:{sSave+1}], {i-4}, v{vHdr}")
        decode(vHdr + (i-3), i, f"s[{sSave}:{sSave+1}]")
    a(f"""
    K2_NOHDR:
    s_waitcnt lgkmcnt(0)
    s_barrier
    """)
    st.stamp(a)
    a(f"""
    ds_read_b32 v{vPc}, v{vL4} offset:{HIST}
    v_mov_b32 v{vT3}, {MAXC}
    ds_read_b32 v{vT3}, v{vT3}
    s_waitcnt lgkmcnt(0)
    v_add_u32 v{vPc}, 3, v{vPc}
    v_and_b32 v{vPc}, -4, v{vPc}
    v_mov_b32 v{vStart}, v{vPc}
    v_readfirstlane_b32 s3, v{vT3}
    s_nop 0
    """)
    scan64(a, vStart, None)
    a(f"""
    s_nop 0
    v_readlane_b32 s{sCnt}, v{vStart}, 63
    v_sub_u32 v{vStart}, v{vStart}, v{vPc}
    """)
    for i in range(4):
        a(f"ds_bpermute_b32 v{vE+i}, v{vN4+i}, v{vStart}")
    a(f"""
    s_cmp_eq_u32 s{sR}, 0
    s_cbranch_scc0 K2_NRDONE
    s_min_u32 s3, s3, {CH}
    s_max_u32 s3, s3, 3
    s_add_u32 s3, s3, 12
    s_lshr_b32 s3, s3, 4
    s_add_u32 s{sNR}, s3, 1
    K2_NRDONE:
    """)
    def scatter(i):
        m = sM + 2*i
        a(f"""
        v_add_u32 v{vE+i}, v{vE+i}, v{vRk+i}
        v_and_b32 v{vT0}, 3, v{vRk+i}
        v_cmp_eq_u32 vcc, 0, v{vT0}
        v_lshlrev_b32 v{vT2}, 2, v{vE+i}
        v_lshlrev_b32 v{vT3}, 6, v{vN4+i}
        s_mov_b64 exec, s[{m}:{m+1}]
        ds_write_b32 v{vT2}, v{vSo+i} offset:{LIST}
        s_and_b64 exec, exec, vcc
        ds_write_b32 v{vE+i}, v{vT3} offset:{UNODE}
        s_mov_b64 exec, -1
        """)
    a("s_waitcnt lgkmcnt(0)")
    for i in range(4):
        scatter(i)
    a(f"""
    s_or_b64 s[{sSave}:{sSave+1}], s[{sM+8}:{sM+9}], s[{sM+10}:{sM+11}]
    s_or_b64 s[{sSave}:{sSave+1}], s[{sSave}:{sSave+1}], s[{sM+12}:{sM+13}]
    s_cbranch_scc0 K2_SC_DONE
    """)
    for i in range(4, 7):
        a(f"ds_bpermute_b32 v{vE+i}, v{vN4+i}, v{vStart}")
    a("s_waitcnt lgkmcnt(0)")
    for i in range(4, 7):
        scatter(i)
    a("K2_SC_DONE:")
    st.stamp(a)
    a(f"""
    s_cmp_eq_u32 s{sR}, 0
    s_cbranch_scc0 K2_NOWV
    v_lshrrev_b32 v{vT0}, 4, v0
    v_bfe_u32 v{vT1}, v{vT0}, 2, 1
    v_lshlrev_b32 v{vT1}, 6, v{vT1}
    v_lshrrev_b32 v{vT2}, 3, v{vT0}
    v_lshl_add_u32 v{vT1}, v{vT2}, 2, v{vT1}
    v_and_b32 v{vT0}, 3, v{vT0}
    v_add_u32 v{vT0}, v{vT0}, v{vT1}
    v_mul_u32_u24 v{vT0}, {WSTRIDE}, v{vT0}
    v_add_u32 v{vT0}, v{vT0}, v{vC16}
    v_add_u32 v{vT0}, {WV}, v{vT0}
    s_waitcnt vmcnt(0)
    ds_write_b128 v{vT0}, {vr(vWvl,4)}
    ds_write_b128 v{vT0}, {vr(vWvl+4,4)} offset:{32*WSTRIDE}
    K2_NOWV:
    s_waitcnt vmcnt(0) lgkmcnt(0)
    s_barrier
    """)
    st.stamp(a)
    a(f"""
    s_add_u32 s3, s{sCnt}, 31
    s_lshr_b32 s3, s3, 5
    s_lshr_b32 s{sQ}, s3, 4
    s_and_b32 s{sRem}, s3, 15
    s_cmp_lt_u32 s{sWave}, s{sRem}
    s_cselect_b32 s{sNH}, 1, 0
    s_add_u32 s{sHB}, s{sQ}, s{sNH}
    s_min_u32 s3, s{sRem}, s{sWave}
    s_mul_i32 s{sP}, s{sQ}, s{sWave}
    s_add_u32 s{sP}, s{sP}, s3
    s_cmp_eq_u32 s{sHB}, 0
    s_cbranch_scc1 K2_SIGMA
    v_lshrrev_b32 v{vT0}, 4, v{vLane}
    s_lshl_b32 s3, s{sHB}, 1
    v_mul_u32_u24 v{vT0}, s3, v{vT0}
    s_lshl_b32 s3, s{sP}, 3
    v_add_u32 v{vT0}, s3, v{vT0}
    v_lshlrev_b32 v{vLA}, 4, v{vT0}
    v_add_u32 v{vLA}, {LIST}, v{vLA}
    v_lshlrev_b32 v{vUA}, 2, v{vT0}
    v_add_u32 v{vUA}, {UNODE}, v{vUA}
    ds_read_b128 {vr(vE,4)}, v{vLA}
    ds_read_b128 {vr(vE+4,4)}, v{vLA} offset:16
    ds_read_b64 {vr(vQC,2)}, v{vUA}
    """)
    for i in range(8):
        a(f"v_mov_b32 v{vAcc+i}, 0")
    a("s_waitcnt lgkmcnt(0)")
    for u in range(8):
        a(f"v_add_u32 v{vE+u}, v{vE+u}, v{vC16}")
        a(f"buffer_load_dwordx4 {vr(vX+4*u,4)}, v{vE+u}, s[{sX}:{sX+3}], 0 offen")
    a(f"""
    v_add_u32 v{vT0}, v{vQC}, v{vQB}
    v_add_u32 v{vT1}, v{vQC+1}, v{vQB}
    ds_read_b128 {vr(vQ,4)}, v{vT0}
    ds_read_b128 {vr(vQ+4,4)}, v{vT1}
    v_mov_b32 v{vPrev}, v{vQC}
    K2_SIGMA:
    """)
    a(f"""
    s_add_u32 s3, s{sQ}, 1
    s_lshl_b32 s3, s3, 1
    v_cvt_f32_u32 v{vT0}, s3
    s_mul_i32 s3, s3, s{sRem}
    s_lshl_b32 s{sP}, s3, 2
    s_lshl_b32 s3, s{sQ}, 1
    v_cvt_f32_u32 v{vT1}, s3
    v_rcp_f32 v{vT0}, v{vT0}
    v_rcp_f32 v{vT1}, v{vT1}
    s_lshl_b32 s3, s{sRem}, 2
    """)
    for (dst, last) in ((vSf, False), (vSl, True)):
        if not last:
            a(f"v_lshrrev_b32 v{vT2}, 2, v{vStart}")
        else:
            a(f"""
            v_add_u32 v{vT2}, v{vStart}, v{vPc}
            v_lshrrev_b32 v{vT2}, 2, v{vT2}
            v_add_u32 v{vT2}, -1, v{vT2}
            """)
        a(f"""
        v_cmp_gt_u32 vcc, s{sP}, v{vT2}
        v_cvt_f32_u32 v{vT3}, v{vT2}
        v_add_f32 v{vT3}, 0.5, v{vT3}
        v_mul_f32 v{vT3}, v{vT3}, v{vT0}
        v_cvt_u32_f32 v{vT3}, v{vT3}
        v_subrev_u32 v{vT2}, s{sP}, v{vT2}
        v_cvt_f32_u32 v{vT2}, v{vT2}
        v_add_f32 v{vT2}, 0.5, v{vT2}
        v_mul_f32 v{vT2}, v{vT2}, v{vT1}
        v_cvt_u32_f32 v{vT2}, v{vT2}
        v_add_u32 v{vT2}, s3, v{vT2}
        v_cndmask_b32_e64 v{dst}, v{vT2}, v{vT3}, vcc
        """)
    a(f"""
    s_cmp_eq_u32 s{sHB}, 0
    s_cbranch_scc1 K2_MAIN_DONE
    """)
    flush_id = [0]
    def flush(prev, masked):
        fid = flush_id[0]; flush_id[0] += 1
        if masked is not None:
            a(f"""
            v_cmp_ne_u32 vcc, v{masked}, v{prev}
            s_cbranch_vccz K2_FL{fid}
            s_mov_b64 exec, vcc
            """)
        a(f"""
        v_lshl_add_u32 v{vT0}, v{prev}, 1, v{vPB}
        ds_write_b128 v{vT0}, {vr(vAcc,4)}
        ds_write_b128 v{vT0}, {vr(vAcc+4,4)} offset:256
        """)
        if masked is not None:
            for i in range(8):
                a(f"v_mov_b32 v{vAcc+i}, 0")
            a(f"""
            s_mov_b64 exec, -1
            K2_FL{fid}:
            """)
    def body(pref):
        a("s_waitcnt lgkmcnt(0)")
        if pref:
            a(f"""
            ds_read_b128 {vr(vE,4)}, v{vLA} offset:32
            ds_read_b128 {vr(vE+4,4)}, v{vLA} offset:48
            ds_read_b64 {vr(vQN,2)}, v{vUA} offset:8
            """)
        for half in range(2):
            a(f"s_waitcnt vmcnt({4 if half == 0 else 0})")
            for r in range(4):
                for u in range(4*half, 4*half+4):
                    if "nodots" in opt.exp: continue
                    if r == 0:
                        a(f"v_dot2_f32_bf16 v{vP+u}, v{vX+4*u}, v{vQ+4*half}, 0")
                    else:
                        a(f"v_dot2c_f32_bf16 v{vP+u}, v{vX+4*u+r}, v{vQ+4*half+r}")
        if pref:
            a("s_waitcnt lgkmcnt(0)")
            a(f"v_add_u32 v{vT0}, v{vQN}, v{vQB}")
            a(f"v_add_u32 v{vT1}, v{vQN+1}, v{vQB}")
            for u in range(8):
                a(f"v_add_u32 v{vE+u}, v{vE+u}, v{vC16}")
            a(f"ds_read_b128 {vr(vQ,4)}, v{vT0}")
            a(f"ds_read_b128 {vr(vQ+4,4)}, v{vT1}")
        else:
            a("s_nop 2")
        for j in range(4):
            a(f"v_add_f32_dpp v{vP+j}, v{vP+j}, v{vP+j} row_mirror row_mask:0xf bank_mask:0x3")
        for j in range(4):
            a(f"v_add_f32_dpp v{vP+j}, v{vP+j+4}, v{vP+j+4} row_mirror row_mask:0xf bank_mask:0xc")
        for j in range(2):
            a(f"v_add_f32_dpp v{vP+j}, v{vP+j}, v{vP+j} row_half_mirror row_mask:0xf bank_mask:0x5")
        a("s_nop 0")
        for j in range(2):
            a(f"v_add_f32_dpp v{vP+j}, v{vP+j+2}, v{vP+j+2} row_half_mirror row_mask:0xf bank_mask:0xa")
        a(f"""
        s_nop 0
        v_add_f32_dpp v{vP+2}, v{vP}, v{vP} quad_perm:[1,0,3,2] row_mask:0xf bank_mask:0xf
        v_add_f32_dpp v{vP+3}, v{vP+1}, v{vP+1} quad_perm:[1,0,3,2] row_mask:0xf bank_mask:0xf
        s_nop 0
        v_cndmask_b32_e64 v{vP}, v{vP+2}, v{vP+3}, s[{sOdd}:{sOdd+1}]
        s_nop 1
        v_add_f32_dpp v{vP}, v{vP}, v{vP} quad_perm:[2,3,0,1] row_mask:0xf bank_mask:0xf
        v_cvt_pk_bf16_f32 v{vP}, v{vP}, v{vP}
        v_and_b32 v{vP}, v{vHiM}, v{vP}
        v_mul_f32 v{vP}, 0x3db504f3, v{vP}
        v_cvt_pk_bf16_f32 v{vP}, v{vP}, v{vP}
        v_and_b32 v{vP}, v{vHiM}, v{vP}
        v_mul_f32 v{vP}, 0xbfb8aa3b, v{vP}
        v_exp_f32 v{vP}, v{vP}
        s_nop 0
        v_add_f32 v{vP}, 1.0, v{vP}
        v_rcp_f32 v{vP}, v{vP}
        s_nop 0
        v_cvt_pk_bf16_f32 v{vALo}, v{vP}, 0
        v_cvt_pk_bf16_f32 v{vAHi}, 0, v{vP}
        """)
        for half in range(2):
            if half == 0:
                flush(vPrev, vQC)
                a("s_nop 1")
            else:
                a("s_nop 2")
                flush(vQC, vQC+1)
            for u in range(4*half, 4*half+4):
                k = 4*(u >> 1) + (u & 1)
                for r in range(4):
                    if "noagg" in opt.exp: continue
                    if "aggnodpp" in opt.exp:
                        a(f"v_dot2c_f32_bf16 v{vAcc+2*r}, v{vALo}, v{vX+4*u+r}")
                        a(f"v_dot2c_f32_bf16 v{vAcc+2*r+1}, v{vAHi}, v{vX+4*u+r}")
                        continue
                    if "aggfma" in opt.exp:
                        a(f"v_fmac_f32 v{vAcc+2*r}, v{vALo}, v{vX+4*u+r}")
                        a(f"v_fmac_f32 v{vAcc+2*r+1}, v{vAHi}, v{vX+4*u+r}")
                        continue
                    a(f"v_dot2c_f32_bf16_dpp v{vAcc+2*r}, v{vALo}, v{vX+4*u+r} row_newbcast:{k} row_mask:0xf bank_mask:0xf")
                    a(f"v_dot2c_f32_bf16_dpp v{vAcc+2*r+1}, v{vAHi}, v{vX+4*u+r} row_newbcast:{k} row_mask:0xf bank_mask:0xf")
                if pref and "noload" not in opt.exp:
                    a(f"buffer_load_dwordx4 {vr(vX+4*u,4)}, v{vE+u}, s[{sX}:{sX+3}], 0 offen")
        a(f"v_mov_b32 v{vPrev}, v{vQC+1}")
        if pref:
            a(f"""
            v_mov_b32 v{vQC}, v{vQN}
            v_mov_b32 v{vQC+1}, v{vQN+1}
            v_add_u32 v{vLA}, 32, v{vLA}
            v_add_u32 v{vUA}, 8, v{vUA}
            """)
    a(f"""
    s_cmp_eq_u32 s{sHB}, 1
    s_cbranch_scc1 K2_LAST
    K2_LOOP:
    """)
    body(True)
    a(f"""
    s_sub_u32 s{sHB}, s{sHB}, 1
    s_cmp_gt_u32 s{sHB}, 1
    s_cbranch_scc1 K2_LOOP
    K2_LAST:
    """)
    body(False)
    a("s_nop 2")
    flush(vPrev, None)
    a(f"""
    K2_MAIN_DONE:
    """)
    st.stamp(a)
    a(f"""
    s_waitcnt lgkmcnt(0)
    s_barrier
    """)
    st.stamp(a)
    sN, sS0, sS1, sPcn = 59, 60, 61, 62
    vRd = vX
    vL8 = vT3
    a(f"v_lshlrev_b32 v{vL8}, 3, v{vLane}")
    def node_scalars(k):
        a(f"""
        s_add_u32 s{sN}, s{sWave}, {16*k}
        v_readlane_b32 s{sS0}, v{vSf}, s{sN}
        v_readlane_b32 s{sS1}, v{vSl}, s{sN}
        v_readlane_b32 s{sPcn}, v{vPc}, s{sN}
        """)
    def piece_reads(k, dstbase):
        for j in range(4):
            a(f"""
            s_add_u32 s3, s{sS0}, {j}
            s_cmp_le_u32 s3, s{sS1}
            s_cselect_b32 s{sP}, 1, 0
            s_cmp_lg_u32 s{sPcn}, 0
            s_cselect_b32 s{sP}, s{sP}, 0
            s_add_u32 s3, s3, s{sN}
            s_lshl_b32 s3, s3, 9
            s_add_u32 s3, s3, {PIECE}
            s_cmp_lg_u32 s{sP}, 0
            s_cselect_b32 s3, s3, {ZROW}
            v_add_u32 v{vT0}, s3, v{vL8}
            ds_read_b64 {vr(dstbase+2*j,2)}, v{vT0}
            """)
    for k in range(4):
        if k == 3:
            a(f"""
            s_cmp_lg_u32 s{sWave}, 0
            s_cbranch_scc1 K2_RD_DONE
            """)
        node_scalars(k)
        piece_reads(k, vRd + 8*k)
    a("K2_RD_DONE:")
    a("s_waitcnt lgkmcnt(0)")
    for k in range(4):
        if k == 3:
            a(f"""
            s_cmp_lg_u32 s{sWave}, 0
            s_cbranch_scc1 K2_AD_DONE
            """)
        for j in range(4):
            a(f"v_add_f32 v{vTot+2*k}, v{vTot+2*k}, v{vRd+8*k+2*j}")
            a(f"v_add_f32 v{vTot+2*k+1}, v{vTot+2*k+1}, v{vRd+8*k+2*j+1}")
    a("K2_AD_DONE:")
    for k in range(4):
        if k == 3:
            a(f"""
            s_cmp_lg_u32 s{sWave}, 0
            s_cbranch_scc1 K2_X_DONE
            """)
        node_scalars(k)
        a(f"""
        K2_XL{k}:
        s_add_u32 s{sS0}, s{sS0}, 4
        s_cmp_gt_u32 s{sS0}, s{sS1}
        s_cbranch_scc1 K2_XE{k}
        s_cmp_eq_u32 s{sPcn}, 0
        s_cbranch_scc1 K2_XE{k}
        """)
        piece_reads(k, vRd)
        a("s_waitcnt lgkmcnt(0)")
        for j in range(4):
            a(f"v_add_f32 v{vTot+2*k}, v{vTot+2*k}, v{vRd+2*j}")
            a(f"v_add_f32 v{vTot+2*k+1}, v{vTot+2*k+1}, v{vRd+2*j+1}")
        a(f"""
        s_branch K2_XL{k}
        K2_XE{k}:
        """)
    a(f"""
    K2_X_DONE:
    s_add_u32 s{sR}, s{sR}, 1
    s_cmp_ge_u32 s{sR}, s{sNR}
    s_cbranch_scc1 K2_EPI
    s_barrier
    """)
    a(f"""
    v_mov_b32 v{vCand}, -1
    v_mov_b32 v{vCand+1}, -1
    v_mov_b32 v{vCand+2}, -1
    v_mov_b32 v{vCand+3}, -1
    v_mov_b32 v{vHdr}, 0
    v_cmp_gt_u32 vcc, {C*4}, v0
    s_and_saveexec_b64 s[{sSave}:{sSave+1}], vcc
    s_cbranch_execz K2_R1
    v_lshrrev_b32 v{vT0}, 2, v0
    v_lshlrev_b32 v{vT0}, 13, v{vT0}
    v_add_u32 v{vT0}, {WS_OVF}, v{vT0}
    buffer_load_dword v{vT3}, v{vT0}, s[{sWS}:{sWS+3}], 0 offen
    s_lshl_b32 s3, s{sR}, 4
    s_sub_u32 s3, s3, 13
    v_and_b32 v{vT1}, 3, v0
    v_lshl_add_u32 v{vT1}, v{vT1}, 2, s3
    v_lshl_add_u32 v{vT0}, v{vT1}, 2, v{vT0}
    buffer_load_dwordx4 {vr(vSo,4)}, v{vT0}, s[{sWS}:{sWS+3}], 0 offen offset:4
    s_waitcnt vmcnt(0)
    """)
    for i in range(4):
        a(f"""
        v_add_u32 v{vT2}, {i}, v{vT1}
        v_cmp_lt_u32 vcc, v{vT2}, v{vT3}
        s_nop 1
        v_cndmask_b32_e64 v{vCand+i}, v{vCand+i}, v{vSo+i}, vcc
        """)
    a(f"""
    K2_R1:
    s_mov_b64 exec, s[{sSave}:{sSave+1}]
    s_branch K2_ROUND
    K2_EPI:
    """)
    st.stamp(a)
    vAcc16 = 16
    vA8 = 32
    vB8 = 64
    vWa, vBa, vRow = 8, 9, 10
    a(f"""
    s_mul_i32 s3, s{sWave}, {ABSTR}
    s_add_u32 s3, s3, {AGGB}
    v_add_u32 v11, s3, v{vL4}
    """)
    for k in range(4):
        if k == 3:
            a(f"""
            s_cmp_lg_u32 s{sWave}, 0
            s_cbranch_scc1 K2_WB_DONE
            """)
        a(f"v_cvt_pk_bf16_f32 v12, v{vTot+2*k}, v{vTot+2*k+1}")
        a(f"ds_write_b32 v11, v12 offset:{16*k*ABSTR}")
    a(f"""
    K2_WB_DONE:
    s_and_b32 s{sP}, s{sWave}, 3
    s_lshr_b32 s{sNH}, s{sWave}, 2
    s_cmp_ge_u32 s{sWave}, 8
    s_cbranch_scc1 K2_EB
    """)
    tile_a_addr(a, vWa, vLane, 11, 12, sP, WV)
    for ks in range(8):
        if ks == 4: a("s_waitcnt lgkmcnt(4)")
        a(f"ds_read_b64_tr_b16 {vr(vA8+4*ks,2)}, v{vWa} offset:{ks*16*WSTRIDE}")
        a(f"ds_read_b64_tr_b16 {vr(vA8+4*ks+2,2)}, v{vWa} offset:{ks*16*WSTRIDE + 4*WSTRIDE}")
    a(f"""
    v_and_b32 v{vRow}, 31, v{vLane}
    s_lshl_b32 s3, s{sNH}, 5
    v_add_u32 v{vRow}, s3, v{vRow}
    v_mul_u32_u24 v{vBa}, {ABSTR}, v{vRow}
    v_lshrrev_b32 v11, 5, v{vLane}
    v_lshl_add_u32 v{vBa}, v11, 4, v{vBa}
    K2_EB:
    s_waitcnt lgkmcnt(0)
    s_barrier
    s_cmp_ge_u32 s{sWave}, 8
    s_cbranch_scc1 K2_FIN
    """)
    vB8 = 64
    for ks in range(8):
        a(f"ds_read_b128 {vr(vB8+4*ks,4)}, v{vBa} offset:{AGGB + 32*ks}")
    for ks in range(8):
        a(f"s_waitcnt lgkmcnt({7-ks})")
        c = "0" if ks == 0 else vr(vAcc16,16)
        a(f"v_mfma_f32_32x32x16_bf16 {vr(vAcc16,16)}, {vr(vA8+4*ks,4)}, {vr(vB8+4*ks,4)}, {c}")
    a(f"""
    s_mul_i32 s3, s{sBeta}, {T*256}
    s_lshl_b32 s{sCnt}, s{sP}, 6
    s_add_u32 s3, s3, s{sCnt}
    v_lshlrev_b32 v12, 8, v{vRow}
    v_lshl_add_u32 v12, v11, 5, v12
    v_add_u32 v12, s3, v12
    v_cmp_gt_u32 vcc, {T}, v{vRow}
    s_nop 7
    s_nop 3
    """)
    for i in range(8):
        a(f"v_cvt_pk_bf16_f32 v{vA8+i}, v{vAcc16+2*i}, v{vAcc16+2*i+1}")
    a(f"""
    s_and_saveexec_b64 s[{sSave}:{sSave+1}], vcc
    s_cbranch_execz K2_ST_DONE
    buffer_store_dwordx4 {vr(vA8,4)}, v12, s[{sOUT}:{sOUT+3}], 0 offen
    buffer_store_dwordx4 {vr(vA8+4,4)}, v12, s[{sOUT}:{sOUT+3}], 0 offen offset:16
    K2_ST_DONE:
    s_mov_b64 exec, s[{sSave}:{sSave+1}]
    K2_FIN:
    """)
    st.stamp(a)
    if opt.stamps:
        a("s_waitcnt vmcnt(0)")
        st.stamp(a)
    st.flush(a, sWS, 11, sWave)
    a("""
    K2_END:
    s_endpgm
    """)
    return a.text(), LDS, 108

def kd(name, vgpr, sgpr=102):
    return f""".amdhsa_kernel {name}
  .amdhsa_next_free_vgpr {vgpr}
  .amdhsa_next_free_sgpr {sgpr}
  .amdhsa_accum_offset {(vgpr + 3)//4*4}
  .amdhsa_group_segment_fixed_size 0
  .amdhsa_kernarg_size 64
  .amdhsa_user_sgpr_count 2
  .amdhsa_user_sgpr_kernarg_segment_ptr 1
  .amdhsa_system_sgpr_workgroup_id_x 1
.end_amdhsa_kernel
"""

HEADER = """; Kernarg layout for this problem (64 bytes, ptrs only, base s[0:1]):
"""

def build(opt):
    k1, lds1, v1 = gen_k1(opt)
    k2, lds2, v2 = gen_k2(opt)
    lds1 = max(lds1, 83968)
    n1, n2 = NAME + "_k1_kernel", NAME + "_k2_kernel"
    out = HEADER
    for ch in opt.seq:
        if ch == "1": out += f"; @launch kernel={n1} grid=({NB},1,1) block=(512,1,1) lds={lds1}\n"
        if ch == "2": out += f"; @launch kernel={n2} grid=({NB},1,1) block=(1024,1,1) lds={lds2}\n"
    for i in range(opt.empty):
        out += f"; @launch kernel={NAME}_empty_kernel grid=({NB},1,1) block=(64,1,1) lds=0\n"
    out += '.amdgcn_target "amdgcn-amd-amdhsa--gfx950"\n.text\n'
    for n, k in ((n1, k1), (n2, k2)):
        out += f".globl {n}\n.p2align 8\n.type {n},@function\n" + k
    if opt.empty:
        n3 = NAME + "_empty_kernel"
        out += f".globl {n3}\n.p2align 8\n.type {n3},@function\n{n3}:\n  s_endpgm\n"
    out += '.section .rodata,"a"\n.p2align 6\n'
    out += kd(n1, v1) + ".p2align 6\n" + kd(n2, v2)
    if opt.empty:
        out += ".p2align 6\n" + kd(NAME + "_empty_kernel", 8, 16)
    return out

def parse(argv=None):
    p = argparse.ArgumentParser()
    p.add_argument("-o", default="cdna_kernels/" + NAME + ".s")
    p.add_argument("--stamps", action="store_true")
    p.add_argument("--prefetch", type=int, default=0)
    p.add_argument("--empty", type=int, default=0)
    p.add_argument("--seq", default="12")
    p.add_argument("--exp", default="")
    p.add_argument("--cellst", default="")
    p.add_argument("--qst", default="")
    return p.parse_args(argv)

if __name__ == "__main__":
    o = parse()
    open(o.o, "w").write(build(o))
    print("wrote", o.o)
```

```python
import sys, argparse
from gen import A, vr, Stamps, scan64, kd, HEADER, NAME

N, E, D = 12500, 400000, 128
T = 49
NB = 256
CH = 1564
C = 256
XBYTES = N * 256
EBYTES = E * 4
WS_NONCE = 0
WS_FLAGS = 0x8000
WS_SUMM = 0x4000
WS_HDR = 0x10000
WS_CELLS = 0x100000
CELLROW = 16384
WS_OVF = 0x500000
OVF_STRIDE = 8192
WS_USED = WS_OVF + 256 * OVF_STRIDE
WS_STAMP = 0x1000000
OOB = 0x40000000
DUMMY = 49

def srd_tail(a, d, size):
    a(f"s_mov_b32 s{d+2}, {size}")
    a(f"s_mov_b32 s{d+3}, 0x00020000")

def tile_a_addr(a, vdst, vlane, t0, t1, sP, wbase):
    a(f"""
    v_bfe_u32 v{t0}, v{vlane}, 2, 2
    v_lshrrev_b32 v{t1}, 5, v{vlane}
    v_lshl_add_u32 v{vdst}, v{t1}, 3, v{t0}
    v_lshlrev_b32 v{vdst}, 8, v{vdst}
    v_xor_b32 v{t0}, s{sP}, v{t0}
    v_lshl_add_u32 v{vdst}, v{t0}, 6, v{vdst}
    v_bfe_u32 v{t0}, v{vlane}, 4, 1
    v_bfe_u32 v{t1}, v{vlane}, 1, 1
    v_lshl_add_u32 v{t0}, v{t0}, 1, v{t1}
    v_and_b32 v{t1}, 1, v{vlane}
    v_lshl_add_u32 v{t0}, v{t1}, 2, v{t0}
    v_lshl_add_u32 v{vdst}, v{t0}, 3, v{vdst}
    v_add_u32 v{vdst}, {wbase}, v{vdst}
    """)

def tile_b_addr(a, vdst, vrow, vlane, t0):
    a(f"""
    v_lshrrev_b32 v{t0}, 5, v{vlane}
    v_xor_b32 v{t0}, v{t0}, v{vrow}
    v_and_b32 v{t0}, 15, v{t0}
    v_lshlrev_b32 v{t0}, 4, v{t0}
    v_lshl_add_u32 v{vdst}, v{vrow}, 8, v{t0}
    """)

def gen_k(opt):
    a = A()
    HIST, MAXC, ZROW, TBL = 0, 256, 512, 1024
    NPC = TBL + 1024
    LIST = NPC + 256
    LISTW = 6144
    UNODE = LIST + LISTW * 4
    QS = UNODE + 1536 * 4
    AGGB = QS + 52 * 256
    PIECE = AGGB + 64 * 256
    XT = PIECE
    WQ = XT + 16384
    WV = PIECE + (DUMMY + 64) * 512
    LDS = WV + 32768
    assert WQ + 32768 <= WV
    st = Stamps(opt.stamps, 64, WS_STAMP + 0x40000, [int(x) for x in opt.keep.split(',')] if opt.keep else None)
    sX, sWQ, sWV, sOUT, sWS = 4, 8, 12, 16, 20
    sBeta, sWave, sR, sNR = 24, 25, 26, 27
    sOdd = 28
    sBeta24, sHB, sP, sNH, s196 = 30, 31, 32, 33, 34
    sM = 36
    sSave = 50
    sCnt, sQ, sRem, sT = 52, 53, 54, 55
    vC16, vPB, vLA, vUA, vPrev = 1, 2, 3, 4, 5
    vQP, vQC, vQN = 6, 8, 10
    vAl = (12, 14)
    vQB = 16
    vT0, vT1, vT2, vT3 = 17, 18, 19, 20
    vLane, vStart, vPc = 21, 22, 23
    vAcc, vP, vE, vQ = 24, 32, 40, 48
    vXA, vXB, vTot = 56, 88, 120
    vCand, vHdr, vSo, vN4, vRk = 56, 60, 64, 72, 80
    vCnt = 47
    vHdr2, vSo2, vN42, vRk2 = 88, 92, 96, 100
    sM2 = 56
    vWl = 6
    vWa, vBa, vRow, vQst = 12, 13, 14, 15
    HP = LDS
    OVC, JUNK = HP + 1024, HP + 1040
    LDS = HP + 1280
    STAGE = AGGB
    sSRC, sDST, sNonce, sPi = 56, 60, 35, 3
    vDst, vSrc, vEnt, vAdr, vRank, vNeg, vNon, vGo = 56, 58, 60, 62, 64, 68, 66, 67
    a(f"""
    {NAME}_kernel:
    s_cmp_ge_u32 s2, {NB}
    s_cbranch_scc1 K2_END
    s_load_dwordx2 s[{sWS}:{sWS+1}], s[0:1], 56
    s_load_dwordx2 s[{sDST}:{sDST+1}], s[0:1], 16
    s_load_dwordx2 s[{sSRC}:{sSRC+1}], s[0:1], 8
    s_load_dwordx2 s[{sX}:{sX+1}], s[0:1], 0
    s_load_dwordx2 s[{sWQ}:{sWQ+1}], s[0:1], 24
    s_load_dwordx2 s[{sWV}:{sWV+1}], s[0:1], 32
    s_load_dwordx2 s[{sOUT}:{sOUT+1}], s[0:1], 40
    """)
    st.stamp(a)
    srd_tail(a, sWS, WS_USED if not opt.stamps else 0x2000000)
    srd_tail(a, sDST, EBYTES); srd_tail(a, sSRC, EBYTES); srd_tail(a, sX, XBYTES); srd_tail(a, sWQ, 32768)
    a(f"""
    v_lshrrev_b32 v{vT0}, 6, v0
    s_mov_b32 s{sBeta}, s2
    s_mul_i32 s3, s2, {CH*4}
    v_readfirstlane_b32 s{sWave}, v{vT0}
    v_lshlrev_b32 v{vT2}, 3, v0
    v_add_u32 v{vT2}, s3, v{vT2}
    s_movk_i32 s{sT}, {CH//2}
    s_cmp_eq_u32 s2, {C-1}
    s_cselect_b32 s{sT}, {(E - (C-1)*CH)//2}, s{sT}
    v_mov_b32 v{vT3}, 0
    v_cmp_gt_u32 vcc, s{sT}, v0
    s_and_saveexec_b64 s[{sSave}:{sSave+1}], vcc
    s_waitcnt lgkmcnt(0)
    s_cbranch_execz K1_NOEDGE0
    buffer_load_dwordx2 {vr(vDst,2)}, v{vT2}, s[{sDST}:{sDST+3}], 0 offen
    buffer_load_dwordx2 {vr(vSrc,2)}, v{vT2}, s[{sSRC}:{sSRC+3}], 0 offen
    K1_NOEDGE0:
    s_mov_b64 exec, s[{sSave}:{sSave+1}]
    buffer_load_dword v{vNon}, v{vT3}, s[{sWS}:{sWS+3}], 0 offen sc1
    """)
    a(f"""
    v_and_b32 v{vLane}, 63, v0
    v_bfe_u32 v{vT0}, v0, 4, 2
    v_and_b32 v{vT1}, 15, v0
    v_lshlrev_b32 v{vC16}, 4, v{vT1}
    """)
    a(f"""
    v_mov_b32 v{vNeg}, -1
    v_mov_b32 v{vNeg+1}, -1
    v_mov_b32 v{vNeg+2}, -1
    v_mov_b32 v{vNeg+3}, -1
    v_lshlrev_b32 v{vT2}, 4, v0
    ds_write_b128 v{vT2}, {vr(vNeg,4)} offset:{STAGE}
    v_mov_b32 v{vT2}, 0
    v_lshlrev_b32 v{vT3}, 2, v0
    s_cmp_ge_u32 s{sWave}, 5
    s_cbranch_scc1 K1_NOZ0
    v_add_u32 v{vT3}, {HP}, v{vT3}
    ds_write_b32 v{vT3}, v{vT2}
    s_branch K1_NOZ1
    K1_NOZ0:
    s_sub_u32 s3, s{sWave}, 8
    s_cmp_ge_u32 s3, 4
    s_cbranch_scc1 K1_NOZ1
    v_add_u32 v{vT3}, {HIST - 2048}, v{vT3}
    ds_write_b32 v{vT3}, v{vT2}
    K1_NOZ1:
    s_mov_b32 s{sR}, 0
    s_mov_b32 s{sOdd}, 0xaaaaaaaa
    s_mov_b32 s{sOdd+1}, 0xaaaaaaaa
    s_movk_i32 s{s196}, {T*4}
    s_lshl_b32 s3, s{sWave}, 11
    s_add_u32 s3, s3, {PIECE}
    v_lshl_add_u32 v{vPB}, v{vT0}, 9, s3
    v_add_u32 v{vPB}, v{vPB}, v{vC16}
    s_and_b32 s{sPi}, s2, 7
    s_lshl_b32 s{sPi}, s{sPi}, 5
    s_lshr_b32 s{sT}, s2, 3
    s_add_u32 s{sPi}, s{sPi}, s{sT}
    s_mov_b32 s{sHB}, s{sPi}
    v_lshrrev_b32 v{vT2}, 2, v0
    v_lshlrev_b32 v{vGo}, 14, v{vT2}
    v_and_b32 v{vT2}, 3, v0
    v_lshl_add_u32 v{vGo}, v{vT2}, 4, v{vGo}
    v_mov_b32 v{vT3}, 1
    s_waitcnt lgkmcnt(0)
    s_barrier
    """)
    st.stamp(a)
    a(f"""
    v_bfe_u32 v{vT0}, v0, 4, 2
    v_and_b32 v{vT1}, 15, v0
    s_cmp_ge_u32 s{sWave}, 13
    s_cbranch_scc1 K2_L2
    s_lshl_b32 s3, s{sWave}, 2
    v_add_u32 v{vT2}, s3, v{vT0}
    v_xor_b32 v{vEnt}, v{vT2}, v{vT1}
    v_and_b32 v{vEnt}, 15, v{vEnt}
    v_lshlrev_b32 v{vEnt}, 4, v{vEnt}
    v_lshl_add_u32 v{vEnt}, v{vT2}, 8, v{vEnt}
    s_mul_i32 s3, s{sBeta}, {T*256}
    s_lshl_b32 s{sT}, s{sWave}, 10
    s_add_u32 s{sT}, s{sT}, {XT}
    s_mov_b32 m0, s{sT}
    s_nop 0
    buffer_load_dwordx4 v{vEnt}, s[{sX}:{sX+3}], s3 offen lds
    K2_L2:
    v_lshlrev_b32 v{vT2}, 2, v{vT0}
    v_xor_b32 v{vT2}, v{vT2}, v{vT1}
    v_lshlrev_b32 v{vT2}, 4, v{vT2}
    v_lshl_add_u32 v{vWl}, v{vT0}, 8, v{vT2}
    s_lshl_b32 s3, s{sWave}, 11
    s_add_u32 s{sT}, s3, {WQ}
    s_mov_b32 m0, s{sT}
    s_add_u32 s{sT}, s{sT}, 1024
    buffer_load_dwordx4 v{vWl}, s[{sWQ}:{sWQ+3}], s3 offen lds
    s_mov_b32 m0, s{sT}
    s_add_u32 s{sCnt}, s3, 1024
    buffer_load_dwordx4 v{vWl}, s[{sWQ}:{sWQ+3}], s{sCnt} offen lds
    """)
    if opt.prefetch:
        a(f"""
        s_cmp_eq_u32 s{sWave}, 14
        s_cbranch_scc0 K1_NOPF
        s_mul_i32 s3, s2, 12544
        v_lshlrev_b32 v{vT2}, 7, v{vLane}
        buffer_load_dword v{vNeg+4}, v{vT2}, s[{sX}:{sX+3}], s3 offen
        s_add_u32 s3, s3, 8192
        v_cmp_gt_u32 vcc, 34, v{vLane}
        v_mov_b32 v{vEnt}, {OOB}
        s_nop 0
        v_cndmask_b32_e64 v{vT2}, v{vEnt}, v{vT2}, vcc
        buffer_load_dword v{vNeg+4}, v{vT2}, s[{sX}:{sX+3}], s3 offen
        K1_NOPF:
        """)
    sPiK = sHB
    srd_tail(a, sWV, 32768); srd_tail(a, sOUT, XBYTES)
    for i in range(8):
        a(f"v_mov_b32 v{vTot+i}, 0")
    a(f"""
    v_bfe_u32 v{vT2}, v{vLane}, 2, 1
    v_mul_u32_u24 v{vT2}, 12, v{vT2}
    v_and_b32 v{vT0}, 3, v{vLane}
    v_or_b32 v{vT2}, v{vT2}, v{vT0}
    v_lshlrev_b32 v{vUA}, 8, v{vLane}
    v_lshl_or_b32 v{vUA}, v{vT2}, 4, v{vUA}
    """)
    a(f"""
    s_and_b32 s{sP}, s{sWave}, 3
    s_bfe_u32 s{sNH}, s{sWave}, 0x10002
    s_cmp_ge_u32 s{sWave}, 8
    s_cbranch_scc1 K2_NOQA
    """)
    tile_a_addr(a, vWa, vLane, vT2, vT0, sP, WQ)
    a(f"""
    v_and_b32 v{vRow}, 31, v{vLane}
    s_lshl_b32 s3, s{sNH}, 5
    v_add_u32 v{vRow}, s3, v{vRow}
    """)
    tile_b_addr(a, vBa, vRow, vLane, vT0)
    a(f"""
    v_bfe_u32 v{vT2}, v{vRow}, 2, 1
    v_mul_u32_u24 v{vT2}, 12, v{vT2}
    v_and_b32 v{vT0}, 3, v{vRow}
    v_or_b32 v{vT2}, v{vT2}, v{vT0}
    v_lshrrev_b32 v{vT0}, 5, v{vLane}
    s_lshl_b32 s3, s{sP}, 2
    v_lshl_add_u32 v{vT0}, v{vT0}, 1, s3
    v_xor_b32 v{vT2}, v{vT2}, v{vT0}
    v_lshlrev_b32 v{vT2}, 4, v{vT2}
    v_lshl_add_u32 v{vQst}, v{vRow}, 8, v{vT2}
    K2_NOQA:
    """)
    a(f"""
    s_movk_i32 s{sT}, {CH//2}
    s_cmp_eq_u32 s2, {C-1}
    s_cselect_b32 s{sT}, {(E - (C-1)*CH)//2}, s{sT}
    v_cmp_gt_u32 vcc, s{sT}, v0
    s_and_saveexec_b64 s[{sSave}:{sSave+1}], vcc
    s_cbranch_execz K1_EDGE1_DONE
    s_mov_b32 s{sT}, -{T}
    s_mov_b32 s{sCnt}, {STAGE}
    s_waitcnt vmcnt(4)
    """)
    st.stamp(a)
    for i in range(2):
        a(f"""
        v_mul_u32_u24 v{vT0}, 21400, v{vDst+i}
        v_lshrrev_b32 v{vT0}, 20, v{vT0}
        v_lshlrev_b32 v{vAdr+i}, 2, v{vT0}
        v_add_u32 v{vT2}, {HP}, v{vAdr+i}
        ds_add_rtn_u32 v{vRank+i}, v{vT2}, v{vT3}
        v_mad_i32_i24 v{vT1}, v{vT0}, s{sT}, v{vDst+i}
        v_lshl_or_b32 v{vEnt+i}, v{vSrc+i}, 8, v{vT1}
        v_lshl_or_b32 v{vEnt+i}, v{vT0}, 24, v{vEnt+i}
        v_lshl_add_u32 v{vAdr+i}, v{vAdr+i}, 4, s{sCnt}
        """)
    a(f"v_mov_b32 v{vT2}, {JUNK}")
    for i in range(2):
        a(f"""
        s_waitcnt lgkmcnt({1-i})
        v_cmp_gt_u32 s[{sM+2*i}:{sM+2*i+1}], 16, v{vRank+i}
        v_lshl_add_u32 v{vT0}, v{vRank+i}, 2, v{vAdr+i}
        s_nop 0
        v_cndmask_b32_e64 v{vT0}, v{vT2}, v{vT0}, s[{sM+2*i}:{sM+2*i+1}]
        ds_write_b32 v{vT0}, v{vEnt+i}
        """)
    a(f"""
    s_and_b64 s[{sM+4}:{sM+5}], s[{sM}:{sM+1}], s[{sM+2}:{sM+3}]
    s_andn2_b64 s[{sM+4}:{sM+5}], exec, s[{sM+4}:{sM+5}]
    s_cbranch_scc0 K1_EDGE1_DONE
    s_mov_b64 s[{sM+6}:{sM+7}], exec
    s_mul_i32 s{sT}, s{sPiK}, {OVF_STRIDE}
    s_add_u32 s{sT}, s{sT}, {WS_OVF + 4}
    s_lshl_b32 s{sCnt}, s{sPiK}, 5
    s_add_u32 s{sCnt}, s{sCnt}, {WS_HDR + 4}
    v_mov_b32 v{vT2}, {OVC}
    """)
    for i in range(2):
        a(f"""
        s_andn2_b64 exec, s[{sM+6}:{sM+7}], s[{sM+2*i}:{sM+2*i+1}]
        s_cbranch_execz K1_OV_{i}
        ds_add_rtn_u32 v{vT0}, v{vT2}, v{vT3}
        s_waitcnt lgkmcnt(0)
        v_cmp_gt_u32 vcc, 7, v{vT0}
        v_lshl_add_u32 v{vT1}, v{vT0}, 2, s{sT}
        v_lshl_add_u32 v{vT0}, v{vT0}, 2, s{sCnt}
        s_nop 0
        v_cndmask_b32_e64 v{vT0}, v{vT1}, v{vT0}, vcc
        buffer_store_dword v{vEnt+i}, v{vT0}, s[{sWS}:{sWS+3}], 0 offen sc1
        K1_OV_{i}:
        """)
    a(f"""
    K1_EDGE1_DONE:
    s_mov_b64 exec, s[{sSave}:{sSave+1}]
    v_lshlrev_b32 v{vT0}, 4, v0
    s_waitcnt lgkmcnt(0)
    s_barrier
    """)
    st.stamp(a)
    a(f"""
    ds_read_b128 {vr(vNeg,4)}, v{vT0} offset:{STAGE}
    s_lshl_b32 s3, s{sPiK}, 6
    s_add_u32 s3, s3, {WS_CELLS}
    s_waitcnt lgkmcnt(0)
    buffer_store_dwordx4 {vr(vNeg,4)}, v{vGo}, s[{sWS}:{sWS+3}], s3 offen sc1
    s_waitcnt vmcnt(1)
    v_readfirstlane_b32 s{sNonce}, v{vNon}
    s_barrier
    s_add_u32 s{sNonce}, s{sNonce}, 1
    s_cmp_eq_u32 s{sWave}, 15
    s_cbranch_scc0 K1_NOHDR
    v_mov_b32 v{vT3}, {OVC}
    ds_read_b32 v{vRank}, v{vT3}
    s_lshl_b32 s{sT}, s{sPiK}, 5
    s_add_u32 s{sT}, s{sT}, {WS_HDR}
    v_mov_b32 v{vT2}, s{sT}
    s_waitcnt lgkmcnt(0)
    s_mov_b64 exec, 1
    buffer_store_dword v{vRank}, v{vT2}, s[{sWS}:{sWS+3}], 0 offen sc1
    s_mov_b64 exec, -1
    K1_NOHDR:
    s_cmp_ge_u32 s{sWave}, 8
    s_cbranch_scc1 K2_NOQ
    """)
    vA8, vQAcc = vXB, vAcc
    Bq = [vE, vE+4, vQ, vQ+4]
    def a_reads(ks):
        a(f"ds_read_b64_tr_b16 {vr(vA8+4*ks,2)}, v{vWa} offset:{ks*4096}")
        a(f"ds_read_b64_tr_b16 {vr(vA8+4*ks+2,2)}, v{vWa} offset:{ks*4096 + 1024}")
    def b_read(ks):
        a(f"v_xor_b32 v{vT2}, {32*ks}, v{vBa}")
        a(f"ds_read_b128 {vr(Bq[ks & 3],4)}, v{vT2} offset:{XT}")
    def mfma(ks):
        c = "0" if ks == 0 else vr(vQAcc,16)
        a(f"v_mfma_f32_32x32x16_bf16 {vr(vQAcc,16)}, {vr(vA8+4*ks,4)}, {vr(Bq[ks & 3],4)}, {c}")
    for ks in range(4):
        a_reads(ks); b_read(ks)
    for ks in range(4):
        a("s_waitcnt lgkmcnt(9)")
        mfma(ks)
        a_reads(ks+4); b_read(ks+4)
    for ks in range(4, 8):
        a(f"s_waitcnt lgkmcnt({3*(7-ks)})")
        mfma(ks)
    a(f"""
    v_cmp_gt_u32 vcc, 52, v{vRow}
    v_xor_b32 v{vT2}, 16, v{vQst}
    s_nop 7
    s_nop 2
    """)
    for i in range(8):
        a(f"v_cvt_pk_bf16_f32 v{vA8+i}, v{vQAcc+2*i}, v{vQAcc+2*i+1}")
    a(f"""
    s_mov_b64 exec, vcc
    ds_write_b128 v{vQst}, {vr(vA8,4)} offset:{QS}
    ds_write_b128 v{vT2}, {vr(vA8+4,4)} offset:{QS}
    s_mov_b64 exec, -1
    K2_NOQ:
    s_waitcnt vmcnt(0) lgkmcnt(0)
    s_barrier
    """)
    st.stamp(a)
    a(f"""
    s_cmp_eq_u32 s{sWave}, 15
    s_cbranch_scc0 K1_NOFLAG
    s_lshl_b32 s3, s{sPiK}, 7
    s_add_u32 s3, s3, {WS_FLAGS}
    v_mov_b32 v{vT0}, s3
    v_mov_b32 v{vT1}, s{sNonce}
    s_mov_b64 exec, 1
    buffer_store_dword v{vT1}, v{vT0}, s[{sWS}:{sWS+3}], 0 offen sc1
    s_mov_b64 exec, -1
    K1_NOFLAG:
    s_lshl_b32 s3, s{sWave}, 11
    s_add_u32 s{sT}, s3, {WV}
    s_mov_b32 m0, s{sT}
    s_add_u32 s{sT}, s{sT}, 1024
    buffer_load_dwordx4 v{vWl}, s[{sWV}:{sWV+3}], s3 offen lds
    s_mov_b32 m0, s{sT}
    s_add_u32 s3, s3, 1024
    buffer_load_dwordx4 v{vWl}, s[{sWV}:{sWV+3}], s3 offen lds
    """)
    if opt.sync == 0:
        a(f"""
        s_lshr_b32 s3, s{sWave}, 2
        s_lshl_b32 s3, s3, 13
        s_add_u32 s3, s3, {WS_FLAGS}
        v_lshlrev_b32 v{vT0}, 7, v{vLane}
        s_mov_b32 s{sT}, {1 << 17}
        K1_POLL:
        buffer_load_dword v{vT1}, v{vT0}, s[{sWS}:{sWS+3}], s3 offen sc1
        s_waitcnt vmcnt(0)
        v_cmp_ne_u32 vcc, s{sNonce}, v{vT1}
        s_cbranch_vccz K1_POLLD
        s_sleep {opt.sleep}
        s_sub_u32 s{sT}, s{sT}, 1
        s_cmp_lg_u32 s{sT}, 0
        s_cbranch_scc1 K1_POLL
        """)
    elif opt.sync == 1:
        a(f"""
        s_cmp_ge_u32 s{sWave}, 4
        s_cbranch_scc1 K1_POLLB
        s_lshl_b32 s3, s{sWave}, 13
        s_add_u32 s3, s3, {WS_FLAGS}
        v_lshlrev_b32 v{vT0}, 7, v{vLane}
        s_mov_b32 s{sT}, {1 << 17}
        K1_POLL:
        buffer_load_dword v{vT1}, v{vT0}, s[{sWS}:{sWS+3}], s3 offen sc1
        s_waitcnt vmcnt(0)
        v_cmp_ne_u32 vcc, s{sNonce}, v{vT1}
        s_and_b64 exec, exec, vcc
        s_cbranch_execz K1_POLLE
        s_sleep {opt.sleep}
        s_sub_u32 s{sT}, s{sT}, 1
        s_cmp_lg_u32 s{sT}, 0
        s_cbranch_scc1 K1_POLL
        K1_POLLE:
        s_mov_b64 exec, -1
        K1_POLLB:
        s_barrier
        """)
    elif opt.sync == 2:
        a(f"""
        s_cmp_eq_u32 s{sWave}, 0
        s_cbranch_scc0 K1_POLLB
        s_cmp_ge_u32 s2, 8
        s_cbranch_scc1 K1_HOP2
        s_lshl_b32 s3, s2, 12
        s_add_u32 s3, s3, {WS_FLAGS}
        v_lshlrev_b32 v{vT0}, 7, v{vLane}
        s_mov_b32 s{sT}, {1 << 17}
        s_mov_b32 exec_lo, -1
        s_mov_b32 exec_hi, 0
        K1_POLL:
        buffer_load_dword v{vT1}, v{vT0}, s[{sWS}:{sWS+3}], s3 offen sc1
        s_waitcnt vmcnt(0)
        v_cmp_ne_u32 vcc, s{sNonce}, v{vT1}
        s_and_b64 exec, exec, vcc
        s_cbranch_execz K1_POLLE
        s_sub_u32 s{sT}, s{sT}, 1
        s_cmp_lg_u32 s{sT}, 0
        s_cbranch_scc1 K1_POLL
        K1_POLLE:
        s_mov_b64 exec, 1
        s_lshl_b32 s3, s2, 7
        s_add_u32 s3, s3, {WS_SUMM}
        v_mov_b32 v{vT0}, s3
        v_mov_b32 v{vT1}, s{sNonce}
        buffer_store_dword v{vT1}, v{vT0}, s[{sWS}:{sWS+3}], 0 offen sc1
        K1_HOP2:
        s_mov_b64 exec, 0xff
        v_lshlrev_b32 v{vT0}, 7, v{vLane}
        s_mov_b32 s3, {WS_SUMM}
        s_mov_b32 s{sT}, {1 << 17}
        K1_POLL2:
        buffer_load_dword v{vT1}, v{vT0}, s[{sWS}:{sWS+3}], s3 offen sc1
        s_waitcnt vmcnt(0)
        v_cmp_ne_u32 vcc, s{sNonce}, v{vT1}
        s_and_b64 exec, exec, vcc
        s_cbranch_execz K1_POLLE2
        s_sleep {opt.sleep}
        s_sub_u32 s{sT}, s{sT}, 1
        s_cmp_lg_u32 s{sT}, 0
        s_cbranch_scc1 K1_POLL2
        K1_POLLE2:
        s_mov_b64 exec, -1
        K1_POLLB:
        s_barrier
        """)
    a(f"""
    K1_POLLD:
    v_lshlrev_b32 v{vT0}, 4, v0
    s_lshl_b32 s3, s{sBeta}, 14
    s_add_u32 s3, s3, {WS_CELLS}
    buffer_load_dwordx4 {vr(vCand,4)}, v{vT0}, s[{sWS}:{sWS+3}], s3 offen sc1
    v_mov_b32 v{vHdr}, 0
    s_and_b32 s{sT}, s{sWave}, 3
    s_cmp_eq_u32 s{sT}, 0
    s_cbranch_scc0 K2_L1
    s_lshl_b32 s3, s{sWave}, 9
    s_add_u32 s3, s3, {WS_HDR}
    v_lshlrev_b32 v{vT0}, 5, v{vLane}
    buffer_load_dwordx4 {vr(vHdr,4)}, v{vT0}, s[{sWS}:{sWS+3}], s3 offen sc1
    buffer_load_dwordx4 {vr(vHdr2,4)}, v{vT0}, s[{sWS}:{sWS+3}], s3 offen offset:16 sc1
    K2_L1:
    v_mov_b32 v{vT3}, 1
    s_waitcnt vmcnt(0)
    """)
    st.stamp(a)
    def decode_valu(word, i):
        m = sM + 2*i
        a(f"""
        v_lshlrev_b32 v{vN4+i}, 2, v{word}
        v_and_b32 v{vN4+i}, 0xfc, v{vN4+i}
        v_cmp_gt_u32 s[{m}:{m+1}], s{s196}, v{vN4+i}
        v_and_b32 v{vSo+i}, 0x00ffff00, v{word}
        """)
    def decode_ds(i):
        m = sM + 2*i
        a(f"""
        s_mov_b64 exec, s[{m}:{m+1}]
        ds_add_rtn_u32 v{vRk+i}, v{vN4+i}, v{vT3} offset:{HIST}
        """)
    a("K2_DECODE:")
    for i in range(4):
        decode_valu(vCand+i, i)
    for i in range(4):
        decode_ds(i)
    a(f"""
    s_mov_b64 exec, -1
    s_mov_b64 s[{sM+8}:{sM+9}], 0
    s_and_b32 s{sT}, s{sWave}, 3
    s_cmp_eq_u32 s{sT}, 0
    s_cbranch_scc0 K2_NOHDR
    v_cmp_lt_u32 vcc, 0, v{vHdr}
    s_cbranch_vccz K2_NOHDR
    v_mov_b32 v{vT0}, {MAXC}
    ds_max_u32 v{vT0}, v{vHdr}
    """)
    for i in range(4, 7):
        w = vHdr + (i-3)
        a(f"""
        v_lshrrev_b32 v{vT0}, 24, v{w}
        v_cmp_eq_u32 s[{sSave}:{sSave+1}], s{sBeta}, v{vT0}
        v_cmp_lt_u32 vcc, {i-4}, v{vHdr}
        v_mov_b32 v{vT1}, -1
        s_and_b64 vcc, vcc, s[{sSave}:{sSave+1}]
        s_nop 1
        v_cndmask_b32_e64 v{w}, v{vT1}, v{w}, vcc
        """)
        decode_valu(w, i)
        decode_ds(i)
        a("s_mov_b64 exec, -1")
    a(f"""
    s_mov_b64 s[{sM2}:{sM2+1}], 0
    s_mov_b64 s[{sM2+2}:{sM2+3}], 0
    s_mov_b64 s[{sM2+4}:{sM2+5}], 0
    s_mov_b64 s[{sM2+6}:{sM2+7}], 0
    v_cmp_lt_u32 vcc, 3, v{vHdr}
    s_cbranch_vccz K2_HDRO
    """)
    for i in range(4):
        w, m = vHdr2 + i, sM2 + 2*i
        a(f"""
        v_lshrrev_b32 v{vT0}, 24, v{w}
        v_cmp_eq_u32 s[{sSave}:{sSave+1}], s{sBeta}, v{vT0}
        v_cmp_lt_u32 vcc, {3+i}, v{vHdr}
        v_mov_b32 v{vT1}, -1
        s_and_b64 vcc, vcc, s[{sSave}:{sSave+1}]
        s_nop 1
        v_cndmask_b32_e64 v{w}, v{vT1}, v{w}, vcc
        v_lshlrev_b32 v{vN42+i}, 2, v{w}
        v_and_b32 v{vN42+i}, 0xfc, v{vN42+i}
        v_cmp_gt_u32 s[{m}:{m+1}], s{s196}, v{vN42+i}
        v_and_b32 v{vSo2+i}, 0x00ffff00, v{w}
        s_mov_b64 exec, s[{m}:{m+1}]
        ds_add_rtn_u32 v{vRk2+i}, v{vN42+i}, v{vT3} offset:{HIST}
        s_mov_b64 exec, -1
        """)
    a(f"""
    K2_HDRO:
    s_or_b64 s[{sM+14}:{sM+15}], s[{sM+8}:{sM+9}], s[{sM+10}:{sM+11}]
    s_or_b64 s[{sM+14}:{sM+15}], s[{sM+14}:{sM+15}], s[{sM+12}:{sM+13}]
    s_or_b64 s[{sM+14}:{sM+15}], s[{sM+14}:{sM+15}], s[{sM2}:{sM2+1}]
    s_or_b64 s[{sM+14}:{sM+15}], s[{sM+14}:{sM+15}], s[{sM2+2}:{sM2+3}]
    s_or_b64 s[{sM+14}:{sM+15}], s[{sM+14}:{sM+15}], s[{sM2+4}:{sM2+5}]
    s_or_b64 s[{sM+14}:{sM+15}], s[{sM+14}:{sM+15}], s[{sM2+6}:{sM2+7}]
    s_branch K2_HDRD
    K2_NOHDR:
    s_mov_b64 s[{sM+14}:{sM+15}], 0
    s_mov_b64 s[{sM+8}:{sM+9}], 0
    s_mov_b64 s[{sM+10}:{sM+11}], 0
    s_mov_b64 s[{sM+12}:{sM+13}], 0
    s_mov_b64 s[{sM2}:{sM2+1}], 0
    s_mov_b64 s[{sM2+2}:{sM2+3}], 0
    s_mov_b64 s[{sM2+4}:{sM2+5}], 0
    s_mov_b64 s[{sM2+6}:{sM2+7}], 0
    K2_HDRD:
    s_waitcnt lgkmcnt(0)
    s_barrier
    """)
    st.stamp(a)
    a(f"""
    s_cmp_eq_u32 s2, 0
    s_cbranch_scc0 K2_NOEPOCH
    s_cmp_eq_u32 s{sWave}, 14
    s_cbranch_scc0 K2_NOEPOCH
    s_cmp_eq_u32 s{sR}, 0
    s_cbranch_scc0 K2_NOEPOCH
    v_mov_b32 v{vT0}, 0
    v_mov_b32 v{vT1}, s{sNonce}
    s_mov_b64 exec, 1
    buffer_store_dword v{vT1}, v{vT0}, s[{sWS}:{sWS+3}], 0 offen sc1
    s_mov_b64 exec, -1
    s_waitcnt vmcnt(0)
    K2_NOEPOCH:
    """)
    vCn = vCand
    vPos = vHdr
    def sort_phase(q, tag):
        a(f"v_lshlrev_b32 v{vT2}, 2, v{vLane}")
        a(f"ds_read_b32 v{vCn}, v{vT2} offset:{HIST}")
        if q:
            for ks in range(4): a_reads(ks)
            for ks in range(4): b_read(ks)
            a("s_waitcnt lgkmcnt(12)")
        else:
            a("s_waitcnt lgkmcnt(0)")
        a(f"""
        v_add_u32 v{vPc}, 3, v{vCn}
        v_and_b32 v{vPc}, -4, v{vPc}
        v_mov_b32 v{vStart}, v{vPc}
        s_lshl_b32 s{sT}, s{sWave}, 2
        s_nop 0
        """)
        steps = ["row_shr:1 row_mask:0xf bank_mask:0xf bound_ctrl:1", "row_shr:2 row_mask:0xf bank_mask:0xf bound_ctrl:1",
                 "row_shr:4 row_mask:0xf bank_mask:0xf bound_ctrl:1", "row_shr:8 row_mask:0xf bank_mask:0xf bound_ctrl:1",
                 "row_bcast:15 row_mask:0xa bank_mask:0xf", "row_bcast:31 row_mask:0xc bank_mask:0xf"]
        for i, stp in enumerate(steps):
            a(f"v_add_u32_dpp v{vStart}, v{vStart}, v{vStart} {stp}")
            if i == 5: break
            if q and i >= 1:
                ks = i - 1
                if ks == 0: a("s_waitcnt lgkmcnt(0)")
                mfma(ks)
                a("s_nop 0")
            else:
                a("s_nop 1")
        a(f"""
        v_cmp_lt_u32 vcc, s{sT}, v{vPc}
        v_readlane_b32 s{sCnt}, v{vStart}, 63
        v_sub_u32 v{vStart}, v{vStart}, v{vPc}
        """)
        for i in range(4):
            a(f"ds_bpermute_b32 v{vPos+i}, v{vN4+i}, v{vStart}")
        a(f"""
        v_add_u32 v{vT0}, s{sT}, v{vStart}
        s_mov_b64 exec, vcc
        ds_write_b32 v{vT0}, v{vUA} offset:{UNODE}
        s_mov_b64 exec, -1
        """)
        if q:
            for ks in range(4, 8): a_reads(ks)
            for ks in range(4, 8): b_read(ks)
        a(f"""
        v_cmp_lt_u32 vcc, 64, v{vPc}
        s_cbranch_vccz K2_UND{tag}
        K2_UN{tag}:
        s_add_u32 s{sT}, s{sT}, 64
        v_cmp_lt_u32 vcc, s{sT}, v{vPc}
        s_cbranch_vccz K2_UND{tag}
        v_add_u32 v{vT0}, s{sT}, v{vStart}
        s_mov_b64 exec, vcc
        ds_write_b32 v{vT0}, v{vUA} offset:{UNODE}
        s_mov_b64 exec, -1
        s_branch K2_UN{tag}
        K2_UND{tag}:
        """)
        if not q:
            a(f"""
            s_sub_u32 s{sT}, s{sWave}, 8
            s_cmp_gt_u32 s{sT}, 4
            s_cbranch_scc1 K2_NOPAD
            v_mov_b32 v{vT2}, {OOB}
            s_cmp_gt_u32 s{sT}, 2
            s_cbranch_scc1 K2_TAILPAD
            v_sub_u32 v{vT1}, v{vPc}, v{vCn}
            v_add_u32 v{vT0}, v{vStart}, v{vCn}
            v_cmp_lt_u32 vcc, s{sT}, v{vT1}
            v_add_u32 v{vT0}, s{sT}, v{vT0}
            v_lshlrev_b32 v{vT0}, 2, v{vT0}
            s_mov_b64 exec, vcc
            ds_write_b32 v{vT0}, v{vT2} offset:{LIST}
            s_mov_b64 exec, -1
            s_branch K2_NOPAD
            K2_TAILPAD:
            v_lshlrev_b32 v{vT1}, 2, v{vLane}
            s_cmp_eq_u32 s{sT}, 3
            s_cbranch_scc0 K2_TAILU
            s_lshl_b32 s{sT}, s{sCnt}, 2
            v_add_u32 v{vT0}, s{sT}, v{vT1}
            s_mov_b64 exec, 0xfffffff
            ds_write_b32 v{vT0}, v{vT2} offset:{LIST}
            s_mov_b64 exec, -1
            s_branch K2_NOPAD
            K2_TAILU:
            v_add_u32 v{vT0}, s{sCnt}, v{vT1}
            v_mov_b32 v{vT2}, {DUMMY*256 + 16*((DUMMY & 3) | (12*((DUMMY >> 2) & 1)))}
            s_mov_b64 exec, 0x7f
            ds_write_b32 v{vT0}, v{vT2} offset:{UNODE}
            s_mov_b64 exec, -1
            K2_NOPAD:
            """)
        a(f"""
        s_add_u32 s3, s{sCnt}, 31
        s_lshr_b32 s3, s3, 5
        s_lshr_b32 s{sQ}, s3, 4
        s_and_b32 s{sRem}, s3, 15
        s_cmp_lt_u32 s{sWave}, s{sRem}
        s_cselect_b32 s{sNH}, 1, 0
        s_add_u32 s{sHB}, s{sQ}, s{sNH}
        s_min_u32 s3, s{sRem}, s{sWave}
        s_mul_i32 s{sT}, s{sQ}, s{sWave}
        s_add_u32 s{sT}, s{sT}, s3
        v_lshrrev_b32 v{vT0}, 4, v{vLane}
        s_lshl_b32 s3, s{sHB}, 1
        v_mul_u32_u24 v{vT0}, s3, v{vT0}
        s_lshl_b32 s3, s{sT}, 3
        v_add_u32 v{vT0}, s3, v{vT0}
        v_lshlrev_b32 v{vLA}, 4, v{vT0}
        v_lshlrev_b32 v{vUA}, 2, v{vT0}
        """)
        if q:
            a("s_waitcnt lgkmcnt(0)")
            for ks in range(4, 8): mfma(ks)
        else:
            a("s_waitcnt lgkmcnt(0)")
        for i in range(4):
            a(f"v_add_lshl_u32 v{vPos+i}, v{vPos+i}, v{vRk+i}, 2")
        for i in range(4):
            a(f"s_mov_b64 exec, s[{sM+2*i}:{sM+2*i+1}]")
            a(f"ds_write_b32 v{vPos+i}, v{vSo+i} offset:{LIST}")
        a(f"""
        s_mov_b64 exec, -1
        s_cmp_eq_u64 s[{sM+14}:{sM+15}], 0
        s_cbranch_scc1 K2_SC_DONE{tag}
        """)
        for i in range(4, 7):
            a(f"ds_bpermute_b32 v{vPos+i-4}, v{vN4+i}, v{vStart}")
        a("s_waitcnt lgkmcnt(0)")
        for i in range(4, 7):
            a(f"""
            v_add_lshl_u32 v{vPos+i-4}, v{vPos+i-4}, v{vRk+i}, 2
            s_mov_b64 exec, s[{sM+2*i}:{sM+2*i+1}]
            ds_write_b32 v{vPos+i-4}, v{vSo+i} offset:{LIST}
            s_mov_b64 exec, -1
            """)
        a(f"""
        s_or_b64 s[{sSave}:{sSave+1}], s[{sM2}:{sM2+1}], s[{sM2+2}:{sM2+3}]
        s_or_b64 s[{sSave}:{sSave+1}], s[{sSave}:{sSave+1}], s[{sM2+4}:{sM2+5}]
        s_or_b64 s[{sSave}:{sSave+1}], s[{sSave}:{sSave+1}], s[{sM2+6}:{sM2+7}]
        s_cbranch_scc0 K2_SC_DONE{tag}
        """)
        for i in range(4):
            a(f"ds_bpermute_b32 v{vPos+i}, v{vN42+i}, v{vStart}")
        a("s_waitcnt lgkmcnt(0)")
        for i in range(4):
            a(f"""
            v_add_lshl_u32 v{vPos+i}, v{vPos+i}, v{vRk2+i}, 2
            s_mov_b64 exec, s[{sM2+2*i}:{sM2+2*i+1}]
            ds_write_b32 v{vPos+i}, v{vSo2+i} offset:{LIST}
            s_mov_b64 exec, -1
            """)
        a(f"K2_SC_DONE{tag}:")
        if q:
            a(f"""
            v_cmp_gt_u32 vcc, 52, v{vRow}
            v_xor_b32 v{vT3}, 16, v{vQst}
            s_nop 5
            """)
            for i in range(8):
                a(f"v_cvt_pk_bf16_f32 v{vA8+i}, v{vQAcc+2*i}, v{vQAcc+2*i+1}")
            a(f"""
            s_mov_b64 exec, vcc
            ds_write_b128 v{vQst}, {vr(vA8,4)} offset:{QS}
            ds_write_b128 v{vT3}, {vr(vA8+4,4)} offset:{QS}
            s_mov_b64 exec, -1
            """)
    sort_phase(False, "P")
    a("K2_SORT_DONE:")
    st.stamp(a)
    a(f"""
    s_waitcnt lgkmcnt(0)
    s_barrier
    """)
    st.stamp(a)
    if "cyc" in opt.exp: st.stamp(a, True)
    if opt.prio: a("s_setprio 3")
    a(f"""
    s_cmp_eq_u32 s{sHB}, 0
    s_cbranch_scc1 K2_NOMAIN
    ds_read_b128 {vr(vE,4)}, v{vLA} offset:{LIST}
    ds_read_b128 {vr(vE+4,4)}, v{vLA} offset:{LIST+16}
    ds_read_b64 {vr(vQC,2)}, v{vUA} offset:{UNODE}
    """)
    for i in range(8):
        a(f"v_mov_b32 v{vAcc+i}, 0")
    a("s_waitcnt lgkmcnt(1)")
    for u in range(8):
        a(f"v_add_u32 v{vE+u}, v{vE+u}, v{vC16}")
        a(f"buffer_load_dwordx4 {vr(vXA+4*u,4)}, v{vE+u}, s[{sX}:{sX+3}], 0 offen")
        if u == 0:
            a(f"""
            s_waitcnt lgkmcnt(0)
            v_xor_b32 v{vT0}, v{vQC}, v{vC16}
            v_xor_b32 v{vT1}, v{vQC+1}, v{vC16}
            ds_read_b128 {vr(vQ,4)}, v{vT0} offset:{QS}
            ds_read_b128 {vr(vQ+4,4)}, v{vT1} offset:{QS}
            v_mov_b32 v{vPrev}, v{vQC}
            """)
    if "bstamp" in opt.exp: st.stamp(a)
    wv_id = [0]
    def wv_dma():
        i = wv_id[0]; wv_id[0] += 1
        a(f"""
        s_cmp_eq_u32 s{sR}, 0
        s_cbranch_scc0 K2_NOWV{i}
        s_lshl_b32 s3, s{sWave}, 11
        s_add_u32 s{sT}, s3, {WV}
        s_mov_b32 m0, s{sT}
        s_add_u32 s{sT}, s{sT}, 1024
        buffer_load_dwordx4 v{vWl}, s[{sWV}:{sWV+3}], s3 offen lds
        s_mov_b32 m0, s{sT}
        s_add_u32 s3, s3, 1024
        buffer_load_dwordx4 v{vWl}, s[{sWV}:{sWV+3}], s3 offen lds
        K2_NOWV{i}:
        """)
    flush_id = [0]
    def flush(prev, masked):
        fid = flush_id[0]; flush_id[0] += 1
        t = ""
        if masked is not None:
            t += f"""
            v_cmp_ne_u32 vcc, v{masked}, v{prev}
            s_cbranch_vccz K2_FL{fid}
            s_mov_b64 exec, vcc
            """
        t += f"""
        v_and_b32 v{vT0}, 0xffffff00, v{prev}
        v_lshl_add_u32 v{vT0}, v{vT0}, 1, v{vPB}
        ds_write_b128 v{vT0}, {vr(vAcc,4)}
        ds_write_b128 v{vT0}, {vr(vAcc+4,4)} offset:256
        """
        if masked is not None:
            for i in range(8):
                t += f"v_mov_b32 v{vAcc+i}, 0\n"
            t += f"""
            s_mov_b64 exec, -1
            K2_FL{fid}:
            """
        return t
    def dots(X, waits):
        for half in range(2):
            a(waits[half])
            if "nodots" in opt.exp: continue
            for r in range(4):
                for u in range(4*half, 4*half+4):
                    if r == 0:
                        a(f"v_dot2_f32_bf16 v{vP+u}, v{X+4*u}, v{vQ+4*half}, 0")
                    else:
                        a(f"v_dot2c_f32_bf16 v{vP+u}, v{X+4*u+r}, v{vQ+4*half+r}")
    def chain(al):
        c = []
        for j in range(4):
            c.append(f"v_add_f32_dpp v{vP+j}, v{vP+j}, v{vP+j} row_mirror row_mask:0xf bank_mask:0x3")
        for j in range(4):
            c.append(f"v_add_f32_dpp v{vP+j}, v{vP+j+4}, v{vP+j+4} row_mirror row_mask:0xf bank_mask:0xc")
        for j in range(2):
            c.append(f"v_add_f32_dpp v{vP+j}, v{vP+j}, v{vP+j} row_half_mirror row_mask:0xf bank_mask:0x5")
        for j in range(2):
            c.append(f"v_add_f32_dpp v{vP+j}, v{vP+j+2}, v{vP+j+2} row_half_mirror row_mask:0xf bank_mask:0xa")
        c.append(f"v_add_f32_dpp v{vP+2}, v{vP}, v{vP} quad_perm:[1,0,3,2] row_mask:0xf bank_mask:0xf")
        c.append(f"v_add_f32_dpp v{vP+3}, v{vP+1}, v{vP+1} quad_perm:[1,0,3,2] row_mask:0xf bank_mask:0xf")
        c.append(f"v_cndmask_b32_e64 v{vP}, v{vP+2}, v{vP+3}, s[{sOdd}:{sOdd+1}]")
        c.append(f"v_add_f32_dpp v{vP}, v{vP}, v{vP} quad_perm:[2,3,0,1] row_mask:0xf bank_mask:0xf")
        if opt.mimic:
            c += [f"v_cvt_pk_bf16_f32 v{vP}, v{vP}, v{vP}", f"v_and_b32 v{vP}, 0xffff0000, v{vP}",
                  f"v_mul_f32 v{vP}, 0x3db504f3, v{vP}", f"v_cvt_pk_bf16_f32 v{vP}, v{vP}, v{vP}",
                  f"v_and_b32 v{vP}, 0xffff0000, v{vP}", f"v_mul_f32 v{vP}, 0xbfb8aa3b, v{vP}"]
        else:
            c.append(f"v_mul_f32 v{vP}, 0xbe0293ee, v{vP}")
        c += [f"v_exp_f32 v{vP}, v{vP}", f"v_add_f32 v{vP}, 1.0, v{vP}", f"v_rcp_f32 v{vP}, v{vP}",
              f"v_cvt_pk_bf16_f32 v{al}, v{vP}, 0", f"v_cvt_pk_bf16_f32 v{al+1}, 0, v{vP}"]
        return c
    def chain_alone(al):
        c = chain(al)
        gaps = {9: 1, 11: 1, 14: 2, 17 + (5 if opt.mimic else 0): 1, 19 + (5 if opt.mimic else 0): 1}
        for i, ins in enumerate(c):
            a(ins)
            if i in gaps: a(f"s_nop {gaps[i]-1}")
    def agg_stream(X, al, loads, Xdst, qp=None):
        out = []
        qp = vQP if qp is None else qp
        for half in range(2):
            if half == 0:
                out.append(('x', flush(vPrev, qp)))
            else:
                out.append(('x', "s_nop 1\n" + flush(qp, qp+1)))
            for u in range(4*half, 4*half+4):
                k = 4*(u >> 1) + (u & 1)
                for r in range(4):
                    if "noagg" in opt.exp:
                        out.append(('v', "s_nop 0")); out.append(('v', "s_nop 0")); continue
                    out.append(('v', f"v_dot2c_f32_bf16_dpp v{vAcc+2*r}, v{al}, v{X+4*u+r} row_newbcast:{k} row_mask:0xf bank_mask:0xf"))
                    out.append(('v', f"v_dot2c_f32_bf16_dpp v{vAcc+2*r+1}, v{al+1}, v{X+4*u+r} row_newbcast:{k} row_mask:0xf bank_mask:0xf"))
                if loads and "noload" not in opt.exp:
                    out.append(('x', f"buffer_load_dwordx4 {vr(Xdst+4*u,4)}, v{vE+u}, s[{sX}:{sX+3}], 0 offen"))
        return out
    def next_prep():
        a("s_waitcnt lgkmcnt(0)")
        a(f"v_xor_b32 v{vT0}, v{vQN}, v{vC16}")
        a(f"v_xor_b32 v{vT1}, v{vQN+1}, v{vC16}")
    def rotate(nxt):
        a(f"v_mov_b32 v{vQP}, v{vQC}")
        a(f"v_mov_b32 v{vQP+1}, v{vQC+1}")
        if nxt:
            a(f"v_mov_b32 v{vQC}, v{vQN}")
            a(f"v_mov_b32 v{vQC+1}, v{vQN+1}")
            a(f"v_add_u32 v{vLA}, 32, v{vLA}")
            a(f"v_add_u32 v{vUA}, 8, v{vUA}")
    def mid(cur, prev, al_cur, al_prev, nxt):
        a("s_waitcnt lgkmcnt(0)")
        if nxt:
            a(f"""
            ds_read_b128 {vr(vE,4)}, v{vLA} offset:{LIST+32}
            ds_read_b128 {vr(vE+4,4)}, v{vLA} offset:{LIST+48}
            ds_read_b64 {vr(vQN,2)}, v{vUA} offset:{UNODE+8}
            """)
        dots(cur, ("s_waitcnt vmcnt(4)", "s_waitcnt vmcnt(0)"))
        if nxt:
            next_prep()
            for u in range(8):
                a(f"v_add_u32 v{vE+u}, v{vE+u}, v{vC16}")
            a(f"ds_read_b128 {vr(vQ,4)}, v{vT0}")
            a(f"ds_read_b128 {vr(vQ+4,4)}, v{vT1}")
        else:
            a("s_nop 2")
        c = chain(al_cur)
        s_ = agg_stream(prev, al_prev, nxt, prev)
        nv = sum(1 for k, _ in s_ if k == 'v')
        ci, vi = 0, 0
        for k, t in s_:
            a(t)
            if k == 'v':
                vi += 1
                if ci < len(c) and vi >= (ci + 1) * nv // (len(c) + 1) and vi % 1 == 0:
                    a(c[ci]); ci += 1
        assert ci == len(c)
        a(f"v_mov_b32 v{vPrev}, v{vQP+1}")
        rotate(nxt)
    def final(X, al):
        for k, t in agg_stream(X, al, False, None):
            a(t)
        a("s_nop 2")
        a(flush(vQP+1, None))
        a("s_branch K2_MAIN_DONE")
    def roll_body(nxt):
        al = vAl[0]
        a("s_waitcnt lgkmcnt(0)")
        if nxt:
            a(f"""
            ds_read_b128 {vr(vE,4)}, v{vLA} offset:{LIST+32}
            ds_read_b128 {vr(vE+4,4)}, v{vLA} offset:{LIST+48}
            ds_read_b64 {vr(vQN,2)}, v{vUA} offset:{UNODE+8}
            """)
        dots(vXA, ("s_waitcnt vmcnt(4)", "s_waitcnt vmcnt(0)"))
        fill = []
        if nxt:
            next_prep()
            a(f"v_add_u32 v{vE}, v{vE}, v{vC16}")
            fill = [f"v_add_u32 v{vE+u}, v{vE+u}, v{vC16}" for u in range(1, 8)]
        else:
            a("s_nop 2")
        c = chain(al)
        gaps = {11: 1, 14: 2, 17 + (5 if opt.mimic else 0): 1, 19 + (5 if opt.mimic else 0): 1}
        for i, ins in enumerate(c):
            a(ins)
            if i == 3 and nxt:
                a(f"ds_read_b128 {vr(vQ,4)}, v{vT0} offset:{QS}")
                a(f"ds_read_b128 {vr(vQ+4,4)}, v{vT1} offset:{QS}")
            for _ in range(gaps.get(i, 0)):
                a(fill.pop(0) if fill else "s_nop 0")
        while fill: a(fill.pop(0))
        a("s_nop 0")
        for k, t in agg_stream(vXA, al, nxt, vXA, vQC):
            a(t)
        a(f"v_mov_b32 v{vPrev}, v{vQC+1}")
        if nxt:
            a(f"v_mov_b32 v{vQC}, v{vQN}")
            a(f"v_mov_b32 v{vQC+1}, v{vQN+1}")
            a(f"v_add_u32 v{vLA}, 32, v{vLA}")
            a(f"v_add_u32 v{vUA}, 8, v{vUA}")
    if True:
        a(f"""
        s_cmp_eq_u32 s{sHB}, 1
        s_cbranch_scc1 K2_LAST
        K2_LOOP:
        """)
        if opt.prio:
            a(f"""
            s_cmp_ge_u32 s{sHB}, 4
            s_cbranch_scc1 K2_PR0
            s_setprio 2
            s_cmp_eq_u32 s{sHB}, 3
            s_cbranch_scc1 K2_PR0
            s_setprio 1
            K2_PR0:
            """)
        roll_body(True)
        a(f"""
        s_sub_u32 s{sHB}, s{sHB}, 1
        s_cmp_gt_u32 s{sHB}, 1
        s_cbranch_scc1 K2_LOOP
        K2_LAST:
        """)
        if opt.prio: a("s_setprio 0")
        roll_body(False)
        a("s_nop 2")
        a(flush(vPrev, None))
    a("s_branch K2_MAIN_DONE")
    a("K2_NOMAIN:")
    a("K2_MAIN_DONE:")
    if opt.prio: a("s_setprio 0")
    if "cyc" in opt.exp: st.stamp(a, True)
    st.stamp(a)
    a(f"""
    s_cmp_eq_u32 s{sR}, 0
    s_cbranch_scc0 K2_NRDONE
    v_mov_b32 v{vT3}, {MAXC}
    ds_read_b32 v{vT3}, v{vT3}
    s_waitcnt lgkmcnt(0)
    v_readfirstlane_b32 s3, v{vT3}
    s_nop 3
    s_min_u32 s3, s3, {CH}
    s_max_u32 s3, s3, 7
    s_add_u32 s3, s3, 8
    s_lshr_b32 s3, s3, 4
    s_add_u32 s{sNR}, s3, 1
    K2_NRDONE:
    """)
    vSf, vSl = vE, vE+1
    a(f"""
    s_cmp_eq_u32 s{sWave}, 15
    s_cbranch_scc0 K2_NOTBL
    s_add_u32 s3, s{sQ}, 1
    s_lshl_b32 s3, s3, 1
    v_cvt_f32_u32 v{vT0}, s3
    s_mul_i32 s3, s3, s{sRem}
    s_lshl_b32 s{sP}, s3, 2
    s_lshl_b32 s3, s{sQ}, 1
    v_cvt_f32_u32 v{vT1}, s3
    v_rcp_f32 v{vT0}, v{vT0}
    v_rcp_f32 v{vT1}, v{vT1}
    s_lshl_b32 s3, s{sRem}, 2
    """)
    for (dst, last) in ((vSf, False), (vSl, True)):
        if not last:
            a(f"v_lshrrev_b32 v{vT2}, 2, v{vStart}")
        else:
            a(f"""
            v_add_u32 v{vT2}, v{vStart}, v{vPc}
            v_lshrrev_b32 v{vT2}, 2, v{vT2}
            v_add_u32 v{vT2}, -1, v{vT2}
            """)
        a(f"""
        v_cmp_gt_u32 vcc, s{sP}, v{vT2}
        v_cvt_f32_u32 v{vT3}, v{vT2}
        v_add_f32 v{vT3}, 0.5, v{vT3}
        v_mul_f32 v{vT3}, v{vT3}, v{vT0}
        v_cvt_u32_f32 v{vT3}, v{vT3}
        v_subrev_u32 v{vT2}, s{sP}, v{vT2}
        v_cvt_f32_u32 v{vT2}, v{vT2}
        v_add_f32 v{vT2}, 0.5, v{vT2}
        v_mul_f32 v{vT2}, v{vT2}, v{vT1}
        v_cvt_u32_f32 v{vT2}, v{vT2}
        v_add_u32 v{vT2}, s3, v{vT2}
        v_cndmask_b32_e64 v{dst}, v{vT2}, v{vT3}, vcc
        """)
    a(f"""
    v_sub_u32 v{vT0}, v{vSl}, v{vSf}
    v_add_u32 v{vT0}, 1, v{vT0}
    v_cmp_lt_u32 vcc, 0, v{vPc}
    v_add_u32 v{vT1}, v{vSf}, v{vLane}
    v_lshlrev_b32 v{vT1}, 9, v{vT1}
    v_cndmask_b32_e64 v{vT0}, 0, v{vT0}, vcc
    v_add_u32 v{vT1}, {PIECE}, v{vT1}
    v_lshlrev_b32 v{vT3}, 2, v{vLane}
    v_mov_b32 v{vT2}, {ZROW}
    ds_write_b32 v{vT3}, v{vT0} offset:{NPC}
    """)
    for j in range(4):
        a(f"""
        v_cmp_lt_u32 vcc, {j}, v{vT0}
        v_add_u32 v{vT3}, {512*j}, v{vT1}
        s_nop 0
        v_cndmask_b32_e64 v{vE+4+j}, v{vT2}, v{vT3}, vcc
        """)
    a(f"""
    v_lshlrev_b32 v{vT0}, 4, v{vLane}
    ds_write_b128 v{vT0}, {vr(vE+4,4)} offset:{TBL}
    K2_NOTBL:
    """)
    vA8 = vXB
    a(f"""
    s_add_u32 s3, s{sR}, 1
    s_cmp_ge_u32 s3, s{sNR}
    s_cselect_b32 s{sT}, 8, 0
    s_cmp_ge_u32 s{sWave}, s{sT}
    s_cbranch_scc1 K2_NOAA
    s_and_b32 s{sP}, s{sWave}, 3
    s_lshr_b32 s{sNH}, s{sWave}, 2
    """)
    tile_a_addr(a, vWa, vLane, vT2, vT3, sP, WV)
    for ks in range(8):
        if ks == 6: a("s_waitcnt lgkmcnt(4)")
        a(f"ds_read_b64_tr_b16 {vr(vA8+4*ks,2)}, v{vWa} offset:{ks*4096}")
        a(f"ds_read_b64_tr_b16 {vr(vA8+4*ks+2,2)}, v{vWa} offset:{ks*4096 + 1024}")
    a(f"""
    v_and_b32 v{vRow}, 31, v{vLane}
    s_lshl_b32 s3, s{sNH}, 5
    v_add_u32 v{vRow}, s3, v{vRow}
    """)
    tile_b_addr(a, vBa, vRow, vLane, vT3)
    a(f"""
    K2_NOAA:
    s_waitcnt lgkmcnt(0)
    s_barrier
    """)
    st.stamp(a)
    vB = vE
    vRd = vXA
    vNp = vT3
    a(f"""
    s_cmp_ge_u32 s{sWave}, 13
    s_cbranch_scc1 K2_RED_DONE
    v_lshrrev_b32 v{vT0}, 4, v{vLane}
    s_lshl_b32 s3, s{sWave}, 2
    v_add_u32 v{vT0}, s3, v{vT0}
    v_lshlrev_b32 v{vT1}, 4, v{vT0}
    v_lshlrev_b32 v{vT2}, 2, v{vT0}
    ds_read_b128 {vr(vB,4)}, v{vT1} offset:{TBL}
    ds_read_b32 v{vNp}, v{vT2} offset:{NPC}
    s_waitcnt lgkmcnt(0)
    """)
    for j in range(3):
        a(f"""
        v_add_u32 v{vB+j}, v{vB+j}, v{vC16}
        ds_read_b128 {vr(vRd+8*j,4)}, v{vB+j}
        ds_read_b128 {vr(vRd+8*j+4,4)}, v{vB+j} offset:256
        """)
    for j in range(3):
        a(f"s_waitcnt lgkmcnt({4-2*j})")
        for i in range(8):
            a(f"v_add_f32 v{vTot+i}, v{vTot+i}, v{vRd+8*j+i}")
    a(f"""
    s_mov_b32 s{sT}, 3
    K2_XL:
    v_cmp_lt_u32 vcc, s{sT}, v{vNp}
    s_cbranch_vccz K2_RED_DONE
    s_lshl_b32 s3, s{sT}, 9
    v_add_u32 v{vT0}, s3, v{vB}
    s_mov_b64 exec, vcc
    ds_read_b128 {vr(vRd,4)}, v{vT0}
    ds_read_b128 {vr(vRd+4,4)}, v{vT0} offset:256
    s_waitcnt lgkmcnt(0)
    """)
    for i in range(8):
        a(f"v_add_f32 v{vTot+i}, v{vTot+i}, v{vRd+i}")
    a(f"""
    s_mov_b64 exec, -1
    s_add_u32 s{sT}, s{sT}, 1
    s_branch K2_XL
    K2_RED_DONE:
    s_add_u32 s{sR}, s{sR}, 1
    s_cmp_ge_u32 s{sR}, s{sNR}
    s_cbranch_scc1 K2_EPI
    s_barrier
    """)
    a(f"""
    s_cmp_ge_u32 s{sWave}, 4
    s_cbranch_scc1 K2_RZ
    v_mov_b32 v{vT2}, 0
    v_lshlrev_b32 v{vT3}, 2, v0
    ds_write_b32 v{vT3}, v{vT2} offset:{HIST}
    K2_RZ:
    v_mov_b32 v{vCand}, -1
    v_mov_b32 v{vCand+1}, -1
    v_mov_b32 v{vCand+2}, -1
    v_mov_b32 v{vCand+3}, -1
    v_mov_b32 v{vHdr}, 0
    v_lshrrev_b32 v{vT0}, 2, v0
    v_lshlrev_b32 v{vT2}, 5, v{vT0}
    v_add_u32 v{vT2}, {WS_HDR}, v{vT2}
    buffer_load_dword v{vT3}, v{vT2}, s[{sWS}:{sWS+3}], 0 offen sc1
    v_lshlrev_b32 v{vT0}, 13, v{vT0}
    v_add_u32 v{vT0}, {WS_OVF}, v{vT0}
    s_lshl_b32 s3, s{sR}, 4
    s_sub_u32 s3, s3, 9
    v_and_b32 v{vT1}, 3, v0
    v_lshl_add_u32 v{vT1}, v{vT1}, 2, s3
    v_lshl_add_u32 v{vT0}, v{vT1}, 2, v{vT0}
    buffer_load_dwordx4 {vr(vSo,4)}, v{vT0}, s[{sWS}:{sWS+3}], 0 offen offset:4 sc1
    s_waitcnt vmcnt(0)
    """)
    for i in range(4):
        a(f"""
        v_add_u32 v{vT2}, {i}, v{vT1}
        v_cmp_lt_u32 vcc, v{vT2}, v{vT3}
        v_lshrrev_b32 v{vT0}, 24, v{vSo+i}
        v_cmp_eq_u32 s[{sM}:{sM+1}], s{sBeta}, v{vT0}
        s_nop 0
        s_and_b64 vcc, vcc, s[{sM}:{sM+1}]
        s_nop 1
        v_cndmask_b32_e64 v{vCand+i}, v{vCand+i}, v{vSo+i}, vcc
        """)
    a(f"""
    v_bfe_u32 v{vT2}, v{vLane}, 2, 1
    v_mul_u32_u24 v{vT2}, 12, v{vT2}
    v_and_b32 v{vT3}, 3, v{vLane}
    v_or_b32 v{vT2}, v{vT2}, v{vT3}
    v_lshlrev_b32 v{vUA}, 8, v{vLane}
    v_lshl_or_b32 v{vUA}, v{vT2}, 4, v{vUA}
    v_mov_b32 v{vT3}, 1
    s_waitcnt lgkmcnt(0)
    s_barrier
    s_branch K2_DECODE
    K2_EPI:
    """)
    st.stamp(a)
    vAcc16, vB8 = 24, vXA
    a(f"""
    s_cmp_ge_u32 s{sWave}, 13
    s_cbranch_scc1 K2_WB_DONE
    v_lshrrev_b32 v{vT0}, 4, v{vLane}
    s_lshl_b32 s3, s{sWave}, 2
    v_add_u32 v{vT0}, s3, v{vT0}
    v_lshlrev_b32 v{vT1}, 4, v{vT0}
    v_xor_b32 v{vT1}, v{vT1}, v{vC16}
    v_and_b32 v{vT1}, 0xf0, v{vT1}
    v_lshl_add_u32 v{vT0}, v{vT0}, 8, v{vT1}
    """)
    for i in range(4):
        a(f"v_cvt_pk_bf16_f32 v{vP+i}, v{vTot+2*i}, v{vTot+2*i+1}")
    a(f"""
    ds_write_b128 v{vT0}, {vr(vP,4)} offset:{AGGB}
    K2_WB_DONE:
    s_cmp_ge_u32 s{sWave}, 8
    s_cbranch_scc1 K2_EB
    """)
    for ks in range(8):
        a(f"v_xor_b32 v{vE+ks}, {32*ks}, v{vBa}")
    a(f"""
    s_mul_i32 s3, s{sBeta}, {T*256}
    s_lshl_b32 s{sCnt}, s{sP}, 6
    s_add_u32 s3, s3, s{sCnt}
    v_lshrrev_b32 v{vT0}, 5, v{vLane}
    v_lshlrev_b32 v{vT1}, 8, v{vRow}
    v_lshl_add_u32 v{vT1}, v{vT0}, 5, v{vT1}
    v_add_u32 v{vT1}, s3, v{vT1}
    K2_EB:
    s_waitcnt lgkmcnt(0)
    s_barrier
    s_cmp_ge_u32 s{sWave}, 8
    s_cbranch_scc1 K2_FIN
    """)
    for ks in range(8):
        a(f"ds_read_b128 {vr(vB8+4*ks,4)}, v{vE+ks} offset:{AGGB}")
    a(f"v_cmp_gt_u32 vcc, {T}, v{vRow}")
    for ks in range(8):
        a(f"s_waitcnt lgkmcnt({7-ks})")
        c = "0" if ks == 0 else vr(vAcc16,16)
        a(f"v_mfma_f32_32x32x16_bf16 {vr(vAcc16,16)}, {vr(vA8+4*ks,4)}, {vr(vB8+4*ks,4)}, {c}")
    a("s_nop 7")
    a("s_nop 3")
    for i in range(8):
        a(f"v_cvt_pk_bf16_f32 v{vQ+i}, v{vAcc16+2*i}, v{vAcc16+2*i+1}")
    a(f"""
    s_and_saveexec_b64 s[{sSave}:{sSave+1}], vcc
    s_cbranch_execz K2_ST_DONE
    buffer_store_dwordx4 {vr(vQ,4)}, v{vT1}, s[{sOUT}:{sOUT+3}], 0 offen {opt.outst}
    buffer_store_dwordx4 {vr(vQ+4,4)}, v{vT1}, s[{sOUT}:{sOUT+3}], 0 offen offset:16 {opt.outst}
    K2_ST_DONE:
    s_mov_b64 exec, s[{sSave}:{sSave+1}]
    K2_FIN:
    """)
    st.stamp(a)
    if opt.stamps:
        a("s_waitcnt vmcnt(0)")
        st.stamp(a)
    st.flush(a, sWS, vT0, sWave)
    a("""
    K2_END:
    s_endpgm
    """)
    return a.text(), LDS, 128

def build(opt):
    k, lds, v = gen_k(opt)
    n = NAME + "_kernel"
    out = HEADER
    for _ in range(opt.rep):
        out += f"; @launch kernel={n} grid=({NB},1,1) block=(1024,1,1) lds={lds}\n" if opt.aslist or opt.rep > 1 else f"; @launch grid=({NB},1,1) block=(1024,1,1) lds={lds}\n"
    out += '.amdgcn_target "amdgcn-amd-amdhsa--gfx950"\n.text\n'
    out += f".globl {n}\n.p2align 8\n.type {n},@function\n" + k
    out += '.section .rodata,"a"\n.p2align 6\n' + kd(n, v)
    return out

def parse(argv=None):
    p = argparse.ArgumentParser()
    p.add_argument("-o", default="cdna_kernels/" + NAME + ".s")
    p.add_argument("--stamps", action="store_true")
    p.add_argument("--prefetch", type=int, default=1)
    p.add_argument("--mimic", type=int, default=0)
    p.add_argument("--prio", type=int, default=1)
    p.add_argument("--keep", default="")
    p.add_argument("--exp", default="")
    p.add_argument("--outst", default="")
    p.add_argument("--sleep", type=int, default=1)
    p.add_argument("--sync", type=int, default=1)
    p.add_argument("--rep", type=int, default=1)
    p.add_argument("--aslist", type=int, default=0)
    p.add_argument("--style", default="roll")
    return p.parse_args(argv)

if __name__ == "__main__":
    o = parse()
    open(o.o, "w").write(build(o))
    print("wrote", o.o)
```

```python
import sys, argparse
from gen import A, vr, Stamps, scan64, kd, HEADER, NAME

N, E, D = 12500, 400000, 128
T = 49
NB = 256
CH = 1564
C = 256
XBYTES = N * 256
EBYTES = E * 4
WS_NONCE = 0
WS_FLAGS = 0x8000
WS_SUMM = 0x4000
WS_HDR = 0x10000
WS_CELLS = 0x100000
CELLROW = 16384
WS_OVF = 0x500000
OVF_STRIDE = 8192
WS_USED = WS_OVF + 256 * OVF_STRIDE
WS_STAMP = 0x1000000
OOB = 0x40000000
DUMMY = 49

def srd_tail(a, d, size):
    a(f"s_mov_b32 s{d+2}, {size}")
    a(f"s_mov_b32 s{d+3}, 0x00020000")

def tile_a_addr(a, vdst, vlane, t0, t1, sP, wbase):
    a(f"""
    v_bfe_u32 v{t0}, v{vlane}, 2, 2
    v_lshrrev_b32 v{t1}, 5, v{vlane}
    v_lshl_add_u32 v{vdst}, v{t1}, 3, v{t0}
    v_lshlrev_b32 v{vdst}, 8, v{vdst}
    v_xor_b32 v{t0}, s{sP}, v{t0}
    v_lshl_add_u32 v{vdst}, v{t0}, 6, v{vdst}
    v_bfe_u32 v{t0}, v{vlane}, 4, 1
    v_bfe_u32 v{t1}, v{vlane}, 1, 1
    v_lshl_add_u32 v{t0}, v{t0}, 1, v{t1}
    v_and_b32 v{t1}, 1, v{vlane}
    v_lshl_add_u32 v{t0}, v{t1}, 2, v{t0}
    v_lshl_add_u32 v{vdst}, v{t0}, 3, v{vdst}
    v_add_u32 v{vdst}, {wbase}, v{vdst}
    """)

def tile_b_addr(a, vdst, vrow, vlane, t0):
    a(f"""
    v_lshrrev_b32 v{t0}, 5, v{vlane}
    v_xor_b32 v{t0}, v{t0}, v{vrow}
    v_and_b32 v{t0}, 15, v{t0}
    v_lshlrev_b32 v{t0}, 4, v{t0}
    v_lshl_add_u32 v{vdst}, v{vrow}, 8, v{t0}
    """)

def gen_k(opt):
    a = A()
    HIST, MAXC, ZROW, TBL = 0, 256, 512, 1024
    NPC = TBL + 1024
    LIST = NPC + 256
    LISTW = 6144
    UNODE = LIST + LISTW * 4
    QS = UNODE + 1536 * 4
    AGGB = QS + 52 * 256
    PIECE = AGGB + 64 * 256
    XT = PIECE
    WQ = XT + 16384
    WV = PIECE + (DUMMY + 64) * 512
    LDS = WV + 32768
    assert WQ + 32768 <= WV
    st = Stamps(opt.stamps, 64, WS_STAMP + 0x40000, [int(x) for x in opt.keep.split(',')] if opt.keep else None)
    sX, sWQ, sWV, sOUT, sWS = 4, 8, 12, 16, 20
    sBeta, sWave, sR, sNR = 24, 25, 26, 27
    sOdd = 28
    sBeta24, sHB, sP, sNH, s196 = 30, 31, 32, 33, 34
    sM = 36
    sSave = 50
    sCnt, sQ, sRem, sT = 52, 53, 54, 55
    vC16, vPB, vLA, vUA, vPrev = 1, 2, 3, 4, 5
    vQP, vQC, vQN = 6, 8, 10
    vAl = (12, 14)
    vQB = 16
    vT0, vT1, vT2, vT3 = 17, 18, 19, 20
    vLane, vStart, vPc = 21, 22, 23
    vAcc, vP, vE, vQ = 24, 32, 40, 48
    vXA, vXB, vTot = 56, 88, 120
    vCand, vHdr, vSo, vN4, vRk = 56, 60, 64, 72, 80
    vCnt = 47
    vHdr2, vSo2, vN42, vRk2 = 88, 92, 96, 100
    sM2 = 56
    vWl = 6
    vWa, vBa, vRow, vQst = 12, 13, 14, 15
    HP = LDS
    OVC, JUNK = HP + 1024, HP + 1040
    LDS = HP + 1280
    STAGE = AGGB
    sSRC, sDST, sNonce, sPi = 56, 60, 35, 3
    vDst, vSrc, vEnt, vAdr, vRank, vNeg, vNon, vGo = 56, 58, 60, 62, 64, 68, 66, 67
    a(f"""
    {NAME}_kernel:
    s_cmp_ge_u32 s2, {NB}
    s_cbranch_scc1 K2_END
    s_load_dwordx2 s[{sWS}:{sWS+1}], s[0:1], 56
    s_load_dwordx2 s[{sDST}:{sDST+1}], s[0:1], 16
    s_load_dwordx2 s[{sSRC}:{sSRC+1}], s[0:1], 8
    s_load_dwordx2 s[{sX}:{sX+1}], s[0:1], 0
    s_load_dwordx2 s[{sWQ}:{sWQ+1}], s[0:1], 24
    s_load_dwordx2 s[{sWV}:{sWV+1}], s[0:1], 32
    s_load_dwordx2 s[{sOUT}:{sOUT+1}], s[0:1], 40
    """)
    st.stamp(a)
    srd_tail(a, sWS, WS_USED if not opt.stamps else 0x2000000)
    srd_tail(a, sDST, EBYTES); srd_tail(a, sSRC, EBYTES); srd_tail(a, sX, XBYTES); srd_tail(a, sWQ, 32768)
    a(f"""
    v_lshrrev_b32 v{vT0}, 6, v0
    s_mov_b32 s{sBeta}, s2
    s_mul_i32 s3, s2, {CH*4}
    v_readfirstlane_b32 s{sWave}, v{vT0}
    v_lshlrev_b32 v{vT2}, 3, v0
    v_add_u32 v{vT2}, s3, v{vT2}
    s_movk_i32 s{sT}, {CH//2}
    s_cmp_eq_u32 s2, {C-1}
    s_cselect_b32 s{sT}, {(E - (C-1)*CH)//2}, s{sT}
    v_mov_b32 v{vT3}, 0
    v_cmp_gt_u32 vcc, s{sT}, v0
    s_and_saveexec_b64 s[{sSave}:{sSave+1}], vcc
    s_waitcnt lgkmcnt(0)
    s_cbranch_execz K1_NOEDGE0
    buffer_load_dwordx2 {vr(vDst,2)}, v{vT2}, s[{sDST}:{sDST+3}], 0 offen
    buffer_load_dwordx2 {vr(vSrc,2)}, v{vT2}, s[{sSRC}:{sSRC+3}], 0 offen
    K1_NOEDGE0:
    s_mov_b64 exec, s[{sSave}:{sSave+1}]
    buffer_load_dword v{vNon}, v{vT3}, s[{sWS}:{sWS+3}], 0 offen sc1
    """)
    a(f"""
    v_and_b32 v{vLane}, 63, v0
    v_bfe_u32 v{vT0}, v0, 4, 2
    v_and_b32 v{vT1}, 15, v0
    v_lshlrev_b32 v{vC16}, 4, v{vT1}
    """)
    a(f"""
    v_mov_b32 v{vNeg}, -1
    v_mov_b32 v{vNeg+1}, -1
    v_mov_b32 v{vNeg+2}, -1
    v_mov_b32 v{vNeg+3}, -1
    v_lshlrev_b32 v{vT2}, 4, v0
    ds_write_b128 v{vT2}, {vr(vNeg,4)} offset:{STAGE}
    v_mov_b32 v{vT2}, 0
    v_lshlrev_b32 v{vT3}, 2, v0
    s_cmp_ge_u32 s{sWave}, 5
    s_cbranch_scc1 K1_NOZ0
    v_add_u32 v{vT3}, {HP}, v{vT3}
    ds_write_b32 v{vT3}, v{vT2}
    s_branch K1_NOZ1
    K1_NOZ0:
    s_sub_u32 s3, s{sWave}, 8
    s_cmp_ge_u32 s3, 4
    s_cbranch_scc1 K1_NOZ1
    v_add_u32 v{vT3}, {HIST - 2048}, v{vT3}
    ds_write_b32 v{vT3}, v{vT2}
    K1_NOZ1:
    s_mov_b32 s{sR}, 0
    s_mov_b32 s{sOdd}, 0xaaaaaaaa
    s_mov_b32 s{sOdd+1}, 0xaaaaaaaa
    s_movk_i32 s{s196}, {T*4}
    s_lshl_b32 s3, s{sWave}, 11
    s_add_u32 s3, s3, {PIECE}
    v_lshl_add_u32 v{vPB}, v{vT0}, 9, s3
    v_add_u32 v{vPB}, v{vPB}, v{vC16}
    s_and_b32 s{sPi}, s2, 7
    s_lshl_b32 s{sPi}, s{sPi}, 5
    s_lshr_b32 s{sT}, s2, 3
    s_add_u32 s{sPi}, s{sPi}, s{sT}
    s_mov_b32 s{sHB}, s{sPi}
    v_lshrrev_b32 v{vT2}, 2, v0
    v_lshlrev_b32 v{vGo}, 14, v{vT2}
    v_and_b32 v{vT2}, 3, v0
    v_lshl_add_u32 v{vGo}, v{vT2}, 4, v{vGo}
    v_mov_b32 v{vT3}, 1
    s_waitcnt lgkmcnt(0)
    s_barrier
    """)
    st.stamp(a)
    def early_dma():
        a(f"""
        v_bfe_u32 v{vT0}, v0, 4, 2
        v_and_b32 v{vT1}, 15, v0
        v_lshlrev_b32 v{vT2}, 2, v{vT0}
        v_xor_b32 v{vT2}, v{vT2}, v{vT1}
        v_lshlrev_b32 v{vT2}, 4, v{vT2}
        v_lshl_add_u32 v{vWl}, v{vT0}, 8, v{vT2}
        s_cmp_lt_u32 s{sWave}, 8
        s_cbranch_scc1 K2_L2
        s_sub_u32 s{sQ}, s{sWave}, 8
        """)
        def xt_dma(jreg):
            a(f"""
            s_lshl_b32 s3, s{jreg}, 2
            v_add_u32 v{vT2}, s3, v{vT0}
            v_xor_b32 v{vEnt}, v{vT2}, v{vT1}
            v_and_b32 v{vEnt}, 15, v{vEnt}
            v_lshlrev_b32 v{vEnt}, 4, v{vEnt}
            v_lshl_add_u32 v{vEnt}, v{vT2}, 8, v{vEnt}
            s_mul_i32 s3, s{sBeta}, {T*256}
            s_lshl_b32 s{sT}, s{jreg}, 10
            s_add_u32 s{sT}, s{sT}, {XT}
            s_mov_b32 m0, s{sT}
            s_nop 0
            buffer_load_dwordx4 v{vEnt}, s[{sX}:{sX+3}], s3 offen lds
            """)
        xt_dma(sQ)
        a(f"""
        s_cmp_ge_u32 s{sWave}, 13
        s_cbranch_scc1 K2_L3
        s_mov_b32 s{sRem}, s{sWave}
        """)
        xt_dma(sRem)
        a(f"""
        K2_L3:
        s_lshl_b32 s3, s{sQ}, 12
        s_add_u32 s{sT}, s3, {WQ}
        """)
        for i in range(4):
            a(f"""
            s_mov_b32 m0, s{sT}
            s_add_u32 s{sT}, s{sT}, 1024
            buffer_load_dwordx4 v{vWl}, s[{sWQ}:{sWQ+3}], s3 offen lds
            s_add_u32 s3, s3, 1024
            """)
        a("K2_L2:")
    if not opt.dmalate: early_dma()
    else:
        a(f"""
        v_bfe_u32 v{vT0}, v0, 4, 2
        v_and_b32 v{vT1}, 15, v0
        v_lshlrev_b32 v{vT2}, 2, v{vT0}
        v_xor_b32 v{vT2}, v{vT2}, v{vT1}
        v_lshlrev_b32 v{vT2}, 4, v{vT2}
        v_lshl_add_u32 v{vWl}, v{vT0}, 8, v{vT2}
        """)
    if opt.prefetch:
        a(f"""
        s_cmp_eq_u32 s{sWave}, 14
        s_cbranch_scc0 K1_NOPF
        s_mul_i32 s3, s2, 12544
        v_lshlrev_b32 v{vT2}, 7, v{vLane}
        buffer_load_dword v{vNeg+4}, v{vT2}, s[{sX}:{sX+3}], s3 offen
        s_add_u32 s3, s3, 8192
        v_cmp_gt_u32 vcc, 34, v{vLane}
        v_mov_b32 v{vEnt}, {OOB}
        s_nop 0
        v_cndmask_b32_e64 v{vT2}, v{vEnt}, v{vT2}, vcc
        buffer_load_dword v{vNeg+4}, v{vT2}, s[{sX}:{sX+3}], s3 offen
        K1_NOPF:
        """)
    sPiK = sHB
    srd_tail(a, sWV, 32768); srd_tail(a, sOUT, XBYTES)
    for i in range(8):
        a(f"v_mov_b32 v{vTot+i}, 0")
    a(f"""
    v_bfe_u32 v{vT2}, v{vLane}, 2, 1
    v_mul_u32_u24 v{vT2}, 12, v{vT2}
    v_and_b32 v{vT0}, 3, v{vLane}
    v_or_b32 v{vT2}, v{vT2}, v{vT0}
    v_lshlrev_b32 v{vUA}, 8, v{vLane}
    v_lshl_or_b32 v{vUA}, v{vT2}, 4, v{vUA}
    """)
    a(f"""
    s_and_b32 s{sP}, s{sWave}, 3
    s_bfe_u32 s{sNH}, s{sWave}, 0x10002
    s_cmp_ge_u32 s{sWave}, 8
    s_cbranch_scc1 K2_NOQA
    """)
    tile_a_addr(a, vWa, vLane, vT2, vT0, sP, WQ)
    a(f"""
    v_and_b32 v{vRow}, 31, v{vLane}
    s_lshl_b32 s3, s{sNH}, 5
    v_add_u32 v{vRow}, s3, v{vRow}
    """)
    tile_b_addr(a, vBa, vRow, vLane, vT0)
    a(f"""
    v_bfe_u32 v{vT2}, v{vRow}, 2, 1
    v_mul_u32_u24 v{vT2}, 12, v{vT2}
    v_and_b32 v{vT0}, 3, v{vRow}
    v_or_b32 v{vT2}, v{vT2}, v{vT0}
    v_lshrrev_b32 v{vT0}, 5, v{vLane}
    s_lshl_b32 s3, s{sP}, 2
    v_lshl_add_u32 v{vT0}, v{vT0}, 1, s3
    v_xor_b32 v{vT2}, v{vT2}, v{vT0}
    v_lshlrev_b32 v{vT2}, 4, v{vT2}
    v_lshl_add_u32 v{vQst}, v{vRow}, 8, v{vT2}
    K2_NOQA:
    """)
    a(f"""
    s_movk_i32 s{sT}, {CH//2}
    s_cmp_eq_u32 s2, {C-1}
    s_cselect_b32 s{sT}, {(E - (C-1)*CH)//2}, s{sT}
    v_cmp_gt_u32 vcc, s{sT}, v0
    s_and_saveexec_b64 s[{sSave}:{sSave+1}], vcc
    s_cbranch_execz K1_EDGE1_DONE
    s_mov_b32 s{sT}, -{T}
    s_mov_b32 s{sCnt}, {STAGE}
    s_cmp_lt_u32 s{sWave}, 8
    s_cbranch_scc1 K1_EW0
    s_waitcnt vmcnt({1 if opt.dmalate else 7})
    s_branch K1_EW1
    K1_EW0:
    s_waitcnt vmcnt(1)
    K1_EW1:
    """)
    st.stamp(a)
    for i in range(2):
        a(f"""
        v_mul_u32_u24 v{vT0}, 21400, v{vDst+i}
        v_lshrrev_b32 v{vT0}, 20, v{vT0}
        v_lshlrev_b32 v{vAdr+i}, 2, v{vT0}
        v_add_u32 v{vT2}, {HP}, v{vAdr+i}
        ds_add_rtn_u32 v{vRank+i}, v{vT2}, v{vT3}
        v_mad_i32_i24 v{vT1}, v{vT0}, s{sT}, v{vDst+i}
        v_lshl_or_b32 v{vEnt+i}, v{vSrc+i}, 8, v{vT1}
        v_lshl_or_b32 v{vEnt+i}, v{vT0}, 24, v{vEnt+i}
        v_lshl_add_u32 v{vAdr+i}, v{vAdr+i}, 4, s{sCnt}
        """)
    a(f"v_mov_b32 v{vT2}, {JUNK}")
    for i in range(2):
        a(f"""
        s_waitcnt lgkmcnt({1-i})
        v_cmp_gt_u32 s[{sM+2*i}:{sM+2*i+1}], 16, v{vRank+i}
        v_lshl_add_u32 v{vT0}, v{vRank+i}, 2, v{vAdr+i}
        s_nop 0
        v_cndmask_b32_e64 v{vT0}, v{vT2}, v{vT0}, s[{sM+2*i}:{sM+2*i+1}]
        ds_write_b32 v{vT0}, v{vEnt+i}
        """)
    a(f"""
    s_and_b64 s[{sM+4}:{sM+5}], s[{sM}:{sM+1}], s[{sM+2}:{sM+3}]
    s_andn2_b64 s[{sM+4}:{sM+5}], exec, s[{sM+4}:{sM+5}]
    s_cbranch_scc0 K1_EDGE1_DONE
    s_mov_b64 s[{sM+6}:{sM+7}], exec
    v_mov_b32 v{vT2}, {OVC}
    """)
    for i in range(2):
        a(f"""
        s_andn2_b64 exec, s[{sM+6}:{sM+7}], s[{sM+2*i}:{sM+2*i+1}]
        s_cbranch_execz K1_OV_{i}
        ds_add_rtn_u32 v{vT0}, v{vT2}, v{vT3}
        s_waitcnt lgkmcnt(0)
        v_lshlrev_b32 v{vT0}, 2, v{vT0}
        ds_write_b32 v{vT0}, v{vEnt+i} offset:{LIST}
        K1_OV_{i}:
        """)
    a(f"""
    K1_EDGE1_DONE:
    s_mov_b64 exec, s[{sSave}:{sSave+1}]
    v_lshlrev_b32 v{vT0}, 4, v0
    s_waitcnt lgkmcnt(0)
    s_barrier
    """)
    st.stamp(a)
    a(f"""
    s_cmp_ge_u32 s{sWave}, 8
    s_cbranch_scc1 K1_NOCOPY
    ds_read_b128 {vr(vNeg,4)}, v{vT0} offset:{STAGE}
    ds_read_b128 {vr(vNeg+4,4)}, v{vT0} offset:{STAGE + 8192}
    s_lshl_b32 s3, s{sPiK}, 6
    s_add_u32 s3, s3, {WS_CELLS}
    s_add_u32 s{sT}, s3, {128*CELLROW}
    s_waitcnt lgkmcnt(1)
    buffer_store_dwordx4 {vr(vNeg,4)}, v{vGo}, s[{sWS}:{sWS+3}], s3 offen {opt.cst}
    s_waitcnt lgkmcnt(0)
    buffer_store_dwordx4 {vr(vNeg+4,4)}, v{vGo}, s[{sWS}:{sWS+3}], s{sT} offen {opt.cst}
    s_cmp_eq_u32 s{sWave}, 7
    s_cbranch_scc0 K1_DRAIN
    v_mov_b32 v{vT3}, {OVC}
    ds_read_b32 v{vRank}, v{vT3}
    s_lshl_b32 s{sT}, s{sPiK}, 5
    s_add_u32 s{sT}, s{sT}, {WS_HDR}
    v_mov_b32 v{vT2}, s{sT}
    s_waitcnt lgkmcnt(0)
    v_readfirstlane_b32 s{sCnt}, v{vRank}
    s_mov_b64 exec, 1
    buffer_store_dword v{vRank}, v{vT2}, s[{sWS}:{sWS+3}], 0 offen sc1
    s_mov_b64 exec, -1
    s_cmp_eq_u32 s{sCnt}, 0
    s_cbranch_scc1 K1_DRAIN
    s_min_u32 s{sCnt}, s{sCnt}, {CH}
    s_add_u32 s{sT}, s{sT}, 4
    s_mul_i32 s3, s{sPiK}, {OVF_STRIDE}
    s_add_u32 s3, s3, {WS_OVF + 4}
    v_mov_b32 v{vT0}, v{vLane}
    K1_OVL:
    v_cmp_gt_u32 vcc, s{sCnt}, v{vT0}
    s_and_b64 exec, exec, vcc
    s_cbranch_execz K1_OVD
    v_lshlrev_b32 v{vT1}, 2, v{vT0}
    ds_read_b32 v{vRank}, v{vT1} offset:{LIST}
    v_cmp_gt_u32 vcc, 7, v{vT0}
    v_add_u32 v{vT2}, s3, v{vT1}
    v_add_u32 v{vT1}, s{sT}, v{vT1}
    s_nop 0
    v_cndmask_b32_e64 v{vT1}, v{vT2}, v{vT1}, vcc
    s_waitcnt lgkmcnt(0)
    buffer_store_dword v{vRank}, v{vT1}, s[{sWS}:{sWS+3}], 0 offen sc1
    v_add_u32 v{vT0}, 64, v{vT0}
    s_branch K1_OVL
    K1_OVD:
    s_mov_b64 exec, -1
    K1_DRAIN:
    s_waitcnt vmcnt(0)
    K1_NOCOPY:
    s_barrier
    """)
    st.stamp(a)
    if opt.dmalate:
        a(f"""
        s_waitcnt vmcnt(0)
        v_readfirstlane_b32 s{sNonce}, v{vNon}
        s_nop 3
        s_add_u32 s{sNonce}, s{sNonce}, 1
        s_cmp_eq_u32 s{sWave}, 0
        s_cbranch_scc0 K1_NOFLAG0
        s_lshl_b32 s3, s{sPiK}, 7
        s_add_u32 s3, s3, {WS_FLAGS}
        v_mov_b32 v{vT0}, s3
        v_mov_b32 v{vT1}, s{sNonce}
        s_mov_b64 exec, 1
        buffer_store_dword v{vT1}, v{vT0}, s[{sWS}:{sWS+3}], 0 offen sc1
        s_mov_b64 exec, -1
        K1_NOFLAG0:
        """)
        early_dma()
        a("s_waitcnt vmcnt(0)")
        a("s_barrier")
    else: a(f"""
    s_waitcnt vmcnt(0)
    v_readfirstlane_b32 s{sNonce}, v{vNon}
    s_nop 3
    s_add_u32 s{sNonce}, s{sNonce}, 1
    s_cmp_eq_u32 s{sWave}, 0
    s_cbranch_scc0 K1_NOFLAG
    s_lshl_b32 s3, s{sPiK}, 7
    s_add_u32 s3, s3, {WS_FLAGS}
    v_mov_b32 v{vT0}, s3
    v_mov_b32 v{vT1}, s{sNonce}
    s_mov_b64 exec, 1
    buffer_store_dword v{vT1}, v{vT0}, s[{sWS}:{sWS+3}], 0 offen sc1
    s_mov_b64 exec, -1
    K1_NOFLAG:
    s_barrier
    """)
    st.stamp(a)
    a(f"""
    s_cmp_ge_u32 s{sWave}, 8
    s_cbranch_scc1 K2_NOQ
    """)
    vA8, vQAcc = vXB, vAcc
    Bq = [vE, vE+4, vQ, vQ+4]
    def a_reads(ks):
        a(f"ds_read_b64_tr_b16 {vr(vA8+4*ks,2)}, v{vWa} offset:{ks*4096}")
        a(f"ds_read_b64_tr_b16 {vr(vA8+4*ks+2,2)}, v{vWa} offset:{ks*4096 + 1024}")
    def b_read(ks):
        a(f"v_xor_b32 v{vT2}, {32*ks}, v{vBa}")
        a(f"ds_read_b128 {vr(Bq[ks & 3],4)}, v{vT2} offset:{XT}")
    def mfma(ks):
        c = "0" if ks == 0 else vr(vQAcc,16)
        a(f"v_mfma_f32_32x32x16_bf16 {vr(vQAcc,16)}, {vr(vA8+4*ks,4)}, {vr(Bq[ks & 3],4)}, {c}")
    for ks in range(4):
        a_reads(ks); b_read(ks)
    for ks in range(4):
        a("s_waitcnt lgkmcnt(9)")
        mfma(ks)
        a_reads(ks+4); b_read(ks+4)
    for ks in range(4, 8):
        a(f"s_waitcnt lgkmcnt({3*(7-ks)})")
        mfma(ks)
    a(f"""
    v_cmp_gt_u32 vcc, 52, v{vRow}
    v_xor_b32 v{vT2}, 16, v{vQst}
    s_nop 7
    s_nop 2
    """)
    for i in range(8):
        a(f"v_cvt_pk_bf16_f32 v{vA8+i}, v{vQAcc+2*i}, v{vQAcc+2*i+1}")
    a(f"""
    s_mov_b64 exec, vcc
    ds_write_b128 v{vQst}, {vr(vA8,4)} offset:{QS}
    ds_write_b128 v{vT2}, {vr(vA8+4,4)} offset:{QS}
    s_mov_b64 exec, -1
    s_waitcnt lgkmcnt(0)
    s_branch K1_POLLB
    K2_NOQ:
    s_cmp_eq_u32 s{sWave}, 8
    s_cbranch_scc1 K1_POLLW
    s_sub_u32 s3, s{sWave}, 9
    s_mul_i32 s3, s3, 5120
    s_add_u32 s{sT}, s3, {WV}
    """)
    for i in range(5):
        a(f"""
        s_cmp_ge_u32 s3, 32768
        s_cbranch_scc1 K1_POLLB
        s_mov_b32 m0, s{sT}
        s_add_u32 s{sT}, s{sT}, 1024
        buffer_load_dwordx4 v{vWl}, s[{sWV}:{sWV+3}], s3 offen lds
        s_add_u32 s3, s3, 1024
        """)
    a(f"""
    s_branch K1_POLLB
    K1_POLLW:
    """)
    a(f"""
    s_cmp_ge_u32 s2, 8
    s_cbranch_scc1 K1_HOP2
    s_lshl_b32 s3, s2, 12
    s_add_u32 s3, s3, {WS_FLAGS}
    v_lshlrev_b32 v{vT0}, 7, v{vLane}
    s_mov_b32 s{sT}, {1 << 17}
    s_mov_b32 exec_lo, -1
    s_mov_b32 exec_hi, 0
    K1_POLL:
    buffer_load_dword v{vT1}, v{vT0}, s[{sWS}:{sWS+3}], s3 offen sc1
    s_waitcnt vmcnt(0)
    v_cmp_ne_u32 vcc, s{sNonce}, v{vT1}
    s_and_b64 exec, exec, vcc
    s_cbranch_execz K1_POLLE
    s_sub_u32 s{sT}, s{sT}, 1
    s_cmp_lg_u32 s{sT}, 0
    s_cbranch_scc1 K1_POLL
    K1_POLLE:
    s_mov_b64 exec, 0xff
    s_lshl_b32 s3, s2, 7
    s_add_u32 s3, s3, {WS_SUMM}
    v_lshlrev_b32 v{vT0}, {10 if opt.copies else 31}, v{vLane}
    v_mov_b32 v{vT1}, s{sNonce}
    {"" if opt.copies else "s_mov_b64 exec, 1"}
    buffer_store_dword v{vT1}, v{vT0}, s[{sWS}:{sWS+3}], s3 offen sc1
    K1_HOP2:
    s_mov_b64 exec, 0xff
    v_lshlrev_b32 v{vT0}, 7, v{vLane}
    s_and_b32 s3, s2, {7 if opt.copies else 0}
    s_lshl_b32 s3, s3, 10
    s_add_u32 s3, s3, {WS_SUMM}
    s_mov_b32 s{sT}, {1 << 17}
    K1_POLL2:
    buffer_load_dword v{vT1}, v{vT0}, s[{sWS}:{sWS+3}], s3 offen sc1
    s_waitcnt vmcnt(0)
    v_cmp_ne_u32 vcc, s{sNonce}, v{vT1}
    s_and_b64 exec, exec, vcc
    s_cbranch_execz K1_POLLE2
    {"s_sleep %d" % opt.sleep if opt.sleep else ""}
    s_sub_u32 s{sT}, s{sT}, 1
    s_cmp_lg_u32 s{sT}, 0
    s_cbranch_scc1 K1_POLL2
    K1_POLLE2:
    s_mov_b64 exec, -1
    K1_POLLB:
    s_barrier
    K1_POLLD:
    """)
    st.stamp(a)
    a(f"""
    v_lshlrev_b32 v{vT0}, 4, v0
    s_lshl_b32 s3, s{sBeta}, 14
    s_add_u32 s3, s3, {WS_CELLS}
    buffer_load_dwordx4 {vr(vCand,4)}, v{vT0}, s[{sWS}:{sWS+3}], s3 offen sc1
    v_mov_b32 v{vHdr}, 0
    s_and_b32 s{sT}, s{sWave}, 3
    s_cmp_eq_u32 s{sT}, 0
    s_cbranch_scc0 K2_L1
    s_lshl_b32 s3, s{sWave}, 9
    s_add_u32 s3, s3, {WS_HDR}
    v_lshlrev_b32 v{vT0}, 5, v{vLane}
    buffer_load_dwordx4 {vr(vHdr,4)}, v{vT0}, s[{sWS}:{sWS+3}], s3 offen sc1
    buffer_load_dwordx4 {vr(vHdr2,4)}, v{vT0}, s[{sWS}:{sWS+3}], s3 offen offset:16 sc1
    K2_L1:
    v_mov_b32 v{vT3}, 1
    s_waitcnt vmcnt(0)
    """)
    st.stamp(a)
    def decode_valu(word, i):
        m = sM + 2*i
        a(f"""
        v_lshlrev_b32 v{vN4+i}, 2, v{word}
        v_and_b32 v{vN4+i}, 0xfc, v{vN4+i}
        v_cmp_gt_u32 s[{m}:{m+1}], s{s196}, v{vN4+i}
        v_and_b32 v{vSo+i}, 0x00ffff00, v{word}
        """)
    def decode_ds(i):
        m = sM + 2*i
        a(f"""
        s_mov_b64 exec, s[{m}:{m+1}]
        ds_add_rtn_u32 v{vRk+i}, v{vN4+i}, v{vT3} offset:{HIST}
        """)
    a("K2_DECODE:")
    for i in range(4):
        decode_valu(vCand+i, i)
    for i in range(4):
        decode_ds(i)
    a(f"""
    s_mov_b64 exec, -1
    s_mov_b64 s[{sM+8}:{sM+9}], 0
    s_and_b32 s{sT}, s{sWave}, 3
    s_cmp_eq_u32 s{sT}, 0
    s_cbranch_scc0 K2_NOHDR
    v_cmp_lt_u32 vcc, 0, v{vHdr}
    s_cbranch_vccz K2_NOHDR
    v_mov_b32 v{vT0}, {MAXC}
    ds_max_u32 v{vT0}, v{vHdr}
    """)
    for i in range(4, 7):
        w = vHdr + (i-3)
        a(f"""
        v_lshrrev_b32 v{vT0}, 24, v{w}
        v_cmp_eq_u32 s[{sSave}:{sSave+1}], s{sBeta}, v{vT0}
        v_cmp_lt_u32 vcc, {i-4}, v{vHdr}
        v_mov_b32 v{vT1}, -1
        s_and_b64 vcc, vcc, s[{sSave}:{sSave+1}]
        s_nop 1
        v_cndmask_b32_e64 v{w}, v{vT1}, v{w}, vcc
        """)
        decode_valu(w, i)
        decode_ds(i)
        a("s_mov_b64 exec, -1")
    a(f"""
    s_mov_b64 s[{sM2}:{sM2+1}], 0
    s_mov_b64 s[{sM2+2}:{sM2+3}], 0
    s_mov_b64 s[{sM2+4}:{sM2+5}], 0
    s_mov_b64 s[{sM2+6}:{sM2+7}], 0
    v_cmp_lt_u32 vcc, 3, v{vHdr}
    s_cbranch_vccz K2_HDRO
    """)
    for i in range(4):
        w, m = vHdr2 + i, sM2 + 2*i
        a(f"""
        v_lshrrev_b32 v{vT0}, 24, v{w}
        v_cmp_eq_u32 s[{sSave}:{sSave+1}], s{sBeta}, v{vT0}
        v_cmp_lt_u32 vcc, {3+i}, v{vHdr}
        v_mov_b32 v{vT1}, -1
        s_and_b64 vcc, vcc, s[{sSave}:{sSave+1}]
        s_nop 1
        v_cndmask_b32_e64 v{w}, v{vT1}, v{w}, vcc
        v_lshlrev_b32 v{vN42+i}, 2, v{w}
        v_and_b32 v{vN42+i}, 0xfc, v{vN42+i}
        v_cmp_gt_u32 s[{m}:{m+1}], s{s196}, v{vN42+i}
        v_and_b32 v{vSo2+i}, 0x00ffff00, v{w}
        s_mov_b64 exec, s[{m}:{m+1}]
        ds_add_rtn_u32 v{vRk2+i}, v{vN42+i}, v{vT3} offset:{HIST}
        s_mov_b64 exec, -1
        """)
    a(f"""
    K2_HDRO:
    s_or_b64 s[{sM+14}:{sM+15}], s[{sM+8}:{sM+9}], s[{sM+10}:{sM+11}]
    s_or_b64 s[{sM+14}:{sM+15}], s[{sM+14}:{sM+15}], s[{sM+12}:{sM+13}]
    s_or_b64 s[{sM+14}:{sM+15}], s[{sM+14}:{sM+15}], s[{sM2}:{sM2+1}]
    s_or_b64 s[{sM+14}:{sM+15}], s[{sM+14}:{sM+15}], s[{sM2+2}:{sM2+3}]
    s_or_b64 s[{sM+14}:{sM+15}], s[{sM+14}:{sM+15}], s[{sM2+4}:{sM2+5}]
    s_or_b64 s[{sM+14}:{sM+15}], s[{sM+14}:{sM+15}], s[{sM2+6}:{sM2+7}]
    s_branch K2_HDRD
    K2_NOHDR:
    s_mov_b64 s[{sM+14}:{sM+15}], 0
    s_mov_b64 s[{sM+8}:{sM+9}], 0
    s_mov_b64 s[{sM+10}:{sM+11}], 0
    s_mov_b64 s[{sM+12}:{sM+13}], 0
    s_mov_b64 s[{sM2}:{sM2+1}], 0
    s_mov_b64 s[{sM2+2}:{sM2+3}], 0
    s_mov_b64 s[{sM2+4}:{sM2+5}], 0
    s_mov_b64 s[{sM2+6}:{sM2+7}], 0
    K2_HDRD:
    s_waitcnt lgkmcnt(0)
    s_barrier
    """)
    st.stamp(a)
    a(f"""
    s_cmp_eq_u32 s2, 0
    s_cbranch_scc0 K2_NOEPOCH
    s_cmp_eq_u32 s{sWave}, 14
    s_cbranch_scc0 K2_NOEPOCH
    s_cmp_eq_u32 s{sR}, 0
    s_cbranch_scc0 K2_NOEPOCH
    v_mov_b32 v{vT0}, 0
    v_mov_b32 v{vT1}, s{sNonce}
    s_mov_b64 exec, 1
    buffer_store_dword v{vT1}, v{vT0}, s[{sWS}:{sWS+3}], 0 offen sc1
    s_mov_b64 exec, -1
    s_waitcnt vmcnt(0)
    K2_NOEPOCH:
    """)
    vCn = vCand
    vPos = vHdr
    def sort_phase(q, tag):
        a(f"v_lshlrev_b32 v{vT2}, 2, v{vLane}")
        a(f"ds_read_b32 v{vCn}, v{vT2} offset:{HIST}")
        if q:
            for ks in range(4): a_reads(ks)
            for ks in range(4): b_read(ks)
            a("s_waitcnt lgkmcnt(12)")
        else:
            a("s_waitcnt lgkmcnt(0)")
        a(f"""
        v_add_u32 v{vPc}, 3, v{vCn}
        v_and_b32 v{vPc}, -4, v{vPc}
        v_mov_b32 v{vStart}, v{vPc}
        s_lshl_b32 s{sT}, s{sWave}, 2
        s_nop 0
        """)
        steps = ["row_shr:1 row_mask:0xf bank_mask:0xf bound_ctrl:1", "row_shr:2 row_mask:0xf bank_mask:0xf bound_ctrl:1",
                 "row_shr:4 row_mask:0xf bank_mask:0xf bound_ctrl:1", "row_shr:8 row_mask:0xf bank_mask:0xf bound_ctrl:1",
                 "row_bcast:15 row_mask:0xa bank_mask:0xf", "row_bcast:31 row_mask:0xc bank_mask:0xf"]
        for i, stp in enumerate(steps):
            a(f"v_add_u32_dpp v{vStart}, v{vStart}, v{vStart} {stp}")
            if i == 5: break
            if q and i >= 1:
                ks = i - 1
                if ks == 0: a("s_waitcnt lgkmcnt(0)")
                mfma(ks)
                a("s_nop 0")
            else:
                a("s_nop 1")
        a(f"""
        v_cmp_lt_u32 vcc, s{sT}, v{vPc}
        v_readlane_b32 s{sCnt}, v{vStart}, 63
        v_sub_u32 v{vStart}, v{vStart}, v{vPc}
        """)
        for i in range(4):
            a(f"ds_bpermute_b32 v{vPos+i}, v{vN4+i}, v{vStart}")
        a(f"""
        v_add_u32 v{vT0}, s{sT}, v{vStart}
        s_mov_b64 exec, vcc
        ds_write_b32 v{vT0}, v{vUA} offset:{UNODE}
        s_mov_b64 exec, -1
        """)
        if q:
            for ks in range(4, 8): a_reads(ks)
            for ks in range(4, 8): b_read(ks)
        a(f"""
        v_cmp_lt_u32 vcc, 64, v{vPc}
        s_cbranch_vccz K2_UND{tag}
        K2_UN{tag}:
        s_add_u32 s{sT}, s{sT}, 64
        v_cmp_lt_u32 vcc, s{sT}, v{vPc}
        s_cbranch_vccz K2_UND{tag}
        v_add_u32 v{vT0}, s{sT}, v{vStart}
        s_mov_b64 exec, vcc
        ds_write_b32 v{vT0}, v{vUA} offset:{UNODE}
        s_mov_b64 exec, -1
        s_branch K2_UN{tag}
        K2_UND{tag}:
        """)
        if not q:
            a(f"""
            s_sub_u32 s{sT}, s{sWave}, 8
            s_cmp_gt_u32 s{sT}, 4
            s_cbranch_scc1 K2_NOPAD
            v_mov_b32 v{vT2}, {OOB}
            s_cmp_gt_u32 s{sT}, 2
            s_cbranch_scc1 K2_TAILPAD
            v_sub_u32 v{vT1}, v{vPc}, v{vCn}
            v_add_u32 v{vT0}, v{vStart}, v{vCn}
            v_cmp_lt_u32 vcc, s{sT}, v{vT1}
            v_add_u32 v{vT0}, s{sT}, v{vT0}
            v_lshlrev_b32 v{vT0}, 2, v{vT0}
            s_mov_b64 exec, vcc
            ds_write_b32 v{vT0}, v{vT2} offset:{LIST}
            s_mov_b64 exec, -1
            s_branch K2_NOPAD
            K2_TAILPAD:
            v_lshlrev_b32 v{vT1}, 2, v{vLane}
            s_cmp_eq_u32 s{sT}, 3
            s_cbranch_scc0 K2_TAILU
            s_lshl_b32 s{sT}, s{sCnt}, 2
            v_add_u32 v{vT0}, s{sT}, v{vT1}
            s_mov_b64 exec, 0xfffffff
            ds_write_b32 v{vT0}, v{vT2} offset:{LIST}
            s_mov_b64 exec, -1
            s_branch K2_NOPAD
            K2_TAILU:
            v_add_u32 v{vT0}, s{sCnt}, v{vT1}
            v_mov_b32 v{vT2}, {DUMMY*256 + 16*((DUMMY & 3) | (12*((DUMMY >> 2) & 1)))}
            s_mov_b64 exec, 0x7f
            ds_write_b32 v{vT0}, v{vT2} offset:{UNODE}
            s_mov_b64 exec, -1
            K2_NOPAD:
            """)
        a(f"""
        s_add_u32 s3, s{sCnt}, 31
        s_lshr_b32 s3, s3, 5
        s_lshr_b32 s{sQ}, s3, 4
        s_and_b32 s{sRem}, s3, 15
        s_cmp_lt_u32 s{sWave}, s{sRem}
        s_cselect_b32 s{sNH}, 1, 0
        s_add_u32 s{sHB}, s{sQ}, s{sNH}
        s_min_u32 s3, s{sRem}, s{sWave}
        s_mul_i32 s{sT}, s{sQ}, s{sWave}
        s_add_u32 s{sT}, s{sT}, s3
        v_lshrrev_b32 v{vT0}, 4, v{vLane}
        s_lshl_b32 s3, s{sHB}, 1
        v_mul_u32_u24 v{vT0}, s3, v{vT0}
        s_lshl_b32 s3, s{sT}, 3
        v_add_u32 v{vT0}, s3, v{vT0}
        v_lshlrev_b32 v{vLA}, 4, v{vT0}
        v_lshlrev_b32 v{vUA}, 2, v{vT0}
        """)
        if q:
            a("s_waitcnt lgkmcnt(0)")
            for ks in range(4, 8): mfma(ks)
        else:
            a("s_waitcnt lgkmcnt(0)")
        for i in range(4):
            a(f"v_add_lshl_u32 v{vPos+i}, v{vPos+i}, v{vRk+i}, 2")
        for i in range(4):
            a(f"s_mov_b64 exec, s[{sM+2*i}:{sM+2*i+1}]")
            a(f"ds_write_b32 v{vPos+i}, v{vSo+i} offset:{LIST}")
        a(f"""
        s_mov_b64 exec, -1
        s_cmp_eq_u64 s[{sM+14}:{sM+15}], 0
        s_cbranch_scc1 K2_SC_DONE{tag}
        """)
        for i in range(4, 7):
            a(f"ds_bpermute_b32 v{vPos+i-4}, v{vN4+i}, v{vStart}")
        a("s_waitcnt lgkmcnt(0)")
        for i in range(4, 7):
            a(f"""
            v_add_lshl_u32 v{vPos+i-4}, v{vPos+i-4}, v{vRk+i}, 2
            s_mov_b64 exec, s[{sM+2*i}:{sM+2*i+1}]
            ds_write_b32 v{vPos+i-4}, v{vSo+i} offset:{LIST}
            s_mov_b64 exec, -1
            """)
        a(f"""
        s_or_b64 s[{sSave}:{sSave+1}], s[{sM2}:{sM2+1}], s[{sM2+2}:{sM2+3}]
        s_or_b64 s[{sSave}:{sSave+1}], s[{sSave}:{sSave+1}], s[{sM2+4}:{sM2+5}]
        s_or_b64 s[{sSave}:{sSave+1}], s[{sSave}:{sSave+1}], s[{sM2+6}:{sM2+7}]
        s_cbranch_scc0 K2_SC_DONE{tag}
        """)
        for i in range(4):
            a(f"ds_bpermute_b32 v{vPos+i}, v{vN42+i}, v{vStart}")
        a("s_waitcnt lgkmcnt(0)")
        for i in range(4):
            a(f"""
            v_add_lshl_u32 v{vPos+i}, v{vPos+i}, v{vRk2+i}, 2
            s_mov_b64 exec, s[{sM2+2*i}:{sM2+2*i+1}]
            ds_write_b32 v{vPos+i}, v{vSo2+i} offset:{LIST}
            s_mov_b64 exec, -1
            """)
        a(f"K2_SC_DONE{tag}:")
        if q:
            a(f"""
            v_cmp_gt_u32 vcc, 52, v{vRow}
            v_xor_b32 v{vT3}, 16, v{vQst}
            s_nop 5
            """)
            for i in range(8):
                a(f"v_cvt_pk_bf16_f32 v{vA8+i}, v{vQAcc+2*i}, v{vQAcc+2*i+1}")
            a(f"""
            s_mov_b64 exec, vcc
            ds_write_b128 v{vQst}, {vr(vA8,4)} offset:{QS}
            ds_write_b128 v{vT3}, {vr(vA8+4,4)} offset:{QS}
            s_mov_b64 exec, -1
            """)
    sort_phase(False, "P")
    a("K2_SORT_DONE:")
    st.stamp(a)
    a(f"""
    s_waitcnt lgkmcnt(0)
    s_barrier
    """)
    st.stamp(a)
    if "cyc" in opt.exp: st.stamp(a, True)
    if opt.prio: a("s_setprio 3")
    a(f"""
    s_cmp_eq_u32 s{sHB}, 0
    s_cbranch_scc1 K2_NOMAIN
    ds_read_b128 {vr(vE,4)}, v{vLA} offset:{LIST}
    ds_read_b128 {vr(vE+4,4)}, v{vLA} offset:{LIST+16}
    ds_read_b64 {vr(vQC,2)}, v{vUA} offset:{UNODE}
    """)
    for i in range(8):
        a(f"v_mov_b32 v{vAcc+i}, 0")
    a("s_waitcnt lgkmcnt(1)")
    for u in range(8):
        a(f"v_add_u32 v{vE+u}, v{vE+u}, v{vC16}")
        a(f"buffer_load_dwordx4 {vr(vXA+4*u,4)}, v{vE+u}, s[{sX}:{sX+3}], 0 offen")
        if u == 0:
            a(f"""
            s_waitcnt lgkmcnt(0)
            v_xor_b32 v{vT0}, v{vQC}, v{vC16}
            v_xor_b32 v{vT1}, v{vQC+1}, v{vC16}
            ds_read_b128 {vr(vQ,4)}, v{vT0} offset:{QS}
            ds_read_b128 {vr(vQ+4,4)}, v{vT1} offset:{QS}
            v_mov_b32 v{vPrev}, v{vQC}
            """)
    if "bstamp" in opt.exp: st.stamp(a)
    wv_id = [0]
    def wv_dma():
        i = wv_id[0]; wv_id[0] += 1
        a(f"""
        s_cmp_eq_u32 s{sR}, 0
        s_cbranch_scc0 K2_NOWV{i}
        s_lshl_b32 s3, s{sWave}, 11
        s_add_u32 s{sT}, s3, {WV}
        s_mov_b32 m0, s{sT}
        s_add_u32 s{sT}, s{sT}, 1024
        buffer_load_dwordx4 v{vWl}, s[{sWV}:{sWV+3}], s3 offen lds
        s_mov_b32 m0, s{sT}
        s_add_u32 s3, s3, 1024
        buffer_load_dwordx4 v{vWl}, s[{sWV}:{sWV+3}], s3 offen lds
        K2_NOWV{i}:
        """)
    flush_id = [0]
    def flush(prev, masked):
        fid = flush_id[0]; flush_id[0] += 1
        t = ""
        if masked is not None:
            t += f"""
            v_cmp_ne_u32 vcc, v{masked}, v{prev}
            s_cbranch_vccz K2_FL{fid}
            s_mov_b64 exec, vcc
            """
        t += f"""
        v_and_b32 v{vT0}, 0xffffff00, v{prev}
        v_lshl_add_u32 v{vT0}, v{vT0}, 1, v{vPB}
        ds_write_b128 v{vT0}, {vr(vAcc,4)}
        ds_write_b128 v{vT0}, {vr(vAcc+4,4)} offset:256
        """
        if masked is not None:
            for i in range(8):
                t += f"v_mov_b32 v{vAcc+i}, 0\n"
            t += f"""
            s_mov_b64 exec, -1
            K2_FL{fid}:
            """
        return t
    def dots(X, waits):
        for half in range(2):
            a(waits[half])
            if "nodots" in opt.exp: continue
            for r in range(4):
                for u in range(4*half, 4*half+4):
                    if r == 0:
                        a(f"v_dot2_f32_bf16 v{vP+u}, v{X+4*u}, v{vQ+4*half}, 0")
                    else:
                        a(f"v_dot2c_f32_bf16 v{vP+u}, v{X+4*u+r}, v{vQ+4*half+r}")
    def chain(al):
        c = []
        for j in range(4):
            c.append(f"v_add_f32_dpp v{vP+j}, v{vP+j}, v{vP+j} row_mirror row_mask:0xf bank_mask:0x3")
        for j in range(4):
            c.append(f"v_add_f32_dpp v{vP+j}, v{vP+j+4}, v{vP+j+4} row_mirror row_mask:0xf bank_mask:0xc")
        for j in range(2):
            c.append(f"v_add_f32_dpp v{vP+j}, v{vP+j}, v{vP+j} row_half_mirror row_mask:0xf bank_mask:0x5")
        for j in range(2):
            c.append(f"v_add_f32_dpp v{vP+j}, v{vP+j+2}, v{vP+j+2} row_half_mirror row_mask:0xf bank_mask:0xa")
        c.append(f"v_add_f32_dpp v{vP+2}, v{vP}, v{vP} quad_perm:[1,0,3,2] row_mask:0xf bank_mask:0xf")
        c.append(f"v_add_f32_dpp v{vP+3}, v{vP+1}, v{vP+1} quad_perm:[1,0,3,2] row_mask:0xf bank_mask:0xf")
        c.append(f"v_cndmask_b32_e64 v{vP}, v{vP+2}, v{vP+3}, s[{sOdd}:{sOdd+1}]")
        c.append(f"v_add_f32_dpp v{vP}, v{vP}, v{vP} quad_perm:[2,3,0,1] row_mask:0xf bank_mask:0xf")
        if opt.mimic:
            c += [f"v_cvt_pk_bf16_f32 v{vP}, v{vP}, v{vP}", f"v_and_b32 v{vP}, 0xffff0000, v{vP}",
                  f"v_mul_f32 v{vP}, 0x3db504f3, v{vP}", f"v_cvt_pk_bf16_f32 v{vP}, v{vP}, v{vP}",
                  f"v_and_b32 v{vP}, 0xffff0000, v{vP}", f"v_mul_f32 v{vP}, 0xbfb8aa3b, v{vP}"]
        else:
            c.append(f"v_mul_f32 v{vP}, 0xbe0293ee, v{vP}")
        c += [f"v_exp_f32 v{vP}, v{vP}", f"v_add_f32 v{vP}, 1.0, v{vP}", f"v_rcp_f32 v{vP}, v{vP}",
              f"v_cvt_pk_bf16_f32 v{al}, v{vP}, 0", f"v_cvt_pk_bf16_f32 v{al+1}, 0, v{vP}"]
        return c
    def chain_alone(al):
        c = chain(al)
        gaps = {9: 1, 11: 1, 14: 2, 17 + (5 if opt.mimic else 0): 1, 19 + (5 if opt.mimic else 0): 1}
        for i, ins in enumerate(c):
            a(ins)
            if i in gaps: a(f"s_nop {gaps[i]-1}")
    def agg_stream(X, al, loads, Xdst, qp=None):
        out = []
        qp = vQP if qp is None else qp
        for half in range(2):
            if half == 0:
                out.append(('x', flush(vPrev, qp)))
            else:
                out.append(('x', "s_nop 1\n" + flush(qp, qp+1)))
            for u in range(4*half, 4*half+4):
                k = 4*(u >> 1) + (u & 1)
                for r in range(4):
                    if "noagg" in opt.exp:
                        out.append(('v', "s_nop 0")); out.append(('v', "s_nop 0")); continue
                    out.append(('v', f"v_dot2c_f32_bf16_dpp v{vAcc+2*r}, v{al}, v{X+4*u+r} row_newbcast:{k} row_mask:0xf bank_mask:0xf"))
                    out.append(('v', f"v_dot2c_f32_bf16_dpp v{vAcc+2*r+1}, v{al+1}, v{X+4*u+r} row_newbcast:{k} row_mask:0xf bank_mask:0xf"))
                if loads and "noload" not in opt.exp:
                    out.append(('x', f"buffer_load_dwordx4 {vr(Xdst+4*u,4)}, v{vE+u}, s[{sX}:{sX+3}], 0 offen"))
        return out
    def next_prep():
        a("s_waitcnt lgkmcnt(0)")
        a(f"v_xor_b32 v{vT0}, v{vQN}, v{vC16}")
        a(f"v_xor_b32 v{vT1}, v{vQN+1}, v{vC16}")
    def rotate(nxt):
        a(f"v_mov_b32 v{vQP}, v{vQC}")
        a(f"v_mov_b32 v{vQP+1}, v{vQC+1}")
        if nxt:
            a(f"v_mov_b32 v{vQC}, v{vQN}")
            a(f"v_mov_b32 v{vQC+1}, v{vQN+1}")
            a(f"v_add_u32 v{vLA}, 32, v{vLA}")
            a(f"v_add_u32 v{vUA}, 8, v{vUA}")
    def mid(cur, prev, al_cur, al_prev, nxt):
        a("s_waitcnt lgkmcnt(0)")
        if nxt:
            a(f"""
            ds_read_b128 {vr(vE,4)}, v{vLA} offset:{LIST+32}
            ds_read_b128 {vr(vE+4,4)}, v{vLA} offset:{LIST+48}
            ds_read_b64 {vr(vQN,2)}, v{vUA} offset:{UNODE+8}
            """)
        dots(cur, ("s_waitcnt vmcnt(4)", "s_waitcnt vmcnt(0)"))
        if nxt:
            next_prep()
            for u in range(8):
                a(f"v_add_u32 v{vE+u}, v{vE+u}, v{vC16}")
            a(f"ds_read_b128 {vr(vQ,4)}, v{vT0}")
            a(f"ds_read_b128 {vr(vQ+4,4)}, v{vT1}")
        else:
            a("s_nop 2")
        c = chain(al_cur)
        s_ = agg_stream(prev, al_prev, nxt, prev)
        nv = sum(1 for k, _ in s_ if k == 'v')
        ci, vi = 0, 0
        for k, t in s_:
            a(t)
            if k == 'v':
                vi += 1
                if ci < len(c) and vi >= (ci + 1) * nv // (len(c) + 1) and vi % 1 == 0:
                    a(c[ci]); ci += 1
        assert ci == len(c)
        a(f"v_mov_b32 v{vPrev}, v{vQP+1}")
        rotate(nxt)
    def final(X, al):
        for k, t in agg_stream(X, al, False, None):
            a(t)
        a("s_nop 2")
        a(flush(vQP+1, None))
        a("s_branch K2_MAIN_DONE")
    def roll_body(nxt):
        al = vAl[0]
        a("s_waitcnt lgkmcnt(0)")
        if nxt:
            a(f"""
            ds_read_b128 {vr(vE,4)}, v{vLA} offset:{LIST+32}
            ds_read_b128 {vr(vE+4,4)}, v{vLA} offset:{LIST+48}
            ds_read_b64 {vr(vQN,2)}, v{vUA} offset:{UNODE+8}
            """)
        dots(vXA, ("s_waitcnt vmcnt(4)", "s_waitcnt vmcnt(0)"))
        fill = []
        if nxt:
            next_prep()
            a(f"v_add_u32 v{vE}, v{vE}, v{vC16}")
            fill = [f"v_add_u32 v{vE+u}, v{vE+u}, v{vC16}" for u in range(1, 8)]
        else:
            a("s_nop 2")
        c = chain(al)
        gaps = {11: 1, 14: 2, 17 + (5 if opt.mimic else 0): 1, 19 + (5 if opt.mimic else 0): 1}
        for i, ins in enumerate(c):
            a(ins)
            if i == 3 and nxt:
                a(f"ds_read_b128 {vr(vQ,4)}, v{vT0} offset:{QS}")
                a(f"ds_read_b128 {vr(vQ+4,4)}, v{vT1} offset:{QS}")
            for _ in range(gaps.get(i, 0)):
                a(fill.pop(0) if fill else "s_nop 0")
        while fill: a(fill.pop(0))
        a("s_nop 0")
        for k, t in agg_stream(vXA, al, nxt, vXA, vQC):
            a(t)
        a(f"v_mov_b32 v{vPrev}, v{vQC+1}")
        if nxt:
            a(f"v_mov_b32 v{vQC}, v{vQN}")
            a(f"v_mov_b32 v{vQC+1}, v{vQN+1}")
            a(f"v_add_u32 v{vLA}, 32, v{vLA}")
            a(f"v_add_u32 v{vUA}, 8, v{vUA}")
    if True:
        a(f"""
        s_cmp_eq_u32 s{sHB}, 1
        s_cbranch_scc1 K2_LAST
        K2_LOOP:
        """)
        if opt.prio:
            a(f"""
            s_cmp_ge_u32 s{sHB}, 4
            s_cbranch_scc1 K2_PR0
            s_setprio 2
            s_cmp_eq_u32 s{sHB}, 3
            s_cbranch_scc1 K2_PR0
            s_setprio 1
            K2_PR0:
            """)
        roll_body(True)
        a(f"""
        s_sub_u32 s{sHB}, s{sHB}, 1
        s_cmp_gt_u32 s{sHB}, 1
        s_cbranch_scc1 K2_LOOP
        K2_LAST:
        """)
        if opt.prio: a("s_setprio 0")
        roll_body(False)
        a("s_nop 2")
        a(flush(vPrev, None))
    a("s_branch K2_MAIN_DONE")
    a("K2_NOMAIN:")
    a("K2_MAIN_DONE:")
    if opt.prio: a("s_setprio 0")
    if "cyc" in opt.exp: st.stamp(a, True)
    st.stamp(a)
    a(f"""
    s_cmp_eq_u32 s{sR}, 0
    s_cbranch_scc0 K2_NRDONE
    v_mov_b32 v{vT3}, {MAXC}
    ds_read_b32 v{vT3}, v{vT3}
    s_waitcnt lgkmcnt(0)
    v_readfirstlane_b32 s3, v{vT3}
    s_nop 3
    s_min_u32 s3, s3, {CH}
    s_max_u32 s3, s3, 7
    s_add_u32 s3, s3, 8
    s_lshr_b32 s3, s3, 4
    s_add_u32 s{sNR}, s3, 1
    K2_NRDONE:
    """)
    vSf, vSl = vE, vE+1
    a(f"""
    s_cmp_eq_u32 s{sWave}, 15
    s_cbranch_scc0 K2_NOTBL
    s_add_u32 s3, s{sQ}, 1
    s_lshl_b32 s3, s3, 1
    v_cvt_f32_u32 v{vT0}, s3
    s_mul_i32 s3, s3, s{sRem}
    s_lshl_b32 s{sP}, s3, 2
    s_lshl_b32 s3, s{sQ}, 1
    v_cvt_f32_u32 v{vT1}, s3
    v_rcp_f32 v{vT0}, v{vT0}
    v_rcp_f32 v{vT1}, v{vT1}
    s_lshl_b32 s3, s{sRem}, 2
    """)
    for (dst, last) in ((vSf, False), (vSl, True)):
        if not last:
            a(f"v_lshrrev_b32 v{vT2}, 2, v{vStart}")
        else:
            a(f"""
            v_add_u32 v{vT2}, v{vStart}, v{vPc}
            v_lshrrev_b32 v{vT2}, 2, v{vT2}
            v_add_u32 v{vT2}, -1, v{vT2}
            """)
        a(f"""
        v_cmp_gt_u32 vcc, s{sP}, v{vT2}
        v_cvt_f32_u32 v{vT3}, v{vT2}
        v_add_f32 v{vT3}, 0.5, v{vT3}
        v_mul_f32 v{vT3}, v{vT3}, v{vT0}
        v_cvt_u32_f32 v{vT3}, v{vT3}
        v_subrev_u32 v{vT2}, s{sP}, v{vT2}
        v_cvt_f32_u32 v{vT2}, v{vT2}
        v_add_f32 v{vT2}, 0.5, v{vT2}
        v_mul_f32 v{vT2}, v{vT2}, v{vT1}
        v_cvt_u32_f32 v{vT2}, v{vT2}
        v_add_u32 v{vT2}, s3, v{vT2}
        v_cndmask_b32_e64 v{dst}, v{vT2}, v{vT3}, vcc
        """)
    a(f"""
    v_sub_u32 v{vT0}, v{vSl}, v{vSf}
    v_add_u32 v{vT0}, 1, v{vT0}
    v_cmp_lt_u32 vcc, 0, v{vPc}
    v_add_u32 v{vT1}, v{vSf}, v{vLane}
    v_lshlrev_b32 v{vT1}, 9, v{vT1}
    v_cndmask_b32_e64 v{vT0}, 0, v{vT0}, vcc
    v_add_u32 v{vT1}, {PIECE}, v{vT1}
    v_lshlrev_b32 v{vT3}, 2, v{vLane}
    v_mov_b32 v{vT2}, {ZROW}
    ds_write_b32 v{vT3}, v{vT0} offset:{NPC}
    """)
    for j in range(4):
        a(f"""
        v_cmp_lt_u32 vcc, {j}, v{vT0}
        v_add_u32 v{vT3}, {512*j}, v{vT1}
        s_nop 0
        v_cndmask_b32_e64 v{vE+4+j}, v{vT2}, v{vT3}, vcc
        """)
    a(f"""
    v_lshlrev_b32 v{vT0}, 4, v{vLane}
    ds_write_b128 v{vT0}, {vr(vE+4,4)} offset:{TBL}
    K2_NOTBL:
    """)
    vA8 = vXB
    a(f"""
    s_add_u32 s3, s{sR}, 1
    s_cmp_ge_u32 s3, s{sNR}
    s_cselect_b32 s{sT}, 8, 0
    s_cmp_ge_u32 s{sWave}, s{sT}
    s_cbranch_scc1 K2_NOAA
    s_and_b32 s{sP}, s{sWave}, 3
    s_lshr_b32 s{sNH}, s{sWave}, 2
    """)
    tile_a_addr(a, vWa, vLane, vT2, vT3, sP, WV)
    for ks in range(8):
        if ks == 6: a("s_waitcnt lgkmcnt(4)")
        a(f"ds_read_b64_tr_b16 {vr(vA8+4*ks,2)}, v{vWa} offset:{ks*4096}")
        a(f"ds_read_b64_tr_b16 {vr(vA8+4*ks+2,2)}, v{vWa} offset:{ks*4096 + 1024}")
    a(f"""
    v_and_b32 v{vRow}, 31, v{vLane}
    s_lshl_b32 s3, s{sNH}, 5
    v_add_u32 v{vRow}, s3, v{vRow}
    """)
    tile_b_addr(a, vBa, vRow, vLane, vT3)
    a(f"""
    K2_NOAA:
    s_waitcnt lgkmcnt(0)
    s_barrier
    """)
    st.stamp(a)
    vB = vE
    vRd = vXA
    vNp = vT3
    a(f"""
    s_cmp_ge_u32 s{sWave}, 13
    s_cbranch_scc1 K2_RED_DONE
    v_lshrrev_b32 v{vT0}, 4, v{vLane}
    s_lshl_b32 s3, s{sWave}, 2
    v_add_u32 v{vT0}, s3, v{vT0}
    v_lshlrev_b32 v{vT1}, 4, v{vT0}
    v_lshlrev_b32 v{vT2}, 2, v{vT0}
    ds_read_b128 {vr(vB,4)}, v{vT1} offset:{TBL}
    ds_read_b32 v{vNp}, v{vT2} offset:{NPC}
    s_waitcnt lgkmcnt(0)
    """)
    for j in range(3):
        a(f"""
        v_add_u32 v{vB+j}, v{vB+j}, v{vC16}
        ds_read_b128 {vr(vRd+8*j,4)}, v{vB+j}
        ds_read_b128 {vr(vRd+8*j+4,4)}, v{vB+j} offset:256
        """)
    for j in range(3):
        a(f"s_waitcnt lgkmcnt({4-2*j})")
        for i in range(8):
            a(f"v_add_f32 v{vTot+i}, v{vTot+i}, v{vRd+8*j+i}")
    a(f"""
    s_mov_b32 s{sT}, 3
    K2_XL:
    v_cmp_lt_u32 vcc, s{sT}, v{vNp}
    s_cbranch_vccz K2_RED_DONE
    s_lshl_b32 s3, s{sT}, 9
    v_add_u32 v{vT0}, s3, v{vB}
    s_mov_b64 exec, vcc
    ds_read_b128 {vr(vRd,4)}, v{vT0}
    ds_read_b128 {vr(vRd+4,4)}, v{vT0} offset:256
    s_waitcnt lgkmcnt(0)
    """)
    for i in range(8):
        a(f"v_add_f32 v{vTot+i}, v{vTot+i}, v{vRd+i}")
    a(f"""
    s_mov_b64 exec, -1
    s_add_u32 s{sT}, s{sT}, 1
    s_branch K2_XL
    K2_RED_DONE:
    s_add_u32 s{sR}, s{sR}, 1
    s_cmp_ge_u32 s{sR}, s{sNR}
    s_cbranch_scc1 K2_EPI
    s_barrier
    """)
    a(f"""
    s_cmp_ge_u32 s{sWave}, 4
    s_cbranch_scc1 K2_RZ
    v_mov_b32 v{vT2}, 0
    v_lshlrev_b32 v{vT3}, 2, v0
    ds_write_b32 v{vT3}, v{vT2} offset:{HIST}
    K2_RZ:
    v_mov_b32 v{vCand}, -1
    v_mov_b32 v{vCand+1}, -1
    v_mov_b32 v{vCand+2}, -1
    v_mov_b32 v{vCand+3}, -1
    v_mov_b32 v{vHdr}, 0
    v_lshrrev_b32 v{vT0}, 2, v0
    v_lshlrev_b32 v{vT2}, 5, v{vT0}
    v_add_u32 v{vT2}, {WS_HDR}, v{vT2}
    buffer_load_dword v{vT3}, v{vT2}, s[{sWS}:{sWS+3}], 0 offen sc1
    v_lshlrev_b32 v{vT0}, 13, v{vT0}
    v_add_u32 v{vT0}, {WS_OVF}, v{vT0}
    s_lshl_b32 s3, s{sR}, 4
    s_sub_u32 s3, s3, 9
    v_and_b32 v{vT1}, 3, v0
    v_lshl_add_u32 v{vT1}, v{vT1}, 2, s3
    v_lshl_add_u32 v{vT0}, v{vT1}, 2, v{vT0}
    buffer_load_dwordx4 {vr(vSo,4)}, v{vT0}, s[{sWS}:{sWS+3}], 0 offen offset:4 sc1
    s_waitcnt vmcnt(0)
    """)
    for i in range(4):
        a(f"""
        v_add_u32 v{vT2}, {i}, v{vT1}
        v_cmp_lt_u32 vcc, v{vT2}, v{vT3}
        v_lshrrev_b32 v{vT0}, 24, v{vSo+i}
        v_cmp_eq_u32 s[{sM}:{sM+1}], s{sBeta}, v{vT0}
        s_nop 0
        s_and_b64 vcc, vcc, s[{sM}:{sM+1}]
        s_nop 1
        v_cndmask_b32_e64 v{vCand+i}, v{vCand+i}, v{vSo+i}, vcc
        """)
    a(f"""
    v_bfe_u32 v{vT2}, v{vLane}, 2, 1
    v_mul_u32_u24 v{vT2}, 12, v{vT2}
    v_and_b32 v{vT3}, 3, v{vLane}
    v_or_b32 v{vT2}, v{vT2}, v{vT3}
    v_lshlrev_b32 v{vUA}, 8, v{vLane}
    v_lshl_or_b32 v{vUA}, v{vT2}, 4, v{vUA}
    v_mov_b32 v{vT3}, 1
    s_waitcnt lgkmcnt(0)
    s_barrier
    s_branch K2_DECODE
    K2_EPI:
    """)
    st.stamp(a)
    vAcc16, vB8 = 24, vXA
    a(f"""
    s_cmp_ge_u32 s{sWave}, 13
    s_cbranch_scc1 K2_WB_DONE
    v_lshrrev_b32 v{vT0}, 4, v{vLane}
    s_lshl_b32 s3, s{sWave}, 2
    v_add_u32 v{vT0}, s3, v{vT0}
    v_lshlrev_b32 v{vT1}, 4, v{vT0}
    v_xor_b32 v{vT1}, v{vT1}, v{vC16}
    v_and_b32 v{vT1}, 0xf0, v{vT1}
    v_lshl_add_u32 v{vT0}, v{vT0}, 8, v{vT1}
    """)
    for i in range(4):
        a(f"v_cvt_pk_bf16_f32 v{vP+i}, v{vTot+2*i}, v{vTot+2*i+1}")
    a(f"""
    ds_write_b128 v{vT0}, {vr(vP,4)} offset:{AGGB}
    K2_WB_DONE:
    s_cmp_ge_u32 s{sWave}, 8
    s_cbranch_scc1 K2_EB
    """)
    for ks in range(8):
        a(f"v_xor_b32 v{vE+ks}, {32*ks}, v{vBa}")
    a(f"""
    s_mul_i32 s3, s{sBeta}, {T*256}
    s_lshl_b32 s{sCnt}, s{sP}, 6
    s_add_u32 s3, s3, s{sCnt}
    v_lshrrev_b32 v{vT0}, 5, v{vLane}
    v_lshlrev_b32 v{vT1}, 8, v{vRow}
    v_lshl_add_u32 v{vT1}, v{vT0}, 5, v{vT1}
    v_add_u32 v{vT1}, s3, v{vT1}
    K2_EB:
    s_waitcnt lgkmcnt(0)
    s_barrier
    s_cmp_ge_u32 s{sWave}, 8
    s_cbranch_scc1 K2_FIN
    """)
    for ks in range(8):
        a(f"ds_read_b128 {vr(vB8+4*ks,4)}, v{vE+ks} offset:{AGGB}")
    a(f"v_cmp_gt_u32 vcc, {T}, v{vRow}")
    for ks in range(8):
        a(f"s_waitcnt lgkmcnt({7-ks})")
        c = "0" if ks == 0 else vr(vAcc16,16)
        a(f"v_mfma_f32_32x32x16_bf16 {vr(vAcc16,16)}, {vr(vA8+4*ks,4)}, {vr(vB8+4*ks,4)}, {c}")
    a("s_nop 7")
    a("s_nop 3")
    for i in range(8):
        a(f"v_cvt_pk_bf16_f32 v{vQ+i}, v{vAcc16+2*i}, v{vAcc16+2*i+1}")
    a(f"""
    s_and_saveexec_b64 s[{sSave}:{sSave+1}], vcc
    s_cbranch_execz K2_ST_DONE
    buffer_store_dwordx4 {vr(vQ,4)}, v{vT1}, s[{sOUT}:{sOUT+3}], 0 offen {opt.outst}
    buffer_store_dwordx4 {vr(vQ+4,4)}, v{vT1}, s[{sOUT}:{sOUT+3}], 0 offen offset:16 {opt.outst}
    K2_ST_DONE:
    s_mov_b64 exec, s[{sSave}:{sSave+1}]
    K2_FIN:
    """)
    st.stamp(a)
    if opt.stamps:
        a("s_waitcnt vmcnt(0)")
        st.stamp(a)
    st.flush(a, sWS, vT0, sWave)
    a("""
    K2_END:
    s_endpgm
    """)
    return a.text(), LDS, 128

def build(opt):
    k, lds, v = gen_k(opt)
    n = NAME + "_kernel"
    out = HEADER
    for _ in range(opt.rep):
        out += f"; @launch kernel={n} grid=({NB},1,1) block=(1024,1,1) lds={lds}\n" if opt.aslist or opt.rep > 1 else f"; @launch grid=({NB},1,1) block=(1024,1,1) lds={lds}\n"
    out += '.amdgcn_target "amdgcn-amd-amdhsa--gfx950"\n.text\n'
    out += f".globl {n}\n.p2align 8\n.type {n},@function\n" + k
    out += '.section .rodata,"a"\n.p2align 6\n' + kd(n, v)
    return out

def parse(argv=None):
    p = argparse.ArgumentParser()
    p.add_argument("-o", default="cdna_kernels/" + NAME + ".s")
    p.add_argument("--stamps", action="store_true")
    p.add_argument("--prefetch", type=int, default=1)
    p.add_argument("--mimic", type=int, default=0)
    p.add_argument("--prio", type=int, default=1)
    p.add_argument("--keep", default="")
    p.add_argument("--exp", default="")
    p.add_argument("--outst", default="")
    p.add_argument("--sleep", type=int, default=1)
    p.add_argument("--copies", type=int, default=1)
    p.add_argument("--cst", default="sc1")
    p.add_argument("--dmalate", type=int, default=0)
    p.add_argument("--rep", type=int, default=1)
    p.add_argument("--aslist", type=int, default=0)
    p.add_argument("--style", default="roll")
    return p.parse_args(argv)

if __name__ == "__main__":
    o = parse()
    open(o.o, "w").write(build(o))
    print("wrote", o.o)
```

```python
import sys, argparse
from gen import A, vr, Stamps, scan64, kd, HEADER, NAME

N, E, D = 12500, 400000, 128
T = 49
NB = 256
CH = 1564
C = 256
XBYTES = N * 256
EBYTES = E * 4
WS_NONCE = 0
WS_OVH = 0x1000
WS_EXTRA = 0x40000
WS_CELLS = 0x100000
CELLROW = 16384
WS_OVF = 0x500000
OVF_STRIDE = 16384
WS_USED = WS_OVF + 256 * OVF_STRIDE
TAGSH = 23
EMPTY = 0x3f
WS_STAMP = 0x1000000
OOB = 0x40000000
DUMMY = 49

def srd_tail(a, d, size):
    a(f"s_mov_b32 s{d+2}, {size}")
    a(f"s_mov_b32 s{d+3}, 0x00020000")

def tile_a_addr(a, vdst, vlane, t0, t1, sP, wbase):
    a(f"""
    v_bfe_u32 v{t0}, v{vlane}, 2, 2
    v_lshrrev_b32 v{t1}, 5, v{vlane}
    v_lshl_add_u32 v{vdst}, v{t1}, 3, v{t0}
    v_lshlrev_b32 v{vdst}, 8, v{vdst}
    v_xor_b32 v{t0}, s{sP}, v{t0}
    v_lshl_add_u32 v{vdst}, v{t0}, 6, v{vdst}
    v_bfe_u32 v{t0}, v{vlane}, 4, 1
    v_bfe_u32 v{t1}, v{vlane}, 1, 1
    v_lshl_add_u32 v{t0}, v{t0}, 1, v{t1}
    v_and_b32 v{t1}, 1, v{vlane}
    v_lshl_add_u32 v{t0}, v{t1}, 2, v{t0}
    v_lshl_add_u32 v{vdst}, v{t0}, 3, v{vdst}
    v_add_u32 v{vdst}, {wbase}, v{vdst}
    """)

def tile_b_addr(a, vdst, vrow, vlane, t0):
    a(f"""
    v_lshrrev_b32 v{t0}, 5, v{vlane}
    v_xor_b32 v{t0}, v{t0}, v{vrow}
    v_and_b32 v{t0}, 15, v{t0}
    v_lshlrev_b32 v{t0}, 4, v{t0}
    v_lshl_add_u32 v{vdst}, v{vrow}, 8, v{t0}
    """)

def gen_k(opt):
    a = A()
    HIST, MAXC, ZROW, TBL = 0, 256, 512, 1024
    NPC = TBL + 1024
    LIST = NPC + 256
    LISTW = 6144
    UNODE = LIST + LISTW * 4
    QS = UNODE + 1536 * 4
    AGGB = QS + 52 * 256
    PIECE = AGGB + 64 * 256
    XT = PIECE
    WQ = XT + 16384
    WV = PIECE + (DUMMY + 64) * 512
    LDS = WV + 32768
    assert WQ + 32768 <= WV
    st = Stamps(opt.stamps, 64, WS_STAMP + 0x40000, [int(x) for x in opt.keep.split(',')] if opt.keep else None)
    sX, sWQ, sWV, sOUT, sWS = 4, 8, 12, 16, 20
    sBeta, sWave, sR, sNR = 24, 25, 26, 27
    sOdd = 28
    sBeta24, sHB, sP, sNH, s196 = 30, 31, 32, 33, 34
    sM = 36
    sSave = 50
    sCnt, sQ, sRem, sT = 52, 53, 54, 55
    vC16, vPB, vLA, vUA, vPrev = 1, 2, 3, 4, 5
    vQP, vQC, vQN = 6, 8, 10
    vAl = (12, 14)
    vQB = 16
    vT0, vT1, vT2, vT3 = 17, 18, 19, 20
    vLane, vStart, vPc = 21, 22, 23
    vAcc, vP, vE, vQ = 24, 32, 40, 48
    vXA, vXB, vTot = 56, 88, 120
    vCand, vHdr, vSo, vN4, vRk = 56, 60, 64, 72, 80
    vCnt = 47
    vHdr2, vSo2, vN42, vRk2 = 88, 92, 96, 100
    sM2 = 56
    vWl = 6
    vWa, vBa, vRow, vQst = 12, 13, 14, 15
    HP = LDS
    OVC, JUNK = HP + 1024, HP + 1040
    H2 = HP + 1280
    ST2 = H2 + 256
    MF = ST2 + 1024
    LDS = MF + 1024
    OVL = LIST
    OVB = LIST + 8192
    STAGE = AGGB
    sSRC, sDST, sNonce, sPi = 56, 60, 35, 3
    sTag = 30
    vDst, vSrc, vEnt, vAdr, vRank, vNeg, vNon, vGo = 56, 58, 60, 62, 64, 68, 66, 67
    vBk = 76
    a(f"""
    {NAME}_kernel:
    s_cmp_ge_u32 s2, {NB}
    s_cbranch_scc1 K2_END
    s_load_dwordx2 s[{sWS}:{sWS+1}], s[0:1], 56
    s_load_dwordx2 s[{sDST}:{sDST+1}], s[0:1], 16
    s_load_dwordx2 s[{sSRC}:{sSRC+1}], s[0:1], 8
    s_load_dwordx2 s[{sX}:{sX+1}], s[0:1], 0
    s_load_dwordx2 s[{sWQ}:{sWQ+1}], s[0:1], 24
    s_load_dwordx2 s[{sWV}:{sWV+1}], s[0:1], 32
    s_load_dwordx2 s[{sOUT}:{sOUT+1}], s[0:1], 40
    """)
    st.stamp(a)
    srd_tail(a, sWS, WS_USED if not opt.stamps else 0x2000000)
    srd_tail(a, sDST, EBYTES); srd_tail(a, sSRC, EBYTES); srd_tail(a, sX, XBYTES); srd_tail(a, sWQ, 32768)
    a(f"""
    v_lshrrev_b32 v{vT0}, 6, v0
    s_mov_b32 s{sBeta}, s2
    s_mul_i32 s3, s2, {CH*4}
    v_readfirstlane_b32 s{sWave}, v{vT0}
    v_lshlrev_b32 v{vT2}, 3, v0
    v_add_u32 v{vT2}, s3, v{vT2}
    s_movk_i32 s{sT}, {CH//2}
    s_cmp_eq_u32 s2, {C-1}
    s_cselect_b32 s{sT}, {(E - (C-1)*CH)//2}, s{sT}
    v_mov_b32 v{vT3}, 0
    v_cmp_gt_u32 vcc, s{sT}, v0
    s_and_saveexec_b64 s[{sSave}:{sSave+1}], vcc
    s_waitcnt lgkmcnt(0)
    s_cbranch_execz K1_NOEDGE0
    buffer_load_dwordx2 {vr(vDst,2)}, v{vT2}, s[{sDST}:{sDST+3}], 0 offen
    buffer_load_dwordx2 {vr(vSrc,2)}, v{vT2}, s[{sSRC}:{sSRC+3}], 0 offen
    K1_NOEDGE0:
    s_mov_b64 exec, s[{sSave}:{sSave+1}]
    buffer_load_dword v{vNon}, v{vT3}, s[{sWS}:{sWS+3}], 0 offen sc1
    """)
    a(f"""
    v_and_b32 v{vLane}, 63, v0
    v_bfe_u32 v{vT0}, v0, 4, 2
    v_and_b32 v{vT1}, 15, v0
    v_lshlrev_b32 v{vC16}, 4, v{vT1}
    """)
    a(f"""
    v_mov_b32 v{vNeg}, {EMPTY}
    v_mov_b32 v{vNeg+1}, {EMPTY}
    v_mov_b32 v{vNeg+2}, {EMPTY}
    v_mov_b32 v{vNeg+3}, {EMPTY}
    v_lshlrev_b32 v{vT2}, 4, v0
    ds_write_b128 v{vT2}, {vr(vNeg,4)} offset:{STAGE}
    s_cmp_eq_u32 s{sWave}, 12
    s_cbranch_scc0 K1_NOS2
    v_lshlrev_b32 v{vT3}, 4, v{vLane}
    v_add_u32 v{vT3}, {ST2}, v{vT3}
    ds_write_b128 v{vT3}, {vr(vNeg,4)}
    K1_NOS2:
    v_mov_b32 v{vT2}, 0
    v_lshlrev_b32 v{vT3}, 2, v0
    s_cmp_ge_u32 s{sWave}, 6
    s_cbranch_scc1 K1_NOZ0
    v_add_u32 v{vT3}, {HP}, v{vT3}
    ds_write_b32 v{vT3}, v{vT2}
    s_branch K1_NOZ1
    K1_NOZ0:
    s_sub_u32 s3, s{sWave}, 8
    s_cmp_ge_u32 s3, 4
    s_cbranch_scc1 K1_NOZ2
    v_add_u32 v{vT3}, {HIST - 2048}, v{vT3}
    ds_write_b32 v{vT3}, v{vT2}
    s_branch K1_NOZ1
    K1_NOZ2:
    s_cmp_lt_u32 s{sWave}, 12
    s_cbranch_scc1 K1_NOZ1
    v_add_u32 v{vT3}, {MF - 3072}, v{vT3}
    ds_write_b32 v{vT3}, v{vT2}
    K1_NOZ1:
    s_mov_b32 s{sR}, 0
    s_mov_b32 s{sOdd}, 0xaaaaaaaa
    s_mov_b32 s{sOdd+1}, 0xaaaaaaaa
    s_movk_i32 s{s196}, {T*4}
    s_lshl_b32 s3, s{sWave}, 11
    s_add_u32 s3, s3, {PIECE}
    v_lshl_add_u32 v{vPB}, v{vT0}, 9, s3
    v_add_u32 v{vPB}, v{vPB}, v{vC16}
    s_and_b32 s{sPi}, s2, 7
    s_lshl_b32 s{sPi}, s{sPi}, 5
    s_lshr_b32 s{sT}, s2, 3
    s_add_u32 s{sPi}, s{sPi}, s{sT}
    s_mov_b32 s{sHB}, s{sPi}
    v_lshrrev_b32 v{vT2}, 2, v0
    v_lshlrev_b32 v{vGo}, 14, v{vT2}
    v_and_b32 v{vT2}, 3, v0
    v_lshl_add_u32 v{vGo}, v{vT2}, 4, v{vGo}
    v_mov_b32 v{vT3}, 1
    s_waitcnt lgkmcnt(0)
    s_barrier
    """)
    st.stamp(a)
    def early_dma():
        a(f"""
        v_bfe_u32 v{vT0}, v0, 4, 2
        v_and_b32 v{vT1}, 15, v0
        v_lshlrev_b32 v{vT2}, 2, v{vT0}
        v_xor_b32 v{vT2}, v{vT2}, v{vT1}
        v_lshlrev_b32 v{vT2}, 4, v{vT2}
        v_lshl_add_u32 v{vWl}, v{vT0}, 8, v{vT2}
        s_cmp_lt_u32 s{sWave}, 8
        s_cbranch_scc1 K2_L2
        s_sub_u32 s{sQ}, s{sWave}, 8
        """)
        def xt_dma(jreg):
            a(f"""
            s_lshl_b32 s3, s{jreg}, 2
            v_add_u32 v{vT2}, s3, v{vT0}
            v_xor_b32 v{vEnt}, v{vT2}, v{vT1}
            v_and_b32 v{vEnt}, 15, v{vEnt}
            v_lshlrev_b32 v{vEnt}, 4, v{vEnt}
            v_lshl_add_u32 v{vEnt}, v{vT2}, 8, v{vEnt}
            s_mul_i32 s3, s{sBeta}, {T*256}
            s_lshl_b32 s{sT}, s{jreg}, 10
            s_add_u32 s{sT}, s{sT}, {XT}
            s_mov_b32 m0, s{sT}
            s_nop 0
            buffer_load_dwordx4 v{vEnt}, s[{sX}:{sX+3}], s3 offen lds
            """)
        xt_dma(sQ)
        a(f"""
        s_cmp_ge_u32 s{sWave}, 13
        s_cbranch_scc1 K2_L3
        s_mov_b32 s{sRem}, s{sWave}
        """)
        xt_dma(sRem)
        a(f"""
        K2_L3:
        s_lshl_b32 s3, s{sQ}, 12
        s_add_u32 s{sT}, s3, {WQ}
        """)
        for i in range(4):
            a(f"""
            s_mov_b32 m0, s{sT}
            s_add_u32 s{sT}, s{sT}, 1024
            buffer_load_dwordx4 v{vWl}, s[{sWQ}:{sWQ+3}], s3 offen lds
            s_add_u32 s3, s3, 1024
            """)
        a("K2_L2:")
    if not opt.dmalate: early_dma()
    else:
        a(f"""
        v_bfe_u32 v{vT0}, v0, 4, 2
        v_and_b32 v{vT1}, 15, v0
        v_lshlrev_b32 v{vT2}, 2, v{vT0}
        v_xor_b32 v{vT2}, v{vT2}, v{vT1}
        v_lshlrev_b32 v{vT2}, 4, v{vT2}
        v_lshl_add_u32 v{vWl}, v{vT0}, 8, v{vT2}
        """)
    if opt.prefetch:
        a(f"""
        s_cmp_eq_u32 s{sWave}, 14
        s_cbranch_scc0 K1_NOPF
        s_mul_i32 s3, s2, 12544
        v_lshlrev_b32 v{vT2}, 7, v{vLane}
        buffer_load_dword v{vNeg+4}, v{vT2}, s[{sX}:{sX+3}], s3 offen
        s_add_u32 s3, s3, 8192
        v_cmp_gt_u32 vcc, 34, v{vLane}
        v_mov_b32 v{vEnt}, {OOB}
        s_nop 0
        v_cndmask_b32_e64 v{vT2}, v{vEnt}, v{vT2}, vcc
        buffer_load_dword v{vNeg+4}, v{vT2}, s[{sX}:{sX+3}], s3 offen
        K1_NOPF:
        """)
    sPiK = sHB
    srd_tail(a, sWV, 32768); srd_tail(a, sOUT, XBYTES)
    for i in range(8):
        a(f"v_mov_b32 v{vTot+i}, 0")
    a(f"""
    v_bfe_u32 v{vT2}, v{vLane}, 2, 1
    v_mul_u32_u24 v{vT2}, 12, v{vT2}
    v_and_b32 v{vT0}, 3, v{vLane}
    v_or_b32 v{vT2}, v{vT2}, v{vT0}
    v_lshlrev_b32 v{vUA}, 8, v{vLane}
    v_lshl_or_b32 v{vUA}, v{vT2}, 4, v{vUA}
    """)
    a(f"""
    s_and_b32 s{sP}, s{sWave}, 3
    s_bfe_u32 s{sNH}, s{sWave}, 0x10002
    s_cmp_ge_u32 s{sWave}, 8
    s_cbranch_scc1 K2_NOQA
    """)
    tile_a_addr(a, vWa, vLane, vT2, vT0, sP, WQ)
    a(f"""
    v_and_b32 v{vRow}, 31, v{vLane}
    s_lshl_b32 s3, s{sNH}, 5
    v_add_u32 v{vRow}, s3, v{vRow}
    """)
    tile_b_addr(a, vBa, vRow, vLane, vT0)
    a(f"""
    v_bfe_u32 v{vT2}, v{vRow}, 2, 1
    v_mul_u32_u24 v{vT2}, 12, v{vT2}
    v_and_b32 v{vT0}, 3, v{vRow}
    v_or_b32 v{vT2}, v{vT2}, v{vT0}
    v_lshrrev_b32 v{vT0}, 5, v{vLane}
    s_lshl_b32 s3, s{sP}, 2
    v_lshl_add_u32 v{vT0}, v{vT0}, 1, s3
    v_xor_b32 v{vT2}, v{vT2}, v{vT0}
    v_lshlrev_b32 v{vT2}, 4, v{vT2}
    v_lshl_add_u32 v{vQst}, v{vRow}, 8, v{vT2}
    K2_NOQA:
    """)
    a(f"""
    s_movk_i32 s{sT}, {CH//2}
    s_cmp_eq_u32 s2, {C-1}
    s_cselect_b32 s{sT}, {(E - (C-1)*CH)//2}, s{sT}
    v_cmp_gt_u32 vcc, s{sT}, v0
    s_and_saveexec_b64 s[{sSave}:{sSave+1}], vcc
    s_cbranch_execz K1_EDGE1_DONE
    s_mov_b32 s{sT}, -{T}
    s_mov_b32 s{sCnt}, {STAGE}
    s_cmp_lt_u32 s{sWave}, 8
    s_cbranch_scc1 K1_EW0
    s_waitcnt vmcnt({1 if opt.dmalate else 7})
    s_branch K1_EW1
    K1_EW0:
    s_waitcnt vmcnt(1)
    K1_EW1:
    """)
    st.stamp(a)
    for i in range(2):
        a(f"""
        v_mul_u32_u24 v{vT0}, 21400, v{vDst+i}
        v_lshrrev_b32 v{vT0}, 20, v{vT0}
        v_lshlrev_b32 v{vAdr+i}, 2, v{vT0}
        v_add_u32 v{vT2}, {HP}, v{vAdr+i}
        ds_add_rtn_u32 v{vRank+i}, v{vT2}, v{vT3}
        v_mad_i32_i24 v{vT1}, v{vT0}, s{sT}, v{vDst+i}
        v_lshl_or_b32 v{vEnt+i}, v{vSrc+i}, 8, v{vT1}
        v_mov_b32 v{vBk+i}, v{vT0}
        v_lshl_add_u32 v{vAdr+i}, v{vAdr+i}, 4, s{sCnt}
        """)
    a(f"v_mov_b32 v{vT2}, {JUNK}")
    for i in range(2):
        a(f"""
        s_waitcnt lgkmcnt({1-i})
        v_cmp_gt_u32 s[{sM+2*i}:{sM+2*i+1}], 16, v{vRank+i}
        v_lshl_add_u32 v{vT0}, v{vRank+i}, 2, v{vAdr+i}
        s_nop 0
        v_cndmask_b32_e64 v{vT0}, v{vT2}, v{vT0}, s[{sM+2*i}:{sM+2*i+1}]
        ds_write_b32 v{vT0}, v{vEnt+i}
        """)
    a(f"""
    s_and_b64 s[{sM+4}:{sM+5}], s[{sM}:{sM+1}], s[{sM+2}:{sM+3}]
    s_andn2_b64 s[{sM+4}:{sM+5}], exec, s[{sM+4}:{sM+5}]
    s_cbranch_scc0 K1_EDGE1_DONE
    s_mov_b64 s[{sM+6}:{sM+7}], exec
    """)
    for i in range(2):
        a(f"""
        s_andn2_b64 exec, s[{sM+6}:{sM+7}], s[{sM+2*i}:{sM+2*i+1}]
        s_cbranch_execz K1_OV_{i}
        v_and_b32 v{vT0}, 7, v{vBk+i}
        v_lshrrev_b32 v{vT1}, 5, v{vBk+i}
        v_lshl_add_u32 v{vT0}, v{vT1}, 3, v{vT0}
        v_lshlrev_b32 v{vT1}, 2, v{vT0}
        v_add_u32 v{vT1}, {H2}, v{vT1}
        ds_add_rtn_u32 v{vT1}, v{vT1}, v{vT3}
        v_bfe_u32 v{vT2}, v{vBk+i}, 3, 2
        v_lshl_or_b32 v{vT2}, v{vT2}, 6, v{vEnt+i}
        v_lshlrev_b32 v{vT0}, 4, v{vT0}
        v_add_u32 v{vT0}, {ST2}, v{vT0}
        s_waitcnt lgkmcnt(0)
        v_cmp_gt_u32 vcc, 4, v{vT1}
        v_lshl_add_u32 v{vT0}, v{vT1}, 2, v{vT0}
        s_mov_b64 s[{sM+8}:{sM+9}], exec
        s_and_b64 exec, exec, vcc
        ds_write_b32 v{vT0}, v{vT2}
        s_andn2_b64 exec, s[{sM+8}:{sM+9}], vcc
        s_cbranch_execz K1_OV_{i}
        v_mov_b32 v{vT0}, {OVC}
        ds_add_rtn_u32 v{vT0}, v{vT0}, v{vT3}
        s_waitcnt lgkmcnt(0)
        v_lshlrev_b32 v{vT0}, 2, v{vT0}
        ds_write_b32 v{vT0}, v{vEnt+i} offset:{OVL}
        ds_write_b32 v{vT0}, v{vBk+i} offset:{OVB}
        K1_OV_{i}:
        """)
    a(f"""
    K1_EDGE1_DONE:
    s_mov_b64 exec, s[{sSave}:{sSave+1}]
    v_lshlrev_b32 v{vT0}, 4, v0
    s_waitcnt lgkmcnt(0)
    s_barrier
    """)
    st.stamp(a)
    a(f"""
    s_cmp_ge_u32 s{sWave}, 8
    s_cbranch_scc1 K1_NOCOPY
    ds_read_b128 {vr(vNeg,4)}, v{vT0} offset:{STAGE}
    ds_read_b128 {vr(vNeg+4,4)}, v{vT0} offset:{STAGE + 8192}
    s_lshl_b32 s3, s{sPiK}, 6
    s_add_u32 s3, s3, {WS_CELLS}
    s_add_u32 s{sT}, s3, {128*CELLROW}
    s_waitcnt vmcnt(0)
    v_readfirstlane_b32 s{sNonce}, v{vNon}
    s_nop 3
    s_and_b32 s{sTag}, s{sNonce}, {(0xffffffff << TAGSH) & 0xffffffff}
    s_add_u32 s{sTag}, s{sTag}, {1 << TAGSH}
    s_waitcnt lgkmcnt(1)
    """)
    for i in range(4): a(f"v_or_b32 v{vNeg+i}, s{sTag}, v{vNeg+i}")
    a(f"""
    buffer_store_dwordx4 {vr(vNeg,4)}, v{vGo}, s[{sWS}:{sWS+3}], s3 offen {opt.cst}
    s_waitcnt lgkmcnt(0)
    """)
    for i in range(4, 8): a(f"v_or_b32 v{vNeg+i}, s{sTag}, v{vNeg+i}")
    a(f"""
    buffer_store_dwordx4 {vr(vNeg+4,4)}, v{vGo}, s[{sWS}:{sWS+3}], s{sT} offen {opt.cst}
    s_cmp_eq_u32 s{sWave}, 6
    s_cbranch_scc0 K1_NOX
    v_lshlrev_b32 v{vT1}, 4, v{vLane}
    v_add_u32 v{vT1}, {ST2}, v{vT1}
    ds_read_b128 {vr(vDst,4)}, v{vT1}
    v_lshlrev_b32 v{vT1}, 2, v{vLane}
    v_add_u32 v{vT1}, {H2}, v{vT1}
    ds_read_b32 v{vT1}, v{vT1}
    v_lshlrev_b32 v{vT2}, 12, v{vLane}
    s_lshl_b32 s3, s{sPiK}, 4
    s_add_u32 s3, s3, {WS_EXTRA}
    v_mov_b32 v{vT3}, {1 << 22}
    s_waitcnt lgkmcnt(0)
    v_cmp_lt_u32 vcc, 4, v{vT1}
    """)
    for i in range(4): a(f"v_or_b32 v{vDst+i}, s{sTag}, v{vDst+i}")
    a(f"""
    v_cndmask_b32_e64 v{vT3}, 0, v{vT3}, vcc
    v_or_b32 v{vDst+3}, v{vT3}, v{vDst+3}
    buffer_store_dwordx4 {vr(vDst,4)}, v{vT2}, s[{sWS}:{sWS+3}], s3 offen {opt.cst}
    K1_NOX:
    s_cmp_eq_u32 s{sWave}, 7
    s_cbranch_scc0 K1_DRAIN
    v_mov_b32 v{vT3}, {OVC}
    ds_read_b32 v{vRank}, v{vT3}
    s_waitcnt lgkmcnt(0)
    v_readfirstlane_b32 s{sCnt}, v{vRank}
    s_nop 3
    s_cmp_eq_u32 s{sCnt}, 0
    s_cbranch_scc1 K1_DRAIN
    s_min_u32 s{sCnt}, s{sCnt}, {CH}
    s_lshl_b32 s{sT}, s{sPiK}, 4
    s_add_u32 s{sT}, s{sT}, {WS_OVH}
    v_mov_b32 v{vT2}, s{sT}
    v_or_b32 v{vRank}, s{sTag}, v{vRank}
    s_mov_b64 exec, 1
    buffer_store_dword v{vRank}, v{vT2}, s[{sWS}:{sWS+3}], 0 offen sc1
    s_mov_b64 exec, -1
    s_mul_i32 s3, s{sPiK}, {OVF_STRIDE}
    s_add_u32 s3, s3, {WS_OVF}
    v_mov_b32 v{vT0}, v{vLane}
    K1_OVL:
    v_cmp_gt_u32 vcc, s{sCnt}, v{vT0}
    s_and_b64 exec, exec, vcc
    s_cbranch_execz K1_OVD
    v_lshlrev_b32 v{vT1}, 2, v{vT0}
    ds_read_b32 v{vDst}, v{vT1} offset:{OVL}
    ds_read_b32 v{vDst+1}, v{vT1} offset:{OVB}
    v_lshlrev_b32 v{vT1}, 3, v{vT0}
    s_waitcnt lgkmcnt(0)
    v_or_b32 v{vDst}, s{sTag}, v{vDst}
    v_or_b32 v{vDst+1}, s{sTag}, v{vDst+1}
    buffer_store_dwordx2 {vr(vDst,2)}, v{vT1}, s[{sWS}:{sWS+3}], s3 offen sc1
    v_add_u32 v{vT0}, 64, v{vT0}
    s_branch K1_OVL
    K1_OVD:
    s_mov_b64 exec, -1
    K1_DRAIN:
    {"s_waitcnt vmcnt(0)" if opt.drain else ""}
    s_branch K1_COPIED
    K1_NOCOPY:
    s_waitcnt vmcnt(0)
    v_readfirstlane_b32 s{sNonce}, v{vNon}
    s_nop 3
    s_and_b32 s{sTag}, s{sNonce}, {(0xffffffff << TAGSH) & 0xffffffff}
    s_add_u32 s{sTag}, s{sTag}, {1 << TAGSH}
    K1_COPIED:
    s_barrier
    """)
    st.stamp(a)
    st.stamp(a)
    a(f"""
    s_cmp_ge_u32 s{sWave}, 8
    s_cbranch_scc1 K2_NOQ
    """)
    vA8, vQAcc = vXB, vAcc
    Bq = [vE, vE+4, vQ, vQ+4]
    def a_reads(ks):
        a(f"ds_read_b64_tr_b16 {vr(vA8+4*ks,2)}, v{vWa} offset:{ks*4096}")
        a(f"ds_read_b64_tr_b16 {vr(vA8+4*ks+2,2)}, v{vWa} offset:{ks*4096 + 1024}")
    def b_read(ks):
        a(f"v_xor_b32 v{vT2}, {32*ks}, v{vBa}")
        a(f"ds_read_b128 {vr(Bq[ks & 3],4)}, v{vT2} offset:{XT}")
    def mfma(ks):
        c = "0" if ks == 0 else vr(vQAcc,16)
        a(f"v_mfma_f32_32x32x16_bf16 {vr(vQAcc,16)}, {vr(vA8+4*ks,4)}, {vr(Bq[ks & 3],4)}, {c}")
    for ks in range(4):
        a_reads(ks); b_read(ks)
    for ks in range(4):
        a("s_waitcnt lgkmcnt(9)")
        mfma(ks)
        a_reads(ks+4); b_read(ks+4)
    for ks in range(4, 8):
        a(f"s_waitcnt lgkmcnt({3*(7-ks)})")
        mfma(ks)
    a(f"""
    v_cmp_gt_u32 vcc, 52, v{vRow}
    v_xor_b32 v{vT2}, 16, v{vQst}
    s_nop 7
    s_nop 2
    """)
    for i in range(8):
        a(f"v_cvt_pk_bf16_f32 v{vA8+i}, v{vQAcc+2*i}, v{vQAcc+2*i+1}")
    a(f"""
    s_mov_b64 exec, vcc
    ds_write_b128 v{vQst}, {vr(vA8,4)} offset:{QS}
    ds_write_b128 v{vT2}, {vr(vA8+4,4)} offset:{QS}
    s_mov_b64 exec, -1
    K2_NOQ:
    """)
    st.stamp(a)
    a(f"""
    v_lshlrev_b32 v{vT0}, 4, v0
    s_lshl_b32 s3, s{sBeta}, 14
    s_add_u32 s3, s3, {WS_CELLS}
    s_mov_b32 s{sT}, {1 << 17}
    s_mov_b32 s{sQ}, {1 << TAGSH}
    K1_TP:
    buffer_load_dwordx4 {vr(vCand,4)}, v{vT0}, s[{sWS}:{sWS+3}], s3 offen sc1
    s_waitcnt vmcnt(0)
    """)
    for i in range(4): a(f"v_xor_b32 v{vCand+i}, s{sTag}, v{vCand+i}")
    a(f"""
    v_or3_b32 v{vT1}, v{vCand}, v{vCand+1}, v{vCand+2}
    v_or_b32 v{vT1}, v{vT1}, v{vCand+3}
    v_cmp_le_u32 vcc, s{sQ}, v{vT1}
    s_and_b64 exec, exec, vcc
    s_cbranch_execz K1_TPD
    s_sleep {opt.sleep}
    s_sub_u32 s{sT}, s{sT}, 1
    s_cmp_lg_u32 s{sT}, 0
    s_cbranch_scc1 K1_TP
    K1_TPD:
    s_mov_b64 exec, -1
    v_mov_b32 v{vHdr+3}, 0
    s_cmp_ge_u32 s{sWave}, 4
    s_cbranch_scc1 K1_NOXP
    s_and_b32 s3, s{sBeta}, 7
    s_lshr_b32 s{sCnt}, s{sBeta}, 5
    s_lshl_b32 s{sCnt}, s{sCnt}, 3
    s_add_u32 s3, s3, s{sCnt}
    s_lshl_b32 s3, s3, 12
    s_add_u32 s3, s3, {WS_EXTRA}
    s_mov_b32 s{sT}, {1 << 17}
    K1_XP:
    buffer_load_dwordx4 {vr(vHdr,4)}, v{vT0}, s[{sWS}:{sWS+3}], s3 offen sc1
    s_waitcnt vmcnt(0)
    """)
    for i in range(4): a(f"v_xor_b32 v{vHdr+i}, s{sTag}, v{vHdr+i}")
    a(f"""
    v_or3_b32 v{vT1}, v{vHdr}, v{vHdr+1}, v{vHdr+2}
    v_or_b32 v{vT1}, v{vT1}, v{vHdr+3}
    v_cmp_le_u32 vcc, s{sQ}, v{vT1}
    s_and_b64 exec, exec, vcc
    s_cbranch_execz K1_XPD
    s_sleep {opt.sleep}
    s_sub_u32 s{sT}, s{sT}, 1
    s_cmp_lg_u32 s{sT}, 0
    s_cbranch_scc1 K1_XP
    K1_XPD:
    s_mov_b64 exec, -1
    v_and_b32 v{vT1}, {1 << 22}, v{vHdr+3}
    v_cmp_ne_u32 vcc, 0, v{vT1}
    s_cbranch_vccz K1_NOXP
    s_mov_b64 exec, vcc
    s_mov_b32 s3, {WS_OVH}
    s_mov_b32 s{sT}, {1 << 17}
    K1_HP:
    buffer_load_dword v{vT1}, v{vT0}, s[{sWS}:{sWS+3}], s3 offen sc1
    s_waitcnt vmcnt(0)
    v_xor_b32 v{vT2}, s{sTag}, v{vT1}
    v_cmp_le_u32 vcc, s{sQ}, v{vT2}
    s_cbranch_vccz K1_HPD
    s_sleep 2
    s_sub_u32 s{sT}, s{sT}, 1
    s_cmp_lg_u32 s{sT}, 0
    s_cbranch_scc1 K1_HP
    K1_HPD:
    v_min_u32 v{vT2}, {CH}, v{vT2}
    v_lshlrev_b32 v{vT1}, 2, v0
    v_add_u32 v{vT1}, {MF}, v{vT1}
    ds_write_b32 v{vT1}, v{vT2}
    v_mov_b32 v{vT1}, {MAXC}
    ds_max_u32 v{vT1}, v{vT2}
    s_mov_b64 exec, -1
    K1_NOXP:
    """)
    a(f"""
    s_cmp_lt_u32 s{sWave}, 9
    s_cbranch_scc1 K1_NOWV
    s_sub_u32 s3, s{sWave}, 9
    s_mul_i32 s3, s3, 5120
    s_add_u32 s{sT}, s3, {WV}
    """)
    for i in range(5):
        a(f"""
        s_cmp_ge_u32 s3, 32768
        s_cbranch_scc1 K1_NOWV
        s_mov_b32 m0, s{sT}
        s_add_u32 s{sT}, s{sT}, 1024
        buffer_load_dwordx4 v{vWl}, s[{sWV}:{sWV+3}], s3 offen lds
        s_add_u32 s3, s3, 1024
        """)
    a(f"""
    K1_NOWV:
    v_mov_b32 v{vT3}, 1
    """)
    st.stamp(a)
    def decode_valu(word, i):
        m = sM + 2*i
        a(f"""
        v_lshlrev_b32 v{vN4+i}, 2, v{word}
        v_and_b32 v{vN4+i}, 0xfc, v{vN4+i}
        v_cmp_gt_u32 s[{m}:{m+1}], s{s196}, v{vN4+i}
        v_and_b32 v{vSo+i}, 0x003fff00, v{word}
        """)
    def decode_ds(i):
        m = sM + 2*i
        a(f"""
        s_mov_b64 exec, s[{m}:{m+1}]
        ds_add_rtn_u32 v{vRk+i}, v{vN4+i}, v{vT3} offset:{HIST}
        """)
    a("K2_DECODE:")
    for i in range(4):
        decode_valu(vCand+i, i)
    for i in range(4):
        decode_ds(i)
    a(f"""
    s_mov_b64 exec, -1
    s_cmp_eq_u32 s{sR}, 0
    s_cselect_b32 s{sT}, 4, 0
    s_cmp_ge_u32 s{sWave}, s{sT}
    s_cbranch_scc1 K2_NOHDR
    s_bfe_u32 s{sT}, s{sBeta}, 0x20003
    """)
    for i in range(4):
        w, m = vHdr + i, sM2 + 2*i
        a(f"""
        v_bfe_u32 v{vT0}, v{w}, 6, 2
        v_cmp_eq_u32 vcc, s{sT}, v{vT0}
        v_mov_b32 v{vT1}, {EMPTY}
        v_and_b32 v{vT2}, 0x003fff3f, v{w}
        s_nop 0
        v_cndmask_b32_e64 v{w}, v{vT1}, v{vT2}, vcc
        v_lshlrev_b32 v{vN42+i}, 2, v{w}
        v_and_b32 v{vN42+i}, 0xfc, v{vN42+i}
        v_cmp_gt_u32 s[{m}:{m+1}], s{s196}, v{vN42+i}
        v_and_b32 v{vSo2+i}, 0x003fff00, v{w}
        """)
    a(f"""
    s_or_b64 s[{sM+14}:{sM+15}], s[{sM2}:{sM2+1}], s[{sM2+2}:{sM2+3}]
    s_or_b64 s[{sM+14}:{sM+15}], s[{sM+14}:{sM+15}], s[{sM2+4}:{sM2+5}]
    s_or_b64 s[{sM+14}:{sM+15}], s[{sM+14}:{sM+15}], s[{sM2+6}:{sM2+7}]
    s_cbranch_scc0 K2_HDRD
    """)
    for i in range(4):
        m = sM2 + 2*i
        a(f"""
        s_mov_b64 exec, s[{m}:{m+1}]
        ds_add_rtn_u32 v{vRk2+i}, v{vN42+i}, v{vT3} offset:{HIST}
        """)
    a(f"""
    s_mov_b64 exec, -1
    s_branch K2_HDRD
    K2_NOHDR:
    s_mov_b64 s[{sM+14}:{sM+15}], 0
    K2_HDRD:
    s_waitcnt lgkmcnt(0)
    s_barrier
    """)
    st.stamp(a)
    a(f"""
    s_cmp_eq_u32 s2, 0
    s_cbranch_scc0 K2_NOEPOCH
    s_cmp_eq_u32 s{sWave}, 14
    s_cbranch_scc0 K2_NOEPOCH
    s_cmp_eq_u32 s{sR}, 0
    s_cbranch_scc0 K2_NOEPOCH
    v_mov_b32 v{vT0}, 0
    v_mov_b32 v{vT1}, s{sTag}
    s_mov_b64 exec, 1
    buffer_store_dword v{vT1}, v{vT0}, s[{sWS}:{sWS+3}], 0 offen sc1
    s_mov_b64 exec, -1
    s_waitcnt vmcnt(0)
    K2_NOEPOCH:
    """)
    vCn = vCand
    vPos = vHdr
    def sort_phase(q, tag):
        a(f"v_lshlrev_b32 v{vT2}, 2, v{vLane}")
        a(f"ds_read_b32 v{vCn}, v{vT2} offset:{HIST}")
        if q:
            for ks in range(4): a_reads(ks)
            for ks in range(4): b_read(ks)
            a("s_waitcnt lgkmcnt(12)")
        else:
            a("s_waitcnt lgkmcnt(0)")
        a(f"""
        v_add_u32 v{vPc}, 3, v{vCn}
        v_and_b32 v{vPc}, -4, v{vPc}
        v_mov_b32 v{vStart}, v{vPc}
        s_lshl_b32 s{sT}, s{sWave}, 2
        s_nop 0
        """)
        steps = ["row_shr:1 row_mask:0xf bank_mask:0xf bound_ctrl:1", "row_shr:2 row_mask:0xf bank_mask:0xf bound_ctrl:1",
                 "row_shr:4 row_mask:0xf bank_mask:0xf bound_ctrl:1", "row_shr:8 row_mask:0xf bank_mask:0xf bound_ctrl:1",
                 "row_bcast:15 row_mask:0xa bank_mask:0xf", "row_bcast:31 row_mask:0xc bank_mask:0xf"]
        for i, stp in enumerate(steps):
            a(f"v_add_u32_dpp v{vStart}, v{vStart}, v{vStart} {stp}")
            if i == 5: break
            if q and i >= 1:
                ks = i - 1
                if ks == 0: a("s_waitcnt lgkmcnt(0)")
                mfma(ks)
                a("s_nop 0")
            else:
                a("s_nop 1")
        a(f"""
        v_cmp_lt_u32 vcc, s{sT}, v{vPc}
        v_readlane_b32 s{sCnt}, v{vStart}, 63
        v_sub_u32 v{vStart}, v{vStart}, v{vPc}
        """)
        for i in range(4):
            a(f"ds_bpermute_b32 v{vPos+i}, v{vN4+i}, v{vStart}")
        a(f"""
        v_add_u32 v{vT0}, s{sT}, v{vStart}
        s_mov_b64 exec, vcc
        ds_write_b32 v{vT0}, v{vUA} offset:{UNODE}
        s_mov_b64 exec, -1
        """)
        if q:
            for ks in range(4, 8): a_reads(ks)
            for ks in range(4, 8): b_read(ks)
        a(f"""
        v_cmp_lt_u32 vcc, 64, v{vPc}
        s_cbranch_vccz K2_UND{tag}
        K2_UN{tag}:
        s_add_u32 s{sT}, s{sT}, 64
        v_cmp_lt_u32 vcc, s{sT}, v{vPc}
        s_cbranch_vccz K2_UND{tag}
        v_add_u32 v{vT0}, s{sT}, v{vStart}
        s_mov_b64 exec, vcc
        ds_write_b32 v{vT0}, v{vUA} offset:{UNODE}
        s_mov_b64 exec, -1
        s_branch K2_UN{tag}
        K2_UND{tag}:
        """)
        if not q:
            a(f"""
            s_sub_u32 s{sT}, s{sWave}, 8
            s_cmp_gt_u32 s{sT}, 4
            s_cbranch_scc1 K2_NOPAD
            v_mov_b32 v{vT2}, {OOB}
            s_cmp_gt_u32 s{sT}, 2
            s_cbranch_scc1 K2_TAILPAD
            v_sub_u32 v{vT1}, v{vPc}, v{vCn}
            v_add_u32 v{vT0}, v{vStart}, v{vCn}
            v_cmp_lt_u32 vcc, s{sT}, v{vT1}
            v_add_u32 v{vT0}, s{sT}, v{vT0}
            v_lshlrev_b32 v{vT0}, 2, v{vT0}
            s_mov_b64 exec, vcc
            ds_write_b32 v{vT0}, v{vT2} offset:{LIST}
            s_mov_b64 exec, -1
            s_branch K2_NOPAD
            K2_TAILPAD:
            v_lshlrev_b32 v{vT1}, 2, v{vLane}
            s_cmp_eq_u32 s{sT}, 3
            s_cbranch_scc0 K2_TAILU
            s_lshl_b32 s{sT}, s{sCnt}, 2
            v_add_u32 v{vT0}, s{sT}, v{vT1}
            s_mov_b64 exec, 0xfffffff
            ds_write_b32 v{vT0}, v{vT2} offset:{LIST}
            s_mov_b64 exec, -1
            s_branch K2_NOPAD
            K2_TAILU:
            v_add_u32 v{vT0}, s{sCnt}, v{vT1}
            v_mov_b32 v{vT2}, {DUMMY*256 + 16*((DUMMY & 3) | (12*((DUMMY >> 2) & 1)))}
            s_mov_b64 exec, 0x7f
            ds_write_b32 v{vT0}, v{vT2} offset:{UNODE}
            s_mov_b64 exec, -1
            K2_NOPAD:
            """)
        a(f"""
        s_add_u32 s3, s{sCnt}, 31
        s_lshr_b32 s3, s3, 5
        s_lshr_b32 s{sQ}, s3, 4
        s_and_b32 s{sRem}, s3, 15
        s_cmp_lt_u32 s{sWave}, s{sRem}
        s_cselect_b32 s{sNH}, 1, 0
        s_add_u32 s{sHB}, s{sQ}, s{sNH}
        s_min_u32 s3, s{sRem}, s{sWave}
        s_mul_i32 s{sT}, s{sQ}, s{sWave}
        s_add_u32 s{sT}, s{sT}, s3
        v_lshrrev_b32 v{vT0}, 4, v{vLane}
        s_lshl_b32 s3, s{sHB}, 1
        v_mul_u32_u24 v{vT0}, s3, v{vT0}
        s_lshl_b32 s3, s{sT}, 3
        v_add_u32 v{vT0}, s3, v{vT0}
        v_lshlrev_b32 v{vLA}, 4, v{vT0}
        v_lshlrev_b32 v{vUA}, 2, v{vT0}
        """)
        if q:
            a("s_waitcnt lgkmcnt(0)")
            for ks in range(4, 8): mfma(ks)
        else:
            a("s_waitcnt lgkmcnt(0)")
        for i in range(4):
            a(f"v_add_lshl_u32 v{vPos+i}, v{vPos+i}, v{vRk+i}, 2")
        for i in range(4):
            a(f"s_mov_b64 exec, s[{sM+2*i}:{sM+2*i+1}]")
            a(f"ds_write_b32 v{vPos+i}, v{vSo+i} offset:{LIST}")
        a(f"""
        s_mov_b64 exec, -1
        s_cmp_eq_u64 s[{sM+14}:{sM+15}], 0
        s_cbranch_scc1 K2_SC_DONE{tag}
        """)
        for i in range(4):
            a(f"ds_bpermute_b32 v{vPos+i}, v{vN42+i}, v{vStart}")
        a("s_waitcnt lgkmcnt(0)")
        for i in range(4):
            a(f"""
            v_add_lshl_u32 v{vPos+i}, v{vPos+i}, v{vRk2+i}, 2
            s_mov_b64 exec, s[{sM2+2*i}:{sM2+2*i+1}]
            ds_write_b32 v{vPos+i}, v{vSo2+i} offset:{LIST}
            s_mov_b64 exec, -1
            """)
        a(f"K2_SC_DONE{tag}:")
        if q:
            a(f"""
            v_cmp_gt_u32 vcc, 52, v{vRow}
            v_xor_b32 v{vT3}, 16, v{vQst}
            s_nop 5
            """)
            for i in range(8):
                a(f"v_cvt_pk_bf16_f32 v{vA8+i}, v{vQAcc+2*i}, v{vQAcc+2*i+1}")
            a(f"""
            s_mov_b64 exec, vcc
            ds_write_b128 v{vQst}, {vr(vA8,4)} offset:{QS}
            ds_write_b128 v{vT3}, {vr(vA8+4,4)} offset:{QS}
            s_mov_b64 exec, -1
            """)
    sort_phase(False, "P")
    a("K2_SORT_DONE:")
    st.stamp(a)
    a(f"""
    s_waitcnt vmcnt(0) lgkmcnt(0)
    s_barrier
    """)
    st.stamp(a)
    if "cyc" in opt.exp: st.stamp(a, True)
    if opt.prio: a("s_setprio 3")
    a(f"""
    s_cmp_eq_u32 s{sHB}, 0
    s_cbranch_scc1 K2_NOMAIN
    ds_read_b128 {vr(vE,4)}, v{vLA} offset:{LIST}
    ds_read_b128 {vr(vE+4,4)}, v{vLA} offset:{LIST+16}
    ds_read_b64 {vr(vQC,2)}, v{vUA} offset:{UNODE}
    """)
    for i in range(8):
        a(f"v_mov_b32 v{vAcc+i}, 0")
    a("s_waitcnt lgkmcnt(1)")
    for u in range(8):
        a(f"v_add_u32 v{vE+u}, v{vE+u}, v{vC16}")
        a(f"buffer_load_dwordx4 {vr(vXA+4*u,4)}, v{vE+u}, s[{sX}:{sX+3}], 0 offen")
        if u == 0:
            a(f"""
            s_waitcnt lgkmcnt(0)
            v_xor_b32 v{vT0}, v{vQC}, v{vC16}
            v_xor_b32 v{vT1}, v{vQC+1}, v{vC16}
            ds_read_b128 {vr(vQ,4)}, v{vT0} offset:{QS}
            ds_read_b128 {vr(vQ+4,4)}, v{vT1} offset:{QS}
            v_mov_b32 v{vPrev}, v{vQC}
            """)
    if "bstamp" in opt.exp: st.stamp(a)
    wv_id = [0]
    def wv_dma():
        i = wv_id[0]; wv_id[0] += 1
        a(f"""
        s_cmp_eq_u32 s{sR}, 0
        s_cbranch_scc0 K2_NOWV{i}
        s_lshl_b32 s3, s{sWave}, 11
        s_add_u32 s{sT}, s3, {WV}
        s_mov_b32 m0, s{sT}
        s_add_u32 s{sT}, s{sT}, 1024
        buffer_load_dwordx4 v{vWl}, s[{sWV}:{sWV+3}], s3 offen lds
        s_mov_b32 m0, s{sT}
        s_add_u32 s3, s3, 1024
        buffer_load_dwordx4 v{vWl}, s[{sWV}:{sWV+3}], s3 offen lds
        K2_NOWV{i}:
        """)
    flush_id = [0]
    def flush(prev, masked):
        fid = flush_id[0]; flush_id[0] += 1
        t = ""
        if masked is not None:
            t += f"""
            v_cmp_ne_u32 vcc, v{masked}, v{prev}
            s_cbranch_vccz K2_FL{fid}
            s_mov_b64 exec, vcc
            """
        t += f"""
        v_and_b32 v{vT0}, 0xffffff00, v{prev}
        v_lshl_add_u32 v{vT0}, v{vT0}, 1, v{vPB}
        ds_write_b128 v{vT0}, {vr(vAcc,4)}
        ds_write_b128 v{vT0}, {vr(vAcc+4,4)} offset:256
        """
        if masked is not None:
            for i in range(8):
                t += f"v_mov_b32 v{vAcc+i}, 0\n"
            t += f"""
            s_mov_b64 exec, -1
            K2_FL{fid}:
            """
        return t
    def dots(X, waits):
        for half in range(2):
            a(waits[half])
            if "nodots" in opt.exp: continue
            for r in range(4):
                for u in range(4*half, 4*half+4):
                    if r == 0:
                        a(f"v_dot2_f32_bf16 v{vP+u}, v{X+4*u}, v{vQ+4*half}, 0")
                    else:
                        a(f"v_dot2c_f32_bf16 v{vP+u}, v{X+4*u+r}, v{vQ+4*half+r}")
    def chain(al):
        c = []
        for j in range(4):
            c.append(f"v_add_f32_dpp v{vP+j}, v{vP+j}, v{vP+j} row_mirror row_mask:0xf bank_mask:0x3")
        for j in range(4):
            c.append(f"v_add_f32_dpp v{vP+j}, v{vP+j+4}, v{vP+j+4} row_mirror row_mask:0xf bank_mask:0xc")
        for j in range(2):
            c.append(f"v_add_f32_dpp v{vP+j}, v{vP+j}, v{vP+j} row_half_mirror row_mask:0xf bank_mask:0x5")
        for j in range(2):
            c.append(f"v_add_f32_dpp v{vP+j}, v{vP+j+2}, v{vP+j+2} row_half_mirror row_mask:0xf bank_mask:0xa")
        c.append(f"v_add_f32_dpp v{vP+2}, v{vP}, v{vP} quad_perm:[1,0,3,2] row_mask:0xf bank_mask:0xf")
        c.append(f"v_add_f32_dpp v{vP+3}, v{vP+1}, v{vP+1} quad_perm:[1,0,3,2] row_mask:0xf bank_mask:0xf")
        c.append(f"v_cndmask_b32_e64 v{vP}, v{vP+2}, v{vP+3}, s[{sOdd}:{sOdd+1}]")
        c.append(f"v_add_f32_dpp v{vP}, v{vP}, v{vP} quad_perm:[2,3,0,1] row_mask:0xf bank_mask:0xf")
        if opt.mimic:
            c += [f"v_cvt_pk_bf16_f32 v{vP}, v{vP}, v{vP}", f"v_and_b32 v{vP}, 0xffff0000, v{vP}",
                  f"v_mul_f32 v{vP}, 0x3db504f3, v{vP}", f"v_cvt_pk_bf16_f32 v{vP}, v{vP}, v{vP}",
                  f"v_and_b32 v{vP}, 0xffff0000, v{vP}", f"v_mul_f32 v{vP}, 0xbfb8aa3b, v{vP}"]
        else:
            c.append(f"v_mul_f32 v{vP}, 0xbe0293ee, v{vP}")
        c += [f"v_exp_f32 v{vP}, v{vP}", f"v_add_f32 v{vP}, 1.0, v{vP}", f"v_rcp_f32 v{vP}, v{vP}",
              f"v_cvt_pk_bf16_f32 v{al}, v{vP}, 0", f"v_cvt_pk_bf16_f32 v{al+1}, 0, v{vP}"]
        return c
    def chain_alone(al):
        c = chain(al)
        gaps = {9: 1, 11: 1, 14: 2, 17 + (5 if opt.mimic else 0): 1, 19 + (5 if opt.mimic else 0): 1}
        for i, ins in enumerate(c):
            a(ins)
            if i in gaps: a(f"s_nop {gaps[i]-1}")
    def agg_stream(X, al, loads, Xdst, qp=None):
        out = []
        qp = vQP if qp is None else qp
        for half in range(2):
            if half == 0:
                out.append(('x', flush(vPrev, qp)))
            else:
                out.append(('x', "s_nop 1\n" + flush(qp, qp+1)))
            for u in range(4*half, 4*half+4):
                k = 4*(u >> 1) + (u & 1)
                for r in range(4):
                    if "noagg" in opt.exp:
                        out.append(('v', "s_nop 0")); out.append(('v', "s_nop 0")); continue
                    out.append(('v', f"v_dot2c_f32_bf16_dpp v{vAcc+2*r}, v{al}, v{X+4*u+r} row_newbcast:{k} row_mask:0xf bank_mask:0xf"))
                    out.append(('v', f"v_dot2c_f32_bf16_dpp v{vAcc+2*r+1}, v{al+1}, v{X+4*u+r} row_newbcast:{k} row_mask:0xf bank_mask:0xf"))
                if loads and "noload" not in opt.exp:
                    out.append(('x', f"buffer_load_dwordx4 {vr(Xdst+4*u,4)}, v{vE+u}, s[{sX}:{sX+3}], 0 offen"))
        return out
    def next_prep():
        a("s_waitcnt lgkmcnt(0)")
        a(f"v_xor_b32 v{vT0}, v{vQN}, v{vC16}")
        a(f"v_xor_b32 v{vT1}, v{vQN+1}, v{vC16}")
    def rotate(nxt):
        a(f"v_mov_b32 v{vQP}, v{vQC}")
        a(f"v_mov_b32 v{vQP+1}, v{vQC+1}")
        if nxt:
            a(f"v_mov_b32 v{vQC}, v{vQN}")
            a(f"v_mov_b32 v{vQC+1}, v{vQN+1}")
            a(f"v_add_u32 v{vLA}, 32, v{vLA}")
            a(f"v_add_u32 v{vUA}, 8, v{vUA}")
    def mid(cur, prev, al_cur, al_prev, nxt):
        a("s_waitcnt lgkmcnt(0)")
        if nxt:
            a(f"""
            ds_read_b128 {vr(vE,4)}, v{vLA} offset:{LIST+32}
            ds_read_b128 {vr(vE+4,4)}, v{vLA} offset:{LIST+48}
            ds_read_b64 {vr(vQN,2)}, v{vUA} offset:{UNODE+8}
            """)
        dots(cur, ("s_waitcnt vmcnt(4)", "s_waitcnt vmcnt(0)"))
        if nxt:
            next_prep()
            for u in range(8):
                a(f"v_add_u32 v{vE+u}, v{vE+u}, v{vC16}")
            a(f"ds_read_b128 {vr(vQ,4)}, v{vT0}")
            a(f"ds_read_b128 {vr(vQ+4,4)}, v{vT1}")
        else:
            a("s_nop 2")
        c = chain(al_cur)
        s_ = agg_stream(prev, al_prev, nxt, prev)
        nv = sum(1 for k, _ in s_ if k == 'v')
        ci, vi = 0, 0
        for k, t in s_:
            a(t)
            if k == 'v':
                vi += 1
                if ci < len(c) and vi >= (ci + 1) * nv // (len(c) + 1) and vi % 1 == 0:
                    a(c[ci]); ci += 1
        assert ci == len(c)
        a(f"v_mov_b32 v{vPrev}, v{vQP+1}")
        rotate(nxt)
    def final(X, al):
        for k, t in agg_stream(X, al, False, None):
            a(t)
        a("s_nop 2")
        a(flush(vQP+1, None))
        a("s_branch K2_MAIN_DONE")
    def roll_body(nxt):
        al = vAl[0]
        a("s_waitcnt lgkmcnt(0)")
        if nxt:
            a(f"""
            ds_read_b128 {vr(vE,4)}, v{vLA} offset:{LIST+32}
            ds_read_b128 {vr(vE+4,4)}, v{vLA} offset:{LIST+48}
            ds_read_b64 {vr(vQN,2)}, v{vUA} offset:{UNODE+8}
            """)
        dots(vXA, ("s_waitcnt vmcnt(4)", "s_waitcnt vmcnt(0)"))
        fill = []
        if nxt:
            next_prep()
            a(f"v_add_u32 v{vE}, v{vE}, v{vC16}")
            fill = [f"v_add_u32 v{vE+u}, v{vE+u}, v{vC16}" for u in range(1, 8)]
        else:
            a("s_nop 2")
        c = chain(al)
        gaps = {11: 1, 14: 2, 17 + (5 if opt.mimic else 0): 1, 19 + (5 if opt.mimic else 0): 1}
        for i, ins in enumerate(c):
            a(ins)
            if i == 3 and nxt:
                a(f"ds_read_b128 {vr(vQ,4)}, v{vT0} offset:{QS}")
                a(f"ds_read_b128 {vr(vQ+4,4)}, v{vT1} offset:{QS}")
            for _ in range(gaps.get(i, 0)):
                a(fill.pop(0) if fill else "s_nop 0")
        while fill: a(fill.pop(0))
        a("s_nop 0")
        for k, t in agg_stream(vXA, al, nxt, vXA, vQC):
            a(t)
        a(f"v_mov_b32 v{vPrev}, v{vQC+1}")
        if nxt:
            a(f"v_mov_b32 v{vQC}, v{vQN}")
            a(f"v_mov_b32 v{vQC+1}, v{vQN+1}")
            a(f"v_add_u32 v{vLA}, 32, v{vLA}")
            a(f"v_add_u32 v{vUA}, 8, v{vUA}")
    if True:
        a(f"""
        s_cmp_eq_u32 s{sHB}, 1
        s_cbranch_scc1 K2_LAST
        K2_LOOP:
        """)
        if opt.prio:
            a(f"""
            s_cmp_ge_u32 s{sHB}, 4
            s_cbranch_scc1 K2_PR0
            s_setprio 2
            s_cmp_eq_u32 s{sHB}, 3
            s_cbranch_scc1 K2_PR0
            s_setprio 1
            K2_PR0:
            """)
        roll_body(True)
        a(f"""
        s_sub_u32 s{sHB}, s{sHB}, 1
        s_cmp_gt_u32 s{sHB}, 1
        s_cbranch_scc1 K2_LOOP
        K2_LAST:
        """)
        if opt.prio: a("s_setprio 0")
        roll_body(False)
        a("s_nop 2")
        a(flush(vPrev, None))
    a("s_branch K2_MAIN_DONE")
    a("K2_NOMAIN:")
    a("K2_MAIN_DONE:")
    if opt.prio: a("s_setprio 0")
    if "cyc" in opt.exp: st.stamp(a, True)
    st.stamp(a)
    a(f"""
    s_cmp_eq_u32 s{sR}, 0
    s_cbranch_scc0 K2_NRDONE
    v_mov_b32 v{vT3}, {MAXC}
    ds_read_b32 v{vT3}, v{vT3}
    s_waitcnt lgkmcnt(0)
    v_readfirstlane_b32 s3, v{vT3}
    s_nop 3
    s_min_u32 s3, s3, {CH}
    s_add_u32 s3, s3, 7
    s_lshr_b32 s3, s3, 3
    s_add_u32 s{sNR}, s3, 1
    K2_NRDONE:
    """)
    vSf, vSl = vE, vE+1
    a(f"""
    s_cmp_eq_u32 s{sWave}, 15
    s_cbranch_scc0 K2_NOTBL
    s_add_u32 s3, s{sQ}, 1
    s_lshl_b32 s3, s3, 1
    v_cvt_f32_u32 v{vT0}, s3
    s_mul_i32 s3, s3, s{sRem}
    s_lshl_b32 s{sP}, s3, 2
    s_lshl_b32 s3, s{sQ}, 1
    v_cvt_f32_u32 v{vT1}, s3
    v_rcp_f32 v{vT0}, v{vT0}
    v_rcp_f32 v{vT1}, v{vT1}
    s_lshl_b32 s3, s{sRem}, 2
    """)
    for (dst, last) in ((vSf, False), (vSl, True)):
        if not last:
            a(f"v_lshrrev_b32 v{vT2}, 2, v{vStart}")
        else:
            a(f"""
            v_add_u32 v{vT2}, v{vStart}, v{vPc}
            v_lshrrev_b32 v{vT2}, 2, v{vT2}
            v_add_u32 v{vT2}, -1, v{vT2}
            """)
        a(f"""
        v_cmp_gt_u32 vcc, s{sP}, v{vT2}
        v_cvt_f32_u32 v{vT3}, v{vT2}
        v_add_f32 v{vT3}, 0.5, v{vT3}
        v_mul_f32 v{vT3}, v{vT3}, v{vT0}
        v_cvt_u32_f32 v{vT3}, v{vT3}
        v_subrev_u32 v{vT2}, s{sP}, v{vT2}
        v_cvt_f32_u32 v{vT2}, v{vT2}
        v_add_f32 v{vT2}, 0.5, v{vT2}
        v_mul_f32 v{vT2}, v{vT2}, v{vT1}
        v_cvt_u32_f32 v{vT2}, v{vT2}
        v_add_u32 v{vT2}, s3, v{vT2}
        v_cndmask_b32_e64 v{dst}, v{vT2}, v{vT3}, vcc
        """)
    a(f"""
    v_sub_u32 v{vT0}, v{vSl}, v{vSf}
    v_add_u32 v{vT0}, 1, v{vT0}
    v_cmp_lt_u32 vcc, 0, v{vPc}
    v_add_u32 v{vT1}, v{vSf}, v{vLane}
    v_lshlrev_b32 v{vT1}, 9, v{vT1}
    v_cndmask_b32_e64 v{vT0}, 0, v{vT0}, vcc
    v_add_u32 v{vT1}, {PIECE}, v{vT1}
    v_lshlrev_b32 v{vT3}, 2, v{vLane}
    v_mov_b32 v{vT2}, {ZROW}
    ds_write_b32 v{vT3}, v{vT0} offset:{NPC}
    """)
    for j in range(4):
        a(f"""
        v_cmp_lt_u32 vcc, {j}, v{vT0}
        v_add_u32 v{vT3}, {512*j}, v{vT1}
        s_nop 0
        v_cndmask_b32_e64 v{vE+4+j}, v{vT2}, v{vT3}, vcc
        """)
    a(f"""
    v_lshlrev_b32 v{vT0}, 4, v{vLane}
    ds_write_b128 v{vT0}, {vr(vE+4,4)} offset:{TBL}
    K2_NOTBL:
    """)
    vA8 = vXB
    a(f"""
    s_add_u32 s3, s{sR}, 1
    s_cmp_ge_u32 s3, s{sNR}
    s_cselect_b32 s{sT}, 8, 0
    s_cmp_ge_u32 s{sWave}, s{sT}
    s_cbranch_scc1 K2_NOAA
    s_and_b32 s{sP}, s{sWave}, 3
    s_lshr_b32 s{sNH}, s{sWave}, 2
    """)
    tile_a_addr(a, vWa, vLane, vT2, vT3, sP, WV)
    for ks in range(8):
        if ks == 6: a("s_waitcnt lgkmcnt(4)")
        a(f"ds_read_b64_tr_b16 {vr(vA8+4*ks,2)}, v{vWa} offset:{ks*4096}")
        a(f"ds_read_b64_tr_b16 {vr(vA8+4*ks+2,2)}, v{vWa} offset:{ks*4096 + 1024}")
    a(f"""
    v_and_b32 v{vRow}, 31, v{vLane}
    s_lshl_b32 s3, s{sNH}, 5
    v_add_u32 v{vRow}, s3, v{vRow}
    """)
    tile_b_addr(a, vBa, vRow, vLane, vT3)
    a(f"""
    K2_NOAA:
    s_waitcnt lgkmcnt(0)
    s_barrier
    """)
    st.stamp(a)
    vB = vE
    vRd = vXA
    vNp = vT3
    a(f"""
    s_cmp_ge_u32 s{sWave}, 13
    s_cbranch_scc1 K2_RED_DONE
    v_lshrrev_b32 v{vT0}, 4, v{vLane}
    s_lshl_b32 s3, s{sWave}, 2
    v_add_u32 v{vT0}, s3, v{vT0}
    v_lshlrev_b32 v{vT1}, 4, v{vT0}
    v_lshlrev_b32 v{vT2}, 2, v{vT0}
    ds_read_b128 {vr(vB,4)}, v{vT1} offset:{TBL}
    ds_read_b32 v{vNp}, v{vT2} offset:{NPC}
    s_waitcnt lgkmcnt(0)
    """)
    for j in range(3):
        a(f"""
        v_add_u32 v{vB+j}, v{vB+j}, v{vC16}
        ds_read_b128 {vr(vRd+8*j,4)}, v{vB+j}
        ds_read_b128 {vr(vRd+8*j+4,4)}, v{vB+j} offset:256
        """)
    for j in range(3):
        a(f"s_waitcnt lgkmcnt({4-2*j})")
        for i in range(8):
            a(f"v_add_f32 v{vTot+i}, v{vTot+i}, v{vRd+8*j+i}")
    a(f"""
    s_mov_b32 s{sT}, 3
    K2_XL:
    v_cmp_lt_u32 vcc, s{sT}, v{vNp}
    s_cbranch_vccz K2_RED_DONE
    s_lshl_b32 s3, s{sT}, 9
    v_add_u32 v{vT0}, s3, v{vB}
    s_mov_b64 exec, vcc
    ds_read_b128 {vr(vRd,4)}, v{vT0}
    ds_read_b128 {vr(vRd+4,4)}, v{vT0} offset:256
    s_waitcnt lgkmcnt(0)
    """)
    for i in range(8):
        a(f"v_add_f32 v{vTot+i}, v{vTot+i}, v{vRd+i}")
    a(f"""
    s_mov_b64 exec, -1
    s_add_u32 s{sT}, s{sT}, 1
    s_branch K2_XL
    K2_RED_DONE:
    s_add_u32 s{sR}, s{sR}, 1
    s_cmp_ge_u32 s{sR}, s{sNR}
    s_cbranch_scc1 K2_EPI
    s_barrier
    """)
    a(f"""
    s_cmp_ge_u32 s{sWave}, 4
    s_cbranch_scc1 K2_RZ
    v_mov_b32 v{vT2}, 0
    v_lshlrev_b32 v{vT3}, 2, v0
    ds_write_b32 v{vT3}, v{vT2} offset:{HIST}
    K2_RZ:
    v_mov_b32 v{vCand}, {EMPTY}
    v_mov_b32 v{vCand+1}, {EMPTY}
    v_mov_b32 v{vCand+2}, {EMPTY}
    v_mov_b32 v{vCand+3}, {EMPTY}
    v_lshrrev_b32 v{vT0}, 2, v0
    v_lshlrev_b32 v{vT2}, 2, v{vT0}
    v_add_u32 v{vT2}, {MF}, v{vT2}
    ds_read_b32 v{vT3}, v{vT2}
    v_lshlrev_b32 v{vT0}, 14, v{vT0}
    v_add_u32 v{vT0}, {WS_OVF}, v{vT0}
    s_lshl_b32 s3, s{sR}, 3
    s_sub_u32 s3, s3, 8
    v_and_b32 v{vT1}, 3, v0
    v_lshl_add_u32 v{vT1}, v{vT1}, 1, s3
    v_lshl_add_u32 v{vT0}, v{vT1}, 3, v{vT0}
    s_mov_b32 s{sQ}, {1 << TAGSH}
    s_mov_b32 s{sT}, {1 << 17}
    s_waitcnt lgkmcnt(0)
    v_cmp_lt_u32 vcc, v{vT1}, v{vT3}
    s_and_saveexec_b64 s[{sSave}:{sSave+1}], vcc
    s_cbranch_execz K2_R1
    v_add_u32 v{vT1}, 1, v{vT1}
    v_cmp_lt_u32 s[{sM}:{sM+1}], v{vT1}, v{vT3}
    K2_RP:
    buffer_load_dwordx4 {vr(vSo,4)}, v{vT0}, s[{sWS}:{sWS+3}], 0 offen sc1
    s_waitcnt vmcnt(0)
    """)
    for i in range(4): a(f"v_xor_b32 v{vSo+i}, s{sTag}, v{vSo+i}")
    a(f"""
    v_or_b32 v{vT1}, v{vSo+2}, v{vSo+3}
    v_cndmask_b32_e64 v{vT1}, 0, v{vT1}, s[{sM}:{sM+1}]
    v_or3_b32 v{vT1}, v{vT1}, v{vSo}, v{vSo+1}
    v_cmp_le_u32 vcc, s{sQ}, v{vT1}
    s_cbranch_vccz K2_RPD
    s_sleep 2
    s_sub_u32 s{sT}, s{sT}, 1
    s_cmp_lg_u32 s{sT}, 0
    s_cbranch_scc1 K2_RP
    K2_RPD:
    v_cmp_eq_u32 vcc, s{sBeta}, v{vSo+1}
    v_cmp_eq_u32 s[{sM+2}:{sM+3}], s{sBeta}, v{vSo+3}
    s_nop 0
    s_and_b64 s[{sM+2}:{sM+3}], s[{sM+2}:{sM+3}], s[{sM}:{sM+1}]
    v_cndmask_b32_e64 v{vCand}, v{vCand}, v{vSo}, vcc
    v_cndmask_b32_e64 v{vCand+1}, v{vCand+1}, v{vSo+2}, s[{sM+2}:{sM+3}]
    K2_R1:
    s_mov_b64 exec, s[{sSave}:{sSave+1}]
    v_bfe_u32 v{vT2}, v{vLane}, 2, 1
    v_mul_u32_u24 v{vT2}, 12, v{vT2}
    v_and_b32 v{vT3}, 3, v{vLane}
    v_or_b32 v{vT2}, v{vT2}, v{vT3}
    v_lshlrev_b32 v{vUA}, 8, v{vLane}
    v_lshl_or_b32 v{vUA}, v{vT2}, 4, v{vUA}
    v_mov_b32 v{vT3}, 1
    s_waitcnt lgkmcnt(0)
    s_barrier
    s_branch K2_DECODE
    K2_EPI:
    """)
    st.stamp(a)
    vAcc16, vB8 = 24, vXA
    a(f"""
    s_cmp_ge_u32 s{sWave}, 13
    s_cbranch_scc1 K2_WB_DONE
    v_lshrrev_b32 v{vT0}, 4, v{vLane}
    s_lshl_b32 s3, s{sWave}, 2
    v_add_u32 v{vT0}, s3, v{vT0}
    v_lshlrev_b32 v{vT1}, 4, v{vT0}
    v_xor_b32 v{vT1}, v{vT1}, v{vC16}
    v_and_b32 v{vT1}, 0xf0, v{vT1}
    v_lshl_add_u32 v{vT0}, v{vT0}, 8, v{vT1}
    """)
    for i in range(4):
        a(f"v_cvt_pk_bf16_f32 v{vP+i}, v{vTot+2*i}, v{vTot+2*i+1}")
    a(f"""
    ds_write_b128 v{vT0}, {vr(vP,4)} offset:{AGGB}
    K2_WB_DONE:
    s_cmp_ge_u32 s{sWave}, 8
    s_cbranch_scc1 K2_EB
    """)
    for ks in range(8):
        a(f"v_xor_b32 v{vE+ks}, {32*ks}, v{vBa}")
    a(f"""
    s_mul_i32 s3, s{sBeta}, {T*256}
    s_lshl_b32 s{sCnt}, s{sP}, 6
    s_add_u32 s3, s3, s{sCnt}
    v_lshrrev_b32 v{vT0}, 5, v{vLane}
    v_lshlrev_b32 v{vT1}, 8, v{vRow}
    v_lshl_add_u32 v{vT1}, v{vT0}, 5, v{vT1}
    v_add_u32 v{vT1}, s3, v{vT1}
    K2_EB:
    s_waitcnt lgkmcnt(0)
    s_barrier
    s_cmp_ge_u32 s{sWave}, 8
    s_cbranch_scc1 K2_FIN
    """)
    for ks in range(8):
        a(f"ds_read_b128 {vr(vB8+4*ks,4)}, v{vE+ks} offset:{AGGB}")
    a(f"v_cmp_gt_u32 vcc, {T}, v{vRow}")
    for ks in range(8):
        a(f"s_waitcnt lgkmcnt({7-ks})")
        c = "0" if ks == 0 else vr(vAcc16,16)
        a(f"v_mfma_f32_32x32x16_bf16 {vr(vAcc16,16)}, {vr(vA8+4*ks,4)}, {vr(vB8+4*ks,4)}, {c}")
    a("s_nop 7")
    a("s_nop 3")
    for i in range(8):
        a(f"v_cvt_pk_bf16_f32 v{vQ+i}, v{vAcc16+2*i}, v{vAcc16+2*i+1}")
    a(f"""
    s_and_saveexec_b64 s[{sSave}:{sSave+1}], vcc
    s_cbranch_execz K2_ST_DONE
    buffer_store_dwordx4 {vr(vQ,4)}, v{vT1}, s[{sOUT}:{sOUT+3}], 0 offen {opt.outst}
    buffer_store_dwordx4 {vr(vQ+4,4)}, v{vT1}, s[{sOUT}:{sOUT+3}], 0 offen offset:16 {opt.outst}
    K2_ST_DONE:
    s_mov_b64 exec, s[{sSave}:{sSave+1}]
    K2_FIN:
    """)
    st.stamp(a)
    if opt.stamps:
        a("s_waitcnt vmcnt(0)")
        st.stamp(a)
    st.flush(a, sWS, vT0, sWave)
    a("""
    K2_END:
    s_endpgm
    """)
    return a.text(), LDS, 128

def build(opt):
    k, lds, v = gen_k(opt)
    n = NAME + "_kernel"
    out = HEADER
    for _ in range(opt.rep):
        out += f"; @launch kernel={n} grid=({NB},1,1) block=(1024,1,1) lds={lds}\n" if opt.aslist or opt.rep > 1 else f"; @launch grid=({NB},1,1) block=(1024,1,1) lds={lds}\n"
    out += '.amdgcn_target "amdgcn-amd-amdhsa--gfx950"\n.text\n'
    out += f".globl {n}\n.p2align 8\n.type {n},@function\n" + k
    out += '.section .rodata,"a"\n.p2align 6\n' + kd(n, v)
    return out

def parse(argv=None):
    p = argparse.ArgumentParser()
    p.add_argument("-o", default="cdna_kernels/" + NAME + ".s")
    p.add_argument("--stamps", action="store_true")
    p.add_argument("--prefetch", type=int, default=1)
    p.add_argument("--mimic", type=int, default=0)
    p.add_argument("--prio", type=int, default=1)
    p.add_argument("--keep", default="")
    p.add_argument("--exp", default="")
    p.add_argument("--outst", default="")
    p.add_argument("--sleep", type=int, default=1)
    p.add_argument("--drain", type=int, default=1)
    p.add_argument("--cst", default="sc1")
    p.add_argument("--dmalate", type=int, default=0)
    p.add_argument("--rep", type=int, default=1)
    p.add_argument("--aslist", type=int, default=0)
    p.add_argument("--style", default="roll")
    return p.parse_args(argv)

if __name__ == "__main__":
    o = parse()
    open(o.o, "w").write(build(o))
    print("wrote", o.o)
```

```python
import sys, argparse
from gen import A, vr, Stamps, scan64, kd, HEADER, NAME

N, E, D = 12500, 400000, 128
T = 49
NB = 256
CH = 1564
C = 256
XBYTES = N * 256
EBYTES = E * 4
WS_NONCE = 0
WS_OVH = 0x1000
WS_EXTRA = 0x40000
WS_CELLS = 0x100000
CELLROW = 16384
WS_OVF = 0x500000
OVF_STRIDE = 16384
WS_USED = WS_OVF + 256 * OVF_STRIDE
TAGSH = 23
EMPTY = 0x3f
WS_STAMP = 0x1000000
OOB = 0x40000000
DUMMY = 49

def srd_tail(a, d, size):
    a(f"s_mov_b32 s{d+2}, {size}")
    a(f"s_mov_b32 s{d+3}, 0x00020000")

def tile_a_addr(a, vdst, vlane, t0, t1, sP, wbase):
    a(f"""
    v_bfe_u32 v{t0}, v{vlane}, 2, 2
    v_lshrrev_b32 v{t1}, 5, v{vlane}
    v_lshl_add_u32 v{vdst}, v{t1}, 3, v{t0}
    v_lshlrev_b32 v{vdst}, 8, v{vdst}
    v_xor_b32 v{t0}, s{sP}, v{t0}
    v_lshl_add_u32 v{vdst}, v{t0}, 6, v{vdst}
    v_bfe_u32 v{t0}, v{vlane}, 4, 1
    v_bfe_u32 v{t1}, v{vlane}, 1, 1
    v_lshl_add_u32 v{t0}, v{t0}, 1, v{t1}
    v_and_b32 v{t1}, 1, v{vlane}
    v_lshl_add_u32 v{t0}, v{t1}, 2, v{t0}
    v_lshl_add_u32 v{vdst}, v{t0}, 3, v{vdst}
    v_add_u32 v{vdst}, {wbase}, v{vdst}
    """)

def tile_b_addr(a, vdst, vrow, vlane, t0):
    a(f"""
    v_lshrrev_b32 v{t0}, 5, v{vlane}
    v_xor_b32 v{t0}, v{t0}, v{vrow}
    v_and_b32 v{t0}, 15, v{t0}
    v_lshlrev_b32 v{t0}, 4, v{t0}
    v_lshl_add_u32 v{vdst}, v{vrow}, 8, v{t0}
    """)

def gen_k(opt):
    a = A()
    HIST, MAXC, ZROW, TBL = 0, 256, 512, 1024
    NPC = TBL + 1024
    LIST = NPC + 256
    LISTW = 6144
    UNODE = LIST + LISTW * 4
    QS = UNODE + 1536 * 4
    AGGB = QS + 52 * 256
    PIECE = AGGB + 64 * 256
    XT = PIECE
    WQ = XT + 16384
    WV = PIECE + (DUMMY + 64) * 512
    LDS = WV + 32768
    assert WQ + 32768 <= WV
    st = Stamps(opt.stamps, 64, WS_STAMP + 0x40000, [int(x) for x in opt.keep.split(',')] if opt.keep else None)
    sX, sWQ, sWV, sOUT, sWS = 4, 8, 12, 16, 20
    sBeta, sWave, sR, sNR = 24, 25, 26, 27
    sOdd = 28
    sBeta24, sHB, sP, sNH, s196 = 30, 31, 32, 33, 34
    sM = 36
    sSave = 50
    sCnt, sQ, sRem, sT = 52, 53, 54, 55
    vC16, vPB, vLA, vUA, vPrev = 1, 2, 3, 4, 5
    vQP, vQC, vQN = 6, 8, 10
    vAl = (12, 14)
    vQB = 16
    vT0, vT1, vT2, vT3 = 17, 18, 19, 20
    vLane, vStart, vPc = 21, 22, 23
    vAcc, vP, vE, vQ = 24, 32, 40, 48
    vXA, vXB, vTot = 56, 88, 120
    vCand, vHdr, vSo, vN4, vRk = 56, 60, 64, 72, 80
    vCnt = 47
    vHdr2, vSo2, vN42, vRk2 = 88, 92, 96, 100
    sM2 = 56
    vWl = 6
    vWa, vBa, vRow, vQst = 12, 13, 14, 15
    HP = LDS
    OVC, JUNK = HP + 1024, HP + 1040
    H2 = HP + 1280
    ST2 = H2 + 256
    MF = ST2 + 1024
    LDS = MF + 1024
    OVL = LIST
    OVB = LIST + 8192
    STAGE = AGGB
    sSRC, sDST, sNonce, sPi = 56, 60, 35, 3
    sTag = 30
    vDst, vSrc, vEnt, vAdr, vRank, vNeg, vNon, vGo = 56, 58, 60, 62, 64, 68, 66, 67
    vBk = 76
    a(f"""
    {NAME}_kernel:
    s_cmp_ge_u32 s2, {NB}
    s_cbranch_scc1 K2_END
    s_load_dwordx2 s[{sWS}:{sWS+1}], s[0:1], 56
    s_load_dwordx2 s[{sDST}:{sDST+1}], s[0:1], 16
    s_load_dwordx2 s[{sSRC}:{sSRC+1}], s[0:1], 8
    s_load_dwordx2 s[{sX}:{sX+1}], s[0:1], 0
    s_load_dwordx2 s[{sWQ}:{sWQ+1}], s[0:1], 24
    s_load_dwordx2 s[{sWV}:{sWV+1}], s[0:1], 32
    s_load_dwordx2 s[{sOUT}:{sOUT+1}], s[0:1], 40
    """)
    st.stamp(a)
    srd_tail(a, sWS, WS_USED if not opt.stamps else 0x2000000)
    srd_tail(a, sDST, EBYTES); srd_tail(a, sSRC, EBYTES); srd_tail(a, sX, XBYTES); srd_tail(a, sWQ, 32768)
    a(f"""
    v_lshrrev_b32 v{vT0}, 6, v0
    s_mov_b32 s{sBeta}, s2
    s_mul_i32 s3, s2, {CH*4}
    v_readfirstlane_b32 s{sWave}, v{vT0}
    v_lshlrev_b32 v{vT2}, 3, v0
    v_add_u32 v{vT2}, s3, v{vT2}
    s_movk_i32 s{sT}, {CH//2}
    s_cmp_eq_u32 s2, {C-1}
    s_cselect_b32 s{sT}, {(E - (C-1)*CH)//2}, s{sT}
    v_mov_b32 v{vT3}, 0
    v_cmp_gt_u32 vcc, s{sT}, v0
    s_and_saveexec_b64 s[{sSave}:{sSave+1}], vcc
    s_waitcnt lgkmcnt(0)
    {("s_add_u32 s%d, s%d, %d" % (sWS, sWS, opt.wsbase)) if opt.wsbase else ""}
    {("s_addc_u32 s%d, s%d, 0" % (sWS+1, sWS+1)) if opt.wsbase else ""}
    s_cbranch_execz K1_NOEDGE0
    buffer_load_dwordx2 {vr(vDst,2)}, v{vT2}, s[{sDST}:{sDST+3}], 0 offen
    buffer_load_dwordx2 {vr(vSrc,2)}, v{vT2}, s[{sSRC}:{sSRC+3}], 0 offen
    K1_NOEDGE0:
    s_mov_b64 exec, s[{sSave}:{sSave+1}]
    buffer_load_dword v{vNon}, v{vT3}, s[{sWS}:{sWS+3}], 0 offen sc1
    """)
    a(f"""
    v_and_b32 v{vLane}, 63, v0
    v_bfe_u32 v{vT0}, v0, 4, 2
    v_and_b32 v{vT1}, 15, v0
    v_lshlrev_b32 v{vC16}, 4, v{vT1}
    """)
    a(f"""
    v_mov_b32 v{vNeg}, {EMPTY}
    v_mov_b32 v{vNeg+1}, {EMPTY}
    v_mov_b32 v{vNeg+2}, {EMPTY}
    v_mov_b32 v{vNeg+3}, {EMPTY}
    v_lshlrev_b32 v{vT2}, 4, v0
    ds_write_b128 v{vT2}, {vr(vNeg,4)} offset:{STAGE}
    s_cmp_eq_u32 s{sWave}, 12
    s_cbranch_scc0 K1_NOS2
    v_lshlrev_b32 v{vT3}, 4, v{vLane}
    v_add_u32 v{vT3}, {ST2}, v{vT3}
    ds_write_b128 v{vT3}, {vr(vNeg,4)}
    K1_NOS2:
    v_mov_b32 v{vT2}, 0
    v_lshlrev_b32 v{vT3}, 2, v0
    s_cmp_ge_u32 s{sWave}, 6
    s_cbranch_scc1 K1_NOZ0
    v_add_u32 v{vT3}, {HP}, v{vT3}
    ds_write_b32 v{vT3}, v{vT2}
    s_branch K1_NOZ1
    K1_NOZ0:
    s_sub_u32 s3, s{sWave}, 8
    s_cmp_ge_u32 s3, 4
    s_cbranch_scc1 K1_NOZ2
    v_add_u32 v{vT3}, {HIST - 2048}, v{vT3}
    ds_write_b32 v{vT3}, v{vT2}
    s_branch K1_NOZ1
    K1_NOZ2:
    s_cmp_lt_u32 s{sWave}, 12
    s_cbranch_scc1 K1_NOZ1
    v_add_u32 v{vT3}, {MF - 3072}, v{vT3}
    ds_write_b32 v{vT3}, v{vT2}
    K1_NOZ1:
    s_mov_b32 s{sR}, 0
    s_mov_b32 s{sOdd}, 0xaaaaaaaa
    s_mov_b32 s{sOdd+1}, 0xaaaaaaaa
    s_movk_i32 s{s196}, {T*4}
    s_lshl_b32 s3, s{sWave}, 11
    s_add_u32 s3, s3, {PIECE}
    v_lshl_add_u32 v{vPB}, v{vT0}, 9, s3
    v_add_u32 v{vPB}, v{vPB}, v{vC16}
    s_and_b32 s{sPi}, s2, 7
    s_lshl_b32 s{sPi}, s{sPi}, 5
    s_lshr_b32 s{sT}, s2, 3
    s_add_u32 s{sPi}, s{sPi}, s{sT}
    s_mov_b32 s{sHB}, s{sPi}
    v_lshrrev_b32 v{vT2}, 2, v0
    v_lshlrev_b32 v{vGo}, 14, v{vT2}
    v_and_b32 v{vT2}, 3, v0
    v_lshl_add_u32 v{vGo}, v{vT2}, 4, v{vGo}
    v_mov_b32 v{vT3}, 1
    s_waitcnt lgkmcnt(0)
    s_barrier
    """)
    st.stamp(a)
    def early_dma():
        a(f"""
        v_bfe_u32 v{vT0}, v0, 4, 2
        v_and_b32 v{vT1}, 15, v0
        v_lshlrev_b32 v{vT2}, 2, v{vT0}
        v_xor_b32 v{vT2}, v{vT2}, v{vT1}
        v_lshlrev_b32 v{vT2}, 4, v{vT2}
        v_lshl_add_u32 v{vWl}, v{vT0}, 8, v{vT2}
        s_cmp_lt_u32 s{sWave}, 8
        s_cbranch_scc1 K2_L2
        s_sub_u32 s{sQ}, s{sWave}, 8
        """)
        def xt_dma(jreg):
            a(f"""
            s_lshl_b32 s3, s{jreg}, 2
            v_add_u32 v{vT2}, s3, v{vT0}
            v_xor_b32 v{vEnt}, v{vT2}, v{vT1}
            v_and_b32 v{vEnt}, 15, v{vEnt}
            v_lshlrev_b32 v{vEnt}, 4, v{vEnt}
            v_lshl_add_u32 v{vEnt}, v{vT2}, 8, v{vEnt}
            s_mul_i32 s3, s{sBeta}, {T*256}
            s_lshl_b32 s{sT}, s{jreg}, 10
            s_add_u32 s{sT}, s{sT}, {XT}
            s_mov_b32 m0, s{sT}
            s_nop 0
            buffer_load_dwordx4 v{vEnt}, s[{sX}:{sX+3}], s3 offen lds
            """)
        xt_dma(sQ)
        a(f"""
        s_cmp_ge_u32 s{sWave}, 13
        s_cbranch_scc1 K2_L3
        s_mov_b32 s{sRem}, s{sWave}
        """)
        xt_dma(sRem)
        a(f"""
        K2_L3:
        s_lshl_b32 s3, s{sQ}, 12
        s_add_u32 s{sT}, s3, {WQ}
        """)
        for i in range(4):
            a(f"""
            s_mov_b32 m0, s{sT}
            s_add_u32 s{sT}, s{sT}, 1024
            buffer_load_dwordx4 v{vWl}, s[{sWQ}:{sWQ+3}], s3 offen lds
            s_add_u32 s3, s3, 1024
            """)
        a("K2_L2:")
    if not opt.dmalate: early_dma()
    else:
        a(f"""
        v_bfe_u32 v{vT0}, v0, 4, 2
        v_and_b32 v{vT1}, 15, v0
        v_lshlrev_b32 v{vT2}, 2, v{vT0}
        v_xor_b32 v{vT2}, v{vT2}, v{vT1}
        v_lshlrev_b32 v{vT2}, 4, v{vT2}
        v_lshl_add_u32 v{vWl}, v{vT0}, 8, v{vT2}
        """)
    if opt.prefetch == 1:
        a(f"""
        s_cmp_eq_u32 s{sWave}, 14
        s_cbranch_scc0 K1_NOPF
        s_mul_i32 s3, s2, 12544
        v_lshlrev_b32 v{vT2}, 7, v{vLane}
        buffer_load_dword v{vNeg+4}, v{vT2}, s[{sX}:{sX+3}], s3 offen
        s_add_u32 s3, s3, 8192
        v_cmp_gt_u32 vcc, 34, v{vLane}
        v_mov_b32 v{vEnt}, {OOB}
        s_nop 0
        v_cndmask_b32_e64 v{vT2}, v{vEnt}, v{vT2}, vcc
        buffer_load_dword v{vNeg+4}, v{vT2}, s[{sX}:{sX+3}], s3 offen
        K1_NOPF:
        """)
    sPiK = sHB
    srd_tail(a, sWV, 32768); srd_tail(a, sOUT, XBYTES)
    for i in range(8):
        a(f"v_mov_b32 v{vTot+i}, 0")
    a(f"""
    v_bfe_u32 v{vT2}, v{vLane}, 2, 1
    v_mul_u32_u24 v{vT2}, 12, v{vT2}
    v_and_b32 v{vT0}, 3, v{vLane}
    v_or_b32 v{vT2}, v{vT2}, v{vT0}
    v_lshlrev_b32 v{vUA}, 8, v{vLane}
    v_lshl_or_b32 v{vUA}, v{vT2}, 4, v{vUA}
    """)
    a(f"""
    s_and_b32 s{sP}, s{sWave}, 3
    s_bfe_u32 s{sNH}, s{sWave}, 0x10002
    s_cmp_ge_u32 s{sWave}, 8
    s_cbranch_scc1 K2_NOQA
    """)
    tile_a_addr(a, vWa, vLane, vT2, vT0, sP, WQ)
    a(f"""
    v_and_b32 v{vRow}, 31, v{vLane}
    s_lshl_b32 s3, s{sNH}, 5
    v_add_u32 v{vRow}, s3, v{vRow}
    """)
    tile_b_addr(a, vBa, vRow, vLane, vT0)
    a(f"""
    v_bfe_u32 v{vT2}, v{vRow}, 2, 1
    v_mul_u32_u24 v{vT2}, 12, v{vT2}
    v_and_b32 v{vT0}, 3, v{vRow}
    v_or_b32 v{vT2}, v{vT2}, v{vT0}
    v_lshrrev_b32 v{vT0}, 5, v{vLane}
    s_lshl_b32 s3, s{sP}, 2
    v_lshl_add_u32 v{vT0}, v{vT0}, 1, s3
    v_xor_b32 v{vT2}, v{vT2}, v{vT0}
    v_lshlrev_b32 v{vT2}, 4, v{vT2}
    v_lshl_add_u32 v{vQst}, v{vRow}, 8, v{vT2}
    K2_NOQA:
    """)
    a(f"""
    s_movk_i32 s{sT}, {CH//2}
    s_cmp_eq_u32 s2, {C-1}
    s_cselect_b32 s{sT}, {(E - (C-1)*CH)//2}, s{sT}
    v_cmp_gt_u32 vcc, s{sT}, v0
    s_and_saveexec_b64 s[{sSave}:{sSave+1}], vcc
    s_cbranch_execz K1_EDGE1_DONE
    s_mov_b32 s{sT}, -{T}
    s_mov_b32 s{sCnt}, {STAGE}
    s_cmp_lt_u32 s{sWave}, 8
    s_cbranch_scc1 K1_EW0
    s_waitcnt vmcnt({1 if opt.dmalate else 7})
    s_branch K1_EW1
    K1_EW0:
    s_waitcnt vmcnt(1)
    K1_EW1:
    """)
    st.stamp(a)
    for i in range(2):
        a(f"""
        v_mul_u32_u24 v{vT0}, 21400, v{vDst+i}
        v_lshrrev_b32 v{vT0}, 20, v{vT0}
        v_lshlrev_b32 v{vAdr+i}, 2, v{vT0}
        v_add_u32 v{vT2}, {HP}, v{vAdr+i}
        ds_add_rtn_u32 v{vRank+i}, v{vT2}, v{vT3}
        v_mad_i32_i24 v{vT1}, v{vT0}, s{sT}, v{vDst+i}
        v_lshl_or_b32 v{vEnt+i}, v{vSrc+i}, 8, v{vT1}
        v_mov_b32 v{vBk+i}, v{vT0}
        v_lshl_add_u32 v{vAdr+i}, v{vAdr+i}, 4, s{sCnt}
        """)
    a(f"v_mov_b32 v{vT2}, {JUNK}")
    for i in range(2):
        a(f"""
        s_waitcnt lgkmcnt({1-i})
        v_cmp_gt_u32 s[{sM+2*i}:{sM+2*i+1}], 16, v{vRank+i}
        v_lshl_add_u32 v{vT0}, v{vRank+i}, 2, v{vAdr+i}
        s_nop 0
        v_cndmask_b32_e64 v{vT0}, v{vT2}, v{vT0}, s[{sM+2*i}:{sM+2*i+1}]
        ds_write_b32 v{vT0}, v{vEnt+i}
        """)
    a(f"""
    s_and_b64 s[{sM+4}:{sM+5}], s[{sM}:{sM+1}], s[{sM+2}:{sM+3}]
    s_andn2_b64 s[{sM+4}:{sM+5}], exec, s[{sM+4}:{sM+5}]
    s_cbranch_scc0 K1_EDGE1_DONE
    s_mov_b64 s[{sM+6}:{sM+7}], exec
    """)
    for i in range(2):
        a(f"""
        s_andn2_b64 exec, s[{sM+6}:{sM+7}], s[{sM+2*i}:{sM+2*i+1}]
        s_cbranch_execz K1_OV_{i}
        v_and_b32 v{vT0}, 7, v{vBk+i}
        v_lshrrev_b32 v{vT1}, 5, v{vBk+i}
        v_lshl_add_u32 v{vT0}, v{vT1}, 3, v{vT0}
        v_lshlrev_b32 v{vT1}, 2, v{vT0}
        v_add_u32 v{vT1}, {H2}, v{vT1}
        ds_add_rtn_u32 v{vT1}, v{vT1}, v{vT3}
        v_bfe_u32 v{vT2}, v{vBk+i}, 3, 2
        v_lshl_or_b32 v{vT2}, v{vT2}, 6, v{vEnt+i}
        v_lshlrev_b32 v{vT0}, 4, v{vT0}
        v_add_u32 v{vT0}, {ST2}, v{vT0}
        s_waitcnt lgkmcnt(0)
        v_cmp_gt_u32 vcc, 4, v{vT1}
        v_lshl_add_u32 v{vT0}, v{vT1}, 2, v{vT0}
        s_mov_b64 s[{sM+8}:{sM+9}], exec
        s_and_b64 exec, exec, vcc
        ds_write_b32 v{vT0}, v{vT2}
        s_andn2_b64 exec, s[{sM+8}:{sM+9}], vcc
        s_cbranch_execz K1_OV_{i}
        v_mov_b32 v{vT0}, {OVC}
        ds_add_rtn_u32 v{vT0}, v{vT0}, v{vT3}
        s_waitcnt lgkmcnt(0)
        v_lshlrev_b32 v{vT0}, 2, v{vT0}
        ds_write_b32 v{vT0}, v{vEnt+i} offset:{OVL}
        ds_write_b32 v{vT0}, v{vBk+i} offset:{OVB}
        K1_OV_{i}:
        """)
    a(f"""
    K1_EDGE1_DONE:
    s_mov_b64 exec, s[{sSave}:{sSave+1}]
    v_lshlrev_b32 v{vT0}, 4, v0
    s_waitcnt lgkmcnt(0)
    s_barrier
    """)
    st.stamp(a)
    a(f"""
    s_cmp_ge_u32 s{sWave}, 8
    s_cbranch_scc1 K1_NOCOPY
    ds_read_b128 {vr(vNeg,4)}, v{vT0} offset:{STAGE}
    ds_read_b128 {vr(vNeg+4,4)}, v{vT0} offset:{STAGE + 8192}
    s_lshl_b32 s3, s{sPiK}, 6
    s_add_u32 s3, s3, {WS_CELLS}
    s_add_u32 s{sT}, s3, {128*CELLROW}
    s_waitcnt vmcnt(0)
    v_readfirstlane_b32 s{sNonce}, v{vNon}
    s_nop 3
    s_and_b32 s{sTag}, s{sNonce}, {(0xffffffff << TAGSH) & 0xffffffff}
    s_add_u32 s{sTag}, s{sTag}, {1 << TAGSH}
    s_waitcnt lgkmcnt(1)
    """)
    for i in range(4): a(f"v_or_b32 v{vNeg+i}, s{sTag}, v{vNeg+i}")
    a(f"""
    buffer_store_dwordx4 {vr(vNeg,4)}, v{vGo}, s[{sWS}:{sWS+3}], s3 offen {opt.cst}
    s_waitcnt lgkmcnt(0)
    """)
    for i in range(4, 8): a(f"v_or_b32 v{vNeg+i}, s{sTag}, v{vNeg+i}")
    a(f"""
    buffer_store_dwordx4 {vr(vNeg+4,4)}, v{vGo}, s[{sWS}:{sWS+3}], s{sT} offen {opt.cst}
    s_cmp_eq_u32 s{sWave}, 6
    s_cbranch_scc0 K1_NOX
    v_lshlrev_b32 v{vT1}, 4, v{vLane}
    v_add_u32 v{vT1}, {ST2}, v{vT1}
    ds_read_b128 {vr(vDst,4)}, v{vT1}
    v_lshlrev_b32 v{vT1}, 2, v{vLane}
    v_add_u32 v{vT1}, {H2}, v{vT1}
    ds_read_b32 v{vT1}, v{vT1}
    v_lshlrev_b32 v{vT2}, 12, v{vLane}
    s_lshl_b32 s3, s{sPiK}, 4
    s_add_u32 s3, s3, {WS_EXTRA}
    v_mov_b32 v{vT3}, {1 << 22}
    s_waitcnt lgkmcnt(0)
    v_cmp_lt_u32 vcc, 4, v{vT1}
    """)
    for i in range(4): a(f"v_or_b32 v{vDst+i}, s{sTag}, v{vDst+i}")
    a(f"""
    v_cndmask_b32_e64 v{vT3}, 0, v{vT3}, vcc
    v_or_b32 v{vDst+3}, v{vT3}, v{vDst+3}
    buffer_store_dwordx4 {vr(vDst,4)}, v{vT2}, s[{sWS}:{sWS+3}], s3 offen {opt.cst}
    K1_NOX:
    s_cmp_eq_u32 s{sWave}, 7
    s_cbranch_scc0 K1_DRAIN
    v_mov_b32 v{vT3}, {OVC}
    ds_read_b32 v{vRank}, v{vT3}
    s_waitcnt lgkmcnt(0)
    v_readfirstlane_b32 s{sCnt}, v{vRank}
    s_nop 3
    s_cmp_eq_u32 s{sCnt}, 0
    s_cbranch_scc1 K1_DRAIN
    s_min_u32 s{sCnt}, s{sCnt}, {CH}
    s_lshl_b32 s{sT}, s{sPiK}, 4
    s_add_u32 s{sT}, s{sT}, {WS_OVH}
    v_mov_b32 v{vT2}, s{sT}
    v_or_b32 v{vRank}, s{sTag}, v{vRank}
    s_mov_b64 exec, 1
    buffer_store_dword v{vRank}, v{vT2}, s[{sWS}:{sWS+3}], 0 offen sc1
    s_mov_b64 exec, -1
    s_mul_i32 s3, s{sPiK}, {OVF_STRIDE}
    s_add_u32 s3, s3, {WS_OVF}
    v_mov_b32 v{vT0}, v{vLane}
    K1_OVL:
    v_cmp_gt_u32 vcc, s{sCnt}, v{vT0}
    s_and_b64 exec, exec, vcc
    s_cbranch_execz K1_OVD
    v_lshlrev_b32 v{vT1}, 2, v{vT0}
    ds_read_b32 v{vDst}, v{vT1} offset:{OVL}
    ds_read_b32 v{vDst+1}, v{vT1} offset:{OVB}
    v_lshlrev_b32 v{vT1}, 3, v{vT0}
    s_waitcnt lgkmcnt(0)
    v_or_b32 v{vDst}, s{sTag}, v{vDst}
    v_or_b32 v{vDst+1}, s{sTag}, v{vDst+1}
    buffer_store_dwordx2 {vr(vDst,2)}, v{vT1}, s[{sWS}:{sWS+3}], s3 offen sc1
    v_add_u32 v{vT0}, 64, v{vT0}
    s_branch K1_OVL
    K1_OVD:
    s_mov_b64 exec, -1
    K1_DRAIN:
    {"s_waitcnt vmcnt(0)" if opt.drain == 1 else ""}
    s_branch K1_COPIED
    K1_NOCOPY:
    s_waitcnt vmcnt(0)
    v_readfirstlane_b32 s{sNonce}, v{vNon}
    s_nop 3
    s_and_b32 s{sTag}, s{sNonce}, {(0xffffffff << TAGSH) & 0xffffffff}
    s_add_u32 s{sTag}, s{sTag}, {1 << TAGSH}
    K1_COPIED:
    s_barrier
    """)
    st.stamp(a)
    st.stamp(a)
    a(f"""
    s_cmp_ge_u32 s{sWave}, 8
    s_cbranch_scc1 K2_NOQ
    """)
    vA8, vQAcc = vXB, vAcc
    Bq = [vE, vE+4, vQ, vQ+4]
    def a_reads(ks):
        a(f"ds_read_b64_tr_b16 {vr(vA8+4*ks,2)}, v{vWa} offset:{ks*4096}")
        a(f"ds_read_b64_tr_b16 {vr(vA8+4*ks+2,2)}, v{vWa} offset:{ks*4096 + 1024}")
    def b_read(ks):
        a(f"v_xor_b32 v{vT2}, {32*ks}, v{vBa}")
        a(f"ds_read_b128 {vr(Bq[ks & 3],4)}, v{vT2} offset:{XT}")
    def mfma(ks):
        c = "0" if ks == 0 else vr(vQAcc,16)
        a(f"v_mfma_f32_32x32x16_bf16 {vr(vQAcc,16)}, {vr(vA8+4*ks,4)}, {vr(Bq[ks & 3],4)}, {c}")
    for ks in range(4):
        a_reads(ks); b_read(ks)
    for ks in range(4):
        a("s_waitcnt lgkmcnt(9)")
        mfma(ks)
        a_reads(ks+4); b_read(ks+4)
    for ks in range(4, 8):
        a(f"s_waitcnt lgkmcnt({3*(7-ks)})")
        mfma(ks)
    a(f"""
    v_cmp_gt_u32 vcc, 52, v{vRow}
    v_xor_b32 v{vT2}, 16, v{vQst}
    s_nop 7
    s_nop 2
    """)
    for i in range(8):
        a(f"v_cvt_pk_bf16_f32 v{vA8+i}, v{vQAcc+2*i}, v{vQAcc+2*i+1}")
    a(f"""
    s_mov_b64 exec, vcc
    ds_write_b128 v{vQst}, {vr(vA8,4)} offset:{QS}
    ds_write_b128 v{vT2}, {vr(vA8+4,4)} offset:{QS}
    s_mov_b64 exec, -1
    s_branch K2_QD
    K2_NOQ:
    """)
    if opt.prefetch == 2:
        a(f"""
        s_lshr_b32 s3, s2, 3
        s_mul_i32 s3, s3, 100096
        s_sub_u32 s{sT}, s{sWave}, 8
        s_lshl_b32 s{sT}, s{sT}, 13
        s_add_u32 s3, s3, s{sT}
        v_lshlrev_b32 v{vT0}, 7, v{vLane}
        buffer_load_dword v{vNeg}, v{vT0}, s[{sX}:{sX+3}], s3 offen
        s_add_u32 s3, s3, 65536
        s_cmp_ge_u32 s{sWave}, 13
        s_cbranch_scc1 K2_QD
        buffer_load_dword v{vNeg}, v{vT0}, s[{sX}:{sX+3}], s3 offen
        """)
    a(f"""
    K2_QD:
    """)
    if opt.drain == 2:
        a(f"""
        s_cmp_ge_u32 s{sWave}, 8
        s_cbranch_scc1 K2_QD2
        s_waitcnt vmcnt(0)
        K2_QD2:
        s_barrier
        """)
    st.stamp(a)
    a(f"""
    v_lshlrev_b32 v{vT0}, 4, v0
    s_lshl_b32 s3, s{sBeta}, 14
    s_add_u32 s3, s3, {WS_CELLS}
    s_mov_b32 s{sT}, {1 << 17}
    s_mov_b32 s{sQ}, {1 << TAGSH}
    K1_TP:
    buffer_load_dwordx4 {vr(vCand,4)}, v{vT0}, s[{sWS}:{sWS+3}], s3 offen sc1
    s_waitcnt vmcnt(0)
    """)
    for i in range(4): a(f"v_xor_b32 v{vCand+i}, s{sTag}, v{vCand+i}")
    a(f"""
    v_or3_b32 v{vT1}, v{vCand}, v{vCand+1}, v{vCand+2}
    v_or_b32 v{vT1}, v{vT1}, v{vCand+3}
    v_cmp_le_u32 vcc, s{sQ}, v{vT1}
    s_and_b64 exec, exec, vcc
    s_cbranch_execz K1_TPD
    s_sleep {opt.sleep}
    s_sub_u32 s{sT}, s{sT}, 1
    s_cmp_lg_u32 s{sT}, 0
    s_cbranch_scc1 K1_TP
    K1_TPD:
    s_mov_b64 exec, -1
    v_mov_b32 v{vHdr+3}, 0
    s_cmp_ge_u32 s{sWave}, 4
    s_cbranch_scc1 K1_NOXP
    s_and_b32 s3, s{sBeta}, 7
    s_lshr_b32 s{sCnt}, s{sBeta}, 5
    s_lshl_b32 s{sCnt}, s{sCnt}, 3
    s_add_u32 s3, s3, s{sCnt}
    s_lshl_b32 s3, s3, 12
    s_add_u32 s3, s3, {WS_EXTRA}
    s_mov_b32 s{sT}, {1 << 17}
    K1_XP:
    buffer_load_dwordx4 {vr(vHdr,4)}, v{vT0}, s[{sWS}:{sWS+3}], s3 offen sc1
    s_waitcnt vmcnt(0)
    """)
    for i in range(4): a(f"v_xor_b32 v{vHdr+i}, s{sTag}, v{vHdr+i}")
    a(f"""
    v_or3_b32 v{vT1}, v{vHdr}, v{vHdr+1}, v{vHdr+2}
    v_or_b32 v{vT1}, v{vT1}, v{vHdr+3}
    v_cmp_le_u32 vcc, s{sQ}, v{vT1}
    s_and_b64 exec, exec, vcc
    s_cbranch_execz K1_XPD
    s_sleep {opt.sleep}
    s_sub_u32 s{sT}, s{sT}, 1
    s_cmp_lg_u32 s{sT}, 0
    s_cbranch_scc1 K1_XP
    K1_XPD:
    s_mov_b64 exec, -1
    v_and_b32 v{vT1}, {1 << 22}, v{vHdr+3}
    v_cmp_ne_u32 vcc, 0, v{vT1}
    s_cbranch_vccz K1_NOXP
    s_mov_b64 exec, vcc
    s_mov_b32 s3, {WS_OVH}
    s_mov_b32 s{sT}, {1 << 17}
    K1_HP:
    buffer_load_dword v{vT1}, v{vT0}, s[{sWS}:{sWS+3}], s3 offen sc1
    s_waitcnt vmcnt(0)
    v_xor_b32 v{vT2}, s{sTag}, v{vT1}
    v_cmp_le_u32 vcc, s{sQ}, v{vT2}
    s_cbranch_vccz K1_HPD
    s_sleep 2
    s_sub_u32 s{sT}, s{sT}, 1
    s_cmp_lg_u32 s{sT}, 0
    s_cbranch_scc1 K1_HP
    K1_HPD:
    v_min_u32 v{vT2}, {CH}, v{vT2}
    v_lshlrev_b32 v{vT1}, 2, v0
    v_add_u32 v{vT1}, {MF}, v{vT1}
    ds_write_b32 v{vT1}, v{vT2}
    v_mov_b32 v{vT1}, {MAXC}
    ds_max_u32 v{vT1}, v{vT2}
    s_mov_b64 exec, -1
    K1_NOXP:
    """)
    a(f"""
    s_cmp_lt_u32 s{sWave}, 9
    s_cbranch_scc1 K1_NOWV
    s_sub_u32 s3, s{sWave}, 9
    s_mul_i32 s3, s3, 5120
    s_add_u32 s{sT}, s3, {WV}
    """)
    for i in range(5):
        a(f"""
        s_cmp_ge_u32 s3, 32768
        s_cbranch_scc1 K1_NOWV
        s_mov_b32 m0, s{sT}
        s_add_u32 s{sT}, s{sT}, 1024
        buffer_load_dwordx4 v{vWl}, s[{sWV}:{sWV+3}], s3 offen lds
        s_add_u32 s3, s3, 1024
        """)
    a(f"""
    K1_NOWV:
    v_mov_b32 v{vT3}, 1
    """)
    st.stamp(a)
    def decode_valu(word, i):
        m = sM + 2*i
        a(f"""
        v_lshlrev_b32 v{vN4+i}, 2, v{word}
        v_and_b32 v{vN4+i}, 0xfc, v{vN4+i}
        v_cmp_gt_u32 s[{m}:{m+1}], s{s196}, v{vN4+i}
        v_and_b32 v{vSo+i}, 0x003fff00, v{word}
        """)
    def decode_ds(i):
        m = sM + 2*i
        a(f"""
        s_mov_b64 exec, s[{m}:{m+1}]
        ds_add_rtn_u32 v{vRk+i}, v{vN4+i}, v{vT3} offset:{HIST}
        """)
    a("K2_DECODE:")
    for i in range(4):
        decode_valu(vCand+i, i)
    for i in range(4):
        decode_ds(i)
    a(f"""
    s_mov_b64 exec, -1
    s_cmp_eq_u32 s{sR}, 0
    s_cselect_b32 s{sT}, 4, 0
    s_cmp_ge_u32 s{sWave}, s{sT}
    s_cbranch_scc1 K2_NOHDR
    s_bfe_u32 s{sT}, s{sBeta}, 0x20003
    """)
    for i in range(4):
        w, m = vHdr + i, sM2 + 2*i
        a(f"""
        v_bfe_u32 v{vT0}, v{w}, 6, 2
        v_cmp_eq_u32 vcc, s{sT}, v{vT0}
        v_mov_b32 v{vT1}, {EMPTY}
        v_and_b32 v{vT2}, 0x003fff3f, v{w}
        s_nop 0
        v_cndmask_b32_e64 v{w}, v{vT1}, v{vT2}, vcc
        v_lshlrev_b32 v{vN42+i}, 2, v{w}
        v_and_b32 v{vN42+i}, 0xfc, v{vN42+i}
        v_cmp_gt_u32 s[{m}:{m+1}], s{s196}, v{vN42+i}
        v_and_b32 v{vSo2+i}, 0x003fff00, v{w}
        """)
    a(f"""
    s_or_b64 s[{sM+14}:{sM+15}], s[{sM2}:{sM2+1}], s[{sM2+2}:{sM2+3}]
    s_or_b64 s[{sM+14}:{sM+15}], s[{sM+14}:{sM+15}], s[{sM2+4}:{sM2+5}]
    s_or_b64 s[{sM+14}:{sM+15}], s[{sM+14}:{sM+15}], s[{sM2+6}:{sM2+7}]
    s_cbranch_scc0 K2_HDRD
    """)
    for i in range(4):
        m = sM2 + 2*i
        a(f"""
        s_mov_b64 exec, s[{m}:{m+1}]
        ds_add_rtn_u32 v{vRk2+i}, v{vN42+i}, v{vT3} offset:{HIST}
        """)
    a(f"""
    s_mov_b64 exec, -1
    s_branch K2_HDRD
    K2_NOHDR:
    s_mov_b64 s[{sM+14}:{sM+15}], 0
    K2_HDRD:
    s_waitcnt lgkmcnt(0)
    s_barrier
    """)
    st.stamp(a)
    a(f"""
    s_cmp_eq_u32 s2, 0
    s_cbranch_scc0 K2_NOEPOCH
    s_cmp_eq_u32 s{sWave}, 14
    s_cbranch_scc0 K2_NOEPOCH
    s_cmp_eq_u32 s{sR}, 0
    s_cbranch_scc0 K2_NOEPOCH
    v_mov_b32 v{vT0}, 0
    v_mov_b32 v{vT1}, s{sTag}
    s_mov_b64 exec, 1
    buffer_store_dword v{vT1}, v{vT0}, s[{sWS}:{sWS+3}], 0 offen sc1
    s_mov_b64 exec, -1
    s_waitcnt vmcnt(0)
    K2_NOEPOCH:
    """)
    vCn = vCand
    vPos = vHdr
    def sort_phase(q, tag):
        a(f"v_lshlrev_b32 v{vT2}, 2, v{vLane}")
        a(f"ds_read_b32 v{vCn}, v{vT2} offset:{HIST}")
        if q:
            for ks in range(4): a_reads(ks)
            for ks in range(4): b_read(ks)
            a("s_waitcnt lgkmcnt(12)")
        else:
            a("s_waitcnt lgkmcnt(0)")
        a(f"""
        v_add_u32 v{vPc}, 3, v{vCn}
        v_and_b32 v{vPc}, -4, v{vPc}
        v_mov_b32 v{vStart}, v{vPc}
        s_lshl_b32 s{sT}, s{sWave}, 2
        s_nop 0
        """)
        steps = ["row_shr:1 row_mask:0xf bank_mask:0xf bound_ctrl:1", "row_shr:2 row_mask:0xf bank_mask:0xf bound_ctrl:1",
                 "row_shr:4 row_mask:0xf bank_mask:0xf bound_ctrl:1", "row_shr:8 row_mask:0xf bank_mask:0xf bound_ctrl:1",
                 "row_bcast:15 row_mask:0xa bank_mask:0xf", "row_bcast:31 row_mask:0xc bank_mask:0xf"]
        for i, stp in enumerate(steps):
            a(f"v_add_u32_dpp v{vStart}, v{vStart}, v{vStart} {stp}")
            if i == 5: break
            if q and i >= 1:
                ks = i - 1
                if ks == 0: a("s_waitcnt lgkmcnt(0)")
                mfma(ks)
                a("s_nop 0")
            else:
                a("s_nop 1")
        a(f"""
        v_cmp_lt_u32 vcc, s{sT}, v{vPc}
        v_readlane_b32 s{sCnt}, v{vStart}, 63
        v_sub_u32 v{vStart}, v{vStart}, v{vPc}
        """)
        for i in range(4):
            a(f"ds_bpermute_b32 v{vPos+i}, v{vN4+i}, v{vStart}")
        a(f"""
        v_add_u32 v{vT0}, s{sT}, v{vStart}
        s_mov_b64 exec, vcc
        ds_write_b32 v{vT0}, v{vUA} offset:{UNODE}
        s_mov_b64 exec, -1
        """)
        if q:
            for ks in range(4, 8): a_reads(ks)
            for ks in range(4, 8): b_read(ks)
        a(f"""
        v_cmp_lt_u32 vcc, 64, v{vPc}
        s_cbranch_vccz K2_UND{tag}
        K2_UN{tag}:
        s_add_u32 s{sT}, s{sT}, 64
        v_cmp_lt_u32 vcc, s{sT}, v{vPc}
        s_cbranch_vccz K2_UND{tag}
        v_add_u32 v{vT0}, s{sT}, v{vStart}
        s_mov_b64 exec, vcc
        ds_write_b32 v{vT0}, v{vUA} offset:{UNODE}
        s_mov_b64 exec, -1
        s_branch K2_UN{tag}
        K2_UND{tag}:
        """)
        if not q:
            a(f"""
            s_sub_u32 s{sT}, s{sWave}, 8
            s_cmp_gt_u32 s{sT}, 4
            s_cbranch_scc1 K2_NOPAD
            v_mov_b32 v{vT2}, {OOB}
            s_cmp_gt_u32 s{sT}, 2
            s_cbranch_scc1 K2_TAILPAD
            v_sub_u32 v{vT1}, v{vPc}, v{vCn}
            v_add_u32 v{vT0}, v{vStart}, v{vCn}
            v_cmp_lt_u32 vcc, s{sT}, v{vT1}
            v_add_u32 v{vT0}, s{sT}, v{vT0}
            v_lshlrev_b32 v{vT0}, 2, v{vT0}
            s_mov_b64 exec, vcc
            ds_write_b32 v{vT0}, v{vT2} offset:{LIST}
            s_mov_b64 exec, -1
            s_branch K2_NOPAD
            K2_TAILPAD:
            v_lshlrev_b32 v{vT1}, 2, v{vLane}
            s_cmp_eq_u32 s{sT}, 3
            s_cbranch_scc0 K2_TAILU
            s_lshl_b32 s{sT}, s{sCnt}, 2
            v_add_u32 v{vT0}, s{sT}, v{vT1}
            s_mov_b64 exec, 0xfffffff
            ds_write_b32 v{vT0}, v{vT2} offset:{LIST}
            s_mov_b64 exec, -1
            s_branch K2_NOPAD
            K2_TAILU:
            v_add_u32 v{vT0}, s{sCnt}, v{vT1}
            v_mov_b32 v{vT2}, {DUMMY*256 + 16*((DUMMY & 3) | (12*((DUMMY >> 2) & 1)))}
            s_mov_b64 exec, 0x7f
            ds_write_b32 v{vT0}, v{vT2} offset:{UNODE}
            s_mov_b64 exec, -1
            K2_NOPAD:
            """)
        a(f"""
        s_add_u32 s3, s{sCnt}, 31
        s_lshr_b32 s3, s3, 5
        s_lshr_b32 s{sQ}, s3, 4
        s_and_b32 s{sRem}, s3, 15
        s_cmp_lt_u32 s{sWave}, s{sRem}
        s_cselect_b32 s{sNH}, 1, 0
        s_add_u32 s{sHB}, s{sQ}, s{sNH}
        s_min_u32 s3, s{sRem}, s{sWave}
        s_mul_i32 s{sT}, s{sQ}, s{sWave}
        s_add_u32 s{sT}, s{sT}, s3
        v_lshrrev_b32 v{vT0}, 4, v{vLane}
        s_lshl_b32 s3, s{sHB}, 1
        v_mul_u32_u24 v{vT0}, s3, v{vT0}
        s_lshl_b32 s3, s{sT}, 3
        v_add_u32 v{vT0}, s3, v{vT0}
        v_lshlrev_b32 v{vLA}, 4, v{vT0}
        v_lshlrev_b32 v{vUA}, 2, v{vT0}
        """)
        if q:
            a("s_waitcnt lgkmcnt(0)")
            for ks in range(4, 8): mfma(ks)
        else:
            a("s_waitcnt lgkmcnt(0)")
        for i in range(4):
            a(f"v_add_lshl_u32 v{vPos+i}, v{vPos+i}, v{vRk+i}, 2")
        for i in range(4):
            a(f"s_mov_b64 exec, s[{sM+2*i}:{sM+2*i+1}]")
            a(f"ds_write_b32 v{vPos+i}, v{vSo+i} offset:{LIST}")
        a(f"""
        s_mov_b64 exec, -1
        s_cmp_eq_u64 s[{sM+14}:{sM+15}], 0
        s_cbranch_scc1 K2_SC_DONE{tag}
        """)
        for i in range(4):
            a(f"ds_bpermute_b32 v{vPos+i}, v{vN42+i}, v{vStart}")
        a("s_waitcnt lgkmcnt(0)")
        for i in range(4):
            a(f"""
            v_add_lshl_u32 v{vPos+i}, v{vPos+i}, v{vRk2+i}, 2
            s_mov_b64 exec, s[{sM2+2*i}:{sM2+2*i+1}]
            ds_write_b32 v{vPos+i}, v{vSo2+i} offset:{LIST}
            s_mov_b64 exec, -1
            """)
        a(f"K2_SC_DONE{tag}:")
        if q:
            a(f"""
            v_cmp_gt_u32 vcc, 52, v{vRow}
            v_xor_b32 v{vT3}, 16, v{vQst}
            s_nop 5
            """)
            for i in range(8):
                a(f"v_cvt_pk_bf16_f32 v{vA8+i}, v{vQAcc+2*i}, v{vQAcc+2*i+1}")
            a(f"""
            s_mov_b64 exec, vcc
            ds_write_b128 v{vQst}, {vr(vA8,4)} offset:{QS}
            ds_write_b128 v{vT3}, {vr(vA8+4,4)} offset:{QS}
            s_mov_b64 exec, -1
            """)
    sort_phase(False, "P")
    a("K2_SORT_DONE:")
    st.stamp(a)
    a(f"""
    s_waitcnt vmcnt(0) lgkmcnt(0)
    s_barrier
    """)
    st.stamp(a)
    if "cyc" in opt.exp: st.stamp(a, True)
    if opt.prio: a("s_setprio 3")
    a(f"""
    s_cmp_eq_u32 s{sHB}, 0
    s_cbranch_scc1 K2_NOMAIN
    ds_read_b128 {vr(vE,4)}, v{vLA} offset:{LIST}
    ds_read_b128 {vr(vE+4,4)}, v{vLA} offset:{LIST+16}
    ds_read_b64 {vr(vQC,2)}, v{vUA} offset:{UNODE}
    """)
    for i in range(8):
        a(f"v_mov_b32 v{vAcc+i}, 0")
    a("s_waitcnt lgkmcnt(1)")
    for u in range(8):
        a(f"v_add_u32 v{vE+u}, v{vE+u}, v{vC16}")
        a(f"buffer_load_dwordx4 {vr(vXA+4*u,4)}, v{vE+u}, s[{sX}:{sX+3}], 0 offen")
        if u == 0:
            a(f"""
            s_waitcnt lgkmcnt(0)
            v_xor_b32 v{vT0}, v{vQC}, v{vC16}
            v_xor_b32 v{vT1}, v{vQC+1}, v{vC16}
            ds_read_b128 {vr(vQ,4)}, v{vT0} offset:{QS}
            ds_read_b128 {vr(vQ+4,4)}, v{vT1} offset:{QS}
            v_mov_b32 v{vPrev}, v{vQC}
            """)
    if "bstamp" in opt.exp: st.stamp(a)
    wv_id = [0]
    def wv_dma():
        i = wv_id[0]; wv_id[0] += 1
        a(f"""
        s_cmp_eq_u32 s{sR}, 0
        s_cbranch_scc0 K2_NOWV{i}
        s_lshl_b32 s3, s{sWave}, 11
        s_add_u32 s{sT}, s3, {WV}
        s_mov_b32 m0, s{sT}
        s_add_u32 s{sT}, s{sT}, 1024
        buffer_load_dwordx4 v{vWl}, s[{sWV}:{sWV+3}], s3 offen lds
        s_mov_b32 m0, s{sT}
        s_add_u32 s3, s3, 1024
        buffer_load_dwordx4 v{vWl}, s[{sWV}:{sWV+3}], s3 offen lds
        K2_NOWV{i}:
        """)
    flush_id = [0]
    def flush(prev, masked):
        fid = flush_id[0]; flush_id[0] += 1
        t = ""
        if masked is not None:
            t += f"""
            v_cmp_ne_u32 vcc, v{masked}, v{prev}
            s_cbranch_vccz K2_FL{fid}
            s_mov_b64 exec, vcc
            """
        t += f"""
        v_and_b32 v{vT0}, 0xffffff00, v{prev}
        v_lshl_add_u32 v{vT0}, v{vT0}, 1, v{vPB}
        ds_write_b128 v{vT0}, {vr(vAcc,4)}
        ds_write_b128 v{vT0}, {vr(vAcc+4,4)} offset:256
        """
        if masked is not None:
            for i in range(8):
                t += f"v_mov_b32 v{vAcc+i}, 0\n"
            t += f"""
            s_mov_b64 exec, -1
            K2_FL{fid}:
            """
        return t
    def dots(X, waits):
        for half in range(2):
            a(waits[half])
            if "nodots" in opt.exp: continue
            for r in range(4):
                for u in range(4*half, 4*half+4):
                    if r == 0:
                        a(f"v_dot2_f32_bf16 v{vP+u}, v{X+4*u}, v{vQ+4*half}, 0")
                    else:
                        a(f"v_dot2c_f32_bf16 v{vP+u}, v{X+4*u+r}, v{vQ+4*half+r}")
    def chain(al):
        c = []
        for j in range(4):
            c.append(f"v_add_f32_dpp v{vP+j}, v{vP+j}, v{vP+j} row_mirror row_mask:0xf bank_mask:0x3")
        for j in range(4):
            c.append(f"v_add_f32_dpp v{vP+j}, v{vP+j+4}, v{vP+j+4} row_mirror row_mask:0xf bank_mask:0xc")
        for j in range(2):
            c.append(f"v_add_f32_dpp v{vP+j}, v{vP+j}, v{vP+j} row_half_mirror row_mask:0xf bank_mask:0x5")
        for j in range(2):
            c.append(f"v_add_f32_dpp v{vP+j}, v{vP+j+2}, v{vP+j+2} row_half_mirror row_mask:0xf bank_mask:0xa")
        c.append(f"v_add_f32_dpp v{vP+2}, v{vP}, v{vP} quad_perm:[1,0,3,2] row_mask:0xf bank_mask:0xf")
        c.append(f"v_add_f32_dpp v{vP+3}, v{vP+1}, v{vP+1} quad_perm:[1,0,3,2] row_mask:0xf bank_mask:0xf")
        c.append(f"v_cndmask_b32_e64 v{vP}, v{vP+2}, v{vP+3}, s[{sOdd}:{sOdd+1}]")
        c.append(f"v_add_f32_dpp v{vP}, v{vP}, v{vP} quad_perm:[2,3,0,1] row_mask:0xf bank_mask:0xf")
        if opt.mimic:
            c += [f"v_cvt_pk_bf16_f32 v{vP}, v{vP}, v{vP}", f"v_and_b32 v{vP}, 0xffff0000, v{vP}",
                  f"v_mul_f32 v{vP}, 0x3db504f3, v{vP}", f"v_cvt_pk_bf16_f32 v{vP}, v{vP}, v{vP}",
                  f"v_and_b32 v{vP}, 0xffff0000, v{vP}", f"v_mul_f32 v{vP}, 0xbfb8aa3b, v{vP}"]
        else:
            c.append(f"v_mul_f32 v{vP}, 0xbe0293ee, v{vP}")
        c += [f"v_exp_f32 v{vP}, v{vP}", f"v_add_f32 v{vP}, 1.0, v{vP}", f"v_rcp_f32 v{vP}, v{vP}",
              f"v_cvt_pk_bf16_f32 v{al}, v{vP}, 0", f"v_cvt_pk_bf16_f32 v{al+1}, 0, v{vP}"]
        return c
    def chain_alone(al):
        c = chain(al)
        gaps = {9: 1, 11: 1, 14: 2, 17 + (5 if opt.mimic else 0): 1, 19 + (5 if opt.mimic else 0): 1}
        for i, ins in enumerate(c):
            a(ins)
            if i in gaps: a(f"s_nop {gaps[i]-1}")
    def agg_stream(X, al, loads, Xdst, qp=None):
        out = []
        qp = vQP if qp is None else qp
        for half in range(2):
            if half == 0:
                out.append(('x', flush(vPrev, qp)))
            else:
                out.append(('x', "s_nop 1\n" + flush(qp, qp+1)))
            for u in range(4*half, 4*half+4):
                k = 4*(u >> 1) + (u & 1)
                for r in range(4):
                    if "noagg" in opt.exp:
                        out.append(('v', "s_nop 0")); out.append(('v', "s_nop 0")); continue
                    out.append(('v', f"v_dot2c_f32_bf16_dpp v{vAcc+2*r}, v{al}, v{X+4*u+r} row_newbcast:{k} row_mask:0xf bank_mask:0xf"))
                    out.append(('v', f"v_dot2c_f32_bf16_dpp v{vAcc+2*r+1}, v{al+1}, v{X+4*u+r} row_newbcast:{k} row_mask:0xf bank_mask:0xf"))
                if loads and "noload" not in opt.exp:
                    out.append(('x', f"buffer_load_dwordx4 {vr(Xdst+4*u,4)}, v{vE+u}, s[{sX}:{sX+3}], 0 offen"))
        return out
    def next_prep():
        a("s_waitcnt lgkmcnt(0)")
        a(f"v_xor_b32 v{vT0}, v{vQN}, v{vC16}")
        a(f"v_xor_b32 v{vT1}, v{vQN+1}, v{vC16}")
    def rotate(nxt):
        a(f"v_mov_b32 v{vQP}, v{vQC}")
        a(f"v_mov_b32 v{vQP+1}, v{vQC+1}")
        if nxt:
            a(f"v_mov_b32 v{vQC}, v{vQN}")
            a(f"v_mov_b32 v{vQC+1}, v{vQN+1}")
            a(f"v_add_u32 v{vLA}, 32, v{vLA}")
            a(f"v_add_u32 v{vUA}, 8, v{vUA}")
    def mid(cur, prev, al_cur, al_prev, nxt):
        a("s_waitcnt lgkmcnt(0)")
        if nxt:
            a(f"""
            ds_read_b128 {vr(vE,4)}, v{vLA} offset:{LIST+32}
            ds_read_b128 {vr(vE+4,4)}, v{vLA} offset:{LIST+48}
            ds_read_b64 {vr(vQN,2)}, v{vUA} offset:{UNODE+8}
            """)
        dots(cur, ("s_waitcnt vmcnt(4)", "s_waitcnt vmcnt(0)"))
        if nxt:
            next_prep()
            for u in range(8):
                a(f"v_add_u32 v{vE+u}, v{vE+u}, v{vC16}")
            a(f"ds_read_b128 {vr(vQ,4)}, v{vT0}")
            a(f"ds_read_b128 {vr(vQ+4,4)}, v{vT1}")
        else:
            a("s_nop 2")
        c = chain(al_cur)
        s_ = agg_stream(prev, al_prev, nxt, prev)
        nv = sum(1 for k, _ in s_ if k == 'v')
        ci, vi = 0, 0
        for k, t in s_:
            a(t)
            if k == 'v':
                vi += 1
                if ci < len(c) and vi >= (ci + 1) * nv // (len(c) + 1) and vi % 1 == 0:
                    a(c[ci]); ci += 1
        assert ci == len(c)
        a(f"v_mov_b32 v{vPrev}, v{vQP+1}")
        rotate(nxt)
    def final(X, al):
        for k, t in agg_stream(X, al, False, None):
            a(t)
        a("s_nop 2")
        a(flush(vQP+1, None))
        a("s_branch K2_MAIN_DONE")
    def roll_body(nxt):
        al = vAl[0]
        a("s_waitcnt lgkmcnt(0)")
        if nxt:
            a(f"""
            ds_read_b128 {vr(vE,4)}, v{vLA} offset:{LIST+32}
            ds_read_b128 {vr(vE+4,4)}, v{vLA} offset:{LIST+48}
            ds_read_b64 {vr(vQN,2)}, v{vUA} offset:{UNODE+8}
            """)
        dots(vXA, ("s_waitcnt vmcnt(4)", "s_waitcnt vmcnt(0)"))
        fill = []
        if nxt:
            next_prep()
            a(f"v_add_u32 v{vE}, v{vE}, v{vC16}")
            fill = [f"v_add_u32 v{vE+u}, v{vE+u}, v{vC16}" for u in range(1, 8)]
        else:
            a("s_nop 2")
        c = chain(al)
        gaps = {11: 1, 14: 2, 17 + (5 if opt.mimic else 0): 1, 19 + (5 if opt.mimic else 0): 1}
        for i, ins in enumerate(c):
            a(ins)
            if i == 3 and nxt:
                a(f"ds_read_b128 {vr(vQ,4)}, v{vT0} offset:{QS}")
                a(f"ds_read_b128 {vr(vQ+4,4)}, v{vT1} offset:{QS}")
            for _ in range(gaps.get(i, 0)):
                a(fill.pop(0) if fill else "s_nop 0")
        while fill: a(fill.pop(0))
        a("s_nop 0")
        for k, t in agg_stream(vXA, al, nxt, vXA, vQC):
            a(t)
        a(f"v_mov_b32 v{vPrev}, v{vQC+1}")
        if nxt:
            a(f"v_mov_b32 v{vQC}, v{vQN}")
            a(f"v_mov_b32 v{vQC+1}, v{vQN+1}")
            a(f"v_add_u32 v{vLA}, 32, v{vLA}")
            a(f"v_add_u32 v{vUA}, 8, v{vUA}")
    if True:
        a(f"""
        s_cmp_eq_u32 s{sHB}, 1
        s_cbranch_scc1 K2_LAST
        K2_LOOP:
        """)
        if opt.prio:
            a(f"""
            s_cmp_ge_u32 s{sHB}, 4
            s_cbranch_scc1 K2_PR0
            s_setprio 2
            s_cmp_eq_u32 s{sHB}, 3
            s_cbranch_scc1 K2_PR0
            s_setprio 1
            K2_PR0:
            """)
        roll_body(True)
        a(f"""
        s_sub_u32 s{sHB}, s{sHB}, 1
        s_cmp_gt_u32 s{sHB}, 1
        s_cbranch_scc1 K2_LOOP
        K2_LAST:
        """)
        if opt.prio: a("s_setprio 0")
        roll_body(False)
        a("s_nop 2")
        a(flush(vPrev, None))
    a("s_branch K2_MAIN_DONE")
    a("K2_NOMAIN:")
    a("K2_MAIN_DONE:")
    if opt.prio: a("s_setprio 0")
    if "cyc" in opt.exp: st.stamp(a, True)
    st.stamp(a)
    a(f"""
    s_cmp_eq_u32 s{sR}, 0
    s_cbranch_scc0 K2_NRDONE
    v_mov_b32 v{vT3}, {MAXC}
    ds_read_b32 v{vT3}, v{vT3}
    s_waitcnt lgkmcnt(0)
    v_readfirstlane_b32 s3, v{vT3}
    s_nop 3
    s_min_u32 s3, s3, {CH}
    s_add_u32 s3, s3, 7
    s_lshr_b32 s3, s3, 3
    s_add_u32 s{sNR}, s3, 1
    K2_NRDONE:
    """)
    vSf, vSl = vE, vE+1
    a(f"""
    s_cmp_eq_u32 s{sWave}, 15
    s_cbranch_scc0 K2_NOTBL
    s_add_u32 s3, s{sQ}, 1
    s_lshl_b32 s3, s3, 1
    v_cvt_f32_u32 v{vT0}, s3
    s_mul_i32 s3, s3, s{sRem}
    s_lshl_b32 s{sP}, s3, 2
    s_lshl_b32 s3, s{sQ}, 1
    v_cvt_f32_u32 v{vT1}, s3
    v_rcp_f32 v{vT0}, v{vT0}
    v_rcp_f32 v{vT1}, v{vT1}
    s_lshl_b32 s3, s{sRem}, 2
    """)
    for (dst, last) in ((vSf, False), (vSl, True)):
        if not last:
            a(f"v_lshrrev_b32 v{vT2}, 2, v{vStart}")
        else:
            a(f"""
            v_add_u32 v{vT2}, v{vStart}, v{vPc}
            v_lshrrev_b32 v{vT2}, 2, v{vT2}
            v_add_u32 v{vT2}, -1, v{vT2}
            """)
        a(f"""
        v_cmp_gt_u32 vcc, s{sP}, v{vT2}
        v_cvt_f32_u32 v{vT3}, v{vT2}
        v_add_f32 v{vT3}, 0.5, v{vT3}
        v_mul_f32 v{vT3}, v{vT3}, v{vT0}
        v_cvt_u32_f32 v{vT3}, v{vT3}
        v_subrev_u32 v{vT2}, s{sP}, v{vT2}
        v_cvt_f32_u32 v{vT2}, v{vT2}
        v_add_f32 v{vT2}, 0.5, v{vT2}
        v_mul_f32 v{vT2}, v{vT2}, v{vT1}
        v_cvt_u32_f32 v{vT2}, v{vT2}
        v_add_u32 v{vT2}, s3, v{vT2}
        v_cndmask_b32_e64 v{dst}, v{vT2}, v{vT3}, vcc
        """)
    a(f"""
    v_sub_u32 v{vT0}, v{vSl}, v{vSf}
    v_add_u32 v{vT0}, 1, v{vT0}
    v_cmp_lt_u32 vcc, 0, v{vPc}
    v_add_u32 v{vT1}, v{vSf}, v{vLane}
    v_lshlrev_b32 v{vT1}, 9, v{vT1}
    v_cndmask_b32_e64 v{vT0}, 0, v{vT0}, vcc
    v_add_u32 v{vT1}, {PIECE}, v{vT1}
    v_lshlrev_b32 v{vT3}, 2, v{vLane}
    v_mov_b32 v{vT2}, {ZROW}
    ds_write_b32 v{vT3}, v{vT0} offset:{NPC}
    """)
    for j in range(4):
        a(f"""
        v_cmp_lt_u32 vcc, {j}, v{vT0}
        v_add_u32 v{vT3}, {512*j}, v{vT1}
        s_nop 0
        v_cndmask_b32_e64 v{vE+4+j}, v{vT2}, v{vT3}, vcc
        """)
    a(f"""
    v_lshlrev_b32 v{vT0}, 4, v{vLane}
    ds_write_b128 v{vT0}, {vr(vE+4,4)} offset:{TBL}
    K2_NOTBL:
    """)
    vA8 = vXB
    a(f"""
    s_add_u32 s3, s{sR}, 1
    s_cmp_ge_u32 s3, s{sNR}
    s_cselect_b32 s{sT}, 8, 0
    s_cmp_ge_u32 s{sWave}, s{sT}
    s_cbranch_scc1 K2_NOAA
    s_and_b32 s{sP}, s{sWave}, 3
    s_lshr_b32 s{sNH}, s{sWave}, 2
    """)
    tile_a_addr(a, vWa, vLane, vT2, vT3, sP, WV)
    for ks in range(8):
        if ks == 6: a("s_waitcnt lgkmcnt(4)")
        a(f"ds_read_b64_tr_b16 {vr(vA8+4*ks,2)}, v{vWa} offset:{ks*4096}")
        a(f"ds_read_b64_tr_b16 {vr(vA8+4*ks+2,2)}, v{vWa} offset:{ks*4096 + 1024}")
    a(f"""
    v_and_b32 v{vRow}, 31, v{vLane}
    s_lshl_b32 s3, s{sNH}, 5
    v_add_u32 v{vRow}, s3, v{vRow}
    """)
    tile_b_addr(a, vBa, vRow, vLane, vT3)
    a(f"""
    K2_NOAA:
    s_waitcnt lgkmcnt(0)
    s_barrier
    """)
    st.stamp(a)
    vB = vE
    vRd = vXA
    vNp = vT3
    a(f"""
    s_cmp_ge_u32 s{sWave}, 13
    s_cbranch_scc1 K2_RED_DONE
    v_lshrrev_b32 v{vT0}, 4, v{vLane}
    s_lshl_b32 s3, s{sWave}, 2
    v_add_u32 v{vT0}, s3, v{vT0}
    v_lshlrev_b32 v{vT1}, 4, v{vT0}
    v_lshlrev_b32 v{vT2}, 2, v{vT0}
    ds_read_b128 {vr(vB,4)}, v{vT1} offset:{TBL}
    ds_read_b32 v{vNp}, v{vT2} offset:{NPC}
    s_waitcnt lgkmcnt(0)
    """)
    for j in range(3):
        a(f"""
        v_add_u32 v{vB+j}, v{vB+j}, v{vC16}
        ds_read_b128 {vr(vRd+8*j,4)}, v{vB+j}
        ds_read_b128 {vr(vRd+8*j+4,4)}, v{vB+j} offset:256
        """)
    for j in range(3):
        a(f"s_waitcnt lgkmcnt({4-2*j})")
        for i in range(8):
            a(f"v_add_f32 v{vTot+i}, v{vTot+i}, v{vRd+8*j+i}")
    a(f"""
    s_mov_b32 s{sT}, 3
    K2_XL:
    v_cmp_lt_u32 vcc, s{sT}, v{vNp}
    s_cbranch_vccz K2_RED_DONE
    s_lshl_b32 s3, s{sT}, 9
    v_add_u32 v{vT0}, s3, v{vB}
    s_mov_b64 exec, vcc
    ds_read_b128 {vr(vRd,4)}, v{vT0}
    ds_read_b128 {vr(vRd+4,4)}, v{vT0} offset:256
    s_waitcnt lgkmcnt(0)
    """)
    for i in range(8):
        a(f"v_add_f32 v{vTot+i}, v{vTot+i}, v{vRd+i}")
    a(f"""
    s_mov_b64 exec, -1
    s_add_u32 s{sT}, s{sT}, 1
    s_branch K2_XL
    K2_RED_DONE:
    s_add_u32 s{sR}, s{sR}, 1
    s_cmp_ge_u32 s{sR}, s{sNR}
    s_cbranch_scc1 K2_EPI
    s_barrier
    """)
    a(f"""
    s_cmp_ge_u32 s{sWave}, 4
    s_cbranch_scc1 K2_RZ
    v_mov_b32 v{vT2}, 0
    v_lshlrev_b32 v{vT3}, 2, v0
    ds_write_b32 v{vT3}, v{vT2} offset:{HIST}
    K2_RZ:
    v_mov_b32 v{vCand}, {EMPTY}
    v_mov_b32 v{vCand+1}, {EMPTY}
    v_mov_b32 v{vCand+2}, {EMPTY}
    v_mov_b32 v{vCand+3}, {EMPTY}
    v_lshrrev_b32 v{vT0}, 2, v0
    v_lshlrev_b32 v{vT2}, 2, v{vT0}
    v_add_u32 v{vT2}, {MF}, v{vT2}
    ds_read_b32 v{vT3}, v{vT2}
    v_lshlrev_b32 v{vT0}, 14, v{vT0}
    v_add_u32 v{vT0}, {WS_OVF}, v{vT0}
    s_lshl_b32 s3, s{sR}, 3
    s_sub_u32 s3, s3, 8
    v_and_b32 v{vT1}, 3, v0
    v_lshl_add_u32 v{vT1}, v{vT1}, 1, s3
    v_lshl_add_u32 v{vT0}, v{vT1}, 3, v{vT0}
    s_mov_b32 s{sQ}, {1 << TAGSH}
    s_mov_b32 s{sT}, {1 << 17}
    s_waitcnt lgkmcnt(0)
    v_cmp_lt_u32 vcc, v{vT1}, v{vT3}
    s_and_saveexec_b64 s[{sSave}:{sSave+1}], vcc
    s_cbranch_execz K2_R1
    v_add_u32 v{vT1}, 1, v{vT1}
    v_cmp_lt_u32 s[{sM}:{sM+1}], v{vT1}, v{vT3}
    K2_RP:
    buffer_load_dwordx4 {vr(vSo,4)}, v{vT0}, s[{sWS}:{sWS+3}], 0 offen sc1
    s_waitcnt vmcnt(0)
    """)
    for i in range(4): a(f"v_xor_b32 v{vSo+i}, s{sTag}, v{vSo+i}")
    a(f"""
    v_or_b32 v{vT1}, v{vSo+2}, v{vSo+3}
    v_cndmask_b32_e64 v{vT1}, 0, v{vT1}, s[{sM}:{sM+1}]
    v_or3_b32 v{vT1}, v{vT1}, v{vSo}, v{vSo+1}
    v_cmp_le_u32 vcc, s{sQ}, v{vT1}
    s_cbranch_vccz K2_RPD
    s_sleep 2
    s_sub_u32 s{sT}, s{sT}, 1
    s_cmp_lg_u32 s{sT}, 0
    s_cbranch_scc1 K2_RP
    K2_RPD:
    v_cmp_eq_u32 vcc, s{sBeta}, v{vSo+1}
    v_cmp_eq_u32 s[{sM+2}:{sM+3}], s{sBeta}, v{vSo+3}
    s_nop 0
    s_and_b64 s[{sM+2}:{sM+3}], s[{sM+2}:{sM+3}], s[{sM}:{sM+1}]
    v_cndmask_b32_e64 v{vCand}, v{vCand}, v{vSo}, vcc
    v_cndmask_b32_e64 v{vCand+1}, v{vCand+1}, v{vSo+2}, s[{sM+2}:{sM+3}]
    K2_R1:
    s_mov_b64 exec, s[{sSave}:{sSave+1}]
    v_bfe_u32 v{vT2}, v{vLane}, 2, 1
    v_mul_u32_u24 v{vT2}, 12, v{vT2}
    v_and_b32 v{vT3}, 3, v{vLane}
    v_or_b32 v{vT2}, v{vT2}, v{vT3}
    v_lshlrev_b32 v{vUA}, 8, v{vLane}
    v_lshl_or_b32 v{vUA}, v{vT2}, 4, v{vUA}
    v_mov_b32 v{vT3}, 1
    s_waitcnt lgkmcnt(0)
    s_barrier
    s_branch K2_DECODE
    K2_EPI:
    """)
    st.stamp(a)
    vAcc16, vB8 = 24, vXA
    a(f"""
    s_cmp_ge_u32 s{sWave}, 13
    s_cbranch_scc1 K2_WB_DONE
    v_lshrrev_b32 v{vT0}, 4, v{vLane}
    s_lshl_b32 s3, s{sWave}, 2
    v_add_u32 v{vT0}, s3, v{vT0}
    v_lshlrev_b32 v{vT1}, 4, v{vT0}
    v_xor_b32 v{vT1}, v{vT1}, v{vC16}
    v_and_b32 v{vT1}, 0xf0, v{vT1}
    v_lshl_add_u32 v{vT0}, v{vT0}, 8, v{vT1}
    """)
    for i in range(4):
        a(f"v_cvt_pk_bf16_f32 v{vP+i}, v{vTot+2*i}, v{vTot+2*i+1}")
    a(f"""
    ds_write_b128 v{vT0}, {vr(vP,4)} offset:{AGGB}
    K2_WB_DONE:
    s_cmp_ge_u32 s{sWave}, 8
    s_cbranch_scc1 K2_EB
    """)
    for ks in range(8):
        a(f"v_xor_b32 v{vE+ks}, {32*ks}, v{vBa}")
    a(f"""
    s_mul_i32 s3, s{sBeta}, {T*256}
    s_lshl_b32 s{sCnt}, s{sP}, 6
    s_add_u32 s3, s3, s{sCnt}
    v_lshrrev_b32 v{vT0}, 5, v{vLane}
    v_lshlrev_b32 v{vT1}, 8, v{vRow}
    v_lshl_add_u32 v{vT1}, v{vT0}, 5, v{vT1}
    v_add_u32 v{vT1}, s3, v{vT1}
    K2_EB:
    s_waitcnt lgkmcnt(0)
    s_barrier
    s_cmp_ge_u32 s{sWave}, 8
    s_cbranch_scc1 K2_FIN
    """)
    for ks in range(8):
        a(f"ds_read_b128 {vr(vB8+4*ks,4)}, v{vE+ks} offset:{AGGB}")
    a(f"v_cmp_gt_u32 vcc, {T}, v{vRow}")
    for ks in range(8):
        a(f"s_waitcnt lgkmcnt({7-ks})")
        c = "0" if ks == 0 else vr(vAcc16,16)
        a(f"v_mfma_f32_32x32x16_bf16 {vr(vAcc16,16)}, {vr(vA8+4*ks,4)}, {vr(vB8+4*ks,4)}, {c}")
    a("s_nop 7")
    a("s_nop 3")
    for i in range(8):
        a(f"v_cvt_pk_bf16_f32 v{vQ+i}, v{vAcc16+2*i}, v{vAcc16+2*i+1}")
    a(f"""
    s_and_saveexec_b64 s[{sSave}:{sSave+1}], vcc
    s_cbranch_execz K2_ST_DONE
    buffer_store_dwordx4 {vr(vQ,4)}, v{vT1}, s[{sOUT}:{sOUT+3}], 0 offen {opt.outst}
    buffer_store_dwordx4 {vr(vQ+4,4)}, v{vT1}, s[{sOUT}:{sOUT+3}], 0 offen offset:16 {opt.outst}
    K2_ST_DONE:
    s_mov_b64 exec, s[{sSave}:{sSave+1}]
    K2_FIN:
    """)
    st.stamp(a)
    if opt.stamps:
        a("s_waitcnt vmcnt(0)")
        st.stamp(a)
    st.flush(a, sWS, vT0, sWave)
    a("""
    K2_END:
    s_endpgm
    """)
    return a.text(), LDS, 128

def build(opt):
    k, lds, v = gen_k(opt)
    n = NAME + "_kernel"
    out = HEADER
    for _ in range(opt.rep):
        out += f"; @launch kernel={n} grid=({NB},1,1) block=(1024,1,1) lds={lds}\n" if opt.aslist or opt.rep > 1 else f"; @launch grid=({NB},1,1) block=(1024,1,1) lds={lds}\n"
    out += '.amdgcn_target "amdgcn-amd-amdhsa--gfx950"\n.text\n'
    out += f".globl {n}\n.p2align 8\n.type {n},@function\n" + k
    out += '.section .rodata,"a"\n.p2align 6\n' + kd(n, v)
    return out

def parse(argv=None):
    p = argparse.ArgumentParser()
    p.add_argument("-o", default="cdna_kernels/" + NAME + ".s")
    p.add_argument("--stamps", action="store_true")
    p.add_argument("--prefetch", type=int, default=1)
    p.add_argument("--mimic", type=int, default=0)
    p.add_argument("--prio", type=int, default=1)
    p.add_argument("--keep", default="")
    p.add_argument("--exp", default="")
    p.add_argument("--outst", default="")
    p.add_argument("--sleep", type=int, default=1)
    p.add_argument("--drain", type=int, default=1)
    p.add_argument("--wsbase", type=lambda x: int(x, 0), default=0)
    p.add_argument("--cst", default="sc1")
    p.add_argument("--dmalate", type=int, default=0)
    p.add_argument("--rep", type=int, default=1)
    p.add_argument("--aslist", type=int, default=0)
    p.add_argument("--style", default="roll")
    return p.parse_args(argv)

if __name__ == "__main__":
    o = parse()
    open(o.o, "w").write(build(o))
    print("wrote", o.o)
```

```python
import sys, argparse
from gen import A, vr, Stamps, scan64, kd, HEADER, NAME

N, E, D = 12500, 400000, 128
T = 49
NB = 256
CH = 1564
C = 256
XBYTES = N * 256
EBYTES = E * 4
WS_NONCE = 0
WS_OVH = 0x1000
WS_EXTRA = 0x40000
WS_CELLS = 0x100000
CELLROW = 16384
WS_OVF = 0x500000
OVF_STRIDE = 16384
WS_USED = WS_OVF + 256 * OVF_STRIDE
TAGSH = 23
EMPTY = 0x3f
WS_STAMP = 0x1000000
OOB = 0x40000000
DUMMY = 49

def srd_tail(a, d, size):
    a(f"s_mov_b32 s{d+2}, {size}")
    a(f"s_mov_b32 s{d+3}, 0x00020000")

def tile_a_addr(a, vdst, vlane, t0, t1, sP, wbase):
    a(f"""
    v_bfe_u32 v{t0}, v{vlane}, 2, 2
    v_lshrrev_b32 v{t1}, 5, v{vlane}
    v_lshl_add_u32 v{vdst}, v{t1}, 3, v{t0}
    v_lshlrev_b32 v{vdst}, 8, v{vdst}
    v_xor_b32 v{t0}, s{sP}, v{t0}
    v_lshl_add_u32 v{vdst}, v{t0}, 6, v{vdst}
    v_bfe_u32 v{t0}, v{vlane}, 4, 1
    v_bfe_u32 v{t1}, v{vlane}, 1, 1
    v_lshl_add_u32 v{t0}, v{t0}, 1, v{t1}
    v_and_b32 v{t1}, 1, v{vlane}
    v_lshl_add_u32 v{t0}, v{t1}, 2, v{t0}
    v_lshl_add_u32 v{vdst}, v{t0}, 3, v{vdst}
    v_add_u32 v{vdst}, {wbase}, v{vdst}
    """)

def tile_b_addr(a, vdst, vrow, vlane, t0):
    a(f"""
    v_lshrrev_b32 v{t0}, 5, v{vlane}
    v_xor_b32 v{t0}, v{t0}, v{vrow}
    v_and_b32 v{t0}, 15, v{t0}
    v_lshlrev_b32 v{t0}, 4, v{t0}
    v_lshl_add_u32 v{vdst}, v{vrow}, 8, v{t0}
    """)

def gen_k(opt):
    a = A()
    HIST, MAXC, ZROW, TBL = 0, 256, 512, 1024
    NPC = TBL + 1024
    LIST = NPC + 256
    LISTW = 6144
    UNODE = LIST + LISTW * 4
    QS = UNODE + 1536 * 4
    AGGB = QS + 52 * 256
    PIECE = AGGB + 64 * 256
    XT = PIECE
    WQ = XT + 16384
    WV = PIECE + (DUMMY + 64) * 512
    LDS = WV + 32768
    assert WQ + 32768 <= WV
    st = Stamps(opt.stamps, 64, WS_STAMP + 0x40000, [int(x) for x in opt.keep.split(',')] if opt.keep else None)
    sX, sWQ, sWV, sOUT, sWS = 4, 8, 12, 16, 20
    sBeta, sWave, sR, sNR = 24, 25, 26, 27
    sOdd = 28
    sBeta24, sHB, sP, sNH, s196 = 30, 31, 32, 33, 34
    sM = 36
    sSave = 50
    sCnt, sQ, sRem, sT = 52, 53, 54, 55
    vC16, vPB, vLA, vUA, vPrev = 1, 2, 3, 4, 5
    vQP, vQC, vQN = 6, 8, 10
    vAl = (12, 14)
    vQB = 16
    vT0, vT1, vT2, vT3 = 17, 18, 19, 20
    vLane, vStart, vPc = 21, 22, 23
    vAcc, vP, vE, vQ = 24, 32, 40, 48
    vXA, vXB, vTot = 56, 88, 120
    vCand, vHdr, vSo, vN4, vRk = 56, 60, 64, 72, 80
    vCnt = 47
    vHdr2, vSo2, vN42, vRk2 = 88, 92, 96, 100
    sM2 = 56
    vWl = 6
    vWa, vBa, vRow, vQst = 12, 13, 14, 15
    HP = LDS
    OVC, JUNK = HP + 1024, HP + 1040
    H2 = HP + 1280
    ST2 = H2 + 256
    MF = ST2 + 1024
    LDS = MF + 1024
    OVL = LIST
    OVB = LIST + 8192
    STAGE = AGGB
    sSRC, sDST, sNonce, sPi = 56, 60, 35, 3
    sTag = 30
    vDst, vSrc, vEnt, vAdr, vRank, vNeg, vNon, vGo = 56, 58, 60, 62, 64, 68, 66, 67
    vBk = 76
    a(f"""
    {NAME}_kernel:
    s_cmp_ge_u32 s2, {NB}
    s_cbranch_scc1 K2_END
    s_load_dwordx2 s[{sWS}:{sWS+1}], s[0:1], 56
    s_load_dwordx2 s[{sDST}:{sDST+1}], s[0:1], 16
    s_load_dwordx2 s[{sSRC}:{sSRC+1}], s[0:1], 8
    s_load_dwordx2 s[{sX}:{sX+1}], s[0:1], 0
    s_load_dwordx2 s[{sWQ}:{sWQ+1}], s[0:1], 24
    s_load_dwordx2 s[{sWV}:{sWV+1}], s[0:1], 32
    s_load_dwordx2 s[{sOUT}:{sOUT+1}], s[0:1], 40
    """)
    st.stamp(a)
    srd_tail(a, sWS, WS_USED if not opt.stamps else 0x2000000)
    srd_tail(a, sDST, EBYTES); srd_tail(a, sSRC, EBYTES); srd_tail(a, sX, XBYTES); srd_tail(a, sWQ, 32768)
    a(f"""
    v_lshrrev_b32 v{vT0}, 6, v0
    s_mov_b32 s{sBeta}, s2
    s_mul_i32 s3, s2, {CH*4}
    v_readfirstlane_b32 s{sWave}, v{vT0}
    v_lshlrev_b32 v{vT2}, 3, v0
    v_add_u32 v{vT2}, s3, v{vT2}
    s_movk_i32 s{sT}, {CH//2}
    s_cmp_eq_u32 s2, {C-1}
    s_cselect_b32 s{sT}, {(E - (C-1)*CH)//2}, s{sT}
    v_mov_b32 v{vT3}, 0
    v_cmp_gt_u32 vcc, s{sT}, v0
    s_and_saveexec_b64 s[{sSave}:{sSave+1}], vcc
    s_waitcnt lgkmcnt(0)
    {("s_add_u32 s%d, s%d, %d" % (sWS, sWS, opt.wsbase)) if opt.wsbase else ""}
    {("s_addc_u32 s%d, s%d, 0" % (sWS+1, sWS+1)) if opt.wsbase else ""}
    s_cbranch_execz K1_NOEDGE0
    buffer_load_dwordx2 {vr(vDst,2)}, v{vT2}, s[{sDST}:{sDST+3}], 0 offen
    buffer_load_dwordx2 {vr(vSrc,2)}, v{vT2}, s[{sSRC}:{sSRC+3}], 0 offen
    K1_NOEDGE0:
    s_mov_b64 exec, s[{sSave}:{sSave+1}]
    buffer_load_dword v{vNon}, v{vT3}, s[{sWS}:{sWS+3}], 0 offen sc1
    """)
    a(f"""
    v_and_b32 v{vLane}, 63, v0
    v_bfe_u32 v{vT0}, v0, 4, 2
    v_and_b32 v{vT1}, 15, v0
    v_lshlrev_b32 v{vC16}, 4, v{vT1}
    """)
    a(f"""
    v_mov_b32 v{vNeg}, {EMPTY}
    v_mov_b32 v{vNeg+1}, {EMPTY}
    v_mov_b32 v{vNeg+2}, {EMPTY}
    v_mov_b32 v{vNeg+3}, {EMPTY}
    v_lshlrev_b32 v{vT2}, 4, v0
    ds_write_b128 v{vT2}, {vr(vNeg,4)} offset:{STAGE}
    s_cmp_eq_u32 s{sWave}, 12
    s_cbranch_scc0 K1_NOS2
    v_lshlrev_b32 v{vT3}, 4, v{vLane}
    v_add_u32 v{vT3}, {ST2}, v{vT3}
    ds_write_b128 v{vT3}, {vr(vNeg,4)}
    K1_NOS2:
    v_mov_b32 v{vT2}, 0
    v_lshlrev_b32 v{vT3}, 2, v0
    s_cmp_ge_u32 s{sWave}, 6
    s_cbranch_scc1 K1_NOZ0
    v_add_u32 v{vT3}, {HP}, v{vT3}
    ds_write_b32 v{vT3}, v{vT2}
    s_branch K1_NOZ1
    K1_NOZ0:
    s_sub_u32 s3, s{sWave}, 8
    s_cmp_ge_u32 s3, 4
    s_cbranch_scc1 K1_NOZ2
    v_add_u32 v{vT3}, {HIST - 2048}, v{vT3}
    ds_write_b32 v{vT3}, v{vT2}
    s_branch K1_NOZ1
    K1_NOZ2:
    s_cmp_lt_u32 s{sWave}, 12
    s_cbranch_scc1 K1_NOZ1
    v_add_u32 v{vT3}, {MF - 3072}, v{vT3}
    ds_write_b32 v{vT3}, v{vT2}
    K1_NOZ1:
    s_mov_b32 s{sR}, 0
    s_mov_b32 s{sOdd}, 0xaaaaaaaa
    s_mov_b32 s{sOdd+1}, 0xaaaaaaaa
    s_movk_i32 s{s196}, {T*4}
    s_lshl_b32 s3, s{sWave}, 11
    s_add_u32 s3, s3, {PIECE}
    v_lshl_add_u32 v{vPB}, v{vT0}, 9, s3
    v_add_u32 v{vPB}, v{vPB}, v{vC16}
    s_and_b32 s{sPi}, s2, 7
    s_lshl_b32 s{sPi}, s{sPi}, 5
    s_lshr_b32 s{sT}, s2, 3
    s_add_u32 s{sPi}, s{sPi}, s{sT}
    s_mov_b32 s{sHB}, s{sPi}
    v_lshrrev_b32 v{vT2}, 2, v0
    v_lshlrev_b32 v{vGo}, 14, v{vT2}
    v_and_b32 v{vT2}, 3, v0
    v_lshl_add_u32 v{vGo}, v{vT2}, 4, v{vGo}
    v_mov_b32 v{vT3}, 1
    s_waitcnt lgkmcnt(0)
    s_barrier
    """)
    st.stamp(a)
    def early_dma():
        a(f"""
        v_bfe_u32 v{vT0}, v0, 4, 2
        v_and_b32 v{vT1}, 15, v0
        v_lshlrev_b32 v{vT2}, 2, v{vT0}
        v_xor_b32 v{vT2}, v{vT2}, v{vT1}
        v_lshlrev_b32 v{vT2}, 4, v{vT2}
        v_lshl_add_u32 v{vWl}, v{vT0}, 8, v{vT2}
        s_cmp_lt_u32 s{sWave}, 8
        s_cbranch_scc1 K2_L2
        s_sub_u32 s{sQ}, s{sWave}, 8
        """)
        def xt_dma(jreg):
            a(f"""
            s_lshl_b32 s3, s{jreg}, 2
            v_add_u32 v{vT2}, s3, v{vT0}
            v_xor_b32 v{vEnt}, v{vT2}, v{vT1}
            v_and_b32 v{vEnt}, 15, v{vEnt}
            v_lshlrev_b32 v{vEnt}, 4, v{vEnt}
            v_lshl_add_u32 v{vEnt}, v{vT2}, 8, v{vEnt}
            s_mul_i32 s3, s{sBeta}, {T*256}
            s_lshl_b32 s{sT}, s{jreg}, 10
            s_add_u32 s{sT}, s{sT}, {XT}
            s_mov_b32 m0, s{sT}
            s_nop 0
            buffer_load_dwordx4 v{vEnt}, s[{sX}:{sX+3}], s3 offen lds
            """)
        xt_dma(sQ)
        a(f"""
        s_cmp_ge_u32 s{sWave}, 13
        s_cbranch_scc1 K2_L3
        s_mov_b32 s{sRem}, s{sWave}
        """)
        xt_dma(sRem)
        a(f"""
        K2_L3:
        s_lshl_b32 s3, s{sQ}, 12
        s_add_u32 s{sT}, s3, {WQ}
        """)
        for i in range(4):
            a(f"""
            s_mov_b32 m0, s{sT}
            s_add_u32 s{sT}, s{sT}, 1024
            buffer_load_dwordx4 v{vWl}, s[{sWQ}:{sWQ+3}], s3 offen lds
            s_add_u32 s3, s3, 1024
            """)
        a("K2_L2:")
    if not opt.dmalate: early_dma()
    else:
        a(f"""
        v_bfe_u32 v{vT0}, v0, 4, 2
        v_and_b32 v{vT1}, 15, v0
        v_lshlrev_b32 v{vT2}, 2, v{vT0}
        v_xor_b32 v{vT2}, v{vT2}, v{vT1}
        v_lshlrev_b32 v{vT2}, 4, v{vT2}
        v_lshl_add_u32 v{vWl}, v{vT0}, 8, v{vT2}
        """)
    if opt.prefetch == 1:
        a(f"""
        s_cmp_eq_u32 s{sWave}, 14
        s_cbranch_scc0 K1_NOPF
        s_mul_i32 s3, s2, 12544
        v_lshlrev_b32 v{vT2}, 7, v{vLane}
        buffer_load_dword v{vNeg+4}, v{vT2}, s[{sX}:{sX+3}], s3 offen
        s_add_u32 s3, s3, 8192
        v_cmp_gt_u32 vcc, 34, v{vLane}
        v_mov_b32 v{vEnt}, {OOB}
        s_nop 0
        v_cndmask_b32_e64 v{vT2}, v{vEnt}, v{vT2}, vcc
        buffer_load_dword v{vNeg+4}, v{vT2}, s[{sX}:{sX+3}], s3 offen
        K1_NOPF:
        """)
    sPiK = sHB
    srd_tail(a, sWV, 32768); srd_tail(a, sOUT, XBYTES)
    for i in range(8):
        a(f"v_mov_b32 v{vTot+i}, 0")
    a(f"""
    v_bfe_u32 v{vT2}, v{vLane}, 2, 1
    v_mul_u32_u24 v{vT2}, 12, v{vT2}
    v_and_b32 v{vT0}, 3, v{vLane}
    v_or_b32 v{vT2}, v{vT2}, v{vT0}
    v_lshlrev_b32 v{vUA}, 8, v{vLane}
    v_lshl_or_b32 v{vUA}, v{vT2}, 4, v{vUA}
    """)
    a(f"""
    s_and_b32 s{sP}, s{sWave}, 3
    s_bfe_u32 s{sNH}, s{sWave}, 0x10002
    s_cmp_ge_u32 s{sWave}, 8
    s_cbranch_scc1 K2_NOQA
    """)
    tile_a_addr(a, vWa, vLane, vT2, vT0, sP, WQ)
    a(f"""
    v_and_b32 v{vRow}, 31, v{vLane}
    s_lshl_b32 s3, s{sNH}, 5
    v_add_u32 v{vRow}, s3, v{vRow}
    """)
    tile_b_addr(a, vBa, vRow, vLane, vT0)
    a(f"""
    v_bfe_u32 v{vT2}, v{vRow}, 2, 1
    v_mul_u32_u24 v{vT2}, 12, v{vT2}
    v_and_b32 v{vT0}, 3, v{vRow}
    v_or_b32 v{vT2}, v{vT2}, v{vT0}
    v_lshrrev_b32 v{vT0}, 5, v{vLane}
    s_lshl_b32 s3, s{sP}, 2
    v_lshl_add_u32 v{vT0}, v{vT0}, 1, s3
    v_xor_b32 v{vT2}, v{vT2}, v{vT0}
    v_lshlrev_b32 v{vT2}, 4, v{vT2}
    v_lshl_add_u32 v{vQst}, v{vRow}, 8, v{vT2}
    K2_NOQA:
    """)
    a(f"""
    s_movk_i32 s{sT}, {CH//2}
    s_cmp_eq_u32 s2, {C-1}
    s_cselect_b32 s{sT}, {(E - (C-1)*CH)//2}, s{sT}
    v_cmp_gt_u32 vcc, s{sT}, v0
    s_and_saveexec_b64 s[{sSave}:{sSave+1}], vcc
    s_cbranch_execz K1_EDGE1_DONE
    s_mov_b32 s{sT}, -{T}
    s_mov_b32 s{sCnt}, {STAGE}
    s_cmp_lt_u32 s{sWave}, 8
    s_cbranch_scc1 K1_EW0
    s_waitcnt vmcnt({1 if opt.dmalate else 7})
    s_branch K1_EW1
    K1_EW0:
    s_waitcnt vmcnt(1)
    K1_EW1:
    """)
    st.stamp(a)
    for i in range(2):
        a(f"""
        v_mul_u32_u24 v{vT0}, 21400, v{vDst+i}
        v_lshrrev_b32 v{vT0}, 20, v{vT0}
        v_lshlrev_b32 v{vAdr+i}, 2, v{vT0}
        v_add_u32 v{vT2}, {HP}, v{vAdr+i}
        ds_add_rtn_u32 v{vRank+i}, v{vT2}, v{vT3}
        v_mad_i32_i24 v{vT1}, v{vT0}, s{sT}, v{vDst+i}
        v_lshl_or_b32 v{vEnt+i}, v{vSrc+i}, 8, v{vT1}
        v_mov_b32 v{vBk+i}, v{vT0}
        v_lshl_add_u32 v{vAdr+i}, v{vAdr+i}, 4, s{sCnt}
        """)
    a(f"v_mov_b32 v{vT2}, {JUNK}")
    for i in range(2):
        a(f"""
        s_waitcnt lgkmcnt({1-i})
        v_cmp_gt_u32 s[{sM+2*i}:{sM+2*i+1}], 16, v{vRank+i}
        v_lshl_add_u32 v{vT0}, v{vRank+i}, 2, v{vAdr+i}
        s_nop 0
        v_cndmask_b32_e64 v{vT0}, v{vT2}, v{vT0}, s[{sM+2*i}:{sM+2*i+1}]
        ds_write_b32 v{vT0}, v{vEnt+i}
        """)
    a(f"""
    s_and_b64 s[{sM+4}:{sM+5}], s[{sM}:{sM+1}], s[{sM+2}:{sM+3}]
    s_andn2_b64 s[{sM+4}:{sM+5}], exec, s[{sM+4}:{sM+5}]
    s_cbranch_scc0 K1_EDGE1_DONE
    s_mov_b64 s[{sM+6}:{sM+7}], exec
    """)
    for i in range(2):
        a(f"""
        s_andn2_b64 exec, s[{sM+6}:{sM+7}], s[{sM+2*i}:{sM+2*i+1}]
        s_cbranch_execz K1_OV_{i}
        v_and_b32 v{vT0}, 7, v{vBk+i}
        v_lshrrev_b32 v{vT1}, 5, v{vBk+i}
        v_lshl_add_u32 v{vT0}, v{vT1}, 3, v{vT0}
        v_lshlrev_b32 v{vT1}, 2, v{vT0}
        v_add_u32 v{vT1}, {H2}, v{vT1}
        ds_add_rtn_u32 v{vT1}, v{vT1}, v{vT3}
        v_bfe_u32 v{vT2}, v{vBk+i}, 3, 2
        v_lshl_or_b32 v{vT2}, v{vT2}, 6, v{vEnt+i}
        v_lshlrev_b32 v{vT0}, 4, v{vT0}
        v_add_u32 v{vT0}, {ST2}, v{vT0}
        s_waitcnt lgkmcnt(0)
        v_cmp_gt_u32 vcc, 4, v{vT1}
        v_lshl_add_u32 v{vT0}, v{vT1}, 2, v{vT0}
        s_mov_b64 s[{sM+8}:{sM+9}], exec
        s_and_b64 exec, exec, vcc
        ds_write_b32 v{vT0}, v{vT2}
        s_andn2_b64 exec, s[{sM+8}:{sM+9}], vcc
        s_cbranch_execz K1_OV_{i}
        v_mov_b32 v{vT0}, {OVC}
        ds_add_rtn_u32 v{vT0}, v{vT0}, v{vT3}
        s_waitcnt lgkmcnt(0)
        v_lshlrev_b32 v{vT0}, 2, v{vT0}
        ds_write_b32 v{vT0}, v{vEnt+i} offset:{OVL}
        ds_write_b32 v{vT0}, v{vBk+i} offset:{OVB}
        K1_OV_{i}:
        """)
    a(f"""
    K1_EDGE1_DONE:
    s_mov_b64 exec, s[{sSave}:{sSave+1}]
    v_lshlrev_b32 v{vT0}, 4, v0
    s_waitcnt lgkmcnt(0)
    s_barrier
    """)
    st.stamp(a)
    a(f"""
    s_cmp_ge_u32 s{sWave}, 8
    s_cbranch_scc1 K1_NOCOPY
    ds_read_b128 {vr(vNeg,4)}, v{vT0} offset:{STAGE}
    ds_read_b128 {vr(vNeg+4,4)}, v{vT0} offset:{STAGE + 8192}
    s_lshl_b32 s3, s{sPiK}, 6
    s_add_u32 s3, s3, {WS_CELLS}
    s_add_u32 s{sT}, s3, {128*CELLROW}
    s_waitcnt vmcnt(0)
    v_readfirstlane_b32 s{sNonce}, v{vNon}
    s_nop 3
    s_and_b32 s{sTag}, s{sNonce}, {(0xffffffff << TAGSH) & 0xffffffff}
    s_add_u32 s{sTag}, s{sTag}, {1 << TAGSH}
    s_waitcnt lgkmcnt(1)
    """)
    for i in range(4): a(f"v_or_b32 v{vNeg+i}, s{sTag}, v{vNeg+i}")
    a(f"""
    buffer_store_dwordx4 {vr(vNeg,4)}, v{vGo}, s[{sWS}:{sWS+3}], s3 offen {opt.cst}
    s_waitcnt lgkmcnt(0)
    """)
    for i in range(4, 8): a(f"v_or_b32 v{vNeg+i}, s{sTag}, v{vNeg+i}")
    a(f"""
    buffer_store_dwordx4 {vr(vNeg+4,4)}, v{vGo}, s[{sWS}:{sWS+3}], s{sT} offen {opt.cst}
    s_cmp_eq_u32 s{sWave}, 6
    s_cbranch_scc0 K1_NOX
    v_lshlrev_b32 v{vT1}, 4, v{vLane}
    v_add_u32 v{vT1}, {ST2}, v{vT1}
    ds_read_b128 {vr(vDst,4)}, v{vT1}
    v_lshlrev_b32 v{vT1}, 2, v{vLane}
    v_add_u32 v{vT1}, {H2}, v{vT1}
    ds_read_b32 v{vT1}, v{vT1}
    v_lshlrev_b32 v{vT2}, 12, v{vLane}
    s_lshl_b32 s3, s{sPiK}, 4
    s_add_u32 s3, s3, {WS_EXTRA}
    v_mov_b32 v{vT3}, {1 << 22}
    s_waitcnt lgkmcnt(0)
    v_cmp_lt_u32 vcc, 4, v{vT1}
    """)
    for i in range(4): a(f"v_or_b32 v{vDst+i}, s{sTag}, v{vDst+i}")
    a(f"""
    v_cndmask_b32_e64 v{vT3}, 0, v{vT3}, vcc
    v_or_b32 v{vDst+3}, v{vT3}, v{vDst+3}
    buffer_store_dwordx4 {vr(vDst,4)}, v{vT2}, s[{sWS}:{sWS+3}], s3 offen {opt.cst}
    K1_NOX:
    s_cmp_eq_u32 s{sWave}, 7
    s_cbranch_scc0 K1_DRAIN
    v_mov_b32 v{vT3}, {OVC}
    ds_read_b32 v{vRank}, v{vT3}
    s_waitcnt lgkmcnt(0)
    v_readfirstlane_b32 s{sCnt}, v{vRank}
    s_nop 3
    s_cmp_eq_u32 s{sCnt}, 0
    s_cbranch_scc1 K1_DRAIN
    s_min_u32 s{sCnt}, s{sCnt}, {CH}
    s_lshl_b32 s{sT}, s{sPiK}, 4
    s_add_u32 s{sT}, s{sT}, {WS_OVH}
    v_mov_b32 v{vT2}, s{sT}
    v_or_b32 v{vRank}, s{sTag}, v{vRank}
    s_mov_b64 exec, 1
    buffer_store_dword v{vRank}, v{vT2}, s[{sWS}:{sWS+3}], 0 offen sc1
    s_mov_b64 exec, -1
    s_mul_i32 s3, s{sPiK}, {OVF_STRIDE}
    s_add_u32 s3, s3, {WS_OVF}
    v_mov_b32 v{vT0}, v{vLane}
    K1_OVL:
    v_cmp_gt_u32 vcc, s{sCnt}, v{vT0}
    s_and_b64 exec, exec, vcc
    s_cbranch_execz K1_OVD
    v_lshlrev_b32 v{vT1}, 2, v{vT0}
    ds_read_b32 v{vDst}, v{vT1} offset:{OVL}
    ds_read_b32 v{vDst+1}, v{vT1} offset:{OVB}
    v_lshlrev_b32 v{vT1}, 3, v{vT0}
    s_waitcnt lgkmcnt(0)
    v_or_b32 v{vDst}, s{sTag}, v{vDst}
    v_or_b32 v{vDst+1}, s{sTag}, v{vDst+1}
    buffer_store_dwordx2 {vr(vDst,2)}, v{vT1}, s[{sWS}:{sWS+3}], s3 offen sc1
    v_add_u32 v{vT0}, 64, v{vT0}
    s_branch K1_OVL
    K1_OVD:
    s_mov_b64 exec, -1
    K1_DRAIN:
    {"s_waitcnt vmcnt(0)" if opt.drain == 1 else ""}
    s_branch K1_COPIED
    K1_NOCOPY:
    s_waitcnt vmcnt(0)
    v_readfirstlane_b32 s{sNonce}, v{vNon}
    s_nop 3
    s_and_b32 s{sTag}, s{sNonce}, {(0xffffffff << TAGSH) & 0xffffffff}
    s_add_u32 s{sTag}, s{sTag}, {1 << TAGSH}
    K1_COPIED:
    s_barrier
    """)
    st.stamp(a)
    st.stamp(a)
    a(f"""
    s_cmp_ge_u32 s{sWave}, 8
    s_cbranch_scc1 K2_NOQ
    """)
    vA8, vQAcc = vXB, vAcc
    Bq = [vE, vE+4, vQ, vQ+4]
    def a_reads(ks):
        a(f"ds_read_b64_tr_b16 {vr(vA8+4*ks,2)}, v{vWa} offset:{ks*4096}")
        a(f"ds_read_b64_tr_b16 {vr(vA8+4*ks+2,2)}, v{vWa} offset:{ks*4096 + 1024}")
    def b_read(ks):
        a(f"v_xor_b32 v{vT2}, {32*ks}, v{vBa}")
        a(f"ds_read_b128 {vr(Bq[ks & 3],4)}, v{vT2} offset:{XT}")
    def mfma(ks):
        c = "0" if ks == 0 else vr(vQAcc,16)
        a(f"v_mfma_f32_32x32x16_bf16 {vr(vQAcc,16)}, {vr(vA8+4*ks,4)}, {vr(Bq[ks & 3],4)}, {c}")
    for ks in range(4):
        a_reads(ks); b_read(ks)
    for ks in range(4):
        a("s_waitcnt lgkmcnt(9)")
        mfma(ks)
        a_reads(ks+4); b_read(ks+4)
    for ks in range(4, 8):
        a(f"s_waitcnt lgkmcnt({3*(7-ks)})")
        mfma(ks)
    a(f"""
    v_cmp_gt_u32 vcc, 52, v{vRow}
    v_xor_b32 v{vT2}, 16, v{vQst}
    s_nop 7
    s_nop 2
    """)
    for i in range(8):
        a(f"v_cvt_pk_bf16_f32 v{vA8+i}, v{vQAcc+2*i}, v{vQAcc+2*i+1}")
    a(f"""
    s_mov_b64 exec, vcc
    ds_write_b128 v{vQst}, {vr(vA8,4)} offset:{QS}
    ds_write_b128 v{vT2}, {vr(vA8+4,4)} offset:{QS}
    s_mov_b64 exec, -1
    """)
    a(f"""
    s_lshl_b32 s3, s{sWave}, 12
    s_add_u32 s{sT}, s3, {WV}
    """)
    for i in range(4):
        a(f"""
        s_mov_b32 m0, s{sT}
        s_add_u32 s{sT}, s{sT}, 1024
        buffer_load_dwordx4 v{vWl}, s[{sWV}:{sWV+3}], s3 offen lds
        s_add_u32 s3, s3, 1024
        """)
    a("s_branch K2_HDRD")
    vW, vXw, vSoM, vSoX, vN4M, vN4X, vRkM, vRkX, vPos, vCn = 56, 64, 68, 76, 80, 88, 92, 100, 104, 112
    def mask(i): return (sM + 2*i) if i < 7 else 0
    a(f"""
    K2_NOQ:
    """)
    st.stamp(a)
    a(f"""
    s_sub_u32 s{sRem}, s{sWave}, 8
    s_lshl_b32 s3, s{sRem}, 11
    v_lshlrev_b32 v{vT0}, 4, v{vLane}
    v_add_u32 v{vT0}, s3, v{vT0}
    s_lshl_b32 s3, s{sBeta}, 14
    s_add_u32 s3, s3, {WS_CELLS}
    s_mov_b32 s{sT}, {1 << 17}
    s_mov_b32 s{sQ}, {1 << TAGSH}
    s_mov_b32 exec_lo, 0
    s_mov_b32 exec_hi, 0x80000000
    K1_CAN:
    buffer_load_dword v{vT1}, v{vT0}, s[{sWS}:{sWS+3}], s3 offen offset:1036 sc1
    s_waitcnt vmcnt(0)
    v_xor_b32 v{vT1}, s{sTag}, v{vT1}
    v_cmp_le_u32 vcc, s{sQ}, v{vT1}
    s_cbranch_vccz K1_CAND
    s_sleep {opt.sleep}
    s_sub_u32 s{sT}, s{sT}, 1
    s_cmp_lg_u32 s{sT}, 0
    s_cbranch_scc1 K1_CAN
    K1_CAND:
    s_mov_b64 exec, -1
    {"s_sleep %d" % opt.sleep2 if opt.sleep2 else ""}
    s_mov_b32 s{sT}, {1 << 17}
    K1_TP:
    buffer_load_dwordx4 {vr(vW,4)}, v{vT0}, s[{sWS}:{sWS+3}], s3 offen sc1
    buffer_load_dwordx4 {vr(vW+4,4)}, v{vT0}, s[{sWS}:{sWS+3}], s3 offen offset:1024 sc1
    s_waitcnt vmcnt(0)
    """)
    for i in range(8): a(f"v_xor_b32 v{vW+i}, s{sTag}, v{vW+i}")
    a(f"""
    v_or3_b32 v{vT1}, v{vW}, v{vW+1}, v{vW+2}
    v_or3_b32 v{vT1}, v{vT1}, v{vW+3}, v{vW+4}
    v_or3_b32 v{vT1}, v{vT1}, v{vW+5}, v{vW+6}
    v_or_b32 v{vT1}, v{vT1}, v{vW+7}
    v_cmp_le_u32 vcc, s{sQ}, v{vT1}
    s_and_b64 exec, exec, vcc
    s_cbranch_execz K1_TPD
    s_sleep {opt.sleep}
    s_sub_u32 s{sT}, s{sT}, 1
    s_cmp_lg_u32 s{sT}, 0
    s_cbranch_scc1 K1_TP
    K1_TPD:
    s_mov_b64 exec, -1
    """)
    for i in range(4): a(f"v_mov_b32 v{vXw+i}, {EMPTY}")
    a(f"""
    s_and_b32 s3, s{sBeta}, 7
    s_lshr_b32 s{sCnt}, s{sBeta}, 5
    s_lshl_b32 s{sCnt}, s{sCnt}, 3
    s_add_u32 s3, s3, s{sCnt}
    s_lshl_b32 s3, s3, 12
    s_lshl_b32 s{sCnt}, s{sRem}, 9
    s_add_u32 s3, s3, s{sCnt}
    s_add_u32 s3, s3, {WS_EXTRA}
    v_lshlrev_b32 v{vT0}, 4, v{vLane}
    s_mov_b32 s{sT}, {1 << 17}
    s_mov_b32 exec_lo, -1
    s_mov_b32 exec_hi, 0
    K1_XP:
    buffer_load_dwordx4 {vr(vXw,4)}, v{vT0}, s[{sWS}:{sWS+3}], s3 offen sc1
    s_waitcnt vmcnt(0)
    """)
    for i in range(4): a(f"v_xor_b32 v{vXw+i}, s{sTag}, v{vXw+i}")
    a(f"""
    v_or3_b32 v{vT1}, v{vXw}, v{vXw+1}, v{vXw+2}
    v_or_b32 v{vT1}, v{vT1}, v{vXw+3}
    v_cmp_le_u32 vcc, s{sQ}, v{vT1}
    s_and_b64 exec, exec, vcc
    s_cbranch_execz K1_XPD
    s_sleep {opt.sleep}
    s_sub_u32 s{sT}, s{sT}, 1
    s_cmp_lg_u32 s{sT}, 0
    s_cbranch_scc1 K1_XP
    K1_XPD:
    s_mov_b64 exec, -1
    v_and_b32 v{vT1}, {1 << 22}, v{vXw+3}
    v_cmp_ne_u32 vcc, 0, v{vT1}
    s_cbranch_vccz K1_NOXP
    s_mov_b64 exec, vcc
    s_lshl_b32 s3, s{sRem}, 9
    s_add_u32 s3, s3, {WS_OVH}
    s_mov_b32 s{sT}, {1 << 17}
    K1_HP:
    buffer_load_dword v{vT1}, v{vT0}, s[{sWS}:{sWS+3}], s3 offen sc1
    s_waitcnt vmcnt(0)
    v_xor_b32 v{vT2}, s{sTag}, v{vT1}
    v_cmp_le_u32 vcc, s{sQ}, v{vT2}
    s_cbranch_vccz K1_HPD
    s_sleep 2
    s_sub_u32 s{sT}, s{sT}, 1
    s_cmp_lg_u32 s{sT}, 0
    s_cbranch_scc1 K1_HP
    K1_HPD:
    v_min_u32 v{vT2}, {CH}, v{vT2}
    s_lshl_b32 s3, s{sRem}, 7
    s_add_u32 s3, s3, {MF}
    v_lshlrev_b32 v{vT1}, 2, v{vLane}
    v_add_u32 v{vT1}, s3, v{vT1}
    ds_write_b32 v{vT1}, v{vT2}
    v_mov_b32 v{vT1}, {MAXC}
    ds_max_u32 v{vT1}, v{vT2}
    s_mov_b64 exec, -1
    K1_NOXP:
    v_mov_b32 v{vT3}, 1
    """)
    st.stamp(a)
    a("K2_DECODE:")
    for i in range(8):
        m = mask(i)
        a(f"""
        v_lshlrev_b32 v{vN4M+i}, 2, v{vW+i}
        v_and_b32 v{vN4M+i}, 0xfc, v{vN4M+i}
        v_cmp_gt_u32 s[{m}:{m+1}], s{s196}, v{vN4M+i}
        v_and_b32 v{vSoM+i}, 0x003fff00, v{vW+i}
        """)
        if i >= 1:
            mp = mask(i-1)
            a(f"""
            s_mov_b64 exec, s[{mp}:{mp+1}]
            ds_add_rtn_u32 v{vRkM+i-1}, v{vN4M+i-1}, v{vT3} offset:{HIST}
            s_mov_b64 exec, -1
            """)
    a(f"""
    s_mov_b64 exec, s[{mask(7)}:{mask(7)+1}]
    ds_add_rtn_u32 v{vRkM+7}, v{vN4M+7}, v{vT3} offset:{HIST}
    s_mov_b64 exec, -1
    s_mov_b64 s[{sM+14}:{sM+15}], 0
    s_cmp_eq_u32 s{sR}, 0
    s_cbranch_scc0 K2_HDRD
    v_and_b32 v{vT0}, v{vXw}, v{vXw+1}
    v_and_b32 v{vT1}, v{vXw+2}, v{vXw+3}
    v_and_b32 v{vT0}, v{vT0}, v{vT1}
    v_and_b32 v{vT0}, 63, v{vT0}
    v_cmp_ne_u32 vcc, 63, v{vT0}
    s_cbranch_vccz K2_HDRD
    s_bfe_u32 s{sT}, s{sBeta}, 0x20003
    """)
    for i in range(4):
        w, m = vXw + i, sM2 + 2*i
        a(f"""
        v_bfe_u32 v{vT0}, v{w}, 6, 2
        v_cmp_eq_u32 vcc, s{sT}, v{vT0}
        v_mov_b32 v{vT1}, {EMPTY}
        v_and_b32 v{vT2}, 0x003fff3f, v{w}
        s_nop 0
        v_cndmask_b32_e64 v{w}, v{vT1}, v{vT2}, vcc
        v_lshlrev_b32 v{vN4X+i}, 2, v{w}
        v_and_b32 v{vN4X+i}, 0xfc, v{vN4X+i}
        v_cmp_gt_u32 s[{m}:{m+1}], s{s196}, v{vN4X+i}
        v_and_b32 v{vSoX+i}, 0x003fff00, v{w}
        """)
    a(f"""
    s_or_b64 s[{sM+14}:{sM+15}], s[{sM2}:{sM2+1}], s[{sM2+2}:{sM2+3}]
    s_or_b64 s[{sM+14}:{sM+15}], s[{sM+14}:{sM+15}], s[{sM2+4}:{sM2+5}]
    s_or_b64 s[{sM+14}:{sM+15}], s[{sM+14}:{sM+15}], s[{sM2+6}:{sM2+7}]
    s_cbranch_scc0 K2_HDRD
    """)
    for i in range(4):
        m = sM2 + 2*i
        a(f"""
        s_mov_b64 exec, s[{m}:{m+1}]
        ds_add_rtn_u32 v{vRkX+i}, v{vN4X+i}, v{vT3} offset:{HIST}
        """)
    a(f"""
    s_mov_b64 exec, -1
    K2_HDRD:
    s_waitcnt lgkmcnt(0)
    s_barrier
    """)
    st.stamp(a)
    a(f"""
    v_lshlrev_b32 v{vT2}, 2, v{vLane}
    ds_read_b32 v{vCn}, v{vT2} offset:{HIST}
    s_lshl_b32 s{sT}, s{sWave}, 2
    s_waitcnt lgkmcnt(0)
    v_add_u32 v{vPc}, 3, v{vCn}
    v_and_b32 v{vPc}, -4, v{vPc}
    v_mov_b32 v{vStart}, v{vPc}
    v_cmp_lt_u32 vcc, s{sT}, v{vPc}
    s_nop 0
    """)
    steps = ["row_shr:1 row_mask:0xf bank_mask:0xf bound_ctrl:1", "row_shr:2 row_mask:0xf bank_mask:0xf bound_ctrl:1",
             "row_shr:4 row_mask:0xf bank_mask:0xf bound_ctrl:1", "row_shr:8 row_mask:0xf bank_mask:0xf bound_ctrl:1",
             "row_bcast:15 row_mask:0xa bank_mask:0xf", "row_bcast:31 row_mask:0xc bank_mask:0xf"]
    for i, stp in enumerate(steps):
        a(f"v_add_u32_dpp v{vStart}, v{vStart}, v{vStart} {stp}")
        a("s_nop 1" if i < 5 else "s_nop 0")
    a(f"""
    v_readlane_b32 s{sCnt}, v{vStart}, 63
    v_sub_u32 v{vStart}, v{vStart}, v{vPc}
    s_cmp_lt_u32 s{sWave}, 8
    s_cbranch_scc1 K2_NOBP
    """)
    for i in range(8):
        a(f"ds_bpermute_b32 v{vPos+i}, v{vN4M+i}, v{vStart}")
    a(f"""
    K2_NOBP:
    v_add_u32 v{vT0}, s{sT}, v{vStart}
    s_mov_b64 exec, vcc
    ds_write_b32 v{vT0}, v{vUA} offset:{UNODE}
    s_mov_b64 exec, -1
    v_cmp_lt_u32 vcc, 64, v{vPc}
    s_cbranch_vccz K2_UND
    K2_UN:
    s_add_u32 s{sT}, s{sT}, 64
    v_cmp_lt_u32 vcc, s{sT}, v{vPc}
    s_cbranch_vccz K2_UND
    v_add_u32 v{vT0}, s{sT}, v{vStart}
    s_mov_b64 exec, vcc
    ds_write_b32 v{vT0}, v{vUA} offset:{UNODE}
    s_mov_b64 exec, -1
    s_branch K2_UN
    K2_UND:
    s_cmp_gt_u32 s{sWave}, 4
    s_cbranch_scc1 K2_NOPAD
    v_mov_b32 v{vT2}, {OOB}
    s_cmp_gt_u32 s{sWave}, 2
    s_cbranch_scc1 K2_TAILPAD
    v_sub_u32 v{vT1}, v{vPc}, v{vCn}
    v_add_u32 v{vT0}, v{vStart}, v{vCn}
    v_cmp_lt_u32 vcc, s{sWave}, v{vT1}
    v_add_u32 v{vT0}, s{sWave}, v{vT0}
    v_lshlrev_b32 v{vT0}, 2, v{vT0}
    s_mov_b64 exec, vcc
    ds_write_b32 v{vT0}, v{vT2} offset:{LIST}
    s_mov_b64 exec, -1
    s_branch K2_NOPAD
    K2_TAILPAD:
    v_lshlrev_b32 v{vT1}, 2, v{vLane}
    s_cmp_eq_u32 s{sWave}, 3
    s_cbranch_scc0 K2_TAILU
    s_lshl_b32 s{sT}, s{sCnt}, 2
    v_add_u32 v{vT0}, s{sT}, v{vT1}
    s_mov_b64 exec, 0xfffffff
    ds_write_b32 v{vT0}, v{vT2} offset:{LIST}
    s_mov_b64 exec, -1
    s_branch K2_NOPAD
    K2_TAILU:
    v_add_u32 v{vT0}, s{sCnt}, v{vT1}
    v_mov_b32 v{vT2}, {DUMMY*256 + 16*((DUMMY & 3) | (12*((DUMMY >> 2) & 1)))}
    s_mov_b64 exec, 0x7f
    ds_write_b32 v{vT0}, v{vT2} offset:{UNODE}
    s_mov_b64 exec, -1
    K2_NOPAD:
    s_add_u32 s3, s{sCnt}, 31
    s_lshr_b32 s3, s3, 5
    s_lshr_b32 s{sQ}, s3, 4
    s_and_b32 s{sRem}, s3, 15
    s_cmp_lt_u32 s{sWave}, s{sRem}
    s_cselect_b32 s{sNH}, 1, 0
    s_add_u32 s{sHB}, s{sQ}, s{sNH}
    s_min_u32 s3, s{sRem}, s{sWave}
    s_mul_i32 s{sT}, s{sQ}, s{sWave}
    s_add_u32 s{sT}, s{sT}, s3
    v_lshrrev_b32 v{vT0}, 4, v{vLane}
    s_lshl_b32 s3, s{sHB}, 1
    v_mul_u32_u24 v{vT0}, s3, v{vT0}
    s_lshl_b32 s3, s{sT}, 3
    v_add_u32 v{vT0}, s3, v{vT0}
    v_lshlrev_b32 v{vLA}, 4, v{vT0}
    v_lshlrev_b32 v{vUA}, 2, v{vT0}
    s_cmp_lt_u32 s{sWave}, 8
    s_cbranch_scc1 K2_SC_Q
    s_waitcnt lgkmcnt(0)
    """)
    for i in range(8):
        a(f"v_add_lshl_u32 v{vPos+i}, v{vPos+i}, v{vRkM+i}, 2")
    for i in range(8):
        m = mask(i)
        a(f"s_mov_b64 exec, s[{m}:{m+1}]")
        a(f"ds_write_b32 v{vPos+i}, v{vSoM+i} offset:{LIST}")
    a(f"""
    s_mov_b64 exec, -1
    s_cmp_eq_u64 s[{sM+14}:{sM+15}], 0
    s_cbranch_scc1 K2_SORT_DONE
    """)
    for i in range(4):
        a(f"ds_bpermute_b32 v{vPos+i}, v{vN4X+i}, v{vStart}")
    a("s_waitcnt lgkmcnt(0)")
    for i in range(4):
        a(f"""
        v_add_lshl_u32 v{vPos+i}, v{vPos+i}, v{vRkX+i}, 2
        s_mov_b64 exec, s[{sM2+2*i}:{sM2+2*i+1}]
        ds_write_b32 v{vPos+i}, v{vSoX+i} offset:{LIST}
        s_mov_b64 exec, -1
        """)
    a(f"""
    s_branch K2_SORT_DONE
    K2_SC_Q:
    s_waitcnt vmcnt(0)
    K2_SORT_DONE:
    """)
    st.stamp(a)
    a(f"""
    s_waitcnt lgkmcnt(0)
    s_barrier
    """)
    st.stamp(a)
    if "cyc" in opt.exp: st.stamp(a, True)
    if opt.prio: a("s_setprio 3")
    a(f"""
    s_cmp_eq_u32 s{sHB}, 0
    s_cbranch_scc1 K2_NOMAIN
    ds_read_b128 {vr(vE,4)}, v{vLA} offset:{LIST}
    ds_read_b128 {vr(vE+4,4)}, v{vLA} offset:{LIST+16}
    ds_read_b64 {vr(vQC,2)}, v{vUA} offset:{UNODE}
    """)
    for i in range(8):
        a(f"v_mov_b32 v{vAcc+i}, 0")
    a("s_waitcnt lgkmcnt(1)")
    for u in range(8):
        a(f"v_add_u32 v{vE+u}, v{vE+u}, v{vC16}")
        a(f"buffer_load_dwordx4 {vr(vXA+4*u,4)}, v{vE+u}, s[{sX}:{sX+3}], 0 offen")
        if u == 0:
            a(f"""
            s_waitcnt lgkmcnt(0)
            v_xor_b32 v{vT0}, v{vQC}, v{vC16}
            v_xor_b32 v{vT1}, v{vQC+1}, v{vC16}
            ds_read_b128 {vr(vQ,4)}, v{vT0} offset:{QS}
            ds_read_b128 {vr(vQ+4,4)}, v{vT1} offset:{QS}
            v_mov_b32 v{vPrev}, v{vQC}
            """)
    if "bstamp" in opt.exp: st.stamp(a)
    wv_id = [0]
    def wv_dma():
        i = wv_id[0]; wv_id[0] += 1
        a(f"""
        s_cmp_eq_u32 s{sR}, 0
        s_cbranch_scc0 K2_NOWV{i}
        s_lshl_b32 s3, s{sWave}, 11
        s_add_u32 s{sT}, s3, {WV}
        s_mov_b32 m0, s{sT}
        s_add_u32 s{sT}, s{sT}, 1024
        buffer_load_dwordx4 v{vWl}, s[{sWV}:{sWV+3}], s3 offen lds
        s_mov_b32 m0, s{sT}
        s_add_u32 s3, s3, 1024
        buffer_load_dwordx4 v{vWl}, s[{sWV}:{sWV+3}], s3 offen lds
        K2_NOWV{i}:
        """)
    flush_id = [0]
    def flush(prev, masked):
        fid = flush_id[0]; flush_id[0] += 1
        t = ""
        if masked is not None:
            t += f"""
            v_cmp_ne_u32 vcc, v{masked}, v{prev}
            s_cbranch_vccz K2_FL{fid}
            s_mov_b64 exec, vcc
            """
        t += f"""
        v_and_b32 v{vT0}, 0xffffff00, v{prev}
        v_lshl_add_u32 v{vT0}, v{vT0}, 1, v{vPB}
        ds_write_b128 v{vT0}, {vr(vAcc,4)}
        ds_write_b128 v{vT0}, {vr(vAcc+4,4)} offset:256
        """
        if masked is not None:
            for i in range(8):
                t += f"v_mov_b32 v{vAcc+i}, 0\n"
            t += f"""
            s_mov_b64 exec, -1
            K2_FL{fid}:
            """
        return t
    def dots(X, waits):
        for half in range(2):
            a(waits[half])
            if "nodots" in opt.exp: continue
            for r in range(4):
                for u in range(4*half, 4*half+4):
                    if r == 0:
                        a(f"v_dot2_f32_bf16 v{vP+u}, v{X+4*u}, v{vQ+4*half}, 0")
                    else:
                        a(f"v_dot2c_f32_bf16 v{vP+u}, v{X+4*u+r}, v{vQ+4*half+r}")
    def chain(al):
        c = []
        for j in range(4):
            c.append(f"v_add_f32_dpp v{vP+j}, v{vP+j}, v{vP+j} row_mirror row_mask:0xf bank_mask:0x3")
        for j in range(4):
            c.append(f"v_add_f32_dpp v{vP+j}, v{vP+j+4}, v{vP+j+4} row_mirror row_mask:0xf bank_mask:0xc")
        for j in range(2):
            c.append(f"v_add_f32_dpp v{vP+j}, v{vP+j}, v{vP+j} row_half_mirror row_mask:0xf bank_mask:0x5")
        for j in range(2):
            c.append(f"v_add_f32_dpp v{vP+j}, v{vP+j+2}, v{vP+j+2} row_half_mirror row_mask:0xf bank_mask:0xa")
        c.append(f"v_add_f32_dpp v{vP+2}, v{vP}, v{vP} quad_perm:[1,0,3,2] row_mask:0xf bank_mask:0xf")
        c.append(f"v_add_f32_dpp v{vP+3}, v{vP+1}, v{vP+1} quad_perm:[1,0,3,2] row_mask:0xf bank_mask:0xf")
        c.append(f"v_cndmask_b32_e64 v{vP}, v{vP+2}, v{vP+3}, s[{sOdd}:{sOdd+1}]")
        c.append(f"v_add_f32_dpp v{vP}, v{vP}, v{vP} quad_perm:[2,3,0,1] row_mask:0xf bank_mask:0xf")
        if opt.mimic:
            c += [f"v_cvt_pk_bf16_f32 v{vP}, v{vP}, v{vP}", f"v_and_b32 v{vP}, 0xffff0000, v{vP}",
                  f"v_mul_f32 v{vP}, 0x3db504f3, v{vP}", f"v_cvt_pk_bf16_f32 v{vP}, v{vP}, v{vP}",
                  f"v_and_b32 v{vP}, 0xffff0000, v{vP}", f"v_mul_f32 v{vP}, 0xbfb8aa3b, v{vP}"]
        else:
            c.append(f"v_mul_f32 v{vP}, 0xbe0293ee, v{vP}")
        c += [f"v_exp_f32 v{vP}, v{vP}", f"v_add_f32 v{vP}, 1.0, v{vP}", f"v_rcp_f32 v{vP}, v{vP}",
              f"v_cvt_pk_bf16_f32 v{al}, v{vP}, 0", f"v_cvt_pk_bf16_f32 v{al+1}, 0, v{vP}"]
        return c
    def chain_alone(al):
        c = chain(al)
        gaps = {9: 1, 11: 1, 14: 2, 17 + (5 if opt.mimic else 0): 1, 19 + (5 if opt.mimic else 0): 1}
        for i, ins in enumerate(c):
            a(ins)
            if i in gaps: a(f"s_nop {gaps[i]-1}")
    def agg_stream(X, al, loads, Xdst, qp=None):
        out = []
        qp = vQP if qp is None else qp
        for half in range(2):
            if half == 0:
                out.append(('x', flush(vPrev, qp)))
            else:
                out.append(('x', "s_nop 1\n" + flush(qp, qp+1)))
            for u in range(4*half, 4*half+4):
                k = 4*(u >> 1) + (u & 1)
                for r in range(4):
                    if "noagg" in opt.exp:
                        out.append(('v', "s_nop 0")); out.append(('v', "s_nop 0")); continue
                    out.append(('v', f"v_dot2c_f32_bf16_dpp v{vAcc+2*r}, v{al}, v{X+4*u+r} row_newbcast:{k} row_mask:0xf bank_mask:0xf"))
                    out.append(('v', f"v_dot2c_f32_bf16_dpp v{vAcc+2*r+1}, v{al+1}, v{X+4*u+r} row_newbcast:{k} row_mask:0xf bank_mask:0xf"))
                if loads and "noload" not in opt.exp:
                    out.append(('x', f"buffer_load_dwordx4 {vr(Xdst+4*u,4)}, v{vE+u}, s[{sX}:{sX+3}], 0 offen"))
        return out
    def next_prep():
        a("s_waitcnt lgkmcnt(0)")
        a(f"v_xor_b32 v{vT0}, v{vQN}, v{vC16}")
        a(f"v_xor_b32 v{vT1}, v{vQN+1}, v{vC16}")
    def rotate(nxt):
        a(f"v_mov_b32 v{vQP}, v{vQC}")
        a(f"v_mov_b32 v{vQP+1}, v{vQC+1}")
        if nxt:
            a(f"v_mov_b32 v{vQC}, v{vQN}")
            a(f"v_mov_b32 v{vQC+1}, v{vQN+1}")
            a(f"v_add_u32 v{vLA}, 32, v{vLA}")
            a(f"v_add_u32 v{vUA}, 8, v{vUA}")
    def mid(cur, prev, al_cur, al_prev, nxt):
        a("s_waitcnt lgkmcnt(0)")
        if nxt:
            a(f"""
            ds_read_b128 {vr(vE,4)}, v{vLA} offset:{LIST+32}
            ds_read_b128 {vr(vE+4,4)}, v{vLA} offset:{LIST+48}
            ds_read_b64 {vr(vQN,2)}, v{vUA} offset:{UNODE+8}
            """)
        dots(cur, ("s_waitcnt vmcnt(4)", "s_waitcnt vmcnt(0)"))
        if nxt:
            next_prep()
            for u in range(8):
                a(f"v_add_u32 v{vE+u}, v{vE+u}, v{vC16}")
            a(f"ds_read_b128 {vr(vQ,4)}, v{vT0}")
            a(f"ds_read_b128 {vr(vQ+4,4)}, v{vT1}")
        else:
            a("s_nop 2")
        c = chain(al_cur)
        s_ = agg_stream(prev, al_prev, nxt, prev)
        nv = sum(1 for k, _ in s_ if k == 'v')
        ci, vi = 0, 0
        for k, t in s_:
            a(t)
            if k == 'v':
                vi += 1
                if ci < len(c) and vi >= (ci + 1) * nv // (len(c) + 1) and vi % 1 == 0:
                    a(c[ci]); ci += 1
        assert ci == len(c)
        a(f"v_mov_b32 v{vPrev}, v{vQP+1}")
        rotate(nxt)
    def final(X, al):
        for k, t in agg_stream(X, al, False, None):
            a(t)
        a("s_nop 2")
        a(flush(vQP+1, None))
        a("s_branch K2_MAIN_DONE")
    def roll_body(nxt):
        al = vAl[0]
        a("s_waitcnt lgkmcnt(0)")
        if nxt:
            a(f"""
            ds_read_b128 {vr(vE,4)}, v{vLA} offset:{LIST+32}
            ds_read_b128 {vr(vE+4,4)}, v{vLA} offset:{LIST+48}
            ds_read_b64 {vr(vQN,2)}, v{vUA} offset:{UNODE+8}
            """)
        dots(vXA, ("s_waitcnt vmcnt(4)", "s_waitcnt vmcnt(0)"))
        fill = []
        if nxt:
            next_prep()
            a(f"v_add_u32 v{vE}, v{vE}, v{vC16}")
            fill = [f"v_add_u32 v{vE+u}, v{vE+u}, v{vC16}" for u in range(1, 8)]
        else:
            a("s_nop 2")
        c = chain(al)
        gaps = {11: 1, 14: 2, 17 + (5 if opt.mimic else 0): 1, 19 + (5 if opt.mimic else 0): 1}
        for i, ins in enumerate(c):
            a(ins)
            if i == 3 and nxt:
                a(f"ds_read_b128 {vr(vQ,4)}, v{vT0} offset:{QS}")
                a(f"ds_read_b128 {vr(vQ+4,4)}, v{vT1} offset:{QS}")
            for _ in range(gaps.get(i, 0)):
                a(fill.pop(0) if fill else "s_nop 0")
        while fill: a(fill.pop(0))
        a("s_nop 0")
        for k, t in agg_stream(vXA, al, nxt, vXA, vQC):
            a(t)
        a(f"v_mov_b32 v{vPrev}, v{vQC+1}")
        if nxt:
            a(f"v_mov_b32 v{vQC}, v{vQN}")
            a(f"v_mov_b32 v{vQC+1}, v{vQN+1}")
            a(f"v_add_u32 v{vLA}, 32, v{vLA}")
            a(f"v_add_u32 v{vUA}, 8, v{vUA}")
    if True:
        a(f"""
        s_cmp_eq_u32 s{sHB}, 1
        s_cbranch_scc1 K2_LAST
        K2_LOOP:
        """)
        if opt.prio:
            a(f"""
            s_cmp_ge_u32 s{sHB}, 4
            s_cbranch_scc1 K2_PR0
            s_setprio 2
            s_cmp_eq_u32 s{sHB}, 3
            s_cbranch_scc1 K2_PR0
            s_setprio 1
            K2_PR0:
            """)
        roll_body(True)
        a(f"""
        s_sub_u32 s{sHB}, s{sHB}, 1
        s_cmp_gt_u32 s{sHB}, 1
        s_cbranch_scc1 K2_LOOP
        K2_LAST:
        """)
        if opt.prio: a("s_setprio 0")
        roll_body(False)
        a("s_nop 2")
        a(flush(vPrev, None))
    a("s_branch K2_MAIN_DONE")
    a("K2_NOMAIN:")
    a("K2_MAIN_DONE:")
    if opt.prio: a("s_setprio 0")
    if "cyc" in opt.exp: st.stamp(a, True)
    st.stamp(a)
    a(f"""
    s_cmp_eq_u32 s{sR}, 0
    s_cbranch_scc0 K2_NRDONE
    v_mov_b32 v{vT3}, {MAXC}
    ds_read_b32 v{vT3}, v{vT3}
    s_waitcnt lgkmcnt(0)
    v_readfirstlane_b32 s3, v{vT3}
    s_nop 3
    s_min_u32 s3, s3, {CH}
    s_add_u32 s3, s3, 7
    s_lshr_b32 s3, s3, 3
    s_add_u32 s{sNR}, s3, 1
    K2_NRDONE:
    """)
    vSf, vSl = vE, vE+1
    a(f"""
    s_cmp_eq_u32 s{sWave}, 15
    s_cbranch_scc0 K2_NOTBL
    s_add_u32 s3, s{sQ}, 1
    s_lshl_b32 s3, s3, 1
    v_cvt_f32_u32 v{vT0}, s3
    s_mul_i32 s3, s3, s{sRem}
    s_lshl_b32 s{sP}, s3, 2
    s_lshl_b32 s3, s{sQ}, 1
    v_cvt_f32_u32 v{vT1}, s3
    v_rcp_f32 v{vT0}, v{vT0}
    v_rcp_f32 v{vT1}, v{vT1}
    s_lshl_b32 s3, s{sRem}, 2
    """)
    for (dst, last) in ((vSf, False), (vSl, True)):
        if not last:
            a(f"v_lshrrev_b32 v{vT2}, 2, v{vStart}")
        else:
            a(f"""
            v_add_u32 v{vT2}, v{vStart}, v{vPc}
            v_lshrrev_b32 v{vT2}, 2, v{vT2}
            v_add_u32 v{vT2}, -1, v{vT2}
            """)
        a(f"""
        v_cmp_gt_u32 vcc, s{sP}, v{vT2}
        v_cvt_f32_u32 v{vT3}, v{vT2}
        v_add_f32 v{vT3}, 0.5, v{vT3}
        v_mul_f32 v{vT3}, v{vT3}, v{vT0}
        v_cvt_u32_f32 v{vT3}, v{vT3}
        v_subrev_u32 v{vT2}, s{sP}, v{vT2}
        v_cvt_f32_u32 v{vT2}, v{vT2}
        v_add_f32 v{vT2}, 0.5, v{vT2}
        v_mul_f32 v{vT2}, v{vT2}, v{vT1}
        v_cvt_u32_f32 v{vT2}, v{vT2}
        v_add_u32 v{vT2}, s3, v{vT2}
        v_cndmask_b32_e64 v{dst}, v{vT2}, v{vT3}, vcc
        """)
    a(f"""
    v_sub_u32 v{vT0}, v{vSl}, v{vSf}
    v_add_u32 v{vT0}, 1, v{vT0}
    v_cmp_lt_u32 vcc, 0, v{vPc}
    v_add_u32 v{vT1}, v{vSf}, v{vLane}
    v_lshlrev_b32 v{vT1}, 9, v{vT1}
    v_cndmask_b32_e64 v{vT0}, 0, v{vT0}, vcc
    v_add_u32 v{vT1}, {PIECE}, v{vT1}
    v_lshlrev_b32 v{vT3}, 2, v{vLane}
    v_mov_b32 v{vT2}, {ZROW}
    ds_write_b32 v{vT3}, v{vT0} offset:{NPC}
    """)
    for j in range(4):
        a(f"""
        v_cmp_lt_u32 vcc, {j}, v{vT0}
        v_add_u32 v{vT3}, {512*j}, v{vT1}
        s_nop 0
        v_cndmask_b32_e64 v{vE+4+j}, v{vT2}, v{vT3}, vcc
        """)
    a(f"""
    v_lshlrev_b32 v{vT0}, 4, v{vLane}
    ds_write_b128 v{vT0}, {vr(vE+4,4)} offset:{TBL}
    K2_NOTBL:
    """)
    vA8 = vXB
    a(f"""
    s_add_u32 s3, s{sR}, 1
    s_cmp_ge_u32 s3, s{sNR}
    s_cselect_b32 s{sT}, 8, 0
    s_cmp_ge_u32 s{sWave}, s{sT}
    s_cbranch_scc1 K2_NOAA
    s_and_b32 s{sP}, s{sWave}, 3
    s_lshr_b32 s{sNH}, s{sWave}, 2
    """)
    tile_a_addr(a, vWa, vLane, vT2, vT3, sP, WV)
    for ks in range(8):
        if ks == 6: a("s_waitcnt lgkmcnt(4)")
        a(f"ds_read_b64_tr_b16 {vr(vA8+4*ks,2)}, v{vWa} offset:{ks*4096}")
        a(f"ds_read_b64_tr_b16 {vr(vA8+4*ks+2,2)}, v{vWa} offset:{ks*4096 + 1024}")
    a(f"""
    v_and_b32 v{vRow}, 31, v{vLane}
    s_lshl_b32 s3, s{sNH}, 5
    v_add_u32 v{vRow}, s3, v{vRow}
    """)
    tile_b_addr(a, vBa, vRow, vLane, vT3)
    a(f"""
    K2_NOAA:
    s_waitcnt lgkmcnt(0)
    s_barrier
    """)
    st.stamp(a)
    vB = vE
    vRd = vXA
    vNp = vT3
    a(f"""
    s_cmp_ge_u32 s{sWave}, 13
    s_cbranch_scc1 K2_RED_DONE
    v_lshrrev_b32 v{vT0}, 4, v{vLane}
    s_lshl_b32 s3, s{sWave}, 2
    v_add_u32 v{vT0}, s3, v{vT0}
    v_lshlrev_b32 v{vT1}, 4, v{vT0}
    v_lshlrev_b32 v{vT2}, 2, v{vT0}
    ds_read_b128 {vr(vB,4)}, v{vT1} offset:{TBL}
    ds_read_b32 v{vNp}, v{vT2} offset:{NPC}
    s_waitcnt lgkmcnt(0)
    """)
    for j in range(3):
        a(f"""
        v_add_u32 v{vB+j}, v{vB+j}, v{vC16}
        ds_read_b128 {vr(vRd+8*j,4)}, v{vB+j}
        ds_read_b128 {vr(vRd+8*j+4,4)}, v{vB+j} offset:256
        """)
    for j in range(3):
        a(f"s_waitcnt lgkmcnt({4-2*j})")
        for i in range(8):
            a(f"v_add_f32 v{vTot+i}, v{vTot+i}, v{vRd+8*j+i}")
    a(f"""
    s_mov_b32 s{sT}, 3
    K2_XL:
    v_cmp_lt_u32 vcc, s{sT}, v{vNp}
    s_cbranch_vccz K2_RED_DONE
    s_lshl_b32 s3, s{sT}, 9
    v_add_u32 v{vT0}, s3, v{vB}
    s_mov_b64 exec, vcc
    ds_read_b128 {vr(vRd,4)}, v{vT0}
    ds_read_b128 {vr(vRd+4,4)}, v{vT0} offset:256
    s_waitcnt lgkmcnt(0)
    """)
    for i in range(8):
        a(f"v_add_f32 v{vTot+i}, v{vTot+i}, v{vRd+i}")
    a(f"""
    s_mov_b64 exec, -1
    s_add_u32 s{sT}, s{sT}, 1
    s_branch K2_XL
    K2_RED_DONE:
    s_add_u32 s{sR}, s{sR}, 1
    s_cmp_ge_u32 s{sR}, s{sNR}
    s_cbranch_scc1 K2_EPI
    s_barrier
    """)
    a(f"""
    s_cmp_ge_u32 s{sWave}, 4
    s_cbranch_scc1 K2_RZ
    v_mov_b32 v{vT2}, 0
    v_lshlrev_b32 v{vT3}, 2, v0
    ds_write_b32 v{vT3}, v{vT2} offset:{HIST}
    K2_RZ:
    v_bfe_u32 v{vT2}, v{vLane}, 2, 1
    v_mul_u32_u24 v{vT2}, 12, v{vT2}
    v_and_b32 v{vT3}, 3, v{vLane}
    v_or_b32 v{vT2}, v{vT2}, v{vT3}
    v_lshlrev_b32 v{vUA}, 8, v{vLane}
    v_lshl_or_b32 v{vUA}, v{vT2}, 4, v{vUA}
    s_waitcnt lgkmcnt(0)
    s_barrier
    s_cmp_lt_u32 s{sWave}, 8
    s_cbranch_scc1 K2_HDRD
    """)
    for i in range(8): a(f"v_mov_b32 v{vW+i}, {EMPTY}")
    a(f"""
    v_subrev_u32 v{vT0}, 512, v0
    v_and_b32 v{vT1}, 1, v{vT0}
    v_lshrrev_b32 v{vT0}, 1, v{vT0}
    v_lshlrev_b32 v{vT2}, 2, v{vT0}
    v_add_u32 v{vT2}, {MF}, v{vT2}
    ds_read_b32 v{vT3}, v{vT2}
    v_lshlrev_b32 v{vT0}, 14, v{vT0}
    v_add_u32 v{vT0}, {WS_OVF}, v{vT0}
    s_lshl_b32 s3, s{sR}, 3
    s_sub_u32 s3, s3, 8
    v_lshl_add_u32 v{vT1}, v{vT1}, 2, s3
    v_lshl_add_u32 v{vT0}, v{vT1}, 3, v{vT0}
    s_mov_b32 s{sQ}, {1 << TAGSH}
    s_mov_b32 s{sT}, {1 << 17}
    s_waitcnt lgkmcnt(0)
    v_sub_u32 v{vT3}, v{vT3}, v{vT1}
    v_cmp_lt_i32 vcc, 0, v{vT3}
    s_and_saveexec_b64 s[{sSave}:{sSave+1}], vcc
    s_cbranch_execz K2_R1
    v_cmp_lt_i32 s[{sM}:{sM+1}], 1, v{vT3}
    v_cmp_lt_i32 s[{sM+2}:{sM+3}], 2, v{vT3}
    v_cmp_lt_i32 s[{sM+4}:{sM+5}], 3, v{vT3}
    K2_RP:
    buffer_load_dwordx4 {vr(vSoM,4)}, v{vT0}, s[{sWS}:{sWS+3}], 0 offen sc1
    buffer_load_dwordx4 {vr(vSoM+4,4)}, v{vT0}, s[{sWS}:{sWS+3}], 0 offen offset:16 sc1
    s_waitcnt vmcnt(0)
    """)
    for i in range(8): a(f"v_xor_b32 v{vSoM+i}, s{sTag}, v{vSoM+i}")
    a(f"v_or_b32 v{vT1}, v{vSoM}, v{vSoM+1}")
    for k in range(1, 4):
        a(f"""
        v_or_b32 v{vT2}, v{vSoM+2*k}, v{vSoM+2*k+1}
        v_cndmask_b32_e64 v{vT2}, 0, v{vT2}, s[{sM+2*(k-1)}:{sM+2*(k-1)+1}]
        v_or_b32 v{vT1}, v{vT1}, v{vT2}
        """)
    a(f"""
    v_cmp_le_u32 vcc, s{sQ}, v{vT1}
    s_cbranch_vccz K2_RPD
    s_sleep 2
    s_sub_u32 s{sT}, s{sT}, 1
    s_cmp_lg_u32 s{sT}, 0
    s_cbranch_scc1 K2_RP
    K2_RPD:
    v_cmp_eq_u32 vcc, s{sBeta}, v{vSoM+1}
    s_nop 1
    v_cndmask_b32_e64 v{vW}, v{vW}, v{vSoM}, vcc
    """)
    for k in range(1, 4):
        a(f"""
        v_cmp_eq_u32 vcc, s{sBeta}, v{vSoM+2*k+1}
        s_nop 0
        s_and_b64 vcc, vcc, s[{sM+2*(k-1)}:{sM+2*(k-1)+1}]
        s_nop 1
        v_cndmask_b32_e64 v{vW+k}, v{vW+k}, v{vSoM+2*k}, vcc
        """)
    a(f"""
    K2_R1:
    s_mov_b64 exec, s[{sSave}:{sSave+1}]
    v_mov_b32 v{vT3}, 1
    s_branch K2_DECODE
    K2_EPI:
    """)
    st.stamp(a)
    vAcc16, vB8 = 24, vXA
    a(f"""
    s_cmp_ge_u32 s{sWave}, 13
    s_cbranch_scc1 K2_WB_DONE
    v_lshrrev_b32 v{vT0}, 4, v{vLane}
    s_lshl_b32 s3, s{sWave}, 2
    v_add_u32 v{vT0}, s3, v{vT0}
    v_lshlrev_b32 v{vT1}, 4, v{vT0}
    v_xor_b32 v{vT1}, v{vT1}, v{vC16}
    v_and_b32 v{vT1}, 0xf0, v{vT1}
    v_lshl_add_u32 v{vT0}, v{vT0}, 8, v{vT1}
    """)
    for i in range(4):
        a(f"v_cvt_pk_bf16_f32 v{vP+i}, v{vTot+2*i}, v{vTot+2*i+1}")
    a(f"""
    ds_write_b128 v{vT0}, {vr(vP,4)} offset:{AGGB}
    K2_WB_DONE:
    s_cmp_ge_u32 s{sWave}, 8
    s_cbranch_scc1 K2_EB
    """)
    for ks in range(8):
        a(f"v_xor_b32 v{vE+ks}, {32*ks}, v{vBa}")
    a(f"""
    s_mul_i32 s3, s{sBeta}, {T*256}
    s_lshl_b32 s{sCnt}, s{sP}, 6
    s_add_u32 s3, s3, s{sCnt}
    v_lshrrev_b32 v{vT0}, 5, v{vLane}
    v_lshlrev_b32 v{vT1}, 8, v{vRow}
    v_lshl_add_u32 v{vT1}, v{vT0}, 5, v{vT1}
    v_add_u32 v{vT1}, s3, v{vT1}
    K2_EB:
    s_waitcnt lgkmcnt(0)
    s_barrier
    s_cmp_ge_u32 s{sWave}, 8
    s_cbranch_scc1 K2_FIN
    """)
    for ks in range(8):
        a(f"ds_read_b128 {vr(vB8+4*ks,4)}, v{vE+ks} offset:{AGGB}")
    a(f"v_cmp_gt_u32 vcc, {T}, v{vRow}")
    for ks in range(8):
        a(f"s_waitcnt lgkmcnt({7-ks})")
        c = "0" if ks == 0 else vr(vAcc16,16)
        a(f"v_mfma_f32_32x32x16_bf16 {vr(vAcc16,16)}, {vr(vA8+4*ks,4)}, {vr(vB8+4*ks,4)}, {c}")
    a("s_nop 7")
    a("s_nop 3")
    for i in range(8):
        a(f"v_cvt_pk_bf16_f32 v{vQ+i}, v{vAcc16+2*i}, v{vAcc16+2*i+1}")
    a(f"""
    s_and_saveexec_b64 s[{sSave}:{sSave+1}], vcc
    s_cbranch_execz K2_ST_DONE
    buffer_store_dwordx4 {vr(vQ,4)}, v{vT1}, s[{sOUT}:{sOUT+3}], 0 offen {opt.outst}
    buffer_store_dwordx4 {vr(vQ+4,4)}, v{vT1}, s[{sOUT}:{sOUT+3}], 0 offen offset:16 {opt.outst}
    K2_ST_DONE:
    s_mov_b64 exec, s[{sSave}:{sSave+1}]
    K2_FIN:
    s_cmp_eq_u32 s2, 0
    s_cbranch_scc0 K2_NOEPOCH
    s_cmp_eq_u32 s{sWave}, 15
    s_cbranch_scc0 K2_NOEPOCH
    v_mov_b32 v{vT0}, 0
    v_mov_b32 v{vT1}, s{sTag}
    s_mov_b64 exec, 1
    buffer_store_dword v{vT1}, v{vT0}, s[{sWS}:{sWS+3}], 0 offen sc1
    s_mov_b64 exec, -1
    K2_NOEPOCH:
    """)
    st.stamp(a)
    if opt.stamps:
        a("s_waitcnt vmcnt(0)")
        st.stamp(a)
    st.flush(a, sWS, vT0, sWave)
    a("""
    K2_END:
    s_endpgm
    """)
    return a.text(), LDS, 128

def build(opt):
    k, lds, v = gen_k(opt)
    n = NAME + "_kernel"
    out = HEADER
    for _ in range(opt.rep):
        out += f"; @launch kernel={n} grid=({NB},1,1) block=(1024,1,1) lds={lds}\n" if opt.aslist or opt.rep > 1 else f"; @launch grid=({NB},1,1) block=(1024,1,1) lds={lds}\n"
    out += '.amdgcn_target "amdgcn-amd-amdhsa--gfx950"\n.text\n'
    out += f".globl {n}\n.p2align 8\n.type {n},@function\n" + k
    out += '.section .rodata,"a"\n.p2align 6\n' + kd(n, v)
    return out

def parse(argv=None):
    p = argparse.ArgumentParser()
    p.add_argument("-o", default="cdna_kernels/" + NAME + ".s")
    p.add_argument("--stamps", action="store_true")
    p.add_argument("--prefetch", type=int, default=0)
    p.add_argument("--mimic", type=int, default=0)
    p.add_argument("--prio", type=int, default=1)
    p.add_argument("--keep", default="")
    p.add_argument("--exp", default="")
    p.add_argument("--outst", default="")
    p.add_argument("--sleep", type=int, default=1)
    p.add_argument("--drain", type=int, default=0)
    p.add_argument("--sleep2", type=int, default=0)
    p.add_argument("--wsbase", type=lambda x: int(x, 0), default=0)
    p.add_argument("--cst", default="sc1")
    p.add_argument("--dmalate", type=int, default=0)
    p.add_argument("--rep", type=int, default=1)
    p.add_argument("--aslist", type=int, default=0)
    p.add_argument("--style", default="roll")
    return p.parse_args(argv)

if __name__ == "__main__":
    o = parse()
    open(o.o, "w").write(build(o))
    print("wrote", o.o)
```

```python
import sys, argparse
from gen import A, vr, Stamps, scan64, kd, HEADER, NAME

N, E, D = 12500, 400000, 128
T = 49
NB = 256
CH = 1564
C = 256
XBYTES = N * 256
EBYTES = E * 4
WS_NONCE = 0
WS_OVH = 0x1000
WS_EXTRA = 0x40000
WS_CELLS = 0x100000
CELLROW = 16384
WS_OVF = 0x500000
OVF_STRIDE = 16384
WS_USED = WS_OVF + 256 * OVF_STRIDE
TAGSH = 23
EMPTY = 0x3f
WS_STAMP = 0x1000000
OOB = 0x40000000
DUMMY = 49

def srd_tail(a, d, size):
    a(f"s_mov_b32 s{d+2}, {size}")
    a(f"s_mov_b32 s{d+3}, 0x00020000")

def tile_a_addr(a, vdst, vlane, t0, t1, sP, wbase):
    a(f"""
    v_bfe_u32 v{t0}, v{vlane}, 2, 2
    v_lshrrev_b32 v{t1}, 5, v{vlane}
    v_lshl_add_u32 v{vdst}, v{t1}, 3, v{t0}
    v_lshlrev_b32 v{vdst}, 8, v{vdst}
    v_xor_b32 v{t0}, s{sP}, v{t0}
    v_lshl_add_u32 v{vdst}, v{t0}, 6, v{vdst}
    v_bfe_u32 v{t0}, v{vlane}, 4, 1
    v_bfe_u32 v{t1}, v{vlane}, 1, 1
    v_lshl_add_u32 v{t0}, v{t0}, 1, v{t1}
    v_and_b32 v{t1}, 1, v{vlane}
    v_lshl_add_u32 v{t0}, v{t1}, 2, v{t0}
    v_lshl_add_u32 v{vdst}, v{t0}, 3, v{vdst}
    v_add_u32 v{vdst}, {wbase}, v{vdst}
    """)

def tile_b_addr(a, vdst, vrow, vlane, t0):
    a(f"""
    v_lshrrev_b32 v{t0}, 5, v{vlane}
    v_xor_b32 v{t0}, v{t0}, v{vrow}
    v_and_b32 v{t0}, 15, v{t0}
    v_lshlrev_b32 v{t0}, 4, v{t0}
    v_lshl_add_u32 v{vdst}, v{vrow}, 8, v{t0}
    """)

def gen_k(opt):
    a = A()
    HIST, MAXC, ZROW, TBL = 0, 256, 512, 1024
    NPC = TBL + 1024
    LIST = NPC + 256
    LISTW = 6144
    UNODE = LIST + LISTW * 4
    QS = UNODE + 1536 * 4
    AGGB = QS + 52 * 256
    PIECE = AGGB + 64 * 256
    XT = PIECE
    WQ = XT + 16384
    WV = PIECE + (DUMMY + 64) * 512
    LDS = WV + 32768
    assert WQ + 32768 <= WV
    st = Stamps(opt.stamps, 64, WS_STAMP + 0x40000, [int(x) for x in opt.keep.split(',')] if opt.keep else None)
    sX, sWQ, sWV, sOUT, sWS = 4, 8, 12, 16, 20
    sBeta, sWave, sR, sNR = 24, 25, 26, 27
    sOdd = 28
    sBeta24, sHB, sP, sNH, s196 = 30, 31, 32, 33, 34
    sM = 36
    sSave = 50
    sCnt, sQ, sRem, sT = 52, 53, 54, 55
    vC16, vPB, vLA, vUA, vPrev = 1, 2, 3, 4, 5
    vQP, vQC, vQN = 6, 8, 10
    vAl = (12, 14)
    vQB = 16
    vT0, vT1, vT2, vT3 = 17, 18, 19, 20
    vLane, vStart, vPc = 21, 22, 23
    vAcc, vP, vE, vQ = 24, 32, 40, 48
    vXA, vXB, vTot = 56, 88, 120
    vCand, vHdr, vSo, vN4, vRk = 56, 60, 64, 72, 80
    vCnt = 47
    vHdr2, vSo2, vN42, vRk2 = 88, 92, 96, 100
    sM2 = 56
    vWl = 6
    vWa, vBa, vRow, vQst = 12, 13, 14, 15
    HP = LDS
    OVC, JUNK = HP + 1024, HP + 1040
    H2 = HP + 1280
    ST2 = H2 + 256
    MF = ST2 + 1024
    LDS = MF + 1024
    OVL = LIST
    OVB = LIST + 8192
    STAGE = AGGB
    sSRC, sDST, sNonce, sPi = 56, 60, 35, 3
    sTag = 30
    vDst, vSrc, vEnt, vAdr, vRank, vNeg, vNon, vGo = 56, 58, 60, 62, 64, 68, 66, 67
    vBk = 76
    a(f"""
    {NAME}_kernel:
    s_cmp_ge_u32 s2, {NB}
    s_cbranch_scc1 K2_END
    s_load_dwordx2 s[{sWS}:{sWS+1}], s[0:1], 56
    s_load_dwordx2 s[{sDST}:{sDST+1}], s[0:1], 16
    s_load_dwordx2 s[{sSRC}:{sSRC+1}], s[0:1], 8
    s_load_dwordx2 s[{sX}:{sX+1}], s[0:1], 0
    s_load_dwordx2 s[{sWQ}:{sWQ+1}], s[0:1], 24
    s_load_dwordx2 s[{sWV}:{sWV+1}], s[0:1], 32
    s_load_dwordx2 s[{sOUT}:{sOUT+1}], s[0:1], 40
    """)
    st.stamp(a)
    srd_tail(a, sWS, WS_USED if not opt.stamps else 0x2000000)
    srd_tail(a, sDST, EBYTES); srd_tail(a, sSRC, EBYTES); srd_tail(a, sX, XBYTES); srd_tail(a, sWQ, 32768)
    a(f"""
    v_lshrrev_b32 v{vT0}, 6, v0
    s_mov_b32 s{sBeta}, s2
    s_mul_i32 s3, s2, {CH*4}
    v_readfirstlane_b32 s{sWave}, v{vT0}
    v_lshlrev_b32 v{vT2}, 3, v0
    v_add_u32 v{vT2}, s3, v{vT2}
    s_movk_i32 s{sT}, {CH//2}
    s_cmp_eq_u32 s2, {C-1}
    s_cselect_b32 s{sT}, {(E - (C-1)*CH)//2}, s{sT}
    v_mov_b32 v{vT3}, 0
    v_cmp_gt_u32 vcc, s{sT}, v0
    s_and_saveexec_b64 s[{sSave}:{sSave+1}], vcc
    s_waitcnt lgkmcnt(0)
    {("s_add_u32 s%d, s%d, %d" % (sWS, sWS, opt.wsbase)) if opt.wsbase else ""}
    {("s_addc_u32 s%d, s%d, 0" % (sWS+1, sWS+1)) if opt.wsbase else ""}
    s_cbranch_execz K1_NOEDGE0
    buffer_load_dwordx2 {vr(vDst,2)}, v{vT2}, s[{sDST}:{sDST+3}], 0 offen
    buffer_load_dwordx2 {vr(vSrc,2)}, v{vT2}, s[{sSRC}:{sSRC+3}], 0 offen
    K1_NOEDGE0:
    s_mov_b64 exec, s[{sSave}:{sSave+1}]
    buffer_load_dword v{vNon}, v{vT3}, s[{sWS}:{sWS+3}], 0 offen sc1
    """)
    a(f"""
    v_and_b32 v{vLane}, 63, v0
    v_bfe_u32 v{vT0}, v0, 4, 2
    v_and_b32 v{vT1}, 15, v0
    v_lshlrev_b32 v{vC16}, 4, v{vT1}
    """)
    a(f"""
    v_mov_b32 v{vNeg}, {EMPTY}
    v_mov_b32 v{vNeg+1}, {EMPTY}
    v_mov_b32 v{vNeg+2}, {EMPTY}
    v_mov_b32 v{vNeg+3}, {EMPTY}
    v_lshlrev_b32 v{vT2}, 4, v0
    ds_write_b128 v{vT2}, {vr(vNeg,4)} offset:{STAGE}
    s_cmp_eq_u32 s{sWave}, 12
    s_cbranch_scc0 K1_NOS2
    v_lshlrev_b32 v{vT3}, 4, v{vLane}
    v_add_u32 v{vT3}, {ST2}, v{vT3}
    ds_write_b128 v{vT3}, {vr(vNeg,4)}
    K1_NOS2:
    v_mov_b32 v{vT2}, 0
    v_lshlrev_b32 v{vT3}, 2, v0
    s_cmp_ge_u32 s{sWave}, 6
    s_cbranch_scc1 K1_NOZ0
    v_add_u32 v{vT3}, {HP}, v{vT3}
    ds_write_b32 v{vT3}, v{vT2}
    s_branch K1_NOZ1
    K1_NOZ0:
    s_sub_u32 s3, s{sWave}, 8
    s_cmp_ge_u32 s3, 4
    s_cbranch_scc1 K1_NOZ2
    v_add_u32 v{vT3}, {HIST - 2048}, v{vT3}
    ds_write_b32 v{vT3}, v{vT2}
    s_branch K1_NOZ1
    K1_NOZ2:
    s_cmp_lt_u32 s{sWave}, 12
    s_cbranch_scc1 K1_NOZ1
    v_add_u32 v{vT3}, {MF - 3072}, v{vT3}
    ds_write_b32 v{vT3}, v{vT2}
    K1_NOZ1:
    s_mov_b32 s{sR}, 0
    s_mov_b32 s{sOdd}, 0xaaaaaaaa
    s_mov_b32 s{sOdd+1}, 0xaaaaaaaa
    s_movk_i32 s{s196}, {T*4}
    s_lshl_b32 s3, s{sWave}, 11
    s_add_u32 s3, s3, {PIECE}
    v_lshl_add_u32 v{vPB}, v{vT0}, 9, s3
    v_add_u32 v{vPB}, v{vPB}, v{vC16}
    s_and_b32 s{sPi}, s2, 7
    s_lshl_b32 s{sPi}, s{sPi}, 5
    s_lshr_b32 s{sT}, s2, 3
    s_add_u32 s{sPi}, s{sPi}, s{sT}
    s_mov_b32 s{sHB}, s{sPi}
    v_lshrrev_b32 v{vT2}, 2, v0
    v_lshlrev_b32 v{vGo}, 14, v{vT2}
    v_and_b32 v{vT2}, 3, v0
    v_lshl_add_u32 v{vGo}, v{vT2}, 4, v{vGo}
    v_mov_b32 v{vT3}, 1
    s_waitcnt lgkmcnt(0)
    s_barrier
    """)
    st.stamp(a)
    def early_dma():
        a(f"""
        v_bfe_u32 v{vT0}, v0, 4, 2
        v_and_b32 v{vT1}, 15, v0
        v_lshlrev_b32 v{vT2}, 2, v{vT0}
        v_xor_b32 v{vT2}, v{vT2}, v{vT1}
        v_lshlrev_b32 v{vT2}, 4, v{vT2}
        v_lshl_add_u32 v{vWl}, v{vT0}, 8, v{vT2}
        s_cmp_lt_u32 s{sWave}, 8
        s_cbranch_scc1 K2_L2
        s_sub_u32 s{sQ}, s{sWave}, 8
        """)
        def xt_dma(jreg):
            a(f"""
            s_lshl_b32 s3, s{jreg}, 2
            v_add_u32 v{vT2}, s3, v{vT0}
            v_xor_b32 v{vEnt}, v{vT2}, v{vT1}
            v_and_b32 v{vEnt}, 15, v{vEnt}
            v_lshlrev_b32 v{vEnt}, 4, v{vEnt}
            v_lshl_add_u32 v{vEnt}, v{vT2}, 8, v{vEnt}
            s_mul_i32 s3, s{sBeta}, {T*256}
            s_lshl_b32 s{sT}, s{jreg}, 10
            s_add_u32 s{sT}, s{sT}, {XT}
            s_mov_b32 m0, s{sT}
            s_nop 0
            buffer_load_dwordx4 v{vEnt}, s[{sX}:{sX+3}], s3 offen lds
            """)
        xt_dma(sQ)
        a(f"""
        s_cmp_ge_u32 s{sWave}, 13
        s_cbranch_scc1 K2_L3
        s_mov_b32 s{sRem}, s{sWave}
        """)
        xt_dma(sRem)
        a(f"""
        K2_L3:
        s_lshl_b32 s3, s{sQ}, 12
        s_add_u32 s{sT}, s3, {WQ}
        """)
        for i in range(4):
            a(f"""
            s_mov_b32 m0, s{sT}
            s_add_u32 s{sT}, s{sT}, 1024
            buffer_load_dwordx4 v{vWl}, s[{sWQ}:{sWQ+3}], s3 offen lds
            s_add_u32 s3, s3, 1024
            """)
        a("K2_L2:")
    if not opt.dmalate: early_dma()
    else:
        a(f"""
        v_bfe_u32 v{vT0}, v0, 4, 2
        v_and_b32 v{vT1}, 15, v0
        v_lshlrev_b32 v{vT2}, 2, v{vT0}
        v_xor_b32 v{vT2}, v{vT2}, v{vT1}
        v_lshlrev_b32 v{vT2}, 4, v{vT2}
        v_lshl_add_u32 v{vWl}, v{vT0}, 8, v{vT2}
        """)
    if opt.prefetch == 1:
        a(f"""
        s_cmp_eq_u32 s{sWave}, 14
        s_cbranch_scc0 K1_NOPF
        s_mul_i32 s3, s2, 12544
        v_lshlrev_b32 v{vT2}, 7, v{vLane}
        buffer_load_dword v{vNeg+4}, v{vT2}, s[{sX}:{sX+3}], s3 offen
        s_add_u32 s3, s3, 8192
        v_cmp_gt_u32 vcc, 34, v{vLane}
        v_mov_b32 v{vEnt}, {OOB}
        s_nop 0
        v_cndmask_b32_e64 v{vT2}, v{vEnt}, v{vT2}, vcc
        buffer_load_dword v{vNeg+4}, v{vT2}, s[{sX}:{sX+3}], s3 offen
        K1_NOPF:
        """)
    sPiK = sHB
    srd_tail(a, sWV, 32768); srd_tail(a, sOUT, XBYTES)
    for i in range(8):
        a(f"v_mov_b32 v{vTot+i}, 0")
    a("v_mov_b32 v83, 0")
    a(f"""
    v_bfe_u32 v{vT2}, v{vLane}, 2, 1
    v_mul_u32_u24 v{vT2}, 12, v{vT2}
    v_and_b32 v{vT0}, 3, v{vLane}
    v_or_b32 v{vT2}, v{vT2}, v{vT0}
    v_lshlrev_b32 v{vUA}, 8, v{vLane}
    v_lshl_or_b32 v{vUA}, v{vT2}, 4, v{vUA}
    """)
    a(f"""
    s_and_b32 s{sP}, s{sWave}, 3
    s_bfe_u32 s{sNH}, s{sWave}, 0x10002
    s_cmp_ge_u32 s{sWave}, 8
    s_cbranch_scc1 K2_NOQA
    """)
    tile_a_addr(a, vWa, vLane, vT2, vT0, sP, WQ)
    a(f"""
    v_and_b32 v{vRow}, 31, v{vLane}
    s_lshl_b32 s3, s{sNH}, 5
    v_add_u32 v{vRow}, s3, v{vRow}
    """)
    tile_b_addr(a, vBa, vRow, vLane, vT0)
    a(f"""
    v_bfe_u32 v{vT2}, v{vRow}, 2, 1
    v_mul_u32_u24 v{vT2}, 12, v{vT2}
    v_and_b32 v{vT0}, 3, v{vRow}
    v_or_b32 v{vT2}, v{vT2}, v{vT0}
    v_lshrrev_b32 v{vT0}, 5, v{vLane}
    s_lshl_b32 s3, s{sP}, 2
    v_lshl_add_u32 v{vT0}, v{vT0}, 1, s3
    v_xor_b32 v{vT2}, v{vT2}, v{vT0}
    v_lshlrev_b32 v{vT2}, 4, v{vT2}
    v_lshl_add_u32 v{vQst}, v{vRow}, 8, v{vT2}
    K2_NOQA:
    """)
    a(f"""
    s_movk_i32 s{sT}, {CH//2}
    s_cmp_eq_u32 s2, {C-1}
    s_cselect_b32 s{sT}, {(E - (C-1)*CH)//2}, s{sT}
    v_cmp_gt_u32 vcc, s{sT}, v0
    s_and_saveexec_b64 s[{sSave}:{sSave+1}], vcc
    s_cbranch_execz K1_EDGE1_DONE
    s_mov_b32 s{sT}, -{T}
    s_mov_b32 s{sCnt}, {STAGE}
    s_cmp_lt_u32 s{sWave}, 8
    s_cbranch_scc1 K1_EW0
    s_waitcnt vmcnt({1 if opt.dmalate else 7})
    s_branch K1_EW1
    K1_EW0:
    s_waitcnt vmcnt(1)
    K1_EW1:
    """)
    st.stamp(a)
    for i in range(2):
        a(f"""
        v_mul_u32_u24 v{vT0}, 21400, v{vDst+i}
        v_lshrrev_b32 v{vT0}, 20, v{vT0}
        v_lshlrev_b32 v{vAdr+i}, 2, v{vT0}
        v_add_u32 v{vT2}, {HP}, v{vAdr+i}
        ds_add_rtn_u32 v{vRank+i}, v{vT2}, v{vT3}
        v_mad_i32_i24 v{vT1}, v{vT0}, s{sT}, v{vDst+i}
        v_lshl_or_b32 v{vEnt+i}, v{vSrc+i}, 8, v{vT1}
        v_mov_b32 v{vBk+i}, v{vT0}
        v_lshl_add_u32 v{vAdr+i}, v{vAdr+i}, 4, s{sCnt}
        """)
    a(f"v_mov_b32 v{vT2}, {JUNK}")
    for i in range(2):
        a(f"""
        s_waitcnt lgkmcnt({1-i})
        v_cmp_gt_u32 s[{sM+2*i}:{sM+2*i+1}], 16, v{vRank+i}
        v_lshl_add_u32 v{vT0}, v{vRank+i}, 2, v{vAdr+i}
        s_nop 0
        v_cndmask_b32_e64 v{vT0}, v{vT2}, v{vT0}, s[{sM+2*i}:{sM+2*i+1}]
        ds_write_b32 v{vT0}, v{vEnt+i}
        """)
    a(f"""
    s_and_b64 s[{sM+4}:{sM+5}], s[{sM}:{sM+1}], s[{sM+2}:{sM+3}]
    s_andn2_b64 s[{sM+4}:{sM+5}], exec, s[{sM+4}:{sM+5}]
    s_cbranch_scc0 K1_EDGE1_DONE
    s_mov_b64 s[{sM+6}:{sM+7}], exec
    """)
    for i in range(2):
        a(f"""
        s_andn2_b64 exec, s[{sM+6}:{sM+7}], s[{sM+2*i}:{sM+2*i+1}]
        s_cbranch_execz K1_OV_{i}
        v_and_b32 v{vT0}, 7, v{vBk+i}
        v_lshrrev_b32 v{vT1}, 5, v{vBk+i}
        v_lshl_add_u32 v{vT0}, v{vT1}, 3, v{vT0}
        v_lshlrev_b32 v{vT1}, 2, v{vT0}
        v_add_u32 v{vT1}, {H2}, v{vT1}
        ds_add_rtn_u32 v{vT1}, v{vT1}, v{vT3}
        v_bfe_u32 v{vT2}, v{vBk+i}, 3, 2
        v_lshl_or_b32 v{vT2}, v{vT2}, 6, v{vEnt+i}
        v_lshlrev_b32 v{vT0}, 4, v{vT0}
        v_add_u32 v{vT0}, {ST2}, v{vT0}
        s_waitcnt lgkmcnt(0)
        v_cmp_gt_u32 vcc, 4, v{vT1}
        v_lshl_add_u32 v{vT0}, v{vT1}, 2, v{vT0}
        s_mov_b64 s[{sM+8}:{sM+9}], exec
        s_and_b64 exec, exec, vcc
        ds_write_b32 v{vT0}, v{vT2}
        s_andn2_b64 exec, s[{sM+8}:{sM+9}], vcc
        s_cbranch_execz K1_OV_{i}
        v_mov_b32 v{vT0}, {OVC}
        ds_add_rtn_u32 v{vT0}, v{vT0}, v{vT3}
        s_waitcnt lgkmcnt(0)
        v_lshlrev_b32 v{vT0}, 2, v{vT0}
        ds_write_b32 v{vT0}, v{vEnt+i} offset:{OVL}
        ds_write_b32 v{vT0}, v{vBk+i} offset:{OVB}
        K1_OV_{i}:
        """)
    a(f"""
    K1_EDGE1_DONE:
    s_mov_b64 exec, s[{sSave}:{sSave+1}]
    v_lshlrev_b32 v{vT0}, 4, v0
    s_waitcnt lgkmcnt(0)
    s_barrier
    """)
    st.stamp(a)
    a(f"""
    s_cmp_ge_u32 s{sWave}, 8
    s_cbranch_scc1 K1_NOCOPY
    ds_read_b128 {vr(vNeg,4)}, v{vT0} offset:{STAGE}
    ds_read_b128 {vr(vNeg+4,4)}, v{vT0} offset:{STAGE + 8192}
    s_lshl_b32 s3, s{sPiK}, 6
    s_add_u32 s3, s3, {WS_CELLS}
    s_add_u32 s{sT}, s3, {128*CELLROW}
    s_waitcnt vmcnt(0)
    v_readfirstlane_b32 s{sNonce}, v{vNon}
    s_nop 3
    s_and_b32 s{sTag}, s{sNonce}, {(0xffffffff << TAGSH) & 0xffffffff}
    s_add_u32 s{sTag}, s{sTag}, {1 << TAGSH}
    s_waitcnt lgkmcnt(1)
    """)
    for i in range(4): a(f"v_or_b32 v{vNeg+i}, s{sTag}, v{vNeg+i}")
    a(f"""
    buffer_store_dwordx4 {vr(vNeg,4)}, v{vGo}, s[{sWS}:{sWS+3}], s3 offen {opt.cst}
    s_waitcnt lgkmcnt(0)
    """)
    for i in range(4, 8): a(f"v_or_b32 v{vNeg+i}, s{sTag}, v{vNeg+i}")
    a(f"""
    buffer_store_dwordx4 {vr(vNeg+4,4)}, v{vGo}, s[{sWS}:{sWS+3}], s{sT} offen {opt.cst}
    s_cmp_eq_u32 s{sWave}, 6
    s_cbranch_scc0 K1_NOX
    v_lshlrev_b32 v{vT1}, 4, v{vLane}
    v_add_u32 v{vT1}, {ST2}, v{vT1}
    ds_read_b128 {vr(vDst,4)}, v{vT1}
    v_lshlrev_b32 v{vT1}, 2, v{vLane}
    v_add_u32 v{vT1}, {H2}, v{vT1}
    ds_read_b32 v{vT1}, v{vT1}
    v_lshlrev_b32 v{vT2}, 12, v{vLane}
    s_lshl_b32 s3, s{sPiK}, 4
    s_add_u32 s3, s3, {WS_EXTRA}
    v_mov_b32 v{vT3}, {1 << 22}
    s_waitcnt lgkmcnt(0)
    v_cmp_lt_u32 vcc, 4, v{vT1}
    """)
    for i in range(4): a(f"v_or_b32 v{vDst+i}, s{sTag}, v{vDst+i}")
    a(f"""
    v_cndmask_b32_e64 v{vT3}, 0, v{vT3}, vcc
    v_or_b32 v{vDst+3}, v{vT3}, v{vDst+3}
    buffer_store_dwordx4 {vr(vDst,4)}, v{vT2}, s[{sWS}:{sWS+3}], s3 offen {opt.cst}
    K1_NOX:
    s_cmp_eq_u32 s{sWave}, 7
    s_cbranch_scc0 K1_DRAIN
    v_mov_b32 v{vT3}, {OVC}
    ds_read_b32 v{vRank}, v{vT3}
    s_waitcnt lgkmcnt(0)
    v_readfirstlane_b32 s{sCnt}, v{vRank}
    s_nop 3
    s_cmp_eq_u32 s{sCnt}, 0
    s_cbranch_scc1 K1_DRAIN
    s_min_u32 s{sCnt}, s{sCnt}, {CH}
    s_lshl_b32 s{sT}, s{sPiK}, 4
    s_add_u32 s{sT}, s{sT}, {WS_OVH}
    v_mov_b32 v{vT2}, s{sT}
    v_or_b32 v{vDst}, s{sTag}, v{vRank}
    v_mov_b32 v{vDst+1}, v{vDst}
    v_mov_b32 v{vDst+2}, v{vDst}
    v_mov_b32 v{vDst+3}, v{vDst}
    s_mov_b64 exec, 1
    buffer_store_dwordx4 {vr(vDst,4)}, v{vT2}, s[{sWS}:{sWS+3}], 0 offen sc1
    s_mov_b64 exec, -1
    s_mul_i32 s3, s{sPiK}, {OVF_STRIDE}
    s_add_u32 s3, s3, {WS_OVF}
    v_mov_b32 v{vT0}, v{vLane}
    K1_OVL:
    v_cmp_gt_u32 vcc, s{sCnt}, v{vT0}
    s_and_b64 exec, exec, vcc
    s_cbranch_execz K1_OVD
    v_lshlrev_b32 v{vT1}, 2, v{vT0}
    ds_read_b32 v{vDst}, v{vT1} offset:{OVL}
    ds_read_b32 v{vDst+1}, v{vT1} offset:{OVB}
    v_lshlrev_b32 v{vT1}, 3, v{vT0}
    s_waitcnt lgkmcnt(0)
    v_or_b32 v{vDst}, s{sTag}, v{vDst}
    v_or_b32 v{vDst+1}, s{sTag}, v{vDst+1}
    buffer_store_dwordx2 {vr(vDst,2)}, v{vT1}, s[{sWS}:{sWS+3}], s3 offen sc1
    v_add_u32 v{vT0}, 64, v{vT0}
    s_branch K1_OVL
    K1_OVD:
    s_mov_b64 exec, -1
    K1_DRAIN:
    {"s_waitcnt vmcnt(0)" if opt.drain == 1 else ""}
    s_branch K1_COPIED
    K1_NOCOPY:
    s_waitcnt vmcnt(0)
    v_readfirstlane_b32 s{sNonce}, v{vNon}
    s_nop 3
    s_and_b32 s{sTag}, s{sNonce}, {(0xffffffff << TAGSH) & 0xffffffff}
    s_add_u32 s{sTag}, s{sTag}, {1 << TAGSH}
    K1_COPIED:
    s_barrier
    """)
    st.stamp(a)
    st.stamp(a)
    a(f"""
    s_cmp_ge_u32 s{sWave}, 8
    s_cbranch_scc1 K2_NOQ
    """)
    vA8, vQAcc = vXB, vAcc
    Bq = [vE, vE+4, vQ, vQ+4]
    def a_reads(ks):
        a(f"ds_read_b64_tr_b16 {vr(vA8+4*ks,2)}, v{vWa} offset:{ks*4096}")
        a(f"ds_read_b64_tr_b16 {vr(vA8+4*ks+2,2)}, v{vWa} offset:{ks*4096 + 1024}")
    def b_read(ks):
        a(f"v_xor_b32 v{vT2}, {32*ks}, v{vBa}")
        a(f"ds_read_b128 {vr(Bq[ks & 3],4)}, v{vT2} offset:{XT}")
    def mfma(ks):
        c = "0" if ks == 0 else vr(vQAcc,16)
        a(f"v_mfma_f32_32x32x16_bf16 {vr(vQAcc,16)}, {vr(vA8+4*ks,4)}, {vr(Bq[ks & 3],4)}, {c}")
    for ks in range(4):
        a_reads(ks); b_read(ks)
    for ks in range(4):
        a("s_waitcnt lgkmcnt(9)")
        mfma(ks)
        a_reads(ks+4); b_read(ks+4)
    for ks in range(4, 8):
        a(f"s_waitcnt lgkmcnt({3*(7-ks)})")
        mfma(ks)
    a(f"""
    v_cmp_gt_u32 vcc, 52, v{vRow}
    v_xor_b32 v{vT2}, 16, v{vQst}
    s_nop 7
    s_nop 2
    """)
    for i in range(8):
        a(f"v_cvt_pk_bf16_f32 v{vA8+i}, v{vQAcc+2*i}, v{vQAcc+2*i+1}")
    a(f"""
    s_mov_b64 exec, vcc
    ds_write_b128 v{vQst}, {vr(vA8,4)} offset:{QS}
    ds_write_b128 v{vT2}, {vr(vA8+4,4)} offset:{QS}
    s_mov_b64 exec, -1
    """)
    a(f"""
    s_lshl_b32 s3, s{sWave}, 12
    s_add_u32 s{sT}, s3, {WV}
    """)
    for i in range(4):
        a(f"""
        s_mov_b32 m0, s{sT}
        s_add_u32 s{sT}, s{sT}, 1024
        buffer_load_dwordx4 v{vWl}, s[{sWV}:{sWV+3}], s3 offen lds
        s_add_u32 s3, s3, 1024
        """)
    if opt.prefetch == 4:
        a(f"""
        s_lshr_b32 s3, s2, 3
        s_mul_i32 s3, s3, 100096
        s_mul_i32 s{sT}, s{sWave}, 12544
        s_add_u32 s3, s3, s{sT}
        v_lshlrev_b32 v{vT0}, 7, v{vLane}
        {"s_sleep %d" % opt.pfsleep if opt.pfsleep else ""}
        buffer_load_dword v{vQB}, v{vT0}, s[{sX}:{sX+3}], s3 offen
        """)
        if opt.pfn > 1:
            a(f"""
            s_add_u32 s3, s3, 8192
            s_mov_b32 exec_lo, -1
            s_mov_b32 exec_hi, 3
            buffer_load_dword v{vQB}, v{vT0}, s[{sX}:{sX+3}], s3 offen
            s_mov_b64 exec, -1
            """)
    a("s_branch K2_HDRD")
    vW, vXw, vSoM, vSoX, vN4M, vN4X, vRkM, vRkX, vPos, vCn = 56, 64, 68, 76, 80, 88, 92, 100, 104, 112
    def mask(i): return (sM + 2*i) if i < 7 else 0
    a(f"""
    K2_NOQ:
    """)
    st.stamp(a)
    a(f"""
    s_sub_u32 s{sRem}, s{sWave}, 8
    s_lshl_b32 s3, s{sRem}, 11
    v_lshlrev_b32 v{vT0}, 4, v{vLane}
    v_add_u32 v{vT0}, s3, v{vT0}
    s_lshl_b32 s3, s{sBeta}, 14
    s_add_u32 s3, s3, {WS_CELLS}
    s_mov_b32 s{sT}, {1 << 17}
    s_mov_b32 s{sQ}, {1 << TAGSH}
    s_mov_b32 exec_lo, 0
    s_mov_b32 exec_hi, 0x80000000
    K1_CAN:
    buffer_load_dword v{vT1}, v{vT0}, s[{sWS}:{sWS+3}], s3 offen offset:1036 sc1
    s_waitcnt vmcnt(0)
    v_xor_b32 v{vT1}, s{sTag}, v{vT1}
    v_cmp_le_u32 vcc, s{sQ}, v{vT1}
    s_cbranch_vccz K1_CAND
    s_sleep {opt.sleep}
    s_sub_u32 s{sT}, s{sT}, 1
    s_cmp_lg_u32 s{sT}, 0
    s_cbranch_scc1 K1_CAN
    K1_CAND:
    s_mov_b64 exec, -1
    {"s_sleep %d" % opt.sleep2 if opt.sleep2 else ""}
    s_mov_b32 s{sT}, {1 << 17}
    K1_TP:
    buffer_load_dwordx4 {vr(vW,4)}, v{vT0}, s[{sWS}:{sWS+3}], s3 offen sc1
    buffer_load_dwordx4 {vr(vW+4,4)}, v{vT0}, s[{sWS}:{sWS+3}], s3 offen offset:1024 sc1
    s_waitcnt vmcnt(0)
    """)
    for i in range(8): a(f"v_xor_b32 v{vW+i}, s{sTag}, v{vW+i}")
    a(f"""
    v_or3_b32 v{vT1}, v{vW}, v{vW+1}, v{vW+2}
    v_or3_b32 v{vT1}, v{vT1}, v{vW+3}, v{vW+4}
    v_or3_b32 v{vT1}, v{vT1}, v{vW+5}, v{vW+6}
    v_or_b32 v{vT1}, v{vT1}, v{vW+7}
    v_cmp_le_u32 vcc, s{sQ}, v{vT1}
    s_and_b64 exec, exec, vcc
    s_cbranch_execz K1_TPD
    s_sleep {opt.sleep}
    s_sub_u32 s{sT}, s{sT}, 1
    s_cmp_lg_u32 s{sT}, 0
    s_cbranch_scc1 K1_TP
    K1_TPD:
    s_mov_b64 exec, -1
    """)
    for i in range(4): a(f"v_mov_b32 v{vXw+i}, {EMPTY}")
    a(f"""
    s_and_b32 s3, s{sBeta}, 7
    s_lshr_b32 s{sCnt}, s{sBeta}, 5
    s_lshl_b32 s{sCnt}, s{sCnt}, 3
    s_add_u32 s3, s3, s{sCnt}
    s_lshl_b32 s3, s3, 12
    s_lshl_b32 s{sCnt}, s{sRem}, 9
    s_add_u32 s3, s3, s{sCnt}
    s_add_u32 s3, s3, {WS_EXTRA}
    v_lshlrev_b32 v{vT0}, 4, v{vLane}
    s_mov_b32 s{sT}, {1 << 17}
    s_mov_b32 exec_lo, -1
    s_mov_b32 exec_hi, 0
    K1_XP:
    buffer_load_dwordx4 {vr(vXw,4)}, v{vT0}, s[{sWS}:{sWS+3}], s3 offen sc1
    s_waitcnt vmcnt(0)
    """)
    for i in range(4): a(f"v_xor_b32 v{vXw+i}, s{sTag}, v{vXw+i}")
    a(f"""
    v_or3_b32 v{vT1}, v{vXw}, v{vXw+1}, v{vXw+2}
    v_or_b32 v{vT1}, v{vT1}, v{vXw+3}
    v_cmp_le_u32 vcc, s{sQ}, v{vT1}
    s_and_b64 exec, exec, vcc
    s_cbranch_execz K1_XPD
    s_sleep {opt.sleep}
    s_sub_u32 s{sT}, s{sT}, 1
    s_cmp_lg_u32 s{sT}, 0
    s_cbranch_scc1 K1_XP
    K1_XPD:
    s_mov_b64 exec, -1
    v_and_b32 v{vT1}, {1 << 22}, v{vXw+3}
    v_cmp_ne_u32 vcc, 0, v{vT1}
    s_cbranch_vccz K1_NOXP
    s_mov_b64 exec, vcc
    s_lshl_b32 s3, s{sRem}, 9
    s_add_u32 s3, s3, {WS_OVH}
    s_mov_b32 s{sT}, {1 << 17}
    K1_HP:
    buffer_load_dwordx4 {vr(vPos,4)}, v{vT0}, s[{sWS}:{sWS+3}], s3 offen sc1
    s_waitcnt vmcnt(0)
    v_xor_b32 v{vT2}, s{sTag}, v{vPos}
    v_xor_b32 v{vPos+1}, v{vPos}, v{vPos+1}
    v_xor_b32 v{vPos+2}, v{vPos}, v{vPos+2}
    v_xor_b32 v{vPos+3}, v{vPos}, v{vPos+3}
    v_or3_b32 v{vPos+1}, v{vPos+1}, v{vPos+2}, v{vPos+3}
    v_cmp_ne_u32 s[{sM}:{sM+1}], 0, v{vPos+1}
    v_cmp_le_u32 vcc, s{sQ}, v{vT2}
    s_or_b64 vcc, vcc, s[{sM}:{sM+1}]
    s_cbranch_vccz K1_HPD
    s_sleep 2
    s_sub_u32 s{sT}, s{sT}, 1
    s_cmp_lg_u32 s{sT}, 0
    s_cbranch_scc1 K1_HP
    K1_HPD:
    v_min_u32 v{vT2}, {CH}, v{vT2}
    s_lshl_b32 s3, s{sRem}, 7
    s_add_u32 s3, s3, {MF}
    v_lshlrev_b32 v{vT1}, 2, v{vLane}
    v_add_u32 v{vT1}, s3, v{vT1}
    ds_write_b32 v{vT1}, v{vT2}
    v_mov_b32 v{vT1}, {MAXC}
    ds_max_u32 v{vT1}, v{vT2}
    s_mov_b64 exec, -1
    K1_NOXP:
    v_mov_b32 v{vT3}, 1
    """)
    st.stamp(a)
    a("K2_DECODE:")
    for i in range(8):
        m = mask(i)
        a(f"""
        v_lshlrev_b32 v{vN4M+i}, 2, v{vW+i}
        v_and_b32 v{vN4M+i}, 0xfc, v{vN4M+i}
        v_cmp_gt_u32 s[{m}:{m+1}], s{s196}, v{vN4M+i}
        v_and_b32 v{vSoM+i}, 0x003fff00, v{vW+i}
        """)
        if i >= 1:
            mp = mask(i-1)
            a(f"""
            s_mov_b64 exec, s[{mp}:{mp+1}]
            ds_add_rtn_u32 v{vRkM+i-1}, v{vN4M+i-1}, v{vT3} offset:{HIST}
            s_mov_b64 exec, -1
            """)
    a(f"""
    s_mov_b64 exec, s[{mask(7)}:{mask(7)+1}]
    ds_add_rtn_u32 v{vRkM+7}, v{vN4M+7}, v{vT3} offset:{HIST}
    s_mov_b64 exec, -1
    s_mov_b64 s[{sM+14}:{sM+15}], 0
    s_cmp_eq_u32 s{sR}, 0
    s_cbranch_scc0 K2_HDRD
    v_and_b32 v{vT0}, v{vXw}, v{vXw+1}
    v_and_b32 v{vT1}, v{vXw+2}, v{vXw+3}
    v_and_b32 v{vT0}, v{vT0}, v{vT1}
    v_and_b32 v{vT0}, 63, v{vT0}
    v_cmp_ne_u32 vcc, 63, v{vT0}
    s_cbranch_vccz K2_HDRD
    s_bfe_u32 s{sT}, s{sBeta}, 0x20003
    """)
    for i in range(4):
        w, m = vXw + i, sM2 + 2*i
        a(f"""
        v_bfe_u32 v{vT0}, v{w}, 6, 2
        v_cmp_eq_u32 vcc, s{sT}, v{vT0}
        v_mov_b32 v{vT1}, {EMPTY}
        v_and_b32 v{vT2}, 0x003fff3f, v{w}
        s_nop 0
        v_cndmask_b32_e64 v{w}, v{vT1}, v{vT2}, vcc
        v_lshlrev_b32 v{vN4X+i}, 2, v{w}
        v_and_b32 v{vN4X+i}, 0xfc, v{vN4X+i}
        v_cmp_gt_u32 s[{m}:{m+1}], s{s196}, v{vN4X+i}
        v_and_b32 v{vSoX+i}, 0x003fff00, v{w}
        """)
    a(f"""
    s_or_b64 s[{sM+14}:{sM+15}], s[{sM2}:{sM2+1}], s[{sM2+2}:{sM2+3}]
    s_or_b64 s[{sM+14}:{sM+15}], s[{sM+14}:{sM+15}], s[{sM2+4}:{sM2+5}]
    s_or_b64 s[{sM+14}:{sM+15}], s[{sM+14}:{sM+15}], s[{sM2+6}:{sM2+7}]
    s_cbranch_scc0 K2_HDRD
    """)
    for i in range(4):
        m = sM2 + 2*i
        a(f"""
        s_mov_b64 exec, s[{m}:{m+1}]
        ds_add_rtn_u32 v{vRkX+i}, v{vN4X+i}, v{vT3} offset:{HIST}
        """)
    a(f"""
    s_mov_b64 exec, -1
    K2_HDRD:
    s_waitcnt lgkmcnt(0)
    s_barrier
    """)
    st.stamp(a)
    a(f"""
    v_lshlrev_b32 v{vT2}, 2, v{vLane}
    ds_read_b32 v{vCn}, v{vT2} offset:{HIST}
    s_lshl_b32 s{sT}, s{sWave}, 2
    s_waitcnt lgkmcnt(0)
    v_add_u32 v{vPc}, 3, v{vCn}
    v_and_b32 v{vPc}, -4, v{vPc}
    v_mov_b32 v{vStart}, v{vPc}
    v_cmp_lt_u32 vcc, s{sT}, v{vPc}
    s_nop 0
    """)
    steps = ["row_shr:1 row_mask:0xf bank_mask:0xf bound_ctrl:1", "row_shr:2 row_mask:0xf bank_mask:0xf bound_ctrl:1",
             "row_shr:4 row_mask:0xf bank_mask:0xf bound_ctrl:1", "row_shr:8 row_mask:0xf bank_mask:0xf bound_ctrl:1",
             "row_bcast:15 row_mask:0xa bank_mask:0xf", "row_bcast:31 row_mask:0xc bank_mask:0xf"]
    for i, stp in enumerate(steps):
        a(f"v_add_u32_dpp v{vStart}, v{vStart}, v{vStart} {stp}")
        a("s_nop 1" if i < 5 else "s_nop 0")
    a(f"""
    v_readlane_b32 s{sCnt}, v{vStart}, 63
    v_sub_u32 v{vStart}, v{vStart}, v{vPc}
    s_cmp_lt_u32 s{sWave}, 8
    s_cbranch_scc1 K2_NOBP
    """)
    for i in range(8):
        a(f"ds_bpermute_b32 v{vPos+i}, v{vN4M+i}, v{vStart}")
    a(f"""
    K2_NOBP:
    v_add_u32 v{vT0}, s{sT}, v{vStart}
    s_mov_b64 exec, vcc
    ds_write_b32 v{vT0}, v{vUA} offset:{UNODE}
    s_mov_b64 exec, -1
    v_cmp_lt_u32 vcc, 64, v{vPc}
    s_cbranch_vccz K2_UND
    K2_UN:
    s_add_u32 s{sT}, s{sT}, 64
    v_cmp_lt_u32 vcc, s{sT}, v{vPc}
    s_cbranch_vccz K2_UND
    v_add_u32 v{vT0}, s{sT}, v{vStart}
    s_mov_b64 exec, vcc
    ds_write_b32 v{vT0}, v{vUA} offset:{UNODE}
    s_mov_b64 exec, -1
    s_branch K2_UN
    K2_UND:
    s_cmp_gt_u32 s{sWave}, 4
    s_cbranch_scc1 K2_NOPAD
    v_mov_b32 v{vT2}, {OOB}
    s_cmp_gt_u32 s{sWave}, 2
    s_cbranch_scc1 K2_TAILPAD
    v_sub_u32 v{vT1}, v{vPc}, v{vCn}
    v_add_u32 v{vT0}, v{vStart}, v{vCn}
    v_cmp_lt_u32 vcc, s{sWave}, v{vT1}
    v_add_u32 v{vT0}, s{sWave}, v{vT0}
    v_lshlrev_b32 v{vT0}, 2, v{vT0}
    s_mov_b64 exec, vcc
    ds_write_b32 v{vT0}, v{vT2} offset:{LIST}
    s_mov_b64 exec, -1
    s_branch K2_NOPAD
    K2_TAILPAD:
    v_lshlrev_b32 v{vT1}, 2, v{vLane}
    s_cmp_eq_u32 s{sWave}, 3
    s_cbranch_scc0 K2_TAILU
    s_lshl_b32 s{sT}, s{sCnt}, 2
    v_add_u32 v{vT0}, s{sT}, v{vT1}
    s_mov_b64 exec, 0xfffffff
    ds_write_b32 v{vT0}, v{vT2} offset:{LIST}
    s_mov_b64 exec, -1
    s_branch K2_NOPAD
    K2_TAILU:
    v_add_u32 v{vT0}, s{sCnt}, v{vT1}
    v_mov_b32 v{vT2}, {DUMMY*256 + 16*((DUMMY & 3) | (12*((DUMMY >> 2) & 1)))}
    s_mov_b64 exec, 0x7f
    ds_write_b32 v{vT0}, v{vT2} offset:{UNODE}
    s_mov_b64 exec, -1
    K2_NOPAD:
    s_add_u32 s3, s{sCnt}, 31
    s_lshr_b32 s3, s3, 5
    s_lshr_b32 s{sQ}, s3, 4
    s_and_b32 s{sRem}, s3, 15
    s_cmp_lt_u32 s{sWave}, s{sRem}
    s_cselect_b32 s{sNH}, 1, 0
    s_add_u32 s{sHB}, s{sQ}, s{sNH}
    s_min_u32 s3, s{sRem}, s{sWave}
    s_mul_i32 s{sT}, s{sQ}, s{sWave}
    s_add_u32 s{sT}, s{sT}, s3
    v_lshrrev_b32 v{vT0}, 4, v{vLane}
    s_lshl_b32 s3, s{sHB}, 1
    v_mul_u32_u24 v{vT0}, s3, v{vT0}
    s_lshl_b32 s3, s{sT}, 3
    v_add_u32 v{vT0}, s3, v{vT0}
    v_lshlrev_b32 v{vLA}, 4, v{vT0}
    v_lshlrev_b32 v{vUA}, 2, v{vT0}
    s_cmp_lt_u32 s{sWave}, 8
    s_cbranch_scc1 K2_SC_Q
    s_waitcnt lgkmcnt(0)
    """)
    for i in range(8):
        a(f"v_add_lshl_u32 v{vPos+i}, v{vPos+i}, v{vRkM+i}, 2")
    for i in range(8):
        m = mask(i)
        a(f"s_mov_b64 exec, s[{m}:{m+1}]")
        a(f"ds_write_b32 v{vPos+i}, v{vSoM+i} offset:{LIST}")
    a(f"""
    s_mov_b64 exec, -1
    s_cmp_eq_u64 s[{sM+14}:{sM+15}], 0
    s_cbranch_scc1 K2_SORT_DONE
    """)
    for i in range(4):
        a(f"ds_bpermute_b32 v{vPos+i}, v{vN4X+i}, v{vStart}")
    a("s_waitcnt lgkmcnt(0)")
    for i in range(4):
        a(f"""
        v_add_lshl_u32 v{vPos+i}, v{vPos+i}, v{vRkX+i}, 2
        s_mov_b64 exec, s[{sM2+2*i}:{sM2+2*i+1}]
        ds_write_b32 v{vPos+i}, v{vSoX+i} offset:{LIST}
        s_mov_b64 exec, -1
        """)
    a(f"""
    s_branch K2_SORT_DONE
    K2_SC_Q:
    s_waitcnt vmcnt({opt.pfn if opt.prefetch == 4 else 0})
    K2_SORT_DONE:
    """)
    st.stamp(a)
    a(f"""
    s_waitcnt lgkmcnt(0)
    s_barrier
    """)
    st.stamp(a)
    if "cyc" in opt.exp: st.stamp(a, True)
    if opt.prio in (1, 3): a("s_setprio 3")
    if opt.prio == 2:
        a(f"""
        s_cmp_ge_u32 s{sWave}, 4
        s_cbranch_scc0 K2_SP
        s_setprio 1
        s_cmp_ge_u32 s{sWave}, 8
        s_cbranch_scc0 K2_SP
        s_setprio 2
        s_cmp_ge_u32 s{sWave}, 12
        s_cbranch_scc0 K2_SP
        s_setprio 3
        K2_SP:
        """)
    a(f"""
    s_cmp_eq_u32 s{sHB}, 0
    s_cbranch_scc1 K2_NOMAIN
    ds_read_b128 {vr(vE,4)}, v{vLA} offset:{LIST}
    ds_read_b128 {vr(vE+4,4)}, v{vLA} offset:{LIST+16}
    ds_read_b64 {vr(vQC,2)}, v{vUA} offset:{UNODE}
    """)
    for i in range(8):
        a(f"v_mov_b32 v{vAcc+i}, 0")
    a("s_waitcnt lgkmcnt(1)")
    for u in range(8):
        a(f"v_add_u32 v{vE+u}, v{vE+u}, v{vC16}")
        a(f"buffer_load_dwordx4 {vr(vXA+4*u,4)}, v{vE+u}, s[{sX}:{sX+3}], 0 offen")
        if u == 0:
            a(f"""
            s_waitcnt lgkmcnt(0)
            v_xor_b32 v{vT0}, v{vQC}, v{vC16}
            v_xor_b32 v{vT1}, v{vQC+1}, v{vC16}
            ds_read_b128 {vr(vQ,4)}, v{vT0} offset:{QS}
            ds_read_b128 {vr(vQ+4,4)}, v{vT1} offset:{QS}
            v_mov_b32 v{vPrev}, v{vQC}
            """)
    if "bstamp" in opt.exp: st.stamp(a)
    wv_id = [0]
    def wv_dma():
        i = wv_id[0]; wv_id[0] += 1
        a(f"""
        s_cmp_eq_u32 s{sR}, 0
        s_cbranch_scc0 K2_NOWV{i}
        s_lshl_b32 s3, s{sWave}, 11
        s_add_u32 s{sT}, s3, {WV}
        s_mov_b32 m0, s{sT}
        s_add_u32 s{sT}, s{sT}, 1024
        buffer_load_dwordx4 v{vWl}, s[{sWV}:{sWV+3}], s3 offen lds
        s_mov_b32 m0, s{sT}
        s_add_u32 s3, s3, 1024
        buffer_load_dwordx4 v{vWl}, s[{sWV}:{sWV+3}], s3 offen lds
        K2_NOWV{i}:
        """)
    flush_id = [0]
    def flush(prev, masked):
        fid = flush_id[0]; flush_id[0] += 1
        t = ""
        if masked is not None:
            t += f"""
            v_cmp_ne_u32 vcc, v{masked}, v{prev}
            s_cbranch_vccz K2_FL{fid}
            s_mov_b64 exec, vcc
            """
        t += f"""
        v_and_b32 v{vT0}, 0xffffff00, v{prev}
        v_lshl_add_u32 v{vT0}, v{vT0}, 1, v{vPB}
        ds_write_b128 v{vT0}, {vr(vAcc,4)}
        ds_write_b128 v{vT0}, {vr(vAcc+4,4)} offset:256
        """
        if masked is not None:
            for i in range(8):
                t += f"v_mov_b32 v{vAcc+i}, 0\n"
            t += f"""
            s_mov_b64 exec, -1
            K2_FL{fid}:
            """
        return t
    def dots(X, waits):
        for half in range(2):
            a(waits[half])
            if "nodots" in opt.exp: continue
            for r in range(4):
                for u in range(4*half, 4*half+4):
                    if r == 0:
                        a(f"v_dot2_f32_bf16 v{vP+u}, v{X+4*u}, v{vQ+4*half}, 0")
                    else:
                        a(f"v_dot2c_f32_bf16 v{vP+u}, v{X+4*u+r}, v{vQ+4*half+r}")
    def chain(al):
        c = []
        for j in range(4):
            c.append(f"v_add_f32_dpp v{vP+j}, v{vP+j}, v{vP+j} row_mirror row_mask:0xf bank_mask:0x3")
        for j in range(4):
            c.append(f"v_add_f32_dpp v{vP+j}, v{vP+j+4}, v{vP+j+4} row_mirror row_mask:0xf bank_mask:0xc")
        for j in range(2):
            c.append(f"v_add_f32_dpp v{vP+j}, v{vP+j}, v{vP+j} row_half_mirror row_mask:0xf bank_mask:0x5")
        for j in range(2):
            c.append(f"v_add_f32_dpp v{vP+j}, v{vP+j+2}, v{vP+j+2} row_half_mirror row_mask:0xf bank_mask:0xa")
        c.append(f"v_add_f32_dpp v{vP+2}, v{vP}, v{vP} quad_perm:[1,0,3,2] row_mask:0xf bank_mask:0xf")
        c.append(f"v_add_f32_dpp v{vP+3}, v{vP+1}, v{vP+1} quad_perm:[1,0,3,2] row_mask:0xf bank_mask:0xf")
        c.append(f"v_cndmask_b32_e64 v{vP}, v{vP+2}, v{vP+3}, s[{sOdd}:{sOdd+1}]")
        c.append(f"v_add_f32_dpp v{vP}, v{vP}, v{vP} quad_perm:[2,3,0,1] row_mask:0xf bank_mask:0xf")
        if opt.mimic:
            c += [f"v_cvt_pk_bf16_f32 v{vP}, v{vP}, v{vP}", f"v_and_b32 v{vP}, 0xffff0000, v{vP}",
                  f"v_mul_f32 v{vP}, 0x3db504f3, v{vP}", f"v_cvt_pk_bf16_f32 v{vP}, v{vP}, v{vP}",
                  f"v_and_b32 v{vP}, 0xffff0000, v{vP}", f"v_mul_f32 v{vP}, 0xbfb8aa3b, v{vP}"]
        else:
            c.append(f"v_mul_f32 v{vP}, 0xbe0293ee, v{vP}")
        c += [f"v_exp_f32 v{vP}, v{vP}", f"v_add_f32 v{vP}, 1.0, v{vP}", f"v_rcp_f32 v{vP}, v{vP}",
              f"v_cvt_pk_bf16_f32 v{al}, v{vP}, 0", f"v_cvt_pk_bf16_f32 v{al+1}, 0, v{vP}"]
        return c
    def chain_alone(al):
        c = chain(al)
        gaps = {9: 1, 11: 1, 14: 2, 17 + (5 if opt.mimic else 0): 1, 19 + (5 if opt.mimic else 0): 1}
        for i, ins in enumerate(c):
            a(ins)
            if i in gaps: a(f"s_nop {gaps[i]-1}")
    def agg_stream(X, al, loads, Xdst, qp=None):
        out = []
        qp = vQP if qp is None else qp
        for half in range(2):
            if half == 0:
                out.append(('x', flush(vPrev, qp)))
            else:
                out.append(('x', "s_nop 1\n" + flush(qp, qp+1)))
            for u in range(4*half, 4*half+4):
                k = 4*(u >> 1) + (u & 1)
                for r in range(4):
                    if "noagg" in opt.exp:
                        out.append(('v', "s_nop 0")); out.append(('v', "s_nop 0")); continue
                    out.append(('v', f"v_dot2c_f32_bf16_dpp v{vAcc+2*r}, v{al}, v{X+4*u+r} row_newbcast:{k} row_mask:0xf bank_mask:0xf"))
                    out.append(('v', f"v_dot2c_f32_bf16_dpp v{vAcc+2*r+1}, v{al+1}, v{X+4*u+r} row_newbcast:{k} row_mask:0xf bank_mask:0xf"))
                if loads and "noload" not in opt.exp:
                    out.append(('x', f"buffer_load_dwordx4 {vr(Xdst+4*u,4)}, v{vE+u}, s[{sX}:{sX+3}], 0 offen"))
        return out
    def next_prep():
        a("s_waitcnt lgkmcnt(0)")
        a(f"v_xor_b32 v{vT0}, v{vQN}, v{vC16}")
        a(f"v_xor_b32 v{vT1}, v{vQN+1}, v{vC16}")
    def rotate(nxt):
        a(f"v_mov_b32 v{vQP}, v{vQC}")
        a(f"v_mov_b32 v{vQP+1}, v{vQC+1}")
        if nxt:
            a(f"v_mov_b32 v{vQC}, v{vQN}")
            a(f"v_mov_b32 v{vQC+1}, v{vQN+1}")
            a(f"v_add_u32 v{vLA}, 32, v{vLA}")
            a(f"v_add_u32 v{vUA}, 8, v{vUA}")
    def mid(cur, prev, al_cur, al_prev, nxt):
        a("s_waitcnt lgkmcnt(0)")
        if nxt:
            a(f"""
            ds_read_b128 {vr(vE,4)}, v{vLA} offset:{LIST+32}
            ds_read_b128 {vr(vE+4,4)}, v{vLA} offset:{LIST+48}
            ds_read_b64 {vr(vQN,2)}, v{vUA} offset:{UNODE+8}
            """)
        dots(cur, ("s_waitcnt vmcnt(4)", "s_waitcnt vmcnt(0)"))
        if nxt:
            next_prep()
            for u in range(8):
                a(f"v_add_u32 v{vE+u}, v{vE+u}, v{vC16}")
            a(f"ds_read_b128 {vr(vQ,4)}, v{vT0}")
            a(f"ds_read_b128 {vr(vQ+4,4)}, v{vT1}")
        else:
            a("s_nop 2")
        c = chain(al_cur)
        s_ = agg_stream(prev, al_prev, nxt, prev)
        nv = sum(1 for k, _ in s_ if k == 'v')
        ci, vi = 0, 0
        for k, t in s_:
            a(t)
            if k == 'v':
                vi += 1
                if ci < len(c) and vi >= (ci + 1) * nv // (len(c) + 1) and vi % 1 == 0:
                    a(c[ci]); ci += 1
        assert ci == len(c)
        a(f"v_mov_b32 v{vPrev}, v{vQP+1}")
        rotate(nxt)
    def final(X, al):
        for k, t in agg_stream(X, al, False, None):
            a(t)
        a("s_nop 2")
        a(flush(vQP+1, None))
        a("s_branch K2_MAIN_DONE")
    def roll_body(nxt):
        al = vAl[0]
        a("s_waitcnt lgkmcnt(0)")
        if nxt:
            a(f"""
            ds_read_b128 {vr(vE,4)}, v{vLA} offset:{LIST+32}
            ds_read_b128 {vr(vE+4,4)}, v{vLA} offset:{LIST+48}
            ds_read_b64 {vr(vQN,2)}, v{vUA} offset:{UNODE+8}
            """)
        dots(vXA, ("s_waitcnt vmcnt(4)", "s_waitcnt vmcnt(0)"))
        fill = []
        if nxt:
            next_prep()
            a(f"v_add_u32 v{vE}, v{vE}, v{vC16}")
            fill = [f"v_add_u32 v{vE+u}, v{vE+u}, v{vC16}" for u in range(1, 8)]
        else:
            a("s_nop 2")
        c = chain(al)
        gaps = {11: 1, 14: 2, 17 + (5 if opt.mimic else 0): 1, 19 + (5 if opt.mimic else 0): 1}
        for i, ins in enumerate(c):
            a(ins)
            if i == 3 and nxt:
                a(f"ds_read_b128 {vr(vQ,4)}, v{vT0} offset:{QS}")
                a(f"ds_read_b128 {vr(vQ+4,4)}, v{vT1} offset:{QS}")
            for _ in range(gaps.get(i, 0)):
                a(fill.pop(0) if fill else "s_nop 0")
        while fill: a(fill.pop(0))
        a("s_nop 0")
        for k, t in agg_stream(vXA, al, nxt, vXA, vQC):
            a(t)
        a(f"v_mov_b32 v{vPrev}, v{vQC+1}")
        if nxt:
            a(f"v_mov_b32 v{vQC}, v{vQN}")
            a(f"v_mov_b32 v{vQC+1}, v{vQN+1}")
            a(f"v_add_u32 v{vLA}, 32, v{vLA}")
            a(f"v_add_u32 v{vUA}, 8, v{vUA}")
    if opt.style == "roll":
        a(f"""
        s_cmp_eq_u32 s{sHB}, 1
        s_cbranch_scc1 K2_LAST
        K2_LOOP:
        """)
        if opt.prio == 1:
            a(f"""
            s_cmp_ge_u32 s{sHB}, 4
            s_cbranch_scc1 K2_PR0
            s_setprio 2
            s_cmp_eq_u32 s{sHB}, 3
            s_cbranch_scc1 K2_PR0
            s_setprio 1
            K2_PR0:
            """)
        if opt.prio == 3:
            a(f"""
            s_cmp_ge_u32 s{sHB}, 3
            s_cbranch_scc1 K2_PR0
            s_setprio 2
            K2_PR0:
            """)
        roll_body(True)
        a(f"""
        s_sub_u32 s{sHB}, s{sHB}, 1
        s_cmp_gt_u32 s{sHB}, 1
        s_cbranch_scc1 K2_LOOP
        K2_LAST:
        """)
        if opt.prio == 1: a("s_setprio 0")
        if opt.prio == 3: a("s_setprio 1")
        roll_body(False)
        a("s_nop 2")
        a(flush(vPrev, None))
    else:
        def body2(cur, oth, qc, qn, first, has1, has2):
            al = vAl[0]
            a("s_waitcnt lgkmcnt(0)")
            if has1:
                a(f"ds_read_b64 {vr(qn,2)}, v{vUA} offset:{UNODE+8}")
                if first:
                    a(f"ds_read_b128 {vr(vE,4)}, v{vLA} offset:{LIST+32}")
                    a(f"ds_read_b128 {vr(vE+4,4)}, v{vLA} offset:{LIST+48}")
            if has2 and not first:
                a(f"ds_read_b128 {vr(vE,4)}, v{vLA} offset:{LIST+64}")
                a(f"ds_read_b128 {vr(vE+4,4)}, v{vLA} offset:{LIST+80}")
            if first or not has1: waits = ("s_waitcnt vmcnt(4)", "s_waitcnt vmcnt(0)")
            else: waits = ("s_waitcnt vmcnt(12)", "s_waitcnt vmcnt(8)")
            dots(cur, waits)
            fill = []
            if has1:
                a("s_waitcnt lgkmcnt(0)")
                a(f"v_xor_b32 v{vT0}, v{qn}, v{vC16}")
                a(f"v_xor_b32 v{vT1}, v{qn+1}, v{vC16}")
                if first:
                    for u in range(8):
                        a(f"v_add_u32 v{vE+u}, v{vE+u}, v{vC16}")
                        a(f"buffer_load_dwordx4 {vr(oth+4*u,4)}, v{vE+u}, s[{sX}:{sX+3}], 0 offen")
                    if has2:
                        a(f"ds_read_b128 {vr(vE,4)}, v{vLA} offset:{LIST+64}")
                        a(f"ds_read_b128 {vr(vE+4,4)}, v{vLA} offset:{LIST+80}")
                elif has2:
                    a(f"v_add_u32 v{vE}, v{vE}, v{vC16}")
                    fill = [f"v_add_u32 v{vE+u}, v{vE+u}, v{vC16}" for u in range(1, 8)]
                else:
                    a("s_nop 0")
            else:
                a("s_nop 2")
            c = chain(al)
            gaps = {11: 1, 14: 2, 17 + (5 if opt.mimic else 0): 1, 19 + (5 if opt.mimic else 0): 1}
            for i, ins in enumerate(c):
                a(ins)
                if i == 3 and has1:
                    a(f"ds_read_b128 {vr(vQ,4)}, v{vT0} offset:{QS}")
                    a(f"ds_read_b128 {vr(vQ+4,4)}, v{vT1} offset:{QS}")
                for _ in range(gaps.get(i, 0)):
                    a(fill.pop(0) if fill else "s_nop 0")
            while fill: a(fill.pop(0))
            if first and has2:
                a("s_waitcnt lgkmcnt(2)")
                for u in range(8):
                    a(f"v_add_u32 v{vE+u}, v{vE+u}, v{vC16}")
            else:
                a("s_nop 0")
            for k, t in agg_stream(cur, al, has2, cur, qc):
                a(t)
            a(f"v_mov_b32 v{vPrev}, v{qc+1}")
            if has1:
                a(f"v_add_u32 v{vLA}, 32, v{vLA}")
                a(f"v_add_u32 v{vUA}, 8, v{vUA}")
        def last2(cur, oth, qc, qn):
            if opt.prio: a("s_setprio 0")
            body2(cur, oth, qc, qn, False, False, False)
            a("s_nop 2")
            a(flush(vPrev, None))
            a("s_branch K2_MAIN_DONE")
        qA, qB = vQC, vQN
        a(f"""
        s_cmp_eq_u32 s{sHB}, 1
        s_cbranch_scc1 K2_LA
        s_cmp_eq_u32 s{sHB}, 2
        s_cbranch_scc1 K2_F2
        """)
        body2(vXA, vXB, qA, qB, True, True, True)
        a(f"""
        s_sub_u32 s{sHB}, s{sHB}, 1
        K2_LOOP:
        s_cmp_eq_u32 s{sHB}, 2
        s_cbranch_scc1 K2_PB
        """)
        if opt.prio: a("s_setprio 2")
        body2(vXB, vXA, qB, qA, False, True, True)
        a(f"""
        s_sub_u32 s{sHB}, s{sHB}, 1
        s_cmp_eq_u32 s{sHB}, 2
        s_cbranch_scc1 K2_PA
        """)
        body2(vXA, vXB, qA, qB, False, True, True)
        a(f"""
        s_sub_u32 s{sHB}, s{sHB}, 1
        s_branch K2_LOOP
        K2_PB:
        """)
        if opt.prio: a("s_setprio 1")
        body2(vXB, vXA, qB, qA, False, True, False)
        a("K2_LA:")
        last2(vXA, vXB, qA, qB)
        a("K2_PA:")
        if opt.prio: a("s_setprio 1")
        body2(vXA, vXB, qA, qB, False, True, False)
        a("K2_LB:")
        last2(vXB, vXA, qB, qA)
        a("K2_F2:")
        body2(vXA, vXB, qA, qB, True, True, False)
        a("s_branch K2_LB")
    a("s_branch K2_MAIN_DONE")
    a("K2_NOMAIN:")
    a("K2_MAIN_DONE:")
    if opt.prio: a("s_setprio 0")
    if "cyc" in opt.exp: st.stamp(a, True)
    st.stamp(a)
    a(f"""
    s_cmp_eq_u32 s{sR}, 0
    s_cbranch_scc0 K2_NRDONE
    v_mov_b32 v{vT3}, {MAXC}
    ds_read_b32 v{vT3}, v{vT3}
    s_waitcnt lgkmcnt(0)
    v_readfirstlane_b32 s3, v{vT3}
    s_nop 3
    s_min_u32 s3, s3, {CH}
    s_add_u32 s3, s3, 7
    s_lshr_b32 s3, s3, 3
    s_add_u32 s{sNR}, s3, 1
    K2_NRDONE:
    """)
    vSf, vSl = vE, vE+1
    a(f"""
    s_cmp_eq_u32 s{sWave}, 0
    s_cbranch_scc0 K2_NOTBL
    s_add_u32 s3, s{sQ}, 1
    s_lshl_b32 s3, s3, 1
    v_cvt_f32_u32 v{vT0}, s3
    s_mul_i32 s3, s3, s{sRem}
    s_lshl_b32 s{sP}, s3, 2
    s_lshl_b32 s3, s{sQ}, 1
    v_cvt_f32_u32 v{vT1}, s3
    v_rcp_f32 v{vT0}, v{vT0}
    v_rcp_f32 v{vT1}, v{vT1}
    s_lshl_b32 s3, s{sRem}, 2
    """)
    for (dst, last) in ((vSf, False), (vSl, True)):
        if not last:
            a(f"v_lshrrev_b32 v{vT2}, 2, v{vStart}")
        else:
            a(f"""
            v_add_u32 v{vT2}, v{vStart}, v{vPc}
            v_lshrrev_b32 v{vT2}, 2, v{vT2}
            v_add_u32 v{vT2}, -1, v{vT2}
            """)
        a(f"""
        v_cmp_gt_u32 vcc, s{sP}, v{vT2}
        v_cvt_f32_u32 v{vT3}, v{vT2}
        v_add_f32 v{vT3}, 0.5, v{vT3}
        v_mul_f32 v{vT3}, v{vT3}, v{vT0}
        v_cvt_u32_f32 v{vT3}, v{vT3}
        v_subrev_u32 v{vT2}, s{sP}, v{vT2}
        v_cvt_f32_u32 v{vT2}, v{vT2}
        v_add_f32 v{vT2}, 0.5, v{vT2}
        v_mul_f32 v{vT2}, v{vT2}, v{vT1}
        v_cvt_u32_f32 v{vT2}, v{vT2}
        v_add_u32 v{vT2}, s3, v{vT2}
        v_cndmask_b32_e64 v{dst}, v{vT2}, v{vT3}, vcc
        """)
    a(f"""
    v_sub_u32 v{vT0}, v{vSl}, v{vSf}
    v_add_u32 v{vT0}, 1, v{vT0}
    v_cmp_lt_u32 vcc, 0, v{vPc}
    v_add_u32 v{vT1}, v{vSf}, v{vLane}
    v_lshlrev_b32 v{vT1}, 9, v{vT1}
    v_cndmask_b32_e64 v{vT0}, 0, v{vT0}, vcc
    v_add_u32 v{vT1}, {PIECE}, v{vT1}
    v_lshlrev_b32 v{vT3}, 2, v{vLane}
    v_mov_b32 v{vT2}, {ZROW}
    ds_write_b32 v{vT3}, v{vT0} offset:{NPC}
    """)
    for j in range(4):
        a(f"""
        v_cmp_lt_u32 vcc, {j}, v{vT0}
        v_add_u32 v{vT3}, {512*j}, v{vT1}
        s_nop 0
        v_cndmask_b32_e64 v{vE+4+j}, v{vT2}, v{vT3}, vcc
        """)
    a(f"""
    v_lshlrev_b32 v{vT0}, 4, v{vLane}
    ds_write_b128 v{vT0}, {vr(vE+4,4)} offset:{TBL}
    K2_NOTBL:
    """)
    vA8 = vXB
    a(f"""
    s_cmp_ge_u32 s{sWave}, 8
    s_cbranch_scc1 K2_NOAA
    s_and_b32 s{sP}, s{sWave}, 3
    s_lshr_b32 s{sNH}, s{sWave}, 2
    """)
    tile_a_addr(a, vWa, vLane, vT2, vT3, sP, WV)
    for ks in range(8):
        if ks == 6: a("s_waitcnt lgkmcnt(4)")
        a(f"ds_read_b64_tr_b16 {vr(vA8+4*ks,2)}, v{vWa} offset:{ks*4096}")
        a(f"ds_read_b64_tr_b16 {vr(vA8+4*ks+2,2)}, v{vWa} offset:{ks*4096 + 1024}")
    a(f"""
    v_and_b32 v{vRow}, 31, v{vLane}
    s_lshl_b32 s3, s{sNH}, 5
    v_add_u32 v{vRow}, s3, v{vRow}
    """)
    tile_b_addr(a, vBa, vRow, vLane, vT3)
    vTa, vNa, vWb, vOut = 80, 81, 82, 83
    for ks in range(8):
        a(f"v_xor_b32 v{vQ+ks}, {32*ks}, v{vBa}")
    a(f"""
    s_mul_i32 s3, s{sBeta}, {T*256}
    s_lshl_b32 s{sCnt}, s{sP}, 6
    s_add_u32 s3, s3, s{sCnt}
    v_lshrrev_b32 v{vT0}, 5, v{vLane}
    v_lshlrev_b32 v{vOut}, 8, v{vRow}
    v_lshl_add_u32 v{vOut}, v{vT0}, 5, v{vOut}
    v_add_u32 v{vOut}, s3, v{vOut}
    K2_NOAA:
    v_lshrrev_b32 v{vT0}, 4, v{vLane}
    s_lshl_b32 s3, s{sWave}, 2
    v_add_u32 v{vT0}, s3, v{vT0}
    v_lshlrev_b32 v{vTa}, 4, v{vT0}
    v_lshlrev_b32 v{vNa}, 2, v{vT0}
    v_xor_b32 v{vWb}, v{vTa}, v{vC16}
    v_and_b32 v{vWb}, 0xf0, v{vWb}
    v_lshl_add_u32 v{vWb}, v{vT0}, 8, v{vWb}
    s_waitcnt lgkmcnt(0)
    s_barrier
    """)
    st.stamp(a)
    vB = vE
    vRd = vXA
    vNp = vT3
    a(f"""
    s_cmp_ge_u32 s{sWave}, 13
    s_cbranch_scc1 K2_RED_DONE
    ds_read_b128 {vr(vB,4)}, v{vTa} offset:{TBL}
    ds_read_b32 v{vNp}, v{vNa} offset:{NPC}
    s_waitcnt lgkmcnt(0)
    """)
    for j in range(3):
        a(f"""
        v_add_u32 v{vB+j}, v{vB+j}, v{vC16}
        ds_read_b128 {vr(vRd+8*j,4)}, v{vB+j}
        ds_read_b128 {vr(vRd+8*j+4,4)}, v{vB+j} offset:256
        """)
    for j in range(3):
        a(f"s_waitcnt lgkmcnt({4-2*j})")
        for i in range(8):
            a(f"v_add_f32 v{vTot+i}, v{vTot+i}, v{vRd+8*j+i}")
    a(f"""
    s_mov_b32 s{sT}, 3
    K2_XL:
    v_cmp_lt_u32 vcc, s{sT}, v{vNp}
    s_cbranch_vccz K2_RED_DONE
    s_lshl_b32 s3, s{sT}, 9
    v_add_u32 v{vT0}, s3, v{vB}
    s_mov_b64 exec, vcc
    ds_read_b128 {vr(vRd,4)}, v{vT0}
    ds_read_b128 {vr(vRd+4,4)}, v{vT0} offset:256
    s_waitcnt lgkmcnt(0)
    """)
    for i in range(8):
        a(f"v_add_f32 v{vTot+i}, v{vTot+i}, v{vRd+i}")
    a(f"""
    s_mov_b64 exec, -1
    s_add_u32 s{sT}, s{sT}, 1
    s_branch K2_XL
    K2_RED_DONE:
    s_add_u32 s{sR}, s{sR}, 1
    s_cmp_ge_u32 s{sR}, s{sNR}
    s_cbranch_scc1 K2_EPI
    s_barrier
    """)
    a(f"""
    s_cmp_ge_u32 s{sWave}, 4
    s_cbranch_scc1 K2_RZ
    v_mov_b32 v{vT2}, 0
    v_lshlrev_b32 v{vT3}, 2, v0
    ds_write_b32 v{vT3}, v{vT2} offset:{HIST}
    K2_RZ:
    v_bfe_u32 v{vT2}, v{vLane}, 2, 1
    v_mul_u32_u24 v{vT2}, 12, v{vT2}
    v_and_b32 v{vT3}, 3, v{vLane}
    v_or_b32 v{vT2}, v{vT2}, v{vT3}
    v_lshlrev_b32 v{vUA}, 8, v{vLane}
    v_lshl_or_b32 v{vUA}, v{vT2}, 4, v{vUA}
    s_waitcnt lgkmcnt(0)
    s_barrier
    s_cmp_lt_u32 s{sWave}, 8
    s_cbranch_scc1 K2_HDRD
    """)
    for i in range(8): a(f"v_mov_b32 v{vW+i}, {EMPTY}")
    a(f"""
    v_subrev_u32 v{vT0}, 512, v0
    v_and_b32 v{vT1}, 1, v{vT0}
    v_lshrrev_b32 v{vT0}, 1, v{vT0}
    v_lshlrev_b32 v{vT2}, 2, v{vT0}
    v_add_u32 v{vT2}, {MF}, v{vT2}
    ds_read_b32 v{vT3}, v{vT2}
    v_lshlrev_b32 v{vT0}, 14, v{vT0}
    v_add_u32 v{vT0}, {WS_OVF}, v{vT0}
    s_lshl_b32 s3, s{sR}, 3
    s_sub_u32 s3, s3, 8
    v_lshl_add_u32 v{vT1}, v{vT1}, 2, s3
    v_lshl_add_u32 v{vT0}, v{vT1}, 3, v{vT0}
    s_mov_b32 s{sQ}, {1 << TAGSH}
    s_mov_b32 s{sT}, {1 << 17}
    s_waitcnt lgkmcnt(0)
    v_sub_u32 v{vT3}, v{vT3}, v{vT1}
    v_cmp_lt_i32 vcc, 0, v{vT3}
    s_and_saveexec_b64 s[{sSave}:{sSave+1}], vcc
    s_cbranch_execz K2_R1
    v_cmp_lt_i32 s[{sM}:{sM+1}], 1, v{vT3}
    v_cmp_lt_i32 s[{sM+2}:{sM+3}], 2, v{vT3}
    v_cmp_lt_i32 s[{sM+4}:{sM+5}], 3, v{vT3}
    K2_RP:
    buffer_load_dwordx4 {vr(vSoM,4)}, v{vT0}, s[{sWS}:{sWS+3}], 0 offen sc1
    buffer_load_dwordx4 {vr(vSoM+4,4)}, v{vT0}, s[{sWS}:{sWS+3}], 0 offen offset:16 sc1
    s_waitcnt vmcnt(0)
    """)
    for i in range(8): a(f"v_xor_b32 v{vSoM+i}, s{sTag}, v{vSoM+i}")
    a(f"v_or_b32 v{vT1}, v{vSoM}, v{vSoM+1}")
    for k in range(1, 4):
        a(f"""
        v_or_b32 v{vT2}, v{vSoM+2*k}, v{vSoM+2*k+1}
        v_cndmask_b32_e64 v{vT2}, 0, v{vT2}, s[{sM+2*(k-1)}:{sM+2*(k-1)+1}]
        v_or_b32 v{vT1}, v{vT1}, v{vT2}
        """)
    a(f"""
    v_cmp_le_u32 vcc, s{sQ}, v{vT1}
    s_cbranch_vccz K2_RPD
    s_sleep 2
    s_sub_u32 s{sT}, s{sT}, 1
    s_cmp_lg_u32 s{sT}, 0
    s_cbranch_scc1 K2_RP
    K2_RPD:
    v_cmp_eq_u32 vcc, s{sBeta}, v{vSoM+1}
    s_nop 1
    v_cndmask_b32_e64 v{vW}, v{vW}, v{vSoM}, vcc
    """)
    for k in range(1, 4):
        a(f"""
        v_cmp_eq_u32 vcc, s{sBeta}, v{vSoM+2*k+1}
        s_nop 0
        s_and_b64 vcc, vcc, s[{sM+2*(k-1)}:{sM+2*(k-1)+1}]
        s_nop 1
        v_cndmask_b32_e64 v{vW+k}, v{vW+k}, v{vSoM+2*k}, vcc
        """)
    a(f"""
    K2_R1:
    s_mov_b64 exec, s[{sSave}:{sSave+1}]
    v_mov_b32 v{vT3}, 1
    s_branch K2_DECODE
    K2_EPI:
    """)
    st.stamp(a)
    vAcc16, vB8 = 24, vXA
    a(f"""
    s_cmp_ge_u32 s{sWave}, 13
    s_cbranch_scc1 K2_WB_DONE
    """)
    for i in range(4):
        a(f"v_cvt_pk_bf16_f32 v{vE+i}, v{vTot+2*i}, v{vTot+2*i+1}")
    a(f"""
    ds_write_b128 v{vWb}, {vr(vE,4)} offset:{AGGB}
    K2_WB_DONE:
    s_waitcnt lgkmcnt(0)
    s_barrier
    s_cmp_ge_u32 s{sWave}, 8
    s_cbranch_scc1 K2_FIN
    """)
    a(f"v_mov_b32 v{vE}, v{vOut}")
    for ks in range(8):
        a(f"ds_read_b128 {vr(vB8+4*ks,4)}, v{vQ+ks} offset:{AGGB}")
    a(f"v_cmp_gt_u32 vcc, {T}, v{vRow}")
    for ks in range(8):
        a(f"s_waitcnt lgkmcnt({7-ks})")
        c = "0" if ks == 0 else vr(vAcc16,16)
        a(f"v_mfma_f32_32x32x16_bf16 {vr(vAcc16,16)}, {vr(vA8+4*ks,4)}, {vr(vB8+4*ks,4)}, {c}")
    a("s_nop 7")
    a("s_nop 3")
    for i in range(8):
        a(f"v_cvt_pk_bf16_f32 v{vQ+i}, v{vAcc16+2*i}, v{vAcc16+2*i+1}")
    a(f"""
    s_and_saveexec_b64 s[{sSave}:{sSave+1}], vcc
    s_cbranch_execz K2_ST_DONE
    buffer_store_dwordx4 {vr(vQ,4)}, v{vE}, s[{sOUT}:{sOUT+3}], 0 offen {opt.outst}
    buffer_store_dwordx4 {vr(vQ+4,4)}, v{vE}, s[{sOUT}:{sOUT+3}], 0 offen offset:16 {opt.outst}
    K2_ST_DONE:
    s_mov_b64 exec, s[{sSave}:{sSave+1}]
    K2_FIN:
    s_cmp_eq_u32 s2, 0
    s_cbranch_scc0 K2_NOEPOCH
    s_cmp_eq_u32 s{sWave}, 15
    s_cbranch_scc0 K2_NOEPOCH
    v_mov_b32 v{vT0}, 0
    v_mov_b32 v{vT1}, s{sTag}
    s_mov_b64 exec, 1
    buffer_store_dword v{vT1}, v{vT0}, s[{sWS}:{sWS+3}], 0 offen sc1
    s_mov_b64 exec, -1
    K2_NOEPOCH:
    """)
    st.stamp(a)
    if opt.stamps:
        a("s_waitcnt vmcnt(0)")
        st.stamp(a)
    st.flush(a, sWS, vT0, sWave)
    a("""
    K2_END:
    s_endpgm
    """)
    return a.text(), LDS, 128

def build(opt):
    k, lds, v = gen_k(opt)
    n = NAME + "_kernel"
    out = HEADER
    for _ in range(opt.rep):
        out += f"; @launch kernel={n} grid=({NB},1,1) block=(1024,1,1) lds={lds}\n" if opt.aslist or opt.rep > 1 else f"; @launch grid=({NB},1,1) block=(1024,1,1) lds={lds}\n"
    out += '.amdgcn_target "amdgcn-amd-amdhsa--gfx950"\n.text\n'
    out += f".globl {n}\n.p2align 8\n.type {n},@function\n" + k
    out += '.section .rodata,"a"\n.p2align 6\n' + kd(n, v)
    return out

def parse(argv=None):
    p = argparse.ArgumentParser()
    p.add_argument("-o", default="cdna_kernels/" + NAME + ".s")
    p.add_argument("--stamps", action="store_true")
    p.add_argument("--prefetch", type=int, default=0)
    p.add_argument("--mimic", type=int, default=0)
    p.add_argument("--prio", type=int, default=3)
    p.add_argument("--keep", default="")
    p.add_argument("--exp", default="")
    p.add_argument("--outst", default="")
    p.add_argument("--sleep", type=int, default=2)
    p.add_argument("--drain", type=int, default=0)
    p.add_argument("--sleep2", type=int, default=0)
    p.add_argument("--pfn", type=int, default=2)
    p.add_argument("--pfsleep", type=int, default=0)
    p.add_argument("--wsbase", type=lambda x: int(x, 0), default=0)
    p.add_argument("--cst", default="sc1")
    p.add_argument("--dmalate", type=int, default=0)
    p.add_argument("--rep", type=int, default=1)
    p.add_argument("--aslist", type=int, default=0)
    p.add_argument("--style", default="roll")
    return p.parse_args(argv)

if __name__ == "__main__":
    o = parse()
    open(o.o, "w").write(build(o))
    print("wrote", o.o)
```

```python
import sys, argparse
from gen import A, vr, Stamps, scan64, kd, HEADER, NAME

N, E, D = 12500, 400000, 128
T = 49
NB = 256
CH = 1564
C = 256
XBYTES = N * 256
EBYTES = E * 4
WS_NONCE = 0
WS_OVH = 0x1000
WS_EXTRA = 0x40000
WS_CELLS = 0x100000
CELLROW = 16384
WS_OVF = 0x500000
OVF_STRIDE = 16384
WS_USED = WS_OVF + 256 * OVF_STRIDE
TAGSH = 23
EMPTY = 0x3f
WS_STAMP = 0x1000000
OOB = 0x40000000
DUMMY = 49

def srd_tail(a, d, size):
    a(f"s_mov_b32 s{d+2}, {size}")
    a(f"s_mov_b32 s{d+3}, 0x00020000")

def tile_a_addr(a, vdst, vlane, t0, t1, sP, wbase):
    a(f"""
    v_bfe_u32 v{t0}, v{vlane}, 2, 2
    v_lshrrev_b32 v{t1}, 5, v{vlane}
    v_lshl_add_u32 v{vdst}, v{t1}, 3, v{t0}
    v_lshlrev_b32 v{vdst}, 8, v{vdst}
    v_xor_b32 v{t0}, s{sP}, v{t0}
    v_lshl_add_u32 v{vdst}, v{t0}, 6, v{vdst}
    v_bfe_u32 v{t0}, v{vlane}, 4, 1
    v_bfe_u32 v{t1}, v{vlane}, 1, 1
    v_lshl_add_u32 v{t0}, v{t0}, 1, v{t1}
    v_and_b32 v{t1}, 1, v{vlane}
    v_lshl_add_u32 v{t0}, v{t1}, 2, v{t0}
    v_lshl_add_u32 v{vdst}, v{t0}, 3, v{vdst}
    v_add_u32 v{vdst}, {wbase}, v{vdst}
    """)

def tile_b_addr(a, vdst, vrow, vlane, t0):
    a(f"""
    v_lshrrev_b32 v{t0}, 5, v{vlane}
    v_xor_b32 v{t0}, v{t0}, v{vrow}
    v_and_b32 v{t0}, 15, v{t0}
    v_lshlrev_b32 v{t0}, 4, v{t0}
    v_lshl_add_u32 v{vdst}, v{vrow}, 8, v{t0}
    """)

def gen_k(opt):
    a = A()
    HIST, MAXC, ZROW, TBL = 0, 256, 512, 1024
    NPC = TBL + 1024
    LIST = NPC + 256
    LISTW = 6144
    UNODE = LIST + LISTW * 4
    QS = UNODE + 1536 * 4
    AGGB = QS + 52 * 256
    PIECE = AGGB + 64 * 256
    XT = PIECE
    WQ = XT + 16384
    WV = PIECE + (DUMMY + 64) * 512
    LDS = WV + 32768
    assert WQ + 32768 <= WV
    st = Stamps(opt.stamps, 64, WS_STAMP + 0x40000, [int(x) for x in opt.keep.split(',')] if opt.keep else None)
    sX, sWQ, sWV, sOUT, sWS = 4, 8, 12, 16, 20
    sBeta, sWave, sR, sNR = 24, 25, 26, 27
    sOdd = 28
    sBeta24, sHB, sP, sNH, s196 = 30, 31, 32, 33, 34
    sM = 36
    sSave = 50
    sCnt, sQ, sRem, sT = 52, 53, 54, 55
    vC16, vPB, vLA, vUA, vPrev = 1, 2, 3, 4, 5
    vQP, vQC, vQN = 6, 8, 10
    vAl = (12, 14)
    vQB = 16
    vT0, vT1, vT2, vT3 = 17, 18, 19, 20
    vLane, vStart, vPc = 21, 22, 23
    vAcc, vP, vE, vQ = 24, 32, 40, 48
    vXA, vXB, vTot = 56, 88, 120
    vCand, vHdr, vSo, vN4, vRk = 56, 60, 64, 72, 80
    vCnt = 47
    vHdr2, vSo2, vN42, vRk2 = 88, 92, 96, 100
    sM2 = 56
    vWl = 6
    vWa, vBa, vRow, vQst = 12, 13, 14, 15
    HP = LDS
    OVC, JUNK = HP + 1024, HP + 1040
    H2 = HP + 1280
    ST2 = H2 + 256
    MF = ST2 + 1024
    LDS = MF + 1024
    OVL = LIST
    OVB = LIST + 8192
    STAGE = AGGB
    sSRC, sDST, sNonce, sPi = 56, 60, 35, 3
    sTag = 30
    vDst, vSrc, vEnt, vAdr, vRank, vNeg, vNon, vGo = 56, 58, 60, 62, 64, 68, 66, 67
    vBk = 76
    a(f"""
    {NAME}_kernel:
    s_cmp_ge_u32 s2, {NB}
    s_cbranch_scc1 K2_END
    s_load_dwordx2 s[{sWS}:{sWS+1}], s[0:1], 56
    s_load_dwordx2 s[{sDST}:{sDST+1}], s[0:1], 16
    s_load_dwordx2 s[{sSRC}:{sSRC+1}], s[0:1], 8
    s_load_dwordx2 s[{sX}:{sX+1}], s[0:1], 0
    s_load_dwordx2 s[{sWQ}:{sWQ+1}], s[0:1], 24
    s_load_dwordx2 s[{sWV}:{sWV+1}], s[0:1], 32
    s_load_dwordx2 s[{sOUT}:{sOUT+1}], s[0:1], 40
    """)
    st.stamp(a)
    srd_tail(a, sWS, WS_USED if not opt.stamps else 0x2000000)
    srd_tail(a, sDST, EBYTES); srd_tail(a, sSRC, EBYTES); srd_tail(a, sX, XBYTES); srd_tail(a, sWQ, 32768)
    a(f"""
    v_lshrrev_b32 v{vT0}, 6, v0
    s_mov_b32 s{sBeta}, s2
    s_mul_i32 s3, s2, {CH*4}
    v_readfirstlane_b32 s{sWave}, v{vT0}
    v_lshlrev_b32 v{vT2}, 3, v0
    v_add_u32 v{vT2}, s3, v{vT2}
    s_movk_i32 s{sT}, {CH//2}
    s_cmp_eq_u32 s2, {C-1}
    s_cselect_b32 s{sT}, {(E - (C-1)*CH)//2}, s{sT}
    v_mov_b32 v{vT3}, 0
    v_cmp_gt_u32 vcc, s{sT}, v0
    s_and_saveexec_b64 s[{sSave}:{sSave+1}], vcc
    s_waitcnt lgkmcnt(0)
    {("s_add_u32 s%d, s%d, %d" % (sWS, sWS, opt.wsbase)) if opt.wsbase else ""}
    {("s_addc_u32 s%d, s%d, 0" % (sWS+1, sWS+1)) if opt.wsbase else ""}
    s_cbranch_execz K1_NOEDGE0
    buffer_load_dwordx2 {vr(vDst,2)}, v{vT2}, s[{sDST}:{sDST+3}], 0 offen
    buffer_load_dwordx2 {vr(vSrc,2)}, v{vT2}, s[{sSRC}:{sSRC+3}], 0 offen
    K1_NOEDGE0:
    s_mov_b64 exec, s[{sSave}:{sSave+1}]
    buffer_load_dword v{vNon}, v{vT3}, s[{sWS}:{sWS+3}], 0 offen sc1
    """)
    a(f"""
    v_and_b32 v{vLane}, 63, v0
    v_bfe_u32 v{vT0}, v0, 4, 2
    v_and_b32 v{vT1}, 15, v0
    v_lshlrev_b32 v{vC16}, 4, v{vT1}
    """)
    a(f"""
    v_mov_b32 v{vNeg}, {EMPTY}
    v_mov_b32 v{vNeg+1}, {EMPTY}
    v_mov_b32 v{vNeg+2}, {EMPTY}
    v_mov_b32 v{vNeg+3}, {EMPTY}
    v_lshlrev_b32 v{vT2}, 4, v0
    ds_write_b128 v{vT2}, {vr(vNeg,4)} offset:{STAGE}
    s_cmp_eq_u32 s{sWave}, 12
    s_cbranch_scc0 K1_NOS2
    v_lshlrev_b32 v{vT3}, 4, v{vLane}
    v_add_u32 v{vT3}, {ST2}, v{vT3}
    ds_write_b128 v{vT3}, {vr(vNeg,4)}
    K1_NOS2:
    v_mov_b32 v{vT2}, 0
    v_lshlrev_b32 v{vT3}, 2, v0
    s_cmp_ge_u32 s{sWave}, 6
    s_cbranch_scc1 K1_NOZ0
    v_add_u32 v{vT3}, {HP}, v{vT3}
    ds_write_b32 v{vT3}, v{vT2}
    s_branch K1_NOZ1
    K1_NOZ0:
    s_sub_u32 s3, s{sWave}, 8
    s_cmp_ge_u32 s3, 4
    s_cbranch_scc1 K1_NOZ2
    v_add_u32 v{vT3}, {HIST - 2048}, v{vT3}
    ds_write_b32 v{vT3}, v{vT2}
    s_branch K1_NOZ1
    K1_NOZ2:
    s_cmp_lt_u32 s{sWave}, 12
    s_cbranch_scc1 K1_NOZ1
    v_add_u32 v{vT3}, {MF - 3072}, v{vT3}
    ds_write_b32 v{vT3}, v{vT2}
    K1_NOZ1:
    s_mov_b32 s{sR}, 0
    s_mov_b32 s{sOdd}, 0xaaaaaaaa
    s_mov_b32 s{sOdd+1}, 0xaaaaaaaa
    s_movk_i32 s{s196}, {T*4}
    s_lshl_b32 s3, s{sWave}, 11
    s_add_u32 s3, s3, {PIECE}
    v_lshl_add_u32 v{vPB}, v{vT0}, 9, s3
    v_add_u32 v{vPB}, v{vPB}, v{vC16}
    s_and_b32 s{sPi}, s2, 7
    s_lshl_b32 s{sPi}, s{sPi}, 5
    s_lshr_b32 s{sT}, s2, 3
    s_add_u32 s{sPi}, s{sPi}, s{sT}
    s_mov_b32 s{sHB}, s{sPi}
    v_lshrrev_b32 v{vT2}, 2, v0
    v_lshlrev_b32 v{vGo}, 14, v{vT2}
    v_and_b32 v{vT2}, 3, v0
    v_lshl_add_u32 v{vGo}, v{vT2}, 4, v{vGo}
    v_mov_b32 v{vT3}, 1
    s_waitcnt lgkmcnt(0)
    s_barrier
    """)
    st.stamp(a)
    def early_dma():
        a(f"""
        v_bfe_u32 v{vT0}, v0, 4, 2
        v_and_b32 v{vT1}, 15, v0
        v_lshlrev_b32 v{vT2}, 2, v{vT0}
        v_xor_b32 v{vT2}, v{vT2}, v{vT1}
        v_lshlrev_b32 v{vT2}, 4, v{vT2}
        v_lshl_add_u32 v{vWl}, v{vT0}, 8, v{vT2}
        s_cmp_lt_u32 s{sWave}, 8
        s_cbranch_scc1 K2_L2
        s_sub_u32 s{sQ}, s{sWave}, 8
        """)
        def xt_dma(jreg):
            a(f"""
            s_lshl_b32 s3, s{jreg}, 2
            v_add_u32 v{vT2}, s3, v{vT0}
            v_xor_b32 v{vEnt}, v{vT2}, v{vT1}
            v_and_b32 v{vEnt}, 15, v{vEnt}
            v_lshlrev_b32 v{vEnt}, 4, v{vEnt}
            v_lshl_add_u32 v{vEnt}, v{vT2}, 8, v{vEnt}
            s_mul_i32 s3, s{sBeta}, {T*256}
            s_lshl_b32 s{sT}, s{jreg}, 10
            s_add_u32 s{sT}, s{sT}, {XT}
            s_mov_b32 m0, s{sT}
            s_nop 0
            buffer_load_dwordx4 v{vEnt}, s[{sX}:{sX+3}], s3 offen lds
            """)
        xt_dma(sQ)
        a(f"""
        s_cmp_ge_u32 s{sWave}, 13
        s_cbranch_scc1 K2_L3
        s_mov_b32 s{sRem}, s{sWave}
        """)
        xt_dma(sRem)
        a(f"""
        K2_L3:
        s_lshl_b32 s3, s{sQ}, 12
        s_add_u32 s{sT}, s3, {WQ}
        """)
        for i in range(4):
            a(f"""
            s_mov_b32 m0, s{sT}
            s_add_u32 s{sT}, s{sT}, 1024
            buffer_load_dwordx4 v{vWl}, s[{sWQ}:{sWQ+3}], s3 offen lds
            s_add_u32 s3, s3, 1024
            """)
        a("K2_L2:")
    if not opt.dmalate: early_dma()
    else:
        a(f"""
        v_bfe_u32 v{vT0}, v0, 4, 2
        v_and_b32 v{vT1}, 15, v0
        v_lshlrev_b32 v{vT2}, 2, v{vT0}
        v_xor_b32 v{vT2}, v{vT2}, v{vT1}
        v_lshlrev_b32 v{vT2}, 4, v{vT2}
        v_lshl_add_u32 v{vWl}, v{vT0}, 8, v{vT2}
        """)
    if opt.prefetch == 1:
        a(f"""
        s_cmp_eq_u32 s{sWave}, 14
        s_cbranch_scc0 K1_NOPF
        s_mul_i32 s3, s2, 12544
        v_lshlrev_b32 v{vT2}, 7, v{vLane}
        buffer_load_dword v{vNeg+4}, v{vT2}, s[{sX}:{sX+3}], s3 offen
        s_add_u32 s3, s3, 8192
        v_cmp_gt_u32 vcc, 34, v{vLane}
        v_mov_b32 v{vEnt}, {OOB}
        s_nop 0
        v_cndmask_b32_e64 v{vT2}, v{vEnt}, v{vT2}, vcc
        buffer_load_dword v{vNeg+4}, v{vT2}, s[{sX}:{sX+3}], s3 offen
        K1_NOPF:
        """)
    sPiK = sHB
    srd_tail(a, sWV, 32768); srd_tail(a, sOUT, XBYTES)
    for i in range(8):
        a(f"v_mov_b32 v{vTot+i}, 0")
    a("v_mov_b32 v83, 0")
    a(f"""
    v_bfe_u32 v{vT2}, v{vLane}, 2, 1
    v_mul_u32_u24 v{vT2}, 12, v{vT2}
    v_and_b32 v{vT0}, 3, v{vLane}
    v_or_b32 v{vT2}, v{vT2}, v{vT0}
    v_lshlrev_b32 v{vUA}, 8, v{vLane}
    v_lshl_or_b32 v{vUA}, v{vT2}, 4, v{vUA}
    """)
    a(f"""
    s_and_b32 s{sP}, s{sWave}, 3
    s_bfe_u32 s{sNH}, s{sWave}, 0x10002
    s_cmp_ge_u32 s{sWave}, 8
    s_cbranch_scc1 K2_NOQA
    """)
    tile_a_addr(a, vWa, vLane, vT2, vT0, sP, WQ)
    a(f"""
    v_and_b32 v{vRow}, 31, v{vLane}
    s_lshl_b32 s3, s{sNH}, 5
    v_add_u32 v{vRow}, s3, v{vRow}
    """)
    tile_b_addr(a, vBa, vRow, vLane, vT0)
    a(f"""
    v_bfe_u32 v{vT2}, v{vRow}, 2, 1
    v_mul_u32_u24 v{vT2}, 12, v{vT2}
    v_and_b32 v{vT0}, 3, v{vRow}
    v_or_b32 v{vT2}, v{vT2}, v{vT0}
    v_lshrrev_b32 v{vT0}, 5, v{vLane}
    s_lshl_b32 s3, s{sP}, 2
    v_lshl_add_u32 v{vT0}, v{vT0}, 1, s3
    v_xor_b32 v{vT2}, v{vT2}, v{vT0}
    v_lshlrev_b32 v{vT2}, 4, v{vT2}
    v_lshl_add_u32 v{vQst}, v{vRow}, 8, v{vT2}
    K2_NOQA:
    """)
    a(f"""
    s_movk_i32 s{sT}, {CH//2}
    s_cmp_eq_u32 s2, {C-1}
    s_cselect_b32 s{sT}, {(E - (C-1)*CH)//2}, s{sT}
    v_cmp_gt_u32 vcc, s{sT}, v0
    s_and_saveexec_b64 s[{sSave}:{sSave+1}], vcc
    s_cbranch_execz K1_EDGE1_DONE
    s_mov_b32 s{sT}, -{T}
    s_mov_b32 s{sCnt}, {STAGE}
    s_cmp_lt_u32 s{sWave}, 8
    s_cbranch_scc1 K1_EW0
    s_waitcnt vmcnt({1 if opt.dmalate else 7})
    s_branch K1_EW1
    K1_EW0:
    s_waitcnt vmcnt(1)
    K1_EW1:
    """)
    st.stamp(a)
    for i in range(2):
        a(f"""
        v_mul_u32_u24 v{vT0}, 21400, v{vDst+i}
        v_lshrrev_b32 v{vT0}, 20, v{vT0}
        v_lshlrev_b32 v{vAdr+i}, 2, v{vT0}
        v_add_u32 v{vT2}, {HP}, v{vAdr+i}
        ds_add_rtn_u32 v{vRank+i}, v{vT2}, v{vT3}
        v_mad_i32_i24 v{vT1}, v{vT0}, s{sT}, v{vDst+i}
        v_lshl_or_b32 v{vEnt+i}, v{vSrc+i}, 8, v{vT1}
        v_mov_b32 v{vBk+i}, v{vT0}
        v_lshl_add_u32 v{vAdr+i}, v{vAdr+i}, 4, s{sCnt}
        """)
    a(f"v_mov_b32 v{vT2}, {JUNK}")
    for i in range(2):
        a(f"""
        s_waitcnt lgkmcnt({1-i})
        v_cmp_gt_u32 s[{sM+2*i}:{sM+2*i+1}], 16, v{vRank+i}
        v_lshl_add_u32 v{vT0}, v{vRank+i}, 2, v{vAdr+i}
        s_nop 0
        v_cndmask_b32_e64 v{vT0}, v{vT2}, v{vT0}, s[{sM+2*i}:{sM+2*i+1}]
        ds_write_b32 v{vT0}, v{vEnt+i}
        """)
    a(f"""
    s_and_b64 s[{sM+4}:{sM+5}], s[{sM}:{sM+1}], s[{sM+2}:{sM+3}]
    s_andn2_b64 s[{sM+4}:{sM+5}], exec, s[{sM+4}:{sM+5}]
    s_cbranch_scc0 K1_EDGE1_DONE
    s_mov_b64 s[{sM+6}:{sM+7}], exec
    """)
    for i in range(2):
        a(f"""
        s_andn2_b64 exec, s[{sM+6}:{sM+7}], s[{sM+2*i}:{sM+2*i+1}]
        s_cbranch_execz K1_OV_{i}
        v_and_b32 v{vT0}, 7, v{vBk+i}
        v_lshrrev_b32 v{vT1}, 5, v{vBk+i}
        v_lshl_add_u32 v{vT0}, v{vT1}, 3, v{vT0}
        v_lshlrev_b32 v{vT1}, 2, v{vT0}
        v_add_u32 v{vT1}, {H2}, v{vT1}
        ds_add_rtn_u32 v{vT1}, v{vT1}, v{vT3}
        v_bfe_u32 v{vT2}, v{vBk+i}, 3, 2
        v_lshl_or_b32 v{vT2}, v{vT2}, 6, v{vEnt+i}
        v_lshlrev_b32 v{vT0}, 4, v{vT0}
        v_add_u32 v{vT0}, {ST2}, v{vT0}
        s_waitcnt lgkmcnt(0)
        v_cmp_gt_u32 vcc, 4, v{vT1}
        v_lshl_add_u32 v{vT0}, v{vT1}, 2, v{vT0}
        s_mov_b64 s[{sM+8}:{sM+9}], exec
        s_and_b64 exec, exec, vcc
        ds_write_b32 v{vT0}, v{vT2}
        s_andn2_b64 exec, s[{sM+8}:{sM+9}], vcc
        s_cbranch_execz K1_OV_{i}
        v_mov_b32 v{vT0}, {OVC}
        ds_add_rtn_u32 v{vT0}, v{vT0}, v{vT3}
        s_waitcnt lgkmcnt(0)
        v_lshlrev_b32 v{vT0}, 2, v{vT0}
        ds_write_b32 v{vT0}, v{vEnt+i} offset:{OVL}
        ds_write_b32 v{vT0}, v{vBk+i} offset:{OVB}
        K1_OV_{i}:
        """)
    a(f"""
    K1_EDGE1_DONE:
    s_mov_b64 exec, s[{sSave}:{sSave+1}]
    v_lshlrev_b32 v{vT0}, 4, v0
    s_waitcnt lgkmcnt(0)
    s_barrier
    """)
    st.stamp(a)
    a(f"""
    s_cmp_ge_u32 s{sWave}, 8
    s_cbranch_scc1 K1_NOCOPY
    ds_read_b128 {vr(vNeg,4)}, v{vT0} offset:{STAGE}
    ds_read_b128 {vr(vNeg+4,4)}, v{vT0} offset:{STAGE + 8192}
    s_lshl_b32 s3, s{sPiK}, 6
    s_add_u32 s3, s3, {WS_CELLS}
    s_add_u32 s{sT}, s3, {128*CELLROW}
    s_waitcnt vmcnt(0)
    v_readfirstlane_b32 s{sNonce}, v{vNon}
    s_nop 3
    s_and_b32 s{sTag}, s{sNonce}, {(0xffffffff << TAGSH) & 0xffffffff}
    s_add_u32 s{sTag}, s{sTag}, {1 << TAGSH}
    s_waitcnt lgkmcnt(1)
    """)
    for i in range(4): a(f"v_or_b32 v{vNeg+i}, s{sTag}, v{vNeg+i}")
    a(f"""
    buffer_store_dwordx4 {vr(vNeg,4)}, v{vGo}, s[{sWS}:{sWS+3}], s3 offen {opt.cst}
    s_waitcnt lgkmcnt(0)
    """)
    for i in range(4, 8): a(f"v_or_b32 v{vNeg+i}, s{sTag}, v{vNeg+i}")
    a(f"""
    buffer_store_dwordx4 {vr(vNeg+4,4)}, v{vGo}, s[{sWS}:{sWS+3}], s{sT} offen {opt.cst}
    s_cmp_eq_u32 s{sWave}, 6
    s_cbranch_scc0 K1_NOX
    v_lshlrev_b32 v{vT1}, 4, v{vLane}
    v_add_u32 v{vT1}, {ST2}, v{vT1}
    ds_read_b128 {vr(vDst,4)}, v{vT1}
    v_lshlrev_b32 v{vT1}, 2, v{vLane}
    v_add_u32 v{vT1}, {H2}, v{vT1}
    ds_read_b32 v{vT1}, v{vT1}
    v_lshlrev_b32 v{vT2}, 12, v{vLane}
    s_lshl_b32 s3, s{sPiK}, 4
    s_add_u32 s3, s3, {WS_EXTRA}
    v_mov_b32 v{vT3}, {1 << 22}
    s_waitcnt lgkmcnt(0)
    v_cmp_lt_u32 vcc, 4, v{vT1}
    """)
    for i in range(4): a(f"v_or_b32 v{vDst+i}, s{sTag}, v{vDst+i}")
    a(f"""
    v_cndmask_b32_e64 v{vT3}, 0, v{vT3}, vcc
    v_or_b32 v{vDst+3}, v{vT3}, v{vDst+3}
    buffer_store_dwordx4 {vr(vDst,4)}, v{vT2}, s[{sWS}:{sWS+3}], s3 offen {opt.cst}
    K1_NOX:
    s_cmp_eq_u32 s{sWave}, 7
    s_cbranch_scc0 K1_DRAIN
    v_mov_b32 v{vT3}, {OVC}
    ds_read_b32 v{vRank}, v{vT3}
    s_waitcnt lgkmcnt(0)
    v_readfirstlane_b32 s{sCnt}, v{vRank}
    s_nop 3
    s_cmp_eq_u32 s{sCnt}, 0
    s_cbranch_scc1 K1_DRAIN
    s_min_u32 s{sCnt}, s{sCnt}, {CH}
    s_lshl_b32 s{sT}, s{sPiK}, 4
    s_add_u32 s{sT}, s{sT}, {WS_OVH}
    v_mov_b32 v{vT2}, s{sT}
    v_or_b32 v{vDst}, s{sTag}, v{vRank}
    v_mov_b32 v{vDst+1}, v{vDst}
    v_mov_b32 v{vDst+2}, v{vDst}
    v_mov_b32 v{vDst+3}, v{vDst}
    s_mov_b64 exec, 1
    buffer_store_dwordx4 {vr(vDst,4)}, v{vT2}, s[{sWS}:{sWS+3}], 0 offen sc1
    s_mov_b64 exec, -1
    s_mul_i32 s3, s{sPiK}, {OVF_STRIDE}
    s_add_u32 s3, s3, {WS_OVF}
    v_mov_b32 v{vT0}, v{vLane}
    K1_OVL:
    v_cmp_gt_u32 vcc, s{sCnt}, v{vT0}
    s_and_b64 exec, exec, vcc
    s_cbranch_execz K1_OVD
    v_lshlrev_b32 v{vT1}, 2, v{vT0}
    ds_read_b32 v{vDst}, v{vT1} offset:{OVL}
    ds_read_b32 v{vDst+1}, v{vT1} offset:{OVB}
    v_lshlrev_b32 v{vT1}, 3, v{vT0}
    s_waitcnt lgkmcnt(0)
    v_or_b32 v{vDst}, s{sTag}, v{vDst}
    v_or_b32 v{vDst+1}, s{sTag}, v{vDst+1}
    buffer_store_dwordx2 {vr(vDst,2)}, v{vT1}, s[{sWS}:{sWS+3}], s3 offen sc1
    v_add_u32 v{vT0}, 64, v{vT0}
    s_branch K1_OVL
    K1_OVD:
    s_mov_b64 exec, -1
    K1_DRAIN:
    {"s_waitcnt vmcnt(0)" if opt.drain == 1 else ""}
    s_branch K1_COPIED
    K1_NOCOPY:
    s_waitcnt vmcnt(0)
    v_readfirstlane_b32 s{sNonce}, v{vNon}
    s_nop 3
    s_and_b32 s{sTag}, s{sNonce}, {(0xffffffff << TAGSH) & 0xffffffff}
    s_add_u32 s{sTag}, s{sTag}, {1 << TAGSH}
    K1_COPIED:
    s_barrier
    """)
    st.stamp(a)
    st.stamp(a)
    a(f"""
    s_cmp_ge_u32 s{sWave}, 8
    s_cbranch_scc1 K2_NOQ
    """)
    vA8, vQAcc = vXB, vAcc
    Bq = [vE, vE+4, vQ, vQ+4]
    def a_reads(ks):
        a(f"ds_read_b64_tr_b16 {vr(vA8+4*ks,2)}, v{vWa} offset:{ks*4096}")
        a(f"ds_read_b64_tr_b16 {vr(vA8+4*ks+2,2)}, v{vWa} offset:{ks*4096 + 1024}")
    def b_read(ks):
        a(f"v_xor_b32 v{vT2}, {32*ks}, v{vBa}")
        a(f"ds_read_b128 {vr(Bq[ks & 3],4)}, v{vT2} offset:{XT}")
    def mfma(ks):
        c = "0" if ks == 0 else vr(vQAcc,16)
        a(f"v_mfma_f32_32x32x16_bf16 {vr(vQAcc,16)}, {vr(vA8+4*ks,4)}, {vr(Bq[ks & 3],4)}, {c}")
    for ks in range(4):
        a_reads(ks); b_read(ks)
    for ks in range(4):
        a("s_waitcnt lgkmcnt(9)")
        mfma(ks)
        a_reads(ks+4); b_read(ks+4)
    for ks in range(4, 8):
        a(f"s_waitcnt lgkmcnt({3*(7-ks)})")
        mfma(ks)
    a(f"""
    v_cmp_gt_u32 vcc, 52, v{vRow}
    v_xor_b32 v{vT2}, 16, v{vQst}
    s_nop 7
    s_nop 2
    """)
    for i in range(8):
        a(f"v_cvt_pk_bf16_f32 v{vA8+i}, v{vQAcc+2*i}, v{vQAcc+2*i+1}")
    a(f"""
    s_mov_b64 exec, vcc
    ds_write_b128 v{vQst}, {vr(vA8,4)} offset:{QS}
    ds_write_b128 v{vT2}, {vr(vA8+4,4)} offset:{QS}
    s_mov_b64 exec, -1
    """)
    a(f"""
    s_lshl_b32 s3, s{sWave}, 12
    s_add_u32 s{sT}, s3, {WV}
    """)
    for i in range(4):
        a(f"""
        s_mov_b32 m0, s{sT}
        s_add_u32 s{sT}, s{sT}, 1024
        buffer_load_dwordx4 v{vWl}, s[{sWV}:{sWV+3}], s3 offen lds
        s_add_u32 s3, s3, 1024
        """)
    if opt.prefetch == 4:
        a(f"""
        s_lshr_b32 s3, s2, 3
        s_mul_i32 s3, s3, 100096
        s_mul_i32 s{sT}, s{sWave}, 12544
        s_add_u32 s3, s3, s{sT}
        v_lshlrev_b32 v{vT0}, 7, v{vLane}
        {"s_sleep %d" % opt.pfsleep if opt.pfsleep else ""}
        buffer_load_dword v{vQB}, v{vT0}, s[{sX}:{sX+3}], s3 offen
        """)
        if opt.pfn > 1:
            a(f"""
            s_add_u32 s3, s3, 8192
            s_mov_b32 exec_lo, -1
            s_mov_b32 exec_hi, 3
            buffer_load_dword v{vQB}, v{vT0}, s[{sX}:{sX+3}], s3 offen
            s_mov_b64 exec, -1
            """)
    a("s_branch K2_HDRD")
    vW, vXw, vSoM, vSoX, vN4M, vN4X, vRkM, vRkX, vPos, vCn = 56, 64, 68, 76, 80, 88, 92, 100, 104, 112
    def mask(i): return (sM + 2*i) if i < 7 else 0
    a(f"""
    K2_NOQ:
    """)
    st.stamp(a)
    a(f"""
    s_sub_u32 s{sRem}, s{sWave}, 8
    s_lshl_b32 s3, s{sRem}, 11
    v_lshlrev_b32 v{vT0}, 4, v{vLane}
    v_add_u32 v{vT0}, s3, v{vT0}
    s_lshl_b32 s3, s{sBeta}, 14
    s_add_u32 s3, s3, {WS_CELLS}
    s_mov_b32 s{sT}, {1 << 17}
    s_mov_b32 s{sQ}, {1 << TAGSH}
    s_mov_b32 exec_lo, 0
    s_mov_b32 exec_hi, 0x80000000
    K1_CAN:
    buffer_load_dword v{vT1}, v{vT0}, s[{sWS}:{sWS+3}], s3 offen offset:1036 sc1
    s_waitcnt vmcnt(0)
    v_xor_b32 v{vT1}, s{sTag}, v{vT1}
    v_cmp_le_u32 vcc, s{sQ}, v{vT1}
    s_cbranch_vccz K1_CAND
    s_sleep {opt.sleep}
    s_sub_u32 s{sT}, s{sT}, 1
    s_cmp_lg_u32 s{sT}, 0
    s_cbranch_scc1 K1_CAN
    K1_CAND:
    s_mov_b64 exec, -1
    {"s_sleep %d" % opt.sleep2 if opt.sleep2 else ""}
    s_mov_b32 s{sT}, {1 << 17}
    K1_TP:
    buffer_load_dwordx4 {vr(vW,4)}, v{vT0}, s[{sWS}:{sWS+3}], s3 offen sc1
    buffer_load_dwordx4 {vr(vW+4,4)}, v{vT0}, s[{sWS}:{sWS+3}], s3 offen offset:1024 sc1
    s_waitcnt vmcnt(0)
    """)
    for i in range(8): a(f"v_xor_b32 v{vW+i}, s{sTag}, v{vW+i}")
    a(f"""
    v_or3_b32 v{vT1}, v{vW}, v{vW+1}, v{vW+2}
    v_or3_b32 v{vT1}, v{vT1}, v{vW+3}, v{vW+4}
    v_or3_b32 v{vT1}, v{vT1}, v{vW+5}, v{vW+6}
    v_or_b32 v{vT1}, v{vT1}, v{vW+7}
    v_cmp_le_u32 vcc, s{sQ}, v{vT1}
    s_and_b64 exec, exec, vcc
    s_cbranch_execz K1_TPD
    s_sleep {opt.sleep}
    s_sub_u32 s{sT}, s{sT}, 1
    s_cmp_lg_u32 s{sT}, 0
    s_cbranch_scc1 K1_TP
    K1_TPD:
    s_mov_b64 exec, -1
    """)
    for i in range(4): a(f"v_mov_b32 v{vXw+i}, {EMPTY}")
    a(f"""
    s_and_b32 s3, s{sBeta}, 7
    s_lshr_b32 s{sCnt}, s{sBeta}, 5
    s_lshl_b32 s{sCnt}, s{sCnt}, 3
    s_add_u32 s3, s3, s{sCnt}
    s_lshl_b32 s3, s3, 12
    s_lshl_b32 s{sCnt}, s{sRem}, 9
    s_add_u32 s3, s3, s{sCnt}
    s_add_u32 s3, s3, {WS_EXTRA}
    v_lshlrev_b32 v{vT0}, 4, v{vLane}
    s_mov_b32 s{sT}, {1 << 17}
    s_mov_b32 exec_lo, -1
    s_mov_b32 exec_hi, 0
    K1_XP:
    buffer_load_dwordx4 {vr(vXw,4)}, v{vT0}, s[{sWS}:{sWS+3}], s3 offen sc1
    s_waitcnt vmcnt(0)
    """)
    for i in range(4): a(f"v_xor_b32 v{vXw+i}, s{sTag}, v{vXw+i}")
    a(f"""
    v_or3_b32 v{vT1}, v{vXw}, v{vXw+1}, v{vXw+2}
    v_or_b32 v{vT1}, v{vT1}, v{vXw+3}
    v_cmp_le_u32 vcc, s{sQ}, v{vT1}
    s_and_b64 exec, exec, vcc
    s_cbranch_execz K1_XPD
    s_sleep {opt.sleep}
    s_sub_u32 s{sT}, s{sT}, 1
    s_cmp_lg_u32 s{sT}, 0
    s_cbranch_scc1 K1_XP
    K1_XPD:
    s_mov_b64 exec, -1
    v_and_b32 v{vT1}, {1 << 22}, v{vXw+3}
    v_cmp_ne_u32 vcc, 0, v{vT1}
    s_cbranch_vccz K1_NOXP
    s_mov_b64 exec, vcc
    s_lshl_b32 s3, s{sRem}, 9
    s_add_u32 s3, s3, {WS_OVH}
    s_mov_b32 s{sT}, {1 << 17}
    K1_HP:
    buffer_load_dwordx4 {vr(vPos,4)}, v{vT0}, s[{sWS}:{sWS+3}], s3 offen sc1
    s_waitcnt vmcnt(0)
    v_xor_b32 v{vT2}, s{sTag}, v{vPos}
    v_xor_b32 v{vPos+1}, v{vPos}, v{vPos+1}
    v_xor_b32 v{vPos+2}, v{vPos}, v{vPos+2}
    v_xor_b32 v{vPos+3}, v{vPos}, v{vPos+3}
    v_or3_b32 v{vPos+1}, v{vPos+1}, v{vPos+2}, v{vPos+3}
    v_cmp_ne_u32 s[{sM}:{sM+1}], 0, v{vPos+1}
    v_cmp_le_u32 vcc, s{sQ}, v{vT2}
    s_or_b64 vcc, vcc, s[{sM}:{sM+1}]
    s_cbranch_vccz K1_HPD
    s_sleep 2
    s_sub_u32 s{sT}, s{sT}, 1
    s_cmp_lg_u32 s{sT}, 0
    s_cbranch_scc1 K1_HP
    K1_HPD:
    v_min_u32 v{vT2}, {CH}, v{vT2}
    s_lshl_b32 s3, s{sRem}, 7
    s_add_u32 s3, s3, {MF}
    v_lshlrev_b32 v{vT1}, 2, v{vLane}
    v_add_u32 v{vT1}, s3, v{vT1}
    ds_write_b32 v{vT1}, v{vT2}
    v_mov_b32 v{vT1}, {MAXC}
    ds_max_u32 v{vT1}, v{vT2}
    s_mov_b64 exec, -1
    K1_NOXP:
    v_mov_b32 v{vT3}, 1
    """)
    st.stamp(a)
    a("K2_DECODE:")
    for i in range(8):
        m = mask(i)
        a(f"""
        v_lshlrev_b32 v{vN4M+i}, 2, v{vW+i}
        v_and_b32 v{vN4M+i}, 0xfc, v{vN4M+i}
        v_cmp_gt_u32 s[{m}:{m+1}], s{s196}, v{vN4M+i}
        v_and_b32 v{vSoM+i}, 0x003fff00, v{vW+i}
        """)
        if i >= 1:
            mp = mask(i-1)
            a(f"""
            s_mov_b64 exec, s[{mp}:{mp+1}]
            ds_add_rtn_u32 v{vRkM+i-1}, v{vN4M+i-1}, v{vT3} offset:{HIST}
            s_mov_b64 exec, -1
            """)
    a(f"""
    s_mov_b64 exec, s[{mask(7)}:{mask(7)+1}]
    ds_add_rtn_u32 v{vRkM+7}, v{vN4M+7}, v{vT3} offset:{HIST}
    s_mov_b64 exec, -1
    s_mov_b64 s[{sM+14}:{sM+15}], 0
    s_cmp_eq_u32 s{sR}, 0
    s_cbranch_scc0 K2_HDRD
    v_and_b32 v{vT0}, v{vXw}, v{vXw+1}
    v_and_b32 v{vT1}, v{vXw+2}, v{vXw+3}
    v_and_b32 v{vT0}, v{vT0}, v{vT1}
    v_and_b32 v{vT0}, 63, v{vT0}
    v_cmp_ne_u32 vcc, 63, v{vT0}
    s_cbranch_vccz K2_HDRD
    s_bfe_u32 s{sT}, s{sBeta}, 0x20003
    """)
    for i in range(4):
        w, m = vXw + i, sM2 + 2*i
        a(f"""
        v_bfe_u32 v{vT0}, v{w}, 6, 2
        v_cmp_eq_u32 vcc, s{sT}, v{vT0}
        v_mov_b32 v{vT1}, {EMPTY}
        v_and_b32 v{vT2}, 0x003fff3f, v{w}
        s_nop 0
        v_cndmask_b32_e64 v{w}, v{vT1}, v{vT2}, vcc
        v_lshlrev_b32 v{vN4X+i}, 2, v{w}
        v_and_b32 v{vN4X+i}, 0xfc, v{vN4X+i}
        v_cmp_gt_u32 s[{m}:{m+1}], s{s196}, v{vN4X+i}
        v_and_b32 v{vSoX+i}, 0x003fff00, v{w}
        """)
    a(f"""
    s_or_b64 s[{sM+14}:{sM+15}], s[{sM2}:{sM2+1}], s[{sM2+2}:{sM2+3}]
    s_or_b64 s[{sM+14}:{sM+15}], s[{sM+14}:{sM+15}], s[{sM2+4}:{sM2+5}]
    s_or_b64 s[{sM+14}:{sM+15}], s[{sM+14}:{sM+15}], s[{sM2+6}:{sM2+7}]
    s_cbranch_scc0 K2_HDRD
    """)
    for i in range(4):
        m = sM2 + 2*i
        a(f"""
        s_mov_b64 exec, s[{m}:{m+1}]
        ds_add_rtn_u32 v{vRkX+i}, v{vN4X+i}, v{vT3} offset:{HIST}
        """)
    a(f"""
    s_mov_b64 exec, -1
    K2_HDRD:
    s_waitcnt lgkmcnt(0)
    s_barrier
    """)
    st.stamp(a)
    if opt.prefetch == 5:
        a(f"""
        s_cmp_ge_u32 s{sWave}, 8
        s_cbranch_scc1 K2_NOPF5
        s_waitcnt vmcnt(0)
        s_sub_u32 s3, s{sWave}, {8 - opt.pfn}
        s_cmp_ge_u32 s3, {opt.pfn}
        s_cbranch_scc1 K2_NOPF5
        s_lshl_b32 s{sT}, s3, {opt.pfsh + 6}
        s_lshr_b32 s3, s2, 3
        s_mul_i32 s3, s3, 100096
        s_add_u32 s3, s3, s{sT}
        v_lshlrev_b32 v{vT0}, {opt.pfsh}, v{vLane}
        buffer_load_dword v{vQB}, v{vT0}, s[{sX}:{sX+3}], s3 offen
        K2_NOPF5:
        """)
    a(f"""
    v_lshlrev_b32 v{vT2}, 2, v{vLane}
    ds_read_b32 v{vCn}, v{vT2} offset:{HIST}
    s_lshl_b32 s{sT}, s{sWave}, 2
    s_waitcnt lgkmcnt(0)
    v_add_u32 v{vPc}, 3, v{vCn}
    v_and_b32 v{vPc}, -4, v{vPc}
    v_mov_b32 v{vStart}, v{vPc}
    v_cmp_lt_u32 vcc, s{sT}, v{vPc}
    s_nop 0
    """)
    steps = ["row_shr:1 row_mask:0xf bank_mask:0xf bound_ctrl:1", "row_shr:2 row_mask:0xf bank_mask:0xf bound_ctrl:1",
             "row_shr:4 row_mask:0xf bank_mask:0xf bound_ctrl:1", "row_shr:8 row_mask:0xf bank_mask:0xf bound_ctrl:1",
             "row_bcast:15 row_mask:0xa bank_mask:0xf", "row_bcast:31 row_mask:0xc bank_mask:0xf"]
    for i, stp in enumerate(steps):
        a(f"v_add_u32_dpp v{vStart}, v{vStart}, v{vStart} {stp}")
        a("s_nop 1" if i < 5 else "s_nop 0")
    a(f"""
    v_readlane_b32 s{sCnt}, v{vStart}, 63
    v_sub_u32 v{vStart}, v{vStart}, v{vPc}
    s_cmp_lt_u32 s{sWave}, 8
    s_cbranch_scc1 K2_NOBP
    """)
    for i in range(8):
        a(f"ds_bpermute_b32 v{vPos+i}, v{vN4M+i}, v{vStart}")
    a(f"""
    K2_NOBP:
    v_add_u32 v{vT0}, s{sT}, v{vStart}
    s_mov_b64 exec, vcc
    ds_write_b32 v{vT0}, v{vUA} offset:{UNODE}
    s_mov_b64 exec, -1
    v_cmp_lt_u32 vcc, 64, v{vPc}
    s_cbranch_vccz K2_UND
    K2_UN:
    s_add_u32 s{sT}, s{sT}, 64
    v_cmp_lt_u32 vcc, s{sT}, v{vPc}
    s_cbranch_vccz K2_UND
    v_add_u32 v{vT0}, s{sT}, v{vStart}
    s_mov_b64 exec, vcc
    ds_write_b32 v{vT0}, v{vUA} offset:{UNODE}
    s_mov_b64 exec, -1
    s_branch K2_UN
    K2_UND:
    s_cmp_gt_u32 s{sWave}, 4
    s_cbranch_scc1 K2_NOPAD
    v_mov_b32 v{vT2}, {OOB}
    s_cmp_gt_u32 s{sWave}, 2
    s_cbranch_scc1 K2_TAILPAD
    v_sub_u32 v{vT1}, v{vPc}, v{vCn}
    v_add_u32 v{vT0}, v{vStart}, v{vCn}
    v_cmp_lt_u32 vcc, s{sWave}, v{vT1}
    v_add_u32 v{vT0}, s{sWave}, v{vT0}
    v_lshlrev_b32 v{vT0}, 2, v{vT0}
    s_mov_b64 exec, vcc
    ds_write_b32 v{vT0}, v{vT2} offset:{LIST}
    s_mov_b64 exec, -1
    s_branch K2_NOPAD
    K2_TAILPAD:
    v_lshlrev_b32 v{vT1}, 2, v{vLane}
    s_cmp_eq_u32 s{sWave}, 3
    s_cbranch_scc0 K2_TAILU
    s_lshl_b32 s{sT}, s{sCnt}, 2
    v_add_u32 v{vT0}, s{sT}, v{vT1}
    s_mov_b64 exec, 0xfffffff
    ds_write_b32 v{vT0}, v{vT2} offset:{LIST}
    s_mov_b64 exec, -1
    s_branch K2_NOPAD
    K2_TAILU:
    v_add_u32 v{vT0}, s{sCnt}, v{vT1}
    v_mov_b32 v{vT2}, {DUMMY*256 + 16*((DUMMY & 3) | (12*((DUMMY >> 2) & 1)))}
    s_mov_b64 exec, 0x7f
    ds_write_b32 v{vT0}, v{vT2} offset:{UNODE}
    s_mov_b64 exec, -1
    K2_NOPAD:
    s_add_u32 s3, s{sCnt}, 31
    s_lshr_b32 s3, s3, 5
    s_lshr_b32 s{sQ}, s3, 4
    s_and_b32 s{sRem}, s3, 15
    s_cmp_lt_u32 s{sWave}, s{sRem}
    s_cselect_b32 s{sNH}, 1, 0
    s_add_u32 s{sHB}, s{sQ}, s{sNH}
    s_min_u32 s3, s{sRem}, s{sWave}
    s_mul_i32 s{sT}, s{sQ}, s{sWave}
    s_add_u32 s{sT}, s{sT}, s3
    v_lshrrev_b32 v{vT0}, 4, v{vLane}
    s_lshl_b32 s3, s{sHB}, 1
    v_mul_u32_u24 v{vT0}, s3, v{vT0}
    s_lshl_b32 s3, s{sT}, 3
    v_add_u32 v{vT0}, s3, v{vT0}
    v_lshlrev_b32 v{vLA}, 4, v{vT0}
    v_lshlrev_b32 v{vUA}, 2, v{vT0}
    s_cmp_lt_u32 s{sWave}, 8
    s_cbranch_scc1 K2_SC_Q
    s_waitcnt lgkmcnt(0)
    """)
    for i in range(8):
        a(f"v_add_lshl_u32 v{vPos+i}, v{vPos+i}, v{vRkM+i}, 2")
    for i in range(8):
        m = mask(i)
        a(f"s_mov_b64 exec, s[{m}:{m+1}]")
        a(f"ds_write_b32 v{vPos+i}, v{vSoM+i} offset:{LIST}")
    a(f"""
    s_mov_b64 exec, -1
    s_cmp_eq_u64 s[{sM+14}:{sM+15}], 0
    s_cbranch_scc1 K2_SORT_DONE
    """)
    for i in range(4):
        a(f"ds_bpermute_b32 v{vPos+i}, v{vN4X+i}, v{vStart}")
    a("s_waitcnt lgkmcnt(0)")
    for i in range(4):
        a(f"""
        v_add_lshl_u32 v{vPos+i}, v{vPos+i}, v{vRkX+i}, 2
        s_mov_b64 exec, s[{sM2+2*i}:{sM2+2*i+1}]
        ds_write_b32 v{vPos+i}, v{vSoX+i} offset:{LIST}
        s_mov_b64 exec, -1
        """)
    a(f"""
    s_branch K2_SORT_DONE
    K2_SC_Q:
    {'s_waitcnt vmcnt(%d)' % (opt.pfn if opt.prefetch == 4 else 0) if opt.prefetch != 5 else ''}
    K2_SORT_DONE:
    """)
    st.stamp(a)
    a(f"""
    s_waitcnt lgkmcnt(0)
    s_barrier
    """)
    st.stamp(a)
    if "cyc" in opt.exp: st.stamp(a, True)
    if opt.prio in (1, 3): a("s_setprio 3")
    if opt.prio == 2:
        a(f"""
        s_cmp_ge_u32 s{sWave}, 4
        s_cbranch_scc0 K2_SP
        s_setprio 1
        s_cmp_ge_u32 s{sWave}, 8
        s_cbranch_scc0 K2_SP
        s_setprio 2
        s_cmp_ge_u32 s{sWave}, 12
        s_cbranch_scc0 K2_SP
        s_setprio 3
        K2_SP:
        """)
    a(f"""
    s_cmp_eq_u32 s{sHB}, 0
    s_cbranch_scc1 K2_NOMAIN
    ds_read_b128 {vr(vE,4)}, v{vLA} offset:{LIST}
    ds_read_b128 {vr(vE+4,4)}, v{vLA} offset:{LIST+16}
    ds_read_b64 {vr(vQC,2)}, v{vUA} offset:{UNODE}
    """)
    for i in range(8):
        a(f"v_mov_b32 v{vAcc+i}, 0")
    a("s_waitcnt lgkmcnt(1)")
    for u in range(8):
        a(f"v_add_u32 v{vE+u}, v{vE+u}, v{vC16}")
        a(f"buffer_load_dwordx4 {vr(vXA+4*u,4)}, v{vE+u}, s[{sX}:{sX+3}], 0 offen")
        if u == 0:
            a(f"""
            s_waitcnt lgkmcnt(0)
            v_xor_b32 v{vT0}, v{vQC}, v{vC16}
            v_xor_b32 v{vT1}, v{vQC+1}, v{vC16}
            ds_read_b128 {vr(vQ,4)}, v{vT0} offset:{QS}
            ds_read_b128 {vr(vQ+4,4)}, v{vT1} offset:{QS}
            v_mov_b32 v{vPrev}, v{vQC}
            """)
    if "bstamp" in opt.exp: st.stamp(a)
    wv_id = [0]
    def wv_dma():
        i = wv_id[0]; wv_id[0] += 1
        a(f"""
        s_cmp_eq_u32 s{sR}, 0
        s_cbranch_scc0 K2_NOWV{i}
        s_lshl_b32 s3, s{sWave}, 11
        s_add_u32 s{sT}, s3, {WV}
        s_mov_b32 m0, s{sT}
        s_add_u32 s{sT}, s{sT}, 1024
        buffer_load_dwordx4 v{vWl}, s[{sWV}:{sWV+3}], s3 offen lds
        s_mov_b32 m0, s{sT}
        s_add_u32 s3, s3, 1024
        buffer_load_dwordx4 v{vWl}, s[{sWV}:{sWV+3}], s3 offen lds
        K2_NOWV{i}:
        """)
    flush_id = [0]
    def flush(prev, masked):
        fid = flush_id[0]; flush_id[0] += 1
        t = ""
        if masked is not None:
            t += f"""
            v_cmp_ne_u32 vcc, v{masked}, v{prev}
            s_cbranch_vccz K2_FL{fid}
            s_mov_b64 exec, vcc
            """
        t += f"""
        v_and_b32 v{vT0}, 0xffffff00, v{prev}
        v_lshl_add_u32 v{vT0}, v{vT0}, 1, v{vPB}
        ds_write_b128 v{vT0}, {vr(vAcc,4)}
        ds_write_b128 v{vT0}, {vr(vAcc+4,4)} offset:256
        """
        if masked is not None:
            for i in range(8):
                t += f"v_mov_b32 v{vAcc+i}, 0\n"
            t += f"""
            s_mov_b64 exec, -1
            K2_FL{fid}:
            """
        return t
    def dots(X, waits):
        for half in range(2):
            a(waits[half])
            if "nodots" in opt.exp: continue
            for r in range(4):
                for u in range(4*half, 4*half+4):
                    if r == 0:
                        a(f"v_dot2_f32_bf16 v{vP+u}, v{X+4*u}, v{vQ+4*half}, 0")
                    else:
                        a(f"v_dot2c_f32_bf16 v{vP+u}, v{X+4*u+r}, v{vQ+4*half+r}")
    def chain(al):
        c = []
        for j in range(4):
            c.append(f"v_add_f32_dpp v{vP+j}, v{vP+j}, v{vP+j} row_mirror row_mask:0xf bank_mask:0x3")
        for j in range(4):
            c.append(f"v_add_f32_dpp v{vP+j}, v{vP+j+4}, v{vP+j+4} row_mirror row_mask:0xf bank_mask:0xc")
        for j in range(2):
            c.append(f"v_add_f32_dpp v{vP+j}, v{vP+j}, v{vP+j} row_half_mirror row_mask:0xf bank_mask:0x5")
        for j in range(2):
            c.append(f"v_add_f32_dpp v{vP+j}, v{vP+j+2}, v{vP+j+2} row_half_mirror row_mask:0xf bank_mask:0xa")
        c.append(f"v_add_f32_dpp v{vP+2}, v{vP}, v{vP} quad_perm:[1,0,3,2] row_mask:0xf bank_mask:0xf")
        c.append(f"v_add_f32_dpp v{vP+3}, v{vP+1}, v{vP+1} quad_perm:[1,0,3,2] row_mask:0xf bank_mask:0xf")
        c.append(f"v_cndmask_b32_e64 v{vP}, v{vP+2}, v{vP+3}, s[{sOdd}:{sOdd+1}]")
        c.append(f"v_add_f32_dpp v{vP}, v{vP}, v{vP} quad_perm:[2,3,0,1] row_mask:0xf bank_mask:0xf")
        if opt.mimic:
            c += [f"v_cvt_pk_bf16_f32 v{vP}, v{vP}, v{vP}", f"v_and_b32 v{vP}, 0xffff0000, v{vP}",
                  f"v_mul_f32 v{vP}, 0x3db504f3, v{vP}", f"v_cvt_pk_bf16_f32 v{vP}, v{vP}, v{vP}",
                  f"v_and_b32 v{vP}, 0xffff0000, v{vP}", f"v_mul_f32 v{vP}, 0xbfb8aa3b, v{vP}"]
        else:
            c.append(f"v_mul_f32 v{vP}, 0xbe0293ee, v{vP}")
        c += [f"v_exp_f32 v{vP}, v{vP}", f"v_add_f32 v{vP}, 1.0, v{vP}", f"v_rcp_f32 v{vP}, v{vP}",
              f"v_cvt_pk_bf16_f32 v{al}, v{vP}, 0", f"v_cvt_pk_bf16_f32 v{al+1}, 0, v{vP}"]
        return c
    def chain_alone(al):
        c = chain(al)
        gaps = {9: 1, 11: 1, 14: 2, 17 + (5 if opt.mimic else 0): 1, 19 + (5 if opt.mimic else 0): 1}
        for i, ins in enumerate(c):
            a(ins)
            if i in gaps: a(f"s_nop {gaps[i]-1}")
    def agg_stream(X, al, loads, Xdst, qp=None):
        out = []
        qp = vQP if qp is None else qp
        for half in range(2):
            if half == 0:
                out.append(('x', flush(vPrev, qp)))
            else:
                out.append(('x', "s_nop 1\n" + flush(qp, qp+1)))
            for u in range(4*half, 4*half+4):
                k = 4*(u >> 1) + (u & 1)
                for r in range(4):
                    if "noagg" in opt.exp:
                        out.append(('v', "s_nop 0")); out.append(('v', "s_nop 0")); continue
                    out.append(('v', f"v_dot2c_f32_bf16_dpp v{vAcc+2*r}, v{al}, v{X+4*u+r} row_newbcast:{k} row_mask:0xf bank_mask:0xf"))
                    out.append(('v', f"v_dot2c_f32_bf16_dpp v{vAcc+2*r+1}, v{al+1}, v{X+4*u+r} row_newbcast:{k} row_mask:0xf bank_mask:0xf"))
                if loads and "noload" not in opt.exp:
                    out.append(('x', f"buffer_load_dwordx4 {vr(Xdst+4*u,4)}, v{vE+u}, s[{sX}:{sX+3}], 0 offen"))
        return out
    def next_prep():
        a("s_waitcnt lgkmcnt(0)")
        a(f"v_xor_b32 v{vT0}, v{vQN}, v{vC16}")
        a(f"v_xor_b32 v{vT1}, v{vQN+1}, v{vC16}")
    def rotate(nxt):
        a(f"v_mov_b32 v{vQP}, v{vQC}")
        a(f"v_mov_b32 v{vQP+1}, v{vQC+1}")
        if nxt:
            a(f"v_mov_b32 v{vQC}, v{vQN}")
            a(f"v_mov_b32 v{vQC+1}, v{vQN+1}")
            a(f"v_add_u32 v{vLA}, 32, v{vLA}")
            a(f"v_add_u32 v{vUA}, 8, v{vUA}")
    def mid(cur, prev, al_cur, al_prev, nxt):
        a("s_waitcnt lgkmcnt(0)")
        if nxt:
            a(f"""
            ds_read_b128 {vr(vE,4)}, v{vLA} offset:{LIST+32}
            ds_read_b128 {vr(vE+4,4)}, v{vLA} offset:{LIST+48}
            ds_read_b64 {vr(vQN,2)}, v{vUA} offset:{UNODE+8}
            """)
        dots(cur, ("s_waitcnt vmcnt(4)", "s_waitcnt vmcnt(0)"))
        if nxt:
            next_prep()
            for u in range(8):
                a(f"v_add_u32 v{vE+u}, v{vE+u}, v{vC16}")
            a(f"ds_read_b128 {vr(vQ,4)}, v{vT0}")
            a(f"ds_read_b128 {vr(vQ+4,4)}, v{vT1}")
        else:
            a("s_nop 2")
        c = chain(al_cur)
        s_ = agg_stream(prev, al_prev, nxt, prev)
        nv = sum(1 for k, _ in s_ if k == 'v')
        ci, vi = 0, 0
        for k, t in s_:
            a(t)
            if k == 'v':
                vi += 1
                if ci < len(c) and vi >= (ci + 1) * nv // (len(c) + 1) and vi % 1 == 0:
                    a(c[ci]); ci += 1
        assert ci == len(c)
        a(f"v_mov_b32 v{vPrev}, v{vQP+1}")
        rotate(nxt)
    def final(X, al):
        for k, t in agg_stream(X, al, False, None):
            a(t)
        a("s_nop 2")
        a(flush(vQP+1, None))
        a("s_branch K2_MAIN_DONE")
    def roll_body(nxt):
        al = vAl[0]
        a("s_waitcnt lgkmcnt(0)")
        if nxt:
            a(f"""
            ds_read_b128 {vr(vE,4)}, v{vLA} offset:{LIST+32}
            ds_read_b128 {vr(vE+4,4)}, v{vLA} offset:{LIST+48}
            ds_read_b64 {vr(vQN,2)}, v{vUA} offset:{UNODE+8}
            """)
        dots(vXA, ("s_waitcnt vmcnt(4)", "s_waitcnt vmcnt(0)"))
        fill = []
        if nxt:
            next_prep()
            a(f"v_add_u32 v{vE}, v{vE}, v{vC16}")
            fill = [f"v_add_u32 v{vE+u}, v{vE+u}, v{vC16}" for u in range(1, 8)]
        else:
            a("s_nop 2")
        c = chain(al)
        gaps = {11: 1, 14: 2, 17 + (5 if opt.mimic else 0): 1, 19 + (5 if opt.mimic else 0): 1}
        for i, ins in enumerate(c):
            a(ins)
            if i == 3 and nxt:
                a(f"ds_read_b128 {vr(vQ,4)}, v{vT0} offset:{QS}")
                a(f"ds_read_b128 {vr(vQ+4,4)}, v{vT1} offset:{QS}")
            for _ in range(gaps.get(i, 0)):
                a(fill.pop(0) if fill else "s_nop 0")
        while fill: a(fill.pop(0))
        a("s_nop 0")
        for k, t in agg_stream(vXA, al, nxt, vXA, vQC):
            a(t)
        a(f"v_mov_b32 v{vPrev}, v{vQC+1}")
        if nxt:
            a(f"v_mov_b32 v{vQC}, v{vQN}")
            a(f"v_mov_b32 v{vQC+1}, v{vQN+1}")
            a(f"v_add_u32 v{vLA}, 32, v{vLA}")
            a(f"v_add_u32 v{vUA}, 8, v{vUA}")
    if opt.style == "roll":
        a(f"""
        s_cmp_eq_u32 s{sHB}, 1
        s_cbranch_scc1 K2_LAST
        K2_LOOP:
        """)
        if opt.prio == 1:
            a(f"""
            s_cmp_ge_u32 s{sHB}, 4
            s_cbranch_scc1 K2_PR0
            s_setprio 2
            s_cmp_eq_u32 s{sHB}, 3
            s_cbranch_scc1 K2_PR0
            s_setprio 1
            K2_PR0:
            """)
        if opt.prio == 3:
            a(f"""
            s_cmp_ge_u32 s{sHB}, 3
            s_cbranch_scc1 K2_PR0
            s_setprio 2
            K2_PR0:
            """)
        roll_body(True)
        a(f"""
        s_sub_u32 s{sHB}, s{sHB}, 1
        s_cmp_gt_u32 s{sHB}, 1
        s_cbranch_scc1 K2_LOOP
        K2_LAST:
        """)
        if opt.prio == 1: a("s_setprio 0")
        if opt.prio == 3: a("s_setprio 1")
        roll_body(False)
        a("s_nop 2")
        a(flush(vPrev, None))
    else:
        def body2(cur, oth, qc, qn, first, has1, has2):
            al = vAl[0]
            a("s_waitcnt lgkmcnt(0)")
            if has1:
                a(f"ds_read_b64 {vr(qn,2)}, v{vUA} offset:{UNODE+8}")
                if first:
                    a(f"ds_read_b128 {vr(vE,4)}, v{vLA} offset:{LIST+32}")
                    a(f"ds_read_b128 {vr(vE+4,4)}, v{vLA} offset:{LIST+48}")
            if has2 and not first:
                a(f"ds_read_b128 {vr(vE,4)}, v{vLA} offset:{LIST+64}")
                a(f"ds_read_b128 {vr(vE+4,4)}, v{vLA} offset:{LIST+80}")
            if first or not has1: waits = ("s_waitcnt vmcnt(4)", "s_waitcnt vmcnt(0)")
            else: waits = ("s_waitcnt vmcnt(12)", "s_waitcnt vmcnt(8)")
            dots(cur, waits)
            fill = []
            if has1:
                a("s_waitcnt lgkmcnt(0)")
                a(f"v_xor_b32 v{vT0}, v{qn}, v{vC16}")
                a(f"v_xor_b32 v{vT1}, v{qn+1}, v{vC16}")
                if first:
                    for u in range(8):
                        a(f"v_add_u32 v{vE+u}, v{vE+u}, v{vC16}")
                        a(f"buffer_load_dwordx4 {vr(oth+4*u,4)}, v{vE+u}, s[{sX}:{sX+3}], 0 offen")
                    if has2:
                        a(f"ds_read_b128 {vr(vE,4)}, v{vLA} offset:{LIST+64}")
                        a(f"ds_read_b128 {vr(vE+4,4)}, v{vLA} offset:{LIST+80}")
                elif has2:
                    a(f"v_add_u32 v{vE}, v{vE}, v{vC16}")
                    fill = [f"v_add_u32 v{vE+u}, v{vE+u}, v{vC16}" for u in range(1, 8)]
                else:
                    a("s_nop 0")
            else:
                a("s_nop 2")
            c = chain(al)
            gaps = {11: 1, 14: 2, 17 + (5 if opt.mimic else 0): 1, 19 + (5 if opt.mimic else 0): 1}
            for i, ins in enumerate(c):
                a(ins)
                if i == 3 and has1:
                    a(f"ds_read_b128 {vr(vQ,4)}, v{vT0} offset:{QS}")
                    a(f"ds_read_b128 {vr(vQ+4,4)}, v{vT1} offset:{QS}")
                for _ in range(gaps.get(i, 0)):
                    a(fill.pop(0) if fill else "s_nop 0")
            while fill: a(fill.pop(0))
            if first and has2:
                a("s_waitcnt lgkmcnt(2)")
                for u in range(8):
                    a(f"v_add_u32 v{vE+u}, v{vE+u}, v{vC16}")
            else:
                a("s_nop 0")
            for k, t in agg_stream(cur, al, has2, cur, qc):
                a(t)
            a(f"v_mov_b32 v{vPrev}, v{qc+1}")
            if has1:
                a(f"v_add_u32 v{vLA}, 32, v{vLA}")
                a(f"v_add_u32 v{vUA}, 8, v{vUA}")
        def last2(cur, oth, qc, qn):
            if opt.prio: a("s_setprio 0")
            body2(cur, oth, qc, qn, False, False, False)
            a("s_nop 2")
            a(flush(vPrev, None))
            a("s_branch K2_MAIN_DONE")
        qA, qB = vQC, vQN
        a(f"""
        s_cmp_eq_u32 s{sHB}, 1
        s_cbranch_scc1 K2_LA
        s_cmp_eq_u32 s{sHB}, 2
        s_cbranch_scc1 K2_F2
        """)
        body2(vXA, vXB, qA, qB, True, True, True)
        a(f"""
        s_sub_u32 s{sHB}, s{sHB}, 1
        K2_LOOP:
        s_cmp_eq_u32 s{sHB}, 2
        s_cbranch_scc1 K2_PB
        """)
        if opt.prio: a("s_setprio 2")
        body2(vXB, vXA, qB, qA, False, True, True)
        a(f"""
        s_sub_u32 s{sHB}, s{sHB}, 1
        s_cmp_eq_u32 s{sHB}, 2
        s_cbranch_scc1 K2_PA
        """)
        body2(vXA, vXB, qA, qB, False, True, True)
        a(f"""
        s_sub_u32 s{sHB}, s{sHB}, 1
        s_branch K2_LOOP
        K2_PB:
        """)
        if opt.prio: a("s_setprio 1")
        body2(vXB, vXA, qB, qA, False, True, False)
        a("K2_LA:")
        last2(vXA, vXB, qA, qB)
        a("K2_PA:")
        if opt.prio: a("s_setprio 1")
        body2(vXA, vXB, qA, qB, False, True, False)
        a("K2_LB:")
        last2(vXB, vXA, qB, qA)
        a("K2_F2:")
        body2(vXA, vXB, qA, qB, True, True, False)
        a("s_branch K2_LB")
    a("s_branch K2_MAIN_DONE")
    a("K2_NOMAIN:")
    a("K2_MAIN_DONE:")
    if opt.prio: a("s_setprio 0")
    if "cyc" in opt.exp: st.stamp(a, True)
    st.stamp(a)
    a(f"""
    s_cmp_eq_u32 s{sR}, 0
    s_cbranch_scc0 K2_NRDONE
    v_mov_b32 v{vT3}, {MAXC}
    ds_read_b32 v{vT3}, v{vT3}
    s_waitcnt lgkmcnt(0)
    v_readfirstlane_b32 s3, v{vT3}
    s_nop 3
    s_min_u32 s3, s3, {CH}
    s_add_u32 s3, s3, 7
    s_lshr_b32 s3, s3, 3
    s_add_u32 s{sNR}, s3, 1
    K2_NRDONE:
    """)
    vSf, vSl = vE, vE+1
    a(f"""
    s_cmp_eq_u32 s{sWave}, 0
    s_cbranch_scc0 K2_NOTBL
    s_add_u32 s3, s{sQ}, 1
    s_lshl_b32 s3, s3, 1
    v_cvt_f32_u32 v{vT0}, s3
    s_mul_i32 s3, s3, s{sRem}
    s_lshl_b32 s{sP}, s3, 2
    s_lshl_b32 s3, s{sQ}, 1
    v_cvt_f32_u32 v{vT1}, s3
    v_rcp_f32 v{vT0}, v{vT0}
    v_rcp_f32 v{vT1}, v{vT1}
    s_lshl_b32 s3, s{sRem}, 2
    """)
    for (dst, last) in ((vSf, False), (vSl, True)):
        if not last:
            a(f"v_lshrrev_b32 v{vT2}, 2, v{vStart}")
        else:
            a(f"""
            v_add_u32 v{vT2}, v{vStart}, v{vPc}
            v_lshrrev_b32 v{vT2}, 2, v{vT2}
            v_add_u32 v{vT2}, -1, v{vT2}
            """)
        a(f"""
        v_cmp_gt_u32 vcc, s{sP}, v{vT2}
        v_cvt_f32_u32 v{vT3}, v{vT2}
        v_add_f32 v{vT3}, 0.5, v{vT3}
        v_mul_f32 v{vT3}, v{vT3}, v{vT0}
        v_cvt_u32_f32 v{vT3}, v{vT3}
        v_subrev_u32 v{vT2}, s{sP}, v{vT2}
        v_cvt_f32_u32 v{vT2}, v{vT2}
        v_add_f32 v{vT2}, 0.5, v{vT2}
        v_mul_f32 v{vT2}, v{vT2}, v{vT1}
        v_cvt_u32_f32 v{vT2}, v{vT2}
        v_add_u32 v{vT2}, s3, v{vT2}
        v_cndmask_b32_e64 v{dst}, v{vT2}, v{vT3}, vcc
        """)
    a(f"""
    v_sub_u32 v{vT0}, v{vSl}, v{vSf}
    v_add_u32 v{vT0}, 1, v{vT0}
    v_cmp_lt_u32 vcc, 0, v{vPc}
    v_add_u32 v{vT1}, v{vSf}, v{vLane}
    v_lshlrev_b32 v{vT1}, 9, v{vT1}
    v_cndmask_b32_e64 v{vT0}, 0, v{vT0}, vcc
    v_add_u32 v{vT1}, {PIECE}, v{vT1}
    v_lshlrev_b32 v{vT3}, 2, v{vLane}
    v_mov_b32 v{vT2}, {ZROW}
    ds_write_b32 v{vT3}, v{vT0} offset:{NPC}
    """)
    for j in range(4):
        a(f"""
        v_cmp_lt_u32 vcc, {j}, v{vT0}
        v_add_u32 v{vT3}, {512*j}, v{vT1}
        s_nop 0
        v_cndmask_b32_e64 v{vE+4+j}, v{vT2}, v{vT3}, vcc
        """)
    a(f"""
    v_lshlrev_b32 v{vT0}, 4, v{vLane}
    ds_write_b128 v{vT0}, {vr(vE+4,4)} offset:{TBL}
    K2_NOTBL:
    """)
    vA8 = vXB
    a(f"""
    s_cmp_ge_u32 s{sWave}, 8
    s_cbranch_scc1 K2_NOAA
    s_and_b32 s{sP}, s{sWave}, 3
    s_lshr_b32 s{sNH}, s{sWave}, 2
    """)
    tile_a_addr(a, vWa, vLane, vT2, vT3, sP, WV)
    for ks in range(8):
        if ks == 6: a("s_waitcnt lgkmcnt(4)")
        a(f"ds_read_b64_tr_b16 {vr(vA8+4*ks,2)}, v{vWa} offset:{ks*4096}")
        a(f"ds_read_b64_tr_b16 {vr(vA8+4*ks+2,2)}, v{vWa} offset:{ks*4096 + 1024}")
    a(f"""
    v_and_b32 v{vRow}, 31, v{vLane}
    s_lshl_b32 s3, s{sNH}, 5
    v_add_u32 v{vRow}, s3, v{vRow}
    """)
    tile_b_addr(a, vBa, vRow, vLane, vT3)
    vTa, vNa, vWb, vOut = 80, 81, 82, 83
    for ks in range(8):
        a(f"v_xor_b32 v{vQ+ks}, {32*ks}, v{vBa}")
    a(f"""
    s_mul_i32 s3, s{sBeta}, {T*256}
    s_lshl_b32 s{sCnt}, s{sP}, 6
    s_add_u32 s3, s3, s{sCnt}
    v_lshrrev_b32 v{vT0}, 5, v{vLane}
    v_lshlrev_b32 v{vOut}, 8, v{vRow}
    v_lshl_add_u32 v{vOut}, v{vT0}, 5, v{vOut}
    v_add_u32 v{vOut}, s3, v{vOut}
    K2_NOAA:
    v_lshrrev_b32 v{vT0}, 4, v{vLane}
    s_lshl_b32 s3, s{sWave}, 2
    v_add_u32 v{vT0}, s3, v{vT0}
    v_lshlrev_b32 v{vTa}, 4, v{vT0}
    v_lshlrev_b32 v{vNa}, 2, v{vT0}
    v_xor_b32 v{vWb}, v{vTa}, v{vC16}
    v_and_b32 v{vWb}, 0xf0, v{vWb}
    v_lshl_add_u32 v{vWb}, v{vT0}, 8, v{vWb}
    s_waitcnt lgkmcnt(0)
    s_barrier
    """)
    st.stamp(a)
    vB = vE
    vRd = vXA
    vNp = vT3
    a(f"""
    s_cmp_ge_u32 s{sWave}, 13
    s_cbranch_scc1 K2_RED_DONE
    ds_read_b128 {vr(vB,4)}, v{vTa} offset:{TBL}
    ds_read_b32 v{vNp}, v{vNa} offset:{NPC}
    s_waitcnt lgkmcnt(0)
    """)
    for j in range(3):
        a(f"""
        v_add_u32 v{vB+j}, v{vB+j}, v{vC16}
        ds_read_b128 {vr(vRd+8*j,4)}, v{vB+j}
        ds_read_b128 {vr(vRd+8*j+4,4)}, v{vB+j} offset:256
        """)
    for j in range(3):
        a(f"s_waitcnt lgkmcnt({4-2*j})")
        for i in range(8):
            a(f"v_add_f32 v{vTot+i}, v{vTot+i}, v{vRd+8*j+i}")
    a(f"""
    s_mov_b32 s{sT}, 3
    K2_XL:
    v_cmp_lt_u32 vcc, s{sT}, v{vNp}
    s_cbranch_vccz K2_RED_DONE
    s_lshl_b32 s3, s{sT}, 9
    v_add_u32 v{vT0}, s3, v{vB}
    s_mov_b64 exec, vcc
    ds_read_b128 {vr(vRd,4)}, v{vT0}
    ds_read_b128 {vr(vRd+4,4)}, v{vT0} offset:256
    s_waitcnt lgkmcnt(0)
    """)
    for i in range(8):
        a(f"v_add_f32 v{vTot+i}, v{vTot+i}, v{vRd+i}")
    a(f"""
    s_mov_b64 exec, -1
    s_add_u32 s{sT}, s{sT}, 1
    s_branch K2_XL
    K2_RED_DONE:
    s_add_u32 s{sR}, s{sR}, 1
    s_cmp_ge_u32 s{sR}, s{sNR}
    s_cbranch_scc1 K2_EPI
    s_barrier
    """)
    a(f"""
    s_cmp_ge_u32 s{sWave}, 4
    s_cbranch_scc1 K2_RZ
    v_mov_b32 v{vT2}, 0
    v_lshlrev_b32 v{vT3}, 2, v0
    ds_write_b32 v{vT3}, v{vT2} offset:{HIST}
    K2_RZ:
    v_bfe_u32 v{vT2}, v{vLane}, 2, 1
    v_mul_u32_u24 v{vT2}, 12, v{vT2}
    v_and_b32 v{vT3}, 3, v{vLane}
    v_or_b32 v{vT2}, v{vT2}, v{vT3}
    v_lshlrev_b32 v{vUA}, 8, v{vLane}
    v_lshl_or_b32 v{vUA}, v{vT2}, 4, v{vUA}
    s_waitcnt lgkmcnt(0)
    s_barrier
    s_cmp_lt_u32 s{sWave}, 8
    s_cbranch_scc1 K2_HDRD
    """)
    for i in range(8): a(f"v_mov_b32 v{vW+i}, {EMPTY}")
    a(f"""
    v_subrev_u32 v{vT0}, 512, v0
    v_and_b32 v{vT1}, 1, v{vT0}
    v_lshrrev_b32 v{vT0}, 1, v{vT0}
    v_lshlrev_b32 v{vT2}, 2, v{vT0}
    v_add_u32 v{vT2}, {MF}, v{vT2}
    ds_read_b32 v{vT3}, v{vT2}
    v_lshlrev_b32 v{vT0}, 14, v{vT0}
    v_add_u32 v{vT0}, {WS_OVF}, v{vT0}
    s_lshl_b32 s3, s{sR}, 3
    s_sub_u32 s3, s3, 8
    v_lshl_add_u32 v{vT1}, v{vT1}, 2, s3
    v_lshl_add_u32 v{vT0}, v{vT1}, 3, v{vT0}
    s_mov_b32 s{sQ}, {1 << TAGSH}
    s_mov_b32 s{sT}, {1 << 17}
    s_waitcnt lgkmcnt(0)
    v_sub_u32 v{vT3}, v{vT3}, v{vT1}
    v_cmp_lt_i32 vcc, 0, v{vT3}
    s_and_saveexec_b64 s[{sSave}:{sSave+1}], vcc
    s_cbranch_execz K2_R1
    v_cmp_lt_i32 s[{sM}:{sM+1}], 1, v{vT3}
    v_cmp_lt_i32 s[{sM+2}:{sM+3}], 2, v{vT3}
    v_cmp_lt_i32 s[{sM+4}:{sM+5}], 3, v{vT3}
    K2_RP:
    buffer_load_dwordx4 {vr(vSoM,4)}, v{vT0}, s[{sWS}:{sWS+3}], 0 offen sc1
    buffer_load_dwordx4 {vr(vSoM+4,4)}, v{vT0}, s[{sWS}:{sWS+3}], 0 offen offset:16 sc1
    s_waitcnt vmcnt(0)
    """)
    for i in range(8): a(f"v_xor_b32 v{vSoM+i}, s{sTag}, v{vSoM+i}")
    a(f"v_or_b32 v{vT1}, v{vSoM}, v{vSoM+1}")
    for k in range(1, 4):
        a(f"""
        v_or_b32 v{vT2}, v{vSoM+2*k}, v{vSoM+2*k+1}
        v_cndmask_b32_e64 v{vT2}, 0, v{vT2}, s[{sM+2*(k-1)}:{sM+2*(k-1)+1}]
        v_or_b32 v{vT1}, v{vT1}, v{vT2}
        """)
    a(f"""
    v_cmp_le_u32 vcc, s{sQ}, v{vT1}
    s_cbranch_vccz K2_RPD
    s_sleep 2
    s_sub_u32 s{sT}, s{sT}, 1
    s_cmp_lg_u32 s{sT}, 0
    s_cbranch_scc1 K2_RP
    K2_RPD:
    v_cmp_eq_u32 vcc, s{sBeta}, v{vSoM+1}
    s_nop 1
    v_cndmask_b32_e64 v{vW}, v{vW}, v{vSoM}, vcc
    """)
    for k in range(1, 4):
        a(f"""
        v_cmp_eq_u32 vcc, s{sBeta}, v{vSoM+2*k+1}
        s_nop 0
        s_and_b64 vcc, vcc, s[{sM+2*(k-1)}:{sM+2*(k-1)+1}]
        s_nop 1
        v_cndmask_b32_e64 v{vW+k}, v{vW+k}, v{vSoM+2*k}, vcc
        """)
    a(f"""
    K2_R1:
    s_mov_b64 exec, s[{sSave}:{sSave+1}]
    v_mov_b32 v{vT3}, 1
    s_branch K2_DECODE
    K2_EPI:
    """)
    st.stamp(a)
    vAcc16, vB8 = 24, vXA
    a(f"""
    s_cmp_ge_u32 s{sWave}, 13
    s_cbranch_scc1 K2_WB_DONE
    """)
    for i in range(4):
        a(f"v_cvt_pk_bf16_f32 v{vE+i}, v{vTot+2*i}, v{vTot+2*i+1}")
    a(f"""
    ds_write_b128 v{vWb}, {vr(vE,4)} offset:{AGGB}
    K2_WB_DONE:
    s_waitcnt lgkmcnt(0)
    s_barrier
    s_cmp_ge_u32 s{sWave}, 8
    s_cbranch_scc1 K2_FIN
    """)
    a(f"v_mov_b32 v{vE}, v{vOut}")
    for ks in range(8):
        a(f"ds_read_b128 {vr(vB8+4*ks,4)}, v{vQ+ks} offset:{AGGB}")
    a(f"v_cmp_gt_u32 vcc, {T}, v{vRow}")
    for ks in range(8):
        a(f"s_waitcnt lgkmcnt({7-ks})")
        c = "0" if ks == 0 else vr(vAcc16,16)
        a(f"v_mfma_f32_32x32x16_bf16 {vr(vAcc16,16)}, {vr(vA8+4*ks,4)}, {vr(vB8+4*ks,4)}, {c}")
    a("s_nop 7")
    a("s_nop 3")
    for i in range(8):
        a(f"v_cvt_pk_bf16_f32 v{vQ+i}, v{vAcc16+2*i}, v{vAcc16+2*i+1}")
    a(f"""
    s_and_saveexec_b64 s[{sSave}:{sSave+1}], vcc
    s_cbranch_execz K2_ST_DONE
    buffer_store_dwordx4 {vr(vQ,4)}, v{vE}, s[{sOUT}:{sOUT+3}], 0 offen {opt.outst}
    buffer_store_dwordx4 {vr(vQ+4,4)}, v{vE}, s[{sOUT}:{sOUT+3}], 0 offen offset:16 {opt.outst}
    K2_ST_DONE:
    s_mov_b64 exec, s[{sSave}:{sSave+1}]
    K2_FIN:
    s_cmp_eq_u32 s2, 0
    s_cbranch_scc0 K2_NOEPOCH
    s_cmp_eq_u32 s{sWave}, 15
    s_cbranch_scc0 K2_NOEPOCH
    v_mov_b32 v{vT0}, 0
    v_mov_b32 v{vT1}, s{sTag}
    s_mov_b64 exec, 1
    buffer_store_dword v{vT1}, v{vT0}, s[{sWS}:{sWS+3}], 0 offen sc1
    s_mov_b64 exec, -1
    K2_NOEPOCH:
    """)
    st.stamp(a)
    if opt.stamps:
        a("s_waitcnt vmcnt(0)")
        st.stamp(a)
    st.flush(a, sWS, vT0, sWave)
    a("""
    K2_END:
    s_endpgm
    """)
    return a.text(), LDS, 128

def build(opt):
    k, lds, v = gen_k(opt)
    n = NAME + "_kernel"
    out = HEADER
    for _ in range(opt.rep):
        out += f"; @launch kernel={n} grid=({NB},1,1) block=(1024,1,1) lds={lds}\n" if opt.aslist or opt.rep > 1 else f"; @launch grid=({NB},1,1) block=(1024,1,1) lds={lds}\n"
    out += '.amdgcn_target "amdgcn-amd-amdhsa--gfx950"\n.text\n'
    out += f".globl {n}\n.p2align 8\n.type {n},@function\n" + k
    out += '.section .rodata,"a"\n.p2align 6\n' + kd(n, v)
    return out

def parse(argv=None):
    p = argparse.ArgumentParser()
    p.add_argument("-o", default="cdna_kernels/" + NAME + ".s")
    p.add_argument("--stamps", action="store_true")
    p.add_argument("--prefetch", type=int, default=5)
    p.add_argument("--mimic", type=int, default=0)
    p.add_argument("--prio", type=int, default=3)
    p.add_argument("--keep", default="")
    p.add_argument("--exp", default="")
    p.add_argument("--outst", default="")
    p.add_argument("--sleep", type=int, default=2)
    p.add_argument("--drain", type=int, default=0)
    p.add_argument("--sleep2", type=int, default=0)
    p.add_argument("--pfn", type=int, default=3)
    p.add_argument("--pfsh", type=int, default=7)
    p.add_argument("--pfsleep", type=int, default=0)
    p.add_argument("--wsbase", type=lambda x: int(x, 0), default=0)
    p.add_argument("--cst", default="sc1")
    p.add_argument("--dmalate", type=int, default=0)
    p.add_argument("--rep", type=int, default=1)
    p.add_argument("--aslist", type=int, default=0)
    p.add_argument("--style", default="roll")
    return p.parse_args(argv)

if __name__ == "__main__":
    o = parse()
    open(o.o, "w").write(build(o))
    print("wrote", o.o)
```

```python
import sys, argparse
from gen import A, vr, Stamps, scan64, kd, HEADER, NAME

N, E, D = 12500, 400000, 128
T = 49
NB = 256
CH = 1564
C = 256
XBYTES = N * 256
EBYTES = E * 4
WS_NONCE = 0
WS_OVH = 0x1000
WS_EXTRA = 0x40000
WS_CELLS = 0x100000
CELLROW = 16384
WS_OVF = 0x500000
OVF_STRIDE = 16384
WS_USED = WS_OVF + 256 * OVF_STRIDE
TAGSH = 23
EMPTY = 0x3f
WS_STAMP = 0x1000000
OOB = 0x40000000
DUMMY = 49

def srd_tail(a, d, size):
    a(f"s_mov_b32 s{d+2}, {size}")
    a(f"s_mov_b32 s{d+3}, 0x00020000")

def tile_a_addr(a, vdst, vlane, t0, t1, sP, wbase):
    a(f"""
    v_bfe_u32 v{t0}, v{vlane}, 2, 2
    v_lshrrev_b32 v{t1}, 5, v{vlane}
    v_lshl_add_u32 v{vdst}, v{t1}, 3, v{t0}
    v_lshlrev_b32 v{vdst}, 8, v{vdst}
    v_xor_b32 v{t0}, s{sP}, v{t0}
    v_lshl_add_u32 v{vdst}, v{t0}, 6, v{vdst}
    v_bfe_u32 v{t0}, v{vlane}, 4, 1
    v_bfe_u32 v{t1}, v{vlane}, 1, 1
    v_lshl_add_u32 v{t0}, v{t0}, 1, v{t1}
    v_and_b32 v{t1}, 1, v{vlane}
    v_lshl_add_u32 v{t0}, v{t1}, 2, v{t0}
    v_lshl_add_u32 v{vdst}, v{t0}, 3, v{vdst}
    v_add_u32 v{vdst}, {wbase}, v{vdst}
    """)

def tile_b_addr(a, vdst, vrow, vlane, t0):
    a(f"""
    v_lshrrev_b32 v{t0}, 5, v{vlane}
    v_xor_b32 v{t0}, v{t0}, v{vrow}
    v_and_b32 v{t0}, 15, v{t0}
    v_lshlrev_b32 v{t0}, 4, v{t0}
    v_lshl_add_u32 v{vdst}, v{vrow}, 8, v{t0}
    """)

def gen_k(opt):
    a = A()
    HIST, MAXC, ZROW, TBL = 0, 256, 512, 1024
    NPC = TBL + 1024
    LIST = NPC + 256
    LISTW = 6144
    UNODE = LIST + LISTW * 4
    QS = UNODE + 1536 * 4
    AGGB = QS + 52 * 256
    PIECE = AGGB + 64 * 256
    XT = PIECE
    WQ = XT + 16384
    WV = PIECE + (DUMMY + 64) * 512
    LDS = WV + 32768
    assert WQ + 32768 <= WV
    st = Stamps(opt.stamps, 64, WS_STAMP + 0x40000, [int(x) for x in opt.keep.split(',')] if opt.keep else None)
    sX, sWQ, sWV, sOUT, sWS = 4, 8, 12, 16, 20
    sBeta, sWave, sR, sNR = 24, 25, 26, 27
    sOdd = 28
    sBeta24, sHB, sP, sNH, s196 = 30, 31, 32, 33, 34
    sM = 36
    sSave = 50
    sCnt, sQ, sRem, sT = 52, 53, 54, 55
    vC16, vPB, vLA, vUA, vPrev = 1, 2, 3, 4, 5
    vQP, vQC, vQN = 6, 8, 10
    vAl = (12, 14)
    vQB = 16
    vT0, vT1, vT2, vT3 = 17, 18, 19, 20
    vLane, vStart, vPc = 21, 22, 23
    vAcc, vP, vE, vQ = 24, 32, 40, 48
    vXA, vXB, vTot = 56, 88, 120
    vCand, vHdr, vSo, vN4, vRk = 56, 60, 64, 72, 80
    vCnt = 47
    vHdr2, vSo2, vN42, vRk2 = 88, 92, 96, 100
    sM2 = 56
    vWl = 6
    vWa, vBa, vRow, vQst = 12, 13, 14, 15
    HP = LDS
    OVC, JUNK = HP + 1024, HP + 1040
    H2 = HP + 1280
    ST2 = H2 + 256
    MF = ST2 + 1024
    LDS = MF + 1024
    OVL = LIST
    OVB = LIST + 8192
    STAGE = AGGB
    sSRC, sDST, sNonce, sPi = 56, 60, 35, 3
    sTag = 30
    vDst, vSrc, vEnt, vAdr, vRank, vNeg, vNon, vGo = 56, 58, 60, 62, 64, 68, 66, 67
    vBk = 76
    a(f"""
    {NAME}_kernel:
    s_cmp_ge_u32 s2, {NB}
    s_cbranch_scc1 K2_END
    s_load_dwordx2 s[{sWS}:{sWS+1}], s[0:1], 56
    s_load_dwordx2 s[{sDST}:{sDST+1}], s[0:1], 16
    s_load_dwordx2 s[{sSRC}:{sSRC+1}], s[0:1], 8
    s_load_dwordx2 s[{sX}:{sX+1}], s[0:1], 0
    s_load_dwordx2 s[{sWQ}:{sWQ+1}], s[0:1], 24
    s_load_dwordx2 s[{sWV}:{sWV+1}], s[0:1], 32
    s_load_dwordx2 s[{sOUT}:{sOUT+1}], s[0:1], 40
    """)
    st.stamp(a)
    srd_tail(a, sWS, WS_USED if not opt.stamps else 0x2000000)
    srd_tail(a, sDST, EBYTES); srd_tail(a, sSRC, EBYTES); srd_tail(a, sX, XBYTES); srd_tail(a, sWQ, 32768)
    a(f"""
    v_lshrrev_b32 v{vT0}, 6, v0
    s_mov_b32 s{sBeta}, s2
    s_mul_i32 s3, s2, {CH*4}
    v_readfirstlane_b32 s{sWave}, v{vT0}
    v_lshlrev_b32 v{vT2}, 3, v0
    v_add_u32 v{vT2}, s3, v{vT2}
    s_movk_i32 s{sT}, {CH//2}
    s_cmp_eq_u32 s2, {C-1}
    s_cselect_b32 s{sT}, {(E - (C-1)*CH)//2}, s{sT}
    v_mov_b32 v{vT3}, 0
    v_cmp_gt_u32 vcc, s{sT}, v0
    s_and_saveexec_b64 s[{sSave}:{sSave+1}], vcc
    s_waitcnt lgkmcnt(0)
    {("s_add_u32 s%d, s%d, %d" % (sWS, sWS, opt.wsbase)) if opt.wsbase else ""}
    {("s_addc_u32 s%d, s%d, 0" % (sWS+1, sWS+1)) if opt.wsbase else ""}
    s_cbranch_execz K1_NOEDGE0
    buffer_load_dwordx2 {vr(vDst,2)}, v{vT2}, s[{sDST}:{sDST+3}], 0 offen
    buffer_load_dwordx2 {vr(vSrc,2)}, v{vT2}, s[{sSRC}:{sSRC+3}], 0 offen
    K1_NOEDGE0:
    s_mov_b64 exec, s[{sSave}:{sSave+1}]
    buffer_load_dword v{vNon}, v{vT3}, s[{sWS}:{sWS+3}], 0 offen sc1
    """)
    a(f"""
    v_and_b32 v{vLane}, 63, v0
    v_bfe_u32 v{vT0}, v0, 4, 2
    v_and_b32 v{vT1}, 15, v0
    v_lshlrev_b32 v{vC16}, 4, v{vT1}
    """)
    a(f"""
    v_mov_b32 v{vNeg}, {EMPTY}
    v_mov_b32 v{vNeg+1}, {EMPTY}
    v_mov_b32 v{vNeg+2}, {EMPTY}
    v_mov_b32 v{vNeg+3}, {EMPTY}
    v_lshlrev_b32 v{vT2}, 4, v0
    ds_write_b128 v{vT2}, {vr(vNeg,4)} offset:{STAGE}
    s_cmp_eq_u32 s{sWave}, 12
    s_cbranch_scc0 K1_NOS2
    v_lshlrev_b32 v{vT3}, 4, v{vLane}
    v_add_u32 v{vT3}, {ST2}, v{vT3}
    ds_write_b128 v{vT3}, {vr(vNeg,4)}
    K1_NOS2:
    v_mov_b32 v{vT2}, 0
    v_lshlrev_b32 v{vT3}, 2, v0
    s_cmp_ge_u32 s{sWave}, 6
    s_cbranch_scc1 K1_NOZ0
    v_add_u32 v{vT3}, {HP}, v{vT3}
    ds_write_b32 v{vT3}, v{vT2}
    s_branch K1_NOZ1
    K1_NOZ0:
    s_sub_u32 s3, s{sWave}, 8
    s_cmp_ge_u32 s3, 4
    s_cbranch_scc1 K1_NOZ2
    v_add_u32 v{vT3}, {HIST - 2048}, v{vT3}
    ds_write_b32 v{vT3}, v{vT2}
    s_branch K1_NOZ1
    K1_NOZ2:
    s_cmp_lt_u32 s{sWave}, 12
    s_cbranch_scc1 K1_NOZ1
    v_add_u32 v{vT3}, {MF - 3072}, v{vT3}
    ds_write_b32 v{vT3}, v{vT2}
    K1_NOZ1:
    s_mov_b32 s{sR}, 0
    s_mov_b32 s{sOdd}, 0xaaaaaaaa
    s_mov_b32 s{sOdd+1}, 0xaaaaaaaa
    s_movk_i32 s{s196}, {T*4}
    s_lshl_b32 s3, s{sWave}, 11
    s_add_u32 s3, s3, {PIECE}
    v_lshl_add_u32 v{vPB}, v{vT0}, 9, s3
    v_add_u32 v{vPB}, v{vPB}, v{vC16}
    s_and_b32 s{sPi}, s2, 7
    s_lshl_b32 s{sPi}, s{sPi}, 5
    s_lshr_b32 s{sT}, s2, 3
    s_add_u32 s{sPi}, s{sPi}, s{sT}
    s_mov_b32 s{sHB}, s{sPi}
    v_lshrrev_b32 v{vT2}, 2, v0
    v_lshlrev_b32 v{vGo}, 14, v{vT2}
    v_and_b32 v{vT2}, 3, v0
    v_lshl_add_u32 v{vGo}, v{vT2}, 4, v{vGo}
    v_mov_b32 v{vT3}, 1
    s_waitcnt lgkmcnt(0)
    s_barrier
    """)
    st.stamp(a)
    def early_dma():
        a(f"""
        v_bfe_u32 v{vT0}, v0, 4, 2
        v_and_b32 v{vT1}, 15, v0
        v_lshlrev_b32 v{vT2}, 2, v{vT0}
        v_xor_b32 v{vT2}, v{vT2}, v{vT1}
        v_lshlrev_b32 v{vT2}, 4, v{vT2}
        v_lshl_add_u32 v{vWl}, v{vT0}, 8, v{vT2}
        s_cmp_lt_u32 s{sWave}, 8
        s_cbranch_scc1 K2_L2
        s_sub_u32 s{sQ}, s{sWave}, 8
        """)
        def xt_dma(jreg):
            a(f"""
            s_lshl_b32 s3, s{jreg}, 2
            v_add_u32 v{vT2}, s3, v{vT0}
            v_xor_b32 v{vEnt}, v{vT2}, v{vT1}
            v_and_b32 v{vEnt}, 15, v{vEnt}
            v_lshlrev_b32 v{vEnt}, 4, v{vEnt}
            v_lshl_add_u32 v{vEnt}, v{vT2}, 8, v{vEnt}
            s_mul_i32 s3, s{sBeta}, {T*256}
            s_lshl_b32 s{sT}, s{jreg}, 10
            s_add_u32 s{sT}, s{sT}, {XT}
            s_mov_b32 m0, s{sT}
            s_nop 0
            buffer_load_dwordx4 v{vEnt}, s[{sX}:{sX+3}], s3 offen lds
            """)
        xt_dma(sQ)
        a(f"""
        s_cmp_ge_u32 s{sWave}, 13
        s_cbranch_scc1 K2_L3
        s_mov_b32 s{sRem}, s{sWave}
        """)
        xt_dma(sRem)
        a(f"""
        K2_L3:
        s_lshl_b32 s3, s{sQ}, 12
        s_add_u32 s{sT}, s3, {WQ}
        """)
        for i in range(4):
            a(f"""
            s_mov_b32 m0, s{sT}
            s_add_u32 s{sT}, s{sT}, 1024
            buffer_load_dwordx4 v{vWl}, s[{sWQ}:{sWQ+3}], s3 offen lds
            s_add_u32 s3, s3, 1024
            """)
        a("K2_L2:")
    if not opt.dmalate: early_dma()
    else:
        a(f"""
        v_bfe_u32 v{vT0}, v0, 4, 2
        v_and_b32 v{vT1}, 15, v0
        v_lshlrev_b32 v{vT2}, 2, v{vT0}
        v_xor_b32 v{vT2}, v{vT2}, v{vT1}
        v_lshlrev_b32 v{vT2}, 4, v{vT2}
        v_lshl_add_u32 v{vWl}, v{vT0}, 8, v{vT2}
        """)
    if opt.prefetch == 1:
        a(f"""
        s_cmp_eq_u32 s{sWave}, 14
        s_cbranch_scc0 K1_NOPF
        s_mul_i32 s3, s2, 12544
        v_lshlrev_b32 v{vT2}, 7, v{vLane}
        buffer_load_dword v{vNeg+4}, v{vT2}, s[{sX}:{sX+3}], s3 offen
        s_add_u32 s3, s3, 8192
        v_cmp_gt_u32 vcc, 34, v{vLane}
        v_mov_b32 v{vEnt}, {OOB}
        s_nop 0
        v_cndmask_b32_e64 v{vT2}, v{vEnt}, v{vT2}, vcc
        buffer_load_dword v{vNeg+4}, v{vT2}, s[{sX}:{sX+3}], s3 offen
        K1_NOPF:
        """)
    sPiK = sHB
    srd_tail(a, sWV, 32768); srd_tail(a, sOUT, XBYTES)
    for i in range(8):
        a(f"v_mov_b32 v{vTot+i}, 0")
    a("v_mov_b32 v83, 0")
    a(f"""
    v_bfe_u32 v{vT2}, v{vLane}, 2, 1
    v_mul_u32_u24 v{vT2}, 12, v{vT2}
    v_and_b32 v{vT0}, 3, v{vLane}
    v_or_b32 v{vT2}, v{vT2}, v{vT0}
    v_lshlrev_b32 v{vUA}, 8, v{vLane}
    v_lshl_or_b32 v{vUA}, v{vT2}, 4, v{vUA}
    """)
    a(f"""
    s_and_b32 s{sP}, s{sWave}, 3
    s_bfe_u32 s{sNH}, s{sWave}, 0x10002
    s_cmp_ge_u32 s{sWave}, 8
    s_cbranch_scc1 K2_NOQA
    """)
    tile_a_addr(a, vWa, vLane, vT2, vT0, sP, WQ)
    a(f"""
    v_and_b32 v{vRow}, 31, v{vLane}
    s_lshl_b32 s3, s{sNH}, 5
    v_add_u32 v{vRow}, s3, v{vRow}
    """)
    tile_b_addr(a, vBa, vRow, vLane, vT0)
    a(f"""
    v_bfe_u32 v{vT2}, v{vRow}, 2, 1
    v_mul_u32_u24 v{vT2}, 12, v{vT2}
    v_and_b32 v{vT0}, 3, v{vRow}
    v_or_b32 v{vT2}, v{vT2}, v{vT0}
    v_lshrrev_b32 v{vT0}, 5, v{vLane}
    s_lshl_b32 s3, s{sP}, 2
    v_lshl_add_u32 v{vT0}, v{vT0}, 1, s3
    v_xor_b32 v{vT2}, v{vT2}, v{vT0}
    v_lshlrev_b32 v{vT2}, 4, v{vT2}
    v_lshl_add_u32 v{vQst}, v{vRow}, 8, v{vT2}
    K2_NOQA:
    """)
    a(f"""
    s_movk_i32 s{sT}, {CH//2}
    s_cmp_eq_u32 s2, {C-1}
    s_cselect_b32 s{sT}, {(E - (C-1)*CH)//2}, s{sT}
    v_cmp_gt_u32 vcc, s{sT}, v0
    s_and_saveexec_b64 s[{sSave}:{sSave+1}], vcc
    s_cbranch_execz K1_EDGE1_DONE
    s_mov_b32 s{sT}, -{T}
    s_mov_b32 s{sCnt}, {STAGE}
    s_cmp_lt_u32 s{sWave}, 8
    s_cbranch_scc1 K1_EW0
    s_waitcnt vmcnt({1 if opt.dmalate else 7})
    s_branch K1_EW1
    K1_EW0:
    s_waitcnt vmcnt(1)
    K1_EW1:
    """)
    st.stamp(a)
    for i in range(2):
        a(f"""
        v_mul_u32_u24 v{vT0}, 21400, v{vDst+i}
        v_lshrrev_b32 v{vT0}, 20, v{vT0}
        v_lshlrev_b32 v{vAdr+i}, 2, v{vT0}
        v_add_u32 v{vT2}, {HP}, v{vAdr+i}
        ds_add_rtn_u32 v{vRank+i}, v{vT2}, v{vT3}
        v_mad_i32_i24 v{vT1}, v{vT0}, s{sT}, v{vDst+i}
        v_lshl_or_b32 v{vEnt+i}, v{vSrc+i}, 8, v{vT1}
        v_mov_b32 v{vBk+i}, v{vT0}
        v_lshl_add_u32 v{vAdr+i}, v{vAdr+i}, 4, s{sCnt}
        """)
    a(f"v_mov_b32 v{vT2}, {JUNK}")
    for i in range(2):
        a(f"""
        s_waitcnt lgkmcnt({1-i})
        v_cmp_gt_u32 s[{sM+2*i}:{sM+2*i+1}], 16, v{vRank+i}
        v_lshl_add_u32 v{vT0}, v{vRank+i}, 2, v{vAdr+i}
        s_nop 0
        v_cndmask_b32_e64 v{vT0}, v{vT2}, v{vT0}, s[{sM+2*i}:{sM+2*i+1}]
        ds_write_b32 v{vT0}, v{vEnt+i}
        """)
    a(f"""
    s_and_b64 s[{sM+4}:{sM+5}], s[{sM}:{sM+1}], s[{sM+2}:{sM+3}]
    s_andn2_b64 s[{sM+4}:{sM+5}], exec, s[{sM+4}:{sM+5}]
    s_cbranch_scc0 K1_EDGE1_DONE
    s_mov_b64 s[{sM+6}:{sM+7}], exec
    """)
    for i in range(2):
        a(f"""
        s_andn2_b64 exec, s[{sM+6}:{sM+7}], s[{sM+2*i}:{sM+2*i+1}]
        s_cbranch_execz K1_OV_{i}
        v_and_b32 v{vT0}, 7, v{vBk+i}
        v_lshrrev_b32 v{vT1}, 5, v{vBk+i}
        v_lshl_add_u32 v{vT0}, v{vT1}, 3, v{vT0}
        v_lshlrev_b32 v{vT1}, 2, v{vT0}
        v_add_u32 v{vT1}, {H2}, v{vT1}
        ds_add_rtn_u32 v{vT1}, v{vT1}, v{vT3}
        v_bfe_u32 v{vT2}, v{vBk+i}, 3, 2
        v_lshl_or_b32 v{vT2}, v{vT2}, 6, v{vEnt+i}
        v_lshlrev_b32 v{vT0}, 4, v{vT0}
        v_add_u32 v{vT0}, {ST2}, v{vT0}
        s_waitcnt lgkmcnt(0)
        v_cmp_gt_u32 vcc, 4, v{vT1}
        v_lshl_add_u32 v{vT0}, v{vT1}, 2, v{vT0}
        s_mov_b64 s[{sM+8}:{sM+9}], exec
        s_and_b64 exec, exec, vcc
        ds_write_b32 v{vT0}, v{vT2}
        s_andn2_b64 exec, s[{sM+8}:{sM+9}], vcc
        s_cbranch_execz K1_OV_{i}
        v_mov_b32 v{vT0}, {OVC}
        ds_add_rtn_u32 v{vT0}, v{vT0}, v{vT3}
        s_waitcnt lgkmcnt(0)
        v_lshlrev_b32 v{vT0}, 2, v{vT0}
        ds_write_b32 v{vT0}, v{vEnt+i} offset:{OVL}
        ds_write_b32 v{vT0}, v{vBk+i} offset:{OVB}
        K1_OV_{i}:
        """)
    a(f"""
    K1_EDGE1_DONE:
    s_mov_b64 exec, s[{sSave}:{sSave+1}]
    v_lshlrev_b32 v{vT0}, 4, v0
    s_waitcnt lgkmcnt(0)
    s_barrier
    """)
    st.stamp(a)
    a(f"""
    s_cmp_ge_u32 s{sWave}, 8
    s_cbranch_scc1 K1_NOCOPY
    ds_read_b128 {vr(vNeg,4)}, v{vT0} offset:{STAGE}
    ds_read_b128 {vr(vNeg+4,4)}, v{vT0} offset:{STAGE + 8192}
    s_lshl_b32 s3, s{sPiK}, 6
    s_add_u32 s3, s3, {WS_CELLS}
    s_add_u32 s{sT}, s3, {128*CELLROW}
    s_waitcnt vmcnt(0)
    v_readfirstlane_b32 s{sNonce}, v{vNon}
    s_nop 3
    s_and_b32 s{sTag}, s{sNonce}, {(0xffffffff << TAGSH) & 0xffffffff}
    s_add_u32 s{sTag}, s{sTag}, {1 << TAGSH}
    s_waitcnt lgkmcnt(1)
    """)
    for i in range(4): a(f"v_or_b32 v{vNeg+i}, s{sTag}, v{vNeg+i}")
    a(f"""
    buffer_store_dwordx4 {vr(vNeg,4)}, v{vGo}, s[{sWS}:{sWS+3}], s3 offen {opt.cst}
    s_waitcnt lgkmcnt(0)
    """)
    for i in range(4, 8): a(f"v_or_b32 v{vNeg+i}, s{sTag}, v{vNeg+i}")
    a(f"""
    buffer_store_dwordx4 {vr(vNeg+4,4)}, v{vGo}, s[{sWS}:{sWS+3}], s{sT} offen {opt.cst}
    s_cmp_eq_u32 s{sWave}, 6
    s_cbranch_scc0 K1_NOX
    v_lshlrev_b32 v{vT1}, 4, v{vLane}
    v_add_u32 v{vT1}, {ST2}, v{vT1}
    ds_read_b128 {vr(vDst,4)}, v{vT1}
    v_lshlrev_b32 v{vT1}, 2, v{vLane}
    v_add_u32 v{vT1}, {H2}, v{vT1}
    ds_read_b32 v{vT1}, v{vT1}
    v_lshlrev_b32 v{vT2}, 12, v{vLane}
    s_lshl_b32 s3, s{sPiK}, 4
    s_add_u32 s3, s3, {WS_EXTRA}
    v_mov_b32 v{vT3}, {1 << 22}
    s_waitcnt lgkmcnt(0)
    v_cmp_lt_u32 vcc, 4, v{vT1}
    """)
    for i in range(4): a(f"v_or_b32 v{vDst+i}, s{sTag}, v{vDst+i}")
    a(f"""
    v_cndmask_b32_e64 v{vT3}, 0, v{vT3}, vcc
    v_or_b32 v{vDst+3}, v{vT3}, v{vDst+3}
    buffer_store_dwordx4 {vr(vDst,4)}, v{vT2}, s[{sWS}:{sWS+3}], s3 offen {opt.cst}
    K1_NOX:
    s_cmp_eq_u32 s{sWave}, 7
    s_cbranch_scc0 K1_DRAIN
    v_mov_b32 v{vT3}, {OVC}
    ds_read_b32 v{vRank}, v{vT3}
    s_waitcnt lgkmcnt(0)
    v_readfirstlane_b32 s{sCnt}, v{vRank}
    s_nop 3
    s_cmp_eq_u32 s{sCnt}, 0
    s_cbranch_scc1 K1_DRAIN
    s_min_u32 s{sCnt}, s{sCnt}, {CH}
    s_lshl_b32 s{sT}, s{sPiK}, 4
    s_add_u32 s{sT}, s{sT}, {WS_OVH}
    v_mov_b32 v{vT2}, s{sT}
    v_or_b32 v{vDst}, s{sTag}, v{vRank}
    v_mov_b32 v{vDst+1}, v{vDst}
    v_mov_b32 v{vDst+2}, v{vDst}
    v_mov_b32 v{vDst+3}, v{vDst}
    s_mov_b64 exec, 1
    buffer_store_dwordx4 {vr(vDst,4)}, v{vT2}, s[{sWS}:{sWS+3}], 0 offen sc1
    s_mov_b64 exec, -1
    s_mul_i32 s3, s{sPiK}, {OVF_STRIDE}
    s_add_u32 s3, s3, {WS_OVF}
    v_mov_b32 v{vT0}, v{vLane}
    K1_OVL:
    v_cmp_gt_u32 vcc, s{sCnt}, v{vT0}
    s_and_b64 exec, exec, vcc
    s_cbranch_execz K1_OVD
    v_lshlrev_b32 v{vT1}, 2, v{vT0}
    ds_read_b32 v{vDst}, v{vT1} offset:{OVL}
    ds_read_b32 v{vDst+1}, v{vT1} offset:{OVB}
    v_lshlrev_b32 v{vT1}, 3, v{vT0}
    s_waitcnt lgkmcnt(0)
    v_or_b32 v{vDst}, s{sTag}, v{vDst}
    v_or_b32 v{vDst+1}, s{sTag}, v{vDst+1}
    buffer_store_dwordx2 {vr(vDst,2)}, v{vT1}, s[{sWS}:{sWS+3}], s3 offen sc1
    v_add_u32 v{vT0}, 64, v{vT0}
    s_branch K1_OVL
    K1_OVD:
    s_mov_b64 exec, -1
    K1_DRAIN:
    {"s_waitcnt vmcnt(0)" if opt.drain == 1 else ""}
    s_branch K1_COPIED
    K1_NOCOPY:
    s_waitcnt vmcnt(0)
    v_readfirstlane_b32 s{sNonce}, v{vNon}
    s_nop 3
    s_and_b32 s{sTag}, s{sNonce}, {(0xffffffff << TAGSH) & 0xffffffff}
    s_add_u32 s{sTag}, s{sTag}, {1 << TAGSH}
    K1_COPIED:
    s_barrier
    """)
    st.stamp(a)
    st.stamp(a)
    a(f"""
    s_cmp_ge_u32 s{sWave}, 8
    s_cbranch_scc1 K2_NOQ
    """)
    vA8, vQAcc = vXB, vAcc
    Bq = [vE, vE+4, vQ, vQ+4]
    def a_reads(ks):
        a(f"ds_read_b64_tr_b16 {vr(vA8+4*ks,2)}, v{vWa} offset:{ks*4096}")
        a(f"ds_read_b64_tr_b16 {vr(vA8+4*ks+2,2)}, v{vWa} offset:{ks*4096 + 1024}")
    def b_read(ks):
        a(f"v_xor_b32 v{vT2}, {32*ks}, v{vBa}")
        a(f"ds_read_b128 {vr(Bq[ks & 3],4)}, v{vT2} offset:{XT}")
    def mfma(ks):
        c = "0" if ks == 0 else vr(vQAcc,16)
        a(f"v_mfma_f32_32x32x16_bf16 {vr(vQAcc,16)}, {vr(vA8+4*ks,4)}, {vr(Bq[ks & 3],4)}, {c}")
    for ks in range(4):
        a_reads(ks); b_read(ks)
    for ks in range(4):
        a("s_waitcnt lgkmcnt(9)")
        mfma(ks)
        a_reads(ks+4); b_read(ks+4)
    for ks in range(4, 8):
        a(f"s_waitcnt lgkmcnt({3*(7-ks)})")
        mfma(ks)
    a(f"""
    v_cmp_gt_u32 vcc, 52, v{vRow}
    v_xor_b32 v{vT2}, 16, v{vQst}
    s_nop 7
    s_nop 2
    """)
    for i in range(8):
        a(f"v_cvt_pk_bf16_f32 v{vA8+i}, v{vQAcc+2*i}, v{vQAcc+2*i+1}")
    a(f"""
    s_mov_b64 exec, vcc
    ds_write_b128 v{vQst}, {vr(vA8,4)} offset:{QS}
    ds_write_b128 v{vT2}, {vr(vA8+4,4)} offset:{QS}
    s_mov_b64 exec, -1
    """)
    a(f"""
    s_lshl_b32 s3, s{sWave}, 12
    s_add_u32 s{sT}, s3, {WV}
    """)
    for i in range(4):
        a(f"""
        s_mov_b32 m0, s{sT}
        s_add_u32 s{sT}, s{sT}, 1024
        buffer_load_dwordx4 v{vWl}, s[{sWV}:{sWV+3}], s3 offen lds
        s_add_u32 s3, s3, 1024
        """)
    if opt.prefetch == 4:
        a(f"""
        s_lshr_b32 s3, s2, 3
        s_mul_i32 s3, s3, 100096
        s_mul_i32 s{sT}, s{sWave}, 12544
        s_add_u32 s3, s3, s{sT}
        v_lshlrev_b32 v{vT0}, 7, v{vLane}
        {"s_sleep %d" % opt.pfsleep if opt.pfsleep else ""}
        buffer_load_dword v{vQB}, v{vT0}, s[{sX}:{sX+3}], s3 offen
        """)
        if opt.pfn > 1:
            a(f"""
            s_add_u32 s3, s3, 8192
            s_mov_b32 exec_lo, -1
            s_mov_b32 exec_hi, 3
            buffer_load_dword v{vQB}, v{vT0}, s[{sX}:{sX+3}], s3 offen
            s_mov_b64 exec, -1
            """)
    a("s_branch K2_HDRD")
    vW, vXw, vSoM, vSoX, vN4M, vN4X, vRkM, vRkX, vPos, vCn = 56, 64, 68, 76, 80, 88, 92, 100, 104, 112
    def mask(i): return (sM + 2*i) if i < 7 else 0
    a(f"""
    K2_NOQ:
    """)
    st.stamp(a)
    a(f"""
    s_sub_u32 s{sRem}, s{sWave}, 8
    s_lshl_b32 s3, s{sRem}, 11
    v_lshlrev_b32 v{vT0}, 4, v{vLane}
    v_add_u32 v{vT0}, s3, v{vT0}
    s_lshl_b32 s3, s{sBeta}, 14
    s_add_u32 s3, s3, {WS_CELLS}
    s_mov_b32 s{sT}, {1 << 17}
    s_mov_b32 s{sQ}, {1 << TAGSH}
    s_mov_b32 exec_lo, 0
    s_mov_b32 exec_hi, 0x80000000
    K1_CAN:
    buffer_load_dword v{vT1}, v{vT0}, s[{sWS}:{sWS+3}], s3 offen offset:1036 sc1
    s_waitcnt vmcnt(0)
    v_xor_b32 v{vT1}, s{sTag}, v{vT1}
    v_cmp_le_u32 vcc, s{sQ}, v{vT1}
    s_cbranch_vccz K1_CAND
    s_sleep {opt.sleep}
    s_sub_u32 s{sT}, s{sT}, 1
    s_cmp_lg_u32 s{sT}, 0
    s_cbranch_scc1 K1_CAN
    K1_CAND:
    s_mov_b64 exec, -1
    {"s_sleep %d" % opt.sleep2 if opt.sleep2 else ""}
    s_mov_b32 s{sT}, {1 << 17}
    K1_TP:
    buffer_load_dwordx4 {vr(vW,4)}, v{vT0}, s[{sWS}:{sWS+3}], s3 offen sc1
    buffer_load_dwordx4 {vr(vW+4,4)}, v{vT0}, s[{sWS}:{sWS+3}], s3 offen offset:1024 sc1
    s_waitcnt vmcnt(0)
    """)
    for i in range(8): a(f"v_xor_b32 v{vW+i}, s{sTag}, v{vW+i}")
    a(f"""
    v_or3_b32 v{vT1}, v{vW}, v{vW+1}, v{vW+2}
    v_or3_b32 v{vT1}, v{vT1}, v{vW+3}, v{vW+4}
    v_or3_b32 v{vT1}, v{vT1}, v{vW+5}, v{vW+6}
    v_or_b32 v{vT1}, v{vT1}, v{vW+7}
    v_cmp_le_u32 vcc, s{sQ}, v{vT1}
    s_and_b64 exec, exec, vcc
    s_cbranch_execz K1_TPD
    s_sleep {opt.sleep}
    s_sub_u32 s{sT}, s{sT}, 1
    s_cmp_lg_u32 s{sT}, 0
    s_cbranch_scc1 K1_TP
    K1_TPD:
    s_mov_b64 exec, -1
    """)
    for i in range(4): a(f"v_mov_b32 v{vXw+i}, {EMPTY}")
    a(f"""
    s_and_b32 s3, s{sBeta}, 7
    s_lshr_b32 s{sCnt}, s{sBeta}, 5
    s_lshl_b32 s{sCnt}, s{sCnt}, 3
    s_add_u32 s3, s3, s{sCnt}
    s_lshl_b32 s3, s3, 12
    s_lshl_b32 s{sCnt}, s{sRem}, 9
    s_add_u32 s3, s3, s{sCnt}
    s_add_u32 s3, s3, {WS_EXTRA}
    v_lshlrev_b32 v{vT0}, 4, v{vLane}
    s_mov_b32 s{sT}, {1 << 17}
    s_mov_b32 exec_lo, -1
    s_mov_b32 exec_hi, 0
    K1_XP:
    buffer_load_dwordx4 {vr(vXw,4)}, v{vT0}, s[{sWS}:{sWS+3}], s3 offen sc1
    s_waitcnt vmcnt(0)
    """)
    for i in range(4): a(f"v_xor_b32 v{vXw+i}, s{sTag}, v{vXw+i}")
    a(f"""
    v_or3_b32 v{vT1}, v{vXw}, v{vXw+1}, v{vXw+2}
    v_or_b32 v{vT1}, v{vT1}, v{vXw+3}
    v_cmp_le_u32 vcc, s{sQ}, v{vT1}
    s_and_b64 exec, exec, vcc
    s_cbranch_execz K1_XPD
    s_sleep {opt.sleep}
    s_sub_u32 s{sT}, s{sT}, 1
    s_cmp_lg_u32 s{sT}, 0
    s_cbranch_scc1 K1_XP
    K1_XPD:
    s_mov_b64 exec, -1
    v_and_b32 v{vT1}, {1 << 22}, v{vXw+3}
    v_cmp_ne_u32 vcc, 0, v{vT1}
    s_cbranch_vccz K1_NOXP
    s_mov_b64 exec, vcc
    s_lshl_b32 s3, s{sRem}, 9
    s_add_u32 s3, s3, {WS_OVH}
    s_mov_b32 s{sT}, {1 << 17}
    K1_HP:
    buffer_load_dwordx4 {vr(vPos,4)}, v{vT0}, s[{sWS}:{sWS+3}], s3 offen sc1
    s_waitcnt vmcnt(0)
    v_xor_b32 v{vT2}, s{sTag}, v{vPos}
    v_xor_b32 v{vPos+1}, v{vPos}, v{vPos+1}
    v_xor_b32 v{vPos+2}, v{vPos}, v{vPos+2}
    v_xor_b32 v{vPos+3}, v{vPos}, v{vPos+3}
    v_or3_b32 v{vPos+1}, v{vPos+1}, v{vPos+2}, v{vPos+3}
    v_cmp_ne_u32 s[{sM}:{sM+1}], 0, v{vPos+1}
    v_cmp_le_u32 vcc, s{sQ}, v{vT2}
    s_or_b64 vcc, vcc, s[{sM}:{sM+1}]
    s_cbranch_vccz K1_HPD
    s_sleep 2
    s_sub_u32 s{sT}, s{sT}, 1
    s_cmp_lg_u32 s{sT}, 0
    s_cbranch_scc1 K1_HP
    K1_HPD:
    v_min_u32 v{vT2}, {CH}, v{vT2}
    s_lshl_b32 s3, s{sRem}, 7
    s_add_u32 s3, s3, {MF}
    v_lshlrev_b32 v{vT1}, 2, v{vLane}
    v_add_u32 v{vT1}, s3, v{vT1}
    ds_write_b32 v{vT1}, v{vT2}
    v_mov_b32 v{vT1}, {MAXC}
    ds_max_u32 v{vT1}, v{vT2}
    s_mov_b64 exec, -1
    K1_NOXP:
    v_mov_b32 v{vT3}, 1
    """)
    st.stamp(a)
    a("K2_DECODE:")
    for i in range(8):
        m = mask(i)
        a(f"""
        v_lshlrev_b32 v{vN4M+i}, 2, v{vW+i}
        v_and_b32 v{vN4M+i}, 0xfc, v{vN4M+i}
        v_cmp_gt_u32 s[{m}:{m+1}], s{s196}, v{vN4M+i}
        v_and_b32 v{vSoM+i}, 0x003fff00, v{vW+i}
        """)
        if i >= 1:
            mp = mask(i-1)
            a(f"""
            s_mov_b64 exec, s[{mp}:{mp+1}]
            ds_add_rtn_u32 v{vRkM+i-1}, v{vN4M+i-1}, v{vT3} offset:{HIST}
            s_mov_b64 exec, -1
            """)
    a(f"""
    s_mov_b64 exec, s[{mask(7)}:{mask(7)+1}]
    ds_add_rtn_u32 v{vRkM+7}, v{vN4M+7}, v{vT3} offset:{HIST}
    s_mov_b64 exec, -1
    s_mov_b64 s[{sM+14}:{sM+15}], 0
    s_cmp_eq_u32 s{sR}, 0
    s_cbranch_scc0 K2_HDRD
    v_and_b32 v{vT0}, v{vXw}, v{vXw+1}
    v_and_b32 v{vT1}, v{vXw+2}, v{vXw+3}
    v_and_b32 v{vT0}, v{vT0}, v{vT1}
    v_and_b32 v{vT0}, 63, v{vT0}
    v_cmp_ne_u32 vcc, 63, v{vT0}
    s_cbranch_vccz K2_HDRD
    s_bfe_u32 s{sT}, s{sBeta}, 0x20003
    """)
    for i in range(4):
        w, m = vXw + i, sM2 + 2*i
        a(f"""
        v_bfe_u32 v{vT0}, v{w}, 6, 2
        v_cmp_eq_u32 vcc, s{sT}, v{vT0}
        v_mov_b32 v{vT1}, {EMPTY}
        v_and_b32 v{vT2}, 0x003fff3f, v{w}
        s_nop 0
        v_cndmask_b32_e64 v{w}, v{vT1}, v{vT2}, vcc
        v_lshlrev_b32 v{vN4X+i}, 2, v{w}
        v_and_b32 v{vN4X+i}, 0xfc, v{vN4X+i}
        v_cmp_gt_u32 s[{m}:{m+1}], s{s196}, v{vN4X+i}
        v_and_b32 v{vSoX+i}, 0x003fff00, v{w}
        """)
    a(f"""
    s_or_b64 s[{sM+14}:{sM+15}], s[{sM2}:{sM2+1}], s[{sM2+2}:{sM2+3}]
    s_or_b64 s[{sM+14}:{sM+15}], s[{sM+14}:{sM+15}], s[{sM2+4}:{sM2+5}]
    s_or_b64 s[{sM+14}:{sM+15}], s[{sM+14}:{sM+15}], s[{sM2+6}:{sM2+7}]
    s_cbranch_scc0 K2_HDRD
    """)
    for i in range(4):
        m = sM2 + 2*i
        a(f"""
        s_mov_b64 exec, s[{m}:{m+1}]
        ds_add_rtn_u32 v{vRkX+i}, v{vN4X+i}, v{vT3} offset:{HIST}
        """)
    a(f"""
    s_mov_b64 exec, -1
    K2_HDRD:
    s_waitcnt lgkmcnt(0)
    s_barrier
    """)
    st.stamp(a)
    if opt.prefetch == 5:
        a(f"""
        s_cmp_ge_u32 s{sWave}, 8
        s_cbranch_scc1 K2_NOPF5
        s_waitcnt vmcnt(0)
        s_sub_u32 s3, s{sWave}, {8 - opt.pfn}
        s_cmp_ge_u32 s3, {opt.pfn}
        s_cbranch_scc1 K2_NOPF5
        s_lshl_b32 s{sT}, s3, {opt.pfsh + 6}
        s_lshr_b32 s3, s2, 3
        s_mul_i32 s3, s3, 100096
        s_add_u32 s3, s3, s{sT}
        v_lshlrev_b32 v{vT0}, {opt.pfsh}, v{vLane}
        buffer_load_dword v{vQB}, v{vT0}, s[{sX}:{sX+3}], s3 offen
        K2_NOPF5:
        """)
    a(f"""
    v_lshlrev_b32 v{vT2}, 2, v{vLane}
    ds_read_b32 v{vCn}, v{vT2} offset:{HIST}
    s_lshl_b32 s{sT}, s{sWave}, 2
    s_waitcnt lgkmcnt(0)
    v_add_u32 v{vPc}, 3, v{vCn}
    v_and_b32 v{vPc}, -4, v{vPc}
    v_mov_b32 v{vStart}, v{vPc}
    v_cmp_lt_u32 vcc, s{sT}, v{vPc}
    s_nop 0
    """)
    steps = ["row_shr:1 row_mask:0xf bank_mask:0xf bound_ctrl:1", "row_shr:2 row_mask:0xf bank_mask:0xf bound_ctrl:1",
             "row_shr:4 row_mask:0xf bank_mask:0xf bound_ctrl:1", "row_shr:8 row_mask:0xf bank_mask:0xf bound_ctrl:1",
             "row_bcast:15 row_mask:0xa bank_mask:0xf", "row_bcast:31 row_mask:0xc bank_mask:0xf"]
    for i, stp in enumerate(steps):
        a(f"v_add_u32_dpp v{vStart}, v{vStart}, v{vStart} {stp}")
        a("s_nop 1" if i < 5 else "s_nop 0")
    a(f"""
    v_readlane_b32 s{sCnt}, v{vStart}, 63
    v_sub_u32 v{vStart}, v{vStart}, v{vPc}
    s_cmp_lt_u32 s{sWave}, 8
    s_cbranch_scc1 K2_NOBP
    """)
    for i in range(8):
        a(f"ds_bpermute_b32 v{vPos+i}, v{vN4M+i}, v{vStart}")
    a(f"""
    K2_NOBP:
    v_add_u32 v{vT0}, s{sT}, v{vStart}
    s_mov_b64 exec, vcc
    ds_write_b32 v{vT0}, v{vUA} offset:{UNODE}
    s_mov_b64 exec, -1
    v_cmp_lt_u32 vcc, 64, v{vPc}
    s_cbranch_vccz K2_UND
    K2_UN:
    s_add_u32 s{sT}, s{sT}, 64
    v_cmp_lt_u32 vcc, s{sT}, v{vPc}
    s_cbranch_vccz K2_UND
    v_add_u32 v{vT0}, s{sT}, v{vStart}
    s_mov_b64 exec, vcc
    ds_write_b32 v{vT0}, v{vUA} offset:{UNODE}
    s_mov_b64 exec, -1
    s_branch K2_UN
    K2_UND:
    s_cmp_gt_u32 s{sWave}, 4
    s_cbranch_scc1 K2_NOPAD
    v_mov_b32 v{vT2}, {OOB}
    s_cmp_gt_u32 s{sWave}, 2
    s_cbranch_scc1 K2_TAILPAD
    v_sub_u32 v{vT1}, v{vPc}, v{vCn}
    v_add_u32 v{vT0}, v{vStart}, v{vCn}
    v_cmp_lt_u32 vcc, s{sWave}, v{vT1}
    v_add_u32 v{vT0}, s{sWave}, v{vT0}
    v_lshlrev_b32 v{vT0}, 2, v{vT0}
    s_mov_b64 exec, vcc
    ds_write_b32 v{vT0}, v{vT2} offset:{LIST}
    s_mov_b64 exec, -1
    s_branch K2_NOPAD
    K2_TAILPAD:
    v_lshlrev_b32 v{vT1}, 2, v{vLane}
    s_cmp_eq_u32 s{sWave}, 3
    s_cbranch_scc0 K2_TAILU
    s_lshl_b32 s{sT}, s{sCnt}, 2
    v_add_u32 v{vT0}, s{sT}, v{vT1}
    s_mov_b64 exec, 0xfffffff
    ds_write_b32 v{vT0}, v{vT2} offset:{LIST}
    s_mov_b64 exec, -1
    s_branch K2_NOPAD
    K2_TAILU:
    v_add_u32 v{vT0}, s{sCnt}, v{vT1}
    v_mov_b32 v{vT2}, {DUMMY*256 + 16*((DUMMY & 3) | (12*((DUMMY >> 2) & 1)))}
    s_mov_b64 exec, 0x7f
    ds_write_b32 v{vT0}, v{vT2} offset:{UNODE}
    s_mov_b64 exec, -1
    K2_NOPAD:
    s_add_u32 s3, s{sCnt}, 31
    s_lshr_b32 s3, s3, 5
    s_lshr_b32 s{sQ}, s3, 4
    s_and_b32 s{sRem}, s3, 15
    s_cmp_lt_u32 s{sWave}, s{sRem}
    s_cselect_b32 s{sNH}, 1, 0
    s_add_u32 s{sHB}, s{sQ}, s{sNH}
    s_min_u32 s3, s{sRem}, s{sWave}
    s_mul_i32 s{sT}, s{sQ}, s{sWave}
    s_add_u32 s{sT}, s{sT}, s3
    v_lshrrev_b32 v{vT0}, 4, v{vLane}
    s_lshl_b32 s3, s{sHB}, 1
    v_mul_u32_u24 v{vT0}, s3, v{vT0}
    s_lshl_b32 s3, s{sT}, 3
    v_add_u32 v{vT0}, s3, v{vT0}
    v_lshlrev_b32 v{vLA}, 4, v{vT0}
    v_lshlrev_b32 v{vUA}, 2, v{vT0}
    s_cmp_lt_u32 s{sWave}, 8
    s_cbranch_scc1 K2_SC_Q
    s_waitcnt lgkmcnt(0)
    """)
    for i in range(8):
        a(f"v_add_lshl_u32 v{vPos+i}, v{vPos+i}, v{vRkM+i}, 2")
    for i in range(8):
        m = mask(i)
        a(f"s_mov_b64 exec, s[{m}:{m+1}]")
        a(f"ds_write_b32 v{vPos+i}, v{vSoM+i} offset:{LIST}")
    a(f"""
    s_mov_b64 exec, -1
    s_cmp_eq_u64 s[{sM+14}:{sM+15}], 0
    s_cbranch_scc1 K2_SORT_DONE
    """)
    for i in range(4):
        a(f"ds_bpermute_b32 v{vPos+i}, v{vN4X+i}, v{vStart}")
    a("s_waitcnt lgkmcnt(0)")
    for i in range(4):
        a(f"""
        v_add_lshl_u32 v{vPos+i}, v{vPos+i}, v{vRkX+i}, 2
        s_mov_b64 exec, s[{sM2+2*i}:{sM2+2*i+1}]
        ds_write_b32 v{vPos+i}, v{vSoX+i} offset:{LIST}
        s_mov_b64 exec, -1
        """)
    a(f"""
    s_branch K2_SORT_DONE
    K2_SC_Q:
    {'s_waitcnt vmcnt(%d)' % (opt.pfn if opt.prefetch == 4 else 0) if opt.prefetch != 5 else ''}
    K2_SORT_DONE:
    """)
    st.stamp(a)
    a(f"""
    s_waitcnt lgkmcnt(0)
    s_barrier
    """)
    st.stamp(a)
    if "cyc" in opt.exp: st.stamp(a, True)
    if opt.prio in (1, 3): a("s_setprio 3")
    if opt.prio == 2:
        a(f"""
        s_cmp_ge_u32 s{sWave}, 4
        s_cbranch_scc0 K2_SP
        s_setprio 1
        s_cmp_ge_u32 s{sWave}, 8
        s_cbranch_scc0 K2_SP
        s_setprio 2
        s_cmp_ge_u32 s{sWave}, 12
        s_cbranch_scc0 K2_SP
        s_setprio 3
        K2_SP:
        """)
    a(f"""
    s_cmp_eq_u32 s{sHB}, 0
    s_cbranch_scc1 K2_NOMAIN
    ds_read_b128 {vr(vE,4)}, v{vLA} offset:{LIST}
    ds_read_b128 {vr(vE+4,4)}, v{vLA} offset:{LIST+16}
    ds_read_b64 {vr(vQC,2)}, v{vUA} offset:{UNODE}
    """)
    for i in range(8):
        a(f"v_mov_b32 v{vAcc+i}, 0")
    a("s_waitcnt lgkmcnt(1)")
    for u in range(8):
        a(f"v_add_u32 v{vE+u}, v{vE+u}, v{vC16}")
        a(f"buffer_load_dwordx4 {vr(vXA+4*u,4)}, v{vE+u}, s[{sX}:{sX+3}], 0 offen")
        if u == 0:
            a(f"""
            s_waitcnt lgkmcnt(0)
            v_xor_b32 v{vT0}, v{vQC}, v{vC16}
            v_xor_b32 v{vT1}, v{vQC+1}, v{vC16}
            ds_read_b128 {vr(vQ,4)}, v{vT0} offset:{QS}
            ds_read_b128 {vr(vQ+4,4)}, v{vT1} offset:{QS}
            v_mov_b32 v{vPrev}, v{vQC}
            """)
    if "bstamp" in opt.exp: st.stamp(a)
    wv_id = [0]
    def wv_dma():
        i = wv_id[0]; wv_id[0] += 1
        a(f"""
        s_cmp_eq_u32 s{sR}, 0
        s_cbranch_scc0 K2_NOWV{i}
        s_lshl_b32 s3, s{sWave}, 11
        s_add_u32 s{sT}, s3, {WV}
        s_mov_b32 m0, s{sT}
        s_add_u32 s{sT}, s{sT}, 1024
        buffer_load_dwordx4 v{vWl}, s[{sWV}:{sWV+3}], s3 offen lds
        s_mov_b32 m0, s{sT}
        s_add_u32 s3, s3, 1024
        buffer_load_dwordx4 v{vWl}, s[{sWV}:{sWV+3}], s3 offen lds
        K2_NOWV{i}:
        """)
    flush_id = [0]
    def flush(prev, masked):
        fid = flush_id[0]; flush_id[0] += 1
        t = ""
        if masked is not None:
            t += f"""
            v_cmp_ne_u32 vcc, v{masked}, v{prev}
            s_cbranch_vccz K2_FL{fid}
            s_mov_b64 exec, vcc
            """
        t += f"""
        v_and_b32 v{vT0}, 0xffffff00, v{prev}
        v_lshl_add_u32 v{vT0}, v{vT0}, 1, v{vPB}
        ds_write_b128 v{vT0}, {vr(vAcc,4)}
        ds_write_b128 v{vT0}, {vr(vAcc+4,4)} offset:256
        """
        if masked is not None:
            for i in range(8):
                t += f"v_mov_b32 v{vAcc+i}, 0\n"
            t += f"""
            s_mov_b64 exec, -1
            K2_FL{fid}:
            """
        return t
    def dots(X, waits):
        for half in range(2):
            a(waits[half])
            if "nodots" in opt.exp: continue
            for r in range(4):
                for u in range(4*half, 4*half+4):
                    if r == 0:
                        a(f"v_dot2_f32_bf16 v{vP+u}, v{X+4*u}, v{vQ+4*half}, 0")
                    else:
                        a(f"v_dot2c_f32_bf16 v{vP+u}, v{X+4*u+r}, v{vQ+4*half+r}")
    def chain(al):
        c = []
        for j in range(4):
            c.append(f"v_add_f32_dpp v{vP+j}, v{vP+j}, v{vP+j} row_mirror row_mask:0xf bank_mask:0x3")
        for j in range(4):
            c.append(f"v_add_f32_dpp v{vP+j}, v{vP+j+4}, v{vP+j+4} row_mirror row_mask:0xf bank_mask:0xc")
        for j in range(2):
            c.append(f"v_add_f32_dpp v{vP+j}, v{vP+j}, v{vP+j} row_half_mirror row_mask:0xf bank_mask:0x5")
        for j in range(2):
            c.append(f"v_add_f32_dpp v{vP+j}, v{vP+j+2}, v{vP+j+2} row_half_mirror row_mask:0xf bank_mask:0xa")
        c.append(f"v_add_f32_dpp v{vP+2}, v{vP}, v{vP} quad_perm:[1,0,3,2] row_mask:0xf bank_mask:0xf")
        c.append(f"v_add_f32_dpp v{vP+3}, v{vP+1}, v{vP+1} quad_perm:[1,0,3,2] row_mask:0xf bank_mask:0xf")
        c.append(f"v_cndmask_b32_e64 v{vP}, v{vP+2}, v{vP+3}, s[{sOdd}:{sOdd+1}]")
        c.append(f"v_add_f32_dpp v{vP}, v{vP}, v{vP} quad_perm:[2,3,0,1] row_mask:0xf bank_mask:0xf")
        if opt.mimic:
            c += [f"v_cvt_pk_bf16_f32 v{vP}, v{vP}, v{vP}", f"v_and_b32 v{vP}, 0xffff0000, v{vP}",
                  f"v_mul_f32 v{vP}, 0x3db504f3, v{vP}", f"v_cvt_pk_bf16_f32 v{vP}, v{vP}, v{vP}",
                  f"v_and_b32 v{vP}, 0xffff0000, v{vP}", f"v_mul_f32 v{vP}, 0xbfb8aa3b, v{vP}"]
        else:
            c.append(f"v_mul_f32 v{vP}, 0xbe0293ee, v{vP}")
        c += [f"v_exp_f32 v{vP}, v{vP}", f"v_add_f32 v{vP}, 1.0, v{vP}", f"v_rcp_f32 v{vP}, v{vP}",
              f"v_cvt_pk_bf16_f32 v{al}, v{vP}, 0", f"v_cvt_pk_bf16_f32 v{al+1}, 0, v{vP}"]
        return c
    def chain_alone(al):
        c = chain(al)
        gaps = {9: 1, 11: 1, 14: 2, 17 + (5 if opt.mimic else 0): 1, 19 + (5 if opt.mimic else 0): 1}
        for i, ins in enumerate(c):
            a(ins)
            if i in gaps: a(f"s_nop {gaps[i]-1}")
    def agg_stream(X, al, loads, Xdst, qp=None):
        out = []
        qp = vQP if qp is None else qp
        for half in range(2):
            if half == 0:
                out.append(('x', flush(vPrev, qp)))
            else:
                out.append(('x', "s_nop 1\n" + flush(qp, qp+1)))
            for u in range(4*half, 4*half+4):
                k = 4*(u >> 1) + (u & 1)
                for r in range(4):
                    if "noagg" in opt.exp:
                        out.append(('v', "s_nop 0")); out.append(('v', "s_nop 0")); continue
                    out.append(('v', f"v_dot2c_f32_bf16_dpp v{vAcc+2*r}, v{al}, v{X+4*u+r} row_newbcast:{k} row_mask:0xf bank_mask:0xf"))
                    out.append(('v', f"v_dot2c_f32_bf16_dpp v{vAcc+2*r+1}, v{al+1}, v{X+4*u+r} row_newbcast:{k} row_mask:0xf bank_mask:0xf"))
                if loads and "noload" not in opt.exp:
                    out.append(('x', f"buffer_load_dwordx4 {vr(Xdst+4*u,4)}, v{vE+u}, s[{sX}:{sX+3}], 0 offen"))
        return out
    def next_prep():
        a("s_waitcnt lgkmcnt(0)")
        a(f"v_xor_b32 v{vT0}, v{vQN}, v{vC16}")
        a(f"v_xor_b32 v{vT1}, v{vQN+1}, v{vC16}")
    def rotate(nxt):
        a(f"v_mov_b32 v{vQP}, v{vQC}")
        a(f"v_mov_b32 v{vQP+1}, v{vQC+1}")
        if nxt:
            a(f"v_mov_b32 v{vQC}, v{vQN}")
            a(f"v_mov_b32 v{vQC+1}, v{vQN+1}")
            a(f"v_add_u32 v{vLA}, 32, v{vLA}")
            a(f"v_add_u32 v{vUA}, 8, v{vUA}")
    def mid(cur, prev, al_cur, al_prev, nxt):
        a("s_waitcnt lgkmcnt(0)")
        if nxt:
            a(f"""
            ds_read_b128 {vr(vE,4)}, v{vLA} offset:{LIST+32}
            ds_read_b128 {vr(vE+4,4)}, v{vLA} offset:{LIST+48}
            ds_read_b64 {vr(vQN,2)}, v{vUA} offset:{UNODE+8}
            """)
        dots(cur, ("s_waitcnt vmcnt(4)", "s_waitcnt vmcnt(0)"))
        if nxt:
            next_prep()
            for u in range(8):
                a(f"v_add_u32 v{vE+u}, v{vE+u}, v{vC16}")
            a(f"ds_read_b128 {vr(vQ,4)}, v{vT0}")
            a(f"ds_read_b128 {vr(vQ+4,4)}, v{vT1}")
        else:
            a("s_nop 2")
        c = chain(al_cur)
        s_ = agg_stream(prev, al_prev, nxt, prev)
        nv = sum(1 for k, _ in s_ if k == 'v')
        ci, vi = 0, 0
        for k, t in s_:
            a(t)
            if k == 'v':
                vi += 1
                if ci < len(c) and vi >= (ci + 1) * nv // (len(c) + 1) and vi % 1 == 0:
                    a(c[ci]); ci += 1
        assert ci == len(c)
        a(f"v_mov_b32 v{vPrev}, v{vQP+1}")
        rotate(nxt)
    def final(X, al):
        for k, t in agg_stream(X, al, False, None):
            a(t)
        a("s_nop 2")
        a(flush(vQP+1, None))
        a("s_branch K2_MAIN_DONE")
    def roll_body(nxt):
        al = vAl[0]
        a("s_waitcnt lgkmcnt(0)")
        if nxt:
            a(f"""
            ds_read_b128 {vr(vE,4)}, v{vLA} offset:{LIST+32}
            ds_read_b128 {vr(vE+4,4)}, v{vLA} offset:{LIST+48}
            ds_read_b64 {vr(vQN,2)}, v{vUA} offset:{UNODE+8}
            """)
        dots(vXA, ("s_waitcnt vmcnt(4)", "s_waitcnt vmcnt(0)"))
        fill = []
        if nxt:
            next_prep()
            a(f"v_add_u32 v{vE}, v{vE}, v{vC16}")
            fill = [f"v_add_u32 v{vE+u}, v{vE+u}, v{vC16}" for u in range(1, 8)]
        else:
            a("s_nop 2")
        c = chain(al)
        gaps = {11: 1, 14: 2, 17 + (5 if opt.mimic else 0): 1, 19 + (5 if opt.mimic else 0): 1}
        for i, ins in enumerate(c):
            a(ins)
            if i == 3 and nxt:
                a(f"ds_read_b128 {vr(vQ,4)}, v{vT0} offset:{QS}")
                a(f"ds_read_b128 {vr(vQ+4,4)}, v{vT1} offset:{QS}")
            for _ in range(gaps.get(i, 0)):
                a(fill.pop(0) if fill else "s_nop 0")
        while fill: a(fill.pop(0))
        a("s_nop 0")
        for k, t in agg_stream(vXA, al, nxt, vXA, vQC):
            a(t)
        a(f"v_mov_b32 v{vPrev}, v{vQC+1}")
        if nxt:
            a(f"v_mov_b32 v{vQC}, v{vQN}")
            a(f"v_mov_b32 v{vQC+1}, v{vQN+1}")
            a(f"v_add_u32 v{vLA}, 32, v{vLA}")
            a(f"v_add_u32 v{vUA}, 8, v{vUA}")
    if opt.style == "roll":
        a(f"""
        s_cmp_eq_u32 s{sHB}, 1
        s_cbranch_scc1 K2_LAST
        K2_LOOP:
        """)
        if opt.prio == 1:
            a(f"""
            s_cmp_ge_u32 s{sHB}, 4
            s_cbranch_scc1 K2_PR0
            s_setprio 2
            s_cmp_eq_u32 s{sHB}, 3
            s_cbranch_scc1 K2_PR0
            s_setprio 1
            K2_PR0:
            """)
        if opt.prio == 3:
            a(f"""
            s_cmp_ge_u32 s{sHB}, 3
            s_cbranch_scc1 K2_PR0
            s_setprio 2
            K2_PR0:
            """)
        roll_body(True)
        a(f"""
        s_sub_u32 s{sHB}, s{sHB}, 1
        s_cmp_gt_u32 s{sHB}, 1
        s_cbranch_scc1 K2_LOOP
        K2_LAST:
        """)
        if opt.prio == 1: a("s_setprio 0")
        if opt.prio == 3: a("s_setprio 1")
        roll_body(False)
        a("s_nop 2")
        a(flush(vPrev, None))
    else:
        def body2(cur, oth, qc, qn, first, has1, has2):
            al = vAl[0]
            a("s_waitcnt lgkmcnt(0)")
            if has1:
                a(f"ds_read_b64 {vr(qn,2)}, v{vUA} offset:{UNODE+8}")
                if first:
                    a(f"ds_read_b128 {vr(vE,4)}, v{vLA} offset:{LIST+32}")
                    a(f"ds_read_b128 {vr(vE+4,4)}, v{vLA} offset:{LIST+48}")
            if has2 and not first:
                a(f"ds_read_b128 {vr(vE,4)}, v{vLA} offset:{LIST+64}")
                a(f"ds_read_b128 {vr(vE+4,4)}, v{vLA} offset:{LIST+80}")
            if first or not has1: waits = ("s_waitcnt vmcnt(4)", "s_waitcnt vmcnt(0)")
            else: waits = ("s_waitcnt vmcnt(12)", "s_waitcnt vmcnt(8)")
            dots(cur, waits)
            fill = []
            if has1:
                a("s_waitcnt lgkmcnt(0)")
                a(f"v_xor_b32 v{vT0}, v{qn}, v{vC16}")
                a(f"v_xor_b32 v{vT1}, v{qn+1}, v{vC16}")
                if first:
                    for u in range(8):
                        a(f"v_add_u32 v{vE+u}, v{vE+u}, v{vC16}")
                        a(f"buffer_load_dwordx4 {vr(oth+4*u,4)}, v{vE+u}, s[{sX}:{sX+3}], 0 offen")
                    if has2:
                        a(f"ds_read_b128 {vr(vE,4)}, v{vLA} offset:{LIST+64}")
                        a(f"ds_read_b128 {vr(vE+4,4)}, v{vLA} offset:{LIST+80}")
                elif has2:
                    a(f"v_add_u32 v{vE}, v{vE}, v{vC16}")
                    fill = [f"v_add_u32 v{vE+u}, v{vE+u}, v{vC16}" for u in range(1, 8)]
                else:
                    a("s_nop 0")
            else:
                a("s_nop 2")
            c = chain(al)
            gaps = {11: 1, 14: 2, 17 + (5 if opt.mimic else 0): 1, 19 + (5 if opt.mimic else 0): 1}
            for i, ins in enumerate(c):
                a(ins)
                if i == 3 and has1:
                    a(f"ds_read_b128 {vr(vQ,4)}, v{vT0} offset:{QS}")
                    a(f"ds_read_b128 {vr(vQ+4,4)}, v{vT1} offset:{QS}")
                for _ in range(gaps.get(i, 0)):
                    a(fill.pop(0) if fill else "s_nop 0")
            while fill: a(fill.pop(0))
            if first and has2:
                a("s_waitcnt lgkmcnt(2)")
                for u in range(8):
                    a(f"v_add_u32 v{vE+u}, v{vE+u}, v{vC16}")
            else:
                a("s_nop 0")
            for k, t in agg_stream(cur, al, has2, cur, qc):
                a(t)
            a(f"v_mov_b32 v{vPrev}, v{qc+1}")
            if has1:
                a(f"v_add_u32 v{vLA}, 32, v{vLA}")
                a(f"v_add_u32 v{vUA}, 8, v{vUA}")
        def last2(cur, oth, qc, qn):
            if opt.prio: a("s_setprio 0")
            body2(cur, oth, qc, qn, False, False, False)
            a("s_nop 2")
            a(flush(vPrev, None))
            a("s_branch K2_MAIN_DONE")
        qA, qB = vQC, vQN
        a(f"""
        s_cmp_eq_u32 s{sHB}, 1
        s_cbranch_scc1 K2_LA
        s_cmp_eq_u32 s{sHB}, 2
        s_cbranch_scc1 K2_F2
        """)
        body2(vXA, vXB, qA, qB, True, True, True)
        a(f"""
        s_sub_u32 s{sHB}, s{sHB}, 1
        K2_LOOP:
        s_cmp_eq_u32 s{sHB}, 2
        s_cbranch_scc1 K2_PB
        """)
        if opt.prio: a("s_setprio 2")
        body2(vXB, vXA, qB, qA, False, True, True)
        a(f"""
        s_sub_u32 s{sHB}, s{sHB}, 1
        s_cmp_eq_u32 s{sHB}, 2
        s_cbranch_scc1 K2_PA
        """)
        body2(vXA, vXB, qA, qB, False, True, True)
        a(f"""
        s_sub_u32 s{sHB}, s{sHB}, 1
        s_branch K2_LOOP
        K2_PB:
        """)
        if opt.prio: a("s_setprio 1")
        body2(vXB, vXA, qB, qA, False, True, False)
        a("K2_LA:")
        last2(vXA, vXB, qA, qB)
        a("K2_PA:")
        if opt.prio: a("s_setprio 1")
        body2(vXA, vXB, qA, qB, False, True, False)
        a("K2_LB:")
        last2(vXB, vXA, qB, qA)
        a("K2_F2:")
        body2(vXA, vXB, qA, qB, True, True, False)
        a("s_branch K2_LB")
    a("s_branch K2_MAIN_DONE")
    a("K2_NOMAIN:")
    a("K2_MAIN_DONE:")
    if opt.prio: a("s_setprio 0")
    if "cyc" in opt.exp: st.stamp(a, True)
    st.stamp(a)
    a(f"""
    s_cmp_eq_u32 s{sR}, 0
    s_cbranch_scc0 K2_NRDONE
    v_mov_b32 v{vT3}, {MAXC}
    ds_read_b32 v{vT3}, v{vT3}
    s_waitcnt lgkmcnt(0)
    v_readfirstlane_b32 s3, v{vT3}
    s_nop 3
    s_min_u32 s3, s3, {CH}
    s_add_u32 s3, s3, 7
    s_lshr_b32 s3, s3, 3
    s_add_u32 s{sNR}, s3, 1
    K2_NRDONE:
    """)
    vSf, vSl = vE, vE+1
    a(f"""
    s_cmp_eq_u32 s{sWave}, 0
    s_cbranch_scc0 K2_NOTBL
    s_add_u32 s3, s{sQ}, 1
    s_lshl_b32 s3, s3, 1
    v_cvt_f32_u32 v{vT0}, s3
    s_mul_i32 s3, s3, s{sRem}
    s_lshl_b32 s{sP}, s3, 2
    s_lshl_b32 s3, s{sQ}, 1
    v_cvt_f32_u32 v{vT1}, s3
    v_rcp_f32 v{vT0}, v{vT0}
    v_rcp_f32 v{vT1}, v{vT1}
    s_lshl_b32 s3, s{sRem}, 2
    """)
    for (dst, last) in ((vSf, False), (vSl, True)):
        if not last:
            a(f"v_lshrrev_b32 v{vT2}, 2, v{vStart}")
        else:
            a(f"""
            v_add_u32 v{vT2}, v{vStart}, v{vPc}
            v_lshrrev_b32 v{vT2}, 2, v{vT2}
            v_add_u32 v{vT2}, -1, v{vT2}
            """)
        a(f"""
        v_cmp_gt_u32 vcc, s{sP}, v{vT2}
        v_cvt_f32_u32 v{vT3}, v{vT2}
        v_add_f32 v{vT3}, 0.5, v{vT3}
        v_mul_f32 v{vT3}, v{vT3}, v{vT0}
        v_cvt_u32_f32 v{vT3}, v{vT3}
        v_subrev_u32 v{vT2}, s{sP}, v{vT2}
        v_cvt_f32_u32 v{vT2}, v{vT2}
        v_add_f32 v{vT2}, 0.5, v{vT2}
        v_mul_f32 v{vT2}, v{vT2}, v{vT1}
        v_cvt_u32_f32 v{vT2}, v{vT2}
        v_add_u32 v{vT2}, s3, v{vT2}
        v_cndmask_b32_e64 v{dst}, v{vT2}, v{vT3}, vcc
        """)
    a(f"""
    v_sub_u32 v{vT0}, v{vSl}, v{vSf}
    v_add_u32 v{vT0}, 1, v{vT0}
    v_cmp_lt_u32 vcc, 0, v{vPc}
    v_add_u32 v{vT1}, v{vSf}, v{vLane}
    v_lshlrev_b32 v{vT1}, 9, v{vT1}
    v_cndmask_b32_e64 v{vT0}, 0, v{vT0}, vcc
    v_add_u32 v{vT1}, {PIECE}, v{vT1}
    v_lshlrev_b32 v{vT3}, 2, v{vLane}
    v_mov_b32 v{vT2}, {ZROW}
    ds_write_b32 v{vT3}, v{vT0} offset:{NPC}
    """)
    for j in range(4):
        a(f"""
        v_cmp_lt_u32 vcc, {j}, v{vT0}
        v_add_u32 v{vT3}, {512*j}, v{vT1}
        s_nop 0
        v_cndmask_b32_e64 v{vE+4+j}, v{vT2}, v{vT3}, vcc
        """)
    a(f"""
    v_lshlrev_b32 v{vT0}, 4, v{vLane}
    ds_write_b128 v{vT0}, {vr(vE+4,4)} offset:{TBL}
    K2_NOTBL:
    """)
    vA8 = vXB
    a(f"""
    s_cmp_ge_u32 s{sWave}, 8
    s_cbranch_scc1 K2_NOAA
    s_and_b32 s{sP}, s{sWave}, 3
    s_lshr_b32 s{sNH}, s{sWave}, 2
    """)
    tile_a_addr(a, vWa, vLane, vT2, vT3, sP, WV)
    for ks in range(8):
        if ks == 6: a("s_waitcnt lgkmcnt(4)")
        a(f"ds_read_b64_tr_b16 {vr(vA8+4*ks,2)}, v{vWa} offset:{ks*4096}")
        a(f"ds_read_b64_tr_b16 {vr(vA8+4*ks+2,2)}, v{vWa} offset:{ks*4096 + 1024}")
    a(f"""
    v_and_b32 v{vRow}, 31, v{vLane}
    s_lshl_b32 s3, s{sNH}, 5
    v_add_u32 v{vRow}, s3, v{vRow}
    """)
    tile_b_addr(a, vBa, vRow, vLane, vT3)
    vTa, vNa, vWb, vOut = 80, 81, 82, 83
    for ks in range(8):
        a(f"v_xor_b32 v{vQ+ks}, {32*ks}, v{vBa}")
    a(f"""
    s_mul_i32 s3, s{sBeta}, {T*256}
    s_lshl_b32 s{sCnt}, s{sP}, 6
    s_add_u32 s3, s3, s{sCnt}
    v_lshrrev_b32 v{vT0}, 5, v{vLane}
    v_lshlrev_b32 v{vOut}, 8, v{vRow}
    v_lshl_add_u32 v{vOut}, v{vT0}, 5, v{vOut}
    v_add_u32 v{vOut}, s3, v{vOut}
    K2_NOAA:
    v_lshrrev_b32 v{vT0}, 4, v{vLane}
    s_lshl_b32 s3, s{sWave}, 2
    v_add_u32 v{vT0}, s3, v{vT0}
    v_lshlrev_b32 v{vTa}, 4, v{vT0}
    v_lshlrev_b32 v{vNa}, 2, v{vT0}
    v_xor_b32 v{vWb}, v{vTa}, v{vC16}
    v_and_b32 v{vWb}, 0xf0, v{vWb}
    v_lshl_add_u32 v{vWb}, v{vT0}, 8, v{vWb}
    s_waitcnt lgkmcnt(0)
    s_barrier
    """)
    st.stamp(a)
    vB = vE
    vRd = vXA
    vNp = vT3
    a(f"""
    s_cmp_ge_u32 s{sWave}, 13
    s_cbranch_scc1 K2_RED_DONE
    ds_read_b128 {vr(vB,4)}, v{vTa} offset:{TBL}
    ds_read_b32 v{vNp}, v{vNa} offset:{NPC}
    s_waitcnt lgkmcnt(0)
    """)
    for j in range(3):
        a(f"""
        v_add_u32 v{vB+j}, v{vB+j}, v{vC16}
        ds_read_b128 {vr(vRd+8*j,4)}, v{vB+j}
        ds_read_b128 {vr(vRd+8*j+4,4)}, v{vB+j} offset:256
        """)
    for j in range(3):
        a(f"s_waitcnt lgkmcnt({4-2*j})")
        for i in range(8):
            a(f"v_add_f32 v{vTot+i}, v{vTot+i}, v{vRd+8*j+i}")
    a(f"""
    s_mov_b32 s{sT}, 3
    K2_XL:
    v_cmp_lt_u32 vcc, s{sT}, v{vNp}
    s_cbranch_vccz K2_RED_DONE
    s_lshl_b32 s3, s{sT}, 9
    v_add_u32 v{vT0}, s3, v{vB}
    s_mov_b64 exec, vcc
    ds_read_b128 {vr(vRd,4)}, v{vT0}
    ds_read_b128 {vr(vRd+4,4)}, v{vT0} offset:256
    s_waitcnt lgkmcnt(0)
    """)
    for i in range(8):
        a(f"v_add_f32 v{vTot+i}, v{vTot+i}, v{vRd+i}")
    a(f"""
    s_mov_b64 exec, -1
    s_add_u32 s{sT}, s{sT}, 1
    s_branch K2_XL
    K2_RED_DONE:
    s_add_u32 s{sR}, s{sR}, 1
    s_cmp_ge_u32 s{sR}, s{sNR}
    s_cbranch_scc1 K2_EPI
    s_barrier
    """)
    a(f"""
    s_cmp_ge_u32 s{sWave}, 4
    s_cbranch_scc1 K2_RZ
    v_mov_b32 v{vT2}, 0
    v_lshlrev_b32 v{vT3}, 2, v0
    ds_write_b32 v{vT3}, v{vT2} offset:{HIST}
    K2_RZ:
    v_bfe_u32 v{vT2}, v{vLane}, 2, 1
    v_mul_u32_u24 v{vT2}, 12, v{vT2}
    v_and_b32 v{vT3}, 3, v{vLane}
    v_or_b32 v{vT2}, v{vT2}, v{vT3}
    v_lshlrev_b32 v{vUA}, 8, v{vLane}
    v_lshl_or_b32 v{vUA}, v{vT2}, 4, v{vUA}
    s_waitcnt lgkmcnt(0)
    s_barrier
    s_cmp_lt_u32 s{sWave}, 8
    s_cbranch_scc1 K2_HDRD
    """)
    for i in range(8): a(f"v_mov_b32 v{vW+i}, {EMPTY}")
    a(f"""
    v_subrev_u32 v{vT0}, 512, v0
    v_and_b32 v{vT1}, 1, v{vT0}
    v_lshrrev_b32 v{vT0}, 1, v{vT0}
    v_lshlrev_b32 v{vT2}, 2, v{vT0}
    v_add_u32 v{vT2}, {MF}, v{vT2}
    ds_read_b32 v{vT3}, v{vT2}
    v_lshlrev_b32 v{vT0}, 14, v{vT0}
    v_add_u32 v{vT0}, {WS_OVF}, v{vT0}
    s_lshl_b32 s3, s{sR}, 3
    s_sub_u32 s3, s3, 8
    v_lshl_add_u32 v{vT1}, v{vT1}, 2, s3
    v_lshl_add_u32 v{vT0}, v{vT1}, 3, v{vT0}
    s_mov_b32 s{sQ}, {1 << TAGSH}
    s_mov_b32 s{sT}, {1 << 17}
    s_waitcnt lgkmcnt(0)
    v_sub_u32 v{vT3}, v{vT3}, v{vT1}
    v_cmp_lt_i32 vcc, 0, v{vT3}
    s_and_saveexec_b64 s[{sSave}:{sSave+1}], vcc
    s_cbranch_execz K2_R1
    v_cmp_lt_i32 s[{sM}:{sM+1}], 1, v{vT3}
    v_cmp_lt_i32 s[{sM+2}:{sM+3}], 2, v{vT3}
    v_cmp_lt_i32 s[{sM+4}:{sM+5}], 3, v{vT3}
    K2_RP:
    buffer_load_dwordx4 {vr(vSoM,4)}, v{vT0}, s[{sWS}:{sWS+3}], 0 offen sc1
    buffer_load_dwordx4 {vr(vSoM+4,4)}, v{vT0}, s[{sWS}:{sWS+3}], 0 offen offset:16 sc1
    s_waitcnt vmcnt(0)
    """)
    for i in range(8): a(f"v_xor_b32 v{vSoM+i}, s{sTag}, v{vSoM+i}")
    a(f"v_or_b32 v{vT1}, v{vSoM}, v{vSoM+1}")
    for k in range(1, 4):
        a(f"""
        v_or_b32 v{vT2}, v{vSoM+2*k}, v{vSoM+2*k+1}
        v_cndmask_b32_e64 v{vT2}, 0, v{vT2}, s[{sM+2*(k-1)}:{sM+2*(k-1)+1}]
        v_or_b32 v{vT1}, v{vT1}, v{vT2}
        """)
    a(f"""
    v_cmp_le_u32 vcc, s{sQ}, v{vT1}
    s_cbranch_vccz K2_RPD
    s_sleep 2
    s_sub_u32 s{sT}, s{sT}, 1
    s_cmp_lg_u32 s{sT}, 0
    s_cbranch_scc1 K2_RP
    K2_RPD:
    v_cmp_eq_u32 vcc, s{sBeta}, v{vSoM+1}
    s_nop 1
    v_cndmask_b32_e64 v{vW}, v{vW}, v{vSoM}, vcc
    """)
    for k in range(1, 4):
        a(f"""
        v_cmp_eq_u32 vcc, s{sBeta}, v{vSoM+2*k+1}
        s_nop 0
        s_and_b64 vcc, vcc, s[{sM+2*(k-1)}:{sM+2*(k-1)+1}]
        s_nop 1
        v_cndmask_b32_e64 v{vW+k}, v{vW+k}, v{vSoM+2*k}, vcc
        """)
    a(f"""
    K2_R1:
    s_mov_b64 exec, s[{sSave}:{sSave+1}]
    v_mov_b32 v{vT3}, 1
    s_branch K2_DECODE
    K2_EPI:
    """)
    st.stamp(a)
    vAcc16, vB8 = 24, vXA
    a(f"""
    s_cmp_ge_u32 s{sWave}, 13
    s_cbranch_scc1 K2_WB_DONE
    """)
    for i in range(4):
        a(f"v_cvt_pk_bf16_f32 v{vE+i}, v{vTot+2*i}, v{vTot+2*i+1}")
    a(f"""
    ds_write_b128 v{vWb}, {vr(vE,4)} offset:{AGGB}
    K2_WB_DONE:
    s_waitcnt lgkmcnt(0)
    s_barrier
    s_cmp_ge_u32 s{sWave}, 8
    s_cbranch_scc1 K2_FIN
    """)
    a(f"v_mov_b32 v{vE}, v{vOut}")
    for ks in range(8):
        a(f"ds_read_b128 {vr(vB8+4*ks,4)}, v{vQ+ks} offset:{AGGB}")
    a(f"v_cmp_gt_u32 vcc, {T}, v{vRow}")
    for ks in range(8):
        a(f"s_waitcnt lgkmcnt({7-ks})")
        c = "0" if ks == 0 else vr(vAcc16,16)
        a(f"v_mfma_f32_32x32x16_bf16 {vr(vAcc16,16)}, {vr(vA8+4*ks,4)}, {vr(vB8+4*ks,4)}, {c}")
    a("s_nop 7")
    a("s_nop 3")
    for i in range(8):
        a(f"v_cvt_pk_bf16_f32 v{vQ+i}, v{vAcc16+2*i}, v{vAcc16+2*i+1}")
    a(f"""
    s_and_saveexec_b64 s[{sSave}:{sSave+1}], vcc
    s_cbranch_execz K2_ST_DONE
    buffer_store_dwordx4 {vr(vQ,4)}, v{vE}, s[{sOUT}:{sOUT+3}], 0 offen {opt.outst}
    buffer_store_dwordx4 {vr(vQ+4,4)}, v{vE}, s[{sOUT}:{sOUT+3}], 0 offen offset:16 {opt.outst}
    K2_ST_DONE:
    s_mov_b64 exec, s[{sSave}:{sSave+1}]
    K2_FIN:
    s_cmp_eq_u32 s2, 0
    s_cbranch_scc0 K2_NOEPOCH
    s_cmp_eq_u32 s{sWave}, 15
    s_cbranch_scc0 K2_NOEPOCH
    v_mov_b32 v{vT0}, 0
    v_mov_b32 v{vT1}, s{sTag}
    s_mov_b64 exec, 1
    buffer_store_dword v{vT1}, v{vT0}, s[{sWS}:{sWS+3}], 0 offen sc1
    s_mov_b64 exec, -1
    K2_NOEPOCH:
    """)
    st.stamp(a)
    if opt.stamps:
        a("s_waitcnt vmcnt(0)")
        st.stamp(a)
    st.flush(a, sWS, vT0, sWave)
    a("""
    K2_END:
    s_endpgm
    """)
    return a.text(), LDS, 128

DESCRIPTION = """;
;   out[n] = bf16( sum_{e: dst[e] = n} sigmoid(x[src[e]] . Q[n] / sqrt(128)) * x[src[e]] ) @ w_v,   Q = bf16(x @ w_q)
"""

def build(opt):
    k, lds, v = gen_k(opt)
    n = NAME + "_kernel"
    out = HEADER + DESCRIPTION
    for _ in range(opt.rep):
        out += f"; @launch kernel={n} grid=({NB},1,1) block=(1024,1,1) lds={lds}\n" if opt.aslist or opt.rep > 1 else f"; @launch grid=({NB},1,1) block=(1024,1,1) lds={lds}\n"
    out += '.amdgcn_target "amdgcn-amd-amdhsa--gfx950"\n.text\n'
    out += f".globl {n}\n.p2align 8\n.type {n},@function\n" + k
    out += '.section .rodata,"a"\n.p2align 6\n' + kd(n, v)
    return out

def parse(argv=None):
    p = argparse.ArgumentParser()
    p.add_argument("-o", default="cdna_kernels/" + NAME + ".s")
    p.add_argument("--stamps", action="store_true")
    p.add_argument("--prefetch", type=int, default=5)
    p.add_argument("--mimic", type=int, default=0)
    p.add_argument("--prio", type=int, default=3)
    p.add_argument("--keep", default="")
    p.add_argument("--exp", default="")
    p.add_argument("--outst", default="")
    p.add_argument("--sleep", type=int, default=2)
    p.add_argument("--drain", type=int, default=0)
    p.add_argument("--sleep2", type=int, default=0)
    p.add_argument("--pfn", type=int, default=3)
    p.add_argument("--pfsh", type=int, default=7)
    p.add_argument("--pfsleep", type=int, default=0)
    p.add_argument("--wsbase", type=lambda x: int(x, 0), default=0)
    p.add_argument("--cst", default="sc1")
    p.add_argument("--dmalate", type=int, default=0)
    p.add_argument("--rep", type=int, default=1)
    p.add_argument("--aslist", type=int, default=0)
    p.add_argument("--style", default="roll")
    return p.parse_args(argv)

if __name__ == "__main__":
    o = parse()
    open(o.o, "w").write(build(o))
    print("wrote", o.o)
```

```python
import sys, argparse
from gen import A, vr, Stamps, scan64, kd, HEADER, NAME

N, E, D = 12500, 400000, 128
T = 49
NB = 256
CH = 1564
C = 256
XBYTES = N * 256
EBYTES = E * 4
WS_NONCE = 0
WS_OVH = 0x1000
WS_EXTRA = 0x40000
WS_CELLS = 0x100000
CELLROW = 16384
WS_OVF = 0x500000
OVF_STRIDE = 16384
WS_USED = WS_OVF + 256 * OVF_STRIDE
TAGSH = 23
EMPTY = 0x3f
WS_STAMP = 0x1000000
OOB = 0x40000000
DUMMY = 49

def srd_tail(a, d, size):
    a(f"s_mov_b32 s{d+2}, {size}")
    a(f"s_mov_b32 s{d+3}, 0x00020000")

def tile_a_addr(a, vdst, vlane, t0, t1, sP, wbase):
    a(f"""
    v_bfe_u32 v{t0}, v{vlane}, 2, 2
    v_lshrrev_b32 v{t1}, 5, v{vlane}
    v_lshl_add_u32 v{vdst}, v{t1}, 3, v{t0}
    v_lshlrev_b32 v{vdst}, 8, v{vdst}
    v_xor_b32 v{t0}, s{sP}, v{t0}
    v_lshl_add_u32 v{vdst}, v{t0}, 6, v{vdst}
    v_bfe_u32 v{t0}, v{vlane}, 4, 1
    v_bfe_u32 v{t1}, v{vlane}, 1, 1
    v_lshl_add_u32 v{t0}, v{t0}, 1, v{t1}
    v_and_b32 v{t1}, 1, v{vlane}
    v_lshl_add_u32 v{t0}, v{t1}, 2, v{t0}
    v_lshl_add_u32 v{vdst}, v{t0}, 3, v{vdst}
    v_add_u32 v{vdst}, {wbase}, v{vdst}
    """)

def tile_b_addr(a, vdst, vrow, vlane, t0):
    a(f"""
    v_lshrrev_b32 v{t0}, 5, v{vlane}
    v_xor_b32 v{t0}, v{t0}, v{vrow}
    v_and_b32 v{t0}, 15, v{t0}
    v_lshlrev_b32 v{t0}, 4, v{t0}
    v_lshl_add_u32 v{vdst}, v{vrow}, 8, v{t0}
    """)

def gen_k(opt):
    a = A()
    HIST, MAXC, ZROW, TBL = 0, 256, 512, 1024
    NPC = TBL + 1024
    LIST = NPC + 256
    LISTW = 6144
    UNODE = LIST + LISTW * 4
    QS = UNODE + 1536 * 4
    AGGB = QS + 52 * 256
    PIECE = AGGB + 64 * 256
    XT = PIECE
    WQ = XT + 16384
    WV = PIECE + (DUMMY + 64) * 512
    LDS = WV + 32768
    assert WQ + 32768 <= WV
    st = Stamps(opt.stamps, 64, WS_STAMP + 0x40000, [int(x) for x in opt.keep.split(',')] if opt.keep else None)
    sX, sWQ, sWV, sOUT, sWS = 4, 8, 12, 16, 20
    sBeta, sWave, sR, sNR = 24, 25, 26, 27
    sOdd = 28
    sBeta24, sHB, sP, sNH, s196 = 30, 31, 32, 33, 34
    sM = 36
    sSave = 50
    sCnt, sQ, sRem, sT = 52, 53, 54, 55
    vC16, vPB, vLA, vUA, vPrev = 1, 2, 3, 4, 5
    vQP, vQC, vQN = 6, 8, 10
    vAl = (12, 14)
    vQB = 16
    vT0, vT1, vT2, vT3 = 17, 18, 19, 20
    vLane, vStart, vPc = 21, 22, 23
    vAcc, vP, vE, vQ = 24, 32, 40, 48
    vXA, vXB, vTot = 56, 88, 120
    vCand, vHdr, vSo, vN4, vRk = 56, 60, 64, 72, 80
    vCnt = 47
    vHdr2, vSo2, vN42, vRk2 = 88, 92, 96, 100
    sM2 = 56
    vWl = 6
    vWa, vBa, vRow, vQst = 12, 13, 14, 15
    HP = LDS
    OVC, JUNK = HP + 1024, HP + 1040
    H2 = HP + 1280
    ST2 = H2 + 256
    MF = ST2 + 1024
    LDS = MF + 1024
    OVL = LIST
    OVB = LIST + 8192
    STAGE = AGGB
    sSRC, sDST, sNonce, sPi = 56, 60, 35, 3
    sTag = 30
    vDst, vSrc, vEnt, vAdr, vRank, vNeg, vNon, vGo = 56, 58, 60, 62, 64, 68, 66, 67
    vBk = 76
    a(f"""
    {NAME}_kernel:
    s_cmp_ge_u32 s2, {NB}
    s_cbranch_scc1 K2_END
    s_load_dwordx2 s[{sWS}:{sWS+1}], s[0:1], 56
    s_load_dwordx2 s[{sDST}:{sDST+1}], s[0:1], 16
    s_load_dwordx2 s[{sSRC}:{sSRC+1}], s[0:1], 8
    s_load_dwordx2 s[{sX}:{sX+1}], s[0:1], 0
    s_load_dwordx2 s[{sWQ}:{sWQ+1}], s[0:1], 24
    s_load_dwordx2 s[{sWV}:{sWV+1}], s[0:1], 32
    s_load_dwordx2 s[{sOUT}:{sOUT+1}], s[0:1], 40
    """)
    st.stamp(a)
    srd_tail(a, sWS, WS_USED if not opt.stamps else 0x2000000)
    srd_tail(a, sDST, EBYTES); srd_tail(a, sSRC, EBYTES); srd_tail(a, sX, XBYTES); srd_tail(a, sWQ, 32768)
    a(f"""
    v_lshrrev_b32 v{vT0}, 6, v0
    s_mov_b32 s{sBeta}, s2
    s_mul_i32 s3, s2, {CH*4}
    v_readfirstlane_b32 s{sWave}, v{vT0}
    v_lshlrev_b32 v{vT2}, 3, v0
    v_add_u32 v{vT2}, s3, v{vT2}
    s_movk_i32 s{sT}, {CH//2}
    s_cmp_eq_u32 s2, {C-1}
    s_cselect_b32 s{sT}, {(E - (C-1)*CH)//2}, s{sT}
    v_mov_b32 v{vT3}, 0
    v_cmp_gt_u32 vcc, s{sT}, v0
    s_and_saveexec_b64 s[{sSave}:{sSave+1}], vcc
    s_waitcnt lgkmcnt(0)
    {("s_add_u32 s%d, s%d, %d" % (sWS, sWS, opt.wsbase)) if opt.wsbase else ""}
    {("s_addc_u32 s%d, s%d, 0" % (sWS+1, sWS+1)) if opt.wsbase else ""}
    s_cbranch_execz K1_NOEDGE0
    buffer_load_dwordx2 {vr(vDst,2)}, v{vT2}, s[{sDST}:{sDST+3}], 0 offen
    buffer_load_dwordx2 {vr(vSrc,2)}, v{vT2}, s[{sSRC}:{sSRC+3}], 0 offen
    K1_NOEDGE0:
    s_mov_b64 exec, s[{sSave}:{sSave+1}]
    buffer_load_dword v{vNon}, v{vT3}, s[{sWS}:{sWS+3}], 0 offen sc1
    """)
    a(f"""
    v_and_b32 v{vLane}, 63, v0
    v_bfe_u32 v{vT0}, v0, 4, 2
    v_and_b32 v{vT1}, 15, v0
    v_lshlrev_b32 v{vC16}, 4, v{vT1}
    """)
    a(f"""
    v_mov_b32 v{vNeg}, {EMPTY}
    v_mov_b32 v{vNeg+1}, {EMPTY}
    v_mov_b32 v{vNeg+2}, {EMPTY}
    v_mov_b32 v{vNeg+3}, {EMPTY}
    v_lshlrev_b32 v{vT2}, 4, v0
    ds_write_b128 v{vT2}, {vr(vNeg,4)} offset:{STAGE}
    s_cmp_eq_u32 s{sWave}, 12
    s_cbranch_scc0 K1_NOS2
    v_lshlrev_b32 v{vT3}, 4, v{vLane}
    v_add_u32 v{vT3}, {ST2}, v{vT3}
    ds_write_b128 v{vT3}, {vr(vNeg,4)}
    K1_NOS2:
    v_mov_b32 v{vT2}, 0
    v_lshlrev_b32 v{vT3}, 2, v0
    s_cmp_ge_u32 s{sWave}, 6
    s_cbranch_scc1 K1_NOZ0
    v_add_u32 v{vT3}, {HP}, v{vT3}
    ds_write_b32 v{vT3}, v{vT2}
    s_branch K1_NOZ1
    K1_NOZ0:
    s_sub_u32 s3, s{sWave}, 8
    s_cmp_ge_u32 s3, 4
    s_cbranch_scc1 K1_NOZ2
    v_add_u32 v{vT3}, {HIST - 2048}, v{vT3}
    ds_write_b32 v{vT3}, v{vT2}
    s_branch K1_NOZ1
    K1_NOZ2:
    s_cmp_lt_u32 s{sWave}, 12
    s_cbranch_scc1 K1_NOZ1
    v_add_u32 v{vT3}, {MF - 3072}, v{vT3}
    ds_write_b32 v{vT3}, v{vT2}
    K1_NOZ1:
    s_mov_b32 s{sR}, 0
    s_mov_b32 s{sOdd}, 0xaaaaaaaa
    s_mov_b32 s{sOdd+1}, 0xaaaaaaaa
    s_movk_i32 s{s196}, {T*4}
    s_lshl_b32 s3, s{sWave}, 11
    s_add_u32 s3, s3, {PIECE}
    v_lshl_add_u32 v{vPB}, v{vT0}, 9, s3
    v_add_u32 v{vPB}, v{vPB}, v{vC16}
    s_and_b32 s{sPi}, s2, 7
    s_lshl_b32 s{sPi}, s{sPi}, 5
    s_lshr_b32 s{sT}, s2, 3
    s_add_u32 s{sPi}, s{sPi}, s{sT}
    s_mov_b32 s{sHB}, s{sPi}
    v_lshrrev_b32 v{vT2}, 2, v0
    v_lshlrev_b32 v{vGo}, 14, v{vT2}
    v_and_b32 v{vT2}, 3, v0
    v_lshl_add_u32 v{vGo}, v{vT2}, 4, v{vGo}
    v_mov_b32 v{vT3}, 1
    s_waitcnt lgkmcnt(0)
    s_barrier
    """)
    st.stamp(a)
    def early_dma():
        a(f"""
        v_bfe_u32 v{vT0}, v0, 4, 2
        v_and_b32 v{vT1}, 15, v0
        v_lshlrev_b32 v{vT2}, 2, v{vT0}
        v_xor_b32 v{vT2}, v{vT2}, v{vT1}
        v_lshlrev_b32 v{vT2}, 4, v{vT2}
        v_lshl_add_u32 v{vWl}, v{vT0}, 8, v{vT2}
        s_cmp_lt_u32 s{sWave}, 8
        s_cbranch_scc1 K2_L2
        s_sub_u32 s{sQ}, s{sWave}, 8
        """)
        def xt_dma(jreg):
            a(f"""
            s_lshl_b32 s3, s{jreg}, 2
            v_add_u32 v{vT2}, s3, v{vT0}
            v_xor_b32 v{vEnt}, v{vT2}, v{vT1}
            v_and_b32 v{vEnt}, 15, v{vEnt}
            v_lshlrev_b32 v{vEnt}, 4, v{vEnt}
            v_lshl_add_u32 v{vEnt}, v{vT2}, 8, v{vEnt}
            s_mul_i32 s3, s{sBeta}, {T*256}
            s_lshl_b32 s{sT}, s{jreg}, 10
            s_add_u32 s{sT}, s{sT}, {XT}
            s_mov_b32 m0, s{sT}
            s_nop 0
            buffer_load_dwordx4 v{vEnt}, s[{sX}:{sX+3}], s3 offen lds
            """)
        xt_dma(sQ)
        a(f"""
        s_cmp_ge_u32 s{sWave}, 13
        s_cbranch_scc1 K2_L3
        s_mov_b32 s{sRem}, s{sWave}
        """)
        xt_dma(sRem)
        a(f"""
        K2_L3:
        s_lshl_b32 s3, s{sQ}, 12
        s_add_u32 s{sT}, s3, {WQ}
        """)
        for i in range(4):
            a(f"""
            s_mov_b32 m0, s{sT}
            s_add_u32 s{sT}, s{sT}, 1024
            buffer_load_dwordx4 v{vWl}, s[{sWQ}:{sWQ+3}], s3 offen lds
            s_add_u32 s3, s3, 1024
            """)
        a("K2_L2:")
    if not opt.dmalate: early_dma()
    else:
        a(f"""
        v_bfe_u32 v{vT0}, v0, 4, 2
        v_and_b32 v{vT1}, 15, v0
        v_lshlrev_b32 v{vT2}, 2, v{vT0}
        v_xor_b32 v{vT2}, v{vT2}, v{vT1}
        v_lshlrev_b32 v{vT2}, 4, v{vT2}
        v_lshl_add_u32 v{vWl}, v{vT0}, 8, v{vT2}
        """)
    if opt.pf6:
        a(f"""
        s_cmp_lt_u32 s{sWave}, {16 - opt.pf6}
        s_cbranch_scc1 K1_NOPF6
        s_sub_u32 s3, s{sWave}, {16 - opt.pf6}
        s_add_u32 s3, s3, 3
        s_lshl_b32 s{sT}, s3, 13
        s_lshr_b32 s3, s2, 3
        s_mul_i32 s3, s3, 100096
        s_add_u32 s3, s3, s{sT}
        v_lshlrev_b32 v{vEnt}, 7, v{vLane}
        buffer_load_dword v{vQB}, v{vEnt}, s[{sX}:{sX+3}], s3 offen
        K1_NOPF6:
        """)
    if opt.prefetch == 1:
        a(f"""
        s_cmp_eq_u32 s{sWave}, 14
        s_cbranch_scc0 K1_NOPF
        s_mul_i32 s3, s2, 12544
        v_lshlrev_b32 v{vT2}, 7, v{vLane}
        buffer_load_dword v{vNeg+4}, v{vT2}, s[{sX}:{sX+3}], s3 offen
        s_add_u32 s3, s3, 8192
        v_cmp_gt_u32 vcc, 34, v{vLane}
        v_mov_b32 v{vEnt}, {OOB}
        s_nop 0
        v_cndmask_b32_e64 v{vT2}, v{vEnt}, v{vT2}, vcc
        buffer_load_dword v{vNeg+4}, v{vT2}, s[{sX}:{sX+3}], s3 offen
        K1_NOPF:
        """)
    sPiK = sHB
    srd_tail(a, sWV, 32768); srd_tail(a, sOUT, XBYTES)
    for i in range(8):
        a(f"v_mov_b32 v{vTot+i}, 0")
    a("v_mov_b32 v83, 0")
    a(f"""
    v_bfe_u32 v{vT2}, v{vLane}, 2, 1
    v_mul_u32_u24 v{vT2}, 12, v{vT2}
    v_and_b32 v{vT0}, 3, v{vLane}
    v_or_b32 v{vT2}, v{vT2}, v{vT0}
    v_lshlrev_b32 v{vUA}, 8, v{vLane}
    v_lshl_or_b32 v{vUA}, v{vT2}, 4, v{vUA}
    """)
    a(f"""
    s_and_b32 s{sP}, s{sWave}, 3
    s_bfe_u32 s{sNH}, s{sWave}, 0x10002
    s_cmp_ge_u32 s{sWave}, 8
    s_cbranch_scc1 K2_NOQA
    """)
    tile_a_addr(a, vWa, vLane, vT2, vT0, sP, WQ)
    a(f"""
    v_and_b32 v{vRow}, 31, v{vLane}
    s_lshl_b32 s3, s{sNH}, 5
    v_add_u32 v{vRow}, s3, v{vRow}
    """)
    tile_b_addr(a, vBa, vRow, vLane, vT0)
    a(f"""
    v_bfe_u32 v{vT2}, v{vRow}, 2, 1
    v_mul_u32_u24 v{vT2}, 12, v{vT2}
    v_and_b32 v{vT0}, 3, v{vRow}
    v_or_b32 v{vT2}, v{vT2}, v{vT0}
    v_lshrrev_b32 v{vT0}, 5, v{vLane}
    s_lshl_b32 s3, s{sP}, 2
    v_lshl_add_u32 v{vT0}, v{vT0}, 1, s3
    v_xor_b32 v{vT2}, v{vT2}, v{vT0}
    v_lshlrev_b32 v{vT2}, 4, v{vT2}
    v_lshl_add_u32 v{vQst}, v{vRow}, 8, v{vT2}
    K2_NOQA:
    """)
    a(f"""
    s_movk_i32 s{sT}, {CH//2}
    s_cmp_eq_u32 s2, {C-1}
    s_cselect_b32 s{sT}, {(E - (C-1)*CH)//2}, s{sT}
    v_cmp_gt_u32 vcc, s{sT}, v0
    s_and_saveexec_b64 s[{sSave}:{sSave+1}], vcc
    s_cbranch_execz K1_EDGE1_DONE
    s_mov_b32 s{sT}, -{T}
    s_mov_b32 s{sCnt}, {STAGE}
    s_cmp_lt_u32 s{sWave}, 8
    s_cbranch_scc1 K1_EW0
    s_waitcnt vmcnt({1 if opt.dmalate else 7})
    s_branch K1_EW1
    K1_EW0:
    s_waitcnt vmcnt(1)
    K1_EW1:
    """)
    st.stamp(a)
    for i in range(2):
        a(f"""
        v_mul_u32_u24 v{vT0}, 21400, v{vDst+i}
        v_lshrrev_b32 v{vT0}, 20, v{vT0}
        v_lshlrev_b32 v{vAdr+i}, 2, v{vT0}
        v_add_u32 v{vT2}, {HP}, v{vAdr+i}
        ds_add_rtn_u32 v{vRank+i}, v{vT2}, v{vT3}
        v_mad_i32_i24 v{vT1}, v{vT0}, s{sT}, v{vDst+i}
        v_lshl_or_b32 v{vEnt+i}, v{vSrc+i}, 8, v{vT1}
        v_mov_b32 v{vBk+i}, v{vT0}
        v_lshl_add_u32 v{vAdr+i}, v{vAdr+i}, 4, s{sCnt}
        """)
    a(f"v_mov_b32 v{vT2}, {JUNK}")
    for i in range(2):
        a(f"""
        s_waitcnt lgkmcnt({1-i})
        v_cmp_gt_u32 s[{sM+2*i}:{sM+2*i+1}], 16, v{vRank+i}
        v_lshl_add_u32 v{vT0}, v{vRank+i}, 2, v{vAdr+i}
        s_nop 0
        v_cndmask_b32_e64 v{vT0}, v{vT2}, v{vT0}, s[{sM+2*i}:{sM+2*i+1}]
        ds_write_b32 v{vT0}, v{vEnt+i}
        """)
    a(f"""
    s_and_b64 s[{sM+4}:{sM+5}], s[{sM}:{sM+1}], s[{sM+2}:{sM+3}]
    s_andn2_b64 s[{sM+4}:{sM+5}], exec, s[{sM+4}:{sM+5}]
    s_cbranch_scc0 K1_EDGE1_DONE
    s_mov_b64 s[{sM+6}:{sM+7}], exec
    """)
    for i in range(2):
        a(f"""
        s_andn2_b64 exec, s[{sM+6}:{sM+7}], s[{sM+2*i}:{sM+2*i+1}]
        s_cbranch_execz K1_OV_{i}
        v_and_b32 v{vT0}, 7, v{vBk+i}
        v_lshrrev_b32 v{vT1}, 5, v{vBk+i}
        v_lshl_add_u32 v{vT0}, v{vT1}, 3, v{vT0}
        v_lshlrev_b32 v{vT1}, 2, v{vT0}
        v_add_u32 v{vT1}, {H2}, v{vT1}
        ds_add_rtn_u32 v{vT1}, v{vT1}, v{vT3}
        v_bfe_u32 v{vT2}, v{vBk+i}, 3, 2
        v_lshl_or_b32 v{vT2}, v{vT2}, 6, v{vEnt+i}
        v_lshlrev_b32 v{vT0}, 4, v{vT0}
        v_add_u32 v{vT0}, {ST2}, v{vT0}
        s_waitcnt lgkmcnt(0)
        v_cmp_gt_u32 vcc, 4, v{vT1}
        v_lshl_add_u32 v{vT0}, v{vT1}, 2, v{vT0}
        s_mov_b64 s[{sM+8}:{sM+9}], exec
        s_and_b64 exec, exec, vcc
        ds_write_b32 v{vT0}, v{vT2}
        s_andn2_b64 exec, s[{sM+8}:{sM+9}], vcc
        s_cbranch_execz K1_OV_{i}
        v_mov_b32 v{vT0}, {OVC}
        ds_add_rtn_u32 v{vT0}, v{vT0}, v{vT3}
        s_waitcnt lgkmcnt(0)
        v_lshlrev_b32 v{vT0}, 2, v{vT0}
        ds_write_b32 v{vT0}, v{vEnt+i} offset:{OVL}
        ds_write_b32 v{vT0}, v{vBk+i} offset:{OVB}
        K1_OV_{i}:
        """)
    a(f"""
    K1_EDGE1_DONE:
    s_mov_b64 exec, s[{sSave}:{sSave+1}]
    v_lshlrev_b32 v{vT0}, 4, v0
    s_waitcnt lgkmcnt(0)
    s_barrier
    """)
    st.stamp(a)
    a(f"""
    s_cmp_ge_u32 s{sWave}, 8
    s_cbranch_scc1 K1_NOCOPY
    ds_read_b128 {vr(vNeg,4)}, v{vT0} offset:{STAGE}
    ds_read_b128 {vr(vNeg+4,4)}, v{vT0} offset:{STAGE + 8192}
    s_lshl_b32 s3, s{sPiK}, 6
    s_add_u32 s3, s3, {WS_CELLS}
    s_add_u32 s{sT}, s3, {128*CELLROW}
    s_waitcnt vmcnt(0)
    v_readfirstlane_b32 s{sNonce}, v{vNon}
    s_nop 3
    s_and_b32 s{sTag}, s{sNonce}, {(0xffffffff << TAGSH) & 0xffffffff}
    s_add_u32 s{sTag}, s{sTag}, {1 << TAGSH}
    s_waitcnt lgkmcnt(1)
    """)
    for i in range(4): a(f"v_or_b32 v{vNeg+i}, s{sTag}, v{vNeg+i}")
    a(f"""
    buffer_store_dwordx4 {vr(vNeg,4)}, v{vGo}, s[{sWS}:{sWS+3}], s3 offen {opt.cst}
    s_waitcnt lgkmcnt(0)
    """)
    for i in range(4, 8): a(f"v_or_b32 v{vNeg+i}, s{sTag}, v{vNeg+i}")
    a(f"""
    buffer_store_dwordx4 {vr(vNeg+4,4)}, v{vGo}, s[{sWS}:{sWS+3}], s{sT} offen {opt.cst}
    s_cmp_eq_u32 s{sWave}, 6
    s_cbranch_scc0 K1_NOX
    v_lshlrev_b32 v{vT1}, 4, v{vLane}
    v_add_u32 v{vT1}, {ST2}, v{vT1}
    ds_read_b128 {vr(vDst,4)}, v{vT1}
    v_lshlrev_b32 v{vT1}, 2, v{vLane}
    v_add_u32 v{vT1}, {H2}, v{vT1}
    ds_read_b32 v{vT1}, v{vT1}
    v_lshlrev_b32 v{vT2}, 12, v{vLane}
    s_lshl_b32 s3, s{sPiK}, 4
    s_add_u32 s3, s3, {WS_EXTRA}
    v_mov_b32 v{vT3}, {1 << 22}
    s_waitcnt lgkmcnt(0)
    v_cmp_lt_u32 vcc, 4, v{vT1}
    """)
    for i in range(4): a(f"v_or_b32 v{vDst+i}, s{sTag}, v{vDst+i}")
    a(f"""
    v_cndmask_b32_e64 v{vT3}, 0, v{vT3}, vcc
    v_or_b32 v{vDst+3}, v{vT3}, v{vDst+3}
    buffer_store_dwordx4 {vr(vDst,4)}, v{vT2}, s[{sWS}:{sWS+3}], s3 offen {opt.cst}
    K1_NOX:
    s_cmp_eq_u32 s{sWave}, 7
    s_cbranch_scc0 K1_DRAIN
    v_mov_b32 v{vT3}, {OVC}
    ds_read_b32 v{vRank}, v{vT3}
    s_waitcnt lgkmcnt(0)
    v_readfirstlane_b32 s{sCnt}, v{vRank}
    s_nop 3
    s_cmp_eq_u32 s{sCnt}, 0
    s_cbranch_scc1 K1_DRAIN
    s_min_u32 s{sCnt}, s{sCnt}, {CH}
    s_lshl_b32 s{sT}, s{sPiK}, 4
    s_add_u32 s{sT}, s{sT}, {WS_OVH}
    v_mov_b32 v{vT2}, s{sT}
    v_or_b32 v{vDst}, s{sTag}, v{vRank}
    v_mov_b32 v{vDst+1}, v{vDst}
    v_mov_b32 v{vDst+2}, v{vDst}
    v_mov_b32 v{vDst+3}, v{vDst}
    s_mov_b64 exec, 1
    buffer_store_dwordx4 {vr(vDst,4)}, v{vT2}, s[{sWS}:{sWS+3}], 0 offen sc1
    s_mov_b64 exec, -1
    s_mul_i32 s3, s{sPiK}, {OVF_STRIDE}
    s_add_u32 s3, s3, {WS_OVF}
    v_mov_b32 v{vT0}, v{vLane}
    K1_OVL:
    v_cmp_gt_u32 vcc, s{sCnt}, v{vT0}
    s_and_b64 exec, exec, vcc
    s_cbranch_execz K1_OVD
    v_lshlrev_b32 v{vT1}, 2, v{vT0}
    ds_read_b32 v{vDst}, v{vT1} offset:{OVL}
    ds_read_b32 v{vDst+1}, v{vT1} offset:{OVB}
    v_lshlrev_b32 v{vT1}, 3, v{vT0}
    s_waitcnt lgkmcnt(0)
    v_or_b32 v{vDst}, s{sTag}, v{vDst}
    v_or_b32 v{vDst+1}, s{sTag}, v{vDst+1}
    buffer_store_dwordx2 {vr(vDst,2)}, v{vT1}, s[{sWS}:{sWS+3}], s3 offen sc1
    v_add_u32 v{vT0}, 64, v{vT0}
    s_branch K1_OVL
    K1_OVD:
    s_mov_b64 exec, -1
    K1_DRAIN:
    {"s_waitcnt vmcnt(0)" if opt.drain == 1 else ""}
    s_branch K1_COPIED
    K1_NOCOPY:
    s_waitcnt vmcnt(0)
    v_readfirstlane_b32 s{sNonce}, v{vNon}
    s_nop 3
    s_and_b32 s{sTag}, s{sNonce}, {(0xffffffff << TAGSH) & 0xffffffff}
    s_add_u32 s{sTag}, s{sTag}, {1 << TAGSH}
    K1_COPIED:
    s_barrier
    """)
    st.stamp(a)
    st.stamp(a)
    a(f"""
    s_cmp_ge_u32 s{sWave}, 8
    s_cbranch_scc1 K2_NOQ
    """)
    vA8, vQAcc = vXB, vAcc
    Bq = [vE, vE+4, vQ, vQ+4]
    def a_reads(ks):
        a(f"ds_read_b64_tr_b16 {vr(vA8+4*ks,2)}, v{vWa} offset:{ks*4096}")
        a(f"ds_read_b64_tr_b16 {vr(vA8+4*ks+2,2)}, v{vWa} offset:{ks*4096 + 1024}")
    def b_read(ks):
        a(f"v_xor_b32 v{vT2}, {32*ks}, v{vBa}")
        a(f"ds_read_b128 {vr(Bq[ks & 3],4)}, v{vT2} offset:{XT}")
    def mfma(ks):
        c = "0" if ks == 0 else vr(vQAcc,16)
        a(f"v_mfma_f32_32x32x16_bf16 {vr(vQAcc,16)}, {vr(vA8+4*ks,4)}, {vr(Bq[ks & 3],4)}, {c}")
    for ks in range(4):
        a_reads(ks); b_read(ks)
    for ks in range(4):
        a("s_waitcnt lgkmcnt(9)")
        mfma(ks)
        a_reads(ks+4); b_read(ks+4)
    for ks in range(4, 8):
        a(f"s_waitcnt lgkmcnt({3*(7-ks)})")
        mfma(ks)
    a(f"""
    v_cmp_gt_u32 vcc, 52, v{vRow}
    v_xor_b32 v{vT2}, 16, v{vQst}
    s_nop 7
    s_nop 2
    """)
    for i in range(8):
        a(f"v_cvt_pk_bf16_f32 v{vA8+i}, v{vQAcc+2*i}, v{vQAcc+2*i+1}")
    a(f"""
    s_mov_b64 exec, vcc
    ds_write_b128 v{vQst}, {vr(vA8,4)} offset:{QS}
    ds_write_b128 v{vT2}, {vr(vA8+4,4)} offset:{QS}
    s_mov_b64 exec, -1
    """)
    a(f"""
    s_lshl_b32 s3, s{sWave}, 12
    s_add_u32 s{sT}, s3, {WV}
    """)
    for i in range(4):
        a(f"""
        s_mov_b32 m0, s{sT}
        s_add_u32 s{sT}, s{sT}, 1024
        buffer_load_dwordx4 v{vWl}, s[{sWV}:{sWV+3}], s3 offen lds
        s_add_u32 s3, s3, 1024
        """)
    if opt.prefetch == 4:
        a(f"""
        s_lshr_b32 s3, s2, 3
        s_mul_i32 s3, s3, 100096
        s_mul_i32 s{sT}, s{sWave}, 12544
        s_add_u32 s3, s3, s{sT}
        v_lshlrev_b32 v{vT0}, 7, v{vLane}
        {"s_sleep %d" % opt.pfsleep if opt.pfsleep else ""}
        buffer_load_dword v{vQB}, v{vT0}, s[{sX}:{sX+3}], s3 offen
        """)
        if opt.pfn > 1:
            a(f"""
            s_add_u32 s3, s3, 8192
            s_mov_b32 exec_lo, -1
            s_mov_b32 exec_hi, 3
            buffer_load_dword v{vQB}, v{vT0}, s[{sX}:{sX+3}], s3 offen
            s_mov_b64 exec, -1
            """)
    a("s_branch K2_HDRD")
    vW, vXw, vSoM, vSoX, vN4M, vN4X, vRkM, vRkX, vPos, vCn = 56, 64, 68, 76, 80, 88, 92, 100, 104, 112
    def mask(i): return (sM + 2*i) if i < 7 else 0
    a(f"""
    K2_NOQ:
    """)
    st.stamp(a)
    a(f"""
    s_sub_u32 s{sRem}, s{sWave}, 8
    s_lshl_b32 s3, s{sRem}, 11
    v_lshlrev_b32 v{vT0}, 4, v{vLane}
    v_add_u32 v{vT0}, s3, v{vT0}
    s_lshl_b32 s3, s{sBeta}, 14
    s_add_u32 s3, s3, {WS_CELLS}
    s_mov_b32 s{sT}, {1 << 17}
    s_mov_b32 s{sQ}, {1 << TAGSH}
    s_mov_b32 exec_lo, 0
    s_mov_b32 exec_hi, 0x80000000
    K1_CAN:
    buffer_load_dword v{vT1}, v{vT0}, s[{sWS}:{sWS+3}], s3 offen offset:1036 sc1
    s_waitcnt vmcnt(0)
    v_xor_b32 v{vT1}, s{sTag}, v{vT1}
    v_cmp_le_u32 vcc, s{sQ}, v{vT1}
    s_cbranch_vccz K1_CAND
    s_sleep {opt.sleep}
    s_sub_u32 s{sT}, s{sT}, 1
    s_cmp_lg_u32 s{sT}, 0
    s_cbranch_scc1 K1_CAN
    K1_CAND:
    s_mov_b64 exec, -1
    {"s_sleep %d" % opt.sleep2 if opt.sleep2 else ""}
    s_mov_b32 s{sT}, {1 << 17}
    K1_TP:
    buffer_load_dwordx4 {vr(vW,4)}, v{vT0}, s[{sWS}:{sWS+3}], s3 offen sc1
    buffer_load_dwordx4 {vr(vW+4,4)}, v{vT0}, s[{sWS}:{sWS+3}], s3 offen offset:1024 sc1
    s_waitcnt vmcnt(0)
    """)
    for i in range(8): a(f"v_xor_b32 v{vW+i}, s{sTag}, v{vW+i}")
    a(f"""
    v_or3_b32 v{vT1}, v{vW}, v{vW+1}, v{vW+2}
    v_or3_b32 v{vT1}, v{vT1}, v{vW+3}, v{vW+4}
    v_or3_b32 v{vT1}, v{vT1}, v{vW+5}, v{vW+6}
    v_or_b32 v{vT1}, v{vT1}, v{vW+7}
    v_cmp_le_u32 vcc, s{sQ}, v{vT1}
    s_and_b64 exec, exec, vcc
    s_cbranch_execz K1_TPD
    s_sleep {opt.sleep}
    s_sub_u32 s{sT}, s{sT}, 1
    s_cmp_lg_u32 s{sT}, 0
    s_cbranch_scc1 K1_TP
    K1_TPD:
    s_mov_b64 exec, -1
    """)
    for i in range(4): a(f"v_mov_b32 v{vXw+i}, {EMPTY}")
    a(f"""
    s_and_b32 s3, s{sBeta}, 7
    s_lshr_b32 s{sCnt}, s{sBeta}, 5
    s_lshl_b32 s{sCnt}, s{sCnt}, 3
    s_add_u32 s3, s3, s{sCnt}
    s_lshl_b32 s3, s3, 12
    s_lshl_b32 s{sCnt}, s{sRem}, 9
    s_add_u32 s3, s3, s{sCnt}
    s_add_u32 s3, s3, {WS_EXTRA}
    v_lshlrev_b32 v{vT0}, 4, v{vLane}
    s_mov_b32 s{sT}, {1 << 17}
    s_mov_b32 exec_lo, -1
    s_mov_b32 exec_hi, 0
    K1_XP:
    buffer_load_dwordx4 {vr(vXw,4)}, v{vT0}, s[{sWS}:{sWS+3}], s3 offen sc1
    s_waitcnt vmcnt(0)
    """)
    for i in range(4): a(f"v_xor_b32 v{vXw+i}, s{sTag}, v{vXw+i}")
    a(f"""
    v_or3_b32 v{vT1}, v{vXw}, v{vXw+1}, v{vXw+2}
    v_or_b32 v{vT1}, v{vT1}, v{vXw+3}
    v_cmp_le_u32 vcc, s{sQ}, v{vT1}
    s_and_b64 exec, exec, vcc
    s_cbranch_execz K1_XPD
    s_sleep {opt.sleep}
    s_sub_u32 s{sT}, s{sT}, 1
    s_cmp_lg_u32 s{sT}, 0
    s_cbranch_scc1 K1_XP
    K1_XPD:
    s_mov_b64 exec, -1
    v_and_b32 v{vT1}, {1 << 22}, v{vXw+3}
    v_cmp_ne_u32 vcc, 0, v{vT1}
    s_cbranch_vccz K1_NOXP
    s_mov_b64 exec, vcc
    s_lshl_b32 s3, s{sRem}, 9
    s_add_u32 s3, s3, {WS_OVH}
    s_mov_b32 s{sT}, {1 << 17}
    K1_HP:
    buffer_load_dwordx4 {vr(vPos,4)}, v{vT0}, s[{sWS}:{sWS+3}], s3 offen sc1
    s_waitcnt vmcnt(0)
    v_xor_b32 v{vT2}, s{sTag}, v{vPos}
    v_xor_b32 v{vPos+1}, v{vPos}, v{vPos+1}
    v_xor_b32 v{vPos+2}, v{vPos}, v{vPos+2}
    v_xor_b32 v{vPos+3}, v{vPos}, v{vPos+3}
    v_or3_b32 v{vPos+1}, v{vPos+1}, v{vPos+2}, v{vPos+3}
    v_cmp_ne_u32 s[{sM}:{sM+1}], 0, v{vPos+1}
    v_cmp_le_u32 vcc, s{sQ}, v{vT2}
    s_or_b64 vcc, vcc, s[{sM}:{sM+1}]
    s_cbranch_vccz K1_HPD
    s_sleep 2
    s_sub_u32 s{sT}, s{sT}, 1
    s_cmp_lg_u32 s{sT}, 0
    s_cbranch_scc1 K1_HP
    K1_HPD:
    v_min_u32 v{vT2}, {CH}, v{vT2}
    s_lshl_b32 s3, s{sRem}, 7
    s_add_u32 s3, s3, {MF}
    v_lshlrev_b32 v{vT1}, 2, v{vLane}
    v_add_u32 v{vT1}, s3, v{vT1}
    ds_write_b32 v{vT1}, v{vT2}
    v_mov_b32 v{vT1}, {MAXC}
    ds_max_u32 v{vT1}, v{vT2}
    s_mov_b64 exec, -1
    K1_NOXP:
    v_mov_b32 v{vT3}, 1
    """)
    st.stamp(a)
    a("K2_DECODE:")
    for i in range(8):
        m = mask(i)
        a(f"""
        v_lshlrev_b32 v{vN4M+i}, 2, v{vW+i}
        v_and_b32 v{vN4M+i}, 0xfc, v{vN4M+i}
        v_cmp_gt_u32 s[{m}:{m+1}], s{s196}, v{vN4M+i}
        v_and_b32 v{vSoM+i}, 0x003fff00, v{vW+i}
        """)
        if i >= 1:
            mp = mask(i-1)
            a(f"""
            s_mov_b64 exec, s[{mp}:{mp+1}]
            ds_add_rtn_u32 v{vRkM+i-1}, v{vN4M+i-1}, v{vT3} offset:{HIST}
            s_mov_b64 exec, -1
            """)
    a(f"""
    s_mov_b64 exec, s[{mask(7)}:{mask(7)+1}]
    ds_add_rtn_u32 v{vRkM+7}, v{vN4M+7}, v{vT3} offset:{HIST}
    s_mov_b64 exec, -1
    s_mov_b64 s[{sM+14}:{sM+15}], 0
    s_cmp_eq_u32 s{sR}, 0
    s_cbranch_scc0 K2_HDRD
    v_and_b32 v{vT0}, v{vXw}, v{vXw+1}
    v_and_b32 v{vT1}, v{vXw+2}, v{vXw+3}
    v_and_b32 v{vT0}, v{vT0}, v{vT1}
    v_and_b32 v{vT0}, 63, v{vT0}
    v_cmp_ne_u32 vcc, 63, v{vT0}
    s_cbranch_vccz K2_HDRD
    s_bfe_u32 s{sT}, s{sBeta}, 0x20003
    """)
    for i in range(4):
        w, m = vXw + i, sM2 + 2*i
        a(f"""
        v_bfe_u32 v{vT0}, v{w}, 6, 2
        v_cmp_eq_u32 vcc, s{sT}, v{vT0}
        v_mov_b32 v{vT1}, {EMPTY}
        v_and_b32 v{vT2}, 0x003fff3f, v{w}
        s_nop 0
        v_cndmask_b32_e64 v{w}, v{vT1}, v{vT2}, vcc
        v_lshlrev_b32 v{vN4X+i}, 2, v{w}
        v_and_b32 v{vN4X+i}, 0xfc, v{vN4X+i}
        v_cmp_gt_u32 s[{m}:{m+1}], s{s196}, v{vN4X+i}
        v_and_b32 v{vSoX+i}, 0x003fff00, v{w}
        """)
    a(f"""
    s_or_b64 s[{sM+14}:{sM+15}], s[{sM2}:{sM2+1}], s[{sM2+2}:{sM2+3}]
    s_or_b64 s[{sM+14}:{sM+15}], s[{sM+14}:{sM+15}], s[{sM2+4}:{sM2+5}]
    s_or_b64 s[{sM+14}:{sM+15}], s[{sM+14}:{sM+15}], s[{sM2+6}:{sM2+7}]
    s_cbranch_scc0 K2_HDRD
    """)
    for i in range(4):
        m = sM2 + 2*i
        a(f"""
        s_mov_b64 exec, s[{m}:{m+1}]
        ds_add_rtn_u32 v{vRkX+i}, v{vN4X+i}, v{vT3} offset:{HIST}
        """)
    a(f"""
    s_mov_b64 exec, -1
    K2_HDRD:
    s_waitcnt lgkmcnt(0)
    s_barrier
    """)
    st.stamp(a)
    if opt.prefetch == 5:
        a(f"""
        s_cmp_ge_u32 s{sWave}, 8
        s_cbranch_scc1 K2_NOPF5
        s_waitcnt vmcnt(0)
        s_sub_u32 s3, s{sWave}, {8 - opt.pfn}
        s_cmp_ge_u32 s3, {opt.pfn}
        s_cbranch_scc1 K2_NOPF5
        s_lshl_b32 s{sT}, s3, {opt.pfsh + 6}
        s_lshr_b32 s3, s2, 3
        s_mul_i32 s3, s3, 100096
        s_add_u32 s3, s3, s{sT}
        v_lshlrev_b32 v{vT0}, {opt.pfsh}, v{vLane}
        buffer_load_dword v{vQB}, v{vT0}, s[{sX}:{sX+3}], s3 offen
        K2_NOPF5:
        """)
    a(f"""
    v_lshlrev_b32 v{vT2}, 2, v{vLane}
    ds_read_b32 v{vCn}, v{vT2} offset:{HIST}
    s_lshl_b32 s{sT}, s{sWave}, 2
    s_waitcnt lgkmcnt(0)
    v_add_u32 v{vPc}, 3, v{vCn}
    v_and_b32 v{vPc}, -4, v{vPc}
    v_mov_b32 v{vStart}, v{vPc}
    v_cmp_lt_u32 vcc, s{sT}, v{vPc}
    s_nop 0
    """)
    steps = ["row_shr:1 row_mask:0xf bank_mask:0xf bound_ctrl:1", "row_shr:2 row_mask:0xf bank_mask:0xf bound_ctrl:1",
             "row_shr:4 row_mask:0xf bank_mask:0xf bound_ctrl:1", "row_shr:8 row_mask:0xf bank_mask:0xf bound_ctrl:1",
             "row_bcast:15 row_mask:0xa bank_mask:0xf", "row_bcast:31 row_mask:0xc bank_mask:0xf"]
    for i, stp in enumerate(steps):
        a(f"v_add_u32_dpp v{vStart}, v{vStart}, v{vStart} {stp}")
        a("s_nop 1" if i < 5 else "s_nop 0")
    a(f"""
    v_readlane_b32 s{sCnt}, v{vStart}, 63
    v_sub_u32 v{vStart}, v{vStart}, v{vPc}
    s_cmp_lt_u32 s{sWave}, 8
    s_cbranch_scc1 K2_NOBP
    """)
    for i in range(8):
        a(f"ds_bpermute_b32 v{vPos+i}, v{vN4M+i}, v{vStart}")
    a(f"""
    K2_NOBP:
    v_add_u32 v{vT0}, s{sT}, v{vStart}
    s_mov_b64 exec, vcc
    ds_write_b32 v{vT0}, v{vUA} offset:{UNODE}
    s_mov_b64 exec, -1
    v_cmp_lt_u32 vcc, 64, v{vPc}
    s_cbranch_vccz K2_UND
    K2_UN:
    s_add_u32 s{sT}, s{sT}, 64
    v_cmp_lt_u32 vcc, s{sT}, v{vPc}
    s_cbranch_vccz K2_UND
    v_add_u32 v{vT0}, s{sT}, v{vStart}
    s_mov_b64 exec, vcc
    ds_write_b32 v{vT0}, v{vUA} offset:{UNODE}
    s_mov_b64 exec, -1
    s_branch K2_UN
    K2_UND:
    s_cmp_gt_u32 s{sWave}, 4
    s_cbranch_scc1 K2_NOPAD
    v_mov_b32 v{vT2}, {OOB}
    s_cmp_gt_u32 s{sWave}, 2
    s_cbranch_scc1 K2_TAILPAD
    v_sub_u32 v{vT1}, v{vPc}, v{vCn}
    v_add_u32 v{vT0}, v{vStart}, v{vCn}
    v_cmp_lt_u32 vcc, s{sWave}, v{vT1}
    v_add_u32 v{vT0}, s{sWave}, v{vT0}
    v_lshlrev_b32 v{vT0}, 2, v{vT0}
    s_mov_b64 exec, vcc
    ds_write_b32 v{vT0}, v{vT2} offset:{LIST}
    s_mov_b64 exec, -1
    s_branch K2_NOPAD
    K2_TAILPAD:
    v_lshlrev_b32 v{vT1}, 2, v{vLane}
    s_cmp_eq_u32 s{sWave}, 3
    s_cbranch_scc0 K2_TAILU
    s_lshl_b32 s{sT}, s{sCnt}, 2
    v_add_u32 v{vT0}, s{sT}, v{vT1}
    s_mov_b64 exec, 0xfffffff
    ds_write_b32 v{vT0}, v{vT2} offset:{LIST}
    s_mov_b64 exec, -1
    s_branch K2_NOPAD
    K2_TAILU:
    v_add_u32 v{vT0}, s{sCnt}, v{vT1}
    v_mov_b32 v{vT2}, {DUMMY*256 + 16*((DUMMY & 3) | (12*((DUMMY >> 2) & 1)))}
    s_mov_b64 exec, 0x7f
    ds_write_b32 v{vT0}, v{vT2} offset:{UNODE}
    s_mov_b64 exec, -1
    K2_NOPAD:
    s_add_u32 s3, s{sCnt}, 31
    s_lshr_b32 s3, s3, 5
    s_lshr_b32 s{sQ}, s3, 4
    s_and_b32 s{sRem}, s3, 15
    s_cmp_lt_u32 s{sWave}, s{sRem}
    s_cselect_b32 s{sNH}, 1, 0
    s_add_u32 s{sHB}, s{sQ}, s{sNH}
    s_min_u32 s3, s{sRem}, s{sWave}
    s_mul_i32 s{sT}, s{sQ}, s{sWave}
    s_add_u32 s{sT}, s{sT}, s3
    v_lshrrev_b32 v{vT0}, 4, v{vLane}
    s_lshl_b32 s3, s{sHB}, 1
    v_mul_u32_u24 v{vT0}, s3, v{vT0}
    s_lshl_b32 s3, s{sT}, 3
    v_add_u32 v{vT0}, s3, v{vT0}
    v_lshlrev_b32 v{vLA}, 4, v{vT0}
    v_lshlrev_b32 v{vUA}, 2, v{vT0}
    s_cmp_lt_u32 s{sWave}, 8
    s_cbranch_scc1 K2_SC_Q
    s_waitcnt lgkmcnt(0)
    """)
    for i in range(8):
        a(f"v_add_lshl_u32 v{vPos+i}, v{vPos+i}, v{vRkM+i}, 2")
    for i in range(8):
        m = mask(i)
        a(f"s_mov_b64 exec, s[{m}:{m+1}]")
        a(f"ds_write_b32 v{vPos+i}, v{vSoM+i} offset:{LIST}")
    a(f"""
    s_mov_b64 exec, -1
    s_cmp_eq_u64 s[{sM+14}:{sM+15}], 0
    s_cbranch_scc1 K2_SORT_DONE
    """)
    for i in range(4):
        a(f"ds_bpermute_b32 v{vPos+i}, v{vN4X+i}, v{vStart}")
    a("s_waitcnt lgkmcnt(0)")
    for i in range(4):
        a(f"""
        v_add_lshl_u32 v{vPos+i}, v{vPos+i}, v{vRkX+i}, 2
        s_mov_b64 exec, s[{sM2+2*i}:{sM2+2*i+1}]
        ds_write_b32 v{vPos+i}, v{vSoX+i} offset:{LIST}
        s_mov_b64 exec, -1
        """)
    a(f"""
    s_branch K2_SORT_DONE
    K2_SC_Q:
    {'s_waitcnt vmcnt(%d)' % (opt.pfn if opt.prefetch == 4 else 0) if opt.prefetch != 5 else ''}
    K2_SORT_DONE:
    """)
    st.stamp(a)
    a(f"""
    s_waitcnt lgkmcnt(0)
    s_barrier
    """)
    st.stamp(a)
    if "cyc" in opt.exp: st.stamp(a, True)
    if opt.prio in (1, 3): a("s_setprio 3")
    if opt.prio == 2:
        a(f"""
        s_cmp_ge_u32 s{sWave}, 4
        s_cbranch_scc0 K2_SP
        s_setprio 1
        s_cmp_ge_u32 s{sWave}, 8
        s_cbranch_scc0 K2_SP
        s_setprio 2
        s_cmp_ge_u32 s{sWave}, 12
        s_cbranch_scc0 K2_SP
        s_setprio 3
        K2_SP:
        """)
    a(f"""
    s_cmp_eq_u32 s{sHB}, 0
    s_cbranch_scc1 K2_NOMAIN
    ds_read_b128 {vr(vE,4)}, v{vLA} offset:{LIST}
    ds_read_b128 {vr(vE+4,4)}, v{vLA} offset:{LIST+16}
    ds_read_b64 {vr(vQC,2)}, v{vUA} offset:{UNODE}
    """)
    for i in range(8):
        a(f"v_mov_b32 v{vAcc+i}, 0")
    a("s_waitcnt lgkmcnt(1)")
    for u in range(8):
        a(f"v_add_u32 v{vE+u}, v{vE+u}, v{vC16}")
        a(f"buffer_load_dwordx4 {vr(vXA+4*u,4)}, v{vE+u}, s[{sX}:{sX+3}], 0 offen")
        if u == 0:
            a(f"""
            s_waitcnt lgkmcnt(0)
            v_xor_b32 v{vT0}, v{vQC}, v{vC16}
            v_xor_b32 v{vT1}, v{vQC+1}, v{vC16}
            ds_read_b128 {vr(vQ,4)}, v{vT0} offset:{QS}
            ds_read_b128 {vr(vQ+4,4)}, v{vT1} offset:{QS}
            v_mov_b32 v{vPrev}, v{vQC}
            """)
    if "bstamp" in opt.exp: st.stamp(a)
    wv_id = [0]
    def wv_dma():
        i = wv_id[0]; wv_id[0] += 1
        a(f"""
        s_cmp_eq_u32 s{sR}, 0
        s_cbranch_scc0 K2_NOWV{i}
        s_lshl_b32 s3, s{sWave}, 11
        s_add_u32 s{sT}, s3, {WV}
        s_mov_b32 m0, s{sT}
        s_add_u32 s{sT}, s{sT}, 1024
        buffer_load_dwordx4 v{vWl}, s[{sWV}:{sWV+3}], s3 offen lds
        s_mov_b32 m0, s{sT}
        s_add_u32 s3, s3, 1024
        buffer_load_dwordx4 v{vWl}, s[{sWV}:{sWV+3}], s3 offen lds
        K2_NOWV{i}:
        """)
    flush_id = [0]
    def flush(prev, masked):
        fid = flush_id[0]; flush_id[0] += 1
        t = ""
        if masked is not None:
            t += f"""
            v_cmp_ne_u32 vcc, v{masked}, v{prev}
            s_cbranch_vccz K2_FL{fid}
            s_mov_b64 exec, vcc
            """
        t += f"""
        v_and_b32 v{vT0}, 0xffffff00, v{prev}
        v_lshl_add_u32 v{vT0}, v{vT0}, 1, v{vPB}
        ds_write_b128 v{vT0}, {vr(vAcc,4)}
        ds_write_b128 v{vT0}, {vr(vAcc+4,4)} offset:256
        """
        if masked is not None:
            for i in range(8):
                t += f"v_mov_b32 v{vAcc+i}, 0\n"
            t += f"""
            s_mov_b64 exec, -1
            K2_FL{fid}:
            """
        return t
    def dots(X, waits):
        for half in range(2):
            a(waits[half])
            if "nodots" in opt.exp: continue
            for r in range(4):
                for u in range(4*half, 4*half+4):
                    if r == 0:
                        a(f"v_dot2_f32_bf16 v{vP+u}, v{X+4*u}, v{vQ+4*half}, 0")
                    else:
                        a(f"v_dot2c_f32_bf16 v{vP+u}, v{X+4*u+r}, v{vQ+4*half+r}")
    def chain(al):
        c = []
        for j in range(4):
            c.append(f"v_add_f32_dpp v{vP+j}, v{vP+j}, v{vP+j} row_mirror row_mask:0xf bank_mask:0x3")
        for j in range(4):
            c.append(f"v_add_f32_dpp v{vP+j}, v{vP+j+4}, v{vP+j+4} row_mirror row_mask:0xf bank_mask:0xc")
        for j in range(2):
            c.append(f"v_add_f32_dpp v{vP+j}, v{vP+j}, v{vP+j} row_half_mirror row_mask:0xf bank_mask:0x5")
        for j in range(2):
            c.append(f"v_add_f32_dpp v{vP+j}, v{vP+j+2}, v{vP+j+2} row_half_mirror row_mask:0xf bank_mask:0xa")
        c.append(f"v_add_f32_dpp v{vP+2}, v{vP}, v{vP} quad_perm:[1,0,3,2] row_mask:0xf bank_mask:0xf")
        c.append(f"v_add_f32_dpp v{vP+3}, v{vP+1}, v{vP+1} quad_perm:[1,0,3,2] row_mask:0xf bank_mask:0xf")
        c.append(f"v_cndmask_b32_e64 v{vP}, v{vP+2}, v{vP+3}, s[{sOdd}:{sOdd+1}]")
        c.append(f"v_add_f32_dpp v{vP}, v{vP}, v{vP} quad_perm:[2,3,0,1] row_mask:0xf bank_mask:0xf")
        if opt.mimic:
            c += [f"v_cvt_pk_bf16_f32 v{vP}, v{vP}, v{vP}", f"v_and_b32 v{vP}, 0xffff0000, v{vP}",
                  f"v_mul_f32 v{vP}, 0x3db504f3, v{vP}", f"v_cvt_pk_bf16_f32 v{vP}, v{vP}, v{vP}",
                  f"v_and_b32 v{vP}, 0xffff0000, v{vP}", f"v_mul_f32 v{vP}, 0xbfb8aa3b, v{vP}"]
        else:
            c.append(f"v_mul_f32 v{vP}, 0xbe0293ee, v{vP}")
        c += [f"v_exp_f32 v{vP}, v{vP}", f"v_add_f32 v{vP}, 1.0, v{vP}", f"v_rcp_f32 v{vP}, v{vP}",
              f"v_cvt_pk_bf16_f32 v{al}, v{vP}, 0", f"v_cvt_pk_bf16_f32 v{al+1}, 0, v{vP}"]
        return c
    def chain_alone(al):
        c = chain(al)
        gaps = {9: 1, 11: 1, 14: 2, 17 + (5 if opt.mimic else 0): 1, 19 + (5 if opt.mimic else 0): 1}
        for i, ins in enumerate(c):
            a(ins)
            if i in gaps: a(f"s_nop {gaps[i]-1}")
    def agg_stream(X, al, loads, Xdst, qp=None):
        out = []
        qp = vQP if qp is None else qp
        for half in range(2):
            if half == 0:
                out.append(('x', flush(vPrev, qp)))
            else:
                out.append(('x', "s_nop 1\n" + flush(qp, qp+1)))
            for u in range(4*half, 4*half+4):
                k = 4*(u >> 1) + (u & 1)
                for r in range(4):
                    if "noagg" in opt.exp:
                        out.append(('v', "s_nop 0")); out.append(('v', "s_nop 0")); continue
                    out.append(('v', f"v_dot2c_f32_bf16_dpp v{vAcc+2*r}, v{al}, v{X+4*u+r} row_newbcast:{k} row_mask:0xf bank_mask:0xf"))
                    out.append(('v', f"v_dot2c_f32_bf16_dpp v{vAcc+2*r+1}, v{al+1}, v{X+4*u+r} row_newbcast:{k} row_mask:0xf bank_mask:0xf"))
                if loads and "noload" not in opt.exp:
                    out.append(('x', f"buffer_load_dwordx4 {vr(Xdst+4*u,4)}, v{vE+u}, s[{sX}:{sX+3}], 0 offen"))
        return out
    def next_prep():
        a("s_waitcnt lgkmcnt(0)")
        a(f"v_xor_b32 v{vT0}, v{vQN}, v{vC16}")
        a(f"v_xor_b32 v{vT1}, v{vQN+1}, v{vC16}")
    def rotate(nxt):
        a(f"v_mov_b32 v{vQP}, v{vQC}")
        a(f"v_mov_b32 v{vQP+1}, v{vQC+1}")
        if nxt:
            a(f"v_mov_b32 v{vQC}, v{vQN}")
            a(f"v_mov_b32 v{vQC+1}, v{vQN+1}")
            a(f"v_add_u32 v{vLA}, 32, v{vLA}")
            a(f"v_add_u32 v{vUA}, 8, v{vUA}")
    def mid(cur, prev, al_cur, al_prev, nxt):
        a("s_waitcnt lgkmcnt(0)")
        if nxt:
            a(f"""
            ds_read_b128 {vr(vE,4)}, v{vLA} offset:{LIST+32}
            ds_read_b128 {vr(vE+4,4)}, v{vLA} offset:{LIST+48}
            ds_read_b64 {vr(vQN,2)}, v{vUA} offset:{UNODE+8}
            """)
        dots(cur, ("s_waitcnt vmcnt(4)", "s_waitcnt vmcnt(0)"))
        if nxt:
            next_prep()
            for u in range(8):
                a(f"v_add_u32 v{vE+u}, v{vE+u}, v{vC16}")
            a(f"ds_read_b128 {vr(vQ,4)}, v{vT0}")
            a(f"ds_read_b128 {vr(vQ+4,4)}, v{vT1}")
        else:
            a("s_nop 2")
        c = chain(al_cur)
        s_ = agg_stream(prev, al_prev, nxt, prev)
        nv = sum(1 for k, _ in s_ if k == 'v')
        ci, vi = 0, 0
        for k, t in s_:
            a(t)
            if k == 'v':
                vi += 1
                if ci < len(c) and vi >= (ci + 1) * nv // (len(c) + 1) and vi % 1 == 0:
                    a(c[ci]); ci += 1
        assert ci == len(c)
        a(f"v_mov_b32 v{vPrev}, v{vQP+1}")
        rotate(nxt)
    def final(X, al):
        for k, t in agg_stream(X, al, False, None):
            a(t)
        a("s_nop 2")
        a(flush(vQP+1, None))
        a("s_branch K2_MAIN_DONE")
    def roll_body(nxt):
        al = vAl[0]
        a("s_waitcnt lgkmcnt(0)")
        if nxt:
            a(f"""
            ds_read_b128 {vr(vE,4)}, v{vLA} offset:{LIST+32}
            ds_read_b128 {vr(vE+4,4)}, v{vLA} offset:{LIST+48}
            ds_read_b64 {vr(vQN,2)}, v{vUA} offset:{UNODE+8}
            """)
        dots(vXA, ("s_waitcnt vmcnt(4)", "s_waitcnt vmcnt(0)"))
        fill = []
        if nxt:
            next_prep()
            a(f"v_add_u32 v{vE}, v{vE}, v{vC16}")
            fill = [f"v_add_u32 v{vE+u}, v{vE+u}, v{vC16}" for u in range(1, 8)]
        else:
            a("s_nop 2")
        c = chain(al)
        gaps = {11: 1, 14: 2, 17 + (5 if opt.mimic else 0): 1, 19 + (5 if opt.mimic else 0): 1}
        for i, ins in enumerate(c):
            a(ins)
            if i == 3 and nxt:
                a(f"ds_read_b128 {vr(vQ,4)}, v{vT0} offset:{QS}")
                a(f"ds_read_b128 {vr(vQ+4,4)}, v{vT1} offset:{QS}")
            for _ in range(gaps.get(i, 0)):
                a(fill.pop(0) if fill else "s_nop 0")
        while fill: a(fill.pop(0))
        a("s_nop 0")
        for k, t in agg_stream(vXA, al, nxt, vXA, vQC):
            a(t)
        a(f"v_mov_b32 v{vPrev}, v{vQC+1}")
        if nxt:
            a(f"v_mov_b32 v{vQC}, v{vQN}")
            a(f"v_mov_b32 v{vQC+1}, v{vQN+1}")
            a(f"v_add_u32 v{vLA}, 32, v{vLA}")
            a(f"v_add_u32 v{vUA}, 8, v{vUA}")
    if opt.style == "roll":
        a(f"""
        s_cmp_eq_u32 s{sHB}, 1
        s_cbranch_scc1 K2_LAST
        K2_LOOP:
        """)
        if opt.prio == 1:
            a(f"""
            s_cmp_ge_u32 s{sHB}, 4
            s_cbranch_scc1 K2_PR0
            s_setprio 2
            s_cmp_eq_u32 s{sHB}, 3
            s_cbranch_scc1 K2_PR0
            s_setprio 1
            K2_PR0:
            """)
        if opt.prio == 3:
            a(f"""
            s_cmp_ge_u32 s{sHB}, 3
            s_cbranch_scc1 K2_PR0
            s_setprio 2
            K2_PR0:
            """)
        roll_body(True)
        a(f"""
        s_sub_u32 s{sHB}, s{sHB}, 1
        s_cmp_gt_u32 s{sHB}, 1
        s_cbranch_scc1 K2_LOOP
        K2_LAST:
        """)
        if opt.prio == 1: a("s_setprio 0")
        if opt.prio == 3: a("s_setprio 1")
        roll_body(False)
        a("s_nop 2")
        a(flush(vPrev, None))
    else:
        def body2(cur, oth, qc, qn, first, has1, has2):
            al = vAl[0]
            a("s_waitcnt lgkmcnt(0)")
            if has1:
                a(f"ds_read_b64 {vr(qn,2)}, v{vUA} offset:{UNODE+8}")
                if first:
                    a(f"ds_read_b128 {vr(vE,4)}, v{vLA} offset:{LIST+32}")
                    a(f"ds_read_b128 {vr(vE+4,4)}, v{vLA} offset:{LIST+48}")
            if has2 and not first:
                a(f"ds_read_b128 {vr(vE,4)}, v{vLA} offset:{LIST+64}")
                a(f"ds_read_b128 {vr(vE+4,4)}, v{vLA} offset:{LIST+80}")
            if first or not has1: waits = ("s_waitcnt vmcnt(4)", "s_waitcnt vmcnt(0)")
            else: waits = ("s_waitcnt vmcnt(12)", "s_waitcnt vmcnt(8)")
            dots(cur, waits)
            fill = []
            if has1:
                a("s_waitcnt lgkmcnt(0)")
                a(f"v_xor_b32 v{vT0}, v{qn}, v{vC16}")
                a(f"v_xor_b32 v{vT1}, v{qn+1}, v{vC16}")
                if first:
                    for u in range(8):
                        a(f"v_add_u32 v{vE+u}, v{vE+u}, v{vC16}")
                        a(f"buffer_load_dwordx4 {vr(oth+4*u,4)}, v{vE+u}, s[{sX}:{sX+3}], 0 offen")
                    if has2:
                        a(f"ds_read_b128 {vr(vE,4)}, v{vLA} offset:{LIST+64}")
                        a(f"ds_read_b128 {vr(vE+4,4)}, v{vLA} offset:{LIST+80}")
                elif has2:
                    a(f"v_add_u32 v{vE}, v{vE}, v{vC16}")
                    fill = [f"v_add_u32 v{vE+u}, v{vE+u}, v{vC16}" for u in range(1, 8)]
                else:
                    a("s_nop 0")
            else:
                a("s_nop 2")
            c = chain(al)
            gaps = {11: 1, 14: 2, 17 + (5 if opt.mimic else 0): 1, 19 + (5 if opt.mimic else 0): 1}
            for i, ins in enumerate(c):
                a(ins)
                if i == 3 and has1:
                    a(f"ds_read_b128 {vr(vQ,4)}, v{vT0} offset:{QS}")
                    a(f"ds_read_b128 {vr(vQ+4,4)}, v{vT1} offset:{QS}")
                for _ in range(gaps.get(i, 0)):
                    a(fill.pop(0) if fill else "s_nop 0")
            while fill: a(fill.pop(0))
            if first and has2:
                a("s_waitcnt lgkmcnt(2)")
                for u in range(8):
                    a(f"v_add_u32 v{vE+u}, v{vE+u}, v{vC16}")
            else:
                a("s_nop 0")
            for k, t in agg_stream(cur, al, has2, cur, qc):
                a(t)
            a(f"v_mov_b32 v{vPrev}, v{qc+1}")
            if has1:
                a(f"v_add_u32 v{vLA}, 32, v{vLA}")
                a(f"v_add_u32 v{vUA}, 8, v{vUA}")
        def last2(cur, oth, qc, qn):
            if opt.prio: a("s_setprio 0")
            body2(cur, oth, qc, qn, False, False, False)
            a("s_nop 2")
            a(flush(vPrev, None))
            a("s_branch K2_MAIN_DONE")
        qA, qB = vQC, vQN
        a(f"""
        s_cmp_eq_u32 s{sHB}, 1
        s_cbranch_scc1 K2_LA
        s_cmp_eq_u32 s{sHB}, 2
        s_cbranch_scc1 K2_F2
        """)
        body2(vXA, vXB, qA, qB, True, True, True)
        a(f"""
        s_sub_u32 s{sHB}, s{sHB}, 1
        K2_LOOP:
        s_cmp_eq_u32 s{sHB}, 2
        s_cbranch_scc1 K2_PB
        """)
        if opt.prio: a("s_setprio 2")
        body2(vXB, vXA, qB, qA, False, True, True)
        a(f"""
        s_sub_u32 s{sHB}, s{sHB}, 1
        s_cmp_eq_u32 s{sHB}, 2
        s_cbranch_scc1 K2_PA
        """)
        body2(vXA, vXB, qA, qB, False, True, True)
        a(f"""
        s_sub_u32 s{sHB}, s{sHB}, 1
        s_branch K2_LOOP
        K2_PB:
        """)
        if opt.prio: a("s_setprio 1")
        body2(vXB, vXA, qB, qA, False, True, False)
        a("K2_LA:")
        last2(vXA, vXB, qA, qB)
        a("K2_PA:")
        if opt.prio: a("s_setprio 1")
        body2(vXA, vXB, qA, qB, False, True, False)
        a("K2_LB:")
        last2(vXB, vXA, qB, qA)
        a("K2_F2:")
        body2(vXA, vXB, qA, qB, True, True, False)
        a("s_branch K2_LB")
    a("s_branch K2_MAIN_DONE")
    a("K2_NOMAIN:")
    a("K2_MAIN_DONE:")
    if opt.prio: a("s_setprio 0")
    if "cyc" in opt.exp: st.stamp(a, True)
    st.stamp(a)
    a(f"""
    s_cmp_eq_u32 s{sR}, 0
    s_cbranch_scc0 K2_NRDONE
    v_mov_b32 v{vT3}, {MAXC}
    ds_read_b32 v{vT3}, v{vT3}
    s_waitcnt lgkmcnt(0)
    v_readfirstlane_b32 s3, v{vT3}
    s_nop 3
    s_min_u32 s3, s3, {CH}
    s_add_u32 s3, s3, 7
    s_lshr_b32 s3, s3, 3
    s_add_u32 s{sNR}, s3, 1
    K2_NRDONE:
    """)
    vSf, vSl = vE, vE+1
    a(f"""
    s_cmp_eq_u32 s{sWave}, 0
    s_cbranch_scc0 K2_NOTBL
    s_add_u32 s3, s{sQ}, 1
    s_lshl_b32 s3, s3, 1
    v_cvt_f32_u32 v{vT0}, s3
    s_mul_i32 s3, s3, s{sRem}
    s_lshl_b32 s{sP}, s3, 2
    s_lshl_b32 s3, s{sQ}, 1
    v_cvt_f32_u32 v{vT1}, s3
    v_rcp_f32 v{vT0}, v{vT0}
    v_rcp_f32 v{vT1}, v{vT1}
    s_lshl_b32 s3, s{sRem}, 2
    """)
    for (dst, last) in ((vSf, False), (vSl, True)):
        if not last:
            a(f"v_lshrrev_b32 v{vT2}, 2, v{vStart}")
        else:
            a(f"""
            v_add_u32 v{vT2}, v{vStart}, v{vPc}
            v_lshrrev_b32 v{vT2}, 2, v{vT2}
            v_add_u32 v{vT2}, -1, v{vT2}
            """)
        a(f"""
        v_cmp_gt_u32 vcc, s{sP}, v{vT2}
        v_cvt_f32_u32 v{vT3}, v{vT2}
        v_add_f32 v{vT3}, 0.5, v{vT3}
        v_mul_f32 v{vT3}, v{vT3}, v{vT0}
        v_cvt_u32_f32 v{vT3}, v{vT3}
        v_subrev_u32 v{vT2}, s{sP}, v{vT2}
        v_cvt_f32_u32 v{vT2}, v{vT2}
        v_add_f32 v{vT2}, 0.5, v{vT2}
        v_mul_f32 v{vT2}, v{vT2}, v{vT1}
        v_cvt_u32_f32 v{vT2}, v{vT2}
        v_add_u32 v{vT2}, s3, v{vT2}
        v_cndmask_b32_e64 v{dst}, v{vT2}, v{vT3}, vcc
        """)
    a(f"""
    v_sub_u32 v{vT0}, v{vSl}, v{vSf}
    v_add_u32 v{vT0}, 1, v{vT0}
    v_cmp_lt_u32 vcc, 0, v{vPc}
    v_add_u32 v{vT1}, v{vSf}, v{vLane}
    v_lshlrev_b32 v{vT1}, 9, v{vT1}
    v_cndmask_b32_e64 v{vT0}, 0, v{vT0}, vcc
    v_add_u32 v{vT1}, {PIECE}, v{vT1}
    v_lshlrev_b32 v{vT3}, 2, v{vLane}
    v_mov_b32 v{vT2}, {ZROW}
    ds_write_b32 v{vT3}, v{vT0} offset:{NPC}
    """)
    for j in range(4):
        a(f"""
        v_cmp_lt_u32 vcc, {j}, v{vT0}
        v_add_u32 v{vT3}, {512*j}, v{vT1}
        s_nop 0
        v_cndmask_b32_e64 v{vE+4+j}, v{vT2}, v{vT3}, vcc
        """)
    a(f"""
    v_lshlrev_b32 v{vT0}, 4, v{vLane}
    ds_write_b128 v{vT0}, {vr(vE+4,4)} offset:{TBL}
    K2_NOTBL:
    """)
    vA8 = vXB
    a(f"""
    s_cmp_ge_u32 s{sWave}, 8
    s_cbranch_scc1 K2_NOAA
    s_and_b32 s{sP}, s{sWave}, 3
    s_lshr_b32 s{sNH}, s{sWave}, 2
    """)
    tile_a_addr(a, vWa, vLane, vT2, vT3, sP, WV)
    for ks in range(8):
        if ks == 6: a("s_waitcnt lgkmcnt(4)")
        a(f"ds_read_b64_tr_b16 {vr(vA8+4*ks,2)}, v{vWa} offset:{ks*4096}")
        a(f"ds_read_b64_tr_b16 {vr(vA8+4*ks+2,2)}, v{vWa} offset:{ks*4096 + 1024}")
    a(f"""
    v_and_b32 v{vRow}, 31, v{vLane}
    s_lshl_b32 s3, s{sNH}, 5
    v_add_u32 v{vRow}, s3, v{vRow}
    """)
    tile_b_addr(a, vBa, vRow, vLane, vT3)
    vTa, vNa, vWb, vOut = 80, 81, 82, 83
    for ks in range(8):
        a(f"v_xor_b32 v{vQ+ks}, {32*ks}, v{vBa}")
    a(f"""
    s_mul_i32 s3, s{sBeta}, {T*256}
    s_lshl_b32 s{sCnt}, s{sP}, 6
    s_add_u32 s3, s3, s{sCnt}
    v_lshrrev_b32 v{vT0}, 5, v{vLane}
    v_lshlrev_b32 v{vOut}, 8, v{vRow}
    v_lshl_add_u32 v{vOut}, v{vT0}, 5, v{vOut}
    v_add_u32 v{vOut}, s3, v{vOut}
    K2_NOAA:
    v_lshrrev_b32 v{vT0}, 4, v{vLane}
    s_lshl_b32 s3, s{sWave}, 2
    v_add_u32 v{vT0}, s3, v{vT0}
    v_lshlrev_b32 v{vTa}, 4, v{vT0}
    v_lshlrev_b32 v{vNa}, 2, v{vT0}
    v_xor_b32 v{vWb}, v{vTa}, v{vC16}
    v_and_b32 v{vWb}, 0xf0, v{vWb}
    v_lshl_add_u32 v{vWb}, v{vT0}, 8, v{vWb}
    s_waitcnt lgkmcnt(0)
    s_barrier
    """)
    st.stamp(a)
    vB = vE
    vRd = vXA
    vNp = vT3
    a(f"""
    s_cmp_ge_u32 s{sWave}, 13
    s_cbranch_scc1 K2_RED_DONE
    ds_read_b128 {vr(vB,4)}, v{vTa} offset:{TBL}
    ds_read_b32 v{vNp}, v{vNa} offset:{NPC}
    s_waitcnt lgkmcnt(0)
    """)
    for j in range(3):
        a(f"""
        v_add_u32 v{vB+j}, v{vB+j}, v{vC16}
        ds_read_b128 {vr(vRd+8*j,4)}, v{vB+j}
        ds_read_b128 {vr(vRd+8*j+4,4)}, v{vB+j} offset:256
        """)
    for j in range(3):
        a(f"s_waitcnt lgkmcnt({4-2*j})")
        for i in range(8):
            a(f"v_add_f32 v{vTot+i}, v{vTot+i}, v{vRd+8*j+i}")
    a(f"""
    s_mov_b32 s{sT}, 3
    K2_XL:
    v_cmp_lt_u32 vcc, s{sT}, v{vNp}
    s_cbranch_vccz K2_RED_DONE
    s_lshl_b32 s3, s{sT}, 9
    v_add_u32 v{vT0}, s3, v{vB}
    s_mov_b64 exec, vcc
    ds_read_b128 {vr(vRd,4)}, v{vT0}
    ds_read_b128 {vr(vRd+4,4)}, v{vT0} offset:256
    s_waitcnt lgkmcnt(0)
    """)
    for i in range(8):
        a(f"v_add_f32 v{vTot+i}, v{vTot+i}, v{vRd+i}")
    a(f"""
    s_mov_b64 exec, -1
    s_add_u32 s{sT}, s{sT}, 1
    s_branch K2_XL
    K2_RED_DONE:
    s_add_u32 s{sR}, s{sR}, 1
    s_cmp_ge_u32 s{sR}, s{sNR}
    s_cbranch_scc1 K2_EPI
    s_barrier
    """)
    a(f"""
    s_cmp_ge_u32 s{sWave}, 4
    s_cbranch_scc1 K2_RZ
    v_mov_b32 v{vT2}, 0
    v_lshlrev_b32 v{vT3}, 2, v0
    ds_write_b32 v{vT3}, v{vT2} offset:{HIST}
    K2_RZ:
    v_bfe_u32 v{vT2}, v{vLane}, 2, 1
    v_mul_u32_u24 v{vT2}, 12, v{vT2}
    v_and_b32 v{vT3}, 3, v{vLane}
    v_or_b32 v{vT2}, v{vT2}, v{vT3}
    v_lshlrev_b32 v{vUA}, 8, v{vLane}
    v_lshl_or_b32 v{vUA}, v{vT2}, 4, v{vUA}
    s_waitcnt lgkmcnt(0)
    s_barrier
    s_cmp_lt_u32 s{sWave}, 8
    s_cbranch_scc1 K2_HDRD
    """)
    for i in range(8): a(f"v_mov_b32 v{vW+i}, {EMPTY}")
    a(f"""
    v_subrev_u32 v{vT0}, 512, v0
    v_and_b32 v{vT1}, 1, v{vT0}
    v_lshrrev_b32 v{vT0}, 1, v{vT0}
    v_lshlrev_b32 v{vT2}, 2, v{vT0}
    v_add_u32 v{vT2}, {MF}, v{vT2}
    ds_read_b32 v{vT3}, v{vT2}
    v_lshlrev_b32 v{vT0}, 14, v{vT0}
    v_add_u32 v{vT0}, {WS_OVF}, v{vT0}
    s_lshl_b32 s3, s{sR}, 3
    s_sub_u32 s3, s3, 8
    v_lshl_add_u32 v{vT1}, v{vT1}, 2, s3
    v_lshl_add_u32 v{vT0}, v{vT1}, 3, v{vT0}
    s_mov_b32 s{sQ}, {1 << TAGSH}
    s_mov_b32 s{sT}, {1 << 17}
    s_waitcnt lgkmcnt(0)
    v_sub_u32 v{vT3}, v{vT3}, v{vT1}
    v_cmp_lt_i32 vcc, 0, v{vT3}
    s_and_saveexec_b64 s[{sSave}:{sSave+1}], vcc
    s_cbranch_execz K2_R1
    v_cmp_lt_i32 s[{sM}:{sM+1}], 1, v{vT3}
    v_cmp_lt_i32 s[{sM+2}:{sM+3}], 2, v{vT3}
    v_cmp_lt_i32 s[{sM+4}:{sM+5}], 3, v{vT3}
    K2_RP:
    buffer_load_dwordx4 {vr(vSoM,4)}, v{vT0}, s[{sWS}:{sWS+3}], 0 offen sc1
    buffer_load_dwordx4 {vr(vSoM+4,4)}, v{vT0}, s[{sWS}:{sWS+3}], 0 offen offset:16 sc1
    s_waitcnt vmcnt(0)
    """)
    for i in range(8): a(f"v_xor_b32 v{vSoM+i}, s{sTag}, v{vSoM+i}")
    a(f"v_or_b32 v{vT1}, v{vSoM}, v{vSoM+1}")
    for k in range(1, 4):
        a(f"""
        v_or_b32 v{vT2}, v{vSoM+2*k}, v{vSoM+2*k+1}
        v_cndmask_b32_e64 v{vT2}, 0, v{vT2}, s[{sM+2*(k-1)}:{sM+2*(k-1)+1}]
        v_or_b32 v{vT1}, v{vT1}, v{vT2}
        """)
    a(f"""
    v_cmp_le_u32 vcc, s{sQ}, v{vT1}
    s_cbranch_vccz K2_RPD
    s_sleep 2
    s_sub_u32 s{sT}, s{sT}, 1
    s_cmp_lg_u32 s{sT}, 0
    s_cbranch_scc1 K2_RP
    K2_RPD:
    v_cmp_eq_u32 vcc, s{sBeta}, v{vSoM+1}
    s_nop 1
    v_cndmask_b32_e64 v{vW}, v{vW}, v{vSoM}, vcc
    """)
    for k in range(1, 4):
        a(f"""
        v_cmp_eq_u32 vcc, s{sBeta}, v{vSoM+2*k+1}
        s_nop 0
        s_and_b64 vcc, vcc, s[{sM+2*(k-1)}:{sM+2*(k-1)+1}]
        s_nop 1
        v_cndmask_b32_e64 v{vW+k}, v{vW+k}, v{vSoM+2*k}, vcc
        """)
    a(f"""
    K2_R1:
    s_mov_b64 exec, s[{sSave}:{sSave+1}]
    v_mov_b32 v{vT3}, 1
    s_branch K2_DECODE
    K2_EPI:
    """)
    st.stamp(a)
    vAcc16, vB8 = 24, vXA
    a(f"""
    s_cmp_ge_u32 s{sWave}, 13
    s_cbranch_scc1 K2_WB_DONE
    """)
    for i in range(4):
        a(f"v_cvt_pk_bf16_f32 v{vE+i}, v{vTot+2*i}, v{vTot+2*i+1}")
    a(f"""
    ds_write_b128 v{vWb}, {vr(vE,4)} offset:{AGGB}
    K2_WB_DONE:
    s_waitcnt lgkmcnt(0)
    s_barrier
    s_cmp_ge_u32 s{sWave}, 8
    s_cbranch_scc1 K2_FIN
    """)
    a(f"v_mov_b32 v{vE}, v{vOut}")
    for ks in range(8):
        a(f"ds_read_b128 {vr(vB8+4*ks,4)}, v{vQ+ks} offset:{AGGB}")
    a(f"v_cmp_gt_u32 vcc, {T}, v{vRow}")
    for ks in range(8):
        a(f"s_waitcnt lgkmcnt({7-ks})")
        c = "0" if ks == 0 else vr(vAcc16,16)
        a(f"v_mfma_f32_32x32x16_bf16 {vr(vAcc16,16)}, {vr(vA8+4*ks,4)}, {vr(vB8+4*ks,4)}, {c}")
    a("s_nop 7")
    a("s_nop 3")
    for i in range(8):
        a(f"v_cvt_pk_bf16_f32 v{vQ+i}, v{vAcc16+2*i}, v{vAcc16+2*i+1}")
    a(f"""
    s_and_saveexec_b64 s[{sSave}:{sSave+1}], vcc
    s_cbranch_execz K2_ST_DONE
    buffer_store_dwordx4 {vr(vQ,4)}, v{vE}, s[{sOUT}:{sOUT+3}], 0 offen {opt.outst}
    buffer_store_dwordx4 {vr(vQ+4,4)}, v{vE}, s[{sOUT}:{sOUT+3}], 0 offen offset:16 {opt.outst}
    K2_ST_DONE:
    s_mov_b64 exec, s[{sSave}:{sSave+1}]
    K2_FIN:
    s_cmp_eq_u32 s2, 0
    s_cbranch_scc0 K2_NOEPOCH
    s_cmp_eq_u32 s{sWave}, 15
    s_cbranch_scc0 K2_NOEPOCH
    v_mov_b32 v{vT0}, 0
    v_mov_b32 v{vT1}, s{sTag}
    s_mov_b64 exec, 1
    buffer_store_dword v{vT1}, v{vT0}, s[{sWS}:{sWS+3}], 0 offen sc1
    s_mov_b64 exec, -1
    K2_NOEPOCH:
    """)
    st.stamp(a)
    if opt.stamps:
        a("s_waitcnt vmcnt(0)")
        st.stamp(a)
    st.flush(a, sWS, vT0, sWave)
    a("""
    K2_END:
    s_endpgm
    """)
    return a.text(), LDS, 128

DESCRIPTION = """;
;   out[n] = bf16( sum_{e: dst[e] = n} sigmoid(x[src[e]] . Q[n] / sqrt(128)) * x[src[e]] ) @ w_v,   Q = bf16(x @ w_q)
"""

def build(opt):
    k, lds, v = gen_k(opt)
    n = NAME + "_kernel"
    out = HEADER + DESCRIPTION
    for _ in range(opt.rep):
        out += f"; @launch kernel={n} grid=({NB},1,1) block=(1024,1,1) lds={lds}\n" if opt.aslist or opt.rep > 1 else f"; @launch grid=({NB},1,1) block=(1024,1,1) lds={lds}\n"
    out += '.amdgcn_target "amdgcn-amd-amdhsa--gfx950"\n.text\n'
    out += f".globl {n}\n.p2align 8\n.type {n},@function\n" + k
    out += '.section .rodata,"a"\n.p2align 6\n' + kd(n, v)
    return out

def parse(argv=None):
    p = argparse.ArgumentParser()
    p.add_argument("-o", default="cdna_kernels/" + NAME + ".s")
    p.add_argument("--stamps", action="store_true")
    p.add_argument("--prefetch", type=int, default=5)
    p.add_argument("--mimic", type=int, default=0)
    p.add_argument("--prio", type=int, default=3)
    p.add_argument("--keep", default="")
    p.add_argument("--exp", default="")
    p.add_argument("--outst", default="")
    p.add_argument("--sleep", type=int, default=2)
    p.add_argument("--drain", type=int, default=0)
    p.add_argument("--sleep2", type=int, default=0)
    p.add_argument("--pf6", type=int, default=2)
    p.add_argument("--pfn", type=int, default=3)
    p.add_argument("--pfsh", type=int, default=7)
    p.add_argument("--pfsleep", type=int, default=0)
    p.add_argument("--wsbase", type=lambda x: int(x, 0), default=0)
    p.add_argument("--cst", default="sc1")
    p.add_argument("--dmalate", type=int, default=0)
    p.add_argument("--rep", type=int, default=1)
    p.add_argument("--aslist", type=int, default=0)
    p.add_argument("--style", default="roll")
    return p.parse_args(argv)

if __name__ == "__main__":
    o = parse()
    open(o.o, "w").write(build(o))
    print("wrote", o.o)
```

```python
import sys, argparse
from gen import A, vr, Stamps, scan64, kd, HEADER, NAME

N, E, D = 12500, 400000, 128
T = 49
NB = 256
CH = 1564
C = 256
XBYTES = N * 256
EBYTES = E * 4
WS_NONCE = 0
WS_OVH = 0x1000
WS_EXTRA = 0x40000
WS_CELLS = 0x100000
CELLROW = 16384
WS_OVF = 0x500000
OVF_STRIDE = 16384
WS_USED = WS_OVF + 256 * OVF_STRIDE
TAGSH = 23
EMPTY = 0x3f
WS_STAMP = 0x1000000
OOB = 0x40000000
DUMMY = 49

def srd_tail(a, d, size):
    a(f"s_mov_b32 s{d+2}, {size}")
    a(f"s_mov_b32 s{d+3}, 0x00020000")

def tile_a_addr(a, vdst, vlane, t0, t1, sP, wbase):
    a(f"""
    v_bfe_u32 v{t0}, v{vlane}, 2, 2
    v_lshrrev_b32 v{t1}, 5, v{vlane}
    v_lshl_add_u32 v{vdst}, v{t1}, 3, v{t0}
    v_lshlrev_b32 v{vdst}, 8, v{vdst}
    v_xor_b32 v{t0}, s{sP}, v{t0}
    v_lshl_add_u32 v{vdst}, v{t0}, 6, v{vdst}
    v_bfe_u32 v{t0}, v{vlane}, 4, 1
    v_bfe_u32 v{t1}, v{vlane}, 1, 1
    v_lshl_add_u32 v{t0}, v{t0}, 1, v{t1}
    v_and_b32 v{t1}, 1, v{vlane}
    v_lshl_add_u32 v{t0}, v{t1}, 2, v{t0}
    v_lshl_add_u32 v{vdst}, v{t0}, 3, v{vdst}
    v_add_u32 v{vdst}, {wbase}, v{vdst}
    """)

def tile_b_addr(a, vdst, vrow, vlane, t0):
    a(f"""
    v_lshrrev_b32 v{t0}, 5, v{vlane}
    v_xor_b32 v{t0}, v{t0}, v{vrow}
    v_and_b32 v{t0}, 15, v{t0}
    v_lshlrev_b32 v{t0}, 4, v{t0}
    v_lshl_add_u32 v{vdst}, v{vrow}, 8, v{t0}
    """)

def gen_k(opt):
    a = A()
    HIST, MAXC, ZROW, TBL = 0, 256, 512, 1024
    NPC = TBL + 1024
    LIST = NPC + 256
    LISTW = 6144
    UNODE = LIST + LISTW * 4
    QS = UNODE + 1536 * 4
    AGGB = QS + 52 * 256
    PIECE = AGGB + 64 * 256
    XT = PIECE
    WQ = XT + 16384
    WV = PIECE + (DUMMY + 64) * 512
    LDS = WV + 32768
    assert WQ + 32768 <= WV
    st = Stamps(opt.stamps, 64, WS_STAMP + 0x40000, [int(x) for x in opt.keep.split(',')] if opt.keep else None)
    sX, sWQ, sWV, sOUT, sWS = 4, 8, 12, 16, 20
    sBeta, sWave, sR, sNR = 24, 25, 26, 27
    sOdd = 28
    sBeta24, sHB, sP, sNH, s196 = 30, 31, 32, 33, 34
    sM = 36
    sSave = 50
    sCnt, sQ, sRem, sT = 52, 53, 54, 55
    vC16, vPB, vLA, vUA, vPrev = 1, 2, 3, 4, 5
    vQP, vQC, vQN = 6, 8, 10
    vAl = (12, 14)
    vQB = 16
    vT0, vT1, vT2, vT3 = 17, 18, 19, 20
    vLane, vStart, vPc = 21, 22, 23
    vAcc, vP, vE, vQ = 24, 32, 40, 48
    vXA, vXB, vTot = 56, 88, 120
    vCand, vHdr, vSo, vN4, vRk = 56, 60, 64, 72, 80
    vCnt = 47
    vHdr2, vSo2, vN42, vRk2 = 88, 92, 96, 100
    sM2 = 56
    vWl = 6
    vWa, vBa, vRow, vQst = 12, 13, 14, 15
    HP = LDS
    OVC, JUNK = HP + 1024, HP + 1040
    H2 = HP + 1280
    ST2 = H2 + 256
    MF = ST2 + 1024
    LDS = MF + 1024
    OVL = LIST
    OVB = LIST + 8192
    STAGE = AGGB
    sSRC, sDST, sNonce, sPi = 56, 60, 35, 3
    sTag = 30
    vDst, vSrc, vEnt, vAdr, vRank, vNeg, vNon, vGo = 56, 58, 60, 62, 64, 68, 66, 67
    vBk = 76
    a(f"""
    {NAME}_kernel:
    s_cmp_ge_u32 s2, {NB}
    s_cbranch_scc1 K2_END
    s_load_dwordx2 s[{sWS}:{sWS+1}], s[0:1], 56
    s_load_dwordx2 s[{sDST}:{sDST+1}], s[0:1], 16
    s_load_dwordx2 s[{sSRC}:{sSRC+1}], s[0:1], 8
    s_load_dwordx2 s[{sX}:{sX+1}], s[0:1], 0
    s_load_dwordx2 s[{sWQ}:{sWQ+1}], s[0:1], 24
    s_load_dwordx2 s[{sWV}:{sWV+1}], s[0:1], 32
    s_load_dwordx2 s[{sOUT}:{sOUT+1}], s[0:1], 40
    """)
    st.stamp(a)
    srd_tail(a, sWS, WS_USED if not opt.stamps else 0x2000000)
    srd_tail(a, sDST, EBYTES); srd_tail(a, sSRC, EBYTES); srd_tail(a, sX, XBYTES); srd_tail(a, sWQ, 32768)
    a(f"""
    v_lshrrev_b32 v{vT0}, 6, v0
    s_mov_b32 s{sBeta}, s2
    s_mul_i32 s3, s2, {CH*4}
    v_readfirstlane_b32 s{sWave}, v{vT0}
    v_lshlrev_b32 v{vT2}, 3, v0
    v_add_u32 v{vT2}, s3, v{vT2}
    s_movk_i32 s{sT}, {CH//2}
    s_cmp_eq_u32 s2, {C-1}
    s_cselect_b32 s{sT}, {(E - (C-1)*CH)//2}, s{sT}
    v_mov_b32 v{vT3}, 0
    v_cmp_gt_u32 vcc, s{sT}, v0
    s_and_saveexec_b64 s[{sSave}:{sSave+1}], vcc
    s_waitcnt lgkmcnt(0)
    {("s_add_u32 s%d, s%d, %d" % (sWS, sWS, opt.wsbase)) if opt.wsbase else ""}
    {("s_addc_u32 s%d, s%d, 0" % (sWS+1, sWS+1)) if opt.wsbase else ""}
    s_cbranch_execz K1_NOEDGE0
    buffer_load_dwordx2 {vr(vDst,2)}, v{vT2}, s[{sDST}:{sDST+3}], 0 offen {opt.eld}
    buffer_load_dwordx2 {vr(vSrc,2)}, v{vT2}, s[{sSRC}:{sSRC+3}], 0 offen {opt.eld}
    K1_NOEDGE0:
    s_mov_b64 exec, s[{sSave}:{sSave+1}]
    buffer_load_dword v{vNon}, v{vT3}, s[{sWS}:{sWS+3}], 0 offen sc1
    """)
    a(f"""
    v_and_b32 v{vLane}, 63, v0
    v_bfe_u32 v{vT0}, v0, 4, 2
    v_and_b32 v{vT1}, 15, v0
    v_lshlrev_b32 v{vC16}, 4, v{vT1}
    """)
    a(f"""
    v_mov_b32 v{vNeg}, {EMPTY}
    v_mov_b32 v{vNeg+1}, {EMPTY}
    v_mov_b32 v{vNeg+2}, {EMPTY}
    v_mov_b32 v{vNeg+3}, {EMPTY}
    v_lshlrev_b32 v{vT2}, 4, v0
    ds_write_b128 v{vT2}, {vr(vNeg,4)} offset:{STAGE}
    s_cmp_eq_u32 s{sWave}, 12
    s_cbranch_scc0 K1_NOS2
    v_lshlrev_b32 v{vT3}, 4, v{vLane}
    v_add_u32 v{vT3}, {ST2}, v{vT3}
    ds_write_b128 v{vT3}, {vr(vNeg,4)}
    K1_NOS2:
    v_mov_b32 v{vT2}, 0
    v_lshlrev_b32 v{vT3}, 2, v0
    s_cmp_ge_u32 s{sWave}, 6
    s_cbranch_scc1 K1_NOZ0
    v_add_u32 v{vT3}, {HP}, v{vT3}
    ds_write_b32 v{vT3}, v{vT2}
    s_branch K1_NOZ1
    K1_NOZ0:
    s_sub_u32 s3, s{sWave}, 8
    s_cmp_ge_u32 s3, 4
    s_cbranch_scc1 K1_NOZ2
    v_add_u32 v{vT3}, {HIST - 2048}, v{vT3}
    ds_write_b32 v{vT3}, v{vT2}
    s_branch K1_NOZ1
    K1_NOZ2:
    s_cmp_lt_u32 s{sWave}, 12
    s_cbranch_scc1 K1_NOZ1
    v_add_u32 v{vT3}, {MF - 3072}, v{vT3}
    ds_write_b32 v{vT3}, v{vT2}
    K1_NOZ1:
    s_mov_b32 s{sR}, 0
    s_mov_b32 s{sOdd}, 0xaaaaaaaa
    s_mov_b32 s{sOdd+1}, 0xaaaaaaaa
    s_movk_i32 s{s196}, {T*4}
    s_lshl_b32 s3, s{sWave}, 11
    s_add_u32 s3, s3, {PIECE}
    v_lshl_add_u32 v{vPB}, v{vT0}, 9, s3
    v_add_u32 v{vPB}, v{vPB}, v{vC16}
    s_and_b32 s{sPi}, s2, 7
    s_lshl_b32 s{sPi}, s{sPi}, 5
    s_lshr_b32 s{sT}, s2, 3
    s_add_u32 s{sPi}, s{sPi}, s{sT}
    s_mov_b32 s{sHB}, s{sPi}
    v_lshrrev_b32 v{vT2}, 2, v0
    v_lshlrev_b32 v{vGo}, 14, v{vT2}
    v_and_b32 v{vT2}, 3, v0
    v_lshl_add_u32 v{vGo}, v{vT2}, 4, v{vGo}
    v_mov_b32 v{vT3}, 1
    s_waitcnt lgkmcnt(0)
    s_barrier
    """)
    st.stamp(a)
    def early_dma():
        a(f"""
        v_bfe_u32 v{vT0}, v0, 4, 2
        v_and_b32 v{vT1}, 15, v0
        v_lshlrev_b32 v{vT2}, 2, v{vT0}
        v_xor_b32 v{vT2}, v{vT2}, v{vT1}
        v_lshlrev_b32 v{vT2}, 4, v{vT2}
        v_lshl_add_u32 v{vWl}, v{vT0}, 8, v{vT2}
        s_cmp_lt_u32 s{sWave}, 8
        s_cbranch_scc1 K2_L2
        s_sub_u32 s{sQ}, s{sWave}, 8
        """)
        def xt_dma(jreg):
            a(f"""
            s_lshl_b32 s3, s{jreg}, 2
            v_add_u32 v{vT2}, s3, v{vT0}
            v_xor_b32 v{vEnt}, v{vT2}, v{vT1}
            v_and_b32 v{vEnt}, 15, v{vEnt}
            v_lshlrev_b32 v{vEnt}, 4, v{vEnt}
            v_lshl_add_u32 v{vEnt}, v{vT2}, 8, v{vEnt}
            s_mul_i32 s3, s{sBeta}, {T*256}
            s_lshl_b32 s{sT}, s{jreg}, 10
            s_add_u32 s{sT}, s{sT}, {XT}
            s_mov_b32 m0, s{sT}
            s_nop 0
            buffer_load_dwordx4 v{vEnt}, s[{sX}:{sX+3}], s3 offen lds
            """)
        xt_dma(sQ)
        a(f"""
        s_cmp_ge_u32 s{sWave}, 13
        s_cbranch_scc1 K2_L3
        s_mov_b32 s{sRem}, s{sWave}
        """)
        xt_dma(sRem)
        a(f"""
        K2_L3:
        s_lshl_b32 s3, s{sQ}, 12
        s_add_u32 s{sT}, s3, {WQ}
        """)
        for i in range(4):
            a(f"""
            s_mov_b32 m0, s{sT}
            s_add_u32 s{sT}, s{sT}, 1024
            buffer_load_dwordx4 v{vWl}, s[{sWQ}:{sWQ+3}], s3 offen lds
            s_add_u32 s3, s3, 1024
            """)
        a("K2_L2:")
    if not opt.dmalate: early_dma()
    else:
        a(f"""
        v_bfe_u32 v{vT0}, v0, 4, 2
        v_and_b32 v{vT1}, 15, v0
        v_lshlrev_b32 v{vT2}, 2, v{vT0}
        v_xor_b32 v{vT2}, v{vT2}, v{vT1}
        v_lshlrev_b32 v{vT2}, 4, v{vT2}
        v_lshl_add_u32 v{vWl}, v{vT0}, 8, v{vT2}
        """)
    if opt.pf6:
        a(f"""
        s_cmp_lt_u32 s{sWave}, {16 - opt.pf6}
        s_cbranch_scc1 K1_NOPF6
        s_sub_u32 s3, s{sWave}, {16 - opt.pf6}
        s_add_u32 s3, s3, 3
        s_lshl_b32 s{sT}, s3, 13
        s_lshr_b32 s3, s2, 3
        s_mul_i32 s3, s3, 100096
        s_add_u32 s3, s3, s{sT}
        v_lshlrev_b32 v{vEnt}, 7, v{vLane}
        buffer_load_dword v{vQB}, v{vEnt}, s[{sX}:{sX+3}], s3 offen
        K1_NOPF6:
        """)
    if opt.prefetch == 1:
        a(f"""
        s_cmp_eq_u32 s{sWave}, 14
        s_cbranch_scc0 K1_NOPF
        s_mul_i32 s3, s2, 12544
        v_lshlrev_b32 v{vT2}, 7, v{vLane}
        buffer_load_dword v{vNeg+4}, v{vT2}, s[{sX}:{sX+3}], s3 offen
        s_add_u32 s3, s3, 8192
        v_cmp_gt_u32 vcc, 34, v{vLane}
        v_mov_b32 v{vEnt}, {OOB}
        s_nop 0
        v_cndmask_b32_e64 v{vT2}, v{vEnt}, v{vT2}, vcc
        buffer_load_dword v{vNeg+4}, v{vT2}, s[{sX}:{sX+3}], s3 offen
        K1_NOPF:
        """)
    sPiK = sHB
    srd_tail(a, sWV, 32768); srd_tail(a, sOUT, XBYTES)
    for i in range(8):
        a(f"v_mov_b32 v{vTot+i}, 0")
    a("v_mov_b32 v83, 0")
    a(f"""
    v_bfe_u32 v{vT2}, v{vLane}, 2, 1
    v_mul_u32_u24 v{vT2}, 12, v{vT2}
    v_and_b32 v{vT0}, 3, v{vLane}
    v_or_b32 v{vT2}, v{vT2}, v{vT0}
    v_lshlrev_b32 v{vUA}, 8, v{vLane}
    v_lshl_or_b32 v{vUA}, v{vT2}, 4, v{vUA}
    """)
    a(f"""
    s_and_b32 s{sP}, s{sWave}, 3
    s_bfe_u32 s{sNH}, s{sWave}, 0x10002
    s_cmp_ge_u32 s{sWave}, 8
    s_cbranch_scc1 K2_NOQA
    """)
    tile_a_addr(a, vWa, vLane, vT2, vT0, sP, WQ)
    a(f"""
    v_and_b32 v{vRow}, 31, v{vLane}
    s_lshl_b32 s3, s{sNH}, 5
    v_add_u32 v{vRow}, s3, v{vRow}
    """)
    tile_b_addr(a, vBa, vRow, vLane, vT0)
    a(f"""
    v_bfe_u32 v{vT2}, v{vRow}, 2, 1
    v_mul_u32_u24 v{vT2}, 12, v{vT2}
    v_and_b32 v{vT0}, 3, v{vRow}
    v_or_b32 v{vT2}, v{vT2}, v{vT0}
    v_lshrrev_b32 v{vT0}, 5, v{vLane}
    s_lshl_b32 s3, s{sP}, 2
    v_lshl_add_u32 v{vT0}, v{vT0}, 1, s3
    v_xor_b32 v{vT2}, v{vT2}, v{vT0}
    v_lshlrev_b32 v{vT2}, 4, v{vT2}
    v_lshl_add_u32 v{vQst}, v{vRow}, 8, v{vT2}
    K2_NOQA:
    """)
    a(f"""
    s_movk_i32 s{sT}, {CH//2}
    s_cmp_eq_u32 s2, {C-1}
    s_cselect_b32 s{sT}, {(E - (C-1)*CH)//2}, s{sT}
    v_cmp_gt_u32 vcc, s{sT}, v0
    s_and_saveexec_b64 s[{sSave}:{sSave+1}], vcc
    s_cbranch_execz K1_EDGE1_DONE
    s_mov_b32 s{sT}, -{T}
    s_mov_b32 s{sCnt}, {STAGE}
    s_cmp_lt_u32 s{sWave}, 8
    s_cbranch_scc1 K1_EW0
    s_waitcnt vmcnt({1 if opt.dmalate else 7})
    s_branch K1_EW1
    K1_EW0:
    s_waitcnt vmcnt(1)
    K1_EW1:
    """)
    st.stamp(a)
    for i in range(2):
        a(f"""
        v_mul_u32_u24 v{vT0}, 21400, v{vDst+i}
        v_lshrrev_b32 v{vT0}, 20, v{vT0}
        v_lshlrev_b32 v{vAdr+i}, 2, v{vT0}
        v_add_u32 v{vT2}, {HP}, v{vAdr+i}
        ds_add_rtn_u32 v{vRank+i}, v{vT2}, v{vT3}
        v_mad_i32_i24 v{vT1}, v{vT0}, s{sT}, v{vDst+i}
        v_lshl_or_b32 v{vEnt+i}, v{vSrc+i}, 8, v{vT1}
        v_mov_b32 v{vBk+i}, v{vT0}
        v_lshl_add_u32 v{vAdr+i}, v{vAdr+i}, 4, s{sCnt}
        """)
    a(f"v_mov_b32 v{vT2}, {JUNK}")
    for i in range(2):
        a(f"""
        s_waitcnt lgkmcnt({1-i})
        v_cmp_gt_u32 s[{sM+2*i}:{sM+2*i+1}], 16, v{vRank+i}
        v_lshl_add_u32 v{vT0}, v{vRank+i}, 2, v{vAdr+i}
        s_nop 0
        v_cndmask_b32_e64 v{vT0}, v{vT2}, v{vT0}, s[{sM+2*i}:{sM+2*i+1}]
        ds_write_b32 v{vT0}, v{vEnt+i}
        """)
    a(f"""
    s_and_b64 s[{sM+4}:{sM+5}], s[{sM}:{sM+1}], s[{sM+2}:{sM+3}]
    s_andn2_b64 s[{sM+4}:{sM+5}], exec, s[{sM+4}:{sM+5}]
    s_cbranch_scc0 K1_EDGE1_DONE
    s_mov_b64 s[{sM+6}:{sM+7}], exec
    """)
    for i in range(2):
        a(f"""
        s_andn2_b64 exec, s[{sM+6}:{sM+7}], s[{sM+2*i}:{sM+2*i+1}]
        s_cbranch_execz K1_OV_{i}
        v_and_b32 v{vT0}, 7, v{vBk+i}
        v_lshrrev_b32 v{vT1}, 5, v{vBk+i}
        v_lshl_add_u32 v{vT0}, v{vT1}, 3, v{vT0}
        v_lshlrev_b32 v{vT1}, 2, v{vT0}
        v_add_u32 v{vT1}, {H2}, v{vT1}
        ds_add_rtn_u32 v{vT1}, v{vT1}, v{vT3}
        v_bfe_u32 v{vT2}, v{vBk+i}, 3, 2
        v_lshl_or_b32 v{vT2}, v{vT2}, 6, v{vEnt+i}
        v_lshlrev_b32 v{vT0}, 4, v{vT0}
        v_add_u32 v{vT0}, {ST2}, v{vT0}
        s_waitcnt lgkmcnt(0)
        v_cmp_gt_u32 vcc, 4, v{vT1}
        v_lshl_add_u32 v{vT0}, v{vT1}, 2, v{vT0}
        s_mov_b64 s[{sM+8}:{sM+9}], exec
        s_and_b64 exec, exec, vcc
        ds_write_b32 v{vT0}, v{vT2}
        s_andn2_b64 exec, s[{sM+8}:{sM+9}], vcc
        s_cbranch_execz K1_OV_{i}
        v_mov_b32 v{vT0}, {OVC}
        ds_add_rtn_u32 v{vT0}, v{vT0}, v{vT3}
        s_waitcnt lgkmcnt(0)
        v_lshlrev_b32 v{vT0}, 2, v{vT0}
        ds_write_b32 v{vT0}, v{vEnt+i} offset:{OVL}
        ds_write_b32 v{vT0}, v{vBk+i} offset:{OVB}
        K1_OV_{i}:
        """)
    a(f"""
    K1_EDGE1_DONE:
    s_mov_b64 exec, s[{sSave}:{sSave+1}]
    v_lshlrev_b32 v{vT0}, 4, v0
    s_waitcnt lgkmcnt(0)
    s_barrier
    """)
    st.stamp(a)
    a(f"""
    s_cmp_ge_u32 s{sWave}, 8
    s_cbranch_scc1 K1_NOCOPY
    ds_read_b128 {vr(vNeg,4)}, v{vT0} offset:{STAGE}
    ds_read_b128 {vr(vNeg+4,4)}, v{vT0} offset:{STAGE + 8192}
    s_lshl_b32 s3, s{sPiK}, 6
    s_add_u32 s3, s3, {WS_CELLS}
    s_add_u32 s{sT}, s3, {128*CELLROW}
    s_waitcnt vmcnt(0)
    v_readfirstlane_b32 s{sNonce}, v{vNon}
    s_nop 3
    s_and_b32 s{sTag}, s{sNonce}, {(0xffffffff << TAGSH) & 0xffffffff}
    s_add_u32 s{sTag}, s{sTag}, {1 << TAGSH}
    s_waitcnt lgkmcnt(1)
    """)
    for i in range(4): a(f"v_or_b32 v{vNeg+i}, s{sTag}, v{vNeg+i}")
    a(f"""
    buffer_store_dwordx4 {vr(vNeg,4)}, v{vGo}, s[{sWS}:{sWS+3}], s3 offen {opt.cst}
    s_waitcnt lgkmcnt(0)
    """)
    for i in range(4, 8): a(f"v_or_b32 v{vNeg+i}, s{sTag}, v{vNeg+i}")
    a(f"""
    buffer_store_dwordx4 {vr(vNeg+4,4)}, v{vGo}, s[{sWS}:{sWS+3}], s{sT} offen {opt.cst}
    s_cmp_eq_u32 s{sWave}, 6
    s_cbranch_scc0 K1_NOX
    v_lshlrev_b32 v{vT1}, 4, v{vLane}
    v_add_u32 v{vT1}, {ST2}, v{vT1}
    ds_read_b128 {vr(vDst,4)}, v{vT1}
    v_lshlrev_b32 v{vT1}, 2, v{vLane}
    v_add_u32 v{vT1}, {H2}, v{vT1}
    ds_read_b32 v{vT1}, v{vT1}
    v_lshlrev_b32 v{vT2}, 12, v{vLane}
    s_lshl_b32 s3, s{sPiK}, 4
    s_add_u32 s3, s3, {WS_EXTRA}
    v_mov_b32 v{vT3}, {1 << 22}
    s_waitcnt lgkmcnt(0)
    v_cmp_lt_u32 vcc, 4, v{vT1}
    """)
    for i in range(4): a(f"v_or_b32 v{vDst+i}, s{sTag}, v{vDst+i}")
    a(f"""
    v_cndmask_b32_e64 v{vT3}, 0, v{vT3}, vcc
    v_or_b32 v{vDst+3}, v{vT3}, v{vDst+3}
    buffer_store_dwordx4 {vr(vDst,4)}, v{vT2}, s[{sWS}:{sWS+3}], s3 offen {opt.cst}
    K1_NOX:
    s_cmp_eq_u32 s{sWave}, 7
    s_cbranch_scc0 K1_DRAIN
    v_mov_b32 v{vT3}, {OVC}
    ds_read_b32 v{vRank}, v{vT3}
    s_waitcnt lgkmcnt(0)
    v_readfirstlane_b32 s{sCnt}, v{vRank}
    s_nop 3
    s_cmp_eq_u32 s{sCnt}, 0
    s_cbranch_scc1 K1_DRAIN
    s_min_u32 s{sCnt}, s{sCnt}, {CH}
    s_lshl_b32 s{sT}, s{sPiK}, 4
    s_add_u32 s{sT}, s{sT}, {WS_OVH}
    v_mov_b32 v{vT2}, s{sT}
    v_or_b32 v{vDst}, s{sTag}, v{vRank}
    v_mov_b32 v{vDst+1}, v{vDst}
    v_mov_b32 v{vDst+2}, v{vDst}
    v_mov_b32 v{vDst+3}, v{vDst}
    s_mov_b64 exec, 1
    buffer_store_dwordx4 {vr(vDst,4)}, v{vT2}, s[{sWS}:{sWS+3}], 0 offen sc1
    s_mov_b64 exec, -1
    s_mul_i32 s3, s{sPiK}, {OVF_STRIDE}
    s_add_u32 s3, s3, {WS_OVF}
    v_mov_b32 v{vT0}, v{vLane}
    K1_OVL:
    v_cmp_gt_u32 vcc, s{sCnt}, v{vT0}
    s_and_b64 exec, exec, vcc
    s_cbranch_execz K1_OVD
    v_lshlrev_b32 v{vT1}, 2, v{vT0}
    ds_read_b32 v{vDst}, v{vT1} offset:{OVL}
    ds_read_b32 v{vDst+1}, v{vT1} offset:{OVB}
    v_lshlrev_b32 v{vT1}, 3, v{vT0}
    s_waitcnt lgkmcnt(0)
    v_or_b32 v{vDst}, s{sTag}, v{vDst}
    v_or_b32 v{vDst+1}, s{sTag}, v{vDst+1}
    buffer_store_dwordx2 {vr(vDst,2)}, v{vT1}, s[{sWS}:{sWS+3}], s3 offen sc1
    v_add_u32 v{vT0}, 64, v{vT0}
    s_branch K1_OVL
    K1_OVD:
    s_mov_b64 exec, -1
    K1_DRAIN:
    {"s_waitcnt vmcnt(0)" if opt.drain == 1 else ""}
    s_branch K1_COPIED
    K1_NOCOPY:
    s_waitcnt vmcnt(0)
    v_readfirstlane_b32 s{sNonce}, v{vNon}
    s_nop 3
    s_and_b32 s{sTag}, s{sNonce}, {(0xffffffff << TAGSH) & 0xffffffff}
    s_add_u32 s{sTag}, s{sTag}, {1 << TAGSH}
    K1_COPIED:
    s_barrier
    """)
    st.stamp(a)
    st.stamp(a)
    a(f"""
    s_cmp_ge_u32 s{sWave}, 8
    s_cbranch_scc1 K2_NOQ
    """)
    vA8, vQAcc = vXB, vAcc
    Bq = [vE, vE+4, vQ, vQ+4]
    def a_reads(ks):
        a(f"ds_read_b64_tr_b16 {vr(vA8+4*ks,2)}, v{vWa} offset:{ks*4096}")
        a(f"ds_read_b64_tr_b16 {vr(vA8+4*ks+2,2)}, v{vWa} offset:{ks*4096 + 1024}")
    def b_read(ks):
        a(f"v_xor_b32 v{vT2}, {32*ks}, v{vBa}")
        a(f"ds_read_b128 {vr(Bq[ks & 3],4)}, v{vT2} offset:{XT}")
    def mfma(ks):
        c = "0" if ks == 0 else vr(vQAcc,16)
        a(f"v_mfma_f32_32x32x16_bf16 {vr(vQAcc,16)}, {vr(vA8+4*ks,4)}, {vr(Bq[ks & 3],4)}, {c}")
    for ks in range(4):
        a_reads(ks); b_read(ks)
    for ks in range(4):
        a("s_waitcnt lgkmcnt(9)")
        mfma(ks)
        a_reads(ks+4); b_read(ks+4)
    for ks in range(4, 8):
        a(f"s_waitcnt lgkmcnt({3*(7-ks)})")
        mfma(ks)
    a(f"""
    v_cmp_gt_u32 vcc, 52, v{vRow}
    v_xor_b32 v{vT2}, 16, v{vQst}
    s_nop 7
    s_nop 2
    """)
    for i in range(8):
        a(f"v_cvt_pk_bf16_f32 v{vA8+i}, v{vQAcc+2*i}, v{vQAcc+2*i+1}")
    a(f"""
    s_mov_b64 exec, vcc
    ds_write_b128 v{vQst}, {vr(vA8,4)} offset:{QS}
    ds_write_b128 v{vT2}, {vr(vA8+4,4)} offset:{QS}
    s_mov_b64 exec, -1
    """)
    a(f"""
    s_lshl_b32 s3, s{sWave}, 12
    s_add_u32 s{sT}, s3, {WV}
    """)
    for i in range(4):
        a(f"""
        s_mov_b32 m0, s{sT}
        s_add_u32 s{sT}, s{sT}, 1024
        buffer_load_dwordx4 v{vWl}, s[{sWV}:{sWV+3}], s3 offen lds
        s_add_u32 s3, s3, 1024
        """)
    if opt.prefetch == 4:
        a(f"""
        s_lshr_b32 s3, s2, 3
        s_mul_i32 s3, s3, 100096
        s_mul_i32 s{sT}, s{sWave}, 12544
        s_add_u32 s3, s3, s{sT}
        v_lshlrev_b32 v{vT0}, 7, v{vLane}
        {"s_sleep %d" % opt.pfsleep if opt.pfsleep else ""}
        buffer_load_dword v{vQB}, v{vT0}, s[{sX}:{sX+3}], s3 offen
        """)
        if opt.pfn > 1:
            a(f"""
            s_add_u32 s3, s3, 8192
            s_mov_b32 exec_lo, -1
            s_mov_b32 exec_hi, 3
            buffer_load_dword v{vQB}, v{vT0}, s[{sX}:{sX+3}], s3 offen
            s_mov_b64 exec, -1
            """)
    a("s_branch K2_HDRD")
    vW, vXw, vSoM, vSoX, vN4M, vN4X, vRkM, vRkX, vPos, vCn = 56, 64, 68, 76, 80, 88, 92, 100, 104, 112
    def mask(i): return (sM + 2*i) if i < 7 else 0
    a(f"""
    K2_NOQ:
    {"s_setprio %d" % opt.pprio if opt.pprio else ""}
    """)
    st.stamp(a)
    a(f"""
    s_sub_u32 s{sRem}, s{sWave}, 8
    s_lshl_b32 s3, s{sRem}, 11
    v_lshlrev_b32 v{vT0}, 4, v{vLane}
    v_add_u32 v{vT0}, s3, v{vT0}
    s_lshl_b32 s3, s{sBeta}, 14
    s_add_u32 s3, s3, {WS_CELLS}
    s_mov_b32 s{sT}, {1 << 17}
    s_mov_b32 s{sQ}, {1 << TAGSH}
    s_mov_b32 exec_lo, 0
    s_mov_b32 exec_hi, 0x80000000
    K1_CAN:
    buffer_load_dword v{vT1}, v{vT0}, s[{sWS}:{sWS+3}], s3 offen offset:1036 sc1
    s_waitcnt vmcnt(0)
    v_xor_b32 v{vT1}, s{sTag}, v{vT1}
    v_cmp_le_u32 vcc, s{sQ}, v{vT1}
    s_cbranch_vccz K1_CAND
    s_sleep {opt.sleep}
    s_sub_u32 s{sT}, s{sT}, 1
    s_cmp_lg_u32 s{sT}, 0
    s_cbranch_scc1 K1_CAN
    K1_CAND:
    s_mov_b64 exec, -1
    {"s_sleep %d" % opt.sleep2 if opt.sleep2 else ""}
    s_mov_b32 s{sT}, {1 << 17}
    K1_TP:
    buffer_load_dwordx4 {vr(vW,4)}, v{vT0}, s[{sWS}:{sWS+3}], s3 offen sc1
    buffer_load_dwordx4 {vr(vW+4,4)}, v{vT0}, s[{sWS}:{sWS+3}], s3 offen offset:1024 sc1
    s_waitcnt vmcnt(0)
    """)
    for i in range(8): a(f"v_xor_b32 v{vW+i}, s{sTag}, v{vW+i}")
    a(f"""
    v_or3_b32 v{vT1}, v{vW}, v{vW+1}, v{vW+2}
    v_or3_b32 v{vT1}, v{vT1}, v{vW+3}, v{vW+4}
    v_or3_b32 v{vT1}, v{vT1}, v{vW+5}, v{vW+6}
    v_or_b32 v{vT1}, v{vT1}, v{vW+7}
    v_cmp_le_u32 vcc, s{sQ}, v{vT1}
    s_and_b64 exec, exec, vcc
    s_cbranch_execz K1_TPD
    s_sleep {opt.sleep}
    s_sub_u32 s{sT}, s{sT}, 1
    s_cmp_lg_u32 s{sT}, 0
    s_cbranch_scc1 K1_TP
    K1_TPD:
    s_mov_b64 exec, -1
    """)
    for i in range(4): a(f"v_mov_b32 v{vXw+i}, {EMPTY}")
    a(f"""
    s_and_b32 s3, s{sBeta}, 7
    s_lshr_b32 s{sCnt}, s{sBeta}, 5
    s_lshl_b32 s{sCnt}, s{sCnt}, 3
    s_add_u32 s3, s3, s{sCnt}
    s_lshl_b32 s3, s3, 12
    s_lshl_b32 s{sCnt}, s{sRem}, 9
    s_add_u32 s3, s3, s{sCnt}
    s_add_u32 s3, s3, {WS_EXTRA}
    v_lshlrev_b32 v{vT0}, 4, v{vLane}
    s_mov_b32 s{sT}, {1 << 17}
    s_mov_b32 exec_lo, -1
    s_mov_b32 exec_hi, 0
    K1_XP:
    buffer_load_dwordx4 {vr(vXw,4)}, v{vT0}, s[{sWS}:{sWS+3}], s3 offen sc1
    s_waitcnt vmcnt(0)
    """)
    for i in range(4): a(f"v_xor_b32 v{vXw+i}, s{sTag}, v{vXw+i}")
    a(f"""
    v_or3_b32 v{vT1}, v{vXw}, v{vXw+1}, v{vXw+2}
    v_or_b32 v{vT1}, v{vT1}, v{vXw+3}
    v_cmp_le_u32 vcc, s{sQ}, v{vT1}
    s_and_b64 exec, exec, vcc
    s_cbranch_execz K1_XPD
    s_sleep {opt.sleep}
    s_sub_u32 s{sT}, s{sT}, 1
    s_cmp_lg_u32 s{sT}, 0
    s_cbranch_scc1 K1_XP
    K1_XPD:
    s_mov_b64 exec, -1
    v_and_b32 v{vT1}, {1 << 22}, v{vXw+3}
    v_cmp_ne_u32 vcc, 0, v{vT1}
    s_cbranch_vccz K1_NOXP
    s_mov_b64 exec, vcc
    s_lshl_b32 s3, s{sRem}, 9
    s_add_u32 s3, s3, {WS_OVH}
    s_mov_b32 s{sT}, {1 << 17}
    K1_HP:
    buffer_load_dwordx4 {vr(vPos,4)}, v{vT0}, s[{sWS}:{sWS+3}], s3 offen sc1
    s_waitcnt vmcnt(0)
    v_xor_b32 v{vT2}, s{sTag}, v{vPos}
    v_xor_b32 v{vPos+1}, v{vPos}, v{vPos+1}
    v_xor_b32 v{vPos+2}, v{vPos}, v{vPos+2}
    v_xor_b32 v{vPos+3}, v{vPos}, v{vPos+3}
    v_or3_b32 v{vPos+1}, v{vPos+1}, v{vPos+2}, v{vPos+3}
    v_cmp_ne_u32 s[{sM}:{sM+1}], 0, v{vPos+1}
    v_cmp_le_u32 vcc, s{sQ}, v{vT2}
    s_or_b64 vcc, vcc, s[{sM}:{sM+1}]
    s_cbranch_vccz K1_HPD
    s_sleep 2
    s_sub_u32 s{sT}, s{sT}, 1
    s_cmp_lg_u32 s{sT}, 0
    s_cbranch_scc1 K1_HP
    K1_HPD:
    v_min_u32 v{vT2}, {CH}, v{vT2}
    s_lshl_b32 s3, s{sRem}, 7
    s_add_u32 s3, s3, {MF}
    v_lshlrev_b32 v{vT1}, 2, v{vLane}
    v_add_u32 v{vT1}, s3, v{vT1}
    ds_write_b32 v{vT1}, v{vT2}
    v_mov_b32 v{vT1}, {MAXC}
    ds_max_u32 v{vT1}, v{vT2}
    s_mov_b64 exec, -1
    K1_NOXP:
    v_mov_b32 v{vT3}, 1
    """)
    st.stamp(a)
    a("K2_DECODE:")
    for i in range(8):
        m = mask(i)
        a(f"""
        v_lshlrev_b32 v{vN4M+i}, 2, v{vW+i}
        v_and_b32 v{vN4M+i}, 0xfc, v{vN4M+i}
        v_cmp_gt_u32 s[{m}:{m+1}], s{s196}, v{vN4M+i}
        v_and_b32 v{vSoM+i}, 0x003fff00, v{vW+i}
        """)
        if i >= 1:
            mp = mask(i-1)
            a(f"""
            s_mov_b64 exec, s[{mp}:{mp+1}]
            ds_add_rtn_u32 v{vRkM+i-1}, v{vN4M+i-1}, v{vT3} offset:{HIST}
            s_mov_b64 exec, -1
            """)
    a(f"""
    s_mov_b64 exec, s[{mask(7)}:{mask(7)+1}]
    ds_add_rtn_u32 v{vRkM+7}, v{vN4M+7}, v{vT3} offset:{HIST}
    s_mov_b64 exec, -1
    s_mov_b64 s[{sM+14}:{sM+15}], 0
    s_cmp_eq_u32 s{sR}, 0
    s_cbranch_scc0 K2_HDRD
    v_and_b32 v{vT0}, v{vXw}, v{vXw+1}
    v_and_b32 v{vT1}, v{vXw+2}, v{vXw+3}
    v_and_b32 v{vT0}, v{vT0}, v{vT1}
    v_and_b32 v{vT0}, 63, v{vT0}
    v_cmp_ne_u32 vcc, 63, v{vT0}
    s_cbranch_vccz K2_HDRD
    s_bfe_u32 s{sT}, s{sBeta}, 0x20003
    """)
    for i in range(4):
        w, m = vXw + i, sM2 + 2*i
        a(f"""
        v_bfe_u32 v{vT0}, v{w}, 6, 2
        v_cmp_eq_u32 vcc, s{sT}, v{vT0}
        v_mov_b32 v{vT1}, {EMPTY}
        v_and_b32 v{vT2}, 0x003fff3f, v{w}
        s_nop 0
        v_cndmask_b32_e64 v{w}, v{vT1}, v{vT2}, vcc
        v_lshlrev_b32 v{vN4X+i}, 2, v{w}
        v_and_b32 v{vN4X+i}, 0xfc, v{vN4X+i}
        v_cmp_gt_u32 s[{m}:{m+1}], s{s196}, v{vN4X+i}
        v_and_b32 v{vSoX+i}, 0x003fff00, v{w}
        """)
    a(f"""
    s_or_b64 s[{sM+14}:{sM+15}], s[{sM2}:{sM2+1}], s[{sM2+2}:{sM2+3}]
    s_or_b64 s[{sM+14}:{sM+15}], s[{sM+14}:{sM+15}], s[{sM2+4}:{sM2+5}]
    s_or_b64 s[{sM+14}:{sM+15}], s[{sM+14}:{sM+15}], s[{sM2+6}:{sM2+7}]
    s_cbranch_scc0 K2_HDRD
    """)
    for i in range(4):
        m = sM2 + 2*i
        a(f"""
        s_mov_b64 exec, s[{m}:{m+1}]
        ds_add_rtn_u32 v{vRkX+i}, v{vN4X+i}, v{vT3} offset:{HIST}
        """)
    a(f"""
    s_mov_b64 exec, -1
    K2_HDRD:
    s_waitcnt lgkmcnt(0)
    s_barrier
    """)
    st.stamp(a)
    if opt.prefetch == 5:
        a(f"""
        s_cmp_ge_u32 s{sWave}, 8
        s_cbranch_scc1 K2_NOPF5
        s_waitcnt vmcnt(0)
        s_sub_u32 s3, s{sWave}, {8 - opt.pfn}
        s_cmp_ge_u32 s3, {opt.pfn}
        s_cbranch_scc1 K2_NOPF5
        s_lshl_b32 s{sT}, s3, {opt.pfsh + 6}
        s_lshr_b32 s3, s2, 3
        s_mul_i32 s3, s3, 100096
        s_add_u32 s3, s3, s{sT}
        v_lshlrev_b32 v{vT0}, {opt.pfsh}, v{vLane}
        buffer_load_dword v{vQB}, v{vT0}, s[{sX}:{sX+3}], s3 offen
        K2_NOPF5:
        """)
    a(f"""
    v_lshlrev_b32 v{vT2}, 2, v{vLane}
    ds_read_b32 v{vCn}, v{vT2} offset:{HIST}
    s_lshl_b32 s{sT}, s{sWave}, 2
    s_waitcnt lgkmcnt(0)
    v_add_u32 v{vPc}, 3, v{vCn}
    v_and_b32 v{vPc}, -4, v{vPc}
    v_mov_b32 v{vStart}, v{vPc}
    v_cmp_lt_u32 vcc, s{sT}, v{vPc}
    s_nop 0
    """)
    steps = ["row_shr:1 row_mask:0xf bank_mask:0xf bound_ctrl:1", "row_shr:2 row_mask:0xf bank_mask:0xf bound_ctrl:1",
             "row_shr:4 row_mask:0xf bank_mask:0xf bound_ctrl:1", "row_shr:8 row_mask:0xf bank_mask:0xf bound_ctrl:1",
             "row_bcast:15 row_mask:0xa bank_mask:0xf", "row_bcast:31 row_mask:0xc bank_mask:0xf"]
    for i, stp in enumerate(steps):
        a(f"v_add_u32_dpp v{vStart}, v{vStart}, v{vStart} {stp}")
        a("s_nop 1" if i < 5 else "s_nop 0")
    a(f"""
    v_readlane_b32 s{sCnt}, v{vStart}, 63
    v_sub_u32 v{vStart}, v{vStart}, v{vPc}
    s_cmp_lt_u32 s{sWave}, 8
    s_cbranch_scc1 K2_NOBP
    """)
    for i in range(8):
        a(f"ds_bpermute_b32 v{vPos+i}, v{vN4M+i}, v{vStart}")
    a(f"""
    K2_NOBP:
    v_add_u32 v{vT0}, s{sT}, v{vStart}
    s_mov_b64 exec, vcc
    ds_write_b32 v{vT0}, v{vUA} offset:{UNODE}
    s_mov_b64 exec, -1
    v_cmp_lt_u32 vcc, 64, v{vPc}
    s_cbranch_vccz K2_UND
    K2_UN:
    s_add_u32 s{sT}, s{sT}, 64
    v_cmp_lt_u32 vcc, s{sT}, v{vPc}
    s_cbranch_vccz K2_UND
    v_add_u32 v{vT0}, s{sT}, v{vStart}
    s_mov_b64 exec, vcc
    ds_write_b32 v{vT0}, v{vUA} offset:{UNODE}
    s_mov_b64 exec, -1
    s_branch K2_UN
    K2_UND:
    s_cmp_gt_u32 s{sWave}, 4
    s_cbranch_scc1 K2_NOPAD
    v_mov_b32 v{vT2}, {OOB}
    s_cmp_gt_u32 s{sWave}, 2
    s_cbranch_scc1 K2_TAILPAD
    v_sub_u32 v{vT1}, v{vPc}, v{vCn}
    v_add_u32 v{vT0}, v{vStart}, v{vCn}
    v_cmp_lt_u32 vcc, s{sWave}, v{vT1}
    v_add_u32 v{vT0}, s{sWave}, v{vT0}
    v_lshlrev_b32 v{vT0}, 2, v{vT0}
    s_mov_b64 exec, vcc
    ds_write_b32 v{vT0}, v{vT2} offset:{LIST}
    s_mov_b64 exec, -1
    s_branch K2_NOPAD
    K2_TAILPAD:
    v_lshlrev_b32 v{vT1}, 2, v{vLane}
    s_cmp_eq_u32 s{sWave}, 3
    s_cbranch_scc0 K2_TAILU
    s_lshl_b32 s{sT}, s{sCnt}, 2
    v_add_u32 v{vT0}, s{sT}, v{vT1}
    s_mov_b64 exec, 0xfffffff
    ds_write_b32 v{vT0}, v{vT2} offset:{LIST}
    s_mov_b64 exec, -1
    s_branch K2_NOPAD
    K2_TAILU:
    v_add_u32 v{vT0}, s{sCnt}, v{vT1}
    v_mov_b32 v{vT2}, {DUMMY*256 + 16*((DUMMY & 3) | (12*((DUMMY >> 2) & 1)))}
    s_mov_b64 exec, 0x7f
    ds_write_b32 v{vT0}, v{vT2} offset:{UNODE}
    s_mov_b64 exec, -1
    K2_NOPAD:
    s_add_u32 s3, s{sCnt}, 31
    s_lshr_b32 s3, s3, 5
    s_lshr_b32 s{sQ}, s3, 4
    s_and_b32 s{sRem}, s3, 15
    s_cmp_lt_u32 s{sWave}, s{sRem}
    s_cselect_b32 s{sNH}, 1, 0
    s_add_u32 s{sHB}, s{sQ}, s{sNH}
    s_min_u32 s3, s{sRem}, s{sWave}
    s_mul_i32 s{sT}, s{sQ}, s{sWave}
    s_add_u32 s{sT}, s{sT}, s3
    v_lshrrev_b32 v{vT0}, 4, v{vLane}
    s_lshl_b32 s3, s{sHB}, 1
    v_mul_u32_u24 v{vT0}, s3, v{vT0}
    s_lshl_b32 s3, s{sT}, 3
    v_add_u32 v{vT0}, s3, v{vT0}
    v_lshlrev_b32 v{vLA}, 4, v{vT0}
    v_lshlrev_b32 v{vUA}, 2, v{vT0}
    s_cmp_lt_u32 s{sWave}, 8
    s_cbranch_scc1 K2_SC_Q
    s_waitcnt lgkmcnt(0)
    """)
    for i in range(8):
        a(f"v_add_lshl_u32 v{vPos+i}, v{vPos+i}, v{vRkM+i}, 2")
    for i in range(8):
        m = mask(i)
        a(f"s_mov_b64 exec, s[{m}:{m+1}]")
        a(f"ds_write_b32 v{vPos+i}, v{vSoM+i} offset:{LIST}")
    a(f"""
    s_mov_b64 exec, -1
    s_cmp_eq_u64 s[{sM+14}:{sM+15}], 0
    s_cbranch_scc1 K2_SORT_DONE
    """)
    for i in range(4):
        a(f"ds_bpermute_b32 v{vPos+i}, v{vN4X+i}, v{vStart}")
    a("s_waitcnt lgkmcnt(0)")
    for i in range(4):
        a(f"""
        v_add_lshl_u32 v{vPos+i}, v{vPos+i}, v{vRkX+i}, 2
        s_mov_b64 exec, s[{sM2+2*i}:{sM2+2*i+1}]
        ds_write_b32 v{vPos+i}, v{vSoX+i} offset:{LIST}
        s_mov_b64 exec, -1
        """)
    a(f"""
    s_branch K2_SORT_DONE
    K2_SC_Q:
    {'s_waitcnt vmcnt(%d)' % (opt.pfn if opt.prefetch == 4 else 0) if opt.prefetch != 5 else ''}
    K2_SORT_DONE:
    """)
    st.stamp(a)
    a(f"""
    s_waitcnt lgkmcnt(0)
    s_barrier
    """)
    st.stamp(a)
    if "cyc" in opt.exp: st.stamp(a, True)
    if opt.prio in (1, 3, 4): a("s_setprio 3")
    if opt.prio == 2:
        a(f"""
        s_cmp_ge_u32 s{sWave}, 4
        s_cbranch_scc0 K2_SP
        s_setprio 1
        s_cmp_ge_u32 s{sWave}, 8
        s_cbranch_scc0 K2_SP
        s_setprio 2
        s_cmp_ge_u32 s{sWave}, 12
        s_cbranch_scc0 K2_SP
        s_setprio 3
        K2_SP:
        """)
    a(f"""
    s_cmp_eq_u32 s{sHB}, 0
    s_cbranch_scc1 K2_NOMAIN
    ds_read_b128 {vr(vE,4)}, v{vLA} offset:{LIST}
    ds_read_b128 {vr(vE+4,4)}, v{vLA} offset:{LIST+16}
    ds_read_b64 {vr(vQC,2)}, v{vUA} offset:{UNODE}
    """)
    if opt.style == "roll3":
        a(f"""
        v_and_b32 v{vT0}, 15, v{vLane}
        v_and_b32 v{vT1}, 7, v{vT0}
        v_lshl_add_u32 v{vLA}, v{vT1}, 2, v{vLA}
        v_add_u32 v{vLA}, {LIST + 32}, v{vLA}
        v_and_b32 v{vT1}, 1, v{vT0}
        v_lshl_add_u32 v{vUA}, v{vT1}, 2, v{vUA}
        v_add_u32 v{vUA}, {UNODE + 8}, v{vUA}
        v_lshrrev_b32 v{vT1}, 1, v{vT0}
        v_cmp_eq_u32 vcc, 4, v{vT1}
        v_mov_b32 v{vT2}, 32
        s_nop 0
        v_cndmask_b32_e64 v{vLA}, v{vLA}, v{vUA}, vcc
        v_cndmask_b32_e64 v{vUA}, v{vT2}, 8, vcc
        """)
    for i in range(8):
        a(f"v_mov_b32 v{vAcc+i}, 0")
    a("s_waitcnt lgkmcnt(1)")
    for u in range(8):
        a(f"v_add_u32 v{vE+u}, v{vE+u}, v{vC16}")
        a(f"buffer_load_dwordx4 {vr(vXA+4*u,4)}, v{vE+u}, s[{sX}:{sX+3}], 0 offen")
        if u == 0:
            a(f"""
            s_waitcnt lgkmcnt(0)
            v_xor_b32 v{vT0}, v{vQC}, v{vC16}
            v_xor_b32 v{vT1}, v{vQC+1}, v{vC16}
            ds_read_b128 {vr(vQ,4)}, v{vT0} offset:{QS}
            ds_read_b128 {vr(vQ+4,4)}, v{vT1} offset:{QS}
            v_mov_b32 v{vPrev}, v{vQC}
            """)
    if "bstamp" in opt.exp: st.stamp(a)
    wv_id = [0]
    def wv_dma():
        i = wv_id[0]; wv_id[0] += 1
        a(f"""
        s_cmp_eq_u32 s{sR}, 0
        s_cbranch_scc0 K2_NOWV{i}
        s_lshl_b32 s3, s{sWave}, 11
        s_add_u32 s{sT}, s3, {WV}
        s_mov_b32 m0, s{sT}
        s_add_u32 s{sT}, s{sT}, 1024
        buffer_load_dwordx4 v{vWl}, s[{sWV}:{sWV+3}], s3 offen lds
        s_mov_b32 m0, s{sT}
        s_add_u32 s3, s3, 1024
        buffer_load_dwordx4 v{vWl}, s[{sWV}:{sWV+3}], s3 offen lds
        K2_NOWV{i}:
        """)
    flush_id = [0]
    def flush(prev, masked):
        fid = flush_id[0]; flush_id[0] += 1
        t = ""
        if masked is not None:
            t += f"""
            v_cmp_ne_u32 vcc, v{masked}, v{prev}
            s_cbranch_vccz K2_FL{fid}
            s_mov_b64 exec, vcc
            """
        t += f"""
        v_and_b32 v{vT0}, 0xffffff00, v{prev}
        v_lshl_add_u32 v{vT0}, v{vT0}, 1, v{vPB}
        ds_write_b128 v{vT0}, {vr(vAcc,4)}
        ds_write_b128 v{vT0}, {vr(vAcc+4,4)} offset:256
        """
        if masked is not None:
            if opt.mov64:
                for i in range(0, 8, 2):
                    t += f"v_mov_b64 {vr(vAcc+i,2)}, 0\n"
            else:
                for i in range(8):
                    t += f"v_mov_b32 v{vAcc+i}, 0\n"
            t += f"""
            s_mov_b64 exec, -1
            K2_FL{fid}:
            """
        return t
    def dots(X, waits):
        for half in range(2):
            a(waits[half])
            if "nodots" in opt.exp: continue
            for r in range(4):
                for u in range(4*half, 4*half+4):
                    if r == 0:
                        a(f"v_dot2_f32_bf16 v{vP+u}, v{X+4*u}, v{vQ+4*half}, 0")
                    else:
                        a(f"v_dot2c_f32_bf16 v{vP+u}, v{X+4*u+r}, v{vQ+4*half+r}")
    def chain(al):
        c = []
        for j in range(4):
            c.append(f"v_add_f32_dpp v{vP+j}, v{vP+j}, v{vP+j} row_mirror row_mask:0xf bank_mask:0x3")
        for j in range(4):
            c.append(f"v_add_f32_dpp v{vP+j}, v{vP+j+4}, v{vP+j+4} row_mirror row_mask:0xf bank_mask:0xc")
        for j in range(2):
            c.append(f"v_add_f32_dpp v{vP+j}, v{vP+j}, v{vP+j} row_half_mirror row_mask:0xf bank_mask:0x5")
        for j in range(2):
            c.append(f"v_add_f32_dpp v{vP+j}, v{vP+j+2}, v{vP+j+2} row_half_mirror row_mask:0xf bank_mask:0xa")
        c.append(f"v_add_f32_dpp v{vP+2}, v{vP}, v{vP} quad_perm:[1,0,3,2] row_mask:0xf bank_mask:0xf")
        c.append(f"v_add_f32_dpp v{vP+3}, v{vP+1}, v{vP+1} quad_perm:[1,0,3,2] row_mask:0xf bank_mask:0xf")
        c.append(f"v_cndmask_b32_e64 v{vP}, v{vP+2}, v{vP+3}, s[{sOdd}:{sOdd+1}]")
        c.append(f"v_add_f32_dpp v{vP}, v{vP}, v{vP} quad_perm:[2,3,0,1] row_mask:0xf bank_mask:0xf")
        if opt.mimic:
            c += [f"v_cvt_pk_bf16_f32 v{vP}, v{vP}, v{vP}", f"v_and_b32 v{vP}, 0xffff0000, v{vP}",
                  f"v_mul_f32 v{vP}, 0x3db504f3, v{vP}", f"v_cvt_pk_bf16_f32 v{vP}, v{vP}, v{vP}",
                  f"v_and_b32 v{vP}, 0xffff0000, v{vP}", f"v_mul_f32 v{vP}, 0xbfb8aa3b, v{vP}"]
        else:
            c.append(f"v_mul_f32 v{vP}, 0xbe0293ee, v{vP}")
        c += [f"v_exp_f32 v{vP}, v{vP}", f"v_add_f32 v{vP}, 1.0, v{vP}", f"v_rcp_f32 v{vP}, v{vP}",
              f"v_cvt_pk_bf16_f32 v{al}, v{vP}, 0", f"v_cvt_pk_bf16_f32 v{al+1}, 0, v{vP}"]
        return c
    def chain_alone(al):
        c = chain(al)
        gaps = {9: 1, 11: 1, 14: 2, 17 + (5 if opt.mimic else 0): 1, 19 + (5 if opt.mimic else 0): 1}
        for i, ins in enumerate(c):
            a(ins)
            if i in gaps: a(f"s_nop {gaps[i]-1}")
    def agg_stream(X, al, loads, Xdst, qp=None):
        out = []
        qp = vQP if qp is None else qp
        for half in range(2):
            if half == 0:
                out.append(('x', flush(vPrev, qp)))
            else:
                out.append(('x', "s_nop 1\n" + flush(qp, qp+1)))
            for u in range(4*half, 4*half+4):
                k = 4*(u >> 1) + (u & 1)
                for r in range(4):
                    if "noagg" in opt.exp:
                        out.append(('v', "s_nop 0")); out.append(('v', "s_nop 0")); continue
                    out.append(('v', f"v_dot2c_f32_bf16_dpp v{vAcc+2*r}, v{al}, v{X+4*u+r} row_newbcast:{k} row_mask:0xf bank_mask:0xf"))
                    out.append(('v', f"v_dot2c_f32_bf16_dpp v{vAcc+2*r+1}, v{al+1}, v{X+4*u+r} row_newbcast:{k} row_mask:0xf bank_mask:0xf"))
                if loads and "noload" not in opt.exp:
                    out.append(('x', f"buffer_load_dwordx4 {vr(Xdst+4*u,4)}, v{vE+u}, s[{sX}:{sX+3}], 0 offen"))
        return out
    def next_prep():
        a("s_waitcnt lgkmcnt(0)")
        a(f"v_xor_b32 v{vT0}, v{vQN}, v{vC16}")
        a(f"v_xor_b32 v{vT1}, v{vQN+1}, v{vC16}")
    def rotate(nxt):
        a(f"v_mov_b32 v{vQP}, v{vQC}")
        a(f"v_mov_b32 v{vQP+1}, v{vQC+1}")
        if nxt:
            a(f"v_mov_b32 v{vQC}, v{vQN}")
            a(f"v_mov_b32 v{vQC+1}, v{vQN+1}")
            a(f"v_add_u32 v{vLA}, 32, v{vLA}")
            a(f"v_add_u32 v{vUA}, 8, v{vUA}")
    def mid(cur, prev, al_cur, al_prev, nxt):
        a("s_waitcnt lgkmcnt(0)")
        if nxt:
            a(f"""
            ds_read_b128 {vr(vE,4)}, v{vLA} offset:{LIST+32}
            ds_read_b128 {vr(vE+4,4)}, v{vLA} offset:{LIST+48}
            ds_read_b64 {vr(vQN,2)}, v{vUA} offset:{UNODE+8}
            """)
        dots(cur, ("s_waitcnt vmcnt(4)", "s_waitcnt vmcnt(0)"))
        if nxt:
            next_prep()
            for u in range(8):
                a(f"v_add_u32 v{vE+u}, v{vE+u}, v{vC16}")
            a(f"ds_read_b128 {vr(vQ,4)}, v{vT0}")
            a(f"ds_read_b128 {vr(vQ+4,4)}, v{vT1}")
        else:
            a("s_nop 2")
        c = chain(al_cur)
        s_ = agg_stream(prev, al_prev, nxt, prev)
        nv = sum(1 for k, _ in s_ if k == 'v')
        ci, vi = 0, 0
        for k, t in s_:
            a(t)
            if k == 'v':
                vi += 1
                if ci < len(c) and vi >= (ci + 1) * nv // (len(c) + 1) and vi % 1 == 0:
                    a(c[ci]); ci += 1
        assert ci == len(c)
        a(f"v_mov_b32 v{vPrev}, v{vQP+1}")
        rotate(nxt)
    def final(X, al):
        for k, t in agg_stream(X, al, False, None):
            a(t)
        a("s_nop 2")
        a(flush(vQP+1, None))
        a("s_branch K2_MAIN_DONE")
    def roll_body(nxt):
        al = vAl[0]
        a("s_waitcnt lgkmcnt(0)")
        if nxt:
            a(f"""
            ds_read_b128 {vr(vE,4)}, v{vLA} offset:{LIST+32}
            ds_read_b128 {vr(vE+4,4)}, v{vLA} offset:{LIST+48}
            ds_read_b64 {vr(vQN,2)}, v{vUA} offset:{UNODE+8}
            """)
        dots(vXA, ("s_waitcnt vmcnt(4)", "s_waitcnt vmcnt(0)"))
        fill = []
        if nxt:
            next_prep()
            a(f"v_add_u32 v{vE}, v{vE}, v{vC16}")
            fill = [f"v_add_u32 v{vE+u}, v{vE+u}, v{vC16}" for u in range(1, 8)]
        else:
            a("s_nop 2")
        c = chain(al)
        gaps = {11: 1, 14: 2, 17 + (5 if opt.mimic else 0): 1, 19 + (5 if opt.mimic else 0): 1}
        for i, ins in enumerate(c):
            a(ins)
            if i == 3 and nxt:
                a(f"ds_read_b128 {vr(vQ,4)}, v{vT0} offset:{QS}")
                a(f"ds_read_b128 {vr(vQ+4,4)}, v{vT1} offset:{QS}")
            for _ in range(gaps.get(i, 0)):
                a(fill.pop(0) if fill else "s_nop 0")
        while fill: a(fill.pop(0))
        a("s_nop 0")
        for k, t in agg_stream(vXA, al, nxt, vXA, vQC):
            a(t)
        a(f"v_mov_b32 v{vPrev}, v{vQC+1}")
        if nxt:
            a(f"v_mov_b32 v{vQC}, v{vQN}")
            a(f"v_mov_b32 v{vQC+1}, v{vQN+1}")
            a(f"v_add_u32 v{vLA}, 32, v{vLA}")
            a(f"v_add_u32 v{vUA}, 8, v{vUA}")
    def roll3_body(nxt):
        al = vAl[0]
        vEn = vQN
        B = lambda k: f"row_newbcast:{k} row_mask:0xf bank_mask:0xf"
        a("s_waitcnt lgkmcnt(0)")
        if nxt:
            a(f"ds_read_b32 v{vEn}, v{vLA}")
            a(f"v_add_u32 v{vLA}, v{vLA}, v{vUA}")
        dots(vXA, ("s_waitcnt vmcnt(4)", "s_waitcnt vmcnt(0)"))
        fill = []
        if nxt:
            a("s_waitcnt lgkmcnt(0)")
            a(f"v_xor_b32_dpp v{vT0}, v{vEn}, v{vC16} {B(8)}")
            a(f"v_xor_b32_dpp v{vT1}, v{vEn}, v{vC16} {B(9)}")
            a(f"v_add_u32_dpp v{vE}, v{vEn}, v{vC16} {B(0)}")
            fill = [f"v_add_u32_dpp v{vE+u}, v{vEn}, v{vC16} {B(u)}" for u in range(1, 8)]
        else:
            a("s_nop 2")
        c = chain(al)
        gaps = {11: 1, 14: 2, 17 + (5 if opt.mimic else 0): 1, 19 + (5 if opt.mimic else 0): 1}
        for i, ins in enumerate(c):
            a(ins)
            if i == 3 and nxt:
                a(f"ds_read_b128 {vr(vQ,4)}, v{vT0} offset:{QS}")
                a(f"ds_read_b128 {vr(vQ+4,4)}, v{vT1} offset:{QS}")
            for _ in range(gaps.get(i, 0)):
                a(fill.pop(0) if fill else "s_nop 0")
        while fill: a(fill.pop(0))
        a("s_nop 0")
        for k, t in agg_stream(vXA, al, nxt, vXA, vQC):
            a(t)
        a(f"v_mov_b32 v{vPrev}, v{vQC+1}")
        if nxt:
            a(f"v_mov_b32_dpp v{vQC}, v{vEn} {B(8)}")
            a(f"v_mov_b32_dpp v{vQC+1}, v{vEn} {B(9)}")
    if opt.style == "roll3":
        roll_body = roll3_body
    if opt.style in ("roll", "roll3"):
        a(f"""
        s_cmp_eq_u32 s{sHB}, 1
        s_cbranch_scc1 K2_LAST
        K2_LOOP:
        """)
        if opt.prio == 1:
            a(f"""
            s_cmp_ge_u32 s{sHB}, 4
            s_cbranch_scc1 K2_PR0
            s_setprio 2
            s_cmp_eq_u32 s{sHB}, 3
            s_cbranch_scc1 K2_PR0
            s_setprio 1
            K2_PR0:
            """)
        if opt.prio == 3:
            a(f"""
            s_cmp_ge_u32 s{sHB}, 3
            s_cbranch_scc1 K2_PR0
            s_setprio 2
            K2_PR0:
            """)
        roll_body(True)
        a(f"""
        s_sub_u32 s{sHB}, s{sHB}, 1
        s_cmp_gt_u32 s{sHB}, 1
        s_cbranch_scc1 K2_LOOP
        K2_LAST:
        """)
        if opt.prio == 1: a("s_setprio 0")
        if opt.prio == 3: a("s_setprio 1")
        if opt.prio == 4: a("s_setprio 2")
        roll_body(False)
        a("s_nop 2")
        a(flush(vPrev, None))
    else:
        def body2(cur, oth, qc, qn, first, has1, has2):
            al = vAl[0]
            a("s_waitcnt lgkmcnt(0)")
            if has1:
                a(f"ds_read_b64 {vr(qn,2)}, v{vUA} offset:{UNODE+8}")
                if first:
                    a(f"ds_read_b128 {vr(vE,4)}, v{vLA} offset:{LIST+32}")
                    a(f"ds_read_b128 {vr(vE+4,4)}, v{vLA} offset:{LIST+48}")
            if has2 and not first:
                a(f"ds_read_b128 {vr(vE,4)}, v{vLA} offset:{LIST+64}")
                a(f"ds_read_b128 {vr(vE+4,4)}, v{vLA} offset:{LIST+80}")
            if first or not has1: waits = ("s_waitcnt vmcnt(4)", "s_waitcnt vmcnt(0)")
            else: waits = ("s_waitcnt vmcnt(12)", "s_waitcnt vmcnt(8)")
            dots(cur, waits)
            fill = []
            if has1:
                a("s_waitcnt lgkmcnt(0)")
                a(f"v_xor_b32 v{vT0}, v{qn}, v{vC16}")
                a(f"v_xor_b32 v{vT1}, v{qn+1}, v{vC16}")
                if first:
                    for u in range(8):
                        a(f"v_add_u32 v{vE+u}, v{vE+u}, v{vC16}")
                        a(f"buffer_load_dwordx4 {vr(oth+4*u,4)}, v{vE+u}, s[{sX}:{sX+3}], 0 offen")
                    if has2:
                        a(f"ds_read_b128 {vr(vE,4)}, v{vLA} offset:{LIST+64}")
                        a(f"ds_read_b128 {vr(vE+4,4)}, v{vLA} offset:{LIST+80}")
                elif has2:
                    a(f"v_add_u32 v{vE}, v{vE}, v{vC16}")
                    fill = [f"v_add_u32 v{vE+u}, v{vE+u}, v{vC16}" for u in range(1, 8)]
                else:
                    a("s_nop 0")
            else:
                a("s_nop 2")
            c = chain(al)
            gaps = {11: 1, 14: 2, 17 + (5 if opt.mimic else 0): 1, 19 + (5 if opt.mimic else 0): 1}
            for i, ins in enumerate(c):
                a(ins)
                if i == 3 and has1:
                    a(f"ds_read_b128 {vr(vQ,4)}, v{vT0} offset:{QS}")
                    a(f"ds_read_b128 {vr(vQ+4,4)}, v{vT1} offset:{QS}")
                for _ in range(gaps.get(i, 0)):
                    a(fill.pop(0) if fill else "s_nop 0")
            while fill: a(fill.pop(0))
            if first and has2:
                a("s_waitcnt lgkmcnt(2)")
                for u in range(8):
                    a(f"v_add_u32 v{vE+u}, v{vE+u}, v{vC16}")
            else:
                a("s_nop 0")
            for k, t in agg_stream(cur, al, has2, cur, qc):
                a(t)
            a(f"v_mov_b32 v{vPrev}, v{qc+1}")
            if has1:
                a(f"v_add_u32 v{vLA}, 32, v{vLA}")
                a(f"v_add_u32 v{vUA}, 8, v{vUA}")
        def last2(cur, oth, qc, qn):
            if opt.prio: a("s_setprio 0")
            body2(cur, oth, qc, qn, False, False, False)
            a("s_nop 2")
            a(flush(vPrev, None))
            a("s_branch K2_MAIN_DONE")
        qA, qB = vQC, vQN
        a(f"""
        s_cmp_eq_u32 s{sHB}, 1
        s_cbranch_scc1 K2_LA
        s_cmp_eq_u32 s{sHB}, 2
        s_cbranch_scc1 K2_F2
        """)
        body2(vXA, vXB, qA, qB, True, True, True)
        a(f"""
        s_sub_u32 s{sHB}, s{sHB}, 1
        K2_LOOP:
        s_cmp_eq_u32 s{sHB}, 2
        s_cbranch_scc1 K2_PB
        """)
        if opt.prio: a("s_setprio 2")
        body2(vXB, vXA, qB, qA, False, True, True)
        a(f"""
        s_sub_u32 s{sHB}, s{sHB}, 1
        s_cmp_eq_u32 s{sHB}, 2
        s_cbranch_scc1 K2_PA
        """)
        body2(vXA, vXB, qA, qB, False, True, True)
        a(f"""
        s_sub_u32 s{sHB}, s{sHB}, 1
        s_branch K2_LOOP
        K2_PB:
        """)
        if opt.prio: a("s_setprio 1")
        body2(vXB, vXA, qB, qA, False, True, False)
        a("K2_LA:")
        last2(vXA, vXB, qA, qB)
        a("K2_PA:")
        if opt.prio: a("s_setprio 1")
        body2(vXA, vXB, qA, qB, False, True, False)
        a("K2_LB:")
        last2(vXB, vXA, qB, qA)
        a("K2_F2:")
        body2(vXA, vXB, qA, qB, True, True, False)
        a("s_branch K2_LB")
    a("s_branch K2_MAIN_DONE")
    a("K2_NOMAIN:")
    a("K2_MAIN_DONE:")
    if opt.prio: a("s_setprio 0")
    if "cyc" in opt.exp: st.stamp(a, True)
    st.stamp(a)
    a(f"""
    s_cmp_eq_u32 s{sR}, 0
    s_cbranch_scc0 K2_NRDONE
    v_mov_b32 v{vT3}, {MAXC}
    ds_read_b32 v{vT3}, v{vT3}
    s_waitcnt lgkmcnt(0)
    v_readfirstlane_b32 s3, v{vT3}
    s_nop 3
    s_min_u32 s3, s3, {CH}
    s_add_u32 s3, s3, 7
    s_lshr_b32 s3, s3, 3
    s_add_u32 s{sNR}, s3, 1
    K2_NRDONE:
    """)
    vSf, vSl = vE, vE+1
    a(f"""
    s_cmp_eq_u32 s{sWave}, 0
    s_cbranch_scc0 K2_NOTBL
    s_add_u32 s3, s{sQ}, 1
    s_lshl_b32 s3, s3, 1
    v_cvt_f32_u32 v{vT0}, s3
    s_mul_i32 s3, s3, s{sRem}
    s_lshl_b32 s{sP}, s3, 2
    s_lshl_b32 s3, s{sQ}, 1
    v_cvt_f32_u32 v{vT1}, s3
    v_rcp_f32 v{vT0}, v{vT0}
    v_rcp_f32 v{vT1}, v{vT1}
    s_lshl_b32 s3, s{sRem}, 2
    """)
    for (dst, last) in ((vSf, False), (vSl, True)):
        if not last:
            a(f"v_lshrrev_b32 v{vT2}, 2, v{vStart}")
        else:
            a(f"""
            v_add_u32 v{vT2}, v{vStart}, v{vPc}
            v_lshrrev_b32 v{vT2}, 2, v{vT2}
            v_add_u32 v{vT2}, -1, v{vT2}
            """)
        a(f"""
        v_cmp_gt_u32 vcc, s{sP}, v{vT2}
        v_cvt_f32_u32 v{vT3}, v{vT2}
        v_add_f32 v{vT3}, 0.5, v{vT3}
        v_mul_f32 v{vT3}, v{vT3}, v{vT0}
        v_cvt_u32_f32 v{vT3}, v{vT3}
        v_subrev_u32 v{vT2}, s{sP}, v{vT2}
        v_cvt_f32_u32 v{vT2}, v{vT2}
        v_add_f32 v{vT2}, 0.5, v{vT2}
        v_mul_f32 v{vT2}, v{vT2}, v{vT1}
        v_cvt_u32_f32 v{vT2}, v{vT2}
        v_add_u32 v{vT2}, s3, v{vT2}
        v_cndmask_b32_e64 v{dst}, v{vT2}, v{vT3}, vcc
        """)
    a(f"""
    v_sub_u32 v{vT0}, v{vSl}, v{vSf}
    v_add_u32 v{vT0}, 1, v{vT0}
    v_cmp_lt_u32 vcc, 0, v{vPc}
    v_add_u32 v{vT1}, v{vSf}, v{vLane}
    v_lshlrev_b32 v{vT1}, 9, v{vT1}
    v_cndmask_b32_e64 v{vT0}, 0, v{vT0}, vcc
    v_add_u32 v{vT1}, {PIECE}, v{vT1}
    v_lshlrev_b32 v{vT3}, 2, v{vLane}
    v_mov_b32 v{vT2}, {ZROW}
    ds_write_b32 v{vT3}, v{vT0} offset:{NPC}
    """)
    for j in range(4):
        a(f"""
        v_cmp_lt_u32 vcc, {j}, v{vT0}
        v_add_u32 v{vT3}, {512*j}, v{vT1}
        s_nop 0
        v_cndmask_b32_e64 v{vE+4+j}, v{vT2}, v{vT3}, vcc
        """)
    a(f"""
    v_lshlrev_b32 v{vT0}, 4, v{vLane}
    ds_write_b128 v{vT0}, {vr(vE+4,4)} offset:{TBL}
    K2_NOTBL:
    """)
    vA8 = vXB
    a(f"""
    s_cmp_ge_u32 s{sWave}, 8
    s_cbranch_scc1 K2_NOAA
    s_and_b32 s{sP}, s{sWave}, 3
    s_lshr_b32 s{sNH}, s{sWave}, 2
    """)
    tile_a_addr(a, vWa, vLane, vT2, vT3, sP, WV)
    for ks in range(8):
        if ks == 6: a("s_waitcnt lgkmcnt(4)")
        a(f"ds_read_b64_tr_b16 {vr(vA8+4*ks,2)}, v{vWa} offset:{ks*4096}")
        a(f"ds_read_b64_tr_b16 {vr(vA8+4*ks+2,2)}, v{vWa} offset:{ks*4096 + 1024}")
    a(f"""
    v_and_b32 v{vRow}, 31, v{vLane}
    s_lshl_b32 s3, s{sNH}, 5
    v_add_u32 v{vRow}, s3, v{vRow}
    """)
    tile_b_addr(a, vBa, vRow, vLane, vT3)
    vTa, vNa, vWb, vOut = 80, 81, 82, 83
    for ks in range(8):
        a(f"v_xor_b32 v{vQ+ks}, {32*ks}, v{vBa}")
    a(f"""
    s_mul_i32 s3, s{sBeta}, {T*256}
    s_lshl_b32 s{sCnt}, s{sP}, 6
    s_add_u32 s3, s3, s{sCnt}
    v_lshrrev_b32 v{vT0}, 5, v{vLane}
    v_lshlrev_b32 v{vOut}, 8, v{vRow}
    v_lshl_add_u32 v{vOut}, v{vT0}, 5, v{vOut}
    v_add_u32 v{vOut}, s3, v{vOut}
    K2_NOAA:
    v_lshrrev_b32 v{vT0}, 4, v{vLane}
    s_lshl_b32 s3, s{sWave}, 2
    v_add_u32 v{vT0}, s3, v{vT0}
    v_lshlrev_b32 v{vTa}, 4, v{vT0}
    v_lshlrev_b32 v{vNa}, 2, v{vT0}
    v_xor_b32 v{vWb}, v{vTa}, v{vC16}
    v_and_b32 v{vWb}, 0xf0, v{vWb}
    v_lshl_add_u32 v{vWb}, v{vT0}, 8, v{vWb}
    s_waitcnt lgkmcnt(0)
    s_barrier
    """)
    st.stamp(a)
    vB = vE
    vRd = vXA
    vNp = vT3
    a(f"""
    s_cmp_ge_u32 s{sWave}, 13
    s_cbranch_scc1 K2_RED_DONE
    ds_read_b128 {vr(vB,4)}, v{vTa} offset:{TBL}
    ds_read_b32 v{vNp}, v{vNa} offset:{NPC}
    s_waitcnt lgkmcnt(0)
    """)
    for j in range(3):
        a(f"""
        v_add_u32 v{vB+j}, v{vB+j}, v{vC16}
        ds_read_b128 {vr(vRd+8*j,4)}, v{vB+j}
        ds_read_b128 {vr(vRd+8*j+4,4)}, v{vB+j} offset:256
        """)
    for j in range(3):
        a(f"s_waitcnt lgkmcnt({4-2*j})")
        for i in range(8):
            a(f"v_add_f32 v{vTot+i}, v{vTot+i}, v{vRd+8*j+i}")
    a(f"""
    s_mov_b32 s{sT}, 3
    K2_XL:
    v_cmp_lt_u32 vcc, s{sT}, v{vNp}
    s_cbranch_vccz K2_RED_DONE
    s_lshl_b32 s3, s{sT}, 9
    v_add_u32 v{vT0}, s3, v{vB}
    s_mov_b64 exec, vcc
    ds_read_b128 {vr(vRd,4)}, v{vT0}
    ds_read_b128 {vr(vRd+4,4)}, v{vT0} offset:256
    s_waitcnt lgkmcnt(0)
    """)
    for i in range(8):
        a(f"v_add_f32 v{vTot+i}, v{vTot+i}, v{vRd+i}")
    a(f"""
    s_mov_b64 exec, -1
    s_add_u32 s{sT}, s{sT}, 1
    s_branch K2_XL
    K2_RED_DONE:
    s_add_u32 s{sR}, s{sR}, 1
    s_cmp_ge_u32 s{sR}, s{sNR}
    s_cbranch_scc1 K2_EPI
    s_barrier
    """)
    a(f"""
    s_cmp_ge_u32 s{sWave}, 4
    s_cbranch_scc1 K2_RZ
    v_mov_b32 v{vT2}, 0
    v_lshlrev_b32 v{vT3}, 2, v0
    ds_write_b32 v{vT3}, v{vT2} offset:{HIST}
    K2_RZ:
    v_bfe_u32 v{vT2}, v{vLane}, 2, 1
    v_mul_u32_u24 v{vT2}, 12, v{vT2}
    v_and_b32 v{vT3}, 3, v{vLane}
    v_or_b32 v{vT2}, v{vT2}, v{vT3}
    v_lshlrev_b32 v{vUA}, 8, v{vLane}
    v_lshl_or_b32 v{vUA}, v{vT2}, 4, v{vUA}
    s_waitcnt lgkmcnt(0)
    s_barrier
    s_cmp_lt_u32 s{sWave}, 8
    s_cbranch_scc1 K2_HDRD
    """)
    for i in range(8): a(f"v_mov_b32 v{vW+i}, {EMPTY}")
    a(f"""
    v_subrev_u32 v{vT0}, 512, v0
    v_and_b32 v{vT1}, 1, v{vT0}
    v_lshrrev_b32 v{vT0}, 1, v{vT0}
    v_lshlrev_b32 v{vT2}, 2, v{vT0}
    v_add_u32 v{vT2}, {MF}, v{vT2}
    ds_read_b32 v{vT3}, v{vT2}
    v_lshlrev_b32 v{vT0}, 14, v{vT0}
    v_add_u32 v{vT0}, {WS_OVF}, v{vT0}
    s_lshl_b32 s3, s{sR}, 3
    s_sub_u32 s3, s3, 8
    v_lshl_add_u32 v{vT1}, v{vT1}, 2, s3
    v_lshl_add_u32 v{vT0}, v{vT1}, 3, v{vT0}
    s_mov_b32 s{sQ}, {1 << TAGSH}
    s_mov_b32 s{sT}, {1 << 17}
    s_waitcnt lgkmcnt(0)
    v_sub_u32 v{vT3}, v{vT3}, v{vT1}
    v_cmp_lt_i32 vcc, 0, v{vT3}
    s_and_saveexec_b64 s[{sSave}:{sSave+1}], vcc
    s_cbranch_execz K2_R1
    v_cmp_lt_i32 s[{sM}:{sM+1}], 1, v{vT3}
    v_cmp_lt_i32 s[{sM+2}:{sM+3}], 2, v{vT3}
    v_cmp_lt_i32 s[{sM+4}:{sM+5}], 3, v{vT3}
    K2_RP:
    buffer_load_dwordx4 {vr(vSoM,4)}, v{vT0}, s[{sWS}:{sWS+3}], 0 offen sc1
    buffer_load_dwordx4 {vr(vSoM+4,4)}, v{vT0}, s[{sWS}:{sWS+3}], 0 offen offset:16 sc1
    s_waitcnt vmcnt(0)
    """)
    for i in range(8): a(f"v_xor_b32 v{vSoM+i}, s{sTag}, v{vSoM+i}")
    a(f"v_or_b32 v{vT1}, v{vSoM}, v{vSoM+1}")
    for k in range(1, 4):
        a(f"""
        v_or_b32 v{vT2}, v{vSoM+2*k}, v{vSoM+2*k+1}
        v_cndmask_b32_e64 v{vT2}, 0, v{vT2}, s[{sM+2*(k-1)}:{sM+2*(k-1)+1}]
        v_or_b32 v{vT1}, v{vT1}, v{vT2}
        """)
    a(f"""
    v_cmp_le_u32 vcc, s{sQ}, v{vT1}
    s_cbranch_vccz K2_RPD
    s_sleep 2
    s_sub_u32 s{sT}, s{sT}, 1
    s_cmp_lg_u32 s{sT}, 0
    s_cbranch_scc1 K2_RP
    K2_RPD:
    v_cmp_eq_u32 vcc, s{sBeta}, v{vSoM+1}
    s_nop 1
    v_cndmask_b32_e64 v{vW}, v{vW}, v{vSoM}, vcc
    """)
    for k in range(1, 4):
        a(f"""
        v_cmp_eq_u32 vcc, s{sBeta}, v{vSoM+2*k+1}
        s_nop 0
        s_and_b64 vcc, vcc, s[{sM+2*(k-1)}:{sM+2*(k-1)+1}]
        s_nop 1
        v_cndmask_b32_e64 v{vW+k}, v{vW+k}, v{vSoM+2*k}, vcc
        """)
    a(f"""
    K2_R1:
    s_mov_b64 exec, s[{sSave}:{sSave+1}]
    v_mov_b32 v{vT3}, 1
    s_branch K2_DECODE
    K2_EPI:
    """)
    st.stamp(a)
    vAcc16, vB8 = 24, vXA
    a(f"""
    s_cmp_ge_u32 s{sWave}, 13
    s_cbranch_scc1 K2_WB_DONE
    """)
    for i in range(4):
        a(f"v_cvt_pk_bf16_f32 v{vE+i}, v{vTot+2*i}, v{vTot+2*i+1}")
    a(f"""
    ds_write_b128 v{vWb}, {vr(vE,4)} offset:{AGGB}
    K2_WB_DONE:
    s_waitcnt lgkmcnt(0)
    s_barrier
    s_cmp_ge_u32 s{sWave}, 8
    s_cbranch_scc1 K2_FIN
    """)
    a(f"v_mov_b32 v{vE}, v{vOut}")
    for ks in range(8):
        a(f"ds_read_b128 {vr(vB8+4*ks,4)}, v{vQ+ks} offset:{AGGB}")
    a(f"v_cmp_gt_u32 vcc, {T}, v{vRow}")
    for ks in range(8):
        a(f"s_waitcnt lgkmcnt({7-ks})")
        c = "0" if ks == 0 else vr(vAcc16,16)
        a(f"v_mfma_f32_32x32x16_bf16 {vr(vAcc16,16)}, {vr(vA8+4*ks,4)}, {vr(vB8+4*ks,4)}, {c}")
    a("s_nop 7")
    a("s_nop 3")
    for i in range(8):
        a(f"v_cvt_pk_bf16_f32 v{vQ+i}, v{vAcc16+2*i}, v{vAcc16+2*i+1}")
    a(f"""
    s_and_saveexec_b64 s[{sSave}:{sSave+1}], vcc
    s_cbranch_execz K2_ST_DONE
    buffer_store_dwordx4 {vr(vQ,4)}, v{vE}, s[{sOUT}:{sOUT+3}], 0 offen {opt.outst}
    buffer_store_dwordx4 {vr(vQ+4,4)}, v{vE}, s[{sOUT}:{sOUT+3}], 0 offen offset:16 {opt.outst}
    K2_ST_DONE:
    s_mov_b64 exec, s[{sSave}:{sSave+1}]
    K2_FIN:
    s_cmp_eq_u32 s2, 0
    s_cbranch_scc0 K2_NOEPOCH
    s_cmp_eq_u32 s{sWave}, 15
    s_cbranch_scc0 K2_NOEPOCH
    v_mov_b32 v{vT0}, 0
    v_mov_b32 v{vT1}, s{sTag}
    s_mov_b64 exec, 1
    buffer_store_dword v{vT1}, v{vT0}, s[{sWS}:{sWS+3}], 0 offen sc1
    s_mov_b64 exec, -1
    K2_NOEPOCH:
    """)
    st.stamp(a)
    if opt.stamps:
        a("s_waitcnt vmcnt(0)")
        st.stamp(a)
    st.flush(a, sWS, vT0, sWave)
    a("""
    K2_END:
    s_endpgm
    """)
    return a.text(), LDS, 128

DESCRIPTION = """;
;   out[n] = bf16( sum_{e: dst[e] = n} sigmoid(x[src[e]] . Q[n] / sqrt(128)) * x[src[e]] ) @ w_v,   Q = bf16(x @ w_q)
"""

def build(opt):
    k, lds, v = gen_k(opt)
    n = NAME + "_kernel"
    out = HEADER + DESCRIPTION
    for _ in range(opt.rep):
        out += f"; @launch kernel={n} grid=({NB},1,1) block=(1024,1,1) lds={lds}\n" if opt.aslist or opt.rep > 1 else f"; @launch grid=({NB},1,1) block=(1024,1,1) lds={lds}\n"
    out += '.amdgcn_target "amdgcn-amd-amdhsa--gfx950"\n.text\n'
    out += f".globl {n}\n.p2align 8\n.type {n},@function\n" + k
    out += '.section .rodata,"a"\n.p2align 6\n' + kd(n, v)
    return out

def parse(argv=None):
    p = argparse.ArgumentParser()
    p.add_argument("-o", default="cdna_kernels/" + NAME + ".s")
    p.add_argument("--stamps", action="store_true")
    p.add_argument("--prefetch", type=int, default=5)
    p.add_argument("--mimic", type=int, default=0)
    p.add_argument("--prio", type=int, default=3)
    p.add_argument("--keep", default="")
    p.add_argument("--exp", default="")
    p.add_argument("--outst", default="")
    p.add_argument("--sleep", type=int, default=2)
    p.add_argument("--drain", type=int, default=0)
    p.add_argument("--sleep2", type=int, default=0)
    p.add_argument("--pf6", type=int, default=0)
    p.add_argument("--mov64", type=int, default=0)
    p.add_argument("--pprio", type=int, default=0)
    p.add_argument("--eld", default="")
    p.add_argument("--pfn", type=int, default=3)
    p.add_argument("--pfsh", type=int, default=7)
    p.add_argument("--pfsleep", type=int, default=0)
    p.add_argument("--wsbase", type=lambda x: int(x, 0), default=0)
    p.add_argument("--cst", default="sc1")
    p.add_argument("--dmalate", type=int, default=0)
    p.add_argument("--rep", type=int, default=1)
    p.add_argument("--aslist", type=int, default=0)
    p.add_argument("--style", default="roll3")
    return p.parse_args(argv)

if __name__ == "__main__":
    o = parse()
    open(o.o, "w").write(build(o))
    print("wrote", o.o)
```

```python
import sys, argparse
from gen import A, vr, Stamps, scan64, kd, HEADER, NAME

N, E, D = 12500, 400000, 128
T = 49
NB = 256
CH = 1564
C = 256
XBYTES = N * 256
EBYTES = E * 4
WS_NONCE = 0
WS_OVH = 0x1000
WS_EXTRA = 0x40000
WS_CELLS = 0x100000
CELLROW = 16384
WS_OVF = 0x500000
OVF_STRIDE = 16384
WS_USED = WS_OVF + 256 * OVF_STRIDE
TAGSH = 23
EMPTY = 0x3f
WS_STAMP = 0x1000000
OOB = 0x40000000
DUMMY = 49

def srd_tail(a, d, size):
    a(f"s_mov_b32 s{d+2}, {size}")
    a(f"s_mov_b32 s{d+3}, 0x00020000")

def tile_a_addr(a, vdst, vlane, t0, t1, sP, wbase):
    a(f"""
    v_bfe_u32 v{t0}, v{vlane}, 2, 2
    v_lshrrev_b32 v{t1}, 5, v{vlane}
    v_lshl_add_u32 v{vdst}, v{t1}, 3, v{t0}
    v_lshlrev_b32 v{vdst}, 8, v{vdst}
    v_xor_b32 v{t0}, s{sP}, v{t0}
    v_lshl_add_u32 v{vdst}, v{t0}, 6, v{vdst}
    v_bfe_u32 v{t0}, v{vlane}, 4, 1
    v_bfe_u32 v{t1}, v{vlane}, 1, 1
    v_lshl_add_u32 v{t0}, v{t0}, 1, v{t1}
    v_and_b32 v{t1}, 1, v{vlane}
    v_lshl_add_u32 v{t0}, v{t1}, 2, v{t0}
    v_lshl_add_u32 v{vdst}, v{t0}, 3, v{vdst}
    v_add_u32 v{vdst}, {wbase}, v{vdst}
    """)

def tile_b_addr(a, vdst, vrow, vlane, t0):
    a(f"""
    v_lshrrev_b32 v{t0}, 5, v{vlane}
    v_xor_b32 v{t0}, v{t0}, v{vrow}
    v_and_b32 v{t0}, 15, v{t0}
    v_lshlrev_b32 v{t0}, 4, v{t0}
    v_lshl_add_u32 v{vdst}, v{vrow}, 8, v{t0}
    """)

def gen_k(opt):
    a = A()
    HIST, MAXC, ZROW, TBL = 0, 256, 512, 1024
    NPC = TBL + 1024
    LIST = NPC + 256
    LISTW = 6144
    UNODE = LIST + LISTW * 4
    QS = UNODE + 1536 * 4
    AGGB = QS + 52 * 256
    PIECE = AGGB + 64 * 256
    XT = PIECE
    WQ = XT + 16384
    WV = PIECE + (DUMMY + 64) * 512
    LDS = WV + 32768
    assert WQ + 32768 <= WV
    st = Stamps(opt.stamps, 64, WS_STAMP + 0x40000, [int(x) for x in opt.keep.split(',')] if opt.keep else None)
    sX, sWQ, sWV, sOUT, sWS = 4, 8, 12, 16, 20
    sBeta, sWave, sR, sNR = 24, 25, 26, 27
    sOdd = 28
    sBeta24, sHB, sP, sNH, s196 = 30, 31, 32, 33, 34
    sM = 36
    sSave = 50
    sCnt, sQ, sRem, sT = 52, 53, 54, 55
    vC16, vPB, vLA, vUA, vPrev = 1, 2, 3, 4, 5
    vQP, vQC, vQN = 6, 8, 10
    vAl = (12, 14)
    vQB = 16
    vT0, vT1, vT2, vT3 = 17, 18, 19, 20
    vLane, vStart, vPc = 21, 22, 23
    vAcc, vP, vE, vQ = 24, 32, 40, 48
    vXA, vXB, vTot = 56, 88, 120
    vCand, vHdr, vSo, vN4, vRk = 56, 60, 64, 72, 80
    vCnt = 47
    vHdr2, vSo2, vN42, vRk2 = 88, 92, 96, 100
    sM2 = 56
    vWl = 6
    vWa, vBa, vRow, vQst = 12, 13, 14, 15
    HP = LDS
    OVC, JUNK = HP + 1024, HP + 1040
    H2 = HP + 1280
    ST2 = H2 + 256
    MF = ST2 + 1024
    LDS = MF + 1024
    OVL = LIST
    OVB = LIST + 8192
    STAGE = AGGB
    sSRC, sDST, sNonce, sPi = 56, 60, 35, 3
    sTag = 30
    vDst, vSrc, vEnt, vAdr, vRank, vNeg, vNon, vGo = 56, 58, 60, 62, 64, 68, 66, 67
    vBk = 76
    a(f"""
    {NAME}_kernel:
    s_cmp_ge_u32 s2, {NB}
    s_cbranch_scc1 K2_END
    s_load_dwordx2 s[{sWS}:{sWS+1}], s[0:1], 56
    s_load_dwordx2 s[{sDST}:{sDST+1}], s[0:1], 16
    s_load_dwordx2 s[{sSRC}:{sSRC+1}], s[0:1], 8
    s_load_dwordx2 s[{sX}:{sX+1}], s[0:1], 0
    s_load_dwordx2 s[{sWQ}:{sWQ+1}], s[0:1], 24
    s_load_dwordx2 s[{sWV}:{sWV+1}], s[0:1], 32
    s_load_dwordx2 s[{sOUT}:{sOUT+1}], s[0:1], 40
    """)
    st.stamp(a)
    srd_tail(a, sWS, WS_USED if not opt.stamps else 0x2000000)
    srd_tail(a, sDST, EBYTES); srd_tail(a, sSRC, EBYTES); srd_tail(a, sX, XBYTES); srd_tail(a, sWQ, 32768)
    a(f"""
    v_lshrrev_b32 v{vT0}, 6, v0
    s_mov_b32 s{sBeta}, s2
    s_mul_i32 s3, s2, {CH*4}
    v_readfirstlane_b32 s{sWave}, v{vT0}
    v_lshlrev_b32 v{vT2}, 3, v0
    v_add_u32 v{vT2}, s3, v{vT2}
    s_movk_i32 s{sT}, {CH//2}
    s_cmp_eq_u32 s2, {C-1}
    s_cselect_b32 s{sT}, {(E - (C-1)*CH)//2}, s{sT}
    v_mov_b32 v{vT3}, 0
    v_cmp_gt_u32 vcc, s{sT}, v0
    s_and_saveexec_b64 s[{sSave}:{sSave+1}], vcc
    s_waitcnt lgkmcnt(0)
    {("s_add_u32 s%d, s%d, %d" % (sWS, sWS, opt.wsbase)) if opt.wsbase else ""}
    {("s_addc_u32 s%d, s%d, 0" % (sWS+1, sWS+1)) if opt.wsbase else ""}
    s_cbranch_execz K1_NOEDGE0
    buffer_load_dwordx2 {vr(vDst,2)}, v{vT2}, s[{sDST}:{sDST+3}], 0 offen {opt.eld}
    buffer_load_dwordx2 {vr(vSrc,2)}, v{vT2}, s[{sSRC}:{sSRC+3}], 0 offen {opt.eld}
    K1_NOEDGE0:
    s_mov_b64 exec, s[{sSave}:{sSave+1}]
    buffer_load_dword v{vNon}, v{vT3}, s[{sWS}:{sWS+3}], 0 offen sc1
    """)
    a(f"""
    v_and_b32 v{vLane}, 63, v0
    v_bfe_u32 v{vT0}, v0, 4, 2
    v_and_b32 v{vT1}, 15, v0
    v_lshlrev_b32 v{vC16}, 4, v{vT1}
    """)
    a(f"""
    v_mov_b32 v{vNeg}, {EMPTY}
    v_mov_b32 v{vNeg+1}, {EMPTY}
    v_mov_b32 v{vNeg+2}, {EMPTY}
    v_mov_b32 v{vNeg+3}, {EMPTY}
    v_lshlrev_b32 v{vT2}, 4, v0
    ds_write_b128 v{vT2}, {vr(vNeg,4)} offset:{STAGE}
    s_cmp_eq_u32 s{sWave}, 12
    s_cbranch_scc0 K1_NOS2
    v_lshlrev_b32 v{vT3}, 4, v{vLane}
    v_add_u32 v{vT3}, {ST2}, v{vT3}
    ds_write_b128 v{vT3}, {vr(vNeg,4)}
    K1_NOS2:
    v_mov_b32 v{vT2}, 0
    v_lshlrev_b32 v{vT3}, 2, v0
    s_cmp_ge_u32 s{sWave}, 6
    s_cbranch_scc1 K1_NOZ0
    v_add_u32 v{vT3}, {HP}, v{vT3}
    ds_write_b32 v{vT3}, v{vT2}
    s_branch K1_NOZ1
    K1_NOZ0:
    s_sub_u32 s3, s{sWave}, 8
    s_cmp_ge_u32 s3, 4
    s_cbranch_scc1 K1_NOZ2
    v_add_u32 v{vT3}, {HIST - 2048}, v{vT3}
    ds_write_b32 v{vT3}, v{vT2}
    s_branch K1_NOZ1
    K1_NOZ2:
    s_cmp_lt_u32 s{sWave}, 12
    s_cbranch_scc1 K1_NOZ1
    v_add_u32 v{vT3}, {MF - 3072}, v{vT3}
    ds_write_b32 v{vT3}, v{vT2}
    K1_NOZ1:
    s_mov_b32 s{sR}, 0
    s_mov_b32 s{sOdd}, 0xaaaaaaaa
    s_mov_b32 s{sOdd+1}, 0xaaaaaaaa
    s_movk_i32 s{s196}, {T*4}
    s_lshl_b32 s3, s{sWave}, 11
    s_add_u32 s3, s3, {PIECE}
    v_lshl_add_u32 v{vPB}, v{vT0}, 9, s3
    v_add_u32 v{vPB}, v{vPB}, v{vC16}
    s_and_b32 s{sPi}, s2, 7
    s_lshl_b32 s{sPi}, s{sPi}, 5
    s_lshr_b32 s{sT}, s2, 3
    s_add_u32 s{sPi}, s{sPi}, s{sT}
    s_mov_b32 s{sHB}, s{sPi}
    v_lshrrev_b32 v{vT2}, 2, v0
    v_lshlrev_b32 v{vGo}, 14, v{vT2}
    v_and_b32 v{vT2}, 3, v0
    v_lshl_add_u32 v{vGo}, v{vT2}, 4, v{vGo}
    v_mov_b32 v{vT3}, 1
    s_waitcnt lgkmcnt(0)
    s_barrier
    """)
    st.stamp(a)
    def early_dma():
        a(f"""
        v_bfe_u32 v{vT0}, v0, 4, 2
        v_and_b32 v{vT1}, 15, v0
        v_lshlrev_b32 v{vT2}, 2, v{vT0}
        v_xor_b32 v{vT2}, v{vT2}, v{vT1}
        v_lshlrev_b32 v{vT2}, 4, v{vT2}
        v_lshl_add_u32 v{vWl}, v{vT0}, 8, v{vT2}
        s_cmp_lt_u32 s{sWave}, 8
        s_cbranch_scc1 K2_L2
        s_sub_u32 s{sQ}, s{sWave}, 8
        """)
        def xt_dma(jreg):
            a(f"""
            s_lshl_b32 s3, s{jreg}, 2
            v_add_u32 v{vT2}, s3, v{vT0}
            v_xor_b32 v{vEnt}, v{vT2}, v{vT1}
            v_and_b32 v{vEnt}, 15, v{vEnt}
            v_lshlrev_b32 v{vEnt}, 4, v{vEnt}
            v_lshl_add_u32 v{vEnt}, v{vT2}, 8, v{vEnt}
            s_mul_i32 s3, s{sBeta}, {T*256}
            s_lshl_b32 s{sT}, s{jreg}, 10
            s_add_u32 s{sT}, s{sT}, {XT}
            s_mov_b32 m0, s{sT}
            s_nop 0
            buffer_load_dwordx4 v{vEnt}, s[{sX}:{sX+3}], s3 offen lds
            """)
        xt_dma(sQ)
        a(f"""
        s_cmp_ge_u32 s{sWave}, 13
        s_cbranch_scc1 K2_L3
        s_mov_b32 s{sRem}, s{sWave}
        """)
        xt_dma(sRem)
        a(f"""
        K2_L3:
        s_lshl_b32 s3, s{sQ}, 12
        s_add_u32 s{sT}, s3, {WQ}
        """)
        for i in range(4):
            a(f"""
            s_mov_b32 m0, s{sT}
            s_add_u32 s{sT}, s{sT}, 1024
            buffer_load_dwordx4 v{vWl}, s[{sWQ}:{sWQ+3}], s3 offen lds
            s_add_u32 s3, s3, 1024
            """)
        a("K2_L2:")
    if not opt.dmalate: early_dma()
    else:
        a(f"""
        v_bfe_u32 v{vT0}, v0, 4, 2
        v_and_b32 v{vT1}, 15, v0
        v_lshlrev_b32 v{vT2}, 2, v{vT0}
        v_xor_b32 v{vT2}, v{vT2}, v{vT1}
        v_lshlrev_b32 v{vT2}, 4, v{vT2}
        v_lshl_add_u32 v{vWl}, v{vT0}, 8, v{vT2}
        """)
    if opt.pf6:
        a(f"""
        s_cmp_lt_u32 s{sWave}, {16 - opt.pf6}
        s_cbranch_scc1 K1_NOPF6
        s_sub_u32 s3, s{sWave}, {16 - opt.pf6}
        s_add_u32 s3, s3, 3
        s_lshl_b32 s{sT}, s3, 13
        s_lshr_b32 s3, s2, 3
        s_mul_i32 s3, s3, 100096
        s_add_u32 s3, s3, s{sT}
        v_lshlrev_b32 v{vEnt}, 7, v{vLane}
        buffer_load_dword v{vQB}, v{vEnt}, s[{sX}:{sX+3}], s3 offen
        K1_NOPF6:
        """)
    if opt.prefetch == 1:
        a(f"""
        s_cmp_eq_u32 s{sWave}, 14
        s_cbranch_scc0 K1_NOPF
        s_mul_i32 s3, s2, 12544
        v_lshlrev_b32 v{vT2}, 7, v{vLane}
        buffer_load_dword v{vNeg+4}, v{vT2}, s[{sX}:{sX+3}], s3 offen
        s_add_u32 s3, s3, 8192
        v_cmp_gt_u32 vcc, 34, v{vLane}
        v_mov_b32 v{vEnt}, {OOB}
        s_nop 0
        v_cndmask_b32_e64 v{vT2}, v{vEnt}, v{vT2}, vcc
        buffer_load_dword v{vNeg+4}, v{vT2}, s[{sX}:{sX+3}], s3 offen
        K1_NOPF:
        """)
    sPiK = sHB
    srd_tail(a, sWV, 32768); srd_tail(a, sOUT, XBYTES)
    for i in range(8):
        a(f"v_mov_b32 v{vTot+i}, 0")
    a("v_mov_b32 v83, 0")
    a(f"""
    v_bfe_u32 v{vT2}, v{vLane}, 2, 1
    v_mul_u32_u24 v{vT2}, 12, v{vT2}
    v_and_b32 v{vT0}, 3, v{vLane}
    v_or_b32 v{vT2}, v{vT2}, v{vT0}
    v_lshlrev_b32 v{vUA}, 8, v{vLane}
    v_lshl_or_b32 v{vUA}, v{vT2}, 4, v{vUA}
    """)
    a(f"""
    s_and_b32 s{sP}, s{sWave}, 3
    s_bfe_u32 s{sNH}, s{sWave}, 0x10002
    s_cmp_ge_u32 s{sWave}, 8
    s_cbranch_scc1 K2_NOQA
    """)
    tile_a_addr(a, vWa, vLane, vT2, vT0, sP, WQ)
    a(f"""
    v_and_b32 v{vRow}, 31, v{vLane}
    s_lshl_b32 s3, s{sNH}, 5
    v_add_u32 v{vRow}, s3, v{vRow}
    """)
    tile_b_addr(a, vBa, vRow, vLane, vT0)
    a(f"""
    v_bfe_u32 v{vT2}, v{vRow}, 2, 1
    v_mul_u32_u24 v{vT2}, 12, v{vT2}
    v_and_b32 v{vT0}, 3, v{vRow}
    v_or_b32 v{vT2}, v{vT2}, v{vT0}
    v_lshrrev_b32 v{vT0}, 5, v{vLane}
    s_lshl_b32 s3, s{sP}, 2
    v_lshl_add_u32 v{vT0}, v{vT0}, 1, s3
    v_xor_b32 v{vT2}, v{vT2}, v{vT0}
    v_lshlrev_b32 v{vT2}, 4, v{vT2}
    v_lshl_add_u32 v{vQst}, v{vRow}, 8, v{vT2}
    K2_NOQA:
    """)
    a(f"""
    s_movk_i32 s{sT}, {CH//2}
    s_cmp_eq_u32 s2, {C-1}
    s_cselect_b32 s{sT}, {(E - (C-1)*CH)//2}, s{sT}
    v_cmp_gt_u32 vcc, s{sT}, v0
    s_and_saveexec_b64 s[{sSave}:{sSave+1}], vcc
    s_cbranch_execz K1_EDGE1_DONE
    s_mov_b32 s{sT}, -{T}
    s_mov_b32 s{sCnt}, {STAGE}
    s_cmp_lt_u32 s{sWave}, 8
    s_cbranch_scc1 K1_EW0
    s_waitcnt vmcnt({1 if opt.dmalate else 7})
    s_branch K1_EW1
    K1_EW0:
    s_waitcnt vmcnt(1)
    K1_EW1:
    """)
    st.stamp(a)
    for i in range(2):
        a(f"""
        v_mul_u32_u24 v{vT0}, 21400, v{vDst+i}
        v_lshrrev_b32 v{vT0}, 20, v{vT0}
        v_lshlrev_b32 v{vAdr+i}, 2, v{vT0}
        v_add_u32 v{vT2}, {HP}, v{vAdr+i}
        ds_add_rtn_u32 v{vRank+i}, v{vT2}, v{vT3}
        v_mad_i32_i24 v{vT1}, v{vT0}, s{sT}, v{vDst+i}
        v_lshl_or_b32 v{vEnt+i}, v{vSrc+i}, 8, v{vT1}
        v_mov_b32 v{vBk+i}, v{vT0}
        v_lshl_add_u32 v{vAdr+i}, v{vAdr+i}, 4, s{sCnt}
        """)
    a(f"v_mov_b32 v{vT2}, {JUNK}")
    for i in range(2):
        a(f"""
        s_waitcnt lgkmcnt({1-i})
        v_cmp_gt_u32 s[{sM+2*i}:{sM+2*i+1}], 16, v{vRank+i}
        v_lshl_add_u32 v{vT0}, v{vRank+i}, 2, v{vAdr+i}
        s_nop 0
        v_cndmask_b32_e64 v{vT0}, v{vT2}, v{vT0}, s[{sM+2*i}:{sM+2*i+1}]
        ds_write_b32 v{vT0}, v{vEnt+i}
        """)
    a(f"""
    s_and_b64 s[{sM+4}:{sM+5}], s[{sM}:{sM+1}], s[{sM+2}:{sM+3}]
    s_andn2_b64 s[{sM+4}:{sM+5}], exec, s[{sM+4}:{sM+5}]
    s_cbranch_scc0 K1_EDGE1_DONE
    s_mov_b64 s[{sM+6}:{sM+7}], exec
    """)
    for i in range(2):
        a(f"""
        s_andn2_b64 exec, s[{sM+6}:{sM+7}], s[{sM+2*i}:{sM+2*i+1}]
        s_cbranch_execz K1_OV_{i}
        v_and_b32 v{vT0}, 7, v{vBk+i}
        v_lshrrev_b32 v{vT1}, 5, v{vBk+i}
        v_lshl_add_u32 v{vT0}, v{vT1}, 3, v{vT0}
        v_lshlrev_b32 v{vT1}, 2, v{vT0}
        v_add_u32 v{vT1}, {H2}, v{vT1}
        ds_add_rtn_u32 v{vT1}, v{vT1}, v{vT3}
        v_bfe_u32 v{vT2}, v{vBk+i}, 3, 2
        v_lshl_or_b32 v{vT2}, v{vT2}, 6, v{vEnt+i}
        v_lshlrev_b32 v{vT0}, 4, v{vT0}
        v_add_u32 v{vT0}, {ST2}, v{vT0}
        s_waitcnt lgkmcnt(0)
        v_cmp_gt_u32 vcc, 4, v{vT1}
        v_lshl_add_u32 v{vT0}, v{vT1}, 2, v{vT0}
        s_mov_b64 s[{sM+8}:{sM+9}], exec
        s_and_b64 exec, exec, vcc
        ds_write_b32 v{vT0}, v{vT2}
        s_andn2_b64 exec, s[{sM+8}:{sM+9}], vcc
        s_cbranch_execz K1_OV_{i}
        v_mov_b32 v{vT0}, {OVC}
        ds_add_rtn_u32 v{vT0}, v{vT0}, v{vT3}
        s_waitcnt lgkmcnt(0)
        v_lshlrev_b32 v{vT0}, 2, v{vT0}
        ds_write_b32 v{vT0}, v{vEnt+i} offset:{OVL}
        ds_write_b32 v{vT0}, v{vBk+i} offset:{OVB}
        K1_OV_{i}:
        """)
    a(f"""
    K1_EDGE1_DONE:
    s_mov_b64 exec, s[{sSave}:{sSave+1}]
    v_lshlrev_b32 v{vT0}, 4, v0
    s_waitcnt lgkmcnt(0)
    s_barrier
    """)
    st.stamp(a)
    a(f"""
    s_cmp_ge_u32 s{sWave}, 8
    s_cbranch_scc1 K1_NOCOPY
    ds_read_b128 {vr(vNeg,4)}, v{vT0} offset:{STAGE}
    ds_read_b128 {vr(vNeg+4,4)}, v{vT0} offset:{STAGE + 8192}
    s_lshl_b32 s3, s{sPiK}, 6
    s_add_u32 s3, s3, {WS_CELLS}
    s_add_u32 s{sT}, s3, {128*CELLROW}
    s_waitcnt vmcnt(0)
    v_readfirstlane_b32 s{sNonce}, v{vNon}
    s_nop 3
    s_and_b32 s{sTag}, s{sNonce}, {(0xffffffff << TAGSH) & 0xffffffff}
    s_add_u32 s{sTag}, s{sTag}, {1 << TAGSH}
    s_waitcnt lgkmcnt(1)
    """)
    for i in range(4): a(f"v_or_b32 v{vNeg+i}, s{sTag}, v{vNeg+i}")
    a(f"""
    buffer_store_dwordx4 {vr(vNeg,4)}, v{vGo}, s[{sWS}:{sWS+3}], s3 offen {opt.cst}
    s_waitcnt lgkmcnt(0)
    """)
    for i in range(4, 8): a(f"v_or_b32 v{vNeg+i}, s{sTag}, v{vNeg+i}")
    a(f"""
    buffer_store_dwordx4 {vr(vNeg+4,4)}, v{vGo}, s[{sWS}:{sWS+3}], s{sT} offen {opt.cst}
    s_cmp_eq_u32 s{sWave}, 6
    s_cbranch_scc0 K1_NOX
    v_lshlrev_b32 v{vT1}, 4, v{vLane}
    v_add_u32 v{vT1}, {ST2}, v{vT1}
    ds_read_b128 {vr(vDst,4)}, v{vT1}
    v_lshlrev_b32 v{vT1}, 2, v{vLane}
    v_add_u32 v{vT1}, {H2}, v{vT1}
    ds_read_b32 v{vT1}, v{vT1}
    v_lshlrev_b32 v{vT2}, 12, v{vLane}
    s_lshl_b32 s3, s{sPiK}, 4
    s_add_u32 s3, s3, {WS_EXTRA}
    v_mov_b32 v{vT3}, {1 << 22}
    s_waitcnt lgkmcnt(0)
    v_cmp_lt_u32 vcc, 4, v{vT1}
    """)
    for i in range(4): a(f"v_or_b32 v{vDst+i}, s{sTag}, v{vDst+i}")
    a(f"""
    v_cndmask_b32_e64 v{vT3}, 0, v{vT3}, vcc
    v_or_b32 v{vDst+3}, v{vT3}, v{vDst+3}
    buffer_store_dwordx4 {vr(vDst,4)}, v{vT2}, s[{sWS}:{sWS+3}], s3 offen {opt.cst}
    K1_NOX:
    s_cmp_eq_u32 s{sWave}, 7
    s_cbranch_scc0 K1_DRAIN
    v_mov_b32 v{vT3}, {OVC}
    ds_read_b32 v{vRank}, v{vT3}
    s_waitcnt lgkmcnt(0)
    v_readfirstlane_b32 s{sCnt}, v{vRank}
    s_nop 3
    s_cmp_eq_u32 s{sCnt}, 0
    s_cbranch_scc1 K1_DRAIN
    s_min_u32 s{sCnt}, s{sCnt}, {CH}
    s_lshl_b32 s{sT}, s{sPiK}, 4
    s_add_u32 s{sT}, s{sT}, {WS_OVH}
    v_mov_b32 v{vT2}, s{sT}
    v_or_b32 v{vDst}, s{sTag}, v{vRank}
    v_mov_b32 v{vDst+1}, v{vDst}
    v_mov_b32 v{vDst+2}, v{vDst}
    v_mov_b32 v{vDst+3}, v{vDst}
    s_mov_b64 exec, 1
    buffer_store_dwordx4 {vr(vDst,4)}, v{vT2}, s[{sWS}:{sWS+3}], 0 offen sc1
    s_mov_b64 exec, -1
    s_mul_i32 s3, s{sPiK}, {OVF_STRIDE}
    s_add_u32 s3, s3, {WS_OVF}
    v_mov_b32 v{vT0}, v{vLane}
    K1_OVL:
    v_cmp_gt_u32 vcc, s{sCnt}, v{vT0}
    s_and_b64 exec, exec, vcc
    s_cbranch_execz K1_OVD
    v_lshlrev_b32 v{vT1}, 2, v{vT0}
    ds_read_b32 v{vDst}, v{vT1} offset:{OVL}
    ds_read_b32 v{vDst+1}, v{vT1} offset:{OVB}
    v_lshlrev_b32 v{vT1}, 3, v{vT0}
    s_waitcnt lgkmcnt(0)
    v_or_b32 v{vDst}, s{sTag}, v{vDst}
    v_or_b32 v{vDst+1}, s{sTag}, v{vDst+1}
    buffer_store_dwordx2 {vr(vDst,2)}, v{vT1}, s[{sWS}:{sWS+3}], s3 offen sc1
    v_add_u32 v{vT0}, 64, v{vT0}
    s_branch K1_OVL
    K1_OVD:
    s_mov_b64 exec, -1
    K1_DRAIN:
    {"s_waitcnt vmcnt(0)" if opt.drain == 1 else ""}
    s_branch K1_COPIED
    K1_NOCOPY:
    s_waitcnt vmcnt(0)
    v_readfirstlane_b32 s{sNonce}, v{vNon}
    s_nop 3
    s_and_b32 s{sTag}, s{sNonce}, {(0xffffffff << TAGSH) & 0xffffffff}
    s_add_u32 s{sTag}, s{sTag}, {1 << TAGSH}
    K1_COPIED:
    s_barrier
    """)
    st.stamp(a)
    st.stamp(a)
    a(f"""
    s_cmp_ge_u32 s{sWave}, 8
    s_cbranch_scc1 K2_NOQ
    """)
    vA8, vQAcc = vXB, vAcc
    Bq = [vE, vE+4, vQ, vQ+4]
    def a_reads(ks):
        a(f"ds_read_b64_tr_b16 {vr(vA8+4*ks,2)}, v{vWa} offset:{ks*4096}")
        a(f"ds_read_b64_tr_b16 {vr(vA8+4*ks+2,2)}, v{vWa} offset:{ks*4096 + 1024}")
    def b_read(ks):
        a(f"v_xor_b32 v{vT2}, {32*ks}, v{vBa}")
        a(f"ds_read_b128 {vr(Bq[ks & 3],4)}, v{vT2} offset:{XT}")
    def mfma(ks):
        c = "0" if ks == 0 else vr(vQAcc,16)
        a(f"v_mfma_f32_32x32x16_bf16 {vr(vQAcc,16)}, {vr(vA8+4*ks,4)}, {vr(Bq[ks & 3],4)}, {c}")
    for ks in range(4):
        a_reads(ks); b_read(ks)
    for ks in range(4):
        a("s_waitcnt lgkmcnt(9)")
        mfma(ks)
        a_reads(ks+4); b_read(ks+4)
    for ks in range(4, 8):
        a(f"s_waitcnt lgkmcnt({3*(7-ks)})")
        mfma(ks)
    a(f"""
    v_cmp_gt_u32 vcc, 52, v{vRow}
    v_xor_b32 v{vT2}, 16, v{vQst}
    s_nop 7
    s_nop 2
    """)
    for i in range(8):
        a(f"v_cvt_pk_bf16_f32 v{vA8+i}, v{vQAcc+2*i}, v{vQAcc+2*i+1}")
    a(f"""
    s_mov_b64 exec, vcc
    ds_write_b128 v{vQst}, {vr(vA8,4)} offset:{QS}
    ds_write_b128 v{vT2}, {vr(vA8+4,4)} offset:{QS}
    s_mov_b64 exec, -1
    """)
    a(f"""
    s_lshl_b32 s3, s{sWave}, 12
    s_add_u32 s{sT}, s3, {WV}
    """)
    for i in range(4):
        a(f"""
        s_mov_b32 m0, s{sT}
        s_add_u32 s{sT}, s{sT}, 1024
        buffer_load_dwordx4 v{vWl}, s[{sWV}:{sWV+3}], s3 offen lds
        s_add_u32 s3, s3, 1024
        """)
    if opt.prefetch == 4:
        a(f"""
        s_lshr_b32 s3, s2, 3
        s_mul_i32 s3, s3, 100096
        s_mul_i32 s{sT}, s{sWave}, 12544
        s_add_u32 s3, s3, s{sT}
        v_lshlrev_b32 v{vT0}, 7, v{vLane}
        {"s_sleep %d" % opt.pfsleep if opt.pfsleep else ""}
        buffer_load_dword v{vQB}, v{vT0}, s[{sX}:{sX+3}], s3 offen
        """)
        if opt.pfn > 1:
            a(f"""
            s_add_u32 s3, s3, 8192
            s_mov_b32 exec_lo, -1
            s_mov_b32 exec_hi, 3
            buffer_load_dword v{vQB}, v{vT0}, s[{sX}:{sX+3}], s3 offen
            s_mov_b64 exec, -1
            """)
    a("s_branch K2_HDRD")
    vW, vXw, vSoM, vSoX, vN4M, vN4X, vRkM, vRkX, vPos, vCn = 56, 64, 68, 76, 80, 88, 92, 100, 104, 112
    def mask(i): return (sM + 2*i) if i < 7 else 0
    a(f"""
    K2_NOQ:
    {"s_setprio %d" % opt.pprio if opt.pprio else ""}
    """)
    st.stamp(a)
    a(f"""
    s_sub_u32 s{sRem}, s{sWave}, 8
    s_lshl_b32 s3, s{sRem}, 11
    v_lshlrev_b32 v{vT0}, 4, v{vLane}
    v_add_u32 v{vT0}, s3, v{vT0}
    s_lshl_b32 s3, s{sBeta}, 14
    s_add_u32 s3, s3, {WS_CELLS}
    s_mov_b32 s{sT}, {1 << 17}
    s_mov_b32 s{sQ}, {1 << TAGSH}
    s_mov_b32 exec_lo, 0
    s_mov_b32 exec_hi, 0x80000000
    K1_CAN:
    buffer_load_dword v{vT1}, v{vT0}, s[{sWS}:{sWS+3}], s3 offen offset:1036 sc1
    s_waitcnt vmcnt(0)
    v_xor_b32 v{vT1}, s{sTag}, v{vT1}
    v_cmp_le_u32 vcc, s{sQ}, v{vT1}
    s_cbranch_vccz K1_CAND
    s_sleep {opt.sleep}
    s_sub_u32 s{sT}, s{sT}, 1
    s_cmp_lg_u32 s{sT}, 0
    s_cbranch_scc1 K1_CAN
    K1_CAND:
    s_mov_b64 exec, -1
    {"s_sleep %d" % opt.sleep2 if opt.sleep2 else ""}
    s_mov_b32 s{sT}, {1 << 17}
    K1_TP:
    buffer_load_dwordx4 {vr(vW,4)}, v{vT0}, s[{sWS}:{sWS+3}], s3 offen sc1
    buffer_load_dwordx4 {vr(vW+4,4)}, v{vT0}, s[{sWS}:{sWS+3}], s3 offen offset:1024 sc1
    s_waitcnt vmcnt(0)
    """)
    for i in range(8): a(f"v_xor_b32 v{vW+i}, s{sTag}, v{vW+i}")
    a(f"""
    v_or3_b32 v{vT1}, v{vW}, v{vW+1}, v{vW+2}
    v_or3_b32 v{vT1}, v{vT1}, v{vW+3}, v{vW+4}
    v_or3_b32 v{vT1}, v{vT1}, v{vW+5}, v{vW+6}
    v_or_b32 v{vT1}, v{vT1}, v{vW+7}
    v_cmp_le_u32 vcc, s{sQ}, v{vT1}
    s_and_b64 exec, exec, vcc
    s_cbranch_execz K1_TPD
    s_sleep {opt.sleep}
    s_sub_u32 s{sT}, s{sT}, 1
    s_cmp_lg_u32 s{sT}, 0
    s_cbranch_scc1 K1_TP
    K1_TPD:
    s_mov_b64 exec, -1
    """)
    for i in range(4): a(f"v_mov_b32 v{vXw+i}, {EMPTY}")
    a(f"""
    s_and_b32 s3, s{sBeta}, 7
    s_lshr_b32 s{sCnt}, s{sBeta}, 5
    s_lshl_b32 s{sCnt}, s{sCnt}, 3
    s_add_u32 s3, s3, s{sCnt}
    s_lshl_b32 s3, s3, 12
    s_lshl_b32 s{sCnt}, s{sRem}, 9
    s_add_u32 s3, s3, s{sCnt}
    s_add_u32 s3, s3, {WS_EXTRA}
    v_lshlrev_b32 v{vT0}, 4, v{vLane}
    s_mov_b32 s{sT}, {1 << 17}
    s_mov_b32 exec_lo, -1
    s_mov_b32 exec_hi, 0
    K1_XP:
    buffer_load_dwordx4 {vr(vXw,4)}, v{vT0}, s[{sWS}:{sWS+3}], s3 offen sc1
    s_waitcnt vmcnt(0)
    """)
    for i in range(4): a(f"v_xor_b32 v{vXw+i}, s{sTag}, v{vXw+i}")
    a(f"""
    v_or3_b32 v{vT1}, v{vXw}, v{vXw+1}, v{vXw+2}
    v_or_b32 v{vT1}, v{vT1}, v{vXw+3}
    v_cmp_le_u32 vcc, s{sQ}, v{vT1}
    s_and_b64 exec, exec, vcc
    s_cbranch_execz K1_XPD
    s_sleep {opt.sleep}
    s_sub_u32 s{sT}, s{sT}, 1
    s_cmp_lg_u32 s{sT}, 0
    s_cbranch_scc1 K1_XP
    K1_XPD:
    s_mov_b64 exec, -1
    v_and_b32 v{vT1}, {1 << 22}, v{vXw+3}
    v_cmp_ne_u32 vcc, 0, v{vT1}
    s_cbranch_vccz K1_NOXP
    s_mov_b64 exec, vcc
    s_lshl_b32 s3, s{sRem}, 9
    s_add_u32 s3, s3, {WS_OVH}
    s_mov_b32 s{sT}, {1 << 17}
    K1_HP:
    buffer_load_dwordx4 {vr(vPos,4)}, v{vT0}, s[{sWS}:{sWS+3}], s3 offen sc1
    s_waitcnt vmcnt(0)
    v_xor_b32 v{vT2}, s{sTag}, v{vPos}
    v_xor_b32 v{vPos+1}, v{vPos}, v{vPos+1}
    v_xor_b32 v{vPos+2}, v{vPos}, v{vPos+2}
    v_xor_b32 v{vPos+3}, v{vPos}, v{vPos+3}
    v_or3_b32 v{vPos+1}, v{vPos+1}, v{vPos+2}, v{vPos+3}
    v_cmp_ne_u32 s[{sM}:{sM+1}], 0, v{vPos+1}
    v_cmp_le_u32 vcc, s{sQ}, v{vT2}
    s_or_b64 vcc, vcc, s[{sM}:{sM+1}]
    s_cbranch_vccz K1_HPD
    s_sleep 2
    s_sub_u32 s{sT}, s{sT}, 1
    s_cmp_lg_u32 s{sT}, 0
    s_cbranch_scc1 K1_HP
    K1_HPD:
    v_min_u32 v{vT2}, {CH}, v{vT2}
    s_lshl_b32 s3, s{sRem}, 7
    s_add_u32 s3, s3, {MF}
    v_lshlrev_b32 v{vT1}, 2, v{vLane}
    v_add_u32 v{vT1}, s3, v{vT1}
    ds_write_b32 v{vT1}, v{vT2}
    v_mov_b32 v{vT1}, {MAXC}
    ds_max_u32 v{vT1}, v{vT2}
    s_mov_b64 exec, -1
    K1_NOXP:
    v_mov_b32 v{vT3}, 1
    """)
    st.stamp(a)
    a("K2_DECODE:")
    for i in range(8):
        m = mask(i)
        a(f"""
        v_lshlrev_b32 v{vN4M+i}, 2, v{vW+i}
        v_and_b32 v{vN4M+i}, 0xfc, v{vN4M+i}
        v_cmp_gt_u32 s[{m}:{m+1}], s{s196}, v{vN4M+i}
        v_and_b32 v{vSoM+i}, 0x003fff00, v{vW+i}
        """)
        if i >= 1:
            mp = mask(i-1)
            a(f"""
            s_mov_b64 exec, s[{mp}:{mp+1}]
            ds_add_rtn_u32 v{vRkM+i-1}, v{vN4M+i-1}, v{vT3} offset:{HIST}
            s_mov_b64 exec, -1
            """)
    a(f"""
    s_mov_b64 exec, s[{mask(7)}:{mask(7)+1}]
    ds_add_rtn_u32 v{vRkM+7}, v{vN4M+7}, v{vT3} offset:{HIST}
    s_mov_b64 exec, -1
    s_mov_b64 s[{sM+14}:{sM+15}], 0
    s_cmp_eq_u32 s{sR}, 0
    s_cbranch_scc0 K2_HDRD
    v_and_b32 v{vT0}, v{vXw}, v{vXw+1}
    v_and_b32 v{vT1}, v{vXw+2}, v{vXw+3}
    v_and_b32 v{vT0}, v{vT0}, v{vT1}
    v_and_b32 v{vT0}, 63, v{vT0}
    v_cmp_ne_u32 vcc, 63, v{vT0}
    s_cbranch_vccz K2_HDRD
    s_bfe_u32 s{sT}, s{sBeta}, 0x20003
    """)
    for i in range(4):
        w, m = vXw + i, sM2 + 2*i
        a(f"""
        v_bfe_u32 v{vT0}, v{w}, 6, 2
        v_cmp_eq_u32 vcc, s{sT}, v{vT0}
        v_mov_b32 v{vT1}, {EMPTY}
        v_and_b32 v{vT2}, 0x003fff3f, v{w}
        s_nop 0
        v_cndmask_b32_e64 v{w}, v{vT1}, v{vT2}, vcc
        v_lshlrev_b32 v{vN4X+i}, 2, v{w}
        v_and_b32 v{vN4X+i}, 0xfc, v{vN4X+i}
        v_cmp_gt_u32 s[{m}:{m+1}], s{s196}, v{vN4X+i}
        v_and_b32 v{vSoX+i}, 0x003fff00, v{w}
        """)
    a(f"""
    s_or_b64 s[{sM+14}:{sM+15}], s[{sM2}:{sM2+1}], s[{sM2+2}:{sM2+3}]
    s_or_b64 s[{sM+14}:{sM+15}], s[{sM+14}:{sM+15}], s[{sM2+4}:{sM2+5}]
    s_or_b64 s[{sM+14}:{sM+15}], s[{sM+14}:{sM+15}], s[{sM2+6}:{sM2+7}]
    s_cbranch_scc0 K2_HDRD
    """)
    for i in range(4):
        m = sM2 + 2*i
        a(f"""
        s_mov_b64 exec, s[{m}:{m+1}]
        ds_add_rtn_u32 v{vRkX+i}, v{vN4X+i}, v{vT3} offset:{HIST}
        """)
    a(f"""
    s_mov_b64 exec, -1
    K2_HDRD:
    s_waitcnt lgkmcnt(0)
    s_barrier
    """)
    st.stamp(a)
    if opt.prefetch == 5:
        a(f"""
        s_cmp_ge_u32 s{sWave}, 8
        s_cbranch_scc1 K2_NOPF5
        s_waitcnt vmcnt(0)
        s_sub_u32 s3, s{sWave}, {8 - opt.pfn}
        s_cmp_ge_u32 s3, {opt.pfn}
        s_cbranch_scc1 K2_NOPF5
        s_lshl_b32 s{sT}, s3, {opt.pfsh + 6}
        s_lshr_b32 s3, s2, 3
        s_mul_i32 s3, s3, 100096
        s_add_u32 s3, s3, s{sT}
        v_lshlrev_b32 v{vT0}, {opt.pfsh}, v{vLane}
        buffer_load_dword v{vQB}, v{vT0}, s[{sX}:{sX+3}], s3 offen
        K2_NOPF5:
        """)
    a(f"""
    v_lshlrev_b32 v{vT2}, 2, v{vLane}
    ds_read_b32 v{vCn}, v{vT2} offset:{HIST}
    s_lshl_b32 s{sT}, s{sWave}, 2
    s_waitcnt lgkmcnt(0)
    v_add_u32 v{vPc}, 3, v{vCn}
    v_and_b32 v{vPc}, -4, v{vPc}
    v_mov_b32 v{vStart}, v{vPc}
    v_cmp_lt_u32 vcc, s{sT}, v{vPc}
    s_nop 0
    """)
    steps = ["row_shr:1 row_mask:0xf bank_mask:0xf bound_ctrl:1", "row_shr:2 row_mask:0xf bank_mask:0xf bound_ctrl:1",
             "row_shr:4 row_mask:0xf bank_mask:0xf bound_ctrl:1", "row_shr:8 row_mask:0xf bank_mask:0xf bound_ctrl:1",
             "row_bcast:15 row_mask:0xa bank_mask:0xf", "row_bcast:31 row_mask:0xc bank_mask:0xf"]
    for i, stp in enumerate(steps):
        a(f"v_add_u32_dpp v{vStart}, v{vStart}, v{vStart} {stp}")
        a("s_nop 1" if i < 5 else "s_nop 0")
    a(f"""
    v_readlane_b32 s{sCnt}, v{vStart}, 63
    v_sub_u32 v{vStart}, v{vStart}, v{vPc}
    s_cmp_lt_u32 s{sWave}, 8
    s_cbranch_scc1 K2_NOBP
    """)
    for i in range(8):
        a(f"ds_bpermute_b32 v{vPos+i}, v{vN4M+i}, v{vStart}")
    a(f"""
    K2_NOBP:
    v_add_u32 v{vT0}, s{sT}, v{vStart}
    s_mov_b64 exec, vcc
    ds_write_b32 v{vT0}, v{vUA} offset:{UNODE}
    s_mov_b64 exec, -1
    v_cmp_lt_u32 vcc, 64, v{vPc}
    s_cbranch_vccz K2_UND
    K2_UN:
    s_add_u32 s{sT}, s{sT}, 64
    v_cmp_lt_u32 vcc, s{sT}, v{vPc}
    s_cbranch_vccz K2_UND
    v_add_u32 v{vT0}, s{sT}, v{vStart}
    s_mov_b64 exec, vcc
    ds_write_b32 v{vT0}, v{vUA} offset:{UNODE}
    s_mov_b64 exec, -1
    s_branch K2_UN
    K2_UND:
    s_cmp_gt_u32 s{sWave}, 4
    s_cbranch_scc1 K2_NOPAD
    v_mov_b32 v{vT2}, {OOB}
    s_cmp_gt_u32 s{sWave}, 2
    s_cbranch_scc1 K2_TAILPAD
    v_sub_u32 v{vT1}, v{vPc}, v{vCn}
    v_add_u32 v{vT0}, v{vStart}, v{vCn}
    v_cmp_lt_u32 vcc, s{sWave}, v{vT1}
    v_add_u32 v{vT0}, s{sWave}, v{vT0}
    v_lshlrev_b32 v{vT0}, 2, v{vT0}
    s_mov_b64 exec, vcc
    ds_write_b32 v{vT0}, v{vT2} offset:{LIST}
    s_mov_b64 exec, -1
    s_branch K2_NOPAD
    K2_TAILPAD:
    v_lshlrev_b32 v{vT1}, 2, v{vLane}
    s_cmp_eq_u32 s{sWave}, 3
    s_cbranch_scc0 K2_TAILU
    s_lshl_b32 s{sT}, s{sCnt}, 2
    v_add_u32 v{vT0}, s{sT}, v{vT1}
    s_mov_b64 exec, 0xfffffff
    ds_write_b32 v{vT0}, v{vT2} offset:{LIST}
    s_mov_b64 exec, -1
    s_branch K2_NOPAD
    K2_TAILU:
    v_add_u32 v{vT0}, s{sCnt}, v{vT1}
    v_mov_b32 v{vT2}, {DUMMY*256 + 16*((DUMMY & 3) | (12*((DUMMY >> 2) & 1)))}
    s_mov_b64 exec, 0x7f
    ds_write_b32 v{vT0}, v{vT2} offset:{UNODE}
    s_mov_b64 exec, -1
    K2_NOPAD:
    s_add_u32 s3, s{sCnt}, 31
    s_lshr_b32 s3, s3, 5
    s_lshr_b32 s{sQ}, s3, 4
    s_and_b32 s{sRem}, s3, 15
    s_cmp_lt_u32 s{sWave}, s{sRem}
    s_cselect_b32 s{sNH}, 1, 0
    s_add_u32 s{sHB}, s{sQ}, s{sNH}
    s_min_u32 s3, s{sRem}, s{sWave}
    s_mul_i32 s{sT}, s{sQ}, s{sWave}
    s_add_u32 s{sT}, s{sT}, s3
    v_lshrrev_b32 v{vT0}, 4, v{vLane}
    s_lshl_b32 s3, s{sHB}, 1
    v_mul_u32_u24 v{vT0}, s3, v{vT0}
    s_lshl_b32 s3, s{sT}, 3
    v_add_u32 v{vT0}, s3, v{vT0}
    v_lshlrev_b32 v{vLA}, 4, v{vT0}
    v_lshlrev_b32 v{vUA}, 2, v{vT0}
    s_cmp_lt_u32 s{sWave}, 8
    s_cbranch_scc1 K2_SC_Q
    s_waitcnt lgkmcnt(0)
    """)
    for i in range(8):
        a(f"v_add_lshl_u32 v{vPos+i}, v{vPos+i}, v{vRkM+i}, 2")
    for i in range(8):
        m = mask(i)
        a(f"s_mov_b64 exec, s[{m}:{m+1}]")
        a(f"ds_write_b32 v{vPos+i}, v{vSoM+i} offset:{LIST}")
    a(f"""
    s_mov_b64 exec, -1
    s_cmp_eq_u64 s[{sM+14}:{sM+15}], 0
    s_cbranch_scc1 K2_SORT_DONE
    """)
    for i in range(4):
        a(f"ds_bpermute_b32 v{vPos+i}, v{vN4X+i}, v{vStart}")
    a("s_waitcnt lgkmcnt(0)")
    for i in range(4):
        a(f"""
        v_add_lshl_u32 v{vPos+i}, v{vPos+i}, v{vRkX+i}, 2
        s_mov_b64 exec, s[{sM2+2*i}:{sM2+2*i+1}]
        ds_write_b32 v{vPos+i}, v{vSoX+i} offset:{LIST}
        s_mov_b64 exec, -1
        """)
    a(f"""
    s_branch K2_SORT_DONE
    K2_SC_Q:
    {'s_waitcnt vmcnt(%d)' % (opt.pfn if opt.prefetch == 4 else 0) if opt.prefetch != 5 else ''}
    K2_SORT_DONE:
    """)
    st.stamp(a)
    a(f"""
    s_waitcnt lgkmcnt(0)
    s_barrier
    """)
    st.stamp(a)
    if "cyc" in opt.exp: st.stamp(a, True)
    if opt.prio in (1, 3, 4): a("s_setprio 3")
    if opt.prio == 2:
        a(f"""
        s_cmp_ge_u32 s{sWave}, 4
        s_cbranch_scc0 K2_SP
        s_setprio 1
        s_cmp_ge_u32 s{sWave}, 8
        s_cbranch_scc0 K2_SP
        s_setprio 2
        s_cmp_ge_u32 s{sWave}, 12
        s_cbranch_scc0 K2_SP
        s_setprio 3
        K2_SP:
        """)
    a(f"""
    s_cmp_eq_u32 s{sHB}, 0
    s_cbranch_scc1 K2_NOMAIN
    ds_read_b128 {vr(vE,4)}, v{vLA} offset:{LIST}
    ds_read_b128 {vr(vE+4,4)}, v{vLA} offset:{LIST+16}
    ds_read_b64 {vr(vQC,2)}, v{vUA} offset:{UNODE}
    """)
    if opt.style == "roll3":
        a(f"""
        v_and_b32 v{vT0}, 15, v{vLane}
        v_and_b32 v{vT1}, 7, v{vT0}
        v_lshl_add_u32 v{vLA}, v{vT1}, 2, v{vLA}
        v_add_u32 v{vLA}, {LIST + 32}, v{vLA}
        v_and_b32 v{vT1}, 1, v{vT0}
        v_lshl_add_u32 v{vUA}, v{vT1}, 2, v{vUA}
        v_add_u32 v{vUA}, {UNODE + 8}, v{vUA}
        v_lshrrev_b32 v{vT1}, 1, v{vT0}
        v_cmp_eq_u32 vcc, 4, v{vT1}
        v_mov_b32 v{vT2}, 32
        s_nop 0
        v_cndmask_b32_e64 v{vLA}, v{vLA}, v{vUA}, vcc
        v_cndmask_b32_e64 v{vUA}, v{vT2}, 8, vcc
        """)
    for i in range(8):
        a(f"v_mov_b32 v{vAcc+i}, 0")
    a("s_waitcnt lgkmcnt(1)")
    for u in range(8):
        a(f"v_add_u32 v{vE+u}, v{vE+u}, v{vC16}")
        a(f"buffer_load_dwordx4 {vr(vXA+4*u,4)}, v{vE+u}, s[{sX}:{sX+3}], 0 offen")
        if u == 0:
            a(f"""
            s_waitcnt lgkmcnt(0)
            v_xor_b32 v{vT0}, v{vQC}, v{vC16}
            v_xor_b32 v{vT1}, v{vQC+1}, v{vC16}
            ds_read_b128 {vr(vQ,4)}, v{vT0} offset:{QS}
            ds_read_b128 {vr(vQ+4,4)}, v{vT1} offset:{QS}
            v_mov_b32 v{vPrev}, v{vQC}
            """)
    if "bstamp" in opt.exp: st.stamp(a)
    wv_id = [0]
    def wv_dma():
        i = wv_id[0]; wv_id[0] += 1
        a(f"""
        s_cmp_eq_u32 s{sR}, 0
        s_cbranch_scc0 K2_NOWV{i}
        s_lshl_b32 s3, s{sWave}, 11
        s_add_u32 s{sT}, s3, {WV}
        s_mov_b32 m0, s{sT}
        s_add_u32 s{sT}, s{sT}, 1024
        buffer_load_dwordx4 v{vWl}, s[{sWV}:{sWV+3}], s3 offen lds
        s_mov_b32 m0, s{sT}
        s_add_u32 s3, s3, 1024
        buffer_load_dwordx4 v{vWl}, s[{sWV}:{sWV+3}], s3 offen lds
        K2_NOWV{i}:
        """)
    flush_id = [0]
    def flush(prev, masked):
        fid = flush_id[0]; flush_id[0] += 1
        t = ""
        if masked is not None:
            t += f"""
            v_cmp_ne_u32 vcc, v{masked}, v{prev}
            s_cbranch_vccz K2_FL{fid}
            s_mov_b64 exec, vcc
            """
        t += f"""
        v_and_b32 v{vT0}, 0xffffff00, v{prev}
        v_lshl_add_u32 v{vT0}, v{vT0}, 1, v{vPB}
        ds_write_b128 v{vT0}, {vr(vAcc,4)}
        ds_write_b128 v{vT0}, {vr(vAcc+4,4)} offset:256
        """
        if masked is not None:
            if opt.mov64:
                for i in range(0, 8, 2):
                    t += f"v_mov_b64 {vr(vAcc+i,2)}, 0\n"
            else:
                for i in range(8):
                    t += f"v_mov_b32 v{vAcc+i}, 0\n"
            t += f"""
            s_mov_b64 exec, -1
            {".p2align 3" if opt.align >= 1 else ""}
            K2_FL{fid}:
            """
        return t
    def dots(X, waits):
        for half in range(2):
            a(waits[half])
            if opt.align >= 2: a(".p2align 3")
            if "nodots" in opt.exp: continue
            for r in range(4):
                for u in range(4*half, 4*half+4):
                    if r == 0:
                        a(f"v_dot2_f32_bf16 v{vP+u}, v{X+4*u}, v{vQ+4*half}, 0")
                    else:
                        a(f"v_dot2c_f32_bf16 v{vP+u}, v{X+4*u+r}, v{vQ+4*half+r}")
    def chain(al):
        c = []
        for j in range(4):
            c.append(f"v_add_f32_dpp v{vP+j}, v{vP+j}, v{vP+j} row_mirror row_mask:0xf bank_mask:0x3")
        for j in range(4):
            c.append(f"v_add_f32_dpp v{vP+j}, v{vP+j+4}, v{vP+j+4} row_mirror row_mask:0xf bank_mask:0xc")
        for j in range(2):
            c.append(f"v_add_f32_dpp v{vP+j}, v{vP+j}, v{vP+j} row_half_mirror row_mask:0xf bank_mask:0x5")
        for j in range(2):
            c.append(f"v_add_f32_dpp v{vP+j}, v{vP+j+2}, v{vP+j+2} row_half_mirror row_mask:0xf bank_mask:0xa")
        c.append(f"v_add_f32_dpp v{vP+2}, v{vP}, v{vP} quad_perm:[1,0,3,2] row_mask:0xf bank_mask:0xf")
        c.append(f"v_add_f32_dpp v{vP+3}, v{vP+1}, v{vP+1} quad_perm:[1,0,3,2] row_mask:0xf bank_mask:0xf")
        c.append(f"v_cndmask_b32_e64 v{vP}, v{vP+2}, v{vP+3}, s[{sOdd}:{sOdd+1}]")
        c.append(f"v_add_f32_dpp v{vP}, v{vP}, v{vP} quad_perm:[2,3,0,1] row_mask:0xf bank_mask:0xf")
        if opt.mimic:
            c += [f"v_cvt_pk_bf16_f32 v{vP}, v{vP}, v{vP}", f"v_and_b32 v{vP}, 0xffff0000, v{vP}",
                  f"v_mul_f32 v{vP}, 0x3db504f3, v{vP}", f"v_cvt_pk_bf16_f32 v{vP}, v{vP}, v{vP}",
                  f"v_and_b32 v{vP}, 0xffff0000, v{vP}", f"v_mul_f32 v{vP}, 0xbfb8aa3b, v{vP}"]
        else:
            c.append(f"v_mul_f32 v{vP}, 0xbe0293ee, v{vP}")
        c += [f"v_exp_f32 v{vP}, v{vP}", f"v_add_f32 v{vP}, 1.0, v{vP}", f"v_rcp_f32 v{vP}, v{vP}",
              f"v_cvt_pk_bf16_f32 v{al}, v{vP}, 0", f"v_cvt_pk_bf16_f32 v{al+1}, 0, v{vP}"]
        return c
    def chain_alone(al):
        c = chain(al)
        gaps = {9: 1, 11: 1, 14: 2, 17 + (5 if opt.mimic else 0): 1, 19 + (5 if opt.mimic else 0): 1}
        for i, ins in enumerate(c):
            a(ins)
            if i in gaps: a(f"s_nop {gaps[i]-1}")
    def agg_stream(X, al, loads, Xdst, qp=None):
        out = []
        qp = vQP if qp is None else qp
        for half in range(2):
            if half == 0:
                out.append(('x', flush(vPrev, qp)))
            else:
                out.append(('x', "s_nop 1\n" + flush(qp, qp+1)))
            for u in range(4*half, 4*half+4):
                k = 4*(u >> 1) + (u & 1)
                for r in range(4):
                    if "noagg" in opt.exp:
                        out.append(('v', "s_nop 0")); out.append(('v', "s_nop 0")); continue
                    out.append(('v', f"v_dot2c_f32_bf16_dpp v{vAcc+2*r}, v{al}, v{X+4*u+r} row_newbcast:{k} row_mask:0xf bank_mask:0xf"))
                    out.append(('v', f"v_dot2c_f32_bf16_dpp v{vAcc+2*r+1}, v{al+1}, v{X+4*u+r} row_newbcast:{k} row_mask:0xf bank_mask:0xf"))
                if loads and "noload" not in opt.exp:
                    out.append(('x', f"buffer_load_dwordx4 {vr(Xdst+4*u,4)}, v{vE+u}, s[{sX}:{sX+3}], 0 offen"))
        return out
    def next_prep():
        a("s_waitcnt lgkmcnt(0)")
        a(f"v_xor_b32 v{vT0}, v{vQN}, v{vC16}")
        a(f"v_xor_b32 v{vT1}, v{vQN+1}, v{vC16}")
    def rotate(nxt):
        a(f"v_mov_b32 v{vQP}, v{vQC}")
        a(f"v_mov_b32 v{vQP+1}, v{vQC+1}")
        if nxt:
            a(f"v_mov_b32 v{vQC}, v{vQN}")
            a(f"v_mov_b32 v{vQC+1}, v{vQN+1}")
            a(f"v_add_u32 v{vLA}, 32, v{vLA}")
            a(f"v_add_u32 v{vUA}, 8, v{vUA}")
    def mid(cur, prev, al_cur, al_prev, nxt):
        a("s_waitcnt lgkmcnt(0)")
        if nxt:
            a(f"""
            ds_read_b128 {vr(vE,4)}, v{vLA} offset:{LIST+32}
            ds_read_b128 {vr(vE+4,4)}, v{vLA} offset:{LIST+48}
            ds_read_b64 {vr(vQN,2)}, v{vUA} offset:{UNODE+8}
            """)
        dots(cur, ("s_waitcnt vmcnt(4)", "s_waitcnt vmcnt(0)"))
        if nxt:
            next_prep()
            for u in range(8):
                a(f"v_add_u32 v{vE+u}, v{vE+u}, v{vC16}")
            a(f"ds_read_b128 {vr(vQ,4)}, v{vT0}")
            a(f"ds_read_b128 {vr(vQ+4,4)}, v{vT1}")
        else:
            a("s_nop 2")
        c = chain(al_cur)
        s_ = agg_stream(prev, al_prev, nxt, prev)
        nv = sum(1 for k, _ in s_ if k == 'v')
        ci, vi = 0, 0
        for k, t in s_:
            a(t)
            if k == 'v':
                vi += 1
                if ci < len(c) and vi >= (ci + 1) * nv // (len(c) + 1) and vi % 1 == 0:
                    a(c[ci]); ci += 1
        assert ci == len(c)
        a(f"v_mov_b32 v{vPrev}, v{vQP+1}")
        rotate(nxt)
    def final(X, al):
        for k, t in agg_stream(X, al, False, None):
            a(t)
        a("s_nop 2")
        a(flush(vQP+1, None))
        a("s_branch K2_MAIN_DONE")
    def roll_body(nxt):
        al = vAl[0]
        a("s_waitcnt lgkmcnt(0)")
        if nxt:
            a(f"""
            ds_read_b128 {vr(vE,4)}, v{vLA} offset:{LIST+32}
            ds_read_b128 {vr(vE+4,4)}, v{vLA} offset:{LIST+48}
            ds_read_b64 {vr(vQN,2)}, v{vUA} offset:{UNODE+8}
            """)
        dots(vXA, ("s_waitcnt vmcnt(4)", "s_waitcnt vmcnt(0)"))
        fill = []
        if nxt:
            next_prep()
            a(f"v_add_u32 v{vE}, v{vE}, v{vC16}")
            fill = [f"v_add_u32 v{vE+u}, v{vE+u}, v{vC16}" for u in range(1, 8)]
        else:
            a("s_nop 2")
        c = chain(al)
        gaps = {11: 1, 14: 2, 17 + (5 if opt.mimic else 0): 1, 19 + (5 if opt.mimic else 0): 1}
        for i, ins in enumerate(c):
            a(ins)
            if i == 3 and nxt:
                a(f"ds_read_b128 {vr(vQ,4)}, v{vT0} offset:{QS}")
                a(f"ds_read_b128 {vr(vQ+4,4)}, v{vT1} offset:{QS}")
            for _ in range(gaps.get(i, 0)):
                a(fill.pop(0) if fill else "s_nop 0")
        while fill: a(fill.pop(0))
        a("s_nop 0")
        for k, t in agg_stream(vXA, al, nxt, vXA, vQC):
            a(t)
        a(f"v_mov_b32 v{vPrev}, v{vQC+1}")
        if nxt:
            a(f"v_mov_b32 v{vQC}, v{vQN}")
            a(f"v_mov_b32 v{vQC+1}, v{vQN+1}")
            a(f"v_add_u32 v{vLA}, 32, v{vLA}")
            a(f"v_add_u32 v{vUA}, 8, v{vUA}")
    def roll3_body(nxt):
        al = vAl[0]
        vEn = vQN
        B = lambda k: f"row_newbcast:{k} row_mask:0xf bank_mask:0xf"
        a("s_waitcnt lgkmcnt(0)")
        if nxt:
            a(f"ds_read_b32 v{vEn}, v{vLA}")
            a(f"v_add_u32 v{vLA}, v{vLA}, v{vUA}")
        dots(vXA, ("s_waitcnt vmcnt(4)", "s_waitcnt vmcnt(0)"))
        fill = []
        if nxt:
            a("s_waitcnt lgkmcnt(0)")
            a(f"v_xor_b32_dpp v{vT0}, v{vEn}, v{vC16} {B(8)}")
            a(f"v_xor_b32_dpp v{vT1}, v{vEn}, v{vC16} {B(9)}")
            a(f"v_add_u32_dpp v{vE}, v{vEn}, v{vC16} {B(0)}")
            fill = [f"v_add_u32_dpp v{vE+u}, v{vEn}, v{vC16} {B(u)}" for u in range(1, 8)]
        else:
            a("s_nop 2")
        c = chain(al)
        gaps = {11: 1, 14: 2, 17 + (5 if opt.mimic else 0): 1, 19 + (5 if opt.mimic else 0): 1}
        for i, ins in enumerate(c):
            a(ins)
            if i == 3 and nxt:
                a(f"ds_read_b128 {vr(vQ,4)}, v{vT0} offset:{QS}")
                a(f"ds_read_b128 {vr(vQ+4,4)}, v{vT1} offset:{QS}")
            for _ in range(gaps.get(i, 0)):
                a(fill.pop(0) if fill else "s_nop 0")
        while fill: a(fill.pop(0))
        a("s_nop 0")
        for k, t in agg_stream(vXA, al, nxt, vXA, vQC):
            a(t)
        a(f"v_mov_b32 v{vPrev}, v{vQC+1}")
        if nxt:
            a(f"v_mov_b32_dpp v{vQC}, v{vEn} {B(8)}")
            a(f"v_mov_b32_dpp v{vQC+1}, v{vEn} {B(9)}")
    if opt.style == "roll3":
        roll_body = roll3_body
    if opt.style in ("roll", "roll3"):
        a(f"""
        s_cmp_eq_u32 s{sHB}, 1
        s_cbranch_scc1 K2_LAST
        {".p2align %d" % opt.lalign if opt.lalign else ""}
        K2_LOOP:
        """)
        if opt.prio == 1:
            a(f"""
            s_cmp_ge_u32 s{sHB}, 4
            s_cbranch_scc1 K2_PR0
            s_setprio 2
            s_cmp_eq_u32 s{sHB}, 3
            s_cbranch_scc1 K2_PR0
            s_setprio 1
            K2_PR0:
            """)
        if opt.prio == 3:
            a(f"""
            s_cmp_ge_u32 s{sHB}, 3
            s_cbranch_scc1 K2_PR0
            s_setprio 2
            K2_PR0:
            """)
        roll_body(True)
        a(f"""
        s_sub_u32 s{sHB}, s{sHB}, 1
        s_cmp_gt_u32 s{sHB}, 1
        s_cbranch_scc1 K2_LOOP
        K2_LAST:
        """)
        if opt.prio == 1: a("s_setprio 0")
        if opt.prio == 3: a("s_setprio 1")
        if opt.prio == 4: a("s_setprio 2")
        roll_body(False)
        a("s_nop 2")
        a(flush(vPrev, None))
    else:
        def body2(cur, oth, qc, qn, first, has1, has2):
            al = vAl[0]
            a("s_waitcnt lgkmcnt(0)")
            if has1:
                a(f"ds_read_b64 {vr(qn,2)}, v{vUA} offset:{UNODE+8}")
                if first:
                    a(f"ds_read_b128 {vr(vE,4)}, v{vLA} offset:{LIST+32}")
                    a(f"ds_read_b128 {vr(vE+4,4)}, v{vLA} offset:{LIST+48}")
            if has2 and not first:
                a(f"ds_read_b128 {vr(vE,4)}, v{vLA} offset:{LIST+64}")
                a(f"ds_read_b128 {vr(vE+4,4)}, v{vLA} offset:{LIST+80}")
            if first or not has1: waits = ("s_waitcnt vmcnt(4)", "s_waitcnt vmcnt(0)")
            else: waits = ("s_waitcnt vmcnt(12)", "s_waitcnt vmcnt(8)")
            dots(cur, waits)
            fill = []
            if has1:
                a("s_waitcnt lgkmcnt(0)")
                a(f"v_xor_b32 v{vT0}, v{qn}, v{vC16}")
                a(f"v_xor_b32 v{vT1}, v{qn+1}, v{vC16}")
                if first:
                    for u in range(8):
                        a(f"v_add_u32 v{vE+u}, v{vE+u}, v{vC16}")
                        a(f"buffer_load_dwordx4 {vr(oth+4*u,4)}, v{vE+u}, s[{sX}:{sX+3}], 0 offen")
                    if has2:
                        a(f"ds_read_b128 {vr(vE,4)}, v{vLA} offset:{LIST+64}")
                        a(f"ds_read_b128 {vr(vE+4,4)}, v{vLA} offset:{LIST+80}")
                elif has2:
                    a(f"v_add_u32 v{vE}, v{vE}, v{vC16}")
                    fill = [f"v_add_u32 v{vE+u}, v{vE+u}, v{vC16}" for u in range(1, 8)]
                else:
                    a("s_nop 0")
            else:
                a("s_nop 2")
            c = chain(al)
            gaps = {11: 1, 14: 2, 17 + (5 if opt.mimic else 0): 1, 19 + (5 if opt.mimic else 0): 1}
            for i, ins in enumerate(c):
                a(ins)
                if i == 3 and has1:
                    a(f"ds_read_b128 {vr(vQ,4)}, v{vT0} offset:{QS}")
                    a(f"ds_read_b128 {vr(vQ+4,4)}, v{vT1} offset:{QS}")
                for _ in range(gaps.get(i, 0)):
                    a(fill.pop(0) if fill else "s_nop 0")
            while fill: a(fill.pop(0))
            if first and has2:
                a("s_waitcnt lgkmcnt(2)")
                for u in range(8):
                    a(f"v_add_u32 v{vE+u}, v{vE+u}, v{vC16}")
            else:
                a("s_nop 0")
            for k, t in agg_stream(cur, al, has2, cur, qc):
                a(t)
            a(f"v_mov_b32 v{vPrev}, v{qc+1}")
            if has1:
                a(f"v_add_u32 v{vLA}, 32, v{vLA}")
                a(f"v_add_u32 v{vUA}, 8, v{vUA}")
        def last2(cur, oth, qc, qn):
            if opt.prio: a("s_setprio 0")
            body2(cur, oth, qc, qn, False, False, False)
            a("s_nop 2")
            a(flush(vPrev, None))
            a("s_branch K2_MAIN_DONE")
        qA, qB = vQC, vQN
        a(f"""
        s_cmp_eq_u32 s{sHB}, 1
        s_cbranch_scc1 K2_LA
        s_cmp_eq_u32 s{sHB}, 2
        s_cbranch_scc1 K2_F2
        """)
        body2(vXA, vXB, qA, qB, True, True, True)
        a(f"""
        s_sub_u32 s{sHB}, s{sHB}, 1
        K2_LOOP:
        s_cmp_eq_u32 s{sHB}, 2
        s_cbranch_scc1 K2_PB
        """)
        if opt.prio: a("s_setprio 2")
        body2(vXB, vXA, qB, qA, False, True, True)
        a(f"""
        s_sub_u32 s{sHB}, s{sHB}, 1
        s_cmp_eq_u32 s{sHB}, 2
        s_cbranch_scc1 K2_PA
        """)
        body2(vXA, vXB, qA, qB, False, True, True)
        a(f"""
        s_sub_u32 s{sHB}, s{sHB}, 1
        s_branch K2_LOOP
        K2_PB:
        """)
        if opt.prio: a("s_setprio 1")
        body2(vXB, vXA, qB, qA, False, True, False)
        a("K2_LA:")
        last2(vXA, vXB, qA, qB)
        a("K2_PA:")
        if opt.prio: a("s_setprio 1")
        body2(vXA, vXB, qA, qB, False, True, False)
        a("K2_LB:")
        last2(vXB, vXA, qB, qA)
        a("K2_F2:")
        body2(vXA, vXB, qA, qB, True, True, False)
        a("s_branch K2_LB")
    a("s_branch K2_MAIN_DONE")
    a("K2_NOMAIN:")
    a("K2_MAIN_DONE:")
    if opt.prio: a("s_setprio 0")
    if "cyc" in opt.exp: st.stamp(a, True)
    st.stamp(a)
    a(f"""
    s_cmp_eq_u32 s{sR}, 0
    s_cbranch_scc0 K2_NRDONE
    v_mov_b32 v{vT3}, {MAXC}
    ds_read_b32 v{vT3}, v{vT3}
    s_waitcnt lgkmcnt(0)
    v_readfirstlane_b32 s3, v{vT3}
    s_nop 3
    s_min_u32 s3, s3, {CH}
    s_add_u32 s3, s3, 7
    s_lshr_b32 s3, s3, 3
    s_add_u32 s{sNR}, s3, 1
    K2_NRDONE:
    """)
    vSf, vSl = vE, vE+1
    a(f"""
    s_cmp_eq_u32 s{sWave}, 0
    s_cbranch_scc0 K2_NOTBL
    s_add_u32 s3, s{sQ}, 1
    s_lshl_b32 s3, s3, 1
    v_cvt_f32_u32 v{vT0}, s3
    s_mul_i32 s3, s3, s{sRem}
    s_lshl_b32 s{sP}, s3, 2
    s_lshl_b32 s3, s{sQ}, 1
    v_cvt_f32_u32 v{vT1}, s3
    v_rcp_f32 v{vT0}, v{vT0}
    v_rcp_f32 v{vT1}, v{vT1}
    s_lshl_b32 s3, s{sRem}, 2
    """)
    for (dst, last) in ((vSf, False), (vSl, True)):
        if not last:
            a(f"v_lshrrev_b32 v{vT2}, 2, v{vStart}")
        else:
            a(f"""
            v_add_u32 v{vT2}, v{vStart}, v{vPc}
            v_lshrrev_b32 v{vT2}, 2, v{vT2}
            v_add_u32 v{vT2}, -1, v{vT2}
            """)
        a(f"""
        v_cmp_gt_u32 vcc, s{sP}, v{vT2}
        v_cvt_f32_u32 v{vT3}, v{vT2}
        v_add_f32 v{vT3}, 0.5, v{vT3}
        v_mul_f32 v{vT3}, v{vT3}, v{vT0}
        v_cvt_u32_f32 v{vT3}, v{vT3}
        v_subrev_u32 v{vT2}, s{sP}, v{vT2}
        v_cvt_f32_u32 v{vT2}, v{vT2}
        v_add_f32 v{vT2}, 0.5, v{vT2}
        v_mul_f32 v{vT2}, v{vT2}, v{vT1}
        v_cvt_u32_f32 v{vT2}, v{vT2}
        v_add_u32 v{vT2}, s3, v{vT2}
        v_cndmask_b32_e64 v{dst}, v{vT2}, v{vT3}, vcc
        """)
    a(f"""
    v_sub_u32 v{vT0}, v{vSl}, v{vSf}
    v_add_u32 v{vT0}, 1, v{vT0}
    v_cmp_lt_u32 vcc, 0, v{vPc}
    v_add_u32 v{vT1}, v{vSf}, v{vLane}
    v_lshlrev_b32 v{vT1}, 9, v{vT1}
    v_cndmask_b32_e64 v{vT0}, 0, v{vT0}, vcc
    v_add_u32 v{vT1}, {PIECE}, v{vT1}
    v_lshlrev_b32 v{vT3}, 2, v{vLane}
    v_mov_b32 v{vT2}, {ZROW}
    ds_write_b32 v{vT3}, v{vT0} offset:{NPC}
    """)
    for j in range(4):
        a(f"""
        v_cmp_lt_u32 vcc, {j}, v{vT0}
        v_add_u32 v{vT3}, {512*j}, v{vT1}
        s_nop 0
        v_cndmask_b32_e64 v{vE+4+j}, v{vT2}, v{vT3}, vcc
        """)
    a(f"""
    v_lshlrev_b32 v{vT0}, 4, v{vLane}
    ds_write_b128 v{vT0}, {vr(vE+4,4)} offset:{TBL}
    K2_NOTBL:
    """)
    vA8 = vXB
    a(f"""
    s_cmp_ge_u32 s{sWave}, 8
    s_cbranch_scc1 K2_NOAA
    s_and_b32 s{sP}, s{sWave}, 3
    s_lshr_b32 s{sNH}, s{sWave}, 2
    """)
    tile_a_addr(a, vWa, vLane, vT2, vT3, sP, WV)
    for ks in range(8):
        if ks == 6: a("s_waitcnt lgkmcnt(4)")
        a(f"ds_read_b64_tr_b16 {vr(vA8+4*ks,2)}, v{vWa} offset:{ks*4096}")
        a(f"ds_read_b64_tr_b16 {vr(vA8+4*ks+2,2)}, v{vWa} offset:{ks*4096 + 1024}")
    a(f"""
    v_and_b32 v{vRow}, 31, v{vLane}
    s_lshl_b32 s3, s{sNH}, 5
    v_add_u32 v{vRow}, s3, v{vRow}
    """)
    tile_b_addr(a, vBa, vRow, vLane, vT3)
    vTa, vNa, vWb, vOut = 80, 81, 82, 83
    for ks in range(8):
        a(f"v_xor_b32 v{vQ+ks}, {32*ks}, v{vBa}")
    a(f"""
    s_mul_i32 s3, s{sBeta}, {T*256}
    s_lshl_b32 s{sCnt}, s{sP}, 6
    s_add_u32 s3, s3, s{sCnt}
    v_lshrrev_b32 v{vT0}, 5, v{vLane}
    v_lshlrev_b32 v{vOut}, 8, v{vRow}
    v_lshl_add_u32 v{vOut}, v{vT0}, 5, v{vOut}
    v_add_u32 v{vOut}, s3, v{vOut}
    K2_NOAA:
    v_lshrrev_b32 v{vT0}, 4, v{vLane}
    s_lshl_b32 s3, s{sWave}, 2
    v_add_u32 v{vT0}, s3, v{vT0}
    v_lshlrev_b32 v{vTa}, 4, v{vT0}
    v_lshlrev_b32 v{vNa}, 2, v{vT0}
    v_xor_b32 v{vWb}, v{vTa}, v{vC16}
    v_and_b32 v{vWb}, 0xf0, v{vWb}
    v_lshl_add_u32 v{vWb}, v{vT0}, 8, v{vWb}
    s_waitcnt lgkmcnt(0)
    s_barrier
    """)
    st.stamp(a)
    vB = vE
    vRd = vXA
    vNp = vT3
    a(f"""
    s_cmp_ge_u32 s{sWave}, 13
    s_cbranch_scc1 K2_RED_DONE
    ds_read_b128 {vr(vB,4)}, v{vTa} offset:{TBL}
    ds_read_b32 v{vNp}, v{vNa} offset:{NPC}
    s_waitcnt lgkmcnt(0)
    """)
    for j in range(3):
        a(f"""
        v_add_u32 v{vB+j}, v{vB+j}, v{vC16}
        ds_read_b128 {vr(vRd+8*j,4)}, v{vB+j}
        ds_read_b128 {vr(vRd+8*j+4,4)}, v{vB+j} offset:256
        """)
    for j in range(3):
        a(f"s_waitcnt lgkmcnt({4-2*j})")
        for i in range(8):
            a(f"v_add_f32 v{vTot+i}, v{vTot+i}, v{vRd+8*j+i}")
    a(f"""
    s_mov_b32 s{sT}, 3
    K2_XL:
    v_cmp_lt_u32 vcc, s{sT}, v{vNp}
    s_cbranch_vccz K2_RED_DONE
    s_lshl_b32 s3, s{sT}, 9
    v_add_u32 v{vT0}, s3, v{vB}
    s_mov_b64 exec, vcc
    ds_read_b128 {vr(vRd,4)}, v{vT0}
    ds_read_b128 {vr(vRd+4,4)}, v{vT0} offset:256
    s_waitcnt lgkmcnt(0)
    """)
    for i in range(8):
        a(f"v_add_f32 v{vTot+i}, v{vTot+i}, v{vRd+i}")
    a(f"""
    s_mov_b64 exec, -1
    s_add_u32 s{sT}, s{sT}, 1
    s_branch K2_XL
    K2_RED_DONE:
    s_add_u32 s{sR}, s{sR}, 1
    s_cmp_ge_u32 s{sR}, s{sNR}
    s_cbranch_scc1 K2_EPI
    s_barrier
    """)
    a(f"""
    s_cmp_ge_u32 s{sWave}, 4
    s_cbranch_scc1 K2_RZ
    v_mov_b32 v{vT2}, 0
    v_lshlrev_b32 v{vT3}, 2, v0
    ds_write_b32 v{vT3}, v{vT2} offset:{HIST}
    K2_RZ:
    v_bfe_u32 v{vT2}, v{vLane}, 2, 1
    v_mul_u32_u24 v{vT2}, 12, v{vT2}
    v_and_b32 v{vT3}, 3, v{vLane}
    v_or_b32 v{vT2}, v{vT2}, v{vT3}
    v_lshlrev_b32 v{vUA}, 8, v{vLane}
    v_lshl_or_b32 v{vUA}, v{vT2}, 4, v{vUA}
    s_waitcnt lgkmcnt(0)
    s_barrier
    s_cmp_lt_u32 s{sWave}, 8
    s_cbranch_scc1 K2_HDRD
    """)
    for i in range(8): a(f"v_mov_b32 v{vW+i}, {EMPTY}")
    a(f"""
    v_subrev_u32 v{vT0}, 512, v0
    v_and_b32 v{vT1}, 1, v{vT0}
    v_lshrrev_b32 v{vT0}, 1, v{vT0}
    v_lshlrev_b32 v{vT2}, 2, v{vT0}
    v_add_u32 v{vT2}, {MF}, v{vT2}
    ds_read_b32 v{vT3}, v{vT2}
    v_lshlrev_b32 v{vT0}, 14, v{vT0}
    v_add_u32 v{vT0}, {WS_OVF}, v{vT0}
    s_lshl_b32 s3, s{sR}, 3
    s_sub_u32 s3, s3, 8
    v_lshl_add_u32 v{vT1}, v{vT1}, 2, s3
    v_lshl_add_u32 v{vT0}, v{vT1}, 3, v{vT0}
    s_mov_b32 s{sQ}, {1 << TAGSH}
    s_mov_b32 s{sT}, {1 << 17}
    s_waitcnt lgkmcnt(0)
    v_sub_u32 v{vT3}, v{vT3}, v{vT1}
    v_cmp_lt_i32 vcc, 0, v{vT3}
    s_and_saveexec_b64 s[{sSave}:{sSave+1}], vcc
    s_cbranch_execz K2_R1
    v_cmp_lt_i32 s[{sM}:{sM+1}], 1, v{vT3}
    v_cmp_lt_i32 s[{sM+2}:{sM+3}], 2, v{vT3}
    v_cmp_lt_i32 s[{sM+4}:{sM+5}], 3, v{vT3}
    K2_RP:
    buffer_load_dwordx4 {vr(vSoM,4)}, v{vT0}, s[{sWS}:{sWS+3}], 0 offen sc1
    buffer_load_dwordx4 {vr(vSoM+4,4)}, v{vT0}, s[{sWS}:{sWS+3}], 0 offen offset:16 sc1
    s_waitcnt vmcnt(0)
    """)
    for i in range(8): a(f"v_xor_b32 v{vSoM+i}, s{sTag}, v{vSoM+i}")
    a(f"v_or_b32 v{vT1}, v{vSoM}, v{vSoM+1}")
    for k in range(1, 4):
        a(f"""
        v_or_b32 v{vT2}, v{vSoM+2*k}, v{vSoM+2*k+1}
        v_cndmask_b32_e64 v{vT2}, 0, v{vT2}, s[{sM+2*(k-1)}:{sM+2*(k-1)+1}]
        v_or_b32 v{vT1}, v{vT1}, v{vT2}
        """)
    a(f"""
    v_cmp_le_u32 vcc, s{sQ}, v{vT1}
    s_cbranch_vccz K2_RPD
    s_sleep 2
    s_sub_u32 s{sT}, s{sT}, 1
    s_cmp_lg_u32 s{sT}, 0
    s_cbranch_scc1 K2_RP
    K2_RPD:
    v_cmp_eq_u32 vcc, s{sBeta}, v{vSoM+1}
    s_nop 1
    v_cndmask_b32_e64 v{vW}, v{vW}, v{vSoM}, vcc
    """)
    for k in range(1, 4):
        a(f"""
        v_cmp_eq_u32 vcc, s{sBeta}, v{vSoM+2*k+1}
        s_nop 0
        s_and_b64 vcc, vcc, s[{sM+2*(k-1)}:{sM+2*(k-1)+1}]
        s_nop 1
        v_cndmask_b32_e64 v{vW+k}, v{vW+k}, v{vSoM+2*k}, vcc
        """)
    a(f"""
    K2_R1:
    s_mov_b64 exec, s[{sSave}:{sSave+1}]
    v_mov_b32 v{vT3}, 1
    s_branch K2_DECODE
    K2_EPI:
    """)
    st.stamp(a)
    vAcc16, vB8 = 24, vXA
    a(f"""
    s_cmp_ge_u32 s{sWave}, 13
    s_cbranch_scc1 K2_WB_DONE
    """)
    for i in range(4):
        a(f"v_cvt_pk_bf16_f32 v{vE+i}, v{vTot+2*i}, v{vTot+2*i+1}")
    a(f"""
    ds_write_b128 v{vWb}, {vr(vE,4)} offset:{AGGB}
    K2_WB_DONE:
    s_waitcnt lgkmcnt(0)
    s_barrier
    s_cmp_ge_u32 s{sWave}, 8
    s_cbranch_scc1 K2_FIN
    """)
    a(f"v_mov_b32 v{vE}, v{vOut}")
    for ks in range(8):
        a(f"ds_read_b128 {vr(vB8+4*ks,4)}, v{vQ+ks} offset:{AGGB}")
    a(f"v_cmp_gt_u32 vcc, {T}, v{vRow}")
    for ks in range(8):
        a(f"s_waitcnt lgkmcnt({7-ks})")
        c = "0" if ks == 0 else vr(vAcc16,16)
        a(f"v_mfma_f32_32x32x16_bf16 {vr(vAcc16,16)}, {vr(vA8+4*ks,4)}, {vr(vB8+4*ks,4)}, {c}")
    a("s_nop 7")
    a("s_nop 3")
    for i in range(8):
        a(f"v_cvt_pk_bf16_f32 v{vQ+i}, v{vAcc16+2*i}, v{vAcc16+2*i+1}")
    a(f"""
    s_and_saveexec_b64 s[{sSave}:{sSave+1}], vcc
    s_cbranch_execz K2_ST_DONE
    buffer_store_dwordx4 {vr(vQ,4)}, v{vE}, s[{sOUT}:{sOUT+3}], 0 offen {opt.outst}
    buffer_store_dwordx4 {vr(vQ+4,4)}, v{vE}, s[{sOUT}:{sOUT+3}], 0 offen offset:16 {opt.outst}
    K2_ST_DONE:
    s_mov_b64 exec, s[{sSave}:{sSave+1}]
    K2_FIN:
    s_cmp_eq_u32 s2, 0
    s_cbranch_scc0 K2_NOEPOCH
    s_cmp_eq_u32 s{sWave}, 15
    s_cbranch_scc0 K2_NOEPOCH
    v_mov_b32 v{vT0}, 0
    v_mov_b32 v{vT1}, s{sTag}
    s_mov_b64 exec, 1
    buffer_store_dword v{vT1}, v{vT0}, s[{sWS}:{sWS+3}], 0 offen sc1
    s_mov_b64 exec, -1
    K2_NOEPOCH:
    """)
    st.stamp(a)
    if opt.stamps:
        a("s_waitcnt vmcnt(0)")
        st.stamp(a)
    st.flush(a, sWS, vT0, sWave)
    a("""
    K2_END:
    s_endpgm
    """)
    return a.text(), LDS, 128

DESCRIPTION = """;
;   out[n] = bf16( sum_{e: dst[e] = n} sigmoid(x[src[e]] . Q[n] / sqrt(128)) * x[src[e]] ) @ w_v,   Q = bf16(x @ w_q)
"""

def build(opt):
    k, lds, v = gen_k(opt)
    n = NAME + "_kernel"
    out = HEADER + DESCRIPTION
    for _ in range(opt.rep):
        out += f"; @launch kernel={n} grid=({NB},1,1) block=(1024,1,1) lds={lds}\n" if opt.aslist or opt.rep > 1 else f"; @launch grid=({NB},1,1) block=(1024,1,1) lds={lds}\n"
    out += '.amdgcn_target "amdgcn-amd-amdhsa--gfx950"\n.text\n'
    out += f".globl {n}\n.p2align 8\n.type {n},@function\n" + k
    out += '.section .rodata,"a"\n.p2align 6\n' + kd(n, v)
    return out

def parse(argv=None):
    p = argparse.ArgumentParser()
    p.add_argument("-o", default="cdna_kernels/" + NAME + ".s")
    p.add_argument("--stamps", action="store_true")
    p.add_argument("--prefetch", type=int, default=5)
    p.add_argument("--mimic", type=int, default=0)
    p.add_argument("--prio", type=int, default=3)
    p.add_argument("--keep", default="")
    p.add_argument("--exp", default="")
    p.add_argument("--outst", default="")
    p.add_argument("--sleep", type=int, default=2)
    p.add_argument("--drain", type=int, default=0)
    p.add_argument("--sleep2", type=int, default=0)
    p.add_argument("--pf6", type=int, default=0)
    p.add_argument("--mov64", type=int, default=0)
    p.add_argument("--align", type=int, default=1)
    p.add_argument("--lalign", type=int, default=0)
    p.add_argument("--pprio", type=int, default=0)
    p.add_argument("--eld", default="")
    p.add_argument("--pfn", type=int, default=3)
    p.add_argument("--pfsh", type=int, default=7)
    p.add_argument("--pfsleep", type=int, default=0)
    p.add_argument("--wsbase", type=lambda x: int(x, 0), default=0)
    p.add_argument("--cst", default="sc1")
    p.add_argument("--dmalate", type=int, default=0)
    p.add_argument("--rep", type=int, default=1)
    p.add_argument("--aslist", type=int, default=0)
    p.add_argument("--style", default="roll3")
    return p.parse_args(argv)

if __name__ == "__main__":
    o = parse()
    open(o.o, "w").write(build(o))
    print("wrote", o.o)
```

```python
import sys, argparse
from gen import A, vr, Stamps, scan64, kd, HEADER, NAME

N, E, D = 12500, 400000, 128
T = 49
NB = 256
CH = 1564
C = 256
XBYTES = N * 256
EBYTES = E * 4
WS_NONCE = 0
WS_OVH = 0x1000
WS_EXTRA = 0x40000
WS_CELLS = 0x100000
CELLROW = 16384
WS_OVF = 0x500000
OVF_STRIDE = 16384
WS_USED = WS_OVF + 256 * OVF_STRIDE
TAGSH = 23
EMPTY = 0x3f
WS_STAMP = 0x1000000
OOB = 0x40000000
DUMMY = 49

def srd_tail(a, d, size):
    a(f"s_mov_b32 s{d+2}, {size}")
    a(f"s_mov_b32 s{d+3}, 0x00020000")

def tile_a_addr(a, vdst, vlane, t0, t1, sP, wbase):
    a(f"""
    v_bfe_u32 v{t0}, v{vlane}, 2, 2
    v_lshrrev_b32 v{t1}, 5, v{vlane}
    v_lshl_add_u32 v{vdst}, v{t1}, 3, v{t0}
    v_lshlrev_b32 v{vdst}, 8, v{vdst}
    v_xor_b32 v{t0}, s{sP}, v{t0}
    v_lshl_add_u32 v{vdst}, v{t0}, 6, v{vdst}
    v_bfe_u32 v{t0}, v{vlane}, 4, 1
    v_bfe_u32 v{t1}, v{vlane}, 1, 1
    v_lshl_add_u32 v{t0}, v{t0}, 1, v{t1}
    v_and_b32 v{t1}, 1, v{vlane}
    v_lshl_add_u32 v{t0}, v{t1}, 2, v{t0}
    v_lshl_add_u32 v{vdst}, v{t0}, 3, v{vdst}
    v_add_u32 v{vdst}, {wbase}, v{vdst}
    """)

def tile_b_addr(a, vdst, vrow, vlane, t0):
    a(f"""
    v_lshrrev_b32 v{t0}, 5, v{vlane}
    v_xor_b32 v{t0}, v{t0}, v{vrow}
    v_and_b32 v{t0}, 15, v{t0}
    v_lshlrev_b32 v{t0}, 4, v{t0}
    v_lshl_add_u32 v{vdst}, v{vrow}, 8, v{t0}
    """)

def gen_k(opt):
    a = A()
    HIST, MAXC, ZROW, TBL = 0, 256, 512, 1024
    NPC = TBL + 1024
    LIST = NPC + 256
    LISTW = 6144
    UNODE = LIST + LISTW * 4
    QS = UNODE + 1536 * 4
    AGGB = QS + 52 * 256
    PIECE = AGGB + 64 * 256
    XT = PIECE
    WQ = XT + 16384
    WV = PIECE + (DUMMY + 64) * 512
    LDS = WV + 32768
    assert WQ + 32768 <= WV
    st = Stamps(opt.stamps, 64, WS_STAMP + 0x40000, [int(x) for x in opt.keep.split(',')] if opt.keep else None)
    sX, sWQ, sWV, sOUT, sWS = 4, 8, 12, 16, 20
    sBeta, sWave, sR, sNR = 24, 25, 26, 27
    sOdd = 28
    sBeta24, sHB, sP, sNH, s196 = 30, 31, 32, 33, 34
    sM = 36
    sSave = 50
    sCnt, sQ, sRem, sT = 52, 53, 54, 55
    vC16, vPB, vLA, vUA, vPrev = 1, 2, 3, 4, 5
    vQP, vQC, vQN = 6, 8, 10
    vAl = (12, 14)
    vQB = 16
    vT0, vT1, vT2, vT3 = 17, 18, 19, 20
    vLane, vStart, vPc = 21, 22, 23
    vAcc, vP, vE, vQ = 24, 32, 40, 48
    vXA, vXB, vTot = 56, 88, 120
    vCand, vHdr, vSo, vN4, vRk = 56, 60, 64, 72, 80
    vCnt = 47
    vHdr2, vSo2, vN42, vRk2 = 88, 92, 96, 100
    sM2 = 56
    vWl = 6
    vWa, vBa, vRow, vQst = 12, 13, 14, 15
    HP = LDS
    OVC, JUNK = HP + 1024, HP + 1040
    H2 = HP + 1280
    ST2 = H2 + 256
    MF = ST2 + 1024
    LDS = MF + 1024
    OVL = LIST
    OVB = LIST + 8192
    STAGE = AGGB
    sSRC, sDST, sNonce, sPi = 56, 60, 35, 3
    sTag = 30
    vDst, vSrc, vEnt, vAdr, vRank, vNeg, vNon, vGo = 56, 58, 60, 62, 64, 68, 66, 67
    vBk = 76
    a(f"""
    {NAME}_kernel:
    s_cmp_ge_u32 s2, {NB}
    s_cbranch_scc1 K2_END
    s_load_dwordx2 s[{sWS}:{sWS+1}], s[0:1], 56
    s_load_dwordx2 s[{sDST}:{sDST+1}], s[0:1], 16
    s_load_dwordx2 s[{sSRC}:{sSRC+1}], s[0:1], 8
    s_load_dwordx2 s[{sX}:{sX+1}], s[0:1], 0
    s_load_dwordx2 s[{sWQ}:{sWQ+1}], s[0:1], 24
    s_load_dwordx2 s[{sWV}:{sWV+1}], s[0:1], 32
    s_load_dwordx2 s[{sOUT}:{sOUT+1}], s[0:1], 40
    """)
    st.stamp(a)
    srd_tail(a, sWS, WS_USED if not opt.stamps else 0x2000000)
    srd_tail(a, sDST, EBYTES); srd_tail(a, sSRC, EBYTES); srd_tail(a, sX, XBYTES); srd_tail(a, sWQ, 32768)
    a(f"""
    v_lshrrev_b32 v{vT0}, 6, v0
    s_mov_b32 s{sBeta}, s2
    s_mul_i32 s3, s2, {CH*4}
    v_readfirstlane_b32 s{sWave}, v{vT0}
    v_lshlrev_b32 v{vT2}, 3, v0
    v_add_u32 v{vT2}, s3, v{vT2}
    s_movk_i32 s{sT}, {CH//2}
    s_cmp_eq_u32 s2, {C-1}
    s_cselect_b32 s{sT}, {(E - (C-1)*CH)//2}, s{sT}
    v_mov_b32 v{vT3}, 0
    v_cmp_gt_u32 vcc, s{sT}, v0
    s_and_saveexec_b64 s[{sSave}:{sSave+1}], vcc
    s_waitcnt lgkmcnt(0)
    {("s_add_u32 s%d, s%d, %d" % (sWS, sWS, opt.wsbase)) if opt.wsbase else ""}
    {("s_addc_u32 s%d, s%d, 0" % (sWS+1, sWS+1)) if opt.wsbase else ""}
    s_cbranch_execz K1_NOEDGE0
    buffer_load_dwordx2 {vr(vDst,2)}, v{vT2}, s[{sDST}:{sDST+3}], 0 offen {opt.eld}
    buffer_load_dwordx2 {vr(vSrc,2)}, v{vT2}, s[{sSRC}:{sSRC+3}], 0 offen {opt.eld}
    K1_NOEDGE0:
    s_mov_b64 exec, s[{sSave}:{sSave+1}]
    buffer_load_dword v{vNon}, v{vT3}, s[{sWS}:{sWS+3}], 0 offen sc1
    """)
    a(f"""
    v_and_b32 v{vLane}, 63, v0
    v_bfe_u32 v{vT0}, v0, 4, 2
    v_and_b32 v{vT1}, 15, v0
    v_lshlrev_b32 v{vC16}, 4, v{vT1}
    """)
    a(f"""
    v_mov_b32 v{vNeg}, {EMPTY}
    v_mov_b32 v{vNeg+1}, {EMPTY}
    v_mov_b32 v{vNeg+2}, {EMPTY}
    v_mov_b32 v{vNeg+3}, {EMPTY}
    v_lshlrev_b32 v{vT2}, 4, v0
    ds_write_b128 v{vT2}, {vr(vNeg,4)} offset:{STAGE}
    s_cmp_eq_u32 s{sWave}, 12
    s_cbranch_scc0 K1_NOS2
    v_lshlrev_b32 v{vT3}, 4, v{vLane}
    v_add_u32 v{vT3}, {ST2}, v{vT3}
    ds_write_b128 v{vT3}, {vr(vNeg,4)}
    K1_NOS2:
    v_mov_b32 v{vT2}, 0
    v_lshlrev_b32 v{vT3}, 2, v0
    s_cmp_ge_u32 s{sWave}, 6
    s_cbranch_scc1 K1_NOZ0
    v_add_u32 v{vT3}, {HP}, v{vT3}
    ds_write_b32 v{vT3}, v{vT2}
    s_branch K1_NOZ1
    K1_NOZ0:
    s_sub_u32 s3, s{sWave}, 8
    s_cmp_ge_u32 s3, 4
    s_cbranch_scc1 K1_NOZ2
    v_add_u32 v{vT3}, {HIST - 2048}, v{vT3}
    ds_write_b32 v{vT3}, v{vT2}
    s_branch K1_NOZ1
    K1_NOZ2:
    s_cmp_lt_u32 s{sWave}, 12
    s_cbranch_scc1 K1_NOZ1
    v_add_u32 v{vT3}, {MF - 3072}, v{vT3}
    ds_write_b32 v{vT3}, v{vT2}
    K1_NOZ1:
    s_mov_b32 s{sR}, 0
    s_mov_b32 s{sOdd}, 0xaaaaaaaa
    s_mov_b32 s{sOdd+1}, 0xaaaaaaaa
    s_movk_i32 s{s196}, {T*4}
    s_lshl_b32 s3, s{sWave}, 11
    s_add_u32 s3, s3, {PIECE}
    v_lshl_add_u32 v{vPB}, v{vT0}, 9, s3
    v_add_u32 v{vPB}, v{vPB}, v{vC16}
    s_and_b32 s{sPi}, s2, 7
    s_lshl_b32 s{sPi}, s{sPi}, 5
    s_lshr_b32 s{sT}, s2, 3
    s_add_u32 s{sPi}, s{sPi}, s{sT}
    s_mov_b32 s{sHB}, s{sPi}
    v_lshrrev_b32 v{vT2}, 2, v0
    v_lshlrev_b32 v{vGo}, 14, v{vT2}
    v_and_b32 v{vT2}, 3, v0
    v_lshl_add_u32 v{vGo}, v{vT2}, 4, v{vGo}
    v_mov_b32 v{vT3}, 1
    s_waitcnt lgkmcnt(0)
    s_barrier
    """)
    st.stamp(a)
    def early_dma():
        a(f"""
        v_bfe_u32 v{vT0}, v0, 4, 2
        v_and_b32 v{vT1}, 15, v0
        v_lshlrev_b32 v{vT2}, 2, v{vT0}
        v_xor_b32 v{vT2}, v{vT2}, v{vT1}
        v_lshlrev_b32 v{vT2}, 4, v{vT2}
        v_lshl_add_u32 v{vWl}, v{vT0}, 8, v{vT2}
        s_cmp_lt_u32 s{sWave}, 8
        s_cbranch_scc1 K2_L2
        s_sub_u32 s{sQ}, s{sWave}, 8
        """)
        def xt_dma(jreg):
            a(f"""
            s_lshl_b32 s3, s{jreg}, 2
            v_add_u32 v{vT2}, s3, v{vT0}
            v_xor_b32 v{vEnt}, v{vT2}, v{vT1}
            v_and_b32 v{vEnt}, 15, v{vEnt}
            v_lshlrev_b32 v{vEnt}, 4, v{vEnt}
            v_lshl_add_u32 v{vEnt}, v{vT2}, 8, v{vEnt}
            s_mul_i32 s3, s{sBeta}, {T*256}
            s_lshl_b32 s{sT}, s{jreg}, 10
            s_add_u32 s{sT}, s{sT}, {XT}
            s_mov_b32 m0, s{sT}
            s_nop 0
            buffer_load_dwordx4 v{vEnt}, s[{sX}:{sX+3}], s3 offen lds
            """)
        xt_dma(sQ)
        a(f"""
        s_cmp_ge_u32 s{sWave}, 13
        s_cbranch_scc1 K2_L3
        s_mov_b32 s{sRem}, s{sWave}
        """)
        xt_dma(sRem)
        a(f"""
        K2_L3:
        s_lshl_b32 s3, s{sQ}, 12
        s_add_u32 s{sT}, s3, {WQ}
        """)
        for i in range(4):
            a(f"""
            s_mov_b32 m0, s{sT}
            s_add_u32 s{sT}, s{sT}, 1024
            buffer_load_dwordx4 v{vWl}, s[{sWQ}:{sWQ+3}], s3 offen lds
            s_add_u32 s3, s3, 1024
            """)
        a("K2_L2:")
    if not opt.dmalate: early_dma()
    else:
        a(f"""
        v_bfe_u32 v{vT0}, v0, 4, 2
        v_and_b32 v{vT1}, 15, v0
        v_lshlrev_b32 v{vT2}, 2, v{vT0}
        v_xor_b32 v{vT2}, v{vT2}, v{vT1}
        v_lshlrev_b32 v{vT2}, 4, v{vT2}
        v_lshl_add_u32 v{vWl}, v{vT0}, 8, v{vT2}
        """)
    if opt.pf6:
        a(f"""
        s_cmp_lt_u32 s{sWave}, {16 - opt.pf6}
        s_cbranch_scc1 K1_NOPF6
        s_sub_u32 s3, s{sWave}, {16 - opt.pf6}
        s_add_u32 s3, s3, 3
        s_lshl_b32 s{sT}, s3, 13
        s_lshr_b32 s3, s2, 3
        s_mul_i32 s3, s3, 100096
        s_add_u32 s3, s3, s{sT}
        v_lshlrev_b32 v{vEnt}, 7, v{vLane}
        buffer_load_dword v{vQB}, v{vEnt}, s[{sX}:{sX+3}], s3 offen
        K1_NOPF6:
        """)
    if opt.prefetch == 1:
        a(f"""
        s_cmp_eq_u32 s{sWave}, 14
        s_cbranch_scc0 K1_NOPF
        s_mul_i32 s3, s2, 12544
        v_lshlrev_b32 v{vT2}, 7, v{vLane}
        buffer_load_dword v{vNeg+4}, v{vT2}, s[{sX}:{sX+3}], s3 offen
        s_add_u32 s3, s3, 8192
        v_cmp_gt_u32 vcc, 34, v{vLane}
        v_mov_b32 v{vEnt}, {OOB}
        s_nop 0
        v_cndmask_b32_e64 v{vT2}, v{vEnt}, v{vT2}, vcc
        buffer_load_dword v{vNeg+4}, v{vT2}, s[{sX}:{sX+3}], s3 offen
        K1_NOPF:
        """)
    sPiK = sHB
    srd_tail(a, sWV, 32768); srd_tail(a, sOUT, XBYTES)
    for i in range(8):
        a(f"v_mov_b32 v{vTot+i}, 0")
    a("v_mov_b32 v83, 0")
    a(f"""
    v_bfe_u32 v{vT2}, v{vLane}, 2, 1
    v_mul_u32_u24 v{vT2}, 12, v{vT2}
    v_and_b32 v{vT0}, 3, v{vLane}
    v_or_b32 v{vT2}, v{vT2}, v{vT0}
    v_lshlrev_b32 v{vUA}, 8, v{vLane}
    v_lshl_or_b32 v{vUA}, v{vT2}, 4, v{vUA}
    """)
    a(f"""
    s_and_b32 s{sP}, s{sWave}, 3
    s_bfe_u32 s{sNH}, s{sWave}, 0x10002
    s_cmp_ge_u32 s{sWave}, 8
    s_cbranch_scc1 K2_NOQA
    """)
    tile_a_addr(a, vWa, vLane, vT2, vT0, sP, WQ)
    a(f"""
    v_and_b32 v{vRow}, 31, v{vLane}
    s_lshl_b32 s3, s{sNH}, 5
    v_add_u32 v{vRow}, s3, v{vRow}
    """)
    tile_b_addr(a, vBa, vRow, vLane, vT0)
    a(f"""
    v_bfe_u32 v{vT2}, v{vRow}, 2, 1
    v_mul_u32_u24 v{vT2}, 12, v{vT2}
    v_and_b32 v{vT0}, 3, v{vRow}
    v_or_b32 v{vT2}, v{vT2}, v{vT0}
    v_lshrrev_b32 v{vT0}, 5, v{vLane}
    s_lshl_b32 s3, s{sP}, 2
    v_lshl_add_u32 v{vT0}, v{vT0}, 1, s3
    v_xor_b32 v{vT2}, v{vT2}, v{vT0}
    v_lshlrev_b32 v{vT2}, 4, v{vT2}
    v_lshl_add_u32 v{vQst}, v{vRow}, 8, v{vT2}
    K2_NOQA:
    """)
    a(f"""
    s_movk_i32 s{sT}, {CH//2}
    s_cmp_eq_u32 s2, {C-1}
    s_cselect_b32 s{sT}, {(E - (C-1)*CH)//2}, s{sT}
    v_cmp_gt_u32 vcc, s{sT}, v0
    s_and_saveexec_b64 s[{sSave}:{sSave+1}], vcc
    s_cbranch_execz K1_EDGE1_DONE
    s_mov_b32 s{sT}, -{T}
    s_mov_b32 s{sCnt}, {STAGE}
    s_cmp_lt_u32 s{sWave}, 8
    s_cbranch_scc1 K1_EW0
    s_waitcnt vmcnt({1 if opt.dmalate else 7})
    s_branch K1_EW1
    K1_EW0:
    s_waitcnt vmcnt(1)
    K1_EW1:
    """)
    st.stamp(a)
    for i in range(2):
        a(f"""
        v_mul_u32_u24 v{vT0}, 21400, v{vDst+i}
        v_lshrrev_b32 v{vT0}, 20, v{vT0}
        v_lshlrev_b32 v{vAdr+i}, 2, v{vT0}
        v_add_u32 v{vT2}, {HP}, v{vAdr+i}
        ds_add_rtn_u32 v{vRank+i}, v{vT2}, v{vT3}
        v_mad_i32_i24 v{vT1}, v{vT0}, s{sT}, v{vDst+i}
        v_lshl_or_b32 v{vEnt+i}, v{vSrc+i}, 8, v{vT1}
        v_mov_b32 v{vBk+i}, v{vT0}
        v_lshl_add_u32 v{vAdr+i}, v{vAdr+i}, 4, s{sCnt}
        """)
    a(f"v_mov_b32 v{vT2}, {JUNK}")
    for i in range(2):
        a(f"""
        s_waitcnt lgkmcnt({1-i})
        v_cmp_gt_u32 s[{sM+2*i}:{sM+2*i+1}], 16, v{vRank+i}
        v_lshl_add_u32 v{vT0}, v{vRank+i}, 2, v{vAdr+i}
        s_nop 0
        v_cndmask_b32_e64 v{vT0}, v{vT2}, v{vT0}, s[{sM+2*i}:{sM+2*i+1}]
        ds_write_b32 v{vT0}, v{vEnt+i}
        """)
    a(f"""
    s_and_b64 s[{sM+4}:{sM+5}], s[{sM}:{sM+1}], s[{sM+2}:{sM+3}]
    s_andn2_b64 s[{sM+4}:{sM+5}], exec, s[{sM+4}:{sM+5}]
    s_cbranch_scc0 K1_EDGE1_DONE
    s_mov_b64 s[{sM+6}:{sM+7}], exec
    """)
    for i in range(2):
        a(f"""
        s_andn2_b64 exec, s[{sM+6}:{sM+7}], s[{sM+2*i}:{sM+2*i+1}]
        s_cbranch_execz K1_OV_{i}
        v_and_b32 v{vT0}, 7, v{vBk+i}
        v_lshrrev_b32 v{vT1}, 5, v{vBk+i}
        v_lshl_add_u32 v{vT0}, v{vT1}, 3, v{vT0}
        v_lshlrev_b32 v{vT1}, 2, v{vT0}
        v_add_u32 v{vT1}, {H2}, v{vT1}
        ds_add_rtn_u32 v{vT1}, v{vT1}, v{vT3}
        v_bfe_u32 v{vT2}, v{vBk+i}, 3, 2
        v_lshl_or_b32 v{vT2}, v{vT2}, 6, v{vEnt+i}
        v_lshlrev_b32 v{vT0}, 4, v{vT0}
        v_add_u32 v{vT0}, {ST2}, v{vT0}
        s_waitcnt lgkmcnt(0)
        v_cmp_gt_u32 vcc, 4, v{vT1}
        v_lshl_add_u32 v{vT0}, v{vT1}, 2, v{vT0}
        s_mov_b64 s[{sM+8}:{sM+9}], exec
        s_and_b64 exec, exec, vcc
        ds_write_b32 v{vT0}, v{vT2}
        s_andn2_b64 exec, s[{sM+8}:{sM+9}], vcc
        s_cbranch_execz K1_OV_{i}
        v_mov_b32 v{vT0}, {OVC}
        ds_add_rtn_u32 v{vT0}, v{vT0}, v{vT3}
        s_waitcnt lgkmcnt(0)
        v_lshlrev_b32 v{vT0}, 2, v{vT0}
        ds_write_b32 v{vT0}, v{vEnt+i} offset:{OVL}
        ds_write_b32 v{vT0}, v{vBk+i} offset:{OVB}
        K1_OV_{i}:
        """)
    a(f"""
    K1_EDGE1_DONE:
    s_mov_b64 exec, s[{sSave}:{sSave+1}]
    v_lshlrev_b32 v{vT0}, 4, v0
    s_waitcnt lgkmcnt(0)
    s_barrier
    """)
    st.stamp(a)
    a(f"""
    s_cmp_ge_u32 s{sWave}, 8
    s_cbranch_scc1 K1_NOCOPY
    ds_read_b128 {vr(vNeg,4)}, v{vT0} offset:{STAGE}
    ds_read_b128 {vr(vNeg+4,4)}, v{vT0} offset:{STAGE + 8192}
    v_and_b32 v{vT1}, -4, v0
    v_add_u32 v{vT1}, {HP}, v{vT1}
    ds_read_b32 v{vDst}, v{vT1}
    ds_read_b32 v{vDst+1}, v{vT1} offset:512
    s_mov_b32 s{sM}, 0x88888888
    s_mov_b32 s{sM+1}, 0x88888888
    v_mov_b32 v{vT2}, {1 << 22}
    s_lshl_b32 s3, s{sPiK}, 6
    s_add_u32 s3, s3, {WS_CELLS}
    s_add_u32 s{sT}, s3, {128*CELLROW}
    s_waitcnt vmcnt(0)
    v_readfirstlane_b32 s{sNonce}, v{vNon}
    s_nop 3
    s_and_b32 s{sTag}, s{sNonce}, {(0xffffffff << TAGSH) & 0xffffffff}
    s_add_u32 s{sTag}, s{sTag}, {1 << TAGSH}
    s_waitcnt lgkmcnt(0)
    v_cmp_lt_u32 vcc, 16, v{vDst}
    v_cmp_lt_u32 s[{sM+2}:{sM+3}], 16, v{vDst+1}
    """)
    for i in range(3): a(f"v_or_b32 v{vNeg+i}, s{sTag}, v{vNeg+i}")
    a(f"""
    s_and_b64 vcc, vcc, s[{sM}:{sM+1}]
    s_and_b64 s[{sM+2}:{sM+3}], s[{sM+2}:{sM+3}], s[{sM}:{sM+1}]
    v_or_b32 v{vNeg+3}, s{sTag}, v{vNeg+3}
    v_cndmask_b32_e64 v{vT1}, 0, v{vT2}, vcc
    v_or_b32 v{vNeg+3}, v{vT1}, v{vNeg+3}
    buffer_store_dwordx4 {vr(vNeg,4)}, v{vGo}, s[{sWS}:{sWS+3}], s3 offen {opt.cst}
    v_cndmask_b32_e64 v{vT1}, 0, v{vT2}, s[{sM+2}:{sM+3}]
    v_or_b32 v{vNeg+7}, v{vT1}, v{vNeg+7}
    """)
    for i in range(4, 8): a(f"v_or_b32 v{vNeg+i}, s{sTag}, v{vNeg+i}")
    a(f"""
    buffer_store_dwordx4 {vr(vNeg+4,4)}, v{vGo}, s[{sWS}:{sWS+3}], s{sT} offen {opt.cst}
    s_cmp_eq_u32 s{sWave}, {99 if "nox" in opt.exp else 6}
    s_cbranch_scc0 K1_NOX
    v_lshlrev_b32 v{vT1}, 4, v{vLane}
    v_add_u32 v{vT1}, {ST2}, v{vT1}
    ds_read_b128 {vr(vDst,4)}, v{vT1}
    v_lshlrev_b32 v{vT1}, 2, v{vLane}
    v_add_u32 v{vT1}, {H2}, v{vT1}
    ds_read_b32 v{vT1}, v{vT1}
    v_lshlrev_b32 v{vT2}, 12, v{vLane}
    s_lshl_b32 s3, s{sPiK}, 4
    s_add_u32 s3, s3, {WS_EXTRA}
    v_mov_b32 v{vT3}, {1 << 22}
    s_waitcnt lgkmcnt(0)
    v_cmp_lt_u32 vcc, 0, v{vT1}
    s_cbranch_vccz K1_NOX
    s_mov_b64 exec, vcc
    v_cmp_lt_u32 vcc, 4, v{vT1}
    """)
    for i in range(4): a(f"v_or_b32 v{vDst+i}, s{sTag}, v{vDst+i}")
    a(f"""
    v_cndmask_b32_e64 v{vT3}, 0, v{vT3}, vcc
    v_or_b32 v{vDst+3}, v{vT3}, v{vDst+3}
    buffer_store_dwordx4 {vr(vDst,4)}, v{vT2}, s[{sWS}:{sWS+3}], s3 offen {opt.cst}
    s_mov_b64 exec, -1
    K1_NOX:
    s_cmp_eq_u32 s{sWave}, 7
    s_cbranch_scc0 K1_DRAIN
    v_mov_b32 v{vT3}, {OVC}
    ds_read_b32 v{vRank}, v{vT3}
    s_waitcnt lgkmcnt(0)
    v_readfirstlane_b32 s{sCnt}, v{vRank}
    s_nop 3
    s_cmp_eq_u32 s{sCnt}, 0
    s_cbranch_scc1 K1_DRAIN
    s_min_u32 s{sCnt}, s{sCnt}, {CH}
    s_lshl_b32 s{sT}, s{sPiK}, 4
    s_add_u32 s{sT}, s{sT}, {WS_OVH}
    v_mov_b32 v{vT2}, s{sT}
    v_or_b32 v{vDst}, s{sTag}, v{vRank}
    v_mov_b32 v{vDst+1}, v{vDst}
    v_mov_b32 v{vDst+2}, v{vDst}
    v_mov_b32 v{vDst+3}, v{vDst}
    s_mov_b64 exec, 1
    buffer_store_dwordx4 {vr(vDst,4)}, v{vT2}, s[{sWS}:{sWS+3}], 0 offen sc1
    s_mov_b64 exec, -1
    s_mul_i32 s3, s{sPiK}, {OVF_STRIDE}
    s_add_u32 s3, s3, {WS_OVF}
    v_mov_b32 v{vT0}, v{vLane}
    K1_OVL:
    v_cmp_gt_u32 vcc, s{sCnt}, v{vT0}
    s_and_b64 exec, exec, vcc
    s_cbranch_execz K1_OVD
    v_lshlrev_b32 v{vT1}, 2, v{vT0}
    ds_read_b32 v{vDst}, v{vT1} offset:{OVL}
    ds_read_b32 v{vDst+1}, v{vT1} offset:{OVB}
    v_lshlrev_b32 v{vT1}, 3, v{vT0}
    s_waitcnt lgkmcnt(0)
    v_or_b32 v{vDst}, s{sTag}, v{vDst}
    v_or_b32 v{vDst+1}, s{sTag}, v{vDst+1}
    buffer_store_dwordx2 {vr(vDst,2)}, v{vT1}, s[{sWS}:{sWS+3}], s3 offen sc1
    v_add_u32 v{vT0}, 64, v{vT0}
    s_branch K1_OVL
    K1_OVD:
    s_mov_b64 exec, -1
    K1_DRAIN:
    {"s_waitcnt vmcnt(0)" if opt.drain == 1 else ""}
    s_branch K1_COPIED
    K1_NOCOPY:
    s_waitcnt vmcnt(0)
    v_readfirstlane_b32 s{sNonce}, v{vNon}
    s_nop 3
    s_and_b32 s{sTag}, s{sNonce}, {(0xffffffff << TAGSH) & 0xffffffff}
    s_add_u32 s{sTag}, s{sTag}, {1 << TAGSH}
    K1_COPIED:
    s_barrier
    """)
    st.stamp(a)
    st.stamp(a)
    a(f"""
    s_cmp_ge_u32 s{sWave}, 8
    s_cbranch_scc1 K2_NOQ
    """)
    vA8, vQAcc = vXB, vAcc
    Bq = [vE, vE+4, vQ, vQ+4]
    def a_reads(ks):
        a(f"ds_read_b64_tr_b16 {vr(vA8+4*ks,2)}, v{vWa} offset:{ks*4096}")
        a(f"ds_read_b64_tr_b16 {vr(vA8+4*ks+2,2)}, v{vWa} offset:{ks*4096 + 1024}")
    def b_read(ks):
        a(f"v_xor_b32 v{vT2}, {32*ks}, v{vBa}")
        a(f"ds_read_b128 {vr(Bq[ks & 3],4)}, v{vT2} offset:{XT}")
    def mfma(ks):
        c = "0" if ks == 0 else vr(vQAcc,16)
        a(f"v_mfma_f32_32x32x16_bf16 {vr(vQAcc,16)}, {vr(vA8+4*ks,4)}, {vr(Bq[ks & 3],4)}, {c}")
    for ks in range(4):
        a_reads(ks); b_read(ks)
    for ks in range(4):
        a("s_waitcnt lgkmcnt(9)")
        mfma(ks)
        a_reads(ks+4); b_read(ks+4)
    for ks in range(4, 8):
        a(f"s_waitcnt lgkmcnt({3*(7-ks)})")
        mfma(ks)
    a(f"""
    v_cmp_gt_u32 vcc, 52, v{vRow}
    v_xor_b32 v{vT2}, 16, v{vQst}
    s_nop 7
    s_nop 2
    """)
    for i in range(8):
        a(f"v_cvt_pk_bf16_f32 v{vA8+i}, v{vQAcc+2*i}, v{vQAcc+2*i+1}")
    a(f"""
    s_mov_b64 exec, vcc
    ds_write_b128 v{vQst}, {vr(vA8,4)} offset:{QS}
    ds_write_b128 v{vT2}, {vr(vA8+4,4)} offset:{QS}
    s_mov_b64 exec, -1
    """)
    a(f"""
    s_lshl_b32 s3, s{sWave}, 12
    s_add_u32 s{sT}, s3, {WV}
    """)
    for i in range(4):
        a(f"""
        s_mov_b32 m0, s{sT}
        s_add_u32 s{sT}, s{sT}, 1024
        buffer_load_dwordx4 v{vWl}, s[{sWV}:{sWV+3}], s3 offen lds
        s_add_u32 s3, s3, 1024
        """)
    if opt.prefetch == 4:
        a(f"""
        s_lshr_b32 s3, s2, 3
        s_mul_i32 s3, s3, 100096
        s_mul_i32 s{sT}, s{sWave}, 12544
        s_add_u32 s3, s3, s{sT}
        v_lshlrev_b32 v{vT0}, 7, v{vLane}
        {"s_sleep %d" % opt.pfsleep if opt.pfsleep else ""}
        buffer_load_dword v{vQB}, v{vT0}, s[{sX}:{sX+3}], s3 offen
        """)
        if opt.pfn > 1:
            a(f"""
            s_add_u32 s3, s3, 8192
            s_mov_b32 exec_lo, -1
            s_mov_b32 exec_hi, 3
            buffer_load_dword v{vQB}, v{vT0}, s[{sX}:{sX+3}], s3 offen
            s_mov_b64 exec, -1
            """)
    a("s_branch K2_HDRD")
    vW, vXw, vSoM, vSoX, vN4M, vN4X, vRkM, vRkX, vPos, vCn = 56, 64, 68, 76, 80, 88, 92, 100, 104, 112
    def mask(i): return (sM + 2*i) if i < 7 else 0
    a(f"""
    K2_NOQ:
    {"s_setprio %d" % opt.pprio if opt.pprio else ""}
    """)
    st.stamp(a)
    a(f"""
    s_sub_u32 s{sRem}, s{sWave}, 8
    s_lshl_b32 s3, s{sRem}, 11
    v_lshlrev_b32 v{vT0}, 4, v{vLane}
    v_add_u32 v{vT0}, s3, v{vT0}
    v_xor_b32 v{vT2}, 16, v{vT0}
    s_lshl_b32 s3, s{sBeta}, 14
    s_add_u32 s3, s3, {WS_CELLS}
    s_mov_b32 s{sT}, {1 << 17}
    s_mov_b32 s{sQ}, {1 << TAGSH}
    s_mov_b32 exec_lo, 0
    s_mov_b32 exec_hi, 0x80000000
    K1_CAN:
    buffer_load_dword v{vT1}, v{vT0}, s[{sWS}:{sWS+3}], s3 offen offset:1036 sc1
    s_waitcnt vmcnt(0)
    v_xor_b32 v{vT1}, s{sTag}, v{vT1}
    v_cmp_le_u32 vcc, s{sQ}, v{vT1}
    s_cbranch_vccz K1_CAND
    s_sleep {opt.sleep}
    s_sub_u32 s{sT}, s{sT}, 1
    s_cmp_lg_u32 s{sT}, 0
    s_cbranch_scc1 K1_CAN
    K1_CAND:
    s_mov_b64 exec, -1
    s_mov_b32 s{sT}, {1 << 17}
    K1_TP:
    buffer_load_dwordx4 {vr(vW,4)}, v{vT0}, s[{sWS}:{sWS+3}], s3 offen sc1
    buffer_load_dwordx4 {vr(vW+4,4)}, v{vT2}, s[{sWS}:{sWS+3}], s3 offen offset:1024 sc1
    s_waitcnt vmcnt(0)
    """)
    for i in range(8): a(f"v_xor_b32 v{vW+i}, s{sTag}, v{vW+i}")
    a(f"""
    v_or3_b32 v{vT1}, v{vW}, v{vW+1}, v{vW+2}
    v_or3_b32 v{vT1}, v{vT1}, v{vW+3}, v{vW+4}
    v_or3_b32 v{vT1}, v{vT1}, v{vW+5}, v{vW+6}
    v_or_b32 v{vT1}, v{vT1}, v{vW+7}
    v_cmp_le_u32 vcc, s{sQ}, v{vT1}
    s_and_b64 exec, exec, vcc
    s_cbranch_execz K1_TPD
    s_sleep {opt.sleep}
    s_sub_u32 s{sT}, s{sT}, 1
    s_cmp_lg_u32 s{sT}, 0
    s_cbranch_scc1 K1_TP
    K1_TPD:
    s_mov_b64 exec, -1
    v_or_b32 v{vT1}, v{vW+3}, v{vW+7}
    v_and_b32 v{vT1}, {1 << 22}, v{vT1}
    v_cmp_ne_u32 vcc, 0, v{vT1}
    """)
    for i in range(4): a(f"v_mov_b32 v{vXw+i}, {EMPTY}")
    a(f"""
    s_cbranch_vccz K1_NOXP
    s_mov_b64 s[{sM}:{sM+1}], vcc
    v_and_b32 v{vW+3}, {0xffffffff ^ (1 << 22)}, v{vW+3}
    v_and_b32 v{vW+7}, {0xffffffff ^ (1 << 22)}, v{vW+7}
    v_lshrrev_b32 v{vT0}, 2, v{vLane}
    v_and_b32 v{vT1}, 1, v{vLane}
    v_xor_b32 v{vT1}, 1, v{vT1}
    v_lshl_add_u32 v{vT0}, v{vT1}, 4, v{vT0}
    s_lshl_b32 s3, s{sRem}, 5
    v_add_u32 v{vPos+4}, s3, v{vT0}
    v_lshlrev_b32 v{vT0}, 4, v{vPos+4}
    s_and_b32 s3, s{sBeta}, 7
    s_lshr_b32 s{sCnt}, s{sBeta}, 5
    s_lshl_b32 s{sCnt}, s{sCnt}, 3
    s_add_u32 s3, s3, s{sCnt}
    s_lshl_b32 s3, s3, 12
    s_add_u32 s3, s3, {WS_EXTRA}
    s_mov_b32 s{sT}, {1 << 17}
    s_mov_b64 exec, s[{sM}:{sM+1}]
    K1_XP:
    buffer_load_dwordx4 {vr(vXw,4)}, v{vT0}, s[{sWS}:{sWS+3}], s3 offen sc1
    s_waitcnt vmcnt(0)
    """)
    for i in range(4): a(f"v_xor_b32 v{vXw+i}, s{sTag}, v{vXw+i}")
    a(f"""
    v_or3_b32 v{vT1}, v{vXw}, v{vXw+1}, v{vXw+2}
    v_or_b32 v{vT1}, v{vT1}, v{vXw+3}
    v_cmp_le_u32 vcc, s{sQ}, v{vT1}
    s_and_b64 exec, exec, vcc
    s_cbranch_execz K1_XPD
    s_sleep {opt.sleep}
    s_sub_u32 s{sT}, s{sT}, 1
    s_cmp_lg_u32 s{sT}, 0
    s_cbranch_scc1 K1_XP
    K1_XPD:
    s_mov_b64 exec, -1
    v_and_b32 v{vT1}, {1 << 22}, v{vXw+3}
    v_cmp_ne_u32 vcc, 0, v{vT1}
    s_cbranch_vccz K1_NOXP
    s_mov_b64 exec, vcc
    s_mov_b32 s3, {WS_OVH}
    s_mov_b32 s{sT}, {1 << 17}
    K1_HP:
    buffer_load_dwordx4 {vr(vPos,4)}, v{vT0}, s[{sWS}:{sWS+3}], s3 offen sc1
    s_waitcnt vmcnt(0)
    v_xor_b32 v{vT2}, s{sTag}, v{vPos}
    v_xor_b32 v{vPos+1}, v{vPos}, v{vPos+1}
    v_xor_b32 v{vPos+2}, v{vPos}, v{vPos+2}
    v_xor_b32 v{vPos+3}, v{vPos}, v{vPos+3}
    v_or3_b32 v{vPos+1}, v{vPos+1}, v{vPos+2}, v{vPos+3}
    v_cmp_ne_u32 s[{sM}:{sM+1}], 0, v{vPos+1}
    v_cmp_le_u32 vcc, s{sQ}, v{vT2}
    s_or_b64 vcc, vcc, s[{sM}:{sM+1}]
    s_cbranch_vccz K1_HPD
    s_sleep 2
    s_sub_u32 s{sT}, s{sT}, 1
    s_cmp_lg_u32 s{sT}, 0
    s_cbranch_scc1 K1_HP
    K1_HPD:
    v_min_u32 v{vT2}, {CH}, v{vT2}
    v_lshlrev_b32 v{vT1}, 2, v{vPos+4}
    v_add_u32 v{vT1}, {MF}, v{vT1}
    ds_write_b32 v{vT1}, v{vT2}
    v_mov_b32 v{vT1}, {MAXC}
    ds_max_u32 v{vT1}, v{vT2}
    s_mov_b64 exec, -1
    K1_NOXP:
    v_mov_b32 v{vT3}, 1
    """)
    st.stamp(a)
    a("K2_DECODE:")
    for i in range(8):
        m = mask(i)
        a(f"""
        v_lshlrev_b32 v{vN4M+i}, 2, v{vW+i}
        v_and_b32 v{vN4M+i}, 0xfc, v{vN4M+i}
        v_cmp_gt_u32 s[{m}:{m+1}], s{s196}, v{vN4M+i}
        v_and_b32 v{vSoM+i}, 0x003fff00, v{vW+i}
        """)
        if i >= 1:
            mp = mask(i-1)
            a(f"""
            s_mov_b64 exec, s[{mp}:{mp+1}]
            ds_add_rtn_u32 v{vRkM+i-1}, v{vN4M+i-1}, v{vT3} offset:{HIST}
            s_mov_b64 exec, -1
            """)
    a(f"""
    s_mov_b64 exec, s[{mask(7)}:{mask(7)+1}]
    ds_add_rtn_u32 v{vRkM+7}, v{vN4M+7}, v{vT3} offset:{HIST}
    s_mov_b64 exec, -1
    s_mov_b64 s[{sM+14}:{sM+15}], 0
    s_cmp_eq_u32 s{sR}, 0
    s_cbranch_scc0 K2_HDRD
    v_and_b32 v{vT0}, v{vXw}, v{vXw+1}
    v_and_b32 v{vT1}, v{vXw+2}, v{vXw+3}
    v_and_b32 v{vT0}, v{vT0}, v{vT1}
    v_and_b32 v{vT0}, 63, v{vT0}
    v_cmp_ne_u32 vcc, 63, v{vT0}
    s_cbranch_vccz K2_HDRD
    s_bfe_u32 s{sT}, s{sBeta}, 0x20003
    """)
    for i in range(4):
        w, m = vXw + i, sM2 + 2*i
        a(f"""
        v_bfe_u32 v{vT0}, v{w}, 6, 2
        v_cmp_eq_u32 vcc, s{sT}, v{vT0}
        v_mov_b32 v{vT1}, {EMPTY}
        v_and_b32 v{vT2}, 0x003fff3f, v{w}
        s_nop 0
        v_cndmask_b32_e64 v{w}, v{vT1}, v{vT2}, vcc
        v_lshlrev_b32 v{vN4X+i}, 2, v{w}
        v_and_b32 v{vN4X+i}, 0xfc, v{vN4X+i}
        v_cmp_gt_u32 s[{m}:{m+1}], s{s196}, v{vN4X+i}
        v_and_b32 v{vSoX+i}, 0x003fff00, v{w}
        """)
    a(f"""
    s_or_b64 s[{sM+14}:{sM+15}], s[{sM2}:{sM2+1}], s[{sM2+2}:{sM2+3}]
    s_or_b64 s[{sM+14}:{sM+15}], s[{sM+14}:{sM+15}], s[{sM2+4}:{sM2+5}]
    s_or_b64 s[{sM+14}:{sM+15}], s[{sM+14}:{sM+15}], s[{sM2+6}:{sM2+7}]
    s_cbranch_scc0 K2_HDRD
    """)
    for i in range(4):
        m = sM2 + 2*i
        a(f"""
        s_mov_b64 exec, s[{m}:{m+1}]
        ds_add_rtn_u32 v{vRkX+i}, v{vN4X+i}, v{vT3} offset:{HIST}
        """)
    a(f"""
    s_mov_b64 exec, -1
    K2_HDRD:
    s_waitcnt lgkmcnt(0)
    s_barrier
    """)
    st.stamp(a)
    if opt.prefetch == 5:
        a(f"""
        s_cmp_ge_u32 s{sWave}, 8
        s_cbranch_scc1 K2_NOPF5
        s_waitcnt vmcnt(0)
        s_sub_u32 s3, s{sWave}, {8 - opt.pfn}
        s_cmp_ge_u32 s3, {opt.pfn}
        s_cbranch_scc1 K2_NOPF5
        s_lshl_b32 s{sT}, s3, {opt.pfsh + 6}
        s_lshr_b32 s3, s2, 3
        s_mul_i32 s3, s3, 100096
        s_add_u32 s3, s3, s{sT}
        v_lshlrev_b32 v{vT0}, {opt.pfsh}, v{vLane}
        buffer_load_dword v{vQB}, v{vT0}, s[{sX}:{sX+3}], s3 offen
        K2_NOPF5:
        """)
    a(f"""
    v_lshlrev_b32 v{vT2}, 2, v{vLane}
    ds_read_b32 v{vCn}, v{vT2} offset:{HIST}
    s_lshl_b32 s{sT}, s{sWave}, 2
    s_waitcnt lgkmcnt(0)
    v_add_u32 v{vPc}, 3, v{vCn}
    v_and_b32 v{vPc}, -4, v{vPc}
    v_mov_b32 v{vStart}, v{vPc}
    v_cmp_lt_u32 vcc, s{sT}, v{vPc}
    s_nop 0
    """)
    steps = ["row_shr:1 row_mask:0xf bank_mask:0xf bound_ctrl:1", "row_shr:2 row_mask:0xf bank_mask:0xf bound_ctrl:1",
             "row_shr:4 row_mask:0xf bank_mask:0xf bound_ctrl:1", "row_shr:8 row_mask:0xf bank_mask:0xf bound_ctrl:1",
             "row_bcast:15 row_mask:0xa bank_mask:0xf", "row_bcast:31 row_mask:0xc bank_mask:0xf"]
    for i, stp in enumerate(steps):
        a(f"v_add_u32_dpp v{vStart}, v{vStart}, v{vStart} {stp}")
        a("s_nop 1" if i < 5 else "s_nop 0")
    a(f"""
    v_readlane_b32 s{sCnt}, v{vStart}, 63
    v_sub_u32 v{vStart}, v{vStart}, v{vPc}
    s_cmp_lt_u32 s{sWave}, 8
    s_cbranch_scc1 K2_NOBP
    """)
    for i in range(8):
        a(f"ds_bpermute_b32 v{vPos+i}, v{vN4M+i}, v{vStart}")
    a(f"""
    K2_NOBP:
    v_add_u32 v{vT0}, s{sT}, v{vStart}
    s_mov_b64 exec, vcc
    ds_write_b32 v{vT0}, v{vUA} offset:{UNODE}
    s_mov_b64 exec, -1
    v_cmp_lt_u32 vcc, 64, v{vPc}
    s_cbranch_vccz K2_UND
    K2_UN:
    s_add_u32 s{sT}, s{sT}, 64
    v_cmp_lt_u32 vcc, s{sT}, v{vPc}
    s_cbranch_vccz K2_UND
    v_add_u32 v{vT0}, s{sT}, v{vStart}
    s_mov_b64 exec, vcc
    ds_write_b32 v{vT0}, v{vUA} offset:{UNODE}
    s_mov_b64 exec, -1
    s_branch K2_UN
    K2_UND:
    s_cmp_gt_u32 s{sWave}, 4
    s_cbranch_scc1 K2_NOPAD
    v_mov_b32 v{vT2}, {OOB}
    s_cmp_gt_u32 s{sWave}, 2
    s_cbranch_scc1 K2_TAILPAD
    v_sub_u32 v{vT1}, v{vPc}, v{vCn}
    v_add_u32 v{vT0}, v{vStart}, v{vCn}
    v_cmp_lt_u32 vcc, s{sWave}, v{vT1}
    v_add_u32 v{vT0}, s{sWave}, v{vT0}
    v_lshlrev_b32 v{vT0}, 2, v{vT0}
    s_mov_b64 exec, vcc
    ds_write_b32 v{vT0}, v{vT2} offset:{LIST}
    s_mov_b64 exec, -1
    s_branch K2_NOPAD
    K2_TAILPAD:
    v_lshlrev_b32 v{vT1}, 2, v{vLane}
    s_cmp_eq_u32 s{sWave}, 3
    s_cbranch_scc0 K2_TAILU
    s_lshl_b32 s{sT}, s{sCnt}, 2
    v_add_u32 v{vT0}, s{sT}, v{vT1}
    s_mov_b64 exec, 0xfffffff
    ds_write_b32 v{vT0}, v{vT2} offset:{LIST}
    s_mov_b64 exec, -1
    s_branch K2_NOPAD
    K2_TAILU:
    v_add_u32 v{vT0}, s{sCnt}, v{vT1}
    v_mov_b32 v{vT2}, {DUMMY*256 + 16*((DUMMY & 3) | (12*((DUMMY >> 2) & 1)))}
    s_mov_b64 exec, 0x7f
    ds_write_b32 v{vT0}, v{vT2} offset:{UNODE}
    s_mov_b64 exec, -1
    K2_NOPAD:
    s_add_u32 s3, s{sCnt}, 31
    s_lshr_b32 s3, s3, 5
    s_lshr_b32 s{sQ}, s3, 4
    s_and_b32 s{sRem}, s3, 15
    s_cmp_lt_u32 s{sWave}, s{sRem}
    s_cselect_b32 s{sNH}, 1, 0
    s_add_u32 s{sHB}, s{sQ}, s{sNH}
    s_min_u32 s3, s{sRem}, s{sWave}
    s_mul_i32 s{sT}, s{sQ}, s{sWave}
    s_add_u32 s{sT}, s{sT}, s3
    v_lshrrev_b32 v{vT0}, 4, v{vLane}
    s_lshl_b32 s3, s{sHB}, 1
    v_mul_u32_u24 v{vT0}, s3, v{vT0}
    s_lshl_b32 s3, s{sT}, 3
    v_add_u32 v{vT0}, s3, v{vT0}
    v_lshlrev_b32 v{vLA}, 4, v{vT0}
    v_lshlrev_b32 v{vUA}, 2, v{vT0}
    s_cmp_lt_u32 s{sWave}, 8
    s_cbranch_scc1 K2_SC_Q
    s_waitcnt lgkmcnt(0)
    """)
    for i in range(8):
        a(f"v_add_lshl_u32 v{vPos+i}, v{vPos+i}, v{vRkM+i}, 2")
    for i in range(8):
        m = mask(i)
        a(f"s_mov_b64 exec, s[{m}:{m+1}]")
        a(f"ds_write_b32 v{vPos+i}, v{vSoM+i} offset:{LIST}")
    a(f"""
    s_mov_b64 exec, -1
    s_cmp_eq_u64 s[{sM+14}:{sM+15}], 0
    s_cbranch_scc1 K2_SORT_DONE
    """)
    for i in range(4):
        a(f"ds_bpermute_b32 v{vPos+i}, v{vN4X+i}, v{vStart}")
    a("s_waitcnt lgkmcnt(0)")
    for i in range(4):
        a(f"""
        v_add_lshl_u32 v{vPos+i}, v{vPos+i}, v{vRkX+i}, 2
        s_mov_b64 exec, s[{sM2+2*i}:{sM2+2*i+1}]
        ds_write_b32 v{vPos+i}, v{vSoX+i} offset:{LIST}
        s_mov_b64 exec, -1
        """)
    a(f"""
    s_branch K2_SORT_DONE
    K2_SC_Q:
    {'s_waitcnt vmcnt(%d)' % (opt.pfn if opt.prefetch == 4 else 0) if opt.prefetch != 5 else ''}
    K2_SORT_DONE:
    """)
    st.stamp(a)
    a(f"""
    s_waitcnt lgkmcnt(0)
    s_barrier
    """)
    st.stamp(a)
    if "cyc" in opt.exp: st.stamp(a, True)
    if opt.prio in (1, 3, 4): a("s_setprio 3")
    if opt.prio == 2:
        a(f"""
        s_cmp_ge_u32 s{sWave}, 4
        s_cbranch_scc0 K2_SP
        s_setprio 1
        s_cmp_ge_u32 s{sWave}, 8
        s_cbranch_scc0 K2_SP
        s_setprio 2
        s_cmp_ge_u32 s{sWave}, 12
        s_cbranch_scc0 K2_SP
        s_setprio 3
        K2_SP:
        """)
    a(f"""
    s_cmp_eq_u32 s{sHB}, 0
    s_cbranch_scc1 K2_NOMAIN
    ds_read_b128 {vr(vE,4)}, v{vLA} offset:{LIST}
    ds_read_b128 {vr(vE+4,4)}, v{vLA} offset:{LIST+16}
    ds_read_b64 {vr(vQC,2)}, v{vUA} offset:{UNODE}
    """)
    if opt.style == "roll3":
        a(f"""
        v_and_b32 v{vT0}, 15, v{vLane}
        v_and_b32 v{vT1}, 7, v{vT0}
        v_lshl_add_u32 v{vLA}, v{vT1}, 2, v{vLA}
        v_add_u32 v{vLA}, {LIST + 32}, v{vLA}
        v_and_b32 v{vT1}, 1, v{vT0}
        v_lshl_add_u32 v{vUA}, v{vT1}, 2, v{vUA}
        v_add_u32 v{vUA}, {UNODE + 8}, v{vUA}
        v_lshrrev_b32 v{vT1}, 1, v{vT0}
        v_cmp_eq_u32 vcc, 4, v{vT1}
        v_mov_b32 v{vT2}, 32
        s_nop 0
        v_cndmask_b32_e64 v{vLA}, v{vLA}, v{vUA}, vcc
        v_cndmask_b32_e64 v{vUA}, v{vT2}, 8, vcc
        """)
    for i in range(8):
        a(f"v_mov_b32 v{vAcc+i}, 0")
    a("s_waitcnt lgkmcnt(1)")
    for u in range(8):
        a(f"v_add_u32 v{vE+u}, v{vE+u}, v{vC16}")
        a(f"buffer_load_dwordx4 {vr(vXA+4*u,4)}, v{vE+u}, s[{sX}:{sX+3}], 0 offen")
        if u == 0:
            a(f"""
            s_waitcnt lgkmcnt(0)
            v_xor_b32 v{vT0}, v{vQC}, v{vC16}
            v_xor_b32 v{vT1}, v{vQC+1}, v{vC16}
            ds_read_b128 {vr(vQ,4)}, v{vT0} offset:{QS}
            ds_read_b128 {vr(vQ+4,4)}, v{vT1} offset:{QS}
            v_mov_b32 v{vPrev}, v{vQC}
            """)
    if "bstamp" in opt.exp: st.stamp(a)
    wv_id = [0]
    def wv_dma():
        i = wv_id[0]; wv_id[0] += 1
        a(f"""
        s_cmp_eq_u32 s{sR}, 0
        s_cbranch_scc0 K2_NOWV{i}
        s_lshl_b32 s3, s{sWave}, 11
        s_add_u32 s{sT}, s3, {WV}
        s_mov_b32 m0, s{sT}
        s_add_u32 s{sT}, s{sT}, 1024
        buffer_load_dwordx4 v{vWl}, s[{sWV}:{sWV+3}], s3 offen lds
        s_mov_b32 m0, s{sT}
        s_add_u32 s3, s3, 1024
        buffer_load_dwordx4 v{vWl}, s[{sWV}:{sWV+3}], s3 offen lds
        K2_NOWV{i}:
        """)
    flush_id = [0]
    def flush(prev, masked):
        fid = flush_id[0]; flush_id[0] += 1
        t = ""
        if masked is not None:
            t += f"""
            v_cmp_ne_u32 vcc, v{masked}, v{prev}
            s_cbranch_vccz K2_FL{fid}
            s_mov_b64 exec, vcc
            """
        t += f"""
        v_and_b32 v{vT0}, 0xffffff00, v{prev}
        v_lshl_add_u32 v{vT0}, v{vT0}, 1, v{vPB}
        ds_write_b128 v{vT0}, {vr(vAcc,4)}
        ds_write_b128 v{vT0}, {vr(vAcc+4,4)} offset:256
        """
        if masked is not None:
            if opt.mov64:
                for i in range(0, 8, 2):
                    t += f"v_mov_b64 {vr(vAcc+i,2)}, 0\n"
            else:
                for i in range(8):
                    t += f"v_mov_b32 v{vAcc+i}, 0\n"
            t += f"""
            s_mov_b64 exec, -1
            {".p2align 3" if opt.align >= 1 else ""}
            K2_FL{fid}:
            """
        return t
    def dots(X, waits):
        for half in range(2):
            a(waits[half])
            if opt.align >= 2: a(".p2align 3")
            if "nodots" in opt.exp: continue
            for r in range(4):
                for u in range(4*half, 4*half+4):
                    if r == 0:
                        a(f"v_dot2_f32_bf16 v{vP+u}, v{X+4*u}, v{vQ+4*half}, 0")
                    else:
                        a(f"v_dot2c_f32_bf16 v{vP+u}, v{X+4*u+r}, v{vQ+4*half+r}")
    def chain(al):
        c = []
        for j in range(4):
            c.append(f"v_add_f32_dpp v{vP+j}, v{vP+j}, v{vP+j} row_mirror row_mask:0xf bank_mask:0x3")
        for j in range(4):
            c.append(f"v_add_f32_dpp v{vP+j}, v{vP+j+4}, v{vP+j+4} row_mirror row_mask:0xf bank_mask:0xc")
        for j in range(2):
            c.append(f"v_add_f32_dpp v{vP+j}, v{vP+j}, v{vP+j} row_half_mirror row_mask:0xf bank_mask:0x5")
        for j in range(2):
            c.append(f"v_add_f32_dpp v{vP+j}, v{vP+j+2}, v{vP+j+2} row_half_mirror row_mask:0xf bank_mask:0xa")
        c.append(f"v_add_f32_dpp v{vP+2}, v{vP}, v{vP} quad_perm:[1,0,3,2] row_mask:0xf bank_mask:0xf")
        c.append(f"v_add_f32_dpp v{vP+3}, v{vP+1}, v{vP+1} quad_perm:[1,0,3,2] row_mask:0xf bank_mask:0xf")
        c.append(f"v_cndmask_b32_e64 v{vP}, v{vP+2}, v{vP+3}, s[{sOdd}:{sOdd+1}]")
        c.append(f"v_add_f32_dpp v{vP}, v{vP}, v{vP} quad_perm:[2,3,0,1] row_mask:0xf bank_mask:0xf")
        if opt.mimic:
            c += [f"v_cvt_pk_bf16_f32 v{vP}, v{vP}, v{vP}", f"v_and_b32 v{vP}, 0xffff0000, v{vP}",
                  f"v_mul_f32 v{vP}, 0x3db504f3, v{vP}", f"v_cvt_pk_bf16_f32 v{vP}, v{vP}, v{vP}",
                  f"v_and_b32 v{vP}, 0xffff0000, v{vP}", f"v_mul_f32 v{vP}, 0xbfb8aa3b, v{vP}"]
        else:
            c.append(f"v_mul_f32 v{vP}, 0xbe0293ee, v{vP}")
        c += [f"v_exp_f32 v{vP}, v{vP}", f"v_add_f32 v{vP}, 1.0, v{vP}", f"v_rcp_f32 v{vP}, v{vP}",
              f"v_cvt_pk_bf16_f32 v{al}, v{vP}, 0", f"v_cvt_pk_bf16_f32 v{al+1}, 0, v{vP}"]
        return c
    def chain_alone(al):
        c = chain(al)
        gaps = {9: 1, 11: 1, 14: 2, 17 + (5 if opt.mimic else 0): 1, 19 + (5 if opt.mimic else 0): 1}
        for i, ins in enumerate(c):
            a(ins)
            if i in gaps: a(f"s_nop {gaps[i]-1}")
    def agg_stream(X, al, loads, Xdst, qp=None):
        out = []
        qp = vQP if qp is None else qp
        for half in range(2):
            if half == 0:
                out.append(('x', flush(vPrev, qp)))
            else:
                out.append(('x', "s_nop 1\n" + flush(qp, qp+1)))
            for u in range(4*half, 4*half+4):
                k = 4*(u >> 1) + (u & 1)
                for r in range(4):
                    if "noagg" in opt.exp:
                        out.append(('v', "s_nop 0")); out.append(('v', "s_nop 0")); continue
                    out.append(('v', f"v_dot2c_f32_bf16_dpp v{vAcc+2*r}, v{al}, v{X+4*u+r} row_newbcast:{k} row_mask:0xf bank_mask:0xf"))
                    out.append(('v', f"v_dot2c_f32_bf16_dpp v{vAcc+2*r+1}, v{al+1}, v{X+4*u+r} row_newbcast:{k} row_mask:0xf bank_mask:0xf"))
                if loads and "noload" not in opt.exp:
                    out.append(('x', f"buffer_load_dwordx4 {vr(Xdst+4*u,4)}, v{vE+u}, s[{sX}:{sX+3}], 0 offen"))
        return out
    def next_prep():
        a("s_waitcnt lgkmcnt(0)")
        a(f"v_xor_b32 v{vT0}, v{vQN}, v{vC16}")
        a(f"v_xor_b32 v{vT1}, v{vQN+1}, v{vC16}")
    def rotate(nxt):
        a(f"v_mov_b32 v{vQP}, v{vQC}")
        a(f"v_mov_b32 v{vQP+1}, v{vQC+1}")
        if nxt:
            a(f"v_mov_b32 v{vQC}, v{vQN}")
            a(f"v_mov_b32 v{vQC+1}, v{vQN+1}")
            a(f"v_add_u32 v{vLA}, 32, v{vLA}")
            a(f"v_add_u32 v{vUA}, 8, v{vUA}")
    def mid(cur, prev, al_cur, al_prev, nxt):
        a("s_waitcnt lgkmcnt(0)")
        if nxt:
            a(f"""
            ds_read_b128 {vr(vE,4)}, v{vLA} offset:{LIST+32}
            ds_read_b128 {vr(vE+4,4)}, v{vLA} offset:{LIST+48}
            ds_read_b64 {vr(vQN,2)}, v{vUA} offset:{UNODE+8}
            """)
        dots(cur, ("s_waitcnt vmcnt(4)", "s_waitcnt vmcnt(0)"))
        if nxt:
            next_prep()
            for u in range(8):
                a(f"v_add_u32 v{vE+u}, v{vE+u}, v{vC16}")
            a(f"ds_read_b128 {vr(vQ,4)}, v{vT0}")
            a(f"ds_read_b128 {vr(vQ+4,4)}, v{vT1}")
        else:
            a("s_nop 2")
        c = chain(al_cur)
        s_ = agg_stream(prev, al_prev, nxt, prev)
        nv = sum(1 for k, _ in s_ if k == 'v')
        ci, vi = 0, 0
        for k, t in s_:
            a(t)
            if k == 'v':
                vi += 1
                if ci < len(c) and vi >= (ci + 1) * nv // (len(c) + 1) and vi % 1 == 0:
                    a(c[ci]); ci += 1
        assert ci == len(c)
        a(f"v_mov_b32 v{vPrev}, v{vQP+1}")
        rotate(nxt)
    def final(X, al):
        for k, t in agg_stream(X, al, False, None):
            a(t)
        a("s_nop 2")
        a(flush(vQP+1, None))
        a("s_branch K2_MAIN_DONE")
    def roll_body(nxt):
        al = vAl[0]
        a("s_waitcnt lgkmcnt(0)")
        if nxt:
            a(f"""
            ds_read_b128 {vr(vE,4)}, v{vLA} offset:{LIST+32}
            ds_read_b128 {vr(vE+4,4)}, v{vLA} offset:{LIST+48}
            ds_read_b64 {vr(vQN,2)}, v{vUA} offset:{UNODE+8}
            """)
        dots(vXA, ("s_waitcnt vmcnt(4)", "s_waitcnt vmcnt(0)"))
        fill = []
        if nxt:
            next_prep()
            a(f"v_add_u32 v{vE}, v{vE}, v{vC16}")
            fill = [f"v_add_u32 v{vE+u}, v{vE+u}, v{vC16}" for u in range(1, 8)]
        else:
            a("s_nop 2")
        c = chain(al)
        gaps = {11: 1, 14: 2, 17 + (5 if opt.mimic else 0): 1, 19 + (5 if opt.mimic else 0): 1}
        for i, ins in enumerate(c):
            a(ins)
            if i == 3 and nxt:
                a(f"ds_read_b128 {vr(vQ,4)}, v{vT0} offset:{QS}")
                a(f"ds_read_b128 {vr(vQ+4,4)}, v{vT1} offset:{QS}")
            for _ in range(gaps.get(i, 0)):
                a(fill.pop(0) if fill else "s_nop 0")
        while fill: a(fill.pop(0))
        a("s_nop 0")
        for k, t in agg_stream(vXA, al, nxt, vXA, vQC):
            a(t)
        a(f"v_mov_b32 v{vPrev}, v{vQC+1}")
        if nxt:
            a(f"v_mov_b32 v{vQC}, v{vQN}")
            a(f"v_mov_b32 v{vQC+1}, v{vQN+1}")
            a(f"v_add_u32 v{vLA}, 32, v{vLA}")
            a(f"v_add_u32 v{vUA}, 8, v{vUA}")
    def roll3_body(nxt):
        al = vAl[0]
        vEn = vQN
        B = lambda k: f"row_newbcast:{k} row_mask:0xf bank_mask:0xf"
        a("s_waitcnt lgkmcnt(0)")
        if nxt:
            a(f"ds_read_b32 v{vEn}, v{vLA}")
            a(f"v_add_u32 v{vLA}, v{vLA}, v{vUA}")
        dots(vXA, ("s_waitcnt vmcnt(4)", "s_waitcnt vmcnt(0)"))
        fill = []
        if nxt:
            a("s_waitcnt lgkmcnt(0)")
            a(f"v_xor_b32_dpp v{vT0}, v{vEn}, v{vC16} {B(8)}")
            a(f"v_xor_b32_dpp v{vT1}, v{vEn}, v{vC16} {B(9)}")
            a(f"v_add_u32_dpp v{vE}, v{vEn}, v{vC16} {B(0)}")
            fill = [f"v_add_u32_dpp v{vE+u}, v{vEn}, v{vC16} {B(u)}" for u in range(1, 8)]
        else:
            a("s_nop 2")
        c = chain(al)
        gaps = {11: 1, 14: 2, 17 + (5 if opt.mimic else 0): 1, 19 + (5 if opt.mimic else 0): 1}
        for i, ins in enumerate(c):
            a(ins)
            if i == 3 and nxt:
                a(f"ds_read_b128 {vr(vQ,4)}, v{vT0} offset:{QS}")
                a(f"ds_read_b128 {vr(vQ+4,4)}, v{vT1} offset:{QS}")
            for _ in range(gaps.get(i, 0)):
                a(fill.pop(0) if fill else "s_nop 0")
        while fill: a(fill.pop(0))
        a("s_nop 0")
        for k, t in agg_stream(vXA, al, nxt, vXA, vQC):
            a(t)
        a(f"v_mov_b32 v{vPrev}, v{vQC+1}")
        if nxt:
            a(f"v_mov_b32_dpp v{vQC}, v{vEn} {B(8)}")
            a(f"v_mov_b32_dpp v{vQC+1}, v{vEn} {B(9)}")
    if opt.style == "roll3":
        roll_body = roll3_body
    if opt.style in ("roll", "roll3"):
        a(f"""
        s_cmp_eq_u32 s{sHB}, 1
        s_cbranch_scc1 K2_LAST
        {".p2align %d" % opt.lalign if opt.lalign else ""}
        K2_LOOP:
        """)
        if opt.prio == 1:
            a(f"""
            s_cmp_ge_u32 s{sHB}, 4
            s_cbranch_scc1 K2_PR0
            s_setprio 2
            s_cmp_eq_u32 s{sHB}, 3
            s_cbranch_scc1 K2_PR0
            s_setprio 1
            K2_PR0:
            """)
        if opt.prio == 3:
            a(f"""
            s_cmp_ge_u32 s{sHB}, 3
            s_cbranch_scc1 K2_PR0
            s_setprio 2
            K2_PR0:
            """)
        roll_body(True)
        a(f"""
        s_sub_u32 s{sHB}, s{sHB}, 1
        s_cmp_gt_u32 s{sHB}, 1
        s_cbranch_scc1 K2_LOOP
        K2_LAST:
        """)
        if opt.prio == 1: a("s_setprio 0")
        if opt.prio == 3: a("s_setprio 1")
        if opt.prio == 4: a("s_setprio 2")
        roll_body(False)
        a("s_nop 2")
        a(flush(vPrev, None))
    else:
        def body2(cur, oth, qc, qn, first, has1, has2):
            al = vAl[0]
            a("s_waitcnt lgkmcnt(0)")
            if has1:
                a(f"ds_read_b64 {vr(qn,2)}, v{vUA} offset:{UNODE+8}")
                if first:
                    a(f"ds_read_b128 {vr(vE,4)}, v{vLA} offset:{LIST+32}")
                    a(f"ds_read_b128 {vr(vE+4,4)}, v{vLA} offset:{LIST+48}")
            if has2 and not first:
                a(f"ds_read_b128 {vr(vE,4)}, v{vLA} offset:{LIST+64}")
                a(f"ds_read_b128 {vr(vE+4,4)}, v{vLA} offset:{LIST+80}")
            if first or not has1: waits = ("s_waitcnt vmcnt(4)", "s_waitcnt vmcnt(0)")
            else: waits = ("s_waitcnt vmcnt(12)", "s_waitcnt vmcnt(8)")
            dots(cur, waits)
            fill = []
            if has1:
                a("s_waitcnt lgkmcnt(0)")
                a(f"v_xor_b32 v{vT0}, v{qn}, v{vC16}")
                a(f"v_xor_b32 v{vT1}, v{qn+1}, v{vC16}")
                if first:
                    for u in range(8):
                        a(f"v_add_u32 v{vE+u}, v{vE+u}, v{vC16}")
                        a(f"buffer_load_dwordx4 {vr(oth+4*u,4)}, v{vE+u}, s[{sX}:{sX+3}], 0 offen")
                    if has2:
                        a(f"ds_read_b128 {vr(vE,4)}, v{vLA} offset:{LIST+64}")
                        a(f"ds_read_b128 {vr(vE+4,4)}, v{vLA} offset:{LIST+80}")
                elif has2:
                    a(f"v_add_u32 v{vE}, v{vE}, v{vC16}")
                    fill = [f"v_add_u32 v{vE+u}, v{vE+u}, v{vC16}" for u in range(1, 8)]
                else:
                    a("s_nop 0")
            else:
                a("s_nop 2")
            c = chain(al)
            gaps = {11: 1, 14: 2, 17 + (5 if opt.mimic else 0): 1, 19 + (5 if opt.mimic else 0): 1}
            for i, ins in enumerate(c):
                a(ins)
                if i == 3 and has1:
                    a(f"ds_read_b128 {vr(vQ,4)}, v{vT0} offset:{QS}")
                    a(f"ds_read_b128 {vr(vQ+4,4)}, v{vT1} offset:{QS}")
                for _ in range(gaps.get(i, 0)):
                    a(fill.pop(0) if fill else "s_nop 0")
            while fill: a(fill.pop(0))
            if first and has2:
                a("s_waitcnt lgkmcnt(2)")
                for u in range(8):
                    a(f"v_add_u32 v{vE+u}, v{vE+u}, v{vC16}")
            else:
                a("s_nop 0")
            for k, t in agg_stream(cur, al, has2, cur, qc):
                a(t)
            a(f"v_mov_b32 v{vPrev}, v{qc+1}")
            if has1:
                a(f"v_add_u32 v{vLA}, 32, v{vLA}")
                a(f"v_add_u32 v{vUA}, 8, v{vUA}")
        def last2(cur, oth, qc, qn):
            if opt.prio: a("s_setprio 0")
            body2(cur, oth, qc, qn, False, False, False)
            a("s_nop 2")
            a(flush(vPrev, None))
            a("s_branch K2_MAIN_DONE")
        qA, qB = vQC, vQN
        a(f"""
        s_cmp_eq_u32 s{sHB}, 1
        s_cbranch_scc1 K2_LA
        s_cmp_eq_u32 s{sHB}, 2
        s_cbranch_scc1 K2_F2
        """)
        body2(vXA, vXB, qA, qB, True, True, True)
        a(f"""
        s_sub_u32 s{sHB}, s{sHB}, 1
        K2_LOOP:
        s_cmp_eq_u32 s{sHB}, 2
        s_cbranch_scc1 K2_PB
        """)
        if opt.prio: a("s_setprio 2")
        body2(vXB, vXA, qB, qA, False, True, True)
        a(f"""
        s_sub_u32 s{sHB}, s{sHB}, 1
        s_cmp_eq_u32 s{sHB}, 2
        s_cbranch_scc1 K2_PA
        """)
        body2(vXA, vXB, qA, qB, False, True, True)
        a(f"""
        s_sub_u32 s{sHB}, s{sHB}, 1
        s_branch K2_LOOP
        K2_PB:
        """)
        if opt.prio: a("s_setprio 1")
        body2(vXB, vXA, qB, qA, False, True, False)
        a("K2_LA:")
        last2(vXA, vXB, qA, qB)
        a("K2_PA:")
        if opt.prio: a("s_setprio 1")
        body2(vXA, vXB, qA, qB, False, True, False)
        a("K2_LB:")
        last2(vXB, vXA, qB, qA)
        a("K2_F2:")
        body2(vXA, vXB, qA, qB, True, True, False)
        a("s_branch K2_LB")
    a("s_branch K2_MAIN_DONE")
    a("K2_NOMAIN:")
    a("K2_MAIN_DONE:")
    if opt.prio: a("s_setprio 0")
    if "cyc" in opt.exp: st.stamp(a, True)
    st.stamp(a)
    a(f"""
    s_cmp_eq_u32 s{sR}, 0
    s_cbranch_scc0 K2_NRDONE
    v_mov_b32 v{vT3}, {MAXC}
    ds_read_b32 v{vT3}, v{vT3}
    s_waitcnt lgkmcnt(0)
    v_readfirstlane_b32 s3, v{vT3}
    s_nop 3
    s_min_u32 s3, s3, {CH}
    s_add_u32 s3, s3, 7
    s_lshr_b32 s3, s3, 3
    s_add_u32 s{sNR}, s3, 1
    K2_NRDONE:
    """)
    vSf, vSl = vE, vE+1
    a(f"""
    s_cmp_eq_u32 s{sWave}, 0
    s_cbranch_scc0 K2_NOTBL
    s_add_u32 s3, s{sQ}, 1
    s_lshl_b32 s3, s3, 1
    v_cvt_f32_u32 v{vT0}, s3
    s_mul_i32 s3, s3, s{sRem}
    s_lshl_b32 s{sP}, s3, 2
    s_lshl_b32 s3, s{sQ}, 1
    v_cvt_f32_u32 v{vT1}, s3
    v_rcp_f32 v{vT0}, v{vT0}
    v_rcp_f32 v{vT1}, v{vT1}
    s_lshl_b32 s3, s{sRem}, 2
    """)
    for (dst, last) in ((vSf, False), (vSl, True)):
        if not last:
            a(f"v_lshrrev_b32 v{vT2}, 2, v{vStart}")
        else:
            a(f"""
            v_add_u32 v{vT2}, v{vStart}, v{vPc}
            v_lshrrev_b32 v{vT2}, 2, v{vT2}
            v_add_u32 v{vT2}, -1, v{vT2}
            """)
        a(f"""
        v_cmp_gt_u32 vcc, s{sP}, v{vT2}
        v_cvt_f32_u32 v{vT3}, v{vT2}
        v_add_f32 v{vT3}, 0.5, v{vT3}
        v_mul_f32 v{vT3}, v{vT3}, v{vT0}
        v_cvt_u32_f32 v{vT3}, v{vT3}
        v_subrev_u32 v{vT2}, s{sP}, v{vT2}
        v_cvt_f32_u32 v{vT2}, v{vT2}
        v_add_f32 v{vT2}, 0.5, v{vT2}
        v_mul_f32 v{vT2}, v{vT2}, v{vT1}
        v_cvt_u32_f32 v{vT2}, v{vT2}
        v_add_u32 v{vT2}, s3, v{vT2}
        v_cndmask_b32_e64 v{dst}, v{vT2}, v{vT3}, vcc
        """)
    a(f"""
    v_sub_u32 v{vT0}, v{vSl}, v{vSf}
    v_add_u32 v{vT0}, 1, v{vT0}
    v_cmp_lt_u32 vcc, 0, v{vPc}
    v_add_u32 v{vT1}, v{vSf}, v{vLane}
    v_lshlrev_b32 v{vT1}, 9, v{vT1}
    v_cndmask_b32_e64 v{vT0}, 0, v{vT0}, vcc
    v_add_u32 v{vT1}, {PIECE}, v{vT1}
    v_lshlrev_b32 v{vT3}, 2, v{vLane}
    v_mov_b32 v{vT2}, {ZROW}
    ds_write_b32 v{vT3}, v{vT0} offset:{NPC}
    """)
    for j in range(4):
        a(f"""
        v_cmp_lt_u32 vcc, {j}, v{vT0}
        v_add_u32 v{vT3}, {512*j}, v{vT1}
        s_nop 0
        v_cndmask_b32_e64 v{vE+4+j}, v{vT2}, v{vT3}, vcc
        """)
    a(f"""
    v_lshlrev_b32 v{vT0}, 4, v{vLane}
    ds_write_b128 v{vT0}, {vr(vE+4,4)} offset:{TBL}
    K2_NOTBL:
    """)
    vA8 = vXB
    a(f"""
    s_cmp_ge_u32 s{sWave}, 8
    s_cbranch_scc1 K2_NOAA
    s_and_b32 s{sP}, s{sWave}, 3
    s_lshr_b32 s{sNH}, s{sWave}, 2
    """)
    tile_a_addr(a, vWa, vLane, vT2, vT3, sP, WV)
    for ks in range(8):
        if ks == 6: a("s_waitcnt lgkmcnt(4)")
        a(f"ds_read_b64_tr_b16 {vr(vA8+4*ks,2)}, v{vWa} offset:{ks*4096}")
        a(f"ds_read_b64_tr_b16 {vr(vA8+4*ks+2,2)}, v{vWa} offset:{ks*4096 + 1024}")
    a(f"""
    v_and_b32 v{vRow}, 31, v{vLane}
    s_lshl_b32 s3, s{sNH}, 5
    v_add_u32 v{vRow}, s3, v{vRow}
    """)
    tile_b_addr(a, vBa, vRow, vLane, vT3)
    vTa, vNa, vWb, vOut = 80, 81, 82, 83
    for ks in range(8):
        a(f"v_xor_b32 v{vQ+ks}, {32*ks}, v{vBa}")
    a(f"""
    s_mul_i32 s3, s{sBeta}, {T*256}
    s_lshl_b32 s{sCnt}, s{sP}, 6
    s_add_u32 s3, s3, s{sCnt}
    v_lshrrev_b32 v{vT0}, 5, v{vLane}
    v_lshlrev_b32 v{vOut}, 8, v{vRow}
    v_lshl_add_u32 v{vOut}, v{vT0}, 5, v{vOut}
    v_add_u32 v{vOut}, s3, v{vOut}
    K2_NOAA:
    v_lshrrev_b32 v{vT0}, 4, v{vLane}
    s_lshl_b32 s3, s{sWave}, 2
    v_add_u32 v{vT0}, s3, v{vT0}
    v_lshlrev_b32 v{vTa}, 4, v{vT0}
    v_lshlrev_b32 v{vNa}, 2, v{vT0}
    v_xor_b32 v{vWb}, v{vTa}, v{vC16}
    v_and_b32 v{vWb}, 0xf0, v{vWb}
    v_lshl_add_u32 v{vWb}, v{vT0}, 8, v{vWb}
    s_waitcnt lgkmcnt(0)
    s_barrier
    """)
    st.stamp(a)
    vB = vE
    vRd = vXA
    vNp = vT3
    a(f"""
    s_cmp_ge_u32 s{sWave}, 13
    s_cbranch_scc1 K2_RED_DONE
    ds_read_b128 {vr(vB,4)}, v{vTa} offset:{TBL}
    ds_read_b32 v{vNp}, v{vNa} offset:{NPC}
    s_waitcnt lgkmcnt(0)
    """)
    for j in range(3):
        a(f"""
        v_add_u32 v{vB+j}, v{vB+j}, v{vC16}
        ds_read_b128 {vr(vRd+8*j,4)}, v{vB+j}
        ds_read_b128 {vr(vRd+8*j+4,4)}, v{vB+j} offset:256
        """)
    for j in range(3):
        a(f"s_waitcnt lgkmcnt({4-2*j})")
        for i in range(8):
            a(f"v_add_f32 v{vTot+i}, v{vTot+i}, v{vRd+8*j+i}")
    a(f"""
    s_mov_b32 s{sT}, 3
    K2_XL:
    v_cmp_lt_u32 vcc, s{sT}, v{vNp}
    s_cbranch_vccz K2_RED_DONE
    s_lshl_b32 s3, s{sT}, 9
    v_add_u32 v{vT0}, s3, v{vB}
    s_mov_b64 exec, vcc
    ds_read_b128 {vr(vRd,4)}, v{vT0}
    ds_read_b128 {vr(vRd+4,4)}, v{vT0} offset:256
    s_waitcnt lgkmcnt(0)
    """)
    for i in range(8):
        a(f"v_add_f32 v{vTot+i}, v{vTot+i}, v{vRd+i}")
    a(f"""
    s_mov_b64 exec, -1
    s_add_u32 s{sT}, s{sT}, 1
    s_branch K2_XL
    K2_RED_DONE:
    s_add_u32 s{sR}, s{sR}, 1
    s_cmp_ge_u32 s{sR}, s{sNR}
    s_cbranch_scc1 K2_EPI
    s_barrier
    """)
    a(f"""
    s_cmp_ge_u32 s{sWave}, 4
    s_cbranch_scc1 K2_RZ
    v_mov_b32 v{vT2}, 0
    v_lshlrev_b32 v{vT3}, 2, v0
    ds_write_b32 v{vT3}, v{vT2} offset:{HIST}
    K2_RZ:
    v_bfe_u32 v{vT2}, v{vLane}, 2, 1
    v_mul_u32_u24 v{vT2}, 12, v{vT2}
    v_and_b32 v{vT3}, 3, v{vLane}
    v_or_b32 v{vT2}, v{vT2}, v{vT3}
    v_lshlrev_b32 v{vUA}, 8, v{vLane}
    v_lshl_or_b32 v{vUA}, v{vT2}, 4, v{vUA}
    s_waitcnt lgkmcnt(0)
    s_barrier
    s_cmp_lt_u32 s{sWave}, 8
    s_cbranch_scc1 K2_HDRD
    """)
    for i in range(8): a(f"v_mov_b32 v{vW+i}, {EMPTY}")
    a(f"""
    v_subrev_u32 v{vT0}, 512, v0
    v_and_b32 v{vT1}, 1, v{vT0}
    v_lshrrev_b32 v{vT0}, 1, v{vT0}
    v_lshlrev_b32 v{vT2}, 2, v{vT0}
    v_add_u32 v{vT2}, {MF}, v{vT2}
    ds_read_b32 v{vT3}, v{vT2}
    v_lshlrev_b32 v{vT0}, 14, v{vT0}
    v_add_u32 v{vT0}, {WS_OVF}, v{vT0}
    s_lshl_b32 s3, s{sR}, 3
    s_sub_u32 s3, s3, 8
    v_lshl_add_u32 v{vT1}, v{vT1}, 2, s3
    v_lshl_add_u32 v{vT0}, v{vT1}, 3, v{vT0}
    s_mov_b32 s{sQ}, {1 << TAGSH}
    s_mov_b32 s{sT}, {1 << 17}
    s_waitcnt lgkmcnt(0)
    v_sub_u32 v{vT3}, v{vT3}, v{vT1}
    v_cmp_lt_i32 vcc, 0, v{vT3}
    s_and_saveexec_b64 s[{sSave}:{sSave+1}], vcc
    s_cbranch_execz K2_R1
    v_cmp_lt_i32 s[{sM}:{sM+1}], 1, v{vT3}
    v_cmp_lt_i32 s[{sM+2}:{sM+3}], 2, v{vT3}
    v_cmp_lt_i32 s[{sM+4}:{sM+5}], 3, v{vT3}
    K2_RP:
    buffer_load_dwordx4 {vr(vSoM,4)}, v{vT0}, s[{sWS}:{sWS+3}], 0 offen sc1
    buffer_load_dwordx4 {vr(vSoM+4,4)}, v{vT0}, s[{sWS}:{sWS+3}], 0 offen offset:16 sc1
    s_waitcnt vmcnt(0)
    """)
    for i in range(8): a(f"v_xor_b32 v{vSoM+i}, s{sTag}, v{vSoM+i}")
    a(f"v_or_b32 v{vT1}, v{vSoM}, v{vSoM+1}")
    for k in range(1, 4):
        a(f"""
        v_or_b32 v{vT2}, v{vSoM+2*k}, v{vSoM+2*k+1}
        v_cndmask_b32_e64 v{vT2}, 0, v{vT2}, s[{sM+2*(k-1)}:{sM+2*(k-1)+1}]
        v_or_b32 v{vT1}, v{vT1}, v{vT2}
        """)
    a(f"""
    v_cmp_le_u32 vcc, s{sQ}, v{vT1}
    s_cbranch_vccz K2_RPD
    s_sleep 2
    s_sub_u32 s{sT}, s{sT}, 1
    s_cmp_lg_u32 s{sT}, 0
    s_cbranch_scc1 K2_RP
    K2_RPD:
    v_cmp_eq_u32 vcc, s{sBeta}, v{vSoM+1}
    s_nop 1
    v_cndmask_b32_e64 v{vW}, v{vW}, v{vSoM}, vcc
    """)
    for k in range(1, 4):
        a(f"""
        v_cmp_eq_u32 vcc, s{sBeta}, v{vSoM+2*k+1}
        s_nop 0
        s_and_b64 vcc, vcc, s[{sM+2*(k-1)}:{sM+2*(k-1)+1}]
        s_nop 1
        v_cndmask_b32_e64 v{vW+k}, v{vW+k}, v{vSoM+2*k}, vcc
        """)
    a(f"""
    K2_R1:
    s_mov_b64 exec, s[{sSave}:{sSave+1}]
    v_mov_b32 v{vT3}, 1
    s_branch K2_DECODE
    K2_EPI:
    """)
    st.stamp(a)
    vAcc16, vB8 = 24, vXA
    a(f"""
    s_cmp_ge_u32 s{sWave}, 13
    s_cbranch_scc1 K2_WB_DONE
    """)
    for i in range(4):
        a(f"v_cvt_pk_bf16_f32 v{vE+i}, v{vTot+2*i}, v{vTot+2*i+1}")
    a(f"""
    ds_write_b128 v{vWb}, {vr(vE,4)} offset:{AGGB}
    K2_WB_DONE:
    s_waitcnt lgkmcnt(0)
    s_barrier
    s_cmp_ge_u32 s{sWave}, 8
    s_cbranch_scc1 K2_FIN
    """)
    a(f"v_mov_b32 v{vE}, v{vOut}")
    for ks in range(8):
        a(f"ds_read_b128 {vr(vB8+4*ks,4)}, v{vQ+ks} offset:{AGGB}")
    a(f"v_cmp_gt_u32 vcc, {T}, v{vRow}")
    for ks in range(8):
        a(f"s_waitcnt lgkmcnt({7-ks})")
        c = "0" if ks == 0 else vr(vAcc16,16)
        a(f"v_mfma_f32_32x32x16_bf16 {vr(vAcc16,16)}, {vr(vA8+4*ks,4)}, {vr(vB8+4*ks,4)}, {c}")
    a("s_nop 7")
    a("s_nop 3")
    for i in range(8):
        a(f"v_cvt_pk_bf16_f32 v{vQ+i}, v{vAcc16+2*i}, v{vAcc16+2*i+1}")
    a(f"""
    s_and_saveexec_b64 s[{sSave}:{sSave+1}], vcc
    s_cbranch_execz K2_ST_DONE
    buffer_store_dwordx4 {vr(vQ,4)}, v{vE}, s[{sOUT}:{sOUT+3}], 0 offen {opt.outst}
    buffer_store_dwordx4 {vr(vQ+4,4)}, v{vE}, s[{sOUT}:{sOUT+3}], 0 offen offset:16 {opt.outst}
    K2_ST_DONE:
    s_mov_b64 exec, s[{sSave}:{sSave+1}]
    K2_FIN:
    s_cmp_eq_u32 s2, 0
    s_cbranch_scc0 K2_NOEPOCH
    s_cmp_eq_u32 s{sWave}, 15
    s_cbranch_scc0 K2_NOEPOCH
    v_mov_b32 v{vT0}, 0
    v_mov_b32 v{vT1}, s{sTag}
    s_mov_b64 exec, 1
    buffer_store_dword v{vT1}, v{vT0}, s[{sWS}:{sWS+3}], 0 offen sc1
    s_mov_b64 exec, -1
    K2_NOEPOCH:
    """)
    st.stamp(a)
    if opt.stamps:
        a("s_waitcnt vmcnt(0)")
        st.stamp(a)
    st.flush(a, sWS, vT0, sWave)
    a("""
    K2_END:
    s_endpgm
    """)
    return a.text(), LDS, 128

DESCRIPTION = """;
;   out[n] = bf16( sum_{e: dst[e] = n} sigmoid(x[src[e]] . Q[n] / sqrt(128)) * x[src[e]] ) @ w_v,   Q = bf16(x @ w_q)
"""

def build(opt):
    k, lds, v = gen_k(opt)
    n = NAME + "_kernel"
    out = HEADER + DESCRIPTION
    for _ in range(opt.rep):
        out += f"; @launch kernel={n} grid=({NB},1,1) block=(1024,1,1) lds={lds}\n" if opt.aslist or opt.rep > 1 else f"; @launch grid=({NB},1,1) block=(1024,1,1) lds={lds}\n"
    out += '.amdgcn_target "amdgcn-amd-amdhsa--gfx950"\n.text\n'
    out += f".globl {n}\n.p2align 8\n.type {n},@function\n" + k
    out += '.section .rodata,"a"\n.p2align 6\n' + kd(n, v)
    return out

def parse(argv=None):
    p = argparse.ArgumentParser()
    p.add_argument("-o", default="cdna_kernels/" + NAME + ".s")
    p.add_argument("--stamps", action="store_true")
    p.add_argument("--prefetch", type=int, default=5)
    p.add_argument("--mimic", type=int, default=0)
    p.add_argument("--prio", type=int, default=3)
    p.add_argument("--keep", default="")
    p.add_argument("--exp", default="")
    p.add_argument("--outst", default="")
    p.add_argument("--sleep", type=int, default=2)
    p.add_argument("--drain", type=int, default=0)
    p.add_argument("--sleep2", type=int, default=0)
    p.add_argument("--pf6", type=int, default=0)
    p.add_argument("--mov64", type=int, default=0)
    p.add_argument("--align", type=int, default=0)
    p.add_argument("--lalign", type=int, default=0)
    p.add_argument("--pprio", type=int, default=0)
    p.add_argument("--eld", default="")
    p.add_argument("--pfn", type=int, default=3)
    p.add_argument("--pfsh", type=int, default=7)
    p.add_argument("--pfsleep", type=int, default=0)
    p.add_argument("--wsbase", type=lambda x: int(x, 0), default=0)
    p.add_argument("--cst", default="sc1")
    p.add_argument("--dmalate", type=int, default=0)
    p.add_argument("--rep", type=int, default=1)
    p.add_argument("--aslist", type=int, default=0)
    p.add_argument("--style", default="roll3")
    return p.parse_args(argv)

if __name__ == "__main__":
    o = parse()
    open(o.o, "w").write(build(o))
    print("wrote", o.o)
```

```python
import sys, argparse
from gen import A, vr, Stamps, scan64, kd, HEADER, NAME

N, E, D = 12500, 400000, 128
T = 49
NB = 256
CH = 1564
C = 256
XBYTES = N * 256
EBYTES = E * 4
WS_NONCE = 0
WS_OVH = 0x1000
WS_EXTRA = 0x40000
WS_CELLS = 0x100000
CELLROW = 16384
WS_OVF = 0x500000
OVF_STRIDE = 16384
WS_USED = WS_OVF + 256 * OVF_STRIDE
TAGSH = 23
EMPTY = 0x3f
WS_STAMP = 0x1000000
OOB = 0x40000000
DUMMY = 49

def srd_tail(a, d, size):
    a(f"s_mov_b32 s{d+2}, {size}")
    a(f"s_mov_b32 s{d+3}, 0x00020000")

def tile_a_addr(a, vdst, vlane, t0, t1, sP, wbase):
    a(f"""
    v_bfe_u32 v{t0}, v{vlane}, 2, 2
    v_lshrrev_b32 v{t1}, 5, v{vlane}
    v_lshl_add_u32 v{vdst}, v{t1}, 3, v{t0}
    v_lshlrev_b32 v{vdst}, 8, v{vdst}
    v_xor_b32 v{t0}, s{sP}, v{t0}
    v_lshl_add_u32 v{vdst}, v{t0}, 6, v{vdst}
    v_bfe_u32 v{t0}, v{vlane}, 4, 1
    v_bfe_u32 v{t1}, v{vlane}, 1, 1
    v_lshl_add_u32 v{t0}, v{t0}, 1, v{t1}
    v_and_b32 v{t1}, 1, v{vlane}
    v_lshl_add_u32 v{t0}, v{t1}, 2, v{t0}
    v_lshl_add_u32 v{vdst}, v{t0}, 3, v{vdst}
    v_add_u32 v{vdst}, {wbase}, v{vdst}
    """)

def tile_b_addr(a, vdst, vrow, vlane, t0):
    a(f"""
    v_lshrrev_b32 v{t0}, 5, v{vlane}
    v_xor_b32 v{t0}, v{t0}, v{vrow}
    v_and_b32 v{t0}, 15, v{t0}
    v_lshlrev_b32 v{t0}, 4, v{t0}
    v_lshl_add_u32 v{vdst}, v{vrow}, 8, v{t0}
    """)

def gen_k(opt):
    a = A()
    HIST, MAXC, ZROW, TBL = 0, 256, 512, 1024
    NPC = TBL + 1024
    LIST = NPC + 256
    LISTW = 6144
    UNODE = LIST + LISTW * 4
    QS = UNODE + 1536 * 4
    AGGB = QS + 52 * 256
    PIECE = AGGB + 64 * 256
    XT = PIECE
    WQ = XT + 16384
    WV = PIECE + (DUMMY + 64) * 512
    LDS = WV + 32768
    assert WQ + 32768 <= WV
    st = Stamps(opt.stamps, 64, WS_STAMP + 0x40000, [int(x) for x in opt.keep.split(',')] if opt.keep else None)
    sX, sWQ, sWV, sOUT, sWS = 4, 8, 12, 16, 20
    sBeta, sWave, sR, sNR = 24, 25, 26, 27
    sOdd = 28
    sBeta24, sHB, sP, sNH, s196 = 30, 31, 32, 33, 34
    sM = 36
    sSave = 50
    sCnt, sQ, sRem, sT = 52, 53, 54, 55
    vC16, vPB, vLA, vUA, vPrev = 1, 2, 3, 4, 5
    vQP, vQC, vQN = 6, 8, 10
    vAl = (12, 14)
    vQB = 16
    vT0, vT1, vT2, vT3 = 17, 18, 19, 20
    vLane, vStart, vPc = 21, 22, 23
    vAcc, vP, vE, vQ = 24, 32, 40, 48
    vXA, vXB, vTot = 56, 88, 120
    vCand, vHdr, vSo, vN4, vRk = 56, 60, 64, 72, 80
    vCnt = 47
    vHdr2, vSo2, vN42, vRk2 = 88, 92, 96, 100
    sM2 = 56
    vWl = 6
    vWa, vBa, vRow, vQst = 12, 13, 14, 15
    HP = LDS
    OVC, JUNK = HP + 1024, HP + 1040
    H2 = HP + 1280
    ST2 = H2 + 256
    MF = ST2 + 1024
    LDS = MF + 1024
    OVL = LIST
    OVB = LIST + 8192
    STAGE = AGGB
    sSRC, sDST, sNonce, sPi = 56, 60, 35, 3
    sTag = 30
    vDst, vSrc, vEnt, vAdr, vRank, vNeg, vNon, vGo = 56, 58, 60, 62, 64, 68, 66, 67
    vBk = 76
    a(f"""
    {NAME}_kernel:
    s_cmp_ge_u32 s2, {NB}
    s_cbranch_scc1 K2_END
    s_load_dwordx2 s[{sWS}:{sWS+1}], s[0:1], 56
    s_load_dwordx2 s[{sDST}:{sDST+1}], s[0:1], 16
    s_load_dwordx2 s[{sSRC}:{sSRC+1}], s[0:1], 8
    s_load_dwordx2 s[{sX}:{sX+1}], s[0:1], 0
    s_load_dwordx2 s[{sWQ}:{sWQ+1}], s[0:1], 24
    s_load_dwordx2 s[{sWV}:{sWV+1}], s[0:1], 32
    s_load_dwordx2 s[{sOUT}:{sOUT+1}], s[0:1], 40
    """)
    st.stamp(a)
    srd_tail(a, sWS, WS_USED if not opt.stamps else 0x2000000)
    srd_tail(a, sDST, EBYTES); srd_tail(a, sSRC, EBYTES); srd_tail(a, sX, XBYTES); srd_tail(a, sWQ, 32768)
    a(f"""
    v_lshrrev_b32 v{vT0}, 6, v0
    s_mov_b32 s{sBeta}, s2
    s_mul_i32 s3, s2, {CH*4}
    v_readfirstlane_b32 s{sWave}, v{vT0}
    v_lshlrev_b32 v{vT2}, 3, v0
    v_add_u32 v{vT2}, s3, v{vT2}
    s_movk_i32 s{sT}, {CH//2}
    s_cmp_eq_u32 s2, {C-1}
    s_cselect_b32 s{sT}, {(E - (C-1)*CH)//2}, s{sT}
    v_mov_b32 v{vT3}, 0
    v_cmp_gt_u32 vcc, s{sT}, v0
    s_and_saveexec_b64 s[{sSave}:{sSave+1}], vcc
    s_waitcnt lgkmcnt(0)
    {("s_add_u32 s%d, s%d, %d" % (sWS, sWS, opt.wsbase)) if opt.wsbase else ""}
    {("s_addc_u32 s%d, s%d, 0" % (sWS+1, sWS+1)) if opt.wsbase else ""}
    s_cbranch_execz K1_NOEDGE0
    buffer_load_dwordx2 {vr(vDst,2)}, v{vT2}, s[{sDST}:{sDST+3}], 0 offen
    buffer_load_dwordx2 {vr(vSrc,2)}, v{vT2}, s[{sSRC}:{sSRC+3}], 0 offen
    K1_NOEDGE0:
    s_mov_b64 exec, s[{sSave}:{sSave+1}]
    buffer_load_dword v{vNon}, v{vT3}, s[{sWS}:{sWS+3}], 0 offen sc1
    """)
    a(f"""
    v_and_b32 v{vLane}, 63, v0
    v_bfe_u32 v{vT0}, v0, 4, 2
    v_and_b32 v{vT1}, 15, v0
    v_lshlrev_b32 v{vC16}, 4, v{vT1}
    """)
    a(f"""
    v_mov_b32 v{vNeg}, {EMPTY}
    v_mov_b32 v{vNeg+1}, {EMPTY}
    v_mov_b32 v{vNeg+2}, {EMPTY}
    v_mov_b32 v{vNeg+3}, {EMPTY}
    v_lshlrev_b32 v{vT2}, 4, v0
    ds_write_b128 v{vT2}, {vr(vNeg,4)} offset:{STAGE}
    s_cmp_eq_u32 s{sWave}, 12
    s_cbranch_scc0 K1_NOS2
    v_lshlrev_b32 v{vT3}, 4, v{vLane}
    v_add_u32 v{vT3}, {ST2}, v{vT3}
    ds_write_b128 v{vT3}, {vr(vNeg,4)}
    K1_NOS2:
    v_mov_b32 v{vT2}, 0
    v_lshlrev_b32 v{vT3}, 2, v0
    s_cmp_ge_u32 s{sWave}, 6
    s_cbranch_scc1 K1_NOZ0
    v_add_u32 v{vT3}, {HP}, v{vT3}
    ds_write_b32 v{vT3}, v{vT2}
    s_branch K1_NOZ1
    K1_NOZ0:
    s_sub_u32 s3, s{sWave}, 8
    s_cmp_ge_u32 s3, 4
    s_cbranch_scc1 K1_NOZ2
    v_add_u32 v{vT3}, {HIST - 2048}, v{vT3}
    ds_write_b32 v{vT3}, v{vT2}
    s_branch K1_NOZ1
    K1_NOZ2:
    s_cmp_lt_u32 s{sWave}, 12
    s_cbranch_scc1 K1_NOZ1
    v_add_u32 v{vT3}, {MF - 3072}, v{vT3}
    ds_write_b32 v{vT3}, v{vT2}
    K1_NOZ1:
    s_mov_b32 s{sR}, 0
    s_mov_b32 s{sOdd}, 0xaaaaaaaa
    s_mov_b32 s{sOdd+1}, 0xaaaaaaaa
    s_movk_i32 s{s196}, {T*4}
    s_lshl_b32 s3, s{sWave}, 11
    s_add_u32 s3, s3, {PIECE}
    v_lshl_add_u32 v{vPB}, v{vT0}, 9, s3
    v_add_u32 v{vPB}, v{vPB}, v{vC16}
    s_and_b32 s{sPi}, s2, 7
    s_lshl_b32 s{sPi}, s{sPi}, 5
    s_lshr_b32 s{sT}, s2, 3
    s_add_u32 s{sPi}, s{sPi}, s{sT}
    s_mov_b32 s{sHB}, s{sPi}
    v_lshrrev_b32 v{vT2}, 2, v0
    v_lshlrev_b32 v{vGo}, 14, v{vT2}
    v_and_b32 v{vT2}, 3, v0
    v_lshl_add_u32 v{vGo}, v{vT2}, 4, v{vGo}
    v_mov_b32 v{vT3}, 1
    s_waitcnt lgkmcnt(0)
    s_barrier
    """)
    st.stamp(a)
    def early_dma():
        a(f"""
        v_bfe_u32 v{vT0}, v0, 4, 2
        v_and_b32 v{vT1}, 15, v0
        v_lshlrev_b32 v{vT2}, 2, v{vT0}
        v_xor_b32 v{vT2}, v{vT2}, v{vT1}
        v_lshlrev_b32 v{vT2}, 4, v{vT2}
        v_lshl_add_u32 v{vWl}, v{vT0}, 8, v{vT2}
        s_cmp_lt_u32 s{sWave}, 8
        s_cbranch_scc1 K2_L2
        s_sub_u32 s{sQ}, s{sWave}, 8
        """)
        def xt_dma(jreg):
            a(f"""
            s_lshl_b32 s3, s{jreg}, 2
            v_add_u32 v{vT2}, s3, v{vT0}
            v_xor_b32 v{vEnt}, v{vT2}, v{vT1}
            v_and_b32 v{vEnt}, 15, v{vEnt}
            v_lshlrev_b32 v{vEnt}, 4, v{vEnt}
            v_lshl_add_u32 v{vEnt}, v{vT2}, 8, v{vEnt}
            s_mul_i32 s3, s{sBeta}, {T*256}
            s_lshl_b32 s{sT}, s{jreg}, 10
            s_add_u32 s{sT}, s{sT}, {XT}
            s_mov_b32 m0, s{sT}
            s_nop 0
            buffer_load_dwordx4 v{vEnt}, s[{sX}:{sX+3}], s3 offen lds
            """)
        xt_dma(sQ)
        a(f"""
        s_cmp_ge_u32 s{sWave}, 13
        s_cbranch_scc1 K2_L3
        s_mov_b32 s{sRem}, s{sWave}
        """)
        xt_dma(sRem)
        a(f"""
        K2_L3:
        s_lshl_b32 s3, s{sQ}, 12
        s_add_u32 s{sT}, s3, {WQ}
        """)
        for i in range(4):
            a(f"""
            s_mov_b32 m0, s{sT}
            s_add_u32 s{sT}, s{sT}, 1024
            buffer_load_dwordx4 v{vWl}, s[{sWQ}:{sWQ+3}], s3 offen lds
            s_add_u32 s3, s3, 1024
            """)
        a("K2_L2:")
    if not opt.dmalate: early_dma()
    else:
        a(f"""
        v_bfe_u32 v{vT0}, v0, 4, 2
        v_and_b32 v{vT1}, 15, v0
        v_lshlrev_b32 v{vT2}, 2, v{vT0}
        v_xor_b32 v{vT2}, v{vT2}, v{vT1}
        v_lshlrev_b32 v{vT2}, 4, v{vT2}
        v_lshl_add_u32 v{vWl}, v{vT0}, 8, v{vT2}
        """)
    if opt.prefetch == 1:
        a(f"""
        s_cmp_eq_u32 s{sWave}, 14
        s_cbranch_scc0 K1_NOPF
        s_mul_i32 s3, s2, 12544
        v_lshlrev_b32 v{vT2}, 7, v{vLane}
        buffer_load_dword v{vNeg+4}, v{vT2}, s[{sX}:{sX+3}], s3 offen
        s_add_u32 s3, s3, 8192
        v_cmp_gt_u32 vcc, 34, v{vLane}
        v_mov_b32 v{vEnt}, {OOB}
        s_nop 0
        v_cndmask_b32_e64 v{vT2}, v{vEnt}, v{vT2}, vcc
        buffer_load_dword v{vNeg+4}, v{vT2}, s[{sX}:{sX+3}], s3 offen
        K1_NOPF:
        """)
    sPiK = sHB
    srd_tail(a, sWV, 32768); srd_tail(a, sOUT, XBYTES)
    for i in range(8):
        a(f"v_mov_b32 v{vTot+i}, 0")
    a("v_mov_b32 v83, 0")
    a(f"""
    v_bfe_u32 v{vT2}, v{vLane}, 2, 1
    v_mul_u32_u24 v{vT2}, 12, v{vT2}
    v_and_b32 v{vT0}, 3, v{vLane}
    v_or_b32 v{vT2}, v{vT2}, v{vT0}
    v_lshlrev_b32 v{vUA}, 8, v{vLane}
    v_lshl_or_b32 v{vUA}, v{vT2}, 4, v{vUA}
    """)
    a(f"""
    s_and_b32 s{sP}, s{sWave}, 3
    s_bfe_u32 s{sNH}, s{sWave}, 0x10002
    s_cmp_ge_u32 s{sWave}, 8
    s_cbranch_scc1 K2_NOQA
    """)
    tile_a_addr(a, vWa, vLane, vT2, vT0, sP, WQ)
    a(f"""
    v_and_b32 v{vRow}, 31, v{vLane}
    s_lshl_b32 s3, s{sNH}, 5
    v_add_u32 v{vRow}, s3, v{vRow}
    """)
    tile_b_addr(a, vBa, vRow, vLane, vT0)
    a(f"""
    v_bfe_u32 v{vT2}, v{vRow}, 2, 1
    v_mul_u32_u24 v{vT2}, 12, v{vT2}
    v_and_b32 v{vT0}, 3, v{vRow}
    v_or_b32 v{vT2}, v{vT2}, v{vT0}
    v_lshrrev_b32 v{vT0}, 5, v{vLane}
    s_lshl_b32 s3, s{sP}, 2
    v_lshl_add_u32 v{vT0}, v{vT0}, 1, s3
    v_xor_b32 v{vT2}, v{vT2}, v{vT0}
    v_lshlrev_b32 v{vT2}, 4, v{vT2}
    v_lshl_add_u32 v{vQst}, v{vRow}, 8, v{vT2}
    K2_NOQA:
    """)
    a(f"""
    s_movk_i32 s{sT}, {CH//2}
    s_cmp_eq_u32 s2, {C-1}
    s_cselect_b32 s{sT}, {(E - (C-1)*CH)//2}, s{sT}
    v_cmp_gt_u32 vcc, s{sT}, v0
    s_and_saveexec_b64 s[{sSave}:{sSave+1}], vcc
    s_cbranch_execz K1_EDGE1_DONE
    s_mov_b32 s{sT}, -{T}
    s_mov_b32 s{sCnt}, {STAGE}
    s_cmp_lt_u32 s{sWave}, 8
    s_cbranch_scc1 K1_EW0
    s_waitcnt vmcnt({1 if opt.dmalate else 7})
    s_branch K1_EW1
    K1_EW0:
    s_waitcnt vmcnt(1)
    K1_EW1:
    """)
    st.stamp(a)
    for i in range(2):
        a(f"""
        v_mul_u32_u24 v{vT0}, 21400, v{vDst+i}
        v_lshrrev_b32 v{vT0}, 20, v{vT0}
        v_lshlrev_b32 v{vAdr+i}, 2, v{vT0}
        v_add_u32 v{vT2}, {HP}, v{vAdr+i}
        ds_add_rtn_u32 v{vRank+i}, v{vT2}, v{vT3}
        v_mad_i32_i24 v{vT1}, v{vT0}, s{sT}, v{vDst+i}
        v_lshl_or_b32 v{vEnt+i}, v{vSrc+i}, 8, v{vT1}
        v_mov_b32 v{vBk+i}, v{vT0}
        v_lshl_add_u32 v{vAdr+i}, v{vAdr+i}, 4, s{sCnt}
        """)
    a(f"v_mov_b32 v{vT2}, {JUNK}")
    for i in range(2):
        a(f"""
        s_waitcnt lgkmcnt({1-i})
        v_cmp_gt_u32 s[{sM+2*i}:{sM+2*i+1}], 16, v{vRank+i}
        v_lshl_add_u32 v{vT0}, v{vRank+i}, 2, v{vAdr+i}
        s_nop 0
        v_cndmask_b32_e64 v{vT0}, v{vT2}, v{vT0}, s[{sM+2*i}:{sM+2*i+1}]
        ds_write_b32 v{vT0}, v{vEnt+i}
        """)
    a(f"""
    s_and_b64 s[{sM+4}:{sM+5}], s[{sM}:{sM+1}], s[{sM+2}:{sM+3}]
    s_andn2_b64 s[{sM+4}:{sM+5}], exec, s[{sM+4}:{sM+5}]
    s_cbranch_scc0 K1_EDGE1_DONE
    s_mov_b64 s[{sM+6}:{sM+7}], exec
    """)
    for i in range(2):
        a(f"""
        s_andn2_b64 exec, s[{sM+6}:{sM+7}], s[{sM+2*i}:{sM+2*i+1}]
        s_cbranch_execz K1_OV_{i}
        v_and_b32 v{vT0}, 7, v{vBk+i}
        v_lshrrev_b32 v{vT1}, 5, v{vBk+i}
        v_lshl_add_u32 v{vT0}, v{vT1}, 3, v{vT0}
        v_lshlrev_b32 v{vT1}, 2, v{vT0}
        v_add_u32 v{vT1}, {H2}, v{vT1}
        ds_add_rtn_u32 v{vT1}, v{vT1}, v{vT3}
        v_bfe_u32 v{vT2}, v{vBk+i}, 3, 2
        v_lshl_or_b32 v{vT2}, v{vT2}, 6, v{vEnt+i}
        v_lshlrev_b32 v{vT0}, 4, v{vT0}
        v_add_u32 v{vT0}, {ST2}, v{vT0}
        s_waitcnt lgkmcnt(0)
        v_cmp_gt_u32 vcc, 4, v{vT1}
        v_lshl_add_u32 v{vT0}, v{vT1}, 2, v{vT0}
        s_mov_b64 s[{sM+8}:{sM+9}], exec
        s_and_b64 exec, exec, vcc
        ds_write_b32 v{vT0}, v{vT2}
        s_andn2_b64 exec, s[{sM+8}:{sM+9}], vcc
        s_cbranch_execz K1_OV_{i}
        v_mov_b32 v{vT0}, {OVC}
        ds_add_rtn_u32 v{vT0}, v{vT0}, v{vT3}
        s_waitcnt lgkmcnt(0)
        v_lshlrev_b32 v{vT0}, 2, v{vT0}
        ds_write_b32 v{vT0}, v{vEnt+i} offset:{OVL}
        ds_write_b32 v{vT0}, v{vBk+i} offset:{OVB}
        K1_OV_{i}:
        """)
    a(f"""
    K1_EDGE1_DONE:
    s_mov_b64 exec, s[{sSave}:{sSave+1}]
    v_lshlrev_b32 v{vT0}, 4, v0
    s_waitcnt lgkmcnt(0)
    s_barrier
    """)
    st.stamp(a)
    a(f"""
    s_cmp_ge_u32 s{sWave}, 8
    s_cbranch_scc1 K1_NOCOPY
    ds_read_b128 {vr(vNeg,4)}, v{vT0} offset:{STAGE}
    ds_read_b128 {vr(vNeg+4,4)}, v{vT0} offset:{STAGE + 8192}
    s_lshl_b32 s3, s{sPiK}, 6
    s_add_u32 s3, s3, {WS_CELLS}
    s_add_u32 s{sT}, s3, {128*CELLROW}
    s_waitcnt vmcnt(0)
    v_readfirstlane_b32 s{sNonce}, v{vNon}
    s_nop 3
    s_and_b32 s{sTag}, s{sNonce}, {(0xffffffff << TAGSH) & 0xffffffff}
    s_add_u32 s{sTag}, s{sTag}, {1 << TAGSH}
    s_waitcnt lgkmcnt(1)
    """)
    for i in range(4): a(f"v_or_b32 v{vNeg+i}, s{sTag}, v{vNeg+i}")
    a(f"""
    buffer_store_dwordx4 {vr(vNeg,4)}, v{vGo}, s[{sWS}:{sWS+3}], s3 offen {opt.cst}
    s_waitcnt lgkmcnt(0)
    """)
    for i in range(4, 8): a(f"v_or_b32 v{vNeg+i}, s{sTag}, v{vNeg+i}")
    a(f"""
    buffer_store_dwordx4 {vr(vNeg+4,4)}, v{vGo}, s[{sWS}:{sWS+3}], s{sT} offen {opt.cst}
    s_cmp_eq_u32 s{sWave}, 6
    s_cbranch_scc0 K1_NOX
    v_lshlrev_b32 v{vT1}, 4, v{vLane}
    v_add_u32 v{vT1}, {ST2}, v{vT1}
    ds_read_b128 {vr(vDst,4)}, v{vT1}
    v_lshlrev_b32 v{vT1}, 2, v{vLane}
    v_add_u32 v{vT1}, {H2}, v{vT1}
    ds_read_b32 v{vT1}, v{vT1}
    v_lshlrev_b32 v{vT2}, 12, v{vLane}
    s_lshl_b32 s3, s{sPiK}, 4
    s_add_u32 s3, s3, {WS_EXTRA}
    v_mov_b32 v{vT3}, {1 << 22}
    s_waitcnt lgkmcnt(0)
    v_cmp_lt_u32 vcc, 4, v{vT1}
    """)
    for i in range(4): a(f"v_or_b32 v{vDst+i}, s{sTag}, v{vDst+i}")
    a(f"""
    v_cndmask_b32_e64 v{vT3}, 0, v{vT3}, vcc
    v_or_b32 v{vDst+3}, v{vT3}, v{vDst+3}
    buffer_store_dwordx4 {vr(vDst,4)}, v{vT2}, s[{sWS}:{sWS+3}], s3 offen {opt.cst}
    K1_NOX:
    s_cmp_eq_u32 s{sWave}, 7
    s_cbranch_scc0 K1_DRAIN
    v_mov_b32 v{vT3}, {OVC}
    ds_read_b32 v{vRank}, v{vT3}
    s_waitcnt lgkmcnt(0)
    v_readfirstlane_b32 s{sCnt}, v{vRank}
    s_nop 3
    s_cmp_eq_u32 s{sCnt}, 0
    s_cbranch_scc1 K1_DRAIN
    s_min_u32 s{sCnt}, s{sCnt}, {CH}
    s_lshl_b32 s{sT}, s{sPiK}, 4
    s_add_u32 s{sT}, s{sT}, {WS_OVH}
    v_mov_b32 v{vT2}, s{sT}
    v_or_b32 v{vDst}, s{sTag}, v{vRank}
    v_mov_b32 v{vDst+1}, v{vDst}
    v_mov_b32 v{vDst+2}, v{vDst}
    v_mov_b32 v{vDst+3}, v{vDst}
    s_mov_b64 exec, 1
    buffer_store_dwordx4 {vr(vDst,4)}, v{vT2}, s[{sWS}:{sWS+3}], 0 offen sc1
    s_mov_b64 exec, -1
    s_mul_i32 s3, s{sPiK}, {OVF_STRIDE}
    s_add_u32 s3, s3, {WS_OVF}
    v_mov_b32 v{vT0}, v{vLane}
    K1_OVL:
    v_cmp_gt_u32 vcc, s{sCnt}, v{vT0}
    s_and_b64 exec, exec, vcc
    s_cbranch_execz K1_OVD
    v_lshlrev_b32 v{vT1}, 2, v{vT0}
    ds_read_b32 v{vDst}, v{vT1} offset:{OVL}
    ds_read_b32 v{vDst+1}, v{vT1} offset:{OVB}
    v_lshlrev_b32 v{vT1}, 3, v{vT0}
    s_waitcnt lgkmcnt(0)
    v_or_b32 v{vDst}, s{sTag}, v{vDst}
    v_or_b32 v{vDst+1}, s{sTag}, v{vDst+1}
    buffer_store_dwordx2 {vr(vDst,2)}, v{vT1}, s[{sWS}:{sWS+3}], s3 offen sc1
    v_add_u32 v{vT0}, 64, v{vT0}
    s_branch K1_OVL
    K1_OVD:
    s_mov_b64 exec, -1
    K1_DRAIN:
    {"s_waitcnt vmcnt(0)" if opt.drain == 1 else ""}
    s_branch K1_COPIED
    K1_NOCOPY:
    s_waitcnt vmcnt(0)
    v_readfirstlane_b32 s{sNonce}, v{vNon}
    s_nop 3
    s_and_b32 s{sTag}, s{sNonce}, {(0xffffffff << TAGSH) & 0xffffffff}
    s_add_u32 s{sTag}, s{sTag}, {1 << TAGSH}
    K1_COPIED:
    s_barrier
    """)
    st.stamp(a)
    st.stamp(a)
    a(f"""
    s_cmp_ge_u32 s{sWave}, 8
    s_cbranch_scc1 K2_NOQ
    """)
    vA8, vQAcc = vXB, vAcc
    Bq = [vE, vE+4, vQ, vQ+4]
    def a_reads(ks):
        a(f"ds_read_b64_tr_b16 {vr(vA8+4*ks,2)}, v{vWa} offset:{ks*4096}")
        a(f"ds_read_b64_tr_b16 {vr(vA8+4*ks+2,2)}, v{vWa} offset:{ks*4096 + 1024}")
    def b_read(ks):
        a(f"v_xor_b32 v{vT2}, {32*ks}, v{vBa}")
        a(f"ds_read_b128 {vr(Bq[ks & 3],4)}, v{vT2} offset:{XT}")
    def mfma(ks):
        c = "0" if ks == 0 else vr(vQAcc,16)
        a(f"v_mfma_f32_32x32x16_bf16 {vr(vQAcc,16)}, {vr(vA8+4*ks,4)}, {vr(Bq[ks & 3],4)}, {c}")
    for ks in range(4):
        a_reads(ks); b_read(ks)
    for ks in range(4):
        a("s_waitcnt lgkmcnt(9)")
        mfma(ks)
        a_reads(ks+4); b_read(ks+4)
    for ks in range(4, 8):
        a(f"s_waitcnt lgkmcnt({3*(7-ks)})")
        mfma(ks)
    a(f"""
    v_cmp_gt_u32 vcc, 52, v{vRow}
    v_xor_b32 v{vT2}, 16, v{vQst}
    s_nop 7
    s_nop 2
    """)
    for i in range(8):
        a(f"v_cvt_pk_bf16_f32 v{vA8+i}, v{vQAcc+2*i}, v{vQAcc+2*i+1}")
    a(f"""
    s_mov_b64 exec, vcc
    ds_write_b128 v{vQst}, {vr(vA8,4)} offset:{QS}
    ds_write_b128 v{vT2}, {vr(vA8+4,4)} offset:{QS}
    s_mov_b64 exec, -1
    """)
    a(f"""
    s_lshl_b32 s3, s{sWave}, 12
    s_add_u32 s{sT}, s3, {WV}
    """)
    for i in range(4):
        a(f"""
        s_mov_b32 m0, s{sT}
        s_add_u32 s{sT}, s{sT}, 1024
        buffer_load_dwordx4 v{vWl}, s[{sWV}:{sWV+3}], s3 offen lds
        s_add_u32 s3, s3, 1024
        """)
    if opt.prefetch == 4:
        a(f"""
        s_lshr_b32 s3, s2, 3
        s_mul_i32 s3, s3, 100096
        s_mul_i32 s{sT}, s{sWave}, 12544
        s_add_u32 s3, s3, s{sT}
        v_lshlrev_b32 v{vT0}, 7, v{vLane}
        {"s_sleep %d" % opt.pfsleep if opt.pfsleep else ""}
        buffer_load_dword v{vQB}, v{vT0}, s[{sX}:{sX+3}], s3 offen
        """)
        if opt.pfn > 1:
            a(f"""
            s_add_u32 s3, s3, 8192
            s_mov_b32 exec_lo, -1
            s_mov_b32 exec_hi, 3
            buffer_load_dword v{vQB}, v{vT0}, s[{sX}:{sX+3}], s3 offen
            s_mov_b64 exec, -1
            """)
    a("s_branch K2_HDRD")
    vW, vXw, vSoM, vSoX, vN4M, vN4X, vRkM, vRkX, vPos, vCn = 56, 64, 68, 76, 80, 88, 92, 100, 104, 112
    def mask(i): return (sM + 2*i) if i < 7 else 0
    a(f"""
    K2_NOQ:
    """)
    st.stamp(a)
    a(f"""
    s_sub_u32 s{sRem}, s{sWave}, 8
    s_lshl_b32 s3, s{sRem}, 11
    v_lshlrev_b32 v{vT0}, 4, v{vLane}
    v_add_u32 v{vT0}, s3, v{vT0}
    s_lshl_b32 s3, s{sBeta}, 14
    s_add_u32 s3, s3, {WS_CELLS}
    s_and_b32 s{sP}, s{sBeta}, 7
    s_lshr_b32 s{sCnt}, s{sBeta}, 5
    s_lshl_b32 s{sCnt}, s{sCnt}, 3
    s_add_u32 s{sP}, s{sP}, s{sCnt}
    s_lshl_b32 s{sP}, s{sP}, 12
    s_lshl_b32 s{sCnt}, s{sRem}, 9
    s_add_u32 s{sP}, s{sP}, s{sCnt}
    s_add_u32 s{sP}, s{sP}, {WS_EXTRA}
    v_and_b32 v{vT2}, 31, v{vLane}
    v_lshlrev_b32 v{vT2}, 4, v{vT2}
    s_mov_b32 s{sQ}, {1 << TAGSH}
    s_mov_b32 s{sNH}, {0 if opt.try1 else 1}
    s_mov_b32 s{sT}, {1 << 17}
    {"" if opt.try1 else "s_branch K1_CAN0"}
    K1_TP:
    buffer_load_dwordx4 {vr(vW,4)}, v{vT0}, s[{sWS}:{sWS+3}], s3 offen sc1
    buffer_load_dwordx4 {vr(vW+4,4)}, v{vT0}, s[{sWS}:{sWS+3}], s3 offen offset:1024 sc1
    buffer_load_dwordx4 {vr(vXw,4)}, v{vT2}, s[{sWS}:{sWS+3}], s{sP} offen sc1
    s_waitcnt vmcnt(0)
    """)
    for i in range(8): a(f"v_xor_b32 v{vW+i}, s{sTag}, v{vW+i}")
    for i in range(4): a(f"v_xor_b32 v{vXw+i}, s{sTag}, v{vXw+i}")
    a(f"""
    v_or3_b32 v{vT1}, v{vW}, v{vW+1}, v{vW+2}
    v_or3_b32 v{vT1}, v{vT1}, v{vW+3}, v{vW+4}
    v_or3_b32 v{vT1}, v{vT1}, v{vW+5}, v{vW+6}
    v_or3_b32 v{vT1}, v{vT1}, v{vW+7}, v{vXw}
    v_or3_b32 v{vT1}, v{vT1}, v{vXw+1}, v{vXw+2}
    v_or_b32 v{vT1}, v{vT1}, v{vXw+3}
    v_cmp_le_u32 vcc, s{sQ}, v{vT1}
    s_and_b64 exec, exec, vcc
    s_cbranch_execz K1_TPD
    s_sub_u32 s{sT}, s{sT}, 1
    s_cmp_eq_u32 s{sT}, 0
    s_cbranch_scc1 K1_TPD
    s_cmp_eq_u32 s{sNH}, 0
    s_cbranch_scc1 K1_CAN0
    s_sleep {opt.sleep}
    s_branch K1_TP
    K1_CAN0:
    s_mov_b32 s{sNH}, 1
    s_mov_b64 s[{sM}:{sM+1}], exec
    s_mov_b32 exec_lo, 0
    s_mov_b32 exec_hi, 0x80000000
    K1_CAN:
    buffer_load_dword v{vT1}, v{vT0}, s[{sWS}:{sWS+3}], s3 offen offset:1036 sc1
    s_waitcnt vmcnt(0)
    v_xor_b32 v{vT1}, s{sTag}, v{vT1}
    v_cmp_le_u32 vcc, s{sQ}, v{vT1}
    s_cbranch_vccz K1_CAND
    s_sleep {opt.sleep}
    s_sub_u32 s{sT}, s{sT}, 1
    s_cmp_lg_u32 s{sT}, 0
    s_cbranch_scc1 K1_CAN
    K1_CAND:
    s_mov_b64 exec, s[{sM}:{sM+1}]
    s_cmp_lg_u32 s{sT}, 0
    s_cbranch_scc1 K1_TP
    K1_TPD:
    s_mov_b64 exec, -1
    v_mov_b32 v{vT1}, {EMPTY}
    v_cmp_gt_u32 vcc, 32, v{vLane}
    v_and_b32 v{vT0}, 31, v{vLane}
    v_lshlrev_b32 v{vT0}, 4, v{vT0}
    """)
    for i in range(4): a(f"v_cndmask_b32_e64 v{vXw+i}, v{vT1}, v{vXw+i}, vcc")
    a(f"""
    v_and_b32 v{vT1}, {1 << 22}, v{vXw+3}
    v_cmp_ne_u32 vcc, 0, v{vT1}
    s_cbranch_vccz K1_NOXP
    s_mov_b64 exec, vcc
    s_lshl_b32 s3, s{sRem}, 9
    s_add_u32 s3, s3, {WS_OVH}
    s_mov_b32 s{sT}, {1 << 17}
    K1_HP:
    buffer_load_dwordx4 {vr(vPos,4)}, v{vT0}, s[{sWS}:{sWS+3}], s3 offen sc1
    s_waitcnt vmcnt(0)
    v_xor_b32 v{vT2}, s{sTag}, v{vPos}
    v_xor_b32 v{vPos+1}, v{vPos}, v{vPos+1}
    v_xor_b32 v{vPos+2}, v{vPos}, v{vPos+2}
    v_xor_b32 v{vPos+3}, v{vPos}, v{vPos+3}
    v_or3_b32 v{vPos+1}, v{vPos+1}, v{vPos+2}, v{vPos+3}
    v_cmp_ne_u32 s[{sM}:{sM+1}], 0, v{vPos+1}
    v_cmp_le_u32 vcc, s{sQ}, v{vT2}
    s_or_b64 vcc, vcc, s[{sM}:{sM+1}]
    s_cbranch_vccz K1_HPD
    s_sleep 2
    s_sub_u32 s{sT}, s{sT}, 1
    s_cmp_lg_u32 s{sT}, 0
    s_cbranch_scc1 K1_HP
    K1_HPD:
    v_min_u32 v{vT2}, {CH}, v{vT2}
    s_lshl_b32 s3, s{sRem}, 7
    s_add_u32 s3, s3, {MF}
    v_lshlrev_b32 v{vT1}, 2, v{vLane}
    v_add_u32 v{vT1}, s3, v{vT1}
    ds_write_b32 v{vT1}, v{vT2}
    v_mov_b32 v{vT1}, {MAXC}
    ds_max_u32 v{vT1}, v{vT2}
    s_mov_b64 exec, -1
    K1_NOXP:
    v_mov_b32 v{vT3}, 1
    """)
    st.stamp(a)
    a("K2_DECODE:")
    for i in range(8):
        m = mask(i)
        a(f"""
        v_lshlrev_b32 v{vN4M+i}, 2, v{vW+i}
        v_and_b32 v{vN4M+i}, 0xfc, v{vN4M+i}
        v_cmp_gt_u32 s[{m}:{m+1}], s{s196}, v{vN4M+i}
        v_and_b32 v{vSoM+i}, 0x003fff00, v{vW+i}
        """)
        if i >= 1:
            mp = mask(i-1)
            a(f"""
            s_mov_b64 exec, s[{mp}:{mp+1}]
            ds_add_rtn_u32 v{vRkM+i-1}, v{vN4M+i-1}, v{vT3} offset:{HIST}
            s_mov_b64 exec, -1
            """)
    a(f"""
    s_mov_b64 exec, s[{mask(7)}:{mask(7)+1}]
    ds_add_rtn_u32 v{vRkM+7}, v{vN4M+7}, v{vT3} offset:{HIST}
    s_mov_b64 exec, -1
    s_mov_b64 s[{sM+14}:{sM+15}], 0
    s_cmp_eq_u32 s{sR}, 0
    s_cbranch_scc0 K2_HDRD
    v_and_b32 v{vT0}, v{vXw}, v{vXw+1}
    v_and_b32 v{vT1}, v{vXw+2}, v{vXw+3}
    v_and_b32 v{vT0}, v{vT0}, v{vT1}
    v_and_b32 v{vT0}, 63, v{vT0}
    v_cmp_ne_u32 vcc, 63, v{vT0}
    s_cbranch_vccz K2_HDRD
    s_bfe_u32 s{sT}, s{sBeta}, 0x20003
    """)
    for i in range(4):
        w, m = vXw + i, sM2 + 2*i
        a(f"""
        v_bfe_u32 v{vT0}, v{w}, 6, 2
        v_cmp_eq_u32 vcc, s{sT}, v{vT0}
        v_mov_b32 v{vT1}, {EMPTY}
        v_and_b32 v{vT2}, 0x003fff3f, v{w}
        s_nop 0
        v_cndmask_b32_e64 v{w}, v{vT1}, v{vT2}, vcc
        v_lshlrev_b32 v{vN4X+i}, 2, v{w}
        v_and_b32 v{vN4X+i}, 0xfc, v{vN4X+i}
        v_cmp_gt_u32 s[{m}:{m+1}], s{s196}, v{vN4X+i}
        v_and_b32 v{vSoX+i}, 0x003fff00, v{w}
        """)
    a(f"""
    s_or_b64 s[{sM+14}:{sM+15}], s[{sM2}:{sM2+1}], s[{sM2+2}:{sM2+3}]
    s_or_b64 s[{sM+14}:{sM+15}], s[{sM+14}:{sM+15}], s[{sM2+4}:{sM2+5}]
    s_or_b64 s[{sM+14}:{sM+15}], s[{sM+14}:{sM+15}], s[{sM2+6}:{sM2+7}]
    s_cbranch_scc0 K2_HDRD
    """)
    for i in range(4):
        m = sM2 + 2*i
        a(f"""
        s_mov_b64 exec, s[{m}:{m+1}]
        ds_add_rtn_u32 v{vRkX+i}, v{vN4X+i}, v{vT3} offset:{HIST}
        """)
    a(f"""
    s_mov_b64 exec, -1
    K2_HDRD:
    s_waitcnt lgkmcnt(0)
    s_barrier
    """)
    st.stamp(a)
    if opt.prefetch == 5:
        a(f"""
        s_cmp_ge_u32 s{sWave}, 8
        s_cbranch_scc1 K2_NOPF5
        s_waitcnt vmcnt(0)
        s_sub_u32 s3, s{sWave}, {8 - opt.pfn}
        s_cmp_ge_u32 s3, {opt.pfn}
        s_cbranch_scc1 K2_NOPF5
        s_lshl_b32 s{sT}, s3, {opt.pfsh + 6}
        s_lshr_b32 s3, s2, 3
        s_mul_i32 s3, s3, 100096
        s_add_u32 s3, s3, s{sT}
        v_lshlrev_b32 v{vT0}, {opt.pfsh}, v{vLane}
        buffer_load_dword v{vQB}, v{vT0}, s[{sX}:{sX+3}], s3 offen
        K2_NOPF5:
        """)
    a(f"""
    v_lshlrev_b32 v{vT2}, 2, v{vLane}
    ds_read_b32 v{vCn}, v{vT2} offset:{HIST}
    s_lshl_b32 s{sT}, s{sWave}, 2
    s_waitcnt lgkmcnt(0)
    v_add_u32 v{vPc}, 3, v{vCn}
    v_and_b32 v{vPc}, -4, v{vPc}
    v_mov_b32 v{vStart}, v{vPc}
    v_cmp_lt_u32 vcc, s{sT}, v{vPc}
    s_nop 0
    """)
    steps = ["row_shr:1 row_mask:0xf bank_mask:0xf bound_ctrl:1", "row_shr:2 row_mask:0xf bank_mask:0xf bound_ctrl:1",
             "row_shr:4 row_mask:0xf bank_mask:0xf bound_ctrl:1", "row_shr:8 row_mask:0xf bank_mask:0xf bound_ctrl:1",
             "row_bcast:15 row_mask:0xa bank_mask:0xf", "row_bcast:31 row_mask:0xc bank_mask:0xf"]
    for i, stp in enumerate(steps):
        a(f"v_add_u32_dpp v{vStart}, v{vStart}, v{vStart} {stp}")
        a("s_nop 1" if i < 5 else "s_nop 0")
    a(f"""
    v_readlane_b32 s{sCnt}, v{vStart}, 63
    v_sub_u32 v{vStart}, v{vStart}, v{vPc}
    s_cmp_lt_u32 s{sWave}, 8
    s_cbranch_scc1 K2_NOBP
    """)
    for i in range(8):
        a(f"ds_bpermute_b32 v{vPos+i}, v{vN4M+i}, v{vStart}")
    a(f"""
    K2_NOBP:
    v_add_u32 v{vT0}, s{sT}, v{vStart}
    s_mov_b64 exec, vcc
    ds_write_b32 v{vT0}, v{vUA} offset:{UNODE}
    s_mov_b64 exec, -1
    v_cmp_lt_u32 vcc, 64, v{vPc}
    s_cbranch_vccz K2_UND
    K2_UN:
    s_add_u32 s{sT}, s{sT}, 64
    v_cmp_lt_u32 vcc, s{sT}, v{vPc}
    s_cbranch_vccz K2_UND
    v_add_u32 v{vT0}, s{sT}, v{vStart}
    s_mov_b64 exec, vcc
    ds_write_b32 v{vT0}, v{vUA} offset:{UNODE}
    s_mov_b64 exec, -1
    s_branch K2_UN
    K2_UND:
    s_cmp_gt_u32 s{sWave}, 4
    s_cbranch_scc1 K2_NOPAD
    v_mov_b32 v{vT2}, {OOB}
    s_cmp_gt_u32 s{sWave}, 2
    s_cbranch_scc1 K2_TAILPAD
    v_sub_u32 v{vT1}, v{vPc}, v{vCn}
    v_add_u32 v{vT0}, v{vStart}, v{vCn}
    v_cmp_lt_u32 vcc, s{sWave}, v{vT1}
    v_add_u32 v{vT0}, s{sWave}, v{vT0}
    v_lshlrev_b32 v{vT0}, 2, v{vT0}
    s_mov_b64 exec, vcc
    ds_write_b32 v{vT0}, v{vT2} offset:{LIST}
    s_mov_b64 exec, -1
    s_branch K2_NOPAD
    K2_TAILPAD:
    v_lshlrev_b32 v{vT1}, 2, v{vLane}
    s_cmp_eq_u32 s{sWave}, 3
    s_cbranch_scc0 K2_TAILU
    s_lshl_b32 s{sT}, s{sCnt}, 2
    v_add_u32 v{vT0}, s{sT}, v{vT1}
    s_mov_b64 exec, 0xfffffff
    ds_write_b32 v{vT0}, v{vT2} offset:{LIST}
    s_mov_b64 exec, -1
    s_branch K2_NOPAD
    K2_TAILU:
    v_add_u32 v{vT0}, s{sCnt}, v{vT1}
    v_mov_b32 v{vT2}, {DUMMY*256 + 16*((DUMMY & 3) | (12*((DUMMY >> 2) & 1)))}
    s_mov_b64 exec, 0x7f
    ds_write_b32 v{vT0}, v{vT2} offset:{UNODE}
    s_mov_b64 exec, -1
    K2_NOPAD:
    s_add_u32 s3, s{sCnt}, 31
    s_lshr_b32 s3, s3, 5
    s_lshr_b32 s{sQ}, s3, 4
    s_and_b32 s{sRem}, s3, 15
    s_cmp_lt_u32 s{sWave}, s{sRem}
    s_cselect_b32 s{sNH}, 1, 0
    s_add_u32 s{sHB}, s{sQ}, s{sNH}
    s_min_u32 s3, s{sRem}, s{sWave}
    s_mul_i32 s{sT}, s{sQ}, s{sWave}
    s_add_u32 s{sT}, s{sT}, s3
    v_lshrrev_b32 v{vT0}, 4, v{vLane}
    s_lshl_b32 s3, s{sHB}, 1
    v_mul_u32_u24 v{vT0}, s3, v{vT0}
    s_lshl_b32 s3, s{sT}, 3
    v_add_u32 v{vT0}, s3, v{vT0}
    v_lshlrev_b32 v{vLA}, 4, v{vT0}
    v_lshlrev_b32 v{vUA}, 2, v{vT0}
    s_cmp_lt_u32 s{sWave}, 8
    s_cbranch_scc1 K2_SC_Q
    s_waitcnt lgkmcnt(0)
    """)
    for i in range(8):
        a(f"v_add_lshl_u32 v{vPos+i}, v{vPos+i}, v{vRkM+i}, 2")
    for i in range(8):
        m = mask(i)
        a(f"s_mov_b64 exec, s[{m}:{m+1}]")
        a(f"ds_write_b32 v{vPos+i}, v{vSoM+i} offset:{LIST}")
    a(f"""
    s_mov_b64 exec, -1
    s_cmp_eq_u64 s[{sM+14}:{sM+15}], 0
    s_cbranch_scc1 K2_SORT_DONE
    """)
    for i in range(4):
        a(f"ds_bpermute_b32 v{vPos+i}, v{vN4X+i}, v{vStart}")
    a("s_waitcnt lgkmcnt(0)")
    for i in range(4):
        a(f"""
        v_add_lshl_u32 v{vPos+i}, v{vPos+i}, v{vRkX+i}, 2
        s_mov_b64 exec, s[{sM2+2*i}:{sM2+2*i+1}]
        ds_write_b32 v{vPos+i}, v{vSoX+i} offset:{LIST}
        s_mov_b64 exec, -1
        """)
    a(f"""
    s_branch K2_SORT_DONE
    K2_SC_Q:
    {'s_waitcnt vmcnt(%d)' % (opt.pfn if opt.prefetch == 4 else 0) if opt.prefetch != 5 else ''}
    K2_SORT_DONE:
    """)
    st.stamp(a)
    a(f"""
    s_waitcnt lgkmcnt(0)
    s_barrier
    """)
    st.stamp(a)
    if "cyc" in opt.exp: st.stamp(a, True)
    if opt.prio in (1, 3): a("s_setprio 3")
    if opt.prio == 2:
        a(f"""
        s_cmp_ge_u32 s{sWave}, 4
        s_cbranch_scc0 K2_SP
        s_setprio 1
        s_cmp_ge_u32 s{sWave}, 8
        s_cbranch_scc0 K2_SP
        s_setprio 2
        s_cmp_ge_u32 s{sWave}, 12
        s_cbranch_scc0 K2_SP
        s_setprio 3
        K2_SP:
        """)
    a(f"""
    s_cmp_eq_u32 s{sHB}, 0
    s_cbranch_scc1 K2_NOMAIN
    ds_read_b128 {vr(vE,4)}, v{vLA} offset:{LIST}
    ds_read_b128 {vr(vE+4,4)}, v{vLA} offset:{LIST+16}
    ds_read_b64 {vr(vQC,2)}, v{vUA} offset:{UNODE}
    """)
    for i in range(8):
        a(f"v_mov_b32 v{vAcc+i}, 0")
    a("s_waitcnt lgkmcnt(1)")
    for u in range(8):
        a(f"v_add_u32 v{vE+u}, v{vE+u}, v{vC16}")
        a(f"buffer_load_dwordx4 {vr(vXA+4*u,4)}, v{vE+u}, s[{sX}:{sX+3}], 0 offen")
        if u == 0:
            a(f"""
            s_waitcnt lgkmcnt(0)
            v_xor_b32 v{vT0}, v{vQC}, v{vC16}
            v_xor_b32 v{vT1}, v{vQC+1}, v{vC16}
            ds_read_b128 {vr(vQ,4)}, v{vT0} offset:{QS}
            ds_read_b128 {vr(vQ+4,4)}, v{vT1} offset:{QS}
            v_mov_b32 v{vPrev}, v{vQC}
            """)
    if "bstamp" in opt.exp: st.stamp(a)
    wv_id = [0]
    def wv_dma():
        i = wv_id[0]; wv_id[0] += 1
        a(f"""
        s_cmp_eq_u32 s{sR}, 0
        s_cbranch_scc0 K2_NOWV{i}
        s_lshl_b32 s3, s{sWave}, 11
        s_add_u32 s{sT}, s3, {WV}
        s_mov_b32 m0, s{sT}
        s_add_u32 s{sT}, s{sT}, 1024
        buffer_load_dwordx4 v{vWl}, s[{sWV}:{sWV+3}], s3 offen lds
        s_mov_b32 m0, s{sT}
        s_add_u32 s3, s3, 1024
        buffer_load_dwordx4 v{vWl}, s[{sWV}:{sWV+3}], s3 offen lds
        K2_NOWV{i}:
        """)
    flush_id = [0]
    def flush(prev, masked):
        fid = flush_id[0]; flush_id[0] += 1
        t = ""
        if masked is not None:
            t += f"""
            v_cmp_ne_u32 vcc, v{masked}, v{prev}
            s_cbranch_vccz K2_FL{fid}
            s_mov_b64 exec, vcc
            """
        t += f"""
        v_and_b32 v{vT0}, 0xffffff00, v{prev}
        v_lshl_add_u32 v{vT0}, v{vT0}, 1, v{vPB}
        ds_write_b128 v{vT0}, {vr(vAcc,4)}
        ds_write_b128 v{vT0}, {vr(vAcc+4,4)} offset:256
        """
        if masked is not None:
            for i in range(8):
                t += f"v_mov_b32 v{vAcc+i}, 0\n"
            t += f"""
            s_mov_b64 exec, -1
            K2_FL{fid}:
            """
        return t
    def dots(X, waits):
        for half in range(2):
            a(waits[half])
            if "nodots" in opt.exp: continue
            for r in range(4):
                for u in range(4*half, 4*half+4):
                    if r == 0:
                        a(f"v_dot2_f32_bf16 v{vP+u}, v{X+4*u}, v{vQ+4*half}, 0")
                    else:
                        a(f"v_dot2c_f32_bf16 v{vP+u}, v{X+4*u+r}, v{vQ+4*half+r}")
    def chain(al):
        c = []
        for j in range(4):
            c.append(f"v_add_f32_dpp v{vP+j}, v{vP+j}, v{vP+j} row_mirror row_mask:0xf bank_mask:0x3")
        for j in range(4):
            c.append(f"v_add_f32_dpp v{vP+j}, v{vP+j+4}, v{vP+j+4} row_mirror row_mask:0xf bank_mask:0xc")
        for j in range(2):
            c.append(f"v_add_f32_dpp v{vP+j}, v{vP+j}, v{vP+j} row_half_mirror row_mask:0xf bank_mask:0x5")
        for j in range(2):
            c.append(f"v_add_f32_dpp v{vP+j}, v{vP+j+2}, v{vP+j+2} row_half_mirror row_mask:0xf bank_mask:0xa")
        c.append(f"v_add_f32_dpp v{vP+2}, v{vP}, v{vP} quad_perm:[1,0,3,2] row_mask:0xf bank_mask:0xf")
        c.append(f"v_add_f32_dpp v{vP+3}, v{vP+1}, v{vP+1} quad_perm:[1,0,3,2] row_mask:0xf bank_mask:0xf")
        c.append(f"v_cndmask_b32_e64 v{vP}, v{vP+2}, v{vP+3}, s[{sOdd}:{sOdd+1}]")
        c.append(f"v_add_f32_dpp v{vP}, v{vP}, v{vP} quad_perm:[2,3,0,1] row_mask:0xf bank_mask:0xf")
        if opt.mimic:
            c += [f"v_cvt_pk_bf16_f32 v{vP}, v{vP}, v{vP}", f"v_and_b32 v{vP}, 0xffff0000, v{vP}",
                  f"v_mul_f32 v{vP}, 0x3db504f3, v{vP}", f"v_cvt_pk_bf16_f32 v{vP}, v{vP}, v{vP}",
                  f"v_and_b32 v{vP}, 0xffff0000, v{vP}", f"v_mul_f32 v{vP}, 0xbfb8aa3b, v{vP}"]
        else:
            c.append(f"v_mul_f32 v{vP}, 0xbe0293ee, v{vP}")
        c += [f"v_exp_f32 v{vP}, v{vP}", f"v_add_f32 v{vP}, 1.0, v{vP}", f"v_rcp_f32 v{vP}, v{vP}",
              f"v_cvt_pk_bf16_f32 v{al}, v{vP}, 0", f"v_cvt_pk_bf16_f32 v{al+1}, 0, v{vP}"]
        return c
    def chain_alone(al):
        c = chain(al)
        gaps = {9: 1, 11: 1, 14: 2, 17 + (5 if opt.mimic else 0): 1, 19 + (5 if opt.mimic else 0): 1}
        for i, ins in enumerate(c):
            a(ins)
            if i in gaps: a(f"s_nop {gaps[i]-1}")
    def agg_stream(X, al, loads, Xdst, qp=None):
        out = []
        qp = vQP if qp is None else qp
        for half in range(2):
            if half == 0:
                out.append(('x', flush(vPrev, qp)))
            else:
                out.append(('x', "s_nop 1\n" + flush(qp, qp+1)))
            for u in range(4*half, 4*half+4):
                k = 4*(u >> 1) + (u & 1)
                for r in range(4):
                    if "noagg" in opt.exp:
                        out.append(('v', "s_nop 0")); out.append(('v', "s_nop 0")); continue
                    out.append(('v', f"v_dot2c_f32_bf16_dpp v{vAcc+2*r}, v{al}, v{X+4*u+r} row_newbcast:{k} row_mask:0xf bank_mask:0xf"))
                    out.append(('v', f"v_dot2c_f32_bf16_dpp v{vAcc+2*r+1}, v{al+1}, v{X+4*u+r} row_newbcast:{k} row_mask:0xf bank_mask:0xf"))
                if loads and "noload" not in opt.exp:
                    out.append(('x', f"buffer_load_dwordx4 {vr(Xdst+4*u,4)}, v{vE+u}, s[{sX}:{sX+3}], 0 offen"))
        return out
    def next_prep():
        a("s_waitcnt lgkmcnt(0)")
        a(f"v_xor_b32 v{vT0}, v{vQN}, v{vC16}")
        a(f"v_xor_b32 v{vT1}, v{vQN+1}, v{vC16}")
    def rotate(nxt):
        a(f"v_mov_b32 v{vQP}, v{vQC}")
        a(f"v_mov_b32 v{vQP+1}, v{vQC+1}")
        if nxt:
            a(f"v_mov_b32 v{vQC}, v{vQN}")
            a(f"v_mov_b32 v{vQC+1}, v{vQN+1}")
            a(f"v_add_u32 v{vLA}, 32, v{vLA}")
            a(f"v_add_u32 v{vUA}, 8, v{vUA}")
    def mid(cur, prev, al_cur, al_prev, nxt):
        a("s_waitcnt lgkmcnt(0)")
        if nxt:
            a(f"""
            ds_read_b128 {vr(vE,4)}, v{vLA} offset:{LIST+32}
            ds_read_b128 {vr(vE+4,4)}, v{vLA} offset:{LIST+48}
            ds_read_b64 {vr(vQN,2)}, v{vUA} offset:{UNODE+8}
            """)
        dots(cur, ("s_waitcnt vmcnt(4)", "s_waitcnt vmcnt(0)"))
        if nxt:
            next_prep()
            for u in range(8):
                a(f"v_add_u32 v{vE+u}, v{vE+u}, v{vC16}")
            a(f"ds_read_b128 {vr(vQ,4)}, v{vT0}")
            a(f"ds_read_b128 {vr(vQ+4,4)}, v{vT1}")
        else:
            a("s_nop 2")
        c = chain(al_cur)
        s_ = agg_stream(prev, al_prev, nxt, prev)
        nv = sum(1 for k, _ in s_ if k == 'v')
        ci, vi = 0, 0
        for k, t in s_:
            a(t)
            if k == 'v':
                vi += 1
                if ci < len(c) and vi >= (ci + 1) * nv // (len(c) + 1) and vi % 1 == 0:
                    a(c[ci]); ci += 1
        assert ci == len(c)
        a(f"v_mov_b32 v{vPrev}, v{vQP+1}")
        rotate(nxt)
    def final(X, al):
        for k, t in agg_stream(X, al, False, None):
            a(t)
        a("s_nop 2")
        a(flush(vQP+1, None))
        a("s_branch K2_MAIN_DONE")
    def roll_body(nxt):
        al = vAl[0]
        a("s_waitcnt lgkmcnt(0)")
        if nxt:
            a(f"""
            ds_read_b128 {vr(vE,4)}, v{vLA} offset:{LIST+32}
            ds_read_b128 {vr(vE+4,4)}, v{vLA} offset:{LIST+48}
            ds_read_b64 {vr(vQN,2)}, v{vUA} offset:{UNODE+8}
            """)
        dots(vXA, ("s_waitcnt vmcnt(4)", "s_waitcnt vmcnt(0)"))
        fill = []
        if nxt:
            next_prep()
            a(f"v_add_u32 v{vE}, v{vE}, v{vC16}")
            fill = [f"v_add_u32 v{vE+u}, v{vE+u}, v{vC16}" for u in range(1, 8)]
        else:
            a("s_nop 2")
        c = chain(al)
        gaps = {11: 1, 14: 2, 17 + (5 if opt.mimic else 0): 1, 19 + (5 if opt.mimic else 0): 1}
        for i, ins in enumerate(c):
            a(ins)
            if i == 3 and nxt:
                a(f"ds_read_b128 {vr(vQ,4)}, v{vT0} offset:{QS}")
                a(f"ds_read_b128 {vr(vQ+4,4)}, v{vT1} offset:{QS}")
            for _ in range(gaps.get(i, 0)):
                a(fill.pop(0) if fill else "s_nop 0")
        while fill: a(fill.pop(0))
        a("s_nop 0")
        for k, t in agg_stream(vXA, al, nxt, vXA, vQC):
            a(t)
        a(f"v_mov_b32 v{vPrev}, v{vQC+1}")
        if nxt:
            a(f"v_mov_b32 v{vQC}, v{vQN}")
            a(f"v_mov_b32 v{vQC+1}, v{vQN+1}")
            a(f"v_add_u32 v{vLA}, 32, v{vLA}")
            a(f"v_add_u32 v{vUA}, 8, v{vUA}")
    if opt.style == "roll":
        a(f"""
        s_cmp_eq_u32 s{sHB}, 1
        s_cbranch_scc1 K2_LAST
        K2_LOOP:
        """)
        if opt.prio == 1:
            a(f"""
            s_cmp_ge_u32 s{sHB}, 4
            s_cbranch_scc1 K2_PR0
            s_setprio 2
            s_cmp_eq_u32 s{sHB}, 3
            s_cbranch_scc1 K2_PR0
            s_setprio 1
            K2_PR0:
            """)
        if opt.prio == 3:
            a(f"""
            s_cmp_ge_u32 s{sHB}, 3
            s_cbranch_scc1 K2_PR0
            s_setprio 2
            K2_PR0:
            """)
        roll_body(True)
        a(f"""
        s_sub_u32 s{sHB}, s{sHB}, 1
        s_cmp_gt_u32 s{sHB}, 1
        s_cbranch_scc1 K2_LOOP
        K2_LAST:
        """)
        if opt.prio == 1: a("s_setprio 0")
        if opt.prio == 3: a("s_setprio 1")
        roll_body(False)
        a("s_nop 2")
        a(flush(vPrev, None))
    else:
        def body2(cur, oth, qc, qn, first, has1, has2):
            al = vAl[0]
            a("s_waitcnt lgkmcnt(0)")
            if has1:
                a(f"ds_read_b64 {vr(qn,2)}, v{vUA} offset:{UNODE+8}")
                if first:
                    a(f"ds_read_b128 {vr(vE,4)}, v{vLA} offset:{LIST+32}")
                    a(f"ds_read_b128 {vr(vE+4,4)}, v{vLA} offset:{LIST+48}")
            if has2 and not first:
                a(f"ds_read_b128 {vr(vE,4)}, v{vLA} offset:{LIST+64}")
                a(f"ds_read_b128 {vr(vE+4,4)}, v{vLA} offset:{LIST+80}")
            if first or not has1: waits = ("s_waitcnt vmcnt(4)", "s_waitcnt vmcnt(0)")
            else: waits = ("s_waitcnt vmcnt(12)", "s_waitcnt vmcnt(8)")
            dots(cur, waits)
            fill = []
            if has1:
                a("s_waitcnt lgkmcnt(0)")
                a(f"v_xor_b32 v{vT0}, v{qn}, v{vC16}")
                a(f"v_xor_b32 v{vT1}, v{qn+1}, v{vC16}")
                if first:
                    for u in range(8):
                        a(f"v_add_u32 v{vE+u}, v{vE+u}, v{vC16}")
                        a(f"buffer_load_dwordx4 {vr(oth+4*u,4)}, v{vE+u}, s[{sX}:{sX+3}], 0 offen")
                    if has2:
                        a(f"ds_read_b128 {vr(vE,4)}, v{vLA} offset:{LIST+64}")
                        a(f"ds_read_b128 {vr(vE+4,4)}, v{vLA} offset:{LIST+80}")
                elif has2:
                    a(f"v_add_u32 v{vE}, v{vE}, v{vC16}")
                    fill = [f"v_add_u32 v{vE+u}, v{vE+u}, v{vC16}" for u in range(1, 8)]
                else:
                    a("s_nop 0")
            else:
                a("s_nop 2")
            c = chain(al)
            gaps = {11: 1, 14: 2, 17 + (5 if opt.mimic else 0): 1, 19 + (5 if opt.mimic else 0): 1}
            for i, ins in enumerate(c):
                a(ins)
                if i == 3 and has1:
                    a(f"ds_read_b128 {vr(vQ,4)}, v{vT0} offset:{QS}")
                    a(f"ds_read_b128 {vr(vQ+4,4)}, v{vT1} offset:{QS}")
                for _ in range(gaps.get(i, 0)):
                    a(fill.pop(0) if fill else "s_nop 0")
            while fill: a(fill.pop(0))
            if first and has2:
                a("s_waitcnt lgkmcnt(2)")
                for u in range(8):
                    a(f"v_add_u32 v{vE+u}, v{vE+u}, v{vC16}")
            else:
                a("s_nop 0")
            for k, t in agg_stream(cur, al, has2, cur, qc):
                a(t)
            a(f"v_mov_b32 v{vPrev}, v{qc+1}")
            if has1:
                a(f"v_add_u32 v{vLA}, 32, v{vLA}")
                a(f"v_add_u32 v{vUA}, 8, v{vUA}")
        def last2(cur, oth, qc, qn):
            if opt.prio: a("s_setprio 0")
            body2(cur, oth, qc, qn, False, False, False)
            a("s_nop 2")
            a(flush(vPrev, None))
            a("s_branch K2_MAIN_DONE")
        qA, qB = vQC, vQN
        a(f"""
        s_cmp_eq_u32 s{sHB}, 1
        s_cbranch_scc1 K2_LA
        s_cmp_eq_u32 s{sHB}, 2
        s_cbranch_scc1 K2_F2
        """)
        body2(vXA, vXB, qA, qB, True, True, True)
        a(f"""
        s_sub_u32 s{sHB}, s{sHB}, 1
        K2_LOOP:
        s_cmp_eq_u32 s{sHB}, 2
        s_cbranch_scc1 K2_PB
        """)
        if opt.prio: a("s_setprio 2")
        body2(vXB, vXA, qB, qA, False, True, True)
        a(f"""
        s_sub_u32 s{sHB}, s{sHB}, 1
        s_cmp_eq_u32 s{sHB}, 2
        s_cbranch_scc1 K2_PA
        """)
        body2(vXA, vXB, qA, qB, False, True, True)
        a(f"""
        s_sub_u32 s{sHB}, s{sHB}, 1
        s_branch K2_LOOP
        K2_PB:
        """)
        if opt.prio: a("s_setprio 1")
        body2(vXB, vXA, qB, qA, False, True, False)
        a("K2_LA:")
        last2(vXA, vXB, qA, qB)
        a("K2_PA:")
        if opt.prio: a("s_setprio 1")
        body2(vXA, vXB, qA, qB, False, True, False)
        a("K2_LB:")
        last2(vXB, vXA, qB, qA)
        a("K2_F2:")
        body2(vXA, vXB, qA, qB, True, True, False)
        a("s_branch K2_LB")
    a("s_branch K2_MAIN_DONE")
    a("K2_NOMAIN:")
    a("K2_MAIN_DONE:")
    if opt.prio: a("s_setprio 0")
    if "cyc" in opt.exp: st.stamp(a, True)
    st.stamp(a)
    a(f"""
    s_cmp_eq_u32 s{sR}, 0
    s_cbranch_scc0 K2_NRDONE
    v_mov_b32 v{vT3}, {MAXC}
    ds_read_b32 v{vT3}, v{vT3}
    s_waitcnt lgkmcnt(0)
    v_readfirstlane_b32 s3, v{vT3}
    s_nop 3
    s_min_u32 s3, s3, {CH}
    s_add_u32 s3, s3, 7
    s_lshr_b32 s3, s3, 3
    s_add_u32 s{sNR}, s3, 1
    K2_NRDONE:
    """)
    vSf, vSl = vE, vE+1
    a(f"""
    s_cmp_eq_u32 s{sWave}, 0
    s_cbranch_scc0 K2_NOTBL
    s_add_u32 s3, s{sQ}, 1
    s_lshl_b32 s3, s3, 1
    v_cvt_f32_u32 v{vT0}, s3
    s_mul_i32 s3, s3, s{sRem}
    s_lshl_b32 s{sP}, s3, 2
    s_lshl_b32 s3, s{sQ}, 1
    v_cvt_f32_u32 v{vT1}, s3
    v_rcp_f32 v{vT0}, v{vT0}
    v_rcp_f32 v{vT1}, v{vT1}
    s_lshl_b32 s3, s{sRem}, 2
    """)
    for (dst, last) in ((vSf, False), (vSl, True)):
        if not last:
            a(f"v_lshrrev_b32 v{vT2}, 2, v{vStart}")
        else:
            a(f"""
            v_add_u32 v{vT2}, v{vStart}, v{vPc}
            v_lshrrev_b32 v{vT2}, 2, v{vT2}
            v_add_u32 v{vT2}, -1, v{vT2}
            """)
        a(f"""
        v_cmp_gt_u32 vcc, s{sP}, v{vT2}
        v_cvt_f32_u32 v{vT3}, v{vT2}
        v_add_f32 v{vT3}, 0.5, v{vT3}
        v_mul_f32 v{vT3}, v{vT3}, v{vT0}
        v_cvt_u32_f32 v{vT3}, v{vT3}
        v_subrev_u32 v{vT2}, s{sP}, v{vT2}
        v_cvt_f32_u32 v{vT2}, v{vT2}
        v_add_f32 v{vT2}, 0.5, v{vT2}
        v_mul_f32 v{vT2}, v{vT2}, v{vT1}
        v_cvt_u32_f32 v{vT2}, v{vT2}
        v_add_u32 v{vT2}, s3, v{vT2}
        v_cndmask_b32_e64 v{dst}, v{vT2}, v{vT3}, vcc
        """)
    a(f"""
    v_sub_u32 v{vT0}, v{vSl}, v{vSf}
    v_add_u32 v{vT0}, 1, v{vT0}
    v_cmp_lt_u32 vcc, 0, v{vPc}
    v_add_u32 v{vT1}, v{vSf}, v{vLane}
    v_lshlrev_b32 v{vT1}, 9, v{vT1}
    v_cndmask_b32_e64 v{vT0}, 0, v{vT0}, vcc
    v_add_u32 v{vT1}, {PIECE}, v{vT1}
    v_lshlrev_b32 v{vT3}, 2, v{vLane}
    v_mov_b32 v{vT2}, {ZROW}
    ds_write_b32 v{vT3}, v{vT0} offset:{NPC}
    """)
    for j in range(4):
        a(f"""
        v_cmp_lt_u32 vcc, {j}, v{vT0}
        v_add_u32 v{vT3}, {512*j}, v{vT1}
        s_nop 0
        v_cndmask_b32_e64 v{vE+4+j}, v{vT2}, v{vT3}, vcc
        """)
    a(f"""
    v_lshlrev_b32 v{vT0}, 4, v{vLane}
    ds_write_b128 v{vT0}, {vr(vE+4,4)} offset:{TBL}
    K2_NOTBL:
    """)
    vA8 = vXB
    a(f"""
    s_cmp_ge_u32 s{sWave}, 8
    s_cbranch_scc1 K2_NOAA
    s_and_b32 s{sP}, s{sWave}, 3
    s_lshr_b32 s{sNH}, s{sWave}, 2
    """)
    tile_a_addr(a, vWa, vLane, vT2, vT3, sP, WV)
    for ks in range(8):
        if ks == 6: a("s_waitcnt lgkmcnt(4)")
        a(f"ds_read_b64_tr_b16 {vr(vA8+4*ks,2)}, v{vWa} offset:{ks*4096}")
        a(f"ds_read_b64_tr_b16 {vr(vA8+4*ks+2,2)}, v{vWa} offset:{ks*4096 + 1024}")
    a(f"""
    v_and_b32 v{vRow}, 31, v{vLane}
    s_lshl_b32 s3, s{sNH}, 5
    v_add_u32 v{vRow}, s3, v{vRow}
    """)
    tile_b_addr(a, vBa, vRow, vLane, vT3)
    vTa, vNa, vWb, vOut = 80, 81, 82, 83
    for ks in range(8):
        a(f"v_xor_b32 v{vQ+ks}, {32*ks}, v{vBa}")
    a(f"""
    s_mul_i32 s3, s{sBeta}, {T*256}
    s_lshl_b32 s{sCnt}, s{sP}, 6
    s_add_u32 s3, s3, s{sCnt}
    v_lshrrev_b32 v{vT0}, 5, v{vLane}
    v_lshlrev_b32 v{vOut}, 8, v{vRow}
    v_lshl_add_u32 v{vOut}, v{vT0}, 5, v{vOut}
    v_add_u32 v{vOut}, s3, v{vOut}
    K2_NOAA:
    v_lshrrev_b32 v{vT0}, 4, v{vLane}
    s_lshl_b32 s3, s{sWave}, 2
    v_add_u32 v{vT0}, s3, v{vT0}
    v_lshlrev_b32 v{vTa}, 4, v{vT0}
    v_lshlrev_b32 v{vNa}, 2, v{vT0}
    v_xor_b32 v{vWb}, v{vTa}, v{vC16}
    v_and_b32 v{vWb}, 0xf0, v{vWb}
    v_lshl_add_u32 v{vWb}, v{vT0}, 8, v{vWb}
    s_waitcnt lgkmcnt(0)
    s_barrier
    """)
    st.stamp(a)
    vB = vE
    vRd = vXA
    vNp = vT3
    a(f"""
    s_cmp_ge_u32 s{sWave}, 13
    s_cbranch_scc1 K2_RED_DONE
    ds_read_b128 {vr(vB,4)}, v{vTa} offset:{TBL}
    ds_read_b32 v{vNp}, v{vNa} offset:{NPC}
    s_waitcnt lgkmcnt(0)
    """)
    for j in range(3):
        a(f"""
        v_add_u32 v{vB+j}, v{vB+j}, v{vC16}
        ds_read_b128 {vr(vRd+8*j,4)}, v{vB+j}
        ds_read_b128 {vr(vRd+8*j+4,4)}, v{vB+j} offset:256
        """)
    for j in range(3):
        a(f"s_waitcnt lgkmcnt({4-2*j})")
        for i in range(8):
            a(f"v_add_f32 v{vTot+i}, v{vTot+i}, v{vRd+8*j+i}")
    a(f"""
    s_mov_b32 s{sT}, 3
    K2_XL:
    v_cmp_lt_u32 vcc, s{sT}, v{vNp}
    s_cbranch_vccz K2_RED_DONE
    s_lshl_b32 s3, s{sT}, 9
    v_add_u32 v{vT0}, s3, v{vB}
    s_mov_b64 exec, vcc
    ds_read_b128 {vr(vRd,4)}, v{vT0}
    ds_read_b128 {vr(vRd+4,4)}, v{vT0} offset:256
    s_waitcnt lgkmcnt(0)
    """)
    for i in range(8):
        a(f"v_add_f32 v{vTot+i}, v{vTot+i}, v{vRd+i}")
    a(f"""
    s_mov_b64 exec, -1
    s_add_u32 s{sT}, s{sT}, 1
    s_branch K2_XL
    K2_RED_DONE:
    s_add_u32 s{sR}, s{sR}, 1
    s_cmp_ge_u32 s{sR}, s{sNR}
    s_cbranch_scc1 K2_EPI
    s_barrier
    """)
    a(f"""
    s_cmp_ge_u32 s{sWave}, 4
    s_cbranch_scc1 K2_RZ
    v_mov_b32 v{vT2}, 0
    v_lshlrev_b32 v{vT3}, 2, v0
    ds_write_b32 v{vT3}, v{vT2} offset:{HIST}
    K2_RZ:
    v_bfe_u32 v{vT2}, v{vLane}, 2, 1
    v_mul_u32_u24 v{vT2}, 12, v{vT2}
    v_and_b32 v{vT3}, 3, v{vLane}
    v_or_b32 v{vT2}, v{vT2}, v{vT3}
    v_lshlrev_b32 v{vUA}, 8, v{vLane}
    v_lshl_or_b32 v{vUA}, v{vT2}, 4, v{vUA}
    s_waitcnt lgkmcnt(0)
    s_barrier
    s_cmp_lt_u32 s{sWave}, 8
    s_cbranch_scc1 K2_HDRD
    """)
    for i in range(8): a(f"v_mov_b32 v{vW+i}, {EMPTY}")
    a(f"""
    v_subrev_u32 v{vT0}, 512, v0
    v_and_b32 v{vT1}, 1, v{vT0}
    v_lshrrev_b32 v{vT0}, 1, v{vT0}
    v_lshlrev_b32 v{vT2}, 2, v{vT0}
    v_add_u32 v{vT2}, {MF}, v{vT2}
    ds_read_b32 v{vT3}, v{vT2}
    v_lshlrev_b32 v{vT0}, 14, v{vT0}
    v_add_u32 v{vT0}, {WS_OVF}, v{vT0}
    s_lshl_b32 s3, s{sR}, 3
    s_sub_u32 s3, s3, 8
    v_lshl_add_u32 v{vT1}, v{vT1}, 2, s3
    v_lshl_add_u32 v{vT0}, v{vT1}, 3, v{vT0}
    s_mov_b32 s{sQ}, {1 << TAGSH}
    s_mov_b32 s{sT}, {1 << 17}
    s_waitcnt lgkmcnt(0)
    v_sub_u32 v{vT3}, v{vT3}, v{vT1}
    v_cmp_lt_i32 vcc, 0, v{vT3}
    s_and_saveexec_b64 s[{sSave}:{sSave+1}], vcc
    s_cbranch_execz K2_R1
    v_cmp_lt_i32 s[{sM}:{sM+1}], 1, v{vT3}
    v_cmp_lt_i32 s[{sM+2}:{sM+3}], 2, v{vT3}
    v_cmp_lt_i32 s[{sM+4}:{sM+5}], 3, v{vT3}
    K2_RP:
    buffer_load_dwordx4 {vr(vSoM,4)}, v{vT0}, s[{sWS}:{sWS+3}], 0 offen sc1
    buffer_load_dwordx4 {vr(vSoM+4,4)}, v{vT0}, s[{sWS}:{sWS+3}], 0 offen offset:16 sc1
    s_waitcnt vmcnt(0)
    """)
    for i in range(8): a(f"v_xor_b32 v{vSoM+i}, s{sTag}, v{vSoM+i}")
    a(f"v_or_b32 v{vT1}, v{vSoM}, v{vSoM+1}")
    for k in range(1, 4):
        a(f"""
        v_or_b32 v{vT2}, v{vSoM+2*k}, v{vSoM+2*k+1}
        v_cndmask_b32_e64 v{vT2}, 0, v{vT2}, s[{sM+2*(k-1)}:{sM+2*(k-1)+1}]
        v_or_b32 v{vT1}, v{vT1}, v{vT2}
        """)
    a(f"""
    v_cmp_le_u32 vcc, s{sQ}, v{vT1}
    s_cbranch_vccz K2_RPD
    s_sleep 2
    s_sub_u32 s{sT}, s{sT}, 1
    s_cmp_lg_u32 s{sT}, 0
    s_cbranch_scc1 K2_RP
    K2_RPD:
    v_cmp_eq_u32 vcc, s{sBeta}, v{vSoM+1}
    s_nop 1
    v_cndmask_b32_e64 v{vW}, v{vW}, v{vSoM}, vcc
    """)
    for k in range(1, 4):
        a(f"""
        v_cmp_eq_u32 vcc, s{sBeta}, v{vSoM+2*k+1}
        s_nop 0
        s_and_b64 vcc, vcc, s[{sM+2*(k-1)}:{sM+2*(k-1)+1}]
        s_nop 1
        v_cndmask_b32_e64 v{vW+k}, v{vW+k}, v{vSoM+2*k}, vcc
        """)
    a(f"""
    K2_R1:
    s_mov_b64 exec, s[{sSave}:{sSave+1}]
    v_mov_b32 v{vT3}, 1
    s_branch K2_DECODE
    K2_EPI:
    """)
    st.stamp(a)
    vAcc16, vB8 = 24, vXA
    a(f"""
    s_cmp_ge_u32 s{sWave}, 13
    s_cbranch_scc1 K2_WB_DONE
    """)
    for i in range(4):
        a(f"v_cvt_pk_bf16_f32 v{vE+i}, v{vTot+2*i}, v{vTot+2*i+1}")
    a(f"""
    ds_write_b128 v{vWb}, {vr(vE,4)} offset:{AGGB}
    K2_WB_DONE:
    s_waitcnt lgkmcnt(0)
    s_barrier
    s_cmp_ge_u32 s{sWave}, 8
    s_cbranch_scc1 K2_FIN
    """)
    a(f"v_mov_b32 v{vE}, v{vOut}")
    for ks in range(8):
        a(f"ds_read_b128 {vr(vB8+4*ks,4)}, v{vQ+ks} offset:{AGGB}")
    a(f"v_cmp_gt_u32 vcc, {T}, v{vRow}")
    for ks in range(8):
        a(f"s_waitcnt lgkmcnt({7-ks})")
        c = "0" if ks == 0 else vr(vAcc16,16)
        a(f"v_mfma_f32_32x32x16_bf16 {vr(vAcc16,16)}, {vr(vA8+4*ks,4)}, {vr(vB8+4*ks,4)}, {c}")
    a("s_nop 7")
    a("s_nop 3")
    for i in range(8):
        a(f"v_cvt_pk_bf16_f32 v{vQ+i}, v{vAcc16+2*i}, v{vAcc16+2*i+1}")
    a(f"""
    s_and_saveexec_b64 s[{sSave}:{sSave+1}], vcc
    s_cbranch_execz K2_ST_DONE
    buffer_store_dwordx4 {vr(vQ,4)}, v{vE}, s[{sOUT}:{sOUT+3}], 0 offen {opt.outst}
    buffer_store_dwordx4 {vr(vQ+4,4)}, v{vE}, s[{sOUT}:{sOUT+3}], 0 offen offset:16 {opt.outst}
    K2_ST_DONE:
    s_mov_b64 exec, s[{sSave}:{sSave+1}]
    K2_FIN:
    s_cmp_eq_u32 s2, 0
    s_cbranch_scc0 K2_NOEPOCH
    s_cmp_eq_u32 s{sWave}, 15
    s_cbranch_scc0 K2_NOEPOCH
    v_mov_b32 v{vT0}, 0
    v_mov_b32 v{vT1}, s{sTag}
    s_mov_b64 exec, 1
    buffer_store_dword v{vT1}, v{vT0}, s[{sWS}:{sWS+3}], 0 offen sc1
    s_mov_b64 exec, -1
    K2_NOEPOCH:
    """)
    st.stamp(a)
    if opt.stamps:
        a("s_waitcnt vmcnt(0)")
        st.stamp(a)
    st.flush(a, sWS, vT0, sWave)
    a("""
    K2_END:
    s_endpgm
    """)
    return a.text(), LDS, 128

DESCRIPTION = """;
;   out[n] = bf16( sum_{e: dst[e] = n} sigmoid(x[src[e]] . Q[n] / sqrt(128)) * x[src[e]] ) @ w_v,   Q = bf16(x @ w_q)
"""

def build(opt):
    k, lds, v = gen_k(opt)
    n = NAME + "_kernel"
    out = HEADER + DESCRIPTION
    for _ in range(opt.rep):
        out += f"; @launch kernel={n} grid=({NB},1,1) block=(1024,1,1) lds={lds}\n" if opt.aslist or opt.rep > 1 else f"; @launch grid=({NB},1,1) block=(1024,1,1) lds={lds}\n"
    out += '.amdgcn_target "amdgcn-amd-amdhsa--gfx950"\n.text\n'
    out += f".globl {n}\n.p2align 8\n.type {n},@function\n" + k
    out += '.section .rodata,"a"\n.p2align 6\n' + kd(n, v)
    return out

def parse(argv=None):
    p = argparse.ArgumentParser()
    p.add_argument("-o", default="cdna_kernels/" + NAME + ".s")
    p.add_argument("--stamps", action="store_true")
    p.add_argument("--prefetch", type=int, default=5)
    p.add_argument("--mimic", type=int, default=0)
    p.add_argument("--prio", type=int, default=3)
    p.add_argument("--keep", default="")
    p.add_argument("--exp", default="")
    p.add_argument("--outst", default="")
    p.add_argument("--sleep", type=int, default=2)
    p.add_argument("--drain", type=int, default=0)
    p.add_argument("--sleep2", type=int, default=0)
    p.add_argument("--try1", type=int, default=1)
    p.add_argument("--pfn", type=int, default=3)
    p.add_argument("--pfsh", type=int, default=7)
    p.add_argument("--pfsleep", type=int, default=0)
    p.add_argument("--wsbase", type=lambda x: int(x, 0), default=0)
    p.add_argument("--cst", default="sc1")
    p.add_argument("--dmalate", type=int, default=0)
    p.add_argument("--rep", type=int, default=1)
    p.add_argument("--aslist", type=int, default=0)
    p.add_argument("--style", default="roll")
    return p.parse_args(argv)

if __name__ == "__main__":
    o = parse()
    open(o.o, "w").write(build(o))
    print("wrote", o.o)
```
